```python
import torch

def _softmax(x, axis=-1):
    return torch.softmax(x, dim=axis)
def _gelu(x):
    return torch.nn.functional.gelu(x, approximate="tanh")
def _silu(x):
    return torch.nn.functional.silu(x)
def _sigmoid(x):
    return torch.sigmoid(x)
def _layernorm(x, axis=-1, eps=1e-5):
    m = x.mean(dim=axis, keepdim=True)
    v = x.var(dim=axis, keepdim=True, unbiased=False)
    return (x - m) / torch.sqrt(v + eps)
def _scatter_add(tgt, idx, src, axis=0):
    return tgt.clone().index_add_(axis, idx, src)
def _segment_sum(src, seg, n):
    out = torch.zeros((n,) + src.shape[1:], dtype=src.dtype)
    return out.index_add_(0, seg, src)
def _pad(x, pw):
    flat = tuple(v for pair in reversed(pw) for v in pair)
    return torch.nn.functional.pad(x, flat)

kernel_name = 'concat_heads__mha_block_cached__mha_block_cached__near_ridge'

def setup_inputs():

    _w = (lambda a: (lambda t: t.to(torch.bfloat16) if t.is_floating_point() else t)(torch.as_tensor(a)))
    def _A_setup():
        B, Sq, D = 8, 144, 1024
        H, Sk, Dh = 32, 512, 128
        return {
            "x": _w((lambda *s: torch.randn(*s, dtype=torch.bfloat16) * 0.8)(B, Sq, D)),
            "k_cache": _w((lambda *s: torch.randn(*s, dtype=torch.bfloat16) * 0.8)(B, H, Sk, Dh)),
            "v_cache": _w((lambda *s: torch.randn(*s, dtype=torch.bfloat16) * 0.05)(B, H, Sk, Dh)),
            "wq": _w((lambda *s: torch.randn(*s, dtype=torch.bfloat16) * 0.8)(D, H * Dh) * (D ** -0.5)),
            "wo": _w((lambda *s: torch.randn(*s, dtype=torch.bfloat16) * 0.05)(H * Dh, D) * ((H * Dh) ** -0.5)),
        }
    _A_in = _A_setup()

    def _B_setup():
        B, Sq, D = 8, 144, 1024
        H, Sk, Dh = 32, 512, 128
        return {
            "x": _w((lambda *s: torch.randn(*s, dtype=torch.bfloat16) * 0.8)(B, Sq, D)),
            "k_cache": _w((lambda *s: torch.randn(*s, dtype=torch.bfloat16) * 0.8)(B, H, Sk, Dh)),
            "v_cache": _w((lambda *s: torch.randn(*s, dtype=torch.bfloat16) * 0.05)(B, H, Sk, Dh)),
            "wq": _w((lambda *s: torch.randn(*s, dtype=torch.bfloat16) * 0.8)(D, H * Dh) * (D ** -0.5)),
            "wo": _w((lambda *s: torch.randn(*s, dtype=torch.bfloat16) * 0.05)(H * Dh, D) * ((H * Dh) ** -0.5)),
        }
    _B_in = _B_setup()

    return {
        "A_x": _A_in["x"],
        "A_k_cache": _A_in["k_cache"],
        "A_v_cache": _A_in["v_cache"],
        "A_wq": _A_in["wq"],
        "A_wo": _A_in["wo"],
        "B_x": _B_in["x"],
        "B_k_cache": _B_in["k_cache"],
        "B_v_cache": _B_in["v_cache"],
        "B_wq": _B_in["wq"],
        "B_wo": _B_in["wo"],
    }

def reference(A_x, A_k_cache, A_v_cache, A_wq, A_wo, B_x, B_k_cache, B_v_cache, B_wq, B_wo):
    def _A_ref(x, k_cache, v_cache, wq, wo):
        B, Sq, D = x.shape
        H, Dh = 32, 128
        q = (lambda x, *d: x.permute(*d))((x @ wq).reshape(B, Sq, H, Dh), 0, 2, 1, 3)
        scores = torch.einsum("bhqd,bhkd->bhqk", q, k_cache) * (Dh ** -0.5)
        p = _softmax(scores, axis=-1)
        o = torch.einsum("bhqk,bhkd->bhqd", p, v_cache)
        return (lambda x, *d: x.permute(*d))(o, 0, 2, 1, 3).reshape(B, Sq, H * Dh) @ wo

    def _B_ref(x, k_cache, v_cache, wq, wo):
        B, Sq, D = x.shape
        H, Dh = 32, 128
        q = (lambda x, *d: x.permute(*d))((x @ wq).reshape(B, Sq, H, Dh), 0, 2, 1, 3)
        scores = torch.einsum("bhqd,bhkd->bhqk", q, k_cache) * (Dh ** -0.5)
        p = _softmax(scores, axis=-1)
        o = torch.einsum("bhqk,bhkd->bhqd", p, v_cache)
        return (lambda x, *d: x.permute(*d))(o, 0, 2, 1, 3).reshape(B, Sq, H * Dh) @ wo

    a = _A_ref(A_x, A_k_cache, A_v_cache, A_wq, A_wo)
    b = _B_ref(B_x, B_k_cache, B_v_cache, B_wq, B_wo)
    return torch.concatenate([a, b], axis=-1)
```

```python
import re

REG_RE = re.compile(r'^(-|\|)?(?:abs\()?([vsa])(?:(\d+)|\[(\d+):(\d+)\])\)?\|?$')

def parse_reg(tok):
    tok = tok.strip()
    if tok in ('vcc',): return [('s', 106), ('s', 107)]
    if tok == 'vcc_lo': return [('s', 106)]
    if tok == 'vcc_hi': return [('s', 107)]
    if tok == 'm0': return [('s', 124)]
    if tok == 'exec': return [('s', 126), ('s', 127)]
    if tok == 'exec_lo': return [('s', 126)]
    if tok == 'exec_hi': return [('s', 127)]
    m = REG_RE.match(tok)
    if not m: return []
    f = m.group(2)
    if m.group(3) is not None:
        return [(f, int(m.group(3)))]
    return [(f, i) for i in range(int(m.group(4)), int(m.group(5)) + 1)]

TRANS = ('v_exp_f32', 'v_log_f32', 'v_rcp_f32', 'v_rsq_f32', 'v_sqrt_f32', 'v_sin_f32', 'v_cos_f32')

class Insn:
    __slots__ = ('text', 'mn', 'ops', 'mods', 'kind', 'wr', 'rd', 'A', 'B', 'C', 'D', 'passes', 'lds', 'target', 'label', 'ws', 'data', 'comment')
    def __init__(self, text):
        self.text = text
        self.label = None
        self.target = None
        self.lds = False
        self.A = self.B = self.C = self.D = self.data = ()
        self.passes = 0
        t = text.split(';')[0].strip()
        if t.endswith(':'):
            self.kind = 'label'; self.label = t[:-1]; self.mn = ''; self.wr = set(); self.rd = set(); self.ws = 0
            return
        parts = t.split(None, 1)
        self.mn = mn = parts[0]
        rest = parts[1] if len(parts) > 1 else ''
        ops = [o.strip() for o in rest.split(',')] if rest else []
        mods = []
        if ops:
            last = ops[-1].split()
            if mn in ('s_waitcnt',):
                mods = rest.split(); ops = []
            else:
                ops[-1] = last[0]; mods = last[1:]
        self.ops = ops; self.mods = mods
        R = [parse_reg(o) for o in ops]
        wr, rd = set(), set()
        self.ws = 1
        if mn.startswith('v_mfma'):
            self.kind = 'mfma'
            self.D, self.A, self.B, self.C = R[0], R[1], R[2], R[3]
            wr |= set(R[0]); rd |= set(R[1]) | set(R[2]) | set(R[3])
            self.passes = 4 if '16x16x32' in mn else 8 if '32x32x16' in mn else None
            assert self.passes
        elif mn.startswith('v_'):
            self.kind = 'valu'
            wr |= set(R[0])
            for r in R[1:]: rd |= set(r)
            if 'swap' in mn:
                wr |= set(R[1]); rd |= set(R[0])
            if mn.startswith('v_fmac') or mn.startswith('v_pk_fmac') or mn.startswith('v_writelane'):
                rd |= set(R[0])
            if mn.startswith('v_add_co') or mn.startswith('v_sub_co') or mn.startswith('v_addc_co'):
                wr |= set(R[1]); rd -= set(R[1]) - set(sum(R[2:], []))
            if mn.startswith('v_cndmask') and len(ops) == 3:
                rd |= {('s', 106), ('s', 107)}
            if mn.startswith('v_cmpx'):
                wr |= {('s', 126), ('s', 127)}
        elif mn.startswith('ds_'):
            self.kind = 'ds'
            if mn.startswith('ds_read') or mn.startswith('ds_bpermute') or mn.startswith('ds_swizzle'):
                wr |= set(R[0])
                for r in R[1:]: rd |= set(r)
            else:
                for r in R: rd |= set(r)
                self.data = sum(R[1:], [])
        elif mn.startswith('buffer_') or mn.startswith('global_'):
            self.kind = 'vmem'
            self.lds = 'lds' in mods
            if mn.startswith('buffer_wbl2') or mn.startswith('buffer_inv'):
                pass
            elif self.lds:
                for r in R: rd |= set(r)
                rd.add(('s', 124))
            elif 'load' in mn:
                wr |= set(R[0])
                for r in R[1:]: rd |= set(r)
            elif 'atomic' in mn:
                for r in R: rd |= set(r)
                if 'sc0' in mods: wr |= set(R[0])
            else:
                for r in R: rd |= set(r)
                self.data = R[0] if mn.startswith('buffer_') else R[1]
        elif mn.startswith('s_'):
            self.kind = 'salu'
            if mn == 's_nop':
                self.ws = int(ops[0], 0) + 1
            elif mn in ('s_branch',) or mn.startswith('s_cbranch'):
                self.kind = 'branch'; self.target = ops[0]
                if 'vcc' in mn: rd |= {('s', 106), ('s', 107)}
                if 'exec' in mn: rd |= {('s', 126), ('s', 127)}
            elif mn.startswith('s_cmp') or mn.startswith('s_bitcmp'):
                for r in R: rd |= set(r)
            elif mn in ('s_waitcnt', 's_barrier', 's_endpgm', 's_setprio', 's_sleep'):
                pass
            elif mn.startswith('s_load') or mn.startswith('s_memtime') or mn.startswith('s_memrealtime') or mn.startswith('s_atomic'):
                self.kind = 'smem'
                wr |= set(R[0])
                for r in R[1:]: rd |= set(r)
            else:
                wr |= set(R[0])
                for r in R[1:]: rd |= set(r)
                if mn in ('s_addk_i32', 's_mulk_i32'): rd |= set(R[0])
                if 'saveexec' in mn:
                    wr |= {('s', 126), ('s', 127)}; rd |= {('s', 126), ('s', 127)}
        else:
            raise ValueError('unknown insn: ' + text)
        self.wr, self.rd = wr, rd

def need_ws(p, c):
    w = 0
    pv = {r for r in p.wr if r[0] in 'va'}
    ps = {r for r in p.wr if r[0] == 's'}
    if p.kind == 'valu':
        if c.kind == 'mfma' and pv & c.rd: w = max(w, 2)
        if c.kind == 'valu':
            if re.sub(r'_e(32|64)$', '', p.mn) in TRANS and pv & (c.rd): w = max(w, 1)
            if 'permlane' in c.mn and pv & c.rd: w = max(w, 2)
            if ('readlane' in c.mn or 'readfirstlane' in c.mn) and pv & c.rd: w = max(w, 1)
            if any(m.startswith(('row_', 'quad_perm', 'wave_', 'dpp')) for m in c.mods) and pv & c.rd: w = max(w, 2)
            if ps & c.rd:
                w = max(w, 4 if ('readlane' in c.mn or 'writelane' in c.mn) else 2)
        if c.kind == 'vmem' and ps & c.rd: w = max(w, 5)
        if c.kind in ('salu', 'smem') and ps & c.rd: w = max(w, 1)
        if ('s', 126) in ps or ('s',127) in ps:
            if c.kind == 'mfma': w = max(w, 4)
            if c.kind == 'valu' and ('readlane' in c.mn or 'readfirstlane' in c.mn or 'permlane' in c.mn): w = max(w, 4)
    if p.kind == 'mfma':
        big = {4: 8, 8: 12}[p.passes]
        ov = {4: 6, 8: 10}[p.passes]
        D = set(p.D)
        if c.kind == 'mfma':
            if D & (set(c.A) | set(c.B)): w = max(w, big)
            if D & set(c.C):
                if not (list(c.C) == list(p.D) and c.passes == p.passes): w = max(w, ov)
            elif D & set(c.D): w = max(w, ov)
        elif c.kind in ('valu', 'vmem', 'ds'):
            if D & (c.rd | c.wr): w = max(w, big)
        if c.kind == 'valu' and set(p.C) & c.wr: w = max(w, {4: 3, 8: 7}[p.passes])
    if p.kind == 'salu' and ('s', 124) in ps and c.kind == 'vmem' and c.lds: w = max(w, 1)
    if p.kind == 'vmem' and p.data and len(p.data) >= 3 and set(p.data) & c.wr:
        w = max(w, 2 if c.kind == 'valu' else 1)
    return w

class Asm:
    def __init__(self):
        self.ins = []
        self.lg = []
        self.auto = True
        self.nlabel = 0
    def raw(self, text):
        self.ins.append(Insn(text))
    def label(self, name):
        self.ins.append(Insn(name + ':'))
    def newlabel(self, base):
        self.nlabel += 1
        return f'{base}_{self.nlabel}'
    def wait_lg(self, n):
        assert 0 <= n <= 15
        self.ins.append(Insn(f's_waitcnt lgkmcnt({n})'))
        if n < len(self.lg): self.lg = self.lg[len(self.lg) - n:] if n else []
    def I(self, text):
        i = Insn(text)
        if self.auto and i.kind != 'label':
            touched = i.rd | i.wr
            idx = -1
            for k, d in enumerate(self.lg):
                if d & touched: idx = k
            if idx >= 0:
                n = len(self.lg) - 1 - idx
                self.wait_lg(min(n, 15))
        if i.mn == 's_waitcnt':
            for m in i.mods:
                mm = re.match(r'lgkmcnt\((\d+)\)', m)
                if mm:
                    n = int(mm.group(1))
                    if n < len(self.lg): self.lg = self.lg[len(self.lg) - n:] if n else []
        self.ins.append(i)
        if i.kind == 'ds':
            self.lg.append(set(i.wr))
        return i
    def many(self, lst):
        for t in lst: self.I(t)

    def pad_hazards(self, verbose=False):
        total = 0
        while True:
            ins = self.ins
            lab = {x.label: k for k, x in enumerate(ins) if x.kind == 'label'}
            srcs = {}
            for k, x in enumerate(ins):
                if x.kind == 'branch': srcs.setdefault(lab[x.target], []).append(k)
            def preds(k):
                r = []
                if k > 0 and ins[k - 1].mn not in ('s_branch', 's_endpgm'): r.append(k - 1)
                r += srcs.get(k, [])
                return r
            fix = None
            for k, c in enumerate(ins):
                if c.kind in ('label',): continue
                worst = 0; why = None
                stack = [(p, 0) for p in preds(k)]
                seen = {}
                while stack:
                    p, dist = stack.pop()
                    if dist >= 12: continue
                    if seen.get(p, 99) <= dist: continue
                    seen[p] = dist
                    x = ins[p]
                    if x.kind != 'label':
                        w = need_ws(x, c)
                        if w - dist > worst: worst = w - dist; why = x
                    for q in preds(p): stack.append((q, dist + x.ws))
                if worst > 0:
                    fix = (k, worst, why); break
            if not fix: break
            k, n, why = fix
            if verbose: print(f'pad {n} before [{ins[k].text}] due to [{why.text}]')
            self.ins.insert(k, Insn(f's_nop {n - 1}'))
            total += n
        return total

    def text(self):
        out = []
        for x in self.ins:
            out.append(x.text if x.kind == 'label' else '    ' + x.text)
        return '\n'.join(out) + '\n'

    def trace(self, wg, wave, vcc_policy, entry=0, maxsteps=200000):
        ins = self.ins
        lab = {x.label: k for k, x in enumerate(ins) if x.kind == 'label'}
        S = {2: wg}; scc = None
        M = 0xffffffff
        def val(tok):
            tok = tok.strip()
            r = parse_reg(tok)
            if r:
                if r[0][0] == 's' and len(r) == 1: return S.get(r[0][1])
                return None
            try: return int(tok, 0) & M
            except ValueError: return None
        pc = entry; tr = []; nv = 0
        while True:
            x = ins[pc]; pc += 1
            if x.kind == 'label': continue
            tr.append(x)
            assert len(tr) < maxsteps, 'trace too long'
            mn = x.mn
            if mn == 's_endpgm': break
            if x.kind == 'branch':
                if mn == 's_branch': t = True
                elif mn == 's_cbranch_scc1': assert scc is not None, x.text; t = scc
                elif mn == 's_cbranch_scc0': assert scc is not None, x.text; t = not scc
                elif mn == 's_cbranch_vccnz': t = vcc_policy(nv, x); nv += 1
                elif mn == 's_cbranch_vccz': t = not vcc_policy(nv, x); nv += 1
                elif mn == 's_cbranch_execz': t = False
                else: raise ValueError(mn)
                if t: pc = lab[x.target]
                continue
            if x.kind == 'salu' and x.ops and mn not in ('s_nop', 's_setprio', 's_sleep'):
                if mn.startswith('s_cmp'):
                    a, b = val(x.ops[0]), val(x.ops[1])
                    if a is None or b is None: scc = None
                    else:
                        op = mn.split('_')[2]
                        if mn.endswith('i32'):
                            a = a - (1 << 32) if a >> 31 else a; b = b - (1 << 32) if b >> 31 else b
                        scc = {'eq': a == b, 'lg': a != b, 'lt': a < b, 'le': a <= b, 'gt': a > b, 'ge': a >= b}[op]
                    continue
                d = parse_reg(x.ops[0])
                a = val(x.ops[1]) if len(x.ops) > 1 else None
                b = val(x.ops[2]) if len(x.ops) > 2 else None
                r = None; nscc = scc
                if len(d) == 1:
                    if mn in ('s_mov_b32', 's_movk_i32'): r = a
                    elif mn == 's_cselect_b32': r = None if scc is None else (a if scc else b)
                    elif a is not None and b is not None:
                        if mn in ('s_add_u32', 's_add_i32'): r = (a + b) & M; nscc = (a + b) > M
                        elif mn in ('s_sub_u32', 's_sub_i32'): r = (a - b) & M; nscc = a < b
                        elif mn == 's_mul_i32': r = (a * b) & M
                        elif mn == 's_lshl_b32': r = (a << (b & 31)) & M; nscc = r != 0
                        elif mn == 's_lshr_b32': r = a >> (b & 31); nscc = r != 0
                        elif mn == 's_and_b32': r = a & b; nscc = r != 0
                        elif mn == 's_or_b32': r = a | b; nscc = r != 0
                        elif mn == 's_xor_b32': r = a ^ b; nscc = r != 0
                        else: nscc = None
                    else:
                        if mn not in ('s_mul_i32',): nscc = None
                    S[d[0][1]] = r
                else:
                    for q in d: S[q[1]] = None
                    if mn not in ('s_mov_b64', 's_cselect_b64'): nscc = None
                scc = nscc
            elif x.kind in ('valu', 'smem'):
                for q in x.wr:
                    if q[0] == 's': S[q[1]] = None
                if mn.startswith('v_readfirstlane') and 'WAVEID' in x.text:
                    S[parse_reg(x.ops[0])[0][1]] = wave
        return tr

    def verify_waits(self, tr):
        vm, lg, sm = [], [], []
        errs = 0; nbar = 0
        for x in tr:
            if x.mn == 's_waitcnt':
                for m in x.mods:
                    mm = re.match(r'(vmcnt|lgkmcnt)\((\d+)\)', m)
                    if mm:
                        n = int(mm.group(2)); q = vm if mm.group(1) == 'vmcnt' else lg
                        if mm.group(1) == 'lgkmcnt' and n == 0: sm.clear()
                        del q[:max(0, len(q) - n)]
                continue
            if x.mn == 's_barrier': nbar += 1
            t = x.rd | x.wr
            for q in (vm, lg, sm):
                for d, k, src in q:
                    if d & t:
                        if errs < 3: print('WAIT ERROR:', x.text, ' <- outstanding', src)
                        errs += 1
            if x.kind == 'vmem': vm.append((set(x.wr), 'vm', x.text)); assert len(vm) <= 63, 'vmcnt overflow'
            if x.kind == 'ds': lg.append((set(x.wr), 'ds', x.text))
            if x.kind == 'smem': sm.append((set(x.wr), 'smem', x.text))
        return errs, nbar

def vr(base, n=1):
    return f'v{base}' if n == 1 else f'v[{base}:{base + n - 1}]'
def sr(base, n=1):
    return f's{base}' if n == 1 else f's[{base}:{base + n - 1}]'

def interleave(asm, mains, fillers, start=0, per=1, end=None):
    f = list(fillers)
    def emit(x):
        if callable(x): x()
        elif isinstance(x, (list, tuple)):
            for y in x: emit(y)
        else: asm.I(x)
    for i, m in enumerate(mains):
        emit(m)
        if i >= start:
            for _ in range(per):
                if f: emit(f.pop(0))
    for x in f: emit(x)
```

```python
import sys, math, struct
from asmlib import *

NAME = 'concat_heads__mha_block_cached__mha_block_cached__near_ridge'
OPT = dict(stamp=0, kvnt=1, wnt=0, xnt=0, ont=0, wont=0, oldnt=0)
for a in sys.argv[2:]:
    k, v = a.split('='); OPT[k] = int(v)

def fbits(x): return '0x%08x' % struct.unpack('<I', struct.pack('<f', x))[0]
NT = lambda k: ' nt' if OPT[k] else ''
O_SLICE = 128 * 9216
STAMP_OFF = 64 << 20

class Stamper:
    def __init__(self, a, region):
        self.a = a; self.n = 0; self.region = region
    def real(self):
        if OPT['stamp']:
            self.a.I(f's_memrealtime {sr(76 + 2 * self.n, 2)}'); self.n += 1
    def cyc(self):
        if OPT['stamp']:
            self.a.I(f's_memtime {sr(76 + 2 * self.n, 2)}'); self.n += 1
    def flush(self, s_ws, s_wave, srd, vt):
        if not OPT['stamp']: return
        a = self.a
        assert self.n <= 12
        a.I('s_waitcnt vmcnt(0) lgkmcnt(0)')
        a.I(f's_add_u32 {sr(srd)}, {sr(s_ws)}, {STAMP_OFF + self.region * (1 << 20)}')
        a.I(f's_addc_u32 {sr(srd + 1)}, {sr(s_ws + 1)}, 0')
        a.I(f's_mov_b32 {sr(srd + 2)}, {1 << 20}')
        a.I(f's_mov_b32 {sr(srd + 3)}, 0x20000')
        a.I(f's_lshl_b32 s3, s2, 3')
        a.I(f's_add_u32 s3, s3, {sr(s_wave)}')
        a.I(f's_lshl_b32 s3, s3, 6')
        a.I(f'v_mov_b32 {vr(vt)}, 0')
        for i in range(self.n):
            a.I(f'v_mov_b32 {vr(vt + 1)}, {sr(76 + 2 * i)}')
            a.I(f'buffer_store_dword {vr(vt + 1)}, {vr(vt)}, {sr(srd, 4)}, s3 offen offset:{4 * i}')
            a.I('s_nop 1')

def gen_k1():
    a = Asm()
    st = Stamper(a, 0)
    sX, sW, sK, sV, sO = 20, 24, 28, 32, 36
    sWAVE, sR, sHH, sBLK, sB, sHP = 40, 41, 42, 43, 44, 45
    sM0W, sM0X = 46, 47
    sOW = 48
    sOX = 52
    sCNT, sT0, sT1 = 55, 56, 57
    sKP, sVP, sM0A, sJ, sDK, sDV, sOV, sOK = 58, 59, 60, 61, 62, 63, 64, 65
    sTHR, sTHR8, sCL, sCL8, sC = 66, 67, 68, 69, 70
    sKPo, sVPo = 71, 72
    sPo = 4
    vW = 1
    vK = 9
    vX, vX8 = 9, 11
    vDK, vDV, vDW, vDX = 13, 14, 15, 16
    vT = 15
    vL = 17
    ACC, FA, FB, KV = 24, 96, 140, 184
    O, Q, S, POOL, NEGM, L = 24, 120, 168, 208, 240, 252
    vLANE16 = 255
    XB = 49152
    def acc(T, d): return ACC + (T * 8 + d) * 4 if T < 2 else ACC + 64 + d * 4
    def o_(T, d): return O + (T * 8 + d) * 4
    def q_(T, k): return Q + (T * 4 + k) * 4
    def s_(T, j, tt): return S + (T * 2 + j) * 8 + tt * 4 if T < 2 else S + 32 + tt * 4
    kvreg = {'V1': KV, 'K0': KV + 16, 'V0': KV + 32, 'K1': KV + 48}

    a.raw('s_cmp_ge_u32 s2, 256')
    a.raw('s_cbranch_scc1 k1_end')
    st.real(); st.cyc()
    a.I('s_and_b32 s3, s2, 7')
    a.I('s_lshr_b32 s4, s2, 3')
    a.I(f's_lshr_b32 {sr(sBLK)}, s3, 2')
    a.I(f's_mul_i32 s5, {sr(sBLK)}, 40')
    a.I('s_load_dwordx8 s[8:15], s[0:1], s5')
    a.I('s_load_dwordx2 s[16:17], s[0:1], 96')
    a.I('s_and_b32 s3, s3, 3')
    a.I('s_lshl_b32 s3, s3, 2')
    a.I('s_and_b32 s5, s4, 3')
    a.I(f's_add_u32 {sr(sHP)}, s3, s5')
    a.I(f's_lshr_b32 {sr(sB)}, s4, 2')
    a.I(f'v_lshrrev_b32 {vr(vL)}, 6, v0')
    a.I(f'v_readfirstlane_b32 {sr(sWAVE)}, {vr(vL)} ; WAVEID')
    a.I('v_and_b32 v0, 63, v0')
    a.I(f's_and_b32 {sr(sR)}, {sr(sWAVE)}, 3')
    a.I(f's_lshr_b32 {sr(sHH)}, {sr(sWAVE)}, 2')
    g, n, t0, t1, t2, t3 = vL, vL + 1, vL + 2, vL + 3, vL + 4, vL + 5
    a.I(f'v_lshrrev_b32 {vr(g)}, 4, v0')
    a.I(f'v_and_b32 {vr(n)}, 15, v0')
    a.I(f'v_lshlrev_b32 {vr(vLANE16)}, 4, v0')
    a.I(f's_and_b32 {sr(sT0)}, {sr(sR)}, 1')
    a.I(f's_lshl_b32 {sr(sT1)}, {sr(sT0)}, 2')
    a.I(f'v_add_u32 {vr(t0)}, {sr(sT1)}, {vr(g)}')
    a.I(f'v_lshrrev_b32 {vr(t1)}, 1, {vr(n)}')
    a.I(f'v_xor_b32 {vr(t1)}, {vr(t1)}, {vr(t0)}')
    a.I(f'v_lshlrev_b32 {vr(t1)}, 5, {vr(t1)}')
    a.I(f'v_and_b32 {vr(t2)}, 1, {vr(n)}')
    a.I(f'v_lshl_add_u32 {vr(t1)}, {vr(t2)}, 4, {vr(t1)}')
    a.I(f's_lshl_b32 {sr(sT1)}, {sr(sR)}, 4')
    a.I(f'v_add_u32 {vr(t0)}, {sr(sT1)}, {vr(g)}')
    a.I(f'v_lshl_add_u32 {vr(vDW)}, {vr(t0)}, 13, {vr(t1)}')
    a.I(f's_lshl_b32 {sr(sT1)}, {sr(sHH)}, 8')
    a.I(f'v_add_u32 {vr(vDW)}, {sr(sT1)}, {vr(vDW)}')
    a.I(f'v_lshl_add_u32 {vr(vDV)}, {vr(t0)}, 8, {vr(t1)}')
    a.I(f's_lshl_b32 {sr(sT1)}, {sr(sHH)}, 17')
    a.I(f'v_add_u32 {vr(vDV)}, {sr(sT1)}, {vr(vDV)}')
    a.I(f's_lshl_b32 s3, {sr(sR)}, 2')
    a.I(f'v_add_u32 {vr(t2)}, s3, {vr(g)}')
    a.I(f'v_xor_b32 {vr(t2)}, {vr(t2)}, {vr(n)}')
    a.I(f'v_lshlrev_b32 {vr(t2)}, 4, {vr(t2)}')
    a.I(f'v_lshl_add_u32 {vr(vDK)}, {vr(t0)}, 8, {vr(t2)}')
    a.I(f'v_add_u32 {vr(vDK)}, {sr(sT1)}, {vr(vDK)}')
    a.I(f's_lshl_b32 s3, {sr(sWAVE)}, 2')
    a.I(f'v_add_u32 {vr(t0)}, s3, {vr(g)}')
    a.I(f'v_and_b32 {vr(t0)}, 7, {vr(t0)}')
    a.I(f'v_and_b32 {vr(t1)}, 2, {vr(t0)}')
    a.I(f'v_lshlrev_b32 {vr(t1)}, 1, {vr(t1)}')
    a.I(f'v_xor_b32 {vr(t0)}, {vr(t0)}, {vr(t1)}')
    a.I(f'v_and_b32 {vr(t1)}, 7, v0')
    a.I(f'v_xor_b32 {vr(t0)}, {vr(t0)}, {vr(t1)}')
    a.I(f'v_lshlrev_b32 {vr(t0)}, 4, {vr(t0)}')
    a.I(f'v_lshrrev_b32 {vr(t1)}, 3, v0')
    a.I(f's_lshl_b32 s3, {sr(sWAVE)}, 3')
    a.I(f'v_add_u32 {vr(t1)}, s3, {vr(t1)}')
    a.I(f'v_lshl_add_u32 {vr(vDX)}, {vr(t1)}, 11, {vr(t0)}')
    a.I(f's_mul_i32 {sr(sM0W)}, {sr(sHH)}, 114688')
    a.I(f's_lshl_b32 s3, {sr(sR)}, 12')
    a.I(f's_mov_b32 s6, {sr(sM0W)}')
    a.I(f's_add_u32 {sr(sM0W)}, {sr(sM0W)}, s3')
    a.I(f's_mul_i32 {sr(sM0A)}, {sr(sHH)}, 81920')
    a.I(f's_add_u32 {sr(sM0A)}, {sr(sM0A)}, s3')
    a.I(f's_lshl_b32 {sr(sM0X)}, {sr(sWAVE)}, 10')
    a.I(f's_add_u32 {sr(sM0X)}, {sr(sM0X)}, {XB}')
    for j in range(4): a.I(f's_mov_b32 {sr(sOW + j)}, {j * (32768 - 1024)}')
    for j in range(3): a.I(f's_mov_b32 {sr(sOX + j)}, {j * 131072}')
    a.I('s_waitcnt lgkmcnt(0)')
    a.I(f's_mul_i32 s3, {sr(sB)}, 294912')
    a.I(f's_add_u32 {sr(sX)}, s8, s3')
    a.I(f's_addc_u32 {sr(sX + 1)}, s9, 0')
    a.I(f's_mov_b32 {sr(sX + 2)}, 294912')
    a.I(f's_mov_b32 {sr(sX + 3)}, 0x20000')
    a.I(f's_lshl_b32 s3, {sr(sHP)}, 9')
    a.I(f's_add_u32 {sr(sW)}, s14, s3')
    a.I(f's_addc_u32 {sr(sW + 1)}, s15, 0')
    a.I(f's_sub_u32 {sr(sW + 2)}, 8388608, s3')
    a.I(f's_mov_b32 {sr(sW + 3)}, 0x20000')
    a.I(f's_lshl_b32 s3, {sr(sB)}, 4')
    a.I(f's_add_u32 s3, s3, {sr(sHP)}')
    a.I('s_lshl_b32 s3, s3, 18')
    for (d, p) in ((sK, 10), (sV, 12)):
        a.I(f's_add_u32 {sr(d)}, {sr(p)}, s3')
        a.I(f's_addc_u32 {sr(d + 1)}, {sr(p + 1)}, 0')
        a.I(f's_mov_b32 {sr(d + 2)}, 262144')
        a.I(f's_mov_b32 {sr(d + 3)}, 0x20000')

    def stage_dma(slot):
        L_ = []
        L_.append([f's_add_u32 m0, {sr(sM0W)}, {slot * 16384}',
                   f'buffer_load_dwordx4 {vr(vDW)}, {sr(sW, 4)}, {sr(sOW)} offen{NT("wnt")} lds',
                   f's_add_u32 {sr(sOW)}, {sr(sOW)}, 524288'])
        for j in range(1, 4):
            L_.append([f'buffer_load_dwordx4 {vr(vDW)}, {sr(sW, 4)}, {sr(sOW + j)} offen offset:{j * 1024}{NT("wnt")} lds',
                       f's_add_u32 {sr(sOW + j)}, {sr(sOW + j)}, 524288'])
        for j in range(2):
            L_.append([f's_add_u32 m0, {sr(sM0X)}, {slot * 18432 + j * 8192}',
                       f'buffer_load_dwordx4 {vr(vDX)}, {sr(sX, 4)}, {sr(sOX + j)} offen{NT("xnt")} lds',
                       f's_add_u32 {sr(sOX + j)}, {sr(sOX + j)}, 128'])
        def third():
            lb = a.newlabel('k1_skipx')
            a.I(f's_add_u32 m0, {sr(sM0X)}, {slot * 18432 + 16384}')
            a.I(f's_cmp_ge_u32 {sr(sWAVE)}, 2')
            a.I(f's_cbranch_scc1 {lb}')
            a.I(f'buffer_load_dwordx4 {vr(vDX)}, {sr(sX, 4)}, {sr(sOX + 2)} offen{NT("xnt")} lds')
            a.label(lb)
            a.I(f's_add_u32 {sr(sOX + 2)}, {sr(sOX + 2)}, 128')
        L_.append(third)
        return L_
    kvlist = [(it, j) for it in ('K0', 'V0', 'K1', 'V1') for j in range(4)]
    def kv_load(idx):
        it, j = kvlist[idx]
        srd, vd = (sK, vDK) if it[0] == 'K' else (sV, vDV)
        so = '0' if it[1] == '0' else sr(sT1)
        return f'buffer_load_dwordx4 {vr(kvreg[it] + 4 * j, 4)}, {vr(vd)}, {sr(srd, 4)}, {so} offen offset:{j * 1024}{NT("kvnt")}'

    for s in range(3): interleave(a, [], stage_dma(s))
    a.I(f's_mov_b32 {sr(sT1)}, 16384')
    for i in range(4): a.I(kv_load(i))
    a.I(f'v_bfe_u32 {vr(t0)}, v0, 2, 2')
    a.I(f'v_lshl_add_u32 {vr(t1)}, {vr(g)}, 4, {vr(t0)}')
    a.I(f'v_lshlrev_b32 {vr(t1)}, 8, {vr(t1)}')
    a.I(f'v_and_b32 {vr(t2)}, 3, v0')
    a.I(f'v_lshl_add_u32 {vr(t1)}, {vr(t2)}, 3, {vr(t1)}')
    a.I(f'v_add_u32 {vr(t1)}, s6, {vr(t1)}')
    a.I(f'v_and_b32 {vr(t2)}, 1, {vr(g)}')
    a.I(f'v_lshl_add_u32 {vr(t0)}, {vr(t2)}, 2, {vr(t0)}')
    a.I(f's_lshl_b32 s3, {sr(sR)}, 1')
    for j in range(8):
        a.I(f's_add_u32 s4, s3, {j}')
        a.I('s_and_b32 s4, s4, 7')
        a.I(f'v_xor_b32 {vr(t2)}, s4, {vr(t0)}')
        a.I(f'v_lshl_add_u32 {vr(vW + j)}, {vr(t2)}, 5, {vr(t1)}')
    a.I(f'v_lshrrev_b32 {vr(t0)}, 1, {vr(n)}')
    a.I(f'v_and_b32 {vr(t1)}, 2, {vr(t0)}')
    a.I(f'v_lshlrev_b32 {vr(t1)}, 1, {vr(t1)}')
    a.I(f'v_xor_b32 {vr(t0)}, {vr(t0)}, {vr(t1)}')
    a.I(f'v_lshlrev_b32 {vr(t1)}, 1, {vr(g)}')
    a.I(f'v_xor_b32 {vr(t0)}, {vr(t0)}, {vr(t1)}')
    a.I(f'v_lshlrev_b32 {vr(t0)}, 4, {vr(t0)}')
    a.I(f'v_lshl_add_u32 {vr(t0)}, {vr(n)}, 7, {vr(t0)}')
    a.I(f'v_add_u32 {vr(vX8)}, {XB + 16384}, {vr(t0)}')
    a.I(f's_lshl_b32 s3, {sr(sR)}, 12')
    a.I(f's_add_u32 s3, s3, {XB}')
    a.I(f'v_add_u32 {vr(vX)}, s3, {vr(t0)}')
    a.I(f'v_xor_b32 {vr(vX + 1)}, 16, {vr(vX)}')
    a.I(f'v_xor_b32 {vr(vX8 + 1)}, 16, {vr(vX8)}')
    for i in range(0, 72, 2): a.I(f'v_mov_b64 {vr(ACC + i, 2)}, 0')

    def frag_reads(F, slot, ks):
        r = [f'ds_read_b128 {vr(F + 32, 4)}, {vr(vX + ks)} offset:{slot * 18432}',
             f'ds_read_b64_tr_b16 {vr(F, 2)}, {vr(vW)} offset:{slot * 16384 + ks * 2048}',
             f'ds_read_b64_tr_b16 {vr(F + 2, 2)}, {vr(vW)} offset:{slot * 16384 + ks * 2048 + 1024}',
             f'ds_read_b128 {vr(F + 36, 4)}, {vr(vX + ks)} offset:{slot * 18432 + 2048}',
             f'ds_read_b128 {vr(F + 40, 4)}, {vr(vX8 + ks)} offset:{slot * 18432}']
        for d in range(1, 8):
            for h in range(2):
                r.append(f'ds_read_b64_tr_b16 {vr(F + 4 * d + 2 * h, 2)}, {vr(vW + d)} offset:{slot * 16384 + ks * 2048 + h * 1024}')
        return r
    def q_mfmas(F):
        m = []
        for d in range(8):
            for T in ((0, 1, 2) if d < 2 else (0, 1)):
                m.append(f'v_mfma_f32_16x16x32_bf16 {vr(acc(T, d), 4)}, {vr(F + 4 * d, 4)}, {vr(F + 32 + 4 * T, 4)}, {vr(acc(T, d), 4)}')
        return m
    def spread(reads, extra):
        groups = [[] for _ in range(18)]
        k = 0
        for i in range(13):
            cnt = 2 if i < 6 else 1
            for _ in range(cnt):
                if k < len(reads): groups[i].append(reads[k]); k += 1
        assert k == len(reads)
        pos = [1, 3, 5, 7, 9, 11, 13, 14, 15, 16, 17, 12, 10, 8, 6, 4]
        pos = sorted(pos[:len(extra)])
        for e, p in zip(extra, pos): groups[p].append(e)
        return groups
    def q_iter(i, nvm, post, last=False):
        s = i % 3
        interleave(a, q_mfmas(FA), spread(frag_reads(FB, s, 1), []))
        a.I(f's_waitcnt vmcnt({nvm}) lgkmcnt(0)' if nvm is not None else 's_waitcnt lgkmcnt(0)')
        a.I('s_barrier')
        rd = frag_reads(FA, (s + 1) % 3, 0) if not last else []
        if last:
            interleave(a, q_mfmas(FB), post, start=1)
        else:
            interleave(a, q_mfmas(FB), spread(rd, post))

    a.I('s_waitcnt vmcnt(16)')
    a.I('s_barrier')
    st.cyc()
    a.many(frag_reads(FA, 0, 0))
    a.I(f's_mov_b32 {sr(sCNT)}, 0')
    lg0 = [set(x) for x in a.lg]
    a.label('k1_qloop')
    q_iter(0, 9, stage_dma(0))
    q_iter(1, 9, stage_dma(1))
    q_iter(2, 6, stage_dma(2))
    assert a.lg == lg0 or True
    lg_end = [set(x) for x in a.lg]
    assert lg_end == lg0[len(lg0) - len(lg_end):], (lg_end, lg0)
    a.I(f's_add_u32 {sr(sCNT)}, {sr(sCNT)}, 1')
    for m in range(4):
        nxt = f'k1_q{m + 1}'
        if m < 3:
            a.I(f's_cmp_lg_u32 {sr(sCNT)}, {m + 1}')
            a.I(f's_cbranch_scc1 {nxt}')
        for k in range(3): a.I(kv_load(4 + 3 * m + k))
        if m < 3:
            a.I('s_branch k1_qloop')
            a.label(nxt)
    a.lg = [set(x) for x in lg0]
    a.I(f's_lshl_b32 {sr(sKP)}, {sr(sHH)}, 15')
    a.I(f's_add_u32 {sr(sKP)}, {sr(sKP)}, 32768')
    a.I(f's_mul_i32 {sr(sVP)}, {sr(sHH)}, 49152')
    a.I(f's_sub_u32 {sr(sVP)}, 49152, {sr(sVP)}')
    a.I(f'v_add_u32 {vr(t0)}, {sr(sM0A)}, {vr(vLANE16)}')
    a.I(f'v_add_u32 {vr(t1)}, {sr(sKP)}, {vr(t0)}')
    a.I(f'v_add_u32 {vr(t2)}, {sr(sVP)}, {vr(t0)}')
    a.I(f'v_add_u32 {vr(t3)}, {-32768 & 0xffffffff:#x}, {vr(t1)}')
    q_iter(12, 9, stage_dma(0))
    k2dma = [[f's_add_u32 m0, {sr(sM0W)}, 16384', f's_mov_b32 {sr(sT0)}, 32768',
              f'buffer_load_dwordx4 {vr(vDK)}, {sr(sK, 4)}, {sr(sT0)} offen{NT("kvnt")} lds']]
    for j in range(1, 4): k2dma.append(f'buffer_load_dwordx4 {vr(vDK)}, {sr(sK, 4)}, {sr(sT0)} offen offset:{j * 1024}{NT("kvnt")} lds')
    q_iter(13, 9, k2dma)
    q_iter(14, 4, [f'ds_write_b128 {vr(t1)}, {vr(kvreg["K0"] + 4 * j, 4)} offset:{j * 1024}' for j in range(4)])
    wr = [f'ds_write_b128 {vr(t2)}, {vr(kvreg["V0"] + 4 * j, 4)} offset:{j * 1024}' for j in range(4)]
    wr += [f'ds_write_b128 {vr(t2)}, {vr(kvreg["K1"] + 4 * j, 4)} offset:{16384 + j * 1024}' for j in range(4)]
    q_iter(15, None, wr, last=True)
    st.cyc()
    a.I(f's_mov_b32 {sr(sC)}, {fbits(128 ** -0.5 * math.log2(math.e))}')
    def conv(src, dst):
        for k in range(8): a.I(f'v_mul_f32 {vr(src + k)}, {sr(sC)}, {vr(src + k)}')
        for k in range(4): a.I(f'v_cvt_pk_bf16_f32 {vr(dst + k)}, {vr(src + 2 * k)}, {vr(src + 2 * k + 1)}')
    def swaps(dsts, mn):
        for dst in dsts:
            a.I(f'{mn} {vr(dst)}, {vr(dst + 2)}')
            a.I(f'{mn} {vr(dst + 1)}, {vr(dst + 3)}')
    conv(acc(2, 0), q_(2, 0))
    conv(acc(0, 0), q_(0, 0))
    swaps([q_(2, 0)], 'v_permlane32_swap_b32')
    conv(acc(1, 0), q_(1, 0))
    swaps([q_(2, 0)], 'v_permlane16_swap_b32')
    a.I(f's_mul_i32 s3, {sr(sR)}, 3072')
    a.I(f'v_subrev_u32 {vr(t0)}, s3, {vr(t3)}')
    a.I(f'ds_write_b128 {vr(t0)}, {vr(q_(2, 0), 4)}')
    for jl in range(1, 4):
        for T in range(2): conv(acc(T, 2 * jl), q_(T, jl))
    allq = [q_(T, jl) for jl in range(4) for T in range(2)]
    swaps(allq, 'v_permlane32_swap_b32')
    swaps(allq, 'v_permlane16_swap_b32')
    a.I('s_waitcnt lgkmcnt(0)')
    a.I('s_barrier')
    a.I(f's_lshl_b32 s3, {sr(sR)}, 12')
    a.I(f'v_subrev_u32 {vr(t0)}, s3, {vr(t3)}')
    for jl in range(1, 4):
        a.I(f's_add_u32 s4, {sr(sR)}, {jl}')
        a.I('s_and_b32 s4, s4, 3')
        a.I('s_lshl_b32 s4, s4, 10')
        a.I(f'v_add_u32 {vr(t1)}, s4, {vr(t0)}')
        a.I(f'ds_read_b128 {vr(q_(2, jl), 4)}, {vr(t1)}')
    a.I(f's_and_b32 {sr(sT0)}, {sr(sR)}, 1')
    a.I(f's_lshl_b32 {sr(sT0)}, {sr(sT0)}, 11')
    a.I(f's_lshl_b32 {sr(sJ)}, {sr(sT0)}, 1')
    a.I(f's_sub_u32 {sr(sJ)}, 2048, {sr(sJ)}')
    a.I(f's_mul_i32 s5, {sr(sHH)}, 81920')
    a.I(f's_add_u32 s5, s5, {sr(sT0)}')
    a.I(f's_add_u32 s7, s5, {sr(sKP)}')
    a.I(f'v_lshrrev_b32 {vr(t1)}, 2, {vr(n)}')
    a.I(f'v_lshlrev_b32 {vr(t1)}, 12, {vr(t1)}')
    a.I(f'v_and_b32 {vr(t2)}, 3, {vr(n)}')
    a.I(f'v_lshl_add_u32 {vr(t1)}, {vr(t2)}, 8, {vr(t1)}')
    a.I(f'v_add_u32 {vr(t1)}, s7, {vr(t1)}')
    a.I(f'v_xor_b32 {vr(t2)}, {vr(g)}, {vr(n)}')
    for j in range(4):
        a.I(f's_add_u32 s4, {sr(sR)}, {j}')
        a.I('s_and_b32 s4, s4, 3')
        a.I('s_lshl_b32 s4, s4, 2')
        a.I(f'v_xor_b32 {vr(t0)}, s4, {vr(t2)}')
        a.I(f'v_lshl_add_u32 {vr(vK + j)}, {vr(t0)}, 4, {vr(t1)}')
    a.I(f's_add_u32 s7, s5, {sr(sVP)}')
    a.I('s_sub_u32 s7, s7, s6')
    for j in range(8): a.I(f'v_add_u32 {vr(vW + j)}, s7, {vr(vW + j)}')
    for i in range(0, 96, 2): a.I(f'v_mov_b64 {vr(O + i, 2)}, 0')
    for i in range(0, 12, 2): a.I(f'v_mov_b64 {vr(NEGM + i, 2)}, 0')
    for i in range(3): a.I(f'v_mov_b32 {vr(L + i)}, 0')
    NEG_BIG = fbits(-3.0e38)
    for s in (sTHR, sTHR8, sCL, sCL8): a.I(f's_mov_b32 {sr(s)}, {NEG_BIG}')
    a.I(f's_mov_b32 {sr(sOV)}, 32768')
    a.I(f's_mov_b32 {sr(sOK)}, 49152')
    a.I(f's_mov_b32 {sr(sCNT)}, 0')
    a.I('s_waitcnt lgkmcnt(0)')
    a.I('s_barrier')
    for j in range(4): a.I(f'ds_write_b128 {vr(t3)}, {vr(kvreg["V1"] + 4 * j, 4)} offset:{j * 1024}')

    def kread(f):
        return [f'ds_read_b128 {vr(POOL + 4 * (f & 7), 4)}, {vr(vK + (f & 3))} offset:{((f >> 2) & 1) * 1024}']
    def vread(f):
        return [f'ds_read_b64_tr_b16 {vr(POOL + 4 * (f & 7) + 2 * h, 2)}, {vr(vW + (f & 7))} offset:{h * 1024}' for h in range(2)]
    NPRE = 5
    LA = 6
    for f in range(NPRE): a.many(kread(f))
    for f in range(NPRE, LA): a.many(kread(f))
    st.cyc()
    lgA = [set(x) for x in a.lg][-LA:]
    a.I(f's_lshr_b32 s3, {sr(sR)}, 1')
    a.I(f's_xor_b32 s3, s3, {sr(sHH)}')
    a.I('s_cmp_eq_u32 s3, 1')
    a.I('s_cbranch_scc1 k1_light')

    rare_blocks = []
    def chunk(heavy, tag):
        a.lg = [set(x) for x in lgA]
        Ts = lambda j: (0, 1, 2) if (heavy and j == 0) else (0, 1)
        a.I(f's_mov_b32 {sr(sKPo)}, {sr(sKP)}')
        a.I(f's_mov_b32 {sr(sVPo)}, {sr(sVP)}')
        for (P, D) in ((sKP, sDK), (sVP, sDV)):
            a.I(f's_cmp_ge_u32 {sr(P)}, 49152')
            a.I(f's_cselect_b32 {sr(D)}, {-49152 & 0xffffffff:#x}, {sr(sT1)}')
            a.I(f's_add_u32 {sr(P)}, {sr(P)}, {sr(D)}')
            a.I(f's_sub_u32 {sr(D)}, {sr(D)}, {sr(sJ)}')
        def read_for(k):
            r = []
            if k < 16:
                r += kread(k)
                if k == 7: r += [f'v_add_u32 {vr(vK + j)}, {sr(sJ)}, {vr(vK + j)}' for j in range(4)]
                if k == 15: r += [f'v_add_u32 {vr(vK + j)}, {sr(sDK)}, {vr(vK + j)}' for j in range(4)]
            elif k < 32:
                f = k - 16
                r += vread(f)
                r += [f'v_add_u32 {vr(vW + (f & 7))}, {sr(sJ if f < 8 else sDV)}, {vr(vW + (f & 7))}']
            return r
        mx, mx8 = vT, vT + 1
        def maxops(vals, dst, first):
            ops = []
            vals = list(vals)
            if first:
                ops.append(f'v_max3_f32 {vr(dst)}, {vr(vals[0])}, {vr(vals[1])}, {vr(vals[2])}'); vals = vals[3:]
            while len(vals) >= 2:
                ops.append(f'v_max3_f32 {vr(dst)}, {vr(dst)}, {vr(vals[0])}, {vr(vals[1])}'); vals = vals[2:]
            if vals: ops.append(f'v_max_f32 {vr(dst)}, {vr(dst)}, {vr(vals[0])}')
            return ops
        pend = []
        for f in range(16):
            j, tt, ks = f >> 3, (f >> 2) & 1, f & 3
            for n_, T in enumerate(Ts(j)):
                d = s_(T, j, tt)
                c = NEGM + 4 * T if ks == 0 else d
                a.I(f'v_mfma_f32_16x16x32_bf16 {vr(d, 4)}, {vr(POOL + 4 * (f & 7), 4)}, {vr(q_(T, ks), 4)}, {vr(c, 4)}')
                if n_ == 0: a.many(read_for(f + LA))
                elif pend: a.I(pend.pop(0))
            if f == 9:
                vals = [s_(T, 0, tt) + k for tt in range(2) for T in range(2) for k in range(4)]
                pend += maxops(vals[:15], mx, True)
                carry = vals[15:]
            if f == 13:
                pend += maxops(carry + [s_(T, 1, 0) + k for T in range(2) for k in range(4)][:7], mx, False)
                carry = [s_(1, 1, 0) + 3]
        if heavy:
            pend += maxops([s_(2, 0, tt) + k for tt in range(2) for k in range(4)], mx8, True)
        pend += maxops(carry + [s_(T, 1, 1) + k for T in range(2) for k in range(4)], mx, False)
        a.many(pend)
        a.I(f'v_cmp_lt_f32 vcc, {sr(sTHR)}, {vr(mx)}')
        a.I(f's_cbranch_vccnz k1_rare_{tag}')
        a.label(f'k1_back_{tag}')
        if heavy:
            a.I(f'v_cmp_lt_f32 vcc, {sr(sTHR8)}, {vr(mx8)}')
            a.I(f's_cbranch_vccnz k1_rare8_{tag}')
            a.label(f'k1_back8_{tag}')
        rare_blocks.append((heavy, tag))
        def sm_ops(j):
            ops = []
            Tl = Ts(j)
            for k in range(8):
                for T in Tl: ops.append(f'v_exp_f32 {vr(s_(T, j, 0) + k)}, {vr(s_(T, j, 0) + k)}')
                if k >= 1:
                    for T in Tl: ops.append(f'v_add_f32 {vr(L + T)}, {vr(L + T)}, {vr(s_(T, j, 0) + k - 1)}')
                if k >= 2 and k % 2 == 0:
                    for T in Tl:
                        b = s_(T, j, 0)
                        ops.append(f'v_cvt_pk_bf16_f32 {vr(b + k // 2 - 1)}, {vr(b + k - 2)}, {vr(b + k - 1)}')
            for T in Tl: ops.append(f'v_add_f32 {vr(L + T)}, {vr(L + T)}, {vr(s_(T, j, 0) + 7)}')
            for T in Tl:
                b = s_(T, j, 0)
                ops.append(f'v_cvt_pk_bf16_f32 {vr(b + 3)}, {vr(b + 6)}, {vr(b + 7)}')
            return ops
        a.many(sm_ops(0))
        pend = sm_ops(1)
        nm0 = 8 * len(Ts(0))
        per = -(-len(pend) // nm0)
        BARF = 12
        for f in range(16):
            j, d = f >> 3, f & 7
            if f == 8: a.many(pend); pend = []
            for n_, T in enumerate(Ts(j)):
                a.I(f'v_mfma_f32_16x16x32_bf16 {vr(o_(T, d), 4)}, {vr(POOL + 4 * (f & 7), 4)}, {vr(s_(T, j, 0), 4)}, {vr(o_(T, d), 4)}')
                if n_ == 0 and f + LA < 16: a.many(read_for(16 + f + LA))
                for _ in range(per):
                    if pend: a.I(pend.pop(0))
                if f > BARF and n_ == 1 and (f - 8) < LA: a.many(kread(f - 8))
            if f == BARF:
                a.I('s_waitcnt vmcnt(4) lgkmcnt(0)')
                a.I('s_barrier')
                for k in range(NPRE): a.many(kread(k))
        lb = a.newlabel('k1_nodma'); lb2 = a.newlabel('k1_dmadone')
        a.I(f's_cmp_ge_u32 {sr(sCNT)}, 6')
        a.I(f's_cbranch_scc1 {lb}')
        a.I(f's_add_u32 m0, {sr(sM0A)}, {sr(sKPo)}')
        a.I(f's_cmp_eq_u32 {sr(sCNT)}, 5')
        a.I(f's_cselect_b32 {sr(sOK)}, 0x1000000, {sr(sOK)}')
        for j in range(4): a.I(f'buffer_load_dwordx4 {vr(vDV)}, {sr(sV, 4)}, {sr(sOV)} offen offset:{j * 1024}{NT("kvnt")} lds')
        a.I(f's_add_u32 m0, {sr(sM0A)}, {sr(sVPo)}')
        a.I(f's_add_u32 {sr(sOV)}, {sr(sOV)}, 16384')
        for j in range(4): a.I(f'buffer_load_dwordx4 {vr(vDK)}, {sr(sK, 4)}, {sr(sOK)} offen offset:{j * 1024}{NT("kvnt")} lds')
        a.I(f's_add_u32 {sr(sOK)}, {sr(sOK)}, 16384')
        a.I(f's_branch {lb2}')
        a.label(lb)
        a.I('s_waitcnt vmcnt(0)')
        a.label(lb2)
        assert [set(x) for x in a.lg] == lgA, (a.lg, lgA)
        a.I(f's_add_u32 {sr(sCNT)}, {sr(sCNT)}, 1')
        a.I(f's_cmp_eq_u32 {sr(sCNT)}, 8')
        a.I('s_cbranch_scc1 k1_epi')

    a.ins.insert(len(a.ins) - 4, Insn(f's_mov_b32 {sr(sT1)}, 32768'))
    a.label('k1_heavy')
    chunk(True, 'h')
    a.label('k1_light')
    chunk(False, 'l')
    a.I('s_branch k1_heavy')

    def xg_reduce(x, tmp, op):
        a.I(f'v_mov_b32 {vr(tmp)}, {vr(x)}')
        a.I(f'v_permlane32_swap_b32 {vr(x)}, {vr(tmp)}')
        a.I(f'{op} {vr(x)}, {vr(x)}, {vr(tmp)}')
        a.I(f'v_mov_b32 {vr(tmp)}, {vr(x)}')
        a.I(f'v_permlane16_swap_b32 {vr(x)}, {vr(tmp)}')
        a.I(f'{op} {vr(x)}, {vr(x)}, {vr(tmp)}')
    def rare(T, vals, scl):
        m, tmp = vT + 2, vT + 3
        a.I(f'v_max3_f32 {vr(m)}, {vr(vals[0])}, {vr(vals[1])}, {vr(vals[2])}')
        for k in range(3, len(vals) - 1, 2): a.I(f'v_max3_f32 {vr(m)}, {vr(m)}, {vr(vals[k])}, {vr(vals[k + 1])}')
        a.I(f'v_max_f32 {vr(m)}, {vr(m)}, {vr(vals[-1])}')
        xg_reduce(m, tmp, 'v_max_f32')
        a.I(f'v_max_f32 {vr(m)}, {sr(scl)}, {vr(m)}')
        a.I(f'v_max_f32 {vr(tmp)}, 0, {vr(m)}')
        a.I(f'v_exp_f32 {vr(tmp)}, -{vr(tmp)}')
        for v in vals: a.I(f'v_sub_f32 {vr(v)}, {vr(v)}, {vr(m)}')
        for k in range(4): a.I(f'v_sub_f32 {vr(NEGM + 4 * T + k)}, {vr(NEGM + 4 * T + k)}, {vr(m)}')
        a.I(f'v_mul_f32 {vr(L + T)}, {vr(L + T)}, {vr(tmp)}')
        for k in range(32): a.I(f'v_mul_f32 {vr(o_(T, 0) + k)}, {vr(o_(T, 0) + k)}, {vr(tmp)}')
    a.auto = False
    for heavy, tag in rare_blocks:
        a.label(f'k1_rare_{tag}')
        a.I(f's_mov_b32 s3, {1 if heavy else 0}')
        if heavy: a.I('s_branch k1_rare_common')
    a.label('k1_rare_common')
    for T in range(2): rare(T, [s_(T, 0, 0) + k for k in range(16)], sCL)
    a.I(f's_mov_b32 {sr(sTHR)}, {fbits(8.0)}')
    a.I(f's_mov_b32 {sr(sCL)}, 0')
    a.I('s_cmp_eq_u32 s3, 1')
    a.I('s_cbranch_scc1 k1_back_h')
    a.I('s_branch k1_back_l')
    a.label('k1_rare8_h')
    rare(2, [s_(2, 0, 0) + k for k in range(8)], sCL8)
    a.I(f's_mov_b32 {sr(sTHR8)}, {fbits(8.0)}')
    a.I(f's_mov_b32 {sr(sCL8)}, 0')
    a.I('s_branch k1_back8_h')
    a.auto = True

    a.label('k1_epi')
    a.lg = [set(x) for x in lgA]
    st.cyc()
    a.I('s_waitcnt lgkmcnt(0)')
    e0, e1, e2, e3, e4 = vT, vT + 1, vT + 2, vT + 3, vT + 4
    xg_reduce(L + 2, e0, 'v_add_f32')
    a.I(f's_lshl_b32 s5, {sr(sHH)}, 15')
    for jl in range(1, 4):
        a.I(f's_add_u32 s4, {sr(sR)}, {jl}')
        a.I('s_and_b32 s4, s4, 3')
        a.I('s_mul_i32 s4, s4, 6144')
        a.I(f's_add_u32 s4, s4, s5')
        a.I(f'v_add_u32 {vr(e1)}, s4, {vr(vLANE16)}')
        for h in range(2):
            a.I(f'ds_write_b128 {vr(e1)}, {vr(o_(2, 2 * jl + h), 4)} offset:{(jl - 1) * 2048 + h * 1024}')
    a.I(f's_lshl_b32 s4, {sr(sHH)}, 11')
    a.I('s_add_u32 s4, s4, 65536')
    a.I(f'v_lshrrev_b32 {vr(e2)}, 1, {vr(vLANE16)}')
    a.I(f'v_add_u32 {vr(e2)}, s4, {vr(e2)}')
    a.I(f's_lshl_b32 s4, {sr(sR)}, 9')
    a.I(f'v_add_u32 {vr(e1)}, s4, {vr(e2)}')
    a.I(f'v_mov_b32 {vr(NEGM + 9)}, {vr(L + 2)}')
    a.I(f'ds_write_b64 {vr(e1)}, {vr(NEGM + 8, 2)}')
    a.I(f's_lshl_b32 s3, {sr(sBLK)}, 3')
    a.I(f's_add_u32 s3, s3, {sr(sB)}')
    a.I(f's_mul_i32 s3, s3, {O_SLICE}')
    a.I(f's_mul_i32 s4, {sr(sHP)}, 73728')
    a.I('s_add_u32 s3, s3, s4')
    a.I(f's_add_u32 {sr(sO)}, s16, s3')
    a.I(f's_addc_u32 {sr(sO + 1)}, s17, 0')
    a.I(f's_mov_b32 {sr(sO + 2)}, 73728')
    a.I(f's_mov_b32 {sr(sO + 3)}, 0x20000')
    a.I(f's_mul_i32 s3, {sr(sHH)}, 36864')
    for jl in range(4):
        a.I(f's_add_u32 {sr(sOW + jl)}, {sr(sR)}, {jl}')
        a.I(f's_and_b32 {sr(sOW + jl)}, {sr(sOW + jl)}, 3')
        a.I(f's_mul_i32 {sr(sOW + jl)}, {sr(sOW + jl)}, 9216')
        a.I(f's_add_u32 {sr(sOW + jl)}, {sr(sOW + jl)}, s3')
    a.I(f's_lshl_b32 s4, {sr(sR)}, 11')
    a.I(f'v_add_u32 {vr(e3)}, s4, {vr(vLANE16)}')
    a.I('s_waitcnt lgkmcnt(0)')
    a.I('s_barrier')
    R8 = S
    a.I(f's_mul_i32 s4, {sr(sR)}, 6144')
    a.I('s_add_u32 s4, s4, s5')
    a.I(f'v_add_u32 {vr(e1)}, s4, {vr(vLANE16)}')
    for k in range(6): a.I(f'ds_read_b128 {vr(R8 + 4 * k, 4)}, {vr(e1)} offset:{k * 1024}')
    for sl in range(3):
        a.I(f's_sub_u32 s4, {sr(sR)}, {sl + 1}')
        a.I('s_and_b32 s4, s4, 3')
        a.I('s_lshl_b32 s4, s4, 9')
        a.I(f'v_add_u32 {vr(e4)}, s4, {vr(e2)}')
        a.I(f'ds_read_b64 {vr(R8 + 24 + 2 * sl, 2)}, {vr(e4)}')
    for T in range(2):
        xg_reduce(L + T, e0, 'v_add_f32')
        a.I(f'v_rcp_f32 {vr(L + T)}, {vr(L + T)}')
    def fin(src, scale, voff, soff, imm):
        for k in range(8): a.I(f'v_mul_f32 {vr(src + k)}, {vr(src + k)}, {vr(scale)}')
        for k in range(4): a.I(f'v_cvt_pk_bf16_f32 {vr(src + k)}, {vr(src + 2 * k)}, {vr(src + 2 * k + 1)}')
        a.I(f'buffer_store_dwordx4 {vr(src, 4)}, {vr(voff)}, {sr(sO, 4)}, {sr(soff)} offen offset:{imm}{NT("ont")}')
    for jl in range(4):
        for T in range(2): fin(o_(T, 2 * jl), L + T, e3, sOW + jl, T * 1024)
    nm = [R8 + 24, R8 + 26, R8 + 28, NEGM + 8]
    ll = [R8 + 25, R8 + 27, R8 + 29, NEGM + 9]
    a.I(f'v_min3_f32 {vr(e0)}, {vr(nm[0])}, {vr(nm[1])}, {vr(nm[2])}')
    a.I(f'v_min_f32 {vr(e0)}, {vr(e0)}, {vr(nm[3])}')
    for i in range(4): a.I(f'v_sub_f32 {vr(nm[i])}, {vr(e0)}, {vr(nm[i])}')
    for i in range(4): a.I(f'v_exp_f32 {vr(nm[i])}, {vr(nm[i])}')
    a.I(f'v_mul_f32 {vr(e0)}, {vr(ll[3])}, {vr(nm[3])}')
    for i in range(3): a.I(f'v_fmac_f32 {vr(e0)}, {vr(ll[i])}, {vr(nm[i])}')
    a.I(f'v_rcp_f32 {vr(e0)}, {vr(e0)}')
    own = o_(2, 0)
    for k in range(8): a.I(f'v_mul_f32 {vr(own + k)}, {vr(own + k)}, {vr(nm[3])}')
    for i in range(3):
        for k in range(8): a.I(f'v_fmac_f32 {vr(own + k)}, {vr(R8 + 8 * i + k)}, {vr(nm[i])}')
    a.I(f'v_add_u32 {vr(e3)}, 8192, {vr(vLANE16)}')
    fin(own, e0, e3, sOW, 0)
    st.cyc(); st.real()
    st.flush(16, sWAVE, sX, vT)
    a.label('k1_end')
    a.raw('s_endpgm')
    return a

def gen_k2():
    a = Asm()
    st = Stamper(a, 1)
    sO, sW, sD = 20, 24, 28
    sWAVE, sKQ, sMH, sBLK, sB, sNT = 40, 41, 42, 43, 44, 45
    sM0, sOW0, sOW1, sOB0, sOB1, sCNT = 46, 47, 48, 49, 50, 51
    vA = 1
    vDW, vB, vL16 = 5, 6, 7
    t0, t1, t2, t3, g = 8, 9, 10, 11, 12
    ACC, FA, BF = 16, 96, 128
    def acc(i, nt): return ACC + (i * 4 + nt) * 4
    a.raw('s_cmp_ge_u32 s2, 256')
    a.raw('s_cbranch_scc1 k2_end')
    st.real(); st.cyc()
    a.I('s_and_b32 s3, s2, 7')
    a.I('s_lshr_b32 s4, s2, 3')
    a.I(f's_lshr_b32 {sr(sBLK)}, s3, 2')
    a.I(f's_mul_i32 s5, {sr(sBLK)}, 40')
    a.I('s_add_u32 s5, s5, 32')
    a.I('s_load_dwordx2 s[8:9], s[0:1], s5')
    a.I('s_load_dwordx2 s[10:11], s[0:1], 80')
    a.I('s_load_dwordx2 s[16:17], s[0:1], 96')
    a.I('s_bfe_u32 s5, s3, 0x10001')
    a.I('s_lshl_b32 s5, s5, 2')
    a.I('s_and_b32 s6, s4, 3')
    a.I(f's_add_u32 {sr(sB)}, s5, s6')
    a.I('s_and_b32 s5, s3, 1')
    a.I('s_lshl_b32 s5, s5, 3')
    a.I('s_lshr_b32 s6, s4, 2')
    a.I(f's_add_u32 {sr(sNT)}, s5, s6')
    a.I(f'v_lshrrev_b32 {vr(t0)}, 6, v0')
    a.I(f'v_readfirstlane_b32 {sr(sWAVE)}, {vr(t0)} ; WAVEID')
    a.I('v_and_b32 v0, 63, v0')
    a.I(f's_and_b32 {sr(sKQ)}, {sr(sWAVE)}, 3')
    a.I(f's_lshr_b32 {sr(sMH)}, {sr(sWAVE)}, 2')
    a.I(f'v_lshrrev_b32 {vr(g)}, 4, v0')
    a.I(f'v_lshlrev_b32 {vr(vL16)}, 4, v0')
    a.I(f'v_bfe_u32 {vr(t0)}, v0, 1, 2')
    a.I(f'v_xor_b32 {vr(t0)}, {vr(t0)}, {vr(g)}')
    a.I(f'v_lshlrev_b32 {vr(t0)}, 5, {vr(t0)}')
    a.I(f'v_and_b32 {vr(t1)}, 1, v0')
    a.I(f'v_lshl_add_u32 {vr(t0)}, {vr(t1)}, 4, {vr(t0)}')
    a.I(f's_lshl_b32 s3, {sr(sKQ)}, 1')
    a.I(f's_add_u32 s3, s3, {sr(sMH)}')
    a.I(f's_lshl_b32 {sr(sM0)}, s3, 11')
    a.I('s_lshl_b32 s3, s3, 4')
    a.I(f'v_lshrrev_b32 {vr(t1)}, 3, v0')
    a.I(f'v_add_u32 {vr(t1)}, s3, {vr(t1)}')
    a.I(f'v_lshl_add_u32 {vr(vDW)}, {vr(t1)}, 11, {vr(t0)}')
    a.I(f's_mul_i32 s3, {sr(sKQ)}, 9216')
    a.I(f's_mul_i32 s4, {sr(sMH)}, 5120')
    a.I('s_add_u32 s3, s3, s4')
    a.I(f'v_add_u32 {vr(vB)}, s3, {vr(vL16)}')
    a.I(f's_mov_b32 {sr(sOW0)}, 0')
    a.I(f's_mov_b32 {sr(sOW1)}, {16384 - 1024}')
    a.I(f's_mov_b32 {sr(sOB0)}, 0')
    a.I(f's_mov_b32 {sr(sOB1)}, 4096')
    a.I(f'v_lshrrev_b32 {vr(t0)}, 2, v0')
    a.I(f'v_lshlrev_b32 {vr(t1)}, 7, {vr(t0)}')
    a.I(f'v_and_b32 {vr(t2)}, 3, v0')
    a.I(f'v_lshl_add_u32 {vr(t1)}, {vr(t2)}, 3, {vr(t1)}')
    a.I(f's_lshl_b32 s3, {sr(sKQ)}, 12')
    a.I(f'v_add_u32 {vr(t1)}, s3, {vr(t1)}')
    a.I(f'v_bfe_u32 {vr(t0)}, v0, 3, 2')
    for j in range(4):
        a.I(f's_add_u32 s4, {sr(sKQ)}, {j}')
        a.I('s_and_b32 s4, s4, 3')
        a.I(f'v_xor_b32 {vr(t2)}, s4, {vr(t0)}')
        a.I(f'v_lshl_add_u32 {vr(vA + j)}, {vr(t2)}, 5, {vr(t1)}')
    a.I('s_waitcnt lgkmcnt(0)')
    a.I(f's_lshl_b32 s3, {sr(sBLK)}, 3')
    a.I(f's_add_u32 s3, s3, {sr(sB)}')
    a.I(f's_mul_i32 s3, s3, {O_SLICE}')
    a.I(f's_add_u32 {sr(sO)}, s16, s3')
    a.I(f's_addc_u32 {sr(sO + 1)}, s17, 0')
    a.I(f's_mov_b32 {sr(sO + 2)}, {O_SLICE}')
    a.I(f's_mov_b32 {sr(sO + 3)}, 0x20000')
    a.I(f's_lshl_b32 s3, {sr(sNT)}, 7')
    a.I(f's_add_u32 {sr(sW)}, s8, s3')
    a.I(f's_addc_u32 {sr(sW + 1)}, s9, 0')
    a.I(f's_sub_u32 {sr(sW + 2)}, 8388608, s3')
    a.I(f's_mov_b32 {sr(sW + 3)}, 0x20000')
    a.I(f's_mul_i32 s3, {sr(sB)}, {144 * 4096}')
    a.I(f's_add_u32 {sr(sD)}, s10, s3')
    a.I(f's_addc_u32 {sr(sD + 1)}, s11, 0')
    a.I(f's_mov_b32 {sr(sD + 2)}, {144 * 4096}')
    a.I(f's_mov_b32 {sr(sD + 3)}, 0x20000')
    a.I(f's_cmp_eq_u32 {sr(sMH)}, 1')
    a.I('s_cbranch_scc1 k2_m1')

    def wdma(slot):
        return [[f's_add_u32 m0, {sr(sM0)}, {slot * 16384}',
                 f'buffer_load_dwordx4 {vr(vDW)}, {sr(sW, 4)}, {sr(sOW0)} offen{NT("wont")} lds',
                 f's_add_u32 {sr(sOW0)}, {sr(sOW0)}, 262144'],
                [f'buffer_load_dwordx4 {vr(vDW)}, {sr(sW, 4)}, {sr(sOW1)} offen offset:1024{NT("wont")} lds',
                 f's_add_u32 {sr(sOW1)}, {sr(sOW1)}, 262144']]
    def bload(slot, i, nT):
        r = [f'buffer_load_dwordx4 {vr(BF + slot * 20 + 4 * i, 4)}, {vr(vB)}, {sr(sO, 4)}, {sr(sOB0 if i < 4 else sOB1)} offen offset:{(i & 3) * 1024}{NT("oldnt")}']
        if i == nT - 1:
            r.append(f's_add_u32 {sr(sOB0)}, {sr(sOB0)}, 36864')
            if nT == 5: r.append(f's_add_u32 {sr(sOB1)}, {sr(sOB1)}, 36864')
        return r
    def areads(slot, F):
        return [f'ds_read_b64_tr_b16 {vr(F + 4 * j + 2 * h, 2)}, {vr(vA + j)} offset:{slot * 16384 + h * 2048}' for j in range(4) for h in range(2)]
    def body(nT, tag):
        a.lg = []
        for s in range(4):
            interleave(a, [], wdma(s))
            for i in range(nT): a.many(bload(s, i, nT))
        for i in range(0, 16 * nT, 2): a.I(f'v_mov_b64 {vr(ACC + i, 2)}, 0')
        a.I(f's_waitcnt vmcnt({nT + 3 * (nT + 2)})')
        a.I('s_barrier')
        st0 = st.n
        st.cyc()
        a.many(areads(0, FA))
        a.I(f's_mov_b32 {sr(sCNT)}, 0')
        a.label(f'k2_loop_{tag}')
        for s in range(4):
            F, Fn = FA + 16 * (s & 1), FA + 16 * ((s + 1) & 1)
            a.I(f's_waitcnt vmcnt({nT + 2 * (nT + 2)}) lgkmcnt(0)')
            a.I('s_barrier')
            fill = wdma(s) + areads((s + 1) & 3, Fn)
            for i in range(nT):
                for j in range(4):
                    a.I(f'v_mfma_f32_16x16x32_bf16 {vr(acc(i, j), 4)}, {vr(F + 4 * j, 4)}, {vr(BF + s * 20 + 4 * i, 4)}, {vr(acc(i, j), 4)}')
                    if j < 3 and fill:
                        x = fill.pop(0)
                        a.many(x if isinstance(x, list) else [x])
                a.many(bload(s, i, nT))
            assert not fill
        a.I(f's_add_u32 {sr(sCNT)}, {sr(sCNT)}, 1')
        a.I(f's_cmp_lt_u32 {sr(sCNT)}, 8')
        a.I(f's_cbranch_scc1 k2_loop_{tag}')
        st.cyc()
        a.I('s_waitcnt vmcnt(0) lgkmcnt(0)')
        a.I('s_barrier')
        a.I(f's_mul_i32 s5, {sr(sMH)}, 61440')
        for jl in range(1, 4):
            a.I(f's_add_u32 s4, {sr(sKQ)}, {jl}')
            a.I('s_and_b32 s4, s4, 3')
            a.I('s_mul_i32 s4, s4, 15360')
            a.I('s_add_u32 s4, s4, s5')
            a.I(f'v_add_u32 {vr(t0)}, s4, {vr(vL16)}')
            for i in range(nT): a.I(f'ds_write_b128 {vr(t0)}, {vr(acc(i, jl), 4)} offset:{(jl - 1) * 5120 + i * 1024}')
        a.I(f's_mul_i32 s4, {sr(sKQ)}, 15360')
        a.I('s_add_u32 s4, s4, s5')
        a.I(f'v_add_u32 {vr(t0)}, s4, {vr(vL16)}')
        a.I(f'v_and_b32 {vr(t1)}, 15, v0')
        a.I(f'v_lshlrev_b32 {vr(t1)}, 12, {vr(t1)}')
        a.I(f'v_lshl_add_u32 {vr(t1)}, {vr(g)}, 3, {vr(t1)}')
        a.I(f's_lshl_b32 s3, {sr(sBLK)}, 11')
        a.I(f's_lshl_b32 s4, {sr(sNT)}, 7')
        a.I('s_add_u32 s3, s3, s4')
        a.I(f's_lshl_b32 s4, {sr(sKQ)}, 5')
        a.I('s_add_u32 s3, s3, s4')
        a.I(f's_mul_i32 s4, {sr(sMH)}, {5 * 65536}')
        a.I('s_add_u32 s3, s3, s4')
        a.I('s_waitcnt lgkmcnt(0)')
        a.I('s_barrier')
        for i in range(nT):
            for sl in range(3): a.I(f'ds_read_b128 {vr(BF + (i * 3 + sl) * 4, 4)}, {vr(t0)} offset:{sl * 5120 + i * 1024}')
            if i == 3: a.I('s_waitcnt lgkmcnt(6)')
        for i in range(nT):
            for sl in range(3):
                for k in range(4): a.I(f'v_add_f32 {vr(acc(i, 0) + k)}, {vr(acc(i, 0) + k)}, {vr(BF + (i * 3 + sl) * 4 + k)}')
            for k in range(2): a.I(f'v_cvt_pk_bf16_f32 {vr(acc(i, 0) + k)}, {vr(acc(i, 0) + 2 * k)}, {vr(acc(i, 0) + 2 * k + 1)}')
            a.I(f'buffer_store_dwordx2 {vr(acc(i, 0), 2)}, {vr(t1)}, {sr(sD, 4)}, s3 offen')
            a.I('s_add_u32 s3, s3, 65536')
        st.cyc(); st.real()
        st.flush(16, sWAVE, sW, t2)
        st.n = st0
    body(5, 'a')
    a.I('s_branch k2_end')
    a.label('k2_m1')
    body(4, 'b')
    a.label('k2_end')
    a.raw('s_endpgm')
    return a

HEADER = open(f'cdna_kernels/{NAME}.s.ref').read().split('; Override launch')[0]
def kd(name, vg, sg=102):
    return f'''.amdhsa_kernel {name}
  .amdhsa_next_free_vgpr {vg}
  .amdhsa_next_free_sgpr {sg}
  .amdhsa_accum_offset {(min(vg, 256) + 3) // 4 * 4}
  .amdhsa_group_segment_fixed_size 0
  .amdhsa_kernarg_size 104
  .amdhsa_user_sgpr_count 2
  .amdhsa_user_sgpr_kernarg_segment_ptr 1
  .amdhsa_system_sgpr_workgroup_id_x 1
.end_amdhsa_kernel
'''
def main():
    ks = [('attn_kernel', gen_k1(), 256, 163840), ('oproj_kernel', gen_k2(), 208, 131072)]
    out = HEADER
    for nm, _, _, lds in ks:
        out += f'; @launch kernel={nm} grid=(256,1,1) block=(512,1,1) lds={lds}\n'
    out += '.amdgcn_target "amdgcn-amd-amdhsa--gfx950"\n.text\n'
    for nm, a, vg, lds in ks:
        n = a.pad_hazards(verbose=bool(OPT.get('v')))
        errs = 0; nbs = set()
        for wave in range(8):
            for pol in (lambda i, x: False, lambda i, x: True):
                tr = a.trace(5, wave, pol)
                e, nb = a.verify_waits(tr); errs += e; nbs.add(nb)
        assert len(nbs) == 1 and errs == 0, (nbs, errs)
        print(f'{nm}: {len(a.ins)} lines, nops added {n}, wait errors {errs}, barriers {nb}, trace len {len(tr)}', file=sys.stderr)
        out += f'.globl {nm}\n.p2align 8\n.type {nm},@function\n{nm}:\n' + a.text()
    out += '.section .rodata,"a"\n'
    for nm, a, vg, lds in ks:
        out += '.p2align 6\n' + kd(nm, vg)
    open(sys.argv[1], 'w').write(out)
main()
```

```python
import re

REG_RE = re.compile(r'^(-|\|)?(?:abs\()?([vsa])(?:(\d+)|\[(\d+):(\d+)\])\)?\|?$')

def parse_reg(tok):
    tok = tok.strip()
    if tok in ('vcc',): return [('s', 106), ('s', 107)]
    if tok == 'vcc_lo': return [('s', 106)]
    if tok == 'vcc_hi': return [('s', 107)]
    if tok == 'm0': return [('s', 124)]
    if tok == 'exec': return [('s', 126), ('s', 127)]
    if tok == 'exec_lo': return [('s', 126)]
    if tok == 'exec_hi': return [('s', 127)]
    m = REG_RE.match(tok)
    if not m: return []
    f = m.group(2)
    if m.group(3) is not None:
        return [(f, int(m.group(3)))]
    return [(f, i) for i in range(int(m.group(4)), int(m.group(5)) + 1)]

TRANS = ('v_exp_f32', 'v_log_f32', 'v_rcp_f32', 'v_rsq_f32', 'v_sqrt_f32', 'v_sin_f32', 'v_cos_f32')

class Insn:
    __slots__ = ('text', 'mn', 'ops', 'mods', 'kind', 'wr', 'rd', 'A', 'B', 'C', 'D', 'passes', 'lds', 'target', 'label', 'ws', 'data', 'comment')
    def __init__(self, text):
        self.text = text
        self.label = None
        self.target = None
        self.lds = False
        self.A = self.B = self.C = self.D = self.data = ()
        self.passes = 0
        t = text.split(';')[0].strip()
        if t.endswith(':'):
            self.kind = 'label'; self.label = t[:-1]; self.mn = ''; self.wr = set(); self.rd = set(); self.ws = 0
            return
        parts = t.split(None, 1)
        self.mn = mn = parts[0]
        rest = parts[1] if len(parts) > 1 else ''
        ops = [o.strip() for o in rest.split(',')] if rest else []
        mods = []
        if ops:
            last = ops[-1].split()
            if mn in ('s_waitcnt',):
                mods = rest.split(); ops = []
            else:
                ops[-1] = last[0]; mods = last[1:]
        self.ops = ops; self.mods = mods
        R = [parse_reg(o) for o in ops]
        wr, rd = set(), set()
        self.ws = 1
        if mn.startswith('v_mfma'):
            self.kind = 'mfma'
            self.D, self.A, self.B, self.C = R[0], R[1], R[2], R[3]
            wr |= set(R[0]); rd |= set(R[1]) | set(R[2]) | set(R[3])
            self.passes = 4 if '16x16x32' in mn else 8 if '32x32x16' in mn else None
            assert self.passes
        elif mn.startswith('v_'):
            self.kind = 'valu'
            wr |= set(R[0])
            for r in R[1:]: rd |= set(r)
            if 'swap' in mn:
                wr |= set(R[1]); rd |= set(R[0])
            if mn.startswith('v_fmac') or mn.startswith('v_pk_fmac') or mn.startswith('v_writelane'):
                rd |= set(R[0])
            if mn.startswith('v_add_co') or mn.startswith('v_sub_co') or mn.startswith('v_addc_co'):
                wr |= set(R[1]); rd -= set(R[1]) - set(sum(R[2:], []))
            if mn.startswith('v_cndmask') and len(ops) == 3:
                rd |= {('s', 106), ('s', 107)}
            if mn.startswith('v_cmpx'):
                wr |= {('s', 126), ('s', 127)}
        elif mn.startswith('ds_'):
            self.kind = 'ds'
            if mn.startswith('ds_read') or mn.startswith('ds_bpermute') or mn.startswith('ds_swizzle'):
                wr |= set(R[0])
                for r in R[1:]: rd |= set(r)
            else:
                for r in R: rd |= set(r)
                self.data = sum(R[1:], [])
        elif mn.startswith('buffer_') or mn.startswith('global_'):
            self.kind = 'vmem'
            self.lds = 'lds' in mods
            if mn.startswith('buffer_wbl2') or mn.startswith('buffer_inv'):
                pass
            elif self.lds:
                for r in R: rd |= set(r)
                rd.add(('s', 124))
            elif 'load' in mn:
                wr |= set(R[0])
                for r in R[1:]: rd |= set(r)
            elif 'atomic' in mn:
                for r in R: rd |= set(r)
                if 'sc0' in mods: wr |= set(R[0])
            else:
                for r in R: rd |= set(r)
                self.data = R[0] if mn.startswith('buffer_') else R[1]
        elif mn.startswith('s_'):
            self.kind = 'salu'
            if mn == 's_nop':
                self.ws = int(ops[0], 0) + 1
            elif mn in ('s_branch',) or mn.startswith('s_cbranch'):
                self.kind = 'branch'; self.target = ops[0]
                if 'vcc' in mn: rd |= {('s', 106), ('s', 107)}
                if 'exec' in mn: rd |= {('s', 126), ('s', 127)}
            elif mn == 's_call_b64':
                self.kind = 'call'; self.target = ops[1]; wr |= set(R[0])
            elif mn == 's_setpc_b64':
                self.kind = 'ret'; self.target = text.split('RET')[1].strip(); rd |= set(R[0])
            elif mn.startswith('s_cmp') or mn.startswith('s_bitcmp'):
                for r in R: rd |= set(r)
            elif mn == 's_getpc_b64':
                wr |= set(R[0])
            elif mn in ('s_waitcnt', 's_barrier', 's_endpgm', 's_setprio', 's_sleep'):
                pass
            elif mn.startswith('s_load') or mn.startswith('s_memtime') or mn.startswith('s_memrealtime') or mn.startswith('s_atomic'):
                self.kind = 'smem'
                wr |= set(R[0])
                for r in R[1:]: rd |= set(r)
            else:
                wr |= set(R[0])
                for r in R[1:]: rd |= set(r)
                if mn in ('s_addk_i32', 's_mulk_i32', 's_bitset0_b32', 's_bitset1_b32'): rd |= set(R[0])
                if 'saveexec' in mn:
                    wr |= {('s', 126), ('s', 127)}; rd |= {('s', 126), ('s', 127)}
        else:
            raise ValueError('unknown insn: ' + text)
        self.wr, self.rd = wr, rd

def need_ws(p, c):
    w = 0
    pv = {r for r in p.wr if r[0] in 'va'}
    ps = {r for r in p.wr if r[0] == 's'}
    if p.kind == 'valu':
        if c.kind == 'mfma' and pv & c.rd: w = max(w, 2)
        if c.kind == 'valu':
            if re.sub(r'_e(32|64)$', '', p.mn) in TRANS and pv & (c.rd): w = max(w, 1)
            if 'permlane' in c.mn and pv & c.rd: w = max(w, 2)
            if ('readlane' in c.mn or 'readfirstlane' in c.mn) and pv & c.rd: w = max(w, 1)
            if any(m.startswith(('row_', 'quad_perm', 'wave_', 'dpp')) for m in c.mods) and pv & c.rd: w = max(w, 2)
            if ps & c.rd:
                w = max(w, 4 if ('readlane' in c.mn or 'writelane' in c.mn) else 2)
        if c.kind == 'vmem' and ps & c.rd: w = max(w, 5)
        if c.kind in ('salu', 'smem') and ps & c.rd: w = max(w, 1)
        if ('s', 126) in ps or ('s',127) in ps:
            if c.kind == 'mfma': w = max(w, 4)
            if c.kind == 'valu' and ('readlane' in c.mn or 'readfirstlane' in c.mn or 'permlane' in c.mn): w = max(w, 4)
    if p.kind == 'mfma':
        big = {4: 8, 8: 12}[p.passes]
        ov = {4: 6, 8: 10}[p.passes]
        D = set(p.D)
        if c.kind == 'mfma':
            if D & (set(c.A) | set(c.B)): w = max(w, big)
            if D & set(c.C):
                if not (list(c.C) == list(p.D) and c.passes == p.passes): w = max(w, ov)
            elif D & set(c.D): w = max(w, ov)
        elif c.kind in ('valu', 'vmem', 'ds'):
            if D & (c.rd | c.wr): w = max(w, big)
        if c.kind == 'valu' and set(p.C) & c.wr: w = max(w, {4: 3, 8: 7}[p.passes])
    if p.kind == 'salu' and ('s', 124) in ps and c.kind == 'vmem' and c.lds: w = max(w, 1)
    if p.kind == 'vmem' and p.data and len(p.data) >= 3 and set(p.data) & c.wr:
        w = max(w, 2 if c.kind == 'valu' else 1)
    return w

class Asm:
    def __init__(self):
        self.ins = []
        self.lg = []
        self.auto = True
        self.nlabel = 0
    def raw(self, text):
        self.ins.append(Insn(text))
    def label(self, name):
        self.ins.append(Insn(name + ':'))
    def newlabel(self, base):
        self.nlabel += 1
        return f'{base}_{self.nlabel}'
    def wait_lg(self, n):
        assert 0 <= n <= 15
        self.ins.append(Insn(f's_waitcnt lgkmcnt({n})'))
        if n < len(self.lg): self.lg = self.lg[len(self.lg) - n:] if n else []
    def I(self, text):
        i = Insn(text)
        if self.auto and i.kind != 'label':
            touched = i.rd | i.wr
            idx = -1
            for k, d in enumerate(self.lg):
                if d & touched: idx = k
            if idx >= 0:
                n = len(self.lg) - 1 - idx
                self.wait_lg(min(n, 15))
        if i.mn == 's_waitcnt':
            for m in i.mods:
                mm = re.match(r'lgkmcnt\((\d+)\)', m)
                if mm:
                    n = int(mm.group(1))
                    if n < len(self.lg): self.lg = self.lg[len(self.lg) - n:] if n else []
        self.ins.append(i)
        if i.kind == 'ds':
            self.lg.append(set(i.wr))
        return i
    def many(self, lst):
        for t in lst: self.I(t)

    def pad_hazards(self, verbose=False):
        total = 0; start = 0; clean_from_zero = False
        while True:
            ins = self.ins
            lab = {x.label: k for k, x in enumerate(ins) if x.kind == 'label'}
            srcs = {}
            for k, x in enumerate(ins):
                if x.kind in ('branch', 'call'): srcs.setdefault(lab[x.target], []).append(k)
            rets = {}
            for k, x in enumerate(ins):
                if x.kind == 'ret': rets.setdefault(x.target, []).append(k)
            for k, x in enumerate(ins):
                if x.kind == 'call': srcs.setdefault(k + 1, []).extend(rets[x.target])
            def preds(k):
                r = []
                if k > 0 and ins[k - 1].mn not in ('s_branch', 's_endpgm', 's_call_b64', 's_setpc_b64'): r.append(k - 1)
                r += srcs.get(k, [])
                return r
            fix = None
            for k, c in enumerate(ins):
                if k < start or c.kind in ('label',): continue
                worst = 0; why = None
                stack = [(p, 0) for p in preds(k)]
                seen = {}
                while stack:
                    p, dist = stack.pop()
                    if dist >= 12: continue
                    if seen.get(p, 99) <= dist: continue
                    seen[p] = dist
                    x = ins[p]
                    if x.kind != 'label':
                        w = need_ws(x, c)
                        if w - dist > worst: worst = w - dist; why = x
                    for q in preds(p): stack.append((q, dist + x.ws))
                if worst > 0:
                    fix = (k, worst, why); break
            if not fix: break
            k, n, why = fix
            start = k
            if verbose: print(f'pad {n} before [{ins[k].text}] due to [{why.text}]')
            self.ins.insert(k, Insn(f's_nop {n - 1}'))
            total += n
        return total

    def text(self):
        out = []
        for x in self.ins:
            out.append(x.text if x.kind == 'label' else '    ' + x.text)
        return '\n'.join(out) + '\n'

    def trace(self, wg, wave, vcc_policy, entry=0, maxsteps=200000):
        ins = self.ins
        lab = {x.label: k for k, x in enumerate(ins) if x.kind == 'label'}
        S = {2: wg}; scc = None
        M = 0xffffffff
        def val(tok):
            tok = tok.strip()
            r = parse_reg(tok)
            if r:
                if r[0][0] == 's' and len(r) == 1: return S.get(r[0][1])
                return None
            try: return int(tok, 0) & M
            except ValueError: return None
        pc = entry; tr = []; nv = 0; stack = []
        while True:
            x = ins[pc]; pc += 1
            if x.kind == 'label': continue
            tr.append(x)
            assert len(tr) < maxsteps, 'trace too long'
            mn = x.mn
            if mn == 's_endpgm': break
            if x.kind == 'call': stack.append(pc); pc = lab[x.target]; continue
            if x.kind == 'ret': pc = stack.pop(); continue
            if x.kind == 'branch':
                if mn == 's_branch' or 'TAKEN' in x.text: t = True
                elif 'EITHER' in x.text: t = vcc_policy(nv, x); nv += 1
                elif mn == 's_cbranch_scc1': assert scc is not None, x.text; t = scc
                elif mn == 's_cbranch_scc0': assert scc is not None, x.text; t = not scc
                elif mn == 's_cbranch_vccnz': t = vcc_policy(nv, x); nv += 1
                elif mn == 's_cbranch_vccz': t = not vcc_policy(nv, x); nv += 1
                elif mn == 's_cbranch_execz': t = False
                else: raise ValueError(mn)
                if t: pc = lab[x.target]
                continue
            if x.kind == 'salu' and x.ops and mn not in ('s_nop', 's_setprio', 's_sleep'):
                if mn.startswith('s_bitcmp'):
                    scc = None; continue
                if mn.startswith('s_cmp'):
                    a, b = val(x.ops[0]), val(x.ops[1])
                    if a is None or b is None: scc = None
                    else:
                        op = mn.split('_')[2]
                        if mn.endswith('i32'):
                            a = a - (1 << 32) if a >> 31 else a; b = b - (1 << 32) if b >> 31 else b
                        scc = {'eq': a == b, 'lg': a != b, 'lt': a < b, 'le': a <= b, 'gt': a > b, 'ge': a >= b}[op]
                    continue
                d = parse_reg(x.ops[0])
                a = val(x.ops[1]) if len(x.ops) > 1 else None
                b = val(x.ops[2]) if len(x.ops) > 2 else None
                r = None; nscc = scc
                if len(d) == 1:
                    if mn in ('s_mov_b32', 's_movk_i32'): r = a
                    elif mn == 's_cselect_b32': r = None if scc is None else (a if scc else b)
                    elif a is not None and b is not None:
                        if mn in ('s_add_u32', 's_add_i32'): r = (a + b) & M; nscc = (a + b) > M
                        elif mn in ('s_sub_u32', 's_sub_i32'): r = (a - b) & M; nscc = a < b
                        elif mn == 's_mul_i32': r = (a * b) & M
                        elif mn == 's_lshl_b32': r = (a << (b & 31)) & M; nscc = r != 0
                        elif mn == 's_lshr_b32': r = a >> (b & 31); nscc = r != 0
                        elif mn == 's_and_b32': r = a & b; nscc = r != 0
                        elif mn == 's_or_b32': r = a | b; nscc = r != 0
                        elif mn == 's_xor_b32': r = a ^ b; nscc = r != 0
                        else: nscc = None
                    else:
                        if mn not in ('s_mul_i32',): nscc = None
                    S[d[0][1]] = r
                else:
                    for q in d: S[q[1]] = None
                    if mn not in ('s_mov_b64', 's_cselect_b64'): nscc = None
                scc = nscc
            elif x.kind in ('valu', 'smem'):
                for q in x.wr:
                    if q[0] == 's': S[q[1]] = None
                if mn.startswith('v_readfirstlane') and 'WAVEID' in x.text:
                    S[parse_reg(x.ops[0])[0][1]] = wave
        return tr

    def verify_waits(self, tr, quiet=False):
        vm, lg, sm = [], [], []
        errs = 0; nbar = 0
        for x in tr:
            if x.mn == 's_waitcnt':
                for m in x.mods:
                    mm = re.match(r'(vmcnt|lgkmcnt)\((\d+)\)', m)
                    if mm:
                        n = int(mm.group(2)); q = vm if mm.group(1) == 'vmcnt' else lg
                        if mm.group(1) == 'lgkmcnt' and n == 0: sm.clear()
                        del q[:max(0, len(q) - n)]
                continue
            if x.mn == 's_barrier': nbar += 1
            t = x.rd | x.wr
            for q in (vm, lg, sm):
                for d, k, src in q:
                    if d & t:
                        if errs < 3 and not quiet: print('WAIT ERROR:', x.text, ' <- outstanding', src)
                        errs += 1
            if x.kind == 'vmem': vm.append((set() if 'NOCHECK' in x.text else set(x.wr), 'vm', x.text)); assert len(vm) <= 63, 'vmcnt overflow'
            if x.kind == 'ds': lg.append((set(x.wr), 'ds', x.text))
            if x.kind == 'smem': sm.append((set(x.wr), 'smem', x.text))
        return errs, nbar

def vr(base, n=1):
    return f'v{base}' if n == 1 else f'v[{base}:{base + n - 1}]'
def sr(base, n=1):
    return f's{base}' if n == 1 else f's[{base}:{base + n - 1}]'

def interleave(asm, mains, fillers, start=0, per=1, end=None):
    f = list(fillers)
    def emit(x):
        if callable(x): x()
        elif isinstance(x, (list, tuple)):
            for y in x: emit(y)
        else: asm.I(x)
    for i, m in enumerate(mains):
        emit(m)
        if i >= start:
            for _ in range(per):
                if f: emit(f.pop(0))
    for x in f: emit(x)
```

```python
import sys, math, struct
from asmlib import *

NAME = 'concat_heads__mha_block_cached__mha_block_cached__near_ridge'
OPT = dict(stamp=0, kvnt=1, wnt=0, xnt=0, ont=3, wont=0, oldnt=0, rot1=3, rot2=3, wopf=3, ord=1, desync=1, pre1=1, gate=2, cprio=1, tail=1, rotc=0, rhh=0, vfirst=1, hpmap=2, s2=1, cpf=1, sy=4, nimm=3, aux0=0, auxs=1, pp=0, mv=0, nwo=16, pfp=0, xpol=2, outp=0, pollmax=2000000, qprio=1, rs0=10, rs1=13, stag=1, aprio=1, pS=0, pM=0, pV=0, smfirst=0)
for a in sys.argv[2:]:
    k, v = a.split('='); OPT[k] = int(v) if v.lstrip('-').isdigit() else v

def fbits(x): return '0x%08x' % struct.unpack('<I', struct.pack('<f', x))[0]
NT = lambda k: {0: '', 1: ' nt', 2: ' sc1', 3: ' sc0 sc1', 4: ' sc1 nt'}[OPT[k]]
THRV = '0x7f800000' if OPT.get('novm') else fbits(8.0)
O_SLICE = 128 * 9216
STAMP_OFF = 64 << 20

class Stamper:
    def __init__(self, a, region):
        self.a = a; self.n = 0; self.region = region
    def real(self):
        if OPT['stamp'] == 4 and self.region == 0 and self.n: return
        if OPT['stamp']:
            self.a.I(f's_memrealtime {sr(76 + 2 * self.n, 2)}'); self.n += 1
    def cyc(self):
        if OPT['stamp'] == 4 and self.region == 0:
            self.a.raw('s_waitcnt lgkmcnt(0)'); self.sh(); return
        if OPT['stamp']:
            self.a.I(f's_memtime {sr(76 + 2 * self.n, 2)}'); self.n += 1
    def sh(self):
        if OPT['stamp'] == 4 and self.region == 0:
            for i in range(13): self.a.raw(f's_mov_b32 s{80 + i}, s{81 + i}')
            self.a.raw('s_mov_b32 s93, s98')
            self.a.raw('s_memtime s[98:99]')
    def flush(self, s_ws, s_wave, srd, vt):
        if not OPT['stamp']: return
        a = self.a
        regs = [76 + 2 * i for i in range(self.n)]
        if OPT['stamp'] == 4 and self.region == 0:
            regs = [76] + list(range(81, 94)) + [98]; self.n = 0
        assert self.n <= 12
        a.I('s_waitcnt vmcnt(0) lgkmcnt(0)')
        a.I(f's_add_u32 {sr(srd)}, {sr(s_ws)}, {STAMP_OFF + self.region * (1 << 20)}')
        a.I(f's_addc_u32 {sr(srd + 1)}, {sr(s_ws + 1)}, 0')
        a.I(f's_mov_b32 {sr(srd + 2)}, {1 << 20}')
        a.I(f's_mov_b32 {sr(srd + 3)}, 0x20000')
        a.I(f's_lshl_b32 s3, s2, 3')
        a.I(f's_add_u32 s3, s3, {sr(s_wave)}')
        a.I(f's_lshl_b32 s3, s3, 6')
        a.I(f'v_mov_b32 {vr(vt)}, 0')
        a.I(f'v_mov_b32 {vr(vt + 1)}, {self.n}')
        a.I(f'buffer_store_dword {vr(vt + 1)}, {vr(vt)}, {sr(srd, 4)}, s3 offen offset:60')
        a.I('s_nop 1')
        for i in range(len(regs)):
            a.I(f'v_mov_b32 {vr(vt + 1)}, {sr(regs[i])}')
            a.I(f'buffer_store_dword {vr(vt + 1)}, {vr(vt)}, {sr(srd, 4)}, s3 offen offset:{4 * i}')
            a.I('s_nop 1')

def gen_k1():
    a = Asm()
    st = Stamper(a, 0)
    MF = 'v_mfma_f32_16x16x32_bf16'
    sX, sW, sK, sV, sO = 20, 24, 28, 32, 36
    sWAVE, sR, sHH, sBLK, sB, sHP = 40, 41, 42, 43, 44, 45
    sM0W, sM0X, sOW, sOX, sLOOSE, sNEXT, sKVI = 46, 47, 48, 49, 50, 51, 52
    sSLW, sSLX = 53, 54
    sCNT, sT0, sT1 = 55, 56, 57
    sKP, sVP, sM0A, sDK, sDV, sOV, sOK = 58, 59, 60, 62, 63, 64, 65
    sTHR, sTHR8, sCL, sCL8 = 66, 67, 68, 69
    sC = 70
    sKPo, sVPo = 72, 73
    sST, sROT = 74, 75
    sLINK = 6
    sH = 61
    sPFO, sMK, sMV = 48, 50, 51
    sJ = 47
    sRS, sRC = 46, 61
    vKa, vVa, vD = 1, 3, 7
    mx, mx8, tA, tB = 8, 9, 10, 11
    ONES, NEGM, Q, S, POOL, O = 12, 16, 28, 76, 116, 148
    ACC, XF, WF = 112, 76, 44
    XB, QB = 49152, 49152
    HB1 = 114688
    def acc(t, j): return ACC + (t * 4 + j) * 4
    def o_(T, d): return O + (T * 9 + (d + 1) % 9) * 4
    JUNK = O + 3
    def q_(T, k): return Q + (T * 4 + k) * 4
    def s_(T, j, tt=0): return S + (T * 2 + j) * 8 + tt * 4 if T < 2 else S + 32 + tt * 4
    def negm(T): return NEGM + 4 * T
    kvreg = {'K0': 160, 'V0': 192, 'K1': 76, 'V1': 108}
    g, n, t0, t1, t2, t3 = 12, 13, 14, 15, 16, 17

    def hfun(dst, src, tmp):
        a.I(f'v_lshrrev_b32 {vr(tmp)}, 1, {vr(src)}')
        a.I(f'v_xor_b32 {vr(dst)}, {vr(src)}, {vr(tmp)}')
        a.I(f'v_and_b32 {vr(dst)}, 1, {vr(dst)}')
        a.I(f'v_lshl_or_b32 {vr(dst)}, {vr(dst)}, 1, {vr(tmp)}')
    def tr_pattern(dst):
        a.I(f'v_lshrrev_b32 {vr(g)}, 4, v0')
        hfun(t0, g, t1)
        a.I(f'v_bfe_u32 {vr(t1)}, v0, 1, 1')
        a.I(f'v_xor_b32 {vr(t0)}, {vr(t0)}, {vr(t1)}')
        a.I(f'v_lshlrev_b32 {vr(t0)}, 4, {vr(t0)}')
        a.I(f'v_lshl_add_u32 {vr(t0)}, {vr(g)}, 12, {vr(t0)}')
        a.I(f'v_bfe_u32 {vr(t1)}, v0, 2, 2')
        a.I(f'v_lshl_add_u32 {vr(t0)}, {vr(t1)}, 7, {vr(t0)}')
        a.I(f'v_bfe_u32 {vr(t1)}, v0, 3, 1')
        a.I(f'v_lshl_add_u32 {vr(t0)}, {vr(t1)}, 6, {vr(t0)}')
        a.I(f'v_and_b32 {vr(t1)}, 1, v0')
        a.I(f'v_lshl_add_u32 {vr(dst)}, {vr(t1)}, 3, {vr(t0)}')

    a.raw('s_cmp_ge_u32 s2, 256')
    a.raw('s_cbranch_scc1 k1_end')
    st.real(); st.cyc()
    a.I('s_and_b32 s3, s2, 7')
    a.I('s_lshr_b32 s4, s2, 3')
    a.I(f's_lshr_b32 {sr(sBLK)}, s3, 2')
    a.I(f's_mul_i32 s5, {sr(sBLK)}, 40')
    a.I('s_load_dwordx8 s[8:15], s[0:1], s5')
    a.I('s_load_dwordx2 s[16:17], s[0:1], 96')
    a.I('s_add_u32 s5, s5, 32')
    a.I('s_load_dwordx2 s[18:19], s[0:1], s5')
    a.I('s_and_b32 s5, s4, 3')
    if OPT['hpmap'] == 2: a.I('s_add_u32 s3, s3, s5')
    a.I('s_and_b32 s3, s3, 3')
    a.I(f's_lshl_b32 {sr(sHP)}, s5, 2')
    a.I(f's_add_u32 {sr(sHP)}, {sr(sHP)}, s3')
    a.I(f's_lshr_b32 {sr(sB)}, s4, 2')
    a.I(f's_add_u32 {sr(sROT)}, {sr(sB)}, s5')
    a.I(f'v_lshrrev_b32 {vr(t0)}, 6, v0')
    a.I(f'v_readfirstlane_b32 {sr(sWAVE)}, {vr(t0)} ; WAVEID')
    a.I('v_and_b32 v0, 63, v0')
    a.I(f's_and_b32 {sr(sR)}, {sr(sWAVE)}, 3')
    a.I(f's_lshr_b32 {sr(sHH)}, {sr(sWAVE)}, 2')
    a.I(f's_lshr_b32 s3, {sr(sR)}, 1')
    a.I(f's_xor_b32 {sr(sH)}, {sr(sR)}, s3')
    a.I(f's_and_b32 {sr(sH)}, {sr(sH)}, 1')
    a.I(f's_lshl_b32 {sr(sH)}, {sr(sH)}, 1')
    a.I(f's_or_b32 {sr(sH)}, {sr(sH)}, s3')
    a.I(f'v_and_b32 {vr(t0)}, 7, v0')
    a.I(f'v_xor_b32 {vr(t0)}, {sr(sH)}, {vr(t0)}')
    a.I(f'v_bfe_u32 {vr(t1)}, v0, 4, 1')
    a.I(f'v_lshlrev_b32 {vr(t1)}, 2, {vr(t1)}')
    a.I(f'v_xor_b32 {vr(t0)}, {vr(t0)}, {vr(t1)}')
    a.I(f'v_lshlrev_b32 {vr(t0)}, 4, {vr(t0)}')
    a.I(f'v_lshrrev_b32 {vr(t1)}, 5, v0')
    a.I(f'v_lshl_add_u32 {vr(t0)}, {vr(t1)}, 7, {vr(t0)}')
    a.I(f'v_lshrrev_b32 {vr(g)}, 4, v0')
    a.I(f'v_bfe_u32 {vr(t1)}, v0, 3, 2')
    a.I(f's_lshl_b32 s3, {sr(sR)}, 4')
    a.I(f'v_add_u32 {vr(t1)}, s3, {vr(t1)}')
    a.I(f'v_lshl_add_u32 {vr(vD)}, {vr(t1)}, 8, {vr(t0)}')
    vDW, vDX = 8, 9
    a.I(f'v_lshl_add_u32 {vr(vDW)}, {vr(t1)}, 13, {vr(t0)}')
    a.I(f's_lshl_b32 s3, {sr(sR)}, 2')
    a.I(f'v_add_u32 {vr(t0)}, s3, {vr(g)}')
    a.I(f'v_and_b32 {vr(t0)}, 7, {vr(t0)}')
    a.I(f'v_and_b32 {vr(t1)}, 2, {vr(t0)}')
    a.I(f'v_lshlrev_b32 {vr(t1)}, 1, {vr(t1)}')
    a.I(f'v_xor_b32 {vr(t0)}, {vr(t0)}, {vr(t1)}')
    a.I(f'v_and_b32 {vr(t1)}, 7, v0')
    a.I(f'v_xor_b32 {vr(t0)}, {vr(t0)}, {vr(t1)}')
    a.I(f'v_lshlrev_b32 {vr(t0)}, 4, {vr(t0)}')
    a.I(f'v_lshrrev_b32 {vr(t1)}, 3, v0')
    a.I(f's_lshl_b32 s3, {sr(sR)}, 3')
    a.I(f'v_add_u32 {vr(t1)}, s3, {vr(t1)}')
    a.I(f'v_lshl_add_u32 {vr(vDX)}, {vr(t1)}, 11, {vr(t0)}')
    a.I(f's_lshl_b32 {sr(sM0W)}, {sr(sR)}, 12')
    a.I(f's_lshl_b32 {sr(sM0X)}, {sr(sR)}, 10')
    a.I(f's_add_u32 {sr(sM0X)}, {sr(sM0X)}, {XB}')
    a.I(f's_mul_i32 {sr(sM0A)}, {sr(sHH)}, 81920')
    a.I(f's_add_u32 {sr(sM0A)}, {sr(sM0A)}, {sr(sM0W)}')
    a.I(f's_mov_b32 {sr(sST)}, 0')
    a.I(f's_mov_b32 {sr(sSLW)}, 0')
    a.I(f's_mov_b32 {sr(sSLX)}, 0')
    a.I(f's_and_b32 {sr(sRC)}, {sr(sROT)}, {OPT["rotc"]}')
    a.I(f's_lshl_b32 {sr(sRC)}, {sr(sRC)}, 14')
    a.I('s_waitcnt lgkmcnt(0)')
    a.I(f's_mul_i32 s3, {sr(sB)}, 294912')
    a.I(f's_add_u32 {sr(sX)}, s8, s3')
    a.I(f's_addc_u32 {sr(sX + 1)}, s9, 0')
    a.I(f's_mov_b32 {sr(sX + 2)}, 294912')
    a.I(f's_mov_b32 {sr(sX + 3)}, 0x20000')
    a.I(f's_lshl_b32 s3, {sr(sHP)}, 9')
    a.I(f's_add_u32 {sr(sW)}, s14, s3')
    a.I(f's_addc_u32 {sr(sW + 1)}, s15, 0')
    a.I(f's_sub_u32 {sr(sW + 2)}, 8388608, s3')
    a.I(f's_mov_b32 {sr(sW + 3)}, 0x20000')
    a.I(f's_lshl_b32 s3, {sr(sB)}, 4')
    a.I(f's_add_u32 s3, s3, {sr(sHP)}')
    a.I('s_lshl_b32 s3, s3, 18')
    for (d, p) in ((sK, 10), (sV, 12)):
        a.I(f's_add_u32 {sr(d)}, {sr(p)}, s3')
        a.I(f's_addc_u32 {sr(d + 1)}, {sr(p + 1)}, 0')
        a.I(f's_mov_b32 {sr(d + 2)}, 262144')
        a.I(f's_mov_b32 {sr(d + 3)}, 0x20000')
    a.I(f's_cmp_eq_u32 {sr(sHH)}, 0')
    a.I('s_cbranch_scc1 k1_comp')

    def wo_srd():
        a.I(f's_lshl_b32 s3, {sr(sB)}, 4')
        a.I(f's_add_u32 s3, s3, {sr(sHP)}')
        a.I('s_lshl_b32 s3, s3, 16')
        a.I(f's_add_u32 {sr(sX)}, s18, s3')
        a.I(f's_addc_u32 {sr(sX + 1)}, s19, 0')
        a.I(f's_mov_b32 {sr(sX + 2)}, 65536')
    def choff(dst, c, hq):
        a.I(f's_add_u32 {sr(dst)}, {sr(sRC)}, {(c + OPT["rhh"] * hq) * 16384}')
        a.I(f's_and_b32 {sr(dst)}, {sr(dst)}, 0x1ffff')
        if hq: a.I(f's_add_u32 {sr(dst)}, {sr(dst)}, 131072')
    def stage_w():
        R = OPT['rot1']
        a.many([f's_add_u32 {sr(sOX)}, {sr(sST)}, {sr(sROT)}',
                f's_and_b32 {sr(sOX)}, {sr(sOX)}, {R}',
                f's_and_b32 {sr(sOW)}, {sr(sST)}, {15 & ~R}',
                f's_or_b32 {sr(sOX)}, {sr(sOX)}, {sr(sOW)}',
                f's_add_u32 {sr(sT0)}, {sr(sM0W)}, {sr(sSLW)}',
                f's_lshl_b32 {sr(sOW)}, {sr(sOX)}, 19',
                f's_lshl_b32 {sr(sOX)}, {sr(sOX)}, 7',
                f's_add_u32 {sr(sST)}, {sr(sST)}, 1'])
        for tq in range(4):
            a.I(f's_mov_b32 m0, {sr(sT0)}')
            a.I(f'buffer_load_dwordx4 {vr(vDW)}, {sr(sW, 4)}, {sr(sOW)} offen offset:{tq * 1024}{NT("wnt")} lds')
            a.I(f's_add_u32 m0, {sr(sT0)}, {HB1 - 256}')
            a.I(f'buffer_load_dwordx4 {vr(vDW)}, {sr(sW, 4)}, {sr(sOW)} offen offset:{tq * 1024 + 256}{NT("wnt")} lds')
            if tq < 3: a.I(f's_add_u32 {sr(sOW)}, {sr(sOW)}, {32768 - 1024}')
    def stage_x():
        a.I(f's_add_u32 {sr(sT0)}, {sr(sM0X)}, {sr(sSLX)}')
        lb = a.newlabel('k1_skipx')
        for i in range(5):
            if i == 4:
                a.I(f's_cmp_ge_u32 {sr(sR)}, 2')
                a.I(f's_cbranch_scc1 {lb}')
            a.I(f's_add_u32 m0, {sr(sT0)}, {i * 4096}')
            a.I(f'buffer_load_dwordx4 {vr(vDX)}, {sr(sX, 4)}, {sr(sOX)} offen{NT("xnt")} lds')
            if i < 4: a.I(f's_add_u32 {sr(sOX)}, {sr(sOX)}, 65536')
        a.label(lb)
        a.I(f's_add_u32 {sr(sSLW)}, {sr(sSLW)}, 16384')
        a.I(f's_add_u32 {sr(sSLX)}, {sr(sSLX)}, 18432')
        a.I(f's_cmp_eq_u32 {sr(sSLW)}, 49152')
        a.I(f's_cselect_b32 {sr(sSLW)}, 0, {sr(sSLW)}')
        a.I(f's_cselect_b32 {sr(sSLX)}, 0, {sr(sSLX)}')
    a.I(f's_call_b64 {sr(sLINK, 2)}, k1_stage')
    stage_w_only = OPT['pre1']
    if stage_w_only:
        stage_w()
        a.I('s_waitcnt vmcnt(8)')
        a.I('s_barrier')
        stage_x()
    else:
        a.I('s_waitcnt vmcnt(0)')
        a.I('s_barrier')
        a.I(f's_call_b64 {sr(sLINK, 2)}, k1_stage')
    st0 = st.n
    st.cyc()
    a.I(f's_call_b64 {sr(sLINK, 2)}, k1_stage')
    a.I(f's_mul_i32 s3, s2, 171')
    a.I(f's_lshr_b32 s3, s3, 9')
    a.I(f's_mul_i32 s3, s3, 3')
    a.I(f's_sub_u32 {sr(sNEXT)}, s2, s3')
    if not OPT['desync']: a.I(f's_mov_b32 {sr(sNEXT)}, 0')
    a.I(f's_mov_b32 {sr(sLOOSE)}, 0')
    a.I(f's_mov_b32 {sr(sKVI)}, 0')
    a.I(f's_mov_b32 {sr(sCNT)}, 0')
    def lbar():
        lb = a.newlabel('k1_loose')
        a.I(f's_cmp_gt_i32 {sr(sLOOSE)}, 0')
        a.I(f's_cbranch_scc1 {lb}')
        a.I('s_waitcnt vmcnt(12)')
        a.label(lb)
        a.I(f's_sub_i32 {sr(sLOOSE)}, {sr(sLOOSE)}, 1')
        a.I('s_waitcnt vmcnt(20)')
        a.I('s_barrier')
    a.label('k1_lloop')
    lbar()
    a.I(f's_call_b64 {sr(sLINK, 2)}, k1_stage')
    a.I(f's_cmp_lg_u32 {sr(sCNT)}, {sr(sNEXT)}')
    a.I('s_cbranch_scc1 k1_kvdone')
    a.I(f's_add_u32 {sr(sNEXT)}, {sr(sNEXT)}, 3')
    a.I(f's_add_u32 {sr(sKVI)}, {sr(sKVI)}, 1')
    for m, it in enumerate(('K0', 'V0', 'K1', 'V1')):
        a.I(f's_cmp_lg_u32 {sr(sKVI)}, {m + 1}')
        a.I(f's_cbranch_scc1 k1_kv{m + 1}')
        a.I(f's_mov_b32 {sr(sLOOSE)}, 2')
        for hq in range(2):
            a.I(f's_mov_b32 {sr(sT0)}, {int(it[1]) * 16384 + hq * 131072}')
            for j in range(4):
                a.I(f'buffer_load_dwordx4 {vr(kvreg[it] + 16 * hq + 4 * j, 4)}, {vr(vD)}, {sr(sK if it[0] == "K" else sV, 4)}, {sr(sT0)} offen offset:{j * 1024}{NT("kvnt")}')
        if m < 3: a.I('s_branch k1_kvdone')
        a.label(f'k1_kv{m + 1}')
    a.label('k1_kvdone')
    a.I(f's_add_u32 {sr(sCNT)}, {sr(sCNT)}, 1')
    a.I(f's_cmp_lt_u32 {sr(sCNT)}, 13')
    a.I('s_cbranch_scc1 k1_lloop')
    a.I(f's_add_u32 s3, {sr(sM0W)}, 16384')
    a.I(f'v_lshl_add_u32 {vr(tA)}, v0, 4, s3')
    a.I(f'v_add_u32 {vr(tB)}, {81920 + 32768}, {vr(tA)}')
    a.I(f'v_add_u32 {vr(mx)}, {81920 - 16384}, {vr(tA)}')
    def kvwrite(it, off, b1=tB, off1=None):
        for hq in range(2):
            o = off if (hq == 0 or off1 is None) else off1
            for j in range(4): a.I(f'ds_write_b128 {vr((tA, b1)[hq])}, {vr(kvreg[it] + 16 * hq + 4 * j, 4)} offset:{o + j * 1024}')
    lbar()
    npf = 0
    if OPT['wopf'] == 3:
        wo_srd()
        a.I(f'v_lshlrev_b32 {vr(t1)}, 4, v0')
        a.I(f's_lshl_b32 {sr(sT0)}, {sr(sR)}, 14')
        for k in range(OPT['nwo']):
            a.I(f'buffer_load_dwordx4 v[224:227], {vr(t1)}, {sr(sX, 4)}, {sr(sT0)} offen offset:{(k & 3) * 1024} ; NOCHECK')
            if k & 3 == 3: a.I(f's_add_u32 {sr(sT0)}, {sr(sT0)}, 4096')
            npf += 1
            if k == 7: kvwrite('K0', 0); a.I(f's_waitcnt vmcnt({npf})'); a.I('s_barrier')
    else:
        kvwrite('K0', 0)
        a.I('s_waitcnt vmcnt(0)')
        a.I('s_barrier')
    kvwrite('V0', 16384)
    a.I('s_barrier')
    a.I('s_waitcnt vmcnt(0)')
    st.cyc()
    a.I('s_branch k1_join')

    a.label('k1_stage')
    stage_w(); stage_x()
    a.I(f's_setpc_b64 {sr(sLINK, 2)}')

    a.label('k1_comp')
    a.lg = []
    st.n = st0
    vWp, vX, vQW = 1, 5, 8
    if OPT['cpf']:
        a.I(f's_getpc_b64 {sr(sO, 2)}')
        a.label('k1_pc')
        a.I(f's_mov_b32 {sr(sO + 2)}, k1_end-k1_pc')
        a.I(f's_mov_b32 {sr(sO + 3)}, 0x20000')
        a.I(f's_lshl_b32 s3, {sr(sR)}, 13')
        a.I(f'v_lshlrev_b32 {vr(t0)}, 6, v0')
        a.I(f'buffer_load_dword v20, {vr(t0)}, {sr(sO, 4)}, s3 offen ; NOCHECK')
        a.I('s_add_u32 s3, s3, 4096')
        a.I(f'buffer_load_dword v20, {vr(t0)}, {sr(sO, 4)}, s3 offen ; NOCHECK')
    tr_pattern(vWp)
    a.I(f's_lshr_b32 s3, {sr(sR)}, 1')
    a.I(f's_mul_i32 s4, s3, {HB1}')
    a.I(f's_and_b32 s5, {sr(sR)}, 1')
    a.I('s_lshl_b32 s6, s5, 9')
    a.I('s_add_u32 s4, s4, s6')
    a.I(f'v_add_u32 {vr(vWp)}, s4, {vr(vWp)}')
    for j in range(1, 4): a.I(f'v_xor_b32 {vr(vWp + j)}, {32 * j}, {vr(vWp)}')
    a.I(f'v_and_b32 {vr(n)}, 15, v0')
    a.I(f'v_lshrrev_b32 {vr(t0)}, 1, {vr(n)}')
    a.I(f'v_and_b32 {vr(t1)}, 2, {vr(t0)}')
    a.I(f'v_lshlrev_b32 {vr(t1)}, 1, {vr(t1)}')
    a.I(f'v_xor_b32 {vr(t0)}, {vr(t0)}, {vr(t1)}')
    a.I(f'v_lshlrev_b32 {vr(t1)}, 1, {vr(g)}')
    a.I(f'v_xor_b32 {vr(t0)}, {vr(t0)}, {vr(t1)}')
    a.I(f'v_lshlrev_b32 {vr(t0)}, 4, {vr(t0)}')
    a.I(f'v_lshl_add_u32 {vr(t0)}, {vr(n)}, 7, {vr(t0)}')
    a.I(f'v_add_u32 {vr(vX)}, {XB}, {vr(t0)}')
    a.I(f'v_xor_b32 {vr(vX + 1)}, 16, {vr(vX)}')
    a.I(f's_mul_i32 s4, s3, 36864')
    a.I('s_lshl_b32 s6, s5, 11')
    a.I('s_add_u32 s4, s4, s6')
    a.I(f's_add_u32 s4, s4, {QB}')
    a.I(f'v_lshl_add_u32 {vr(t0)}, {vr(n)}, 4, s4')
    a.I(f'v_lshrrev_b32 {vr(t1)}, 1, {vr(g)}')
    a.I(f'v_lshl_add_u32 {vr(t0)}, {vr(t1)}, 8, {vr(t0)}')
    a.I(f'v_and_b32 {vr(t1)}, 1, {vr(g)}')
    a.I(f'v_lshl_add_u32 {vr(vQW)}, {vr(t1)}, 3, {vr(t0)}')
    cval = fbits(128 ** -0.5 * math.log2(math.e))
    a.I(f's_mov_b32 {sr(sC)}, {cval}')
    a.I(f's_mov_b32 {sr(sC + 1)}, {cval}')
    for i in range(0, 144, 2): a.I(f'v_mov_b64 {vr(ACC + i, 2)}, 0')
    def xread(t, slot, ks): return f'ds_read_b128 {vr(XF + 4 * t, 4)}, {vr(vX + ks)} offset:{slot * 18432 + t * 2048}'
    def wreads(W, slot, ks):
        return [f'ds_read_b64_tr_b16 {vr(W + 4 * j + 2 * h, 2)}, {vr(vWp + j)} offset:{slot * 16384 + ks * 2048 + h * 1024}' for j in range(4) for h in range(2)]
    GT = OPT['gate']
    def kstep(Wc, Wn, nslot, nks, gated, last=False):
        wr = wreads(Wn, nslot, nks) if not last else []
        conv = []
        for t in range(9):
            for j in range(4):
                a.I(f'{MF} {vr(acc(t, j), 4)}, {vr(Wc + 4 * j, 4)}, {vr(XF + 4 * t, 4)}, {vr(acc(t, j), 4)}')
                if t >= (GT if gated else 0) and j in (0, 2) and wr: a.I(wr.pop(0))
                for _ in range(5):
                    if conv: a.I(conv.pop(0))
            if gated and t == GT - 1:
                a.I('s_waitcnt lgkmcnt(0)')
                a.I('s_barrier')
                if not last:
                    for tt in range(GT): a.I(xread(tt, nslot, nks))
            elif not last and (not gated or t >= GT): a.I(xread(t, nslot, nks))
            if last and t >= GT - 1:
                lo = 0 if t == GT - 1 else t - 1
                for tc in range(lo, t): conv += convert(tc)
        if last:
            a.many(conv); a.many(convert(8))
        assert not wr
    def convert(t):
        r = []
        for j in range(4): r += [f'v_pk_mul_f32 {vr(acc(t, j) + 2 * k, 2)}, {vr(acc(t, j) + 2 * k, 2)}, {sr(sC, 2)}' for k in range(2)]
        for j in range(4): r += [f'v_cvt_pk_bf16_f32 {vr(acc(t, j) + k)}, {vr(acc(t, j) + 2 * k)}, {vr(acc(t, j) + 2 * k + 1)}' for k in range(2)]
        for j in range(4): r += [f'ds_write_b64 {vr(vQW)}, {vr(acc(t, j), 2)} offset:{t * 4096 + (j >> 1) * 1024 + (j & 1) * 512}']
        return r
    W0, W1 = WF, WF + 16
    if OPT['cprio']: a.I(f's_setprio {OPT["cprio"]}')
    a.I('s_barrier')
    st.cyc()
    a.many(wreads(W0, 0, 0))
    for t in range(9): a.I(xread(t, 0, 0))
    a.I(f's_mov_b32 {sr(sCNT)}, 0')
    a.I('s_waitcnt lgkmcnt(0)')
    class _Dry(Asm): pass
    save = (a.ins, a.lg); a.ins = []; a.lg = []
    kstep(W1, W0, 0, 0, True); lg0 = [set(x) for x in a.lg]
    a.ins, a.lg = save
    a.lg = [set(x) for x in lg0]
    a.label('k1_qloop')
    for i in range(3):
        kstep(W0, W1, i, 1, False)
        kstep(W1, W0, (i + 1) % 3, 0, True)
    assert [set(x) for x in a.lg] == lg0
    a.I(f's_add_u32 {sr(sCNT)}, {sr(sCNT)}, 1')
    a.I(f's_cmp_lt_u32 {sr(sCNT)}, 5')
    a.I('s_cbranch_scc1 k1_qloop')
    kstep(W0, W1, 0, 1, False)
    kstep(W1, W0, 0, 0, True, last=True)
    if OPT['cprio']: a.I('s_setprio 0')
    a.I('s_waitcnt vmcnt(0)')
    st.cyc()

    a.label('k1_join')
    a.lg = [set()]
    a.I(f's_lshl_b32 {sr(sKP)}, {sr(sHH)}, 15')
    a.I(f's_add_u32 {sr(sKP)}, {sr(sKP)}, 16384')
    a.I(f's_add_u32 {sr(sVP)}, {sr(sKP)}, 16384')
    a.I(f's_and_b32 s3, {sr(sR)}, 1')
    a.I('s_lshl_b32 s3, s3, 11')
    a.I(f's_lshl_b32 {sr(sJ)}, s3, 1')
    a.I(f's_sub_u32 {sr(sJ)}, 2048, {sr(sJ)}')
    a.I(f's_mul_i32 s5, {sr(sHH)}, 81920')
    a.I('s_add_u32 s5, s5, s3')
    a.I(f's_add_u32 s4, s5, {sr(sVP)}')
    a.I(f's_add_u32 s5, s5, {sr(sKP)}')
    a.I(f's_mul_i32 s3, {sr(sHH)}, 36864')
    a.I(f's_add_u32 s3, s3, {QB}')
    a.I(f'v_lshl_add_u32 {vr(t3)}, v0, 4, s3')
    a.I(f's_lshl_b32 s3, {sr(sR)}, 13')
    a.I(f'v_add_u32 {vr(t2)}, s3, {vr(t3)}')
    a.I('s_waitcnt lgkmcnt(0)')
    a.I('s_barrier')
    for T in range(2):
        for k in range(4): a.I(f'ds_read_b128 {vr(q_(T, k), 4)}, {vr(t2)} offset:{T * 4096 + k * 1024}')
    for k in range(4): a.I(f'ds_read_b128 {vr(q_(2, k), 4)}, {vr(t3)} offset:{32768 + k * 1024}')
    tr_pattern(vVa)
    a.I(f'v_add_u32 {vr(vVa)}, s4, {vr(vVa)}')
    for j in range(1, 4): a.I(f'v_xor_b32 {vr(vVa + j)}, {32 * j}, {vr(vVa)}')
    a.I(f'v_bfe_u32 {vr(n)}, v0, 2, 2')
    hfun(t0, n, t1)
    a.I(f'v_xor_b32 {vr(t0)}, {vr(t0)}, {vr(g)}')
    a.I(f'v_lshlrev_b32 {vr(t0)}, 4, {vr(t0)}')
    a.I(f'v_lshl_add_u32 {vr(t0)}, {vr(n)}, 12, {vr(t0)}')
    a.I(f'v_and_b32 {vr(t1)}, 3, v0')
    a.I(f'v_lshl_add_u32 {vr(t0)}, {vr(t1)}, 7, {vr(t0)}')
    a.I(f'v_bfe_u32 {vr(t1)}, v0, 1, 1')
    a.I(f'v_lshl_add_u32 {vr(t0)}, {vr(t1)}, 6, {vr(t0)}')
    a.I(f'v_add_u32 {vr(vKa)}, s5, {vr(t0)}')
    a.I(f'v_xor_b32 {vr(vKa + 1)}, 64, {vr(vKa)}')
    for i in range(4): a.I(f'v_mov_b32 {vr(ONES + i)}, 0x3f803f80')
    for i in range(0, 12, 2): a.I(f'v_mov_b64 {vr(NEGM + i, 2)}, 0')
    NEG_BIG = fbits(-3.0e38)
    for s in (sTHR, sTHR8, sCL, sCL8): a.I(f's_mov_b32 {sr(s)}, {NEG_BIG}')
    a.I(f's_lshl_b32 s3, {sr(sHH)}, 17')
    a.I(f'v_add_u32 {vr(vD)}, s3, {vr(vD)}')
    a.I(f's_mov_b32 {sr(sOV)}, 32768')
    a.I(f's_mov_b32 {sr(sOK)}, 32768')
    for i in range(0, 108, 2): a.I(f'v_mov_b64 {vr(O + i, 2)}, 0')
    a.I(f's_lshl_b32 s5, {sr(sHH)}, 15')
    a.I(f's_add_u32 s5, s5, {sr(sM0A)}')
    a.I(f's_mov_b32 {sr(sT1)}, 32768')
    a.I(f's_mov_b32 {sr(sCNT)}, 0')
    a.I(f's_mov_b32 {sr(sRS)}, 0')
    if OPT['wopf'] in (1, 2):
        wo_srd()
        a.I(f's_lshl_b32 {sr(sOX)}, {sr(sWAVE)}, 13')
    a.I('s_waitcnt lgkmcnt(0)')
    a.I('s_barrier')
    a.lg = []
    def dma_ins(kind):
        srd, so = (sK, sOK) if kind == 'K' else (sV, sOV)
        r = [[f'buffer_load_dwordx4 {vr(vD)}, {sr(srd, 4)}, {sr(so)} offen offset:{j * 1024}{NT("kvnt")} lds'] for j in range(4)]
        r[3].append(f's_add_u32 {sr(so)}, {sr(so)}, 16384')
        return r
    def dma_grp(kind, m0):
        r = dma_ins(kind); r[0] = [m0, 's_nop 0'] + r[0]
        return r
    for x in dma_grp('K', 's_mov_b32 m0, s5'): a.many(x)
    a.I(f's_cmp_eq_u32 {sr(sHH)}, 0')
    a.I('s_cbranch_scc1 k1_nowr')
    kvwrite('K1', 32768, mx, 0); kvwrite('V1', 49152, mx, 16384)
    a.label('k1_nowr')
    a.lg = []
    LA, SY = 6, OPT['sy']
    def rd(kind, jl, f):
        if kind == 'K':
            return [f'ds_read_b128 {vr(POOL + 4 * f, 4)}, {vr(vKa + (f & 1))} offset:{(f >> 2) * 1024 + ((f >> 1) & 1) * 512}']
        return [f'ds_read_b64_tr_b16 {vr(POOL + 4 * f + 2 * h, 2)}, {vr(vVa + (f & 3))} offset:{h * 1024 + (f >> 2) * 512}' for h in range(2)]
    def rd_upd(kind, jl, f):
        r = rd(kind, jl, f)
        if kind == 'K' and f >= 6: r.append(f'v_add_u32 {vr(vKa + (f & 1))}, {sr(sDK if jl else sJ)}, {vr(vKa + (f & 1))}')
        if kind == 'V' and f >= 6:
            for x in (f - 2, f): r.append(f'v_add_u32 {vr(vVa + (x & 3))}, {sr(sDV if jl else sJ)}, {vr(vVa + (x & 3))}')
        return r
    for f in range(LA): a.many(rd('K', 0, f))
    lgK = [set(x) for x in a.lg]
    lgV = [set(Insn(x).wr) for f in range(LA) for x in rd('V', 0, f)]
    st.cyc()
    a.I(f's_lshr_b32 s3, {sr(sR)}, 1')
    a.I(f's_xor_b32 s3, s3, {sr(sHH)}')
    a.I('s_cmp_eq_u32 s3, 1')
    a.I('s_cbranch_scc1 k1_proL')

    def maxops(jl, heavy):
        ops = []
        vals = [s_(T, jl, tt) + k for tt in range(2) for T in range(2) for k in range(4)]
        for vs, dst in ((vals, mx),) + ((([s_(2, 0) + k for k in range(8)], mx8),) if heavy else ()):
            o = [f'v_max3_f32 {vr(dst)}, {vr(vs[0])}, {vr(vs[1])}, {vr(vs[2])}']
            for k in range(3, len(vs) - 1, 2): o.append(f'v_max3_f32 {vr(dst)}, {vr(dst)}, {vr(vs[k])}, {vr(vs[k + 1])}')
            o.append(f'v_max_f32 {vr(dst)}, {vr(dst)}, {vr(vs[-1])}')
            ops += o
        return ops
    def expops(jl, heavy):
        ops = []
        Tl = (0, 1, 2) if heavy else (0, 1)
        for k in range(8):
            for T in Tl: ops.append(f'v_exp_f32 {vr(s_(T, jl) + k)}, {vr(s_(T, jl) + k)}')
            if k >= 2 and k % 2 == 0:
                for T in Tl: ops.append(f'v_cvt_pk_bf16_f32 {vr(s_(T, jl) + k // 2 - 1)}, {vr(s_(T, jl) + k - 2)}, {vr(s_(T, jl) + k - 1)}')
        for T in Tl: ops.append(f'v_cvt_pk_bf16_f32 {vr(s_(T, jl) + 3)}, {vr(s_(T, jl) + 6)}, {vr(s_(T, jl) + 7)}')
        return ops
    def check(jl, heavy):
        for (thr, m, fn) in ((sTHR, mx, f'k1_rare{jl}'),) + (((sTHR8, mx8, 'k1_rare8'),) if heavy else ()):
            lb = a.newlabel('k1_ok')
            a.I(f'v_cmp_lt_f32 vcc, {sr(thr)}, {vr(m)}')
            a.I(f's_cbranch_vccz {lb}')
            a.I(f's_call_b64 {sr(sLINK, 2)}, {fn}')
            a.label(lb)
    def mfmas(kind, jl, heavy, f):
        Tl = (0, 1, 2) if heavy else (0, 1)
        P = vr(POOL + 4 * f, 4)
        if kind == 'K':
            tt, ks = f >> 2, f & 3
            return [f'{MF} {vr(s_(T, jl, tt), 4)}, {P}, {vr(q_(T, ks), 4)}, {vr(negm(T) if ks == 0 else s_(T, jl, tt), 4)}' for T in Tl]
        r = [f'{MF} {vr(o_(T, f), 4)}, {P}, {vr(s_(T, jl), 4)}, {vr(o_(T, f), 4)}' for T in Tl]
        if f == 7: r += [f'{MF} {vr(o_(T, 8), 4)}, {vr(ONES, 4)}, {vr(s_(T, jl), 4)}, {vr(o_(T, 8), 4)}' for T in Tl]
        return r
    def ring_step(doK, doV):
        r = []
        for (P, Po, D, on) in ((sKP, sKPo, sDK, doK), (sVP, sVPo, sDV, doV)):
            if not on: continue
            r.append([f's_mov_b32 {sr(Po)}, {sr(P)}',
                      f's_cmp_ge_u32 {sr(P)}, 49152',
                      f's_cselect_b32 {sr(D)}, {-49152 & 0xffffffff:#x}, {sr(sT1)}',
                      f's_add_u32 {sr(P)}, {sr(P)}, {sr(D)}',
                      f's_sub_u32 {sr(D)}, {sr(D)}, {sr(sJ)}'])
        return r
    def cost(x):
        if callable(x): return 8
        return 8 if x.startswith('v_exp') else 4
    def pack(stream, ngaps, reserved):
        for cap_extra in range(0, ngaps + 1):
            big = set((i * ngaps) // cap_extra for i in range(cap_extra)) if cap_extra else set()
            out = [[] for _ in range(ngaps)]; k = 0
            for gi in range(ngaps):
                room = (16 if gi in big else 8) - reserved[gi]
                while k < len(stream) and cost(stream[k]) <= room:
                    out[gi].append(stream[k]); room -= cost(stream[k]); k += 1
            if k == len(stream): return out
        out[-1] += stream[k:]
        return out
    def block(segs, streams, mode, aux0, nvm):
        uses = [(si, f) for si in range(len(segs)) for f in range(8)]
        nU = len(uses)
        gaps = []
        for k, (si, f) in enumerate(uses):
            for n_ in range(len(mfmas(segs[si][0], segs[si][1], segs[si][2], f))): gaps.append((k, n_))
        aux = {gp: [] for gp in gaps}; pre = {gp: [] for gp in gaps}
        for k in range(nU - LA):
            s2, f2 = uses[k + LA]
            rr = rd_upd(segs[s2][0], segs[s2][1], f2)
            for i, x in enumerate([x for x in rr if x.startswith('ds_')]): aux[(k, i)].append(x)
            pre[(k + 1, 0)] += [x for x in rr if x.startswith('v_')]
        if mode != 'fin':
            post = [gp for gp in gaps if gp[0] > nU - 8 + SY]
            q = [(f, x) for f in range(LA) for x in rd('V', 0, f)]
            early = [x for f, x in q if f < OPT['nimm']]; q = [(f, x) for f, x in q if f >= OPT['nimm']]
            per = -(-len(q) // len(post))
            for gp in post:
                for _ in range(per):
                    fdone = gp[0] - (nU - 8) - (0 if gp[1] == 1 else 1)
                    if q and q[0][0] <= fdone: aux[gp].append(q.pop(0)[1])
            assert not q, q
        for gp, x in zip(gaps[OPT['aux0']::OPT['auxs']], aux0): aux[gp].append(x)
        fill = {}
        for (sa, sb, skip, ops) in streams:
            gl = [gp for gp in gaps if sa <= uses[gp[0]][0] <= sb]
            gl = gl[skip:len(gl) - OPT['tail']]
            for gp, ol in zip(gl, pack(ops, len(gl), [4 * len(pre[gp]) for gp in gl])):
                fill[gp] = ol
                assert not (any(callable(x) for x in ol) and uses[gp[0]][0] != sa)
        def emit(x):
            if callable(x): x()
            elif isinstance(x, list):
                for y in x: emit(y)
            else: a.I(x)
        for k, (si, f) in enumerate(uses):
            kind, jl, heavy, after = segs[si]
            if f == 0 and OPT['aprio'] and si: a.I(f's_setprio {len(segs) - 1 - si}')
            for n_, m in enumerate(mfmas(kind, jl, heavy, f)):
                a.I(m)
                emit(pre[(k, n_)]); emit(fill.get((k, n_), [])); emit(aux[(k, n_)])
            if OPT['stamp'] == 3 and mode == 'loop' and f == 7 and si < 3: a.raw(f's_memtime {sr(90 + 2 * si, 2)}')
            if mode != 'fin' and k == nU - 8 + SY:
                if OPT['stamp'] == 3 and mode == 'loop':
                    a.raw('s_mov_b32 s88, s98')
                    a.raw('s_memtime s[96:97]')
                a.I(f's_waitcnt vmcnt({nvm}) lgkmcnt(0)')
                a.I('s_barrier')
                if OPT['aprio']: a.I('s_setprio 3')
                st.sh()
                if OPT['stamp'] == 3 and mode == 'loop': a.raw('s_memtime s[98:99]')
                a.many(early)
            if f == 7 and after: after()
        if mode != 'fin': assert [set(x) for x in a.lg] == lgV, (a.lg, lgV)
    def resc():
        lb = a.newlabel('k1_nors')
        a.I(f's_cmp_eq_u32 {sr(sRS)}, 0')
        a.I(f's_cbranch_scc1 {lb}')
        a.I(f's_call_b64 {sr(sLINK, 2)}, k1_rescale')
        a.label(lb)
    def sm(jl, heavy): return maxops(jl, heavy) + [lambda: check(jl, heavy)] + expops(jl, heavy)
    OFFM0 = 0x30000
    def warm(kind, so):
        r = [[f'buffer_load_dwordx4 {vr(vD)}, {sr(sK if kind == "K" else sV, 4)}, {so} offen offset:{j * 1024}{NT("pfp")} lds'] for j in range(4)]
        r[0] = [f's_mov_b32 m0, {OFFM0}', 's_nop 0'] + r[0]
        return r
    def prologue(h0):
        a.lg = [set(x) for x in lgK]
        ax = ring_step(True, False)
        if OPT['pp']: ax = ax + warm('K', sr(sOK))
        block([('K', 0, h0, lambda: (a.many(maxops(0, h0)), check(0, h0))), ('K', 1, False, None)],
              [(1, 1, 0, expops(0, h0))], 'pro', ax, 63)
    def body_aux():
        r = [[f's_add_u32 {sr(sMK)}, {sr(sM0A)}, {sr(sVPo)}',
              f's_add_u32 {sr(sMV)}, {sr(sM0A)}, {sr(sKPo)}',
              f's_cmp_ge_u32 {sr(sCNT)}, 6',
              f's_cselect_b32 {sr(sMV)}, {OFFM0}, {sr(sMV)}',
              f's_cselect_b32 {sr(sOV)}, 0x1000000, {sr(sOV)}',
              f's_sub_u32 s3, {sr(sCNT)}, 1',
              f's_cmp_ge_u32 s3, 5',
              f's_cselect_b32 m0, {OFFM0}, {sr(sMK)}',
              f's_cselect_b32 s3, 0x1000000, {sr(sOK)}',
              f's_cselect_b32 s4, 0, 16384']]
        r += ring_step(True, True)
        for j in range(4): r.append([f'buffer_load_dwordx4 {vr(vD)}, {sr(sK, 4)}, s3 offen offset:{j * 1024}{NT("kvnt")} lds'])
        r[-1] += [f's_add_u32 {sr(sOK)}, {sr(sOK)}, s4', f's_mov_b32 m0, {sr(sMV)}']
        r += dma_ins('V')
        if OPT['mv']:
            w = warm('V', 's3')
            w[0] = [f's_mov_b32 s4, {OPT["mv"]}', f's_bitcmp1_b32 s4, {sr(sCNT)}', f's_cselect_b32 s3, {sr(sOV)}, 0x1000000'] + w[0]
            return r + w, 8
        return r, 4
    def body(hc, tag, exit_to):
        a.lg = [set(x) for x in lgV]
        hn = not hc
        ax, nvm = body_aux()
        block([('V', 0, hc, resc), ('K', 0, hn, None), ('V', 1, False, resc), ('K', 1, False, None)],
              [(0, 1, 1, sm(1, False)), (2, 3, 1, sm(0, hn))], 'loop', ax, nvm)
        a.I(f's_add_u32 {sr(sCNT)}, {sr(sCNT)}, 1')
        a.I(f's_cmp_eq_u32 {sr(sCNT)}, 7')
        a.I(f's_cbranch_scc1 {exit_to}')
    def final(hc):
        a.lg = [set(x) for x in lgV]
        block([('V', 0, hc, resc), ('V', 1, False, None)], [(0, 0, 1, sm(1, False))], 'fin', [], 0)
        if OPT['aprio']: a.I('s_setprio 0')
    prologue(True)
    a.label('k1_X')
    body(True, 'x', 'k1_finL')
    a.label('k1_Y')
    body(False, 'y', 'k1_finH')
    a.I('s_branch k1_X')
    a.label('k1_proL')
    prologue(False)
    a.I('s_branch k1_Y')

    a.auto = False
    def xg_reduce(x, tmp, op):
        a.I(f'v_mov_b32 {vr(tmp)}, {vr(x)}')
        a.I(f'v_permlane32_swap_b32 {vr(x)}, {vr(tmp)}')
        a.I(f'{op} {vr(x)}, {vr(x)}, {vr(tmp)}')
        a.I(f'v_mov_b32 {vr(tmp)}, {vr(x)}')
        a.I(f'v_permlane16_swap_b32 {vr(x)}, {vr(tmp)}')
        a.I(f'{op} {vr(x)}, {vr(x)}, {vr(tmp)}')
    FREG = {0: mx, 1: tA, 2: mx8}
    def rare(T, vals, scl, canfirst):
        m, tmp = tB, FREG[T]
        a.I(f'v_max3_f32 {vr(m)}, {vr(vals[0])}, {vr(vals[1])}, {vr(vals[2])}')
        for k in range(3, len(vals) - 1, 2): a.I(f'v_max3_f32 {vr(m)}, {vr(m)}, {vr(vals[k])}, {vr(vals[k + 1])}')
        a.I(f'v_max_f32 {vr(m)}, {vr(m)}, {vr(vals[-1])}')
        xg_reduce(m, tmp, 'v_max_f32')
        a.I(f'v_max_f32 {vr(m)}, {sr(scl)}, {vr(m)}')
        for v in vals: a.I(f'v_sub_f32 {vr(v)}, {vr(v)}, {vr(m)}')
        for k in range(4): a.I(f'v_sub_f32 {vr(negm(T) + k)}, {vr(negm(T) + k)}, {vr(m)}')
        lb = a.newlabel('k1_first'); lb2 = a.newlabel('k1_rdone')
        if canfirst:
            a.I(f's_cmp_lg_u32 {sr(scl)}, 0')
            a.I(f's_cbranch_scc1 {lb}')
        a.I(f'v_exp_f32 {vr(tmp)}, -{vr(m)}')
        if T == 2:
            for k in range(36): a.I(f'v_mul_f32 {vr(o_(T, 8) + k)}, {vr(o_(T, 8) + k)}, {vr(tmp)}')
        else:
            a.I(f's_mov_b32 {sr(sRS)}, 1')
        if canfirst: a.label(lb)
    for jl in range(2):
        a.label(f'k1_rare{jl}')
        for T in range(2): rare(T, [s_(T, jl) + k for k in range(8)], sCL, jl == 0)
        a.I(f's_mov_b32 {sr(sTHR)}, {THRV}')
        a.I(f's_mov_b32 {sr(sCL)}, 0')
        a.I(f's_setpc_b64 {sr(sLINK, 2)}')
    a.label('k1_rare8')
    rare(2, [s_(2, 0) + k for k in range(8)], sCL8, True)
    a.I(f's_mov_b32 {sr(sTHR8)}, {THRV}')
    a.I(f's_mov_b32 {sr(sCL8)}, 0')
    a.I(f's_setpc_b64 {sr(sLINK, 2)}')
    a.label('k1_rescale')
    for T in range(2):
        for k in range(36): a.I(f'v_mul_f32 {vr(o_(T, 8) + k)}, {vr(o_(T, 8) + k)}, {vr(FREG[T])}')
    a.I(f's_mov_b32 {sr(sRS)}, 0')
    a.I(f's_setpc_b64 {sr(sLINK, 2)}')
    a.auto = True

    a.label('k1_finH')
    final(True)
    a.I('s_branch k1_epi')
    a.label('k1_finL')
    final(False)
    a.label('k1_epi')
    a.lg = []
    st.cyc()
    e0, e1, e2, e3, e4 = 3, 4, 5, 6, 8
    NM8 = negm(2)
    a.I(f'v_lshlrev_b32 {vr(e0)}, 4, v0')
    a.I(f's_lshl_b32 s5, {sr(sHH)}, 15')
    a.I('s_add_u32 s5, s5, 49152')
    a.I(f's_lshl_b32 s4, {sr(sR)}, 11')
    a.I('s_add_u32 s3, s4, s5')
    a.I(f'v_add_u32 {vr(e1)}, s3, {vr(e0)}')
    for d in range(8): a.I(f'ds_write_b128 {vr(e1)}, {vr(o_(2, d), 4)} offset:{(d >> 1) * 8192 + (d & 1) * 1024}')
    a.I(f's_mul_i32 s3, {sr(sHH)}, {HB1}')
    a.I(f'v_lshl_add_u32 {vr(e2)}, v0, 3, s3')
    a.I(f's_lshl_b32 s3, {sr(sR)}, 9')
    a.I(f'v_add_u32 {vr(e1)}, s3, {vr(e2)}')
    a.I(f'v_mov_b32 {vr(NM8 + 1)}, {vr(o_(2, 8))}')
    a.I(f'ds_write_b64 {vr(e1)}, {vr(NM8, 2)}')
    if OPT['s2']:
        a.I(f's_cmp_lg_u32 {sr(sWAVE)}, 0')
        a.I('s_cbranch_scc1 k1_noflag')
        a.I(f's_add_u32 {sr(sO)}, s16, {48 << 20}')
        a.I(f's_addc_u32 {sr(sO + 1)}, s17, 0')
        a.I(f's_mov_b32 {sr(sO + 2)}, 65536')
        a.I(f's_mov_b32 {sr(sO + 3)}, 0x20000')
        a.I('s_lshl_b32 s3, s2, 8')
        a.I(f'v_lshlrev_b32 v10, 2, v0')
        a.I(f'v_mov_b32 v11, 0')
        a.I(f'buffer_store_dword v11, v10, {sr(sO, 4)}, s3 offen{NT("ont")}')
        a.label('k1_noflag')
    a.I(f's_lshl_b32 s3, {sr(sBLK)}, 3')
    a.I(f's_add_u32 s3, s3, {sr(sB)}')
    a.I(f's_mul_i32 s3, s3, {O_SLICE}')
    a.I(f's_mul_i32 s6, {sr(sHP)}, 73728')
    a.I('s_add_u32 s3, s3, s6')
    a.I(f's_add_u32 {sr(sO)}, s16, s3')
    a.I(f's_addc_u32 {sr(sO + 1)}, s17, 0')
    a.I(f's_mov_b32 {sr(sO + 2)}, 73728')
    a.I(f's_mov_b32 {sr(sO + 3)}, 0x20000')
    a.I(f's_mul_i32 s3, {sr(sHH)}, 36864')
    a.I(f'v_add_u32 {vr(e3)}, s4, {vr(e0)}')
    def fin(src, scale2, voff, soff, imm):
        for k in range(4): a.I(f'v_pk_mul_f32 {vr(src + 2 * k, 2)}, {vr(src + 2 * k, 2)}, {vr(scale2, 2)}')
        for k in range(4): a.I(f'v_cvt_pk_bf16_f32 {vr(src + k)}, {vr(src + 2 * k)}, {vr(src + 2 * k + 1)}')
        a.I(f'buffer_store_dwordx4 {vr(src, 4)}, {vr(voff)}, {sr(sO, 4)}, {soff} offen offset:{imm}{NT("ont")}')
    for T in range(2):
        for k in range(2): a.I(f'v_rcp_f32 {vr(o_(T, 8) + k)}, {vr(o_(T, 8) + k)}')
    a.I('s_mov_b32 s6, s3')
    for P in range(4):
        for T in range(2): fin(o_(T, 2 * P), o_(T, 8), e3, 's6', T * 1024)
        if P < 3: a.I('s_add_u32 s6, s6, 9216')
    a.I(f's_lshl_b32 s4, {sr(sR)}, 13')
    a.I('s_add_u32 s4, s4, s5')
    a.I(f'v_add_u32 {vr(e1)}, s4, {vr(e0)}')
    a.I(f's_mul_i32 s6, {sr(sR)}, 9216')
    a.I('s_add_u32 s6, s6, s3')
    a.I(f'v_add_u32 {vr(e3)}, 8192, {vr(e0)}')
    a.I('s_waitcnt lgkmcnt(0)')
    a.I('s_barrier')
    R8 = S
    for sl in range(4): a.I(f'ds_read_b64 {vr(R8 + 32 + 2 * sl, 2)}, {vr(e2)} offset:{sl * 512}')
    for k in range(8): a.I(f'ds_read_b128 {vr(R8 + 4 * k, 4)}, {vr(e1)} offset:{k * 1024}')
    nm = [R8 + 32 + 2 * i for i in range(4)]
    ll = [R8 + 33 + 2 * i for i in range(4)]
    a.I(f'v_min3_f32 {vr(e0)}, {vr(nm[0])}, {vr(nm[1])}, {vr(nm[2])}')
    a.I(f'v_min_f32 {vr(e0)}, {vr(e0)}, {vr(nm[3])}')
    for i in range(4): a.I(f'v_sub_f32 {vr(nm[i])}, {vr(e0)}, {vr(nm[i])}')
    for i in range(4): a.I(f'v_exp_f32 {vr(nm[i])}, {vr(nm[i])}')
    a.I(f'v_mul_f32 {vr(e0)}, {vr(ll[0])}, {vr(nm[0])}')
    for i in range(1, 4): a.I(f'v_fmac_f32 {vr(e0)}, {vr(ll[i])}, {vr(nm[i])}')
    a.I(f'v_rcp_f32 {vr(e4)}, {vr(e0)}')
    a.I(f'v_rcp_f32 {vr(e4 + 1)}, {vr(e0)}')
    for k in range(8): a.I(f'v_mul_f32 {vr(R8 + k)}, {vr(R8 + k)}, {vr(nm[0])}')
    for i in range(1, 4):
        for k in range(8): a.I(f'v_fmac_f32 {vr(R8 + k)}, {vr(R8 + 8 * i + k)}, {vr(nm[i])}')
    fin(R8, e4, e3, 's6', 0)
    if OPT['wopf'] == 2:
        a.I(f'v_lshlrev_b32 {vr(vD)}, 6, v0')
        a.I(f'buffer_load_dword v1, {vr(vD)}, {sr(sX, 4)}, {sr(sOX)} offen')
        a.I(f's_add_u32 {sr(sOX)}, {sr(sOX)}, 4096')
        a.I(f'buffer_load_dword v2, {vr(vD)}, {sr(sX, 4)}, {sr(sOX)} offen')
    if OPT['stamp'] == 3: st.n = 12
    else: st.cyc(); st.real()
    st.flush(16, sWAVE, sK, 10)
    a.label('k1_end')
    a.raw('s_endpgm')
    return a

def gen_k2():
    a = Asm()
    st = Stamper(a, 1)
    sO, sW, sD = 20, 24, 28
    sWAVE, sKQ, sMH, sBLK, sB, sNT = 40, 41, 42, 43, 44, 45
    sM0, sOW0, sOW1, sOB0, sOB1, sCNT = 46, 47, 48, 49, 50, 51
    sST, sROT = 52, 53
    vA = 1
    vDW, vB, vL16 = 5, 6, 7
    t0, t1, t2, t3, g = 8, 9, 10, 11, 12
    ACC, FA, BF = 16, 96, 128
    def acc(i, nt): return ACC + (i * 4 + nt) * 4
    a.raw('s_cmp_ge_u32 s2, 256')
    a.raw('s_cbranch_scc1 k2_end')
    st.real(); st.cyc()
    a.I('s_and_b32 s3, s2, 7')
    a.I('s_lshr_b32 s4, s2, 3')
    a.I(f's_lshr_b32 {sr(sBLK)}, s3, 2')
    a.I(f's_mul_i32 s5, {sr(sBLK)}, 40')
    a.I('s_add_u32 s5, s5, 32')
    a.I('s_load_dwordx2 s[8:9], s[0:1], s5')
    a.I('s_load_dwordx2 s[10:11], s[0:1], 80')
    a.I('s_load_dwordx2 s[16:17], s[0:1], 96')
    a.I('s_bfe_u32 s5, s3, 0x10001')
    a.I('s_lshl_b32 s5, s5, 2')
    a.I('s_and_b32 s6, s4, 3')
    a.I(f's_add_u32 {sr(sB)}, s5, s6')
    a.I('s_and_b32 s5, s3, 1')
    a.I('s_lshl_b32 s5, s5, 3')
    a.I('s_lshr_b32 s6, s4, 2')
    a.I(f's_add_u32 {sr(sNT)}, s5, s6')
    a.I(f'v_lshrrev_b32 {vr(t0)}, 6, v0')
    a.I(f'v_readfirstlane_b32 {sr(sWAVE)}, {vr(t0)} ; WAVEID')
    a.I('v_and_b32 v0, 63, v0')
    a.I(f's_and_b32 {sr(sKQ)}, {sr(sWAVE)}, 3')
    a.I(f's_lshr_b32 {sr(sMH)}, {sr(sWAVE)}, 2')
    a.I(f'v_lshrrev_b32 {vr(g)}, 4, v0')
    a.I(f'v_lshlrev_b32 {vr(vL16)}, 4, v0')
    a.I(f'v_bfe_u32 {vr(t0)}, v0, 1, 2')
    a.I(f'v_xor_b32 {vr(t0)}, {vr(t0)}, {vr(g)}')
    a.I(f'v_lshlrev_b32 {vr(t0)}, 5, {vr(t0)}')
    a.I(f'v_and_b32 {vr(t1)}, 1, v0')
    a.I(f'v_lshl_add_u32 {vr(t0)}, {vr(t1)}, 4, {vr(t0)}')
    a.I(f's_lshl_b32 s3, {sr(sKQ)}, 1')
    a.I(f's_add_u32 s3, s3, {sr(sMH)}')
    a.I(f's_lshl_b32 {sr(sM0)}, s3, 11')
    a.I('s_lshl_b32 s3, s3, 4')
    a.I(f'v_lshrrev_b32 {vr(t1)}, 3, v0')
    a.I(f'v_add_u32 {vr(t1)}, s3, {vr(t1)}')
    a.I(f'v_lshl_add_u32 {vr(vDW)}, {vr(t1)}, 11, {vr(t0)}')
    a.I(f's_mul_i32 s3, {sr(sKQ)}, 9216')
    a.I(f's_mul_i32 s4, {sr(sMH)}, 5120')
    a.I('s_add_u32 s3, s3, s4')
    a.I(f'v_add_u32 {vr(vB)}, s3, {vr(vL16)}')
    a.I(f's_mov_b32 {sr(sST)}, 0')
    a.I(f's_add_u32 {sr(sROT)}, {sr(sB)}, {sr(sNT)}')
    a.I(f'v_lshrrev_b32 {vr(t0)}, 2, v0')
    a.I(f'v_lshlrev_b32 {vr(t1)}, 7, {vr(t0)}')
    a.I(f'v_and_b32 {vr(t2)}, 3, v0')
    a.I(f'v_lshl_add_u32 {vr(t1)}, {vr(t2)}, 3, {vr(t1)}')
    a.I(f's_lshl_b32 s3, {sr(sKQ)}, 12')
    a.I(f'v_add_u32 {vr(t1)}, s3, {vr(t1)}')
    a.I(f'v_bfe_u32 {vr(t0)}, v0, 3, 2')
    for j in range(4):
        a.I(f's_add_u32 s4, {sr(sKQ)}, {j}')
        a.I('s_and_b32 s4, s4, 3')
        a.I(f'v_xor_b32 {vr(t2)}, s4, {vr(t0)}')
        a.I(f'v_lshl_add_u32 {vr(vA + j)}, {vr(t2)}, 5, {vr(t1)}')
    a.I('s_waitcnt lgkmcnt(0)')
    a.I(f's_lshl_b32 s3, {sr(sBLK)}, 3')
    a.I(f's_add_u32 s3, s3, {sr(sB)}')
    a.I(f's_mul_i32 s3, s3, {O_SLICE}')
    a.I(f's_add_u32 {sr(sO)}, s16, s3')
    a.I(f's_addc_u32 {sr(sO + 1)}, s17, 0')
    a.I(f's_mov_b32 {sr(sO + 2)}, {O_SLICE}')
    a.I(f's_mov_b32 {sr(sO + 3)}, 0x20000')
    a.I(f's_lshl_b32 s3, {sr(sNT)}, 7')
    a.I(f's_add_u32 {sr(sW)}, s8, s3')
    a.I(f's_addc_u32 {sr(sW + 1)}, s9, 0')
    a.I(f's_sub_u32 {sr(sW + 2)}, 8388608, s3')
    a.I(f's_mov_b32 {sr(sW + 3)}, 0x20000')
    a.I(f's_mul_i32 s3, {sr(sB)}, {144 * 4096}')
    a.I(f's_add_u32 {sr(sD)}, s10, s3')
    a.I(f's_addc_u32 {sr(sD + 1)}, s11, 0')
    a.I(f's_mov_b32 {sr(sD + 2)}, {144 * 4096}')
    a.I(f's_mov_b32 {sr(sD + 3)}, 0x20000')
    if OPT.get('pt2'):
        a.I(f's_lshl_b32 s3, {sr(sWAVE)}, 6')
        a.I(f'v_add_u32 {vr(t3)}, s3, v0')
        a.I(f'v_lshlrev_b32 {vr(t3)}, {OPT["pt2"]}, {vr(t3)}')
        a.I(f'buffer_load_dword v13, {vr(t3)}, {sr(sW, 4)}, 0 offen')
        a.I(f'buffer_load_dword v14, {vr(t3)}, {sr(sO, 4)}, 0 offen')
    a.I(f's_cmp_eq_u32 {sr(sMH)}, 1')
    a.I('s_cbranch_scc1 k2_m1')

    def wdma(slot):
        R = OPT['rot2']
        return [[f's_add_u32 {sr(sOB0)}, {sr(sST)}, {sr(sROT)}',
                 f's_and_b32 {sr(sOB0)}, {sr(sOB0)}, {R}',
                 f's_and_b32 {sr(sOW0)}, {sr(sST)}, {63 & ~R}',
                 f's_or_b32 {sr(sOB0)}, {sr(sOB0)}, {sr(sOW0)}',
                 f's_add_u32 m0, {sr(sM0)}, {slot * 16384}',
                 f's_lshl_b32 {sr(sOW0)}, {sr(sOB0)}, 18',
                 f'buffer_load_dwordx4 {vr(vDW)}, {sr(sW, 4)}, {sr(sOW0)} offen{NT("wont")} lds',
                 f's_add_u32 {sr(sOW0)}, {sr(sOW0)}, {16384 - 1024}'],
                [f'buffer_load_dwordx4 {vr(vDW)}, {sr(sW, 4)}, {sr(sOW0)} offen offset:1024{NT("wont")} lds',
                 f's_mul_i32 {sr(sOB0)}, {sr(sOB0)}, 36864',
                 f's_add_u32 {sr(sST)}, {sr(sST)}, 1',
                 f's_add_u32 {sr(sOB1)}, {sr(sOB0)}, 4096']]
    def bload(slot, i, nT):
        return [f'buffer_load_dwordx4 {vr(BF + slot * 20 + 4 * i, 4)}, {vr(vB)}, {sr(sO, 4)}, {sr(sOB0 if i < 4 else sOB1)} offen offset:{(i & 3) * 1024}{NT("oldnt")}']
    def areads(slot, F):
        return [f'ds_read_b64_tr_b16 {vr(F + 4 * j + 2 * h, 2)}, {vr(vA + j)} offset:{slot * 16384 + h * 2048}' for j in range(4) for h in range(2)]
    def body(nT, tag):
        a.lg = []
        for s in range(4):
            interleave(a, [], wdma(s))
            for i in range(nT): a.many(bload(s, i, nT))
            if OPT['ord'] and s < 3: a.I('s_barrier')
        for i in range(0, 16 * nT, 2): a.I(f'v_mov_b64 {vr(ACC + i, 2)}, 0')
        a.I(f's_waitcnt vmcnt({nT + 3 * (nT + 2)})')
        a.I('s_barrier')
        st0 = st.n
        st.cyc()
        a.many(areads(0, FA))
        a.I(f's_mov_b32 {sr(sCNT)}, 0')
        a.label(f'k2_loop_{tag}')
        for s in range(4):
            F, Fn = FA + 16 * (s & 1), FA + 16 * ((s + 1) & 1)
            a.I(f's_waitcnt vmcnt({nT + 2 * (nT + 2)}) lgkmcnt(0)')
            a.I('s_barrier')
            fill = wdma(s) + areads((s + 1) & 3, Fn)
            for i in range(nT):
                for j in range(4):
                    a.I(f'v_mfma_f32_16x16x32_bf16 {vr(acc(i, j), 4)}, {vr(F + 4 * j, 4)}, {vr(BF + s * 20 + 4 * i, 4)}, {vr(acc(i, j), 4)}')
                    if j < 3 and fill:
                        x = fill.pop(0)
                        a.many(x if isinstance(x, list) else [x])
                a.many(bload(s, i, nT))
            assert not fill
        a.I(f's_add_u32 {sr(sCNT)}, {sr(sCNT)}, 1')
        a.I(f's_cmp_lt_u32 {sr(sCNT)}, 8')
        a.I(f's_cbranch_scc1 k2_loop_{tag}')
        st.cyc()
        a.I('s_waitcnt vmcnt(0) lgkmcnt(0)')
        a.I('s_barrier')
        a.I(f's_mul_i32 s5, {sr(sMH)}, 61440')
        for jl in range(1, 4):
            a.I(f's_add_u32 s4, {sr(sKQ)}, {jl}')
            a.I('s_and_b32 s4, s4, 3')
            a.I('s_mul_i32 s4, s4, 15360')
            a.I('s_add_u32 s4, s4, s5')
            a.I(f'v_add_u32 {vr(t0)}, s4, {vr(vL16)}')
            for i in range(nT): a.I(f'ds_write_b128 {vr(t0)}, {vr(acc(i, jl), 4)} offset:{(jl - 1) * 5120 + i * 1024}')
        a.I(f's_mul_i32 s4, {sr(sKQ)}, 15360')
        a.I('s_add_u32 s4, s4, s5')
        a.I(f'v_add_u32 {vr(t0)}, s4, {vr(vL16)}')
        a.I(f'v_and_b32 {vr(t1)}, 15, v0')
        a.I(f'v_lshlrev_b32 {vr(t1)}, 12, {vr(t1)}')
        a.I(f'v_lshl_add_u32 {vr(t1)}, {vr(g)}, 3, {vr(t1)}')
        a.I(f's_lshl_b32 s3, {sr(sBLK)}, 11')
        a.I(f's_lshl_b32 s4, {sr(sNT)}, 7')
        a.I('s_add_u32 s3, s3, s4')
        a.I(f's_lshl_b32 s4, {sr(sKQ)}, 5')
        a.I('s_add_u32 s3, s3, s4')
        a.I(f's_mul_i32 s4, {sr(sMH)}, {5 * 65536}')
        a.I('s_add_u32 s3, s3, s4')
        a.I('s_waitcnt lgkmcnt(0)')
        a.I('s_barrier')
        for i in range(nT):
            for sl in range(3): a.I(f'ds_read_b128 {vr(BF + (i * 3 + sl) * 4, 4)}, {vr(t0)} offset:{sl * 5120 + i * 1024}')
            if i == 3: a.I('s_waitcnt lgkmcnt(6)')
        for i in range(nT):
            for sl in range(3):
                for k in range(4): a.I(f'v_add_f32 {vr(acc(i, 0) + k)}, {vr(acc(i, 0) + k)}, {vr(BF + (i * 3 + sl) * 4 + k)}')
            for k in range(2): a.I(f'v_cvt_pk_bf16_f32 {vr(acc(i, 0) + k)}, {vr(acc(i, 0) + 2 * k)}, {vr(acc(i, 0) + 2 * k + 1)}')
            a.I(f'buffer_store_dwordx2 {vr(acc(i, 0), 2)}, {vr(t1)}, {sr(sD, 4)}, s3 offen')
            a.I('s_add_u32 s3, s3, 65536')
        st.cyc(); st.real()
        st.flush(16, sWAVE, sW, t2)
        st.n = st0
    body(5, 'a')
    a.I('s_branch k2_end')
    a.label('k2_m1')
    body(4, 'b')
    a.label('k2_end')
    a.raw('s_endpgm')
    return a

EXCH_OFF = 32 << 20
FLAG_OFF = 48 << 20
def gen_k2s():
    a = Asm()
    st = Stamper(a, 1)
    MF = 'v_mfma_f32_16x16x32_bf16'
    sO, sW, sD, sE, sF = 20, 24, 28, 32, 36
    sWAVE, sR, sLD, sBLK, sB, sN8, sKH = 40, 41, 42, 43, 44, 45, 46
    sM0W, sM0X, sOW, sOX, sSL, sCNT, sT0, sST, sROT, sH, sNH, sKS = 47, 48, 49, 50, 51, 52, 53, 54, 55, 56, 57, 58
    sLINK = 6
    vWp, vX, vDW, vL16 = 1, 5, 6, 7
    g, n, t0, t1, t2 = 12, 13, 14, 15, 16
    ACC, XF, WF = 112, 76, 44
    XB = 65536
    def acc(t, j): return ACC + (t * 4 + j) * 4
    a.raw('s_cmp_ge_u32 s2, 256')
    a.raw('s_cbranch_scc1 k2_end')
    st.real(); st.cyc()
    a.I('s_and_b32 s3, s2, 7')
    a.I('s_lshr_b32 s4, s2, 3')
    a.I(f's_lshr_b32 {sr(sBLK)}, s3, 2')
    a.I(f's_mul_i32 s5, {sr(sBLK)}, 40')
    a.I('s_add_u32 s5, s5, 32')
    a.I('s_load_dwordx2 s[8:9], s[0:1], s5')
    a.I('s_load_dwordx2 s[10:11], s[0:1], 80')
    a.I('s_load_dwordx2 s[16:17], s[0:1], 96')
    a.I(f's_and_b32 {sr(sKH)}, s3, 1')
    a.I('s_and_b32 s5, s3, 2')
    a.I('s_lshl_b32 s5, s5, 1')
    a.I('s_and_b32 s6, s4, 3')
    a.I(f's_add_u32 {sr(sB)}, s5, s6')
    a.I(f's_lshr_b32 {sr(sN8)}, s4, 2')
    a.I(f's_add_u32 {sr(sROT)}, {sr(sB)}, {sr(sN8)}')
    a.I(f'v_lshrrev_b32 {vr(t0)}, 6, v0')
    a.I(f'v_readfirstlane_b32 {sr(sWAVE)}, {vr(t0)} ; WAVEID')
    a.I('v_and_b32 v0, 63, v0')
    a.I(f's_and_b32 {sr(sR)}, {sr(sWAVE)}, 3')
    a.I(f's_lshr_b32 {sr(sLD)}, {sr(sWAVE)}, 2')
    a.I(f's_and_b32 {sr(sNH)}, {sr(sR)}, 1')
    a.I(f's_lshr_b32 {sr(sKS)}, {sr(sR)}, 1')
    a.I(f's_xor_b32 {sr(sH)}, {sr(sNH)}, {sr(sKS)}')
    a.I(f's_lshl_b32 {sr(sH)}, {sr(sH)}, 1')
    a.I(f's_or_b32 {sr(sH)}, {sr(sH)}, {sr(sKS)}')
    a.I(f'v_lshlrev_b32 {vr(vL16)}, 4, v0')
    a.I(f'v_and_b32 {vr(t0)}, 7, v0')
    a.I(f'v_xor_b32 {vr(t0)}, {sr(sH)}, {vr(t0)}')
    a.I(f'v_bfe_u32 {vr(t1)}, v0, 4, 1')
    a.I(f'v_lshlrev_b32 {vr(t1)}, 2, {vr(t1)}')
    a.I(f'v_xor_b32 {vr(t0)}, {vr(t0)}, {vr(t1)}')
    a.I(f'v_lshlrev_b32 {vr(t0)}, 4, {vr(t0)}')
    a.I(f'v_lshrrev_b32 {vr(t1)}, 5, v0')
    a.I(f'v_lshl_add_u32 {vr(t0)}, {vr(t1)}, 7, {vr(t0)}')
    a.I(f'v_bfe_u32 {vr(t1)}, v0, 3, 2')
    a.I(f's_lshl_b32 s3, {sr(sR)}, 2')
    a.I(f'v_add_u32 {vr(t1)}, s3, {vr(t1)}')
    a.I(f'v_lshl_add_u32 {vr(vDW)}, {vr(t1)}, 11, {vr(t0)}')
    a.I(f's_lshl_b32 {sr(sM0W)}, {sr(sR)}, 12')
    a.I(f's_lshl_b32 {sr(sM0X)}, {sr(sR)}, 10')
    a.I(f's_mov_b32 {sr(sST)}, 0')
    a.I('s_waitcnt lgkmcnt(0)')
    a.I(f's_lshl_b32 s3, {sr(sBLK)}, 3')
    a.I(f's_add_u32 s3, s3, {sr(sB)}')
    a.I('s_lshl_b32 s3, s3, 1')
    a.I(f's_add_u32 s3, s3, {sr(sKH)}')
    a.I(f's_mul_i32 s3, s3, {O_SLICE // 2}')
    a.I(f's_add_u32 {sr(sO)}, s16, s3')
    a.I(f's_addc_u32 {sr(sO + 1)}, s17, 0')
    a.I(f's_mov_b32 {sr(sO + 2)}, {O_SLICE // 2}')
    a.I(f's_mov_b32 {sr(sO + 3)}, 0x20000')
    a.I(f's_lshl_b32 s3, {sr(sN8)}, 8')
    a.I(f's_lshl_b32 s4, {sr(sKH)}, 22')
    a.I('s_add_u32 s3, s3, s4')
    a.I(f's_add_u32 {sr(sW)}, s8, s3')
    a.I(f's_addc_u32 {sr(sW + 1)}, s9, 0')
    a.I(f's_sub_u32 {sr(sW + 2)}, 8388608, s3')
    a.I(f's_mov_b32 {sr(sW + 3)}, 0x20000')
    a.I(f's_cmp_eq_u32 {sr(sLD)}, 0')
    a.I('s_cbranch_scc1 k2_comp')
    call = f's_call_b64 {sr(sLINK, 2)}, k2_stage'
    a.I(call); a.I(call)
    a.I('s_waitcnt vmcnt(8)')
    a.I('s_barrier')
    st0 = st.n
    st.cyc()
    a.I(call); a.I(call)
    a.I(f's_mov_b32 {sr(sCNT)}, 0')
    a.label('k2_lloop')
    a.I('s_waitcnt vmcnt(16)')
    a.I('s_barrier')
    a.I(call)
    a.I(f's_add_u32 {sr(sCNT)}, {sr(sCNT)}, 1')
    a.I(f's_cmp_lt_u32 {sr(sCNT)}, 28')
    a.I('s_cbranch_scc1 k2_lloop')
    for nv in (16, 8, 0, 0):
        a.I(f's_waitcnt vmcnt({nv})')
        a.I('s_barrier')
    st.cyc(); st.cyc(); st.cyc(); st.cyc(); st.real()
    st.flush(16, sWAVE, sW, t1)
    a.I('s_endpgm')
    a.label('k2_stage')
    R = OPT['rot2']
    a.many([f's_add_u32 {sr(sOX)}, {sr(sST)}, {sr(sROT)}',
            f's_and_b32 {sr(sOX)}, {sr(sOX)}, {R}',
            f's_and_b32 {sr(sOW)}, {sr(sST)}, {31 & ~R}',
            f's_or_b32 {sr(sOX)}, {sr(sOX)}, {sr(sOW)}',
            f's_and_b32 {sr(sSL)}, {sr(sST)}, 3',
            f's_lshl_b32 {sr(sT0)}, {sr(sSL)}, 14',
            f's_add_u32 m0, {sr(sT0)}, {sr(sM0W)}',
            f's_lshl_b32 {sr(sOW)}, {sr(sOX)}, 17',
            f's_mul_i32 {sr(sOX)}, {sr(sOX)}, 18432',
            f's_mul_i32 {sr(sT0)}, {sr(sSL)}, 18432',
            f's_add_u32 {sr(sOX)}, {sr(sOX)}, {sr(sM0X)}',
            f's_add_u32 {sr(sT0)}, {sr(sT0)}, {sr(sM0X)}',
            f's_add_u32 {sr(sST)}, {sr(sST)}, 1'])
    for tq in range(4):
        a.I(f'buffer_load_dwordx4 {vr(vDW)}, {sr(sW, 4)}, {sr(sOW)} offen offset:{tq * 1024}{NT("wont")} lds')
        if tq < 3: a.I(f's_add_u32 {sr(sOW)}, {sr(sOW)}, {32768 - 1024}')
    for i in range(5):
        if i == 4:
            a.I(f's_cmp_ge_u32 {sr(sR)}, 2')
            a.I('s_cbranch_scc1 k2_skipx')
        a.I(f's_add_u32 m0, {sr(sT0)}, {XB + i * 4096}')
        a.I(f'buffer_load_dwordx4 {vr(vL16)}, {sr(sO, 4)}, {sr(sOX)} offen{NT("oldnt")} lds')
        if i < 4: a.I(f's_add_u32 {sr(sOX)}, {sr(sOX)}, 4096')
    a.label('k2_skipx')
    a.I(f's_setpc_b64 {sr(sLINK, 2)}')
    a.label('k2_comp')
    st.n = st0
    a.lg = []
    a.I(f'v_lshrrev_b32 {vr(g)}, 4, v0')
    a.I(f'v_lshrrev_b32 {vr(t1)}, 1, {vr(g)}')
    a.I(f'v_xor_b32 {vr(t0)}, {vr(g)}, {vr(t1)}')
    a.I(f'v_and_b32 {vr(t0)}, 1, {vr(t0)}')
    a.I(f'v_lshl_or_b32 {vr(t0)}, {vr(t0)}, 1, {vr(t1)}')
    a.I(f'v_bfe_u32 {vr(t1)}, v0, 1, 1')
    a.I(f'v_xor_b32 {vr(t0)}, {vr(t0)}, {vr(t1)}')
    a.I(f'v_lshlrev_b32 {vr(t0)}, 4, {vr(t0)}')
    a.I(f'v_lshl_add_u32 {vr(t0)}, {vr(g)}, 12, {vr(t0)}')
    a.I(f'v_bfe_u32 {vr(t1)}, v0, 2, 2')
    a.I(f'v_lshl_add_u32 {vr(t0)}, {vr(t1)}, 7, {vr(t0)}')
    a.I(f'v_bfe_u32 {vr(t1)}, v0, 3, 1')
    a.I(f'v_xor_b32 {vr(t1)}, {sr(sKS)}, {vr(t1)}')
    a.I(f'v_lshl_add_u32 {vr(t0)}, {vr(t1)}, 6, {vr(t0)}')
    a.I(f'v_and_b32 {vr(t1)}, 1, v0')
    a.I(f'v_lshl_add_u32 {vr(t0)}, {vr(t1)}, 3, {vr(t0)}')
    a.I(f's_lshl_b32 s3, {sr(sNH)}, 9')
    a.I(f's_lshl_b32 s4, {sr(sKS)}, 11')
    a.I('s_add_u32 s3, s3, s4')
    a.I(f'v_add_u32 {vr(vWp)}, s3, {vr(t0)}')
    for j in range(1, 4): a.I(f'v_xor_b32 {vr(vWp + j)}, {32 * j}, {vr(vWp)}')
    a.I(f's_mul_i32 s3, {sr(sKS)}, 9216')
    a.I(f's_add_u32 s3, s3, {XB}')
    a.I(f'v_add_u32 {vr(vX)}, s3, {vr(vL16)}')
    for i in range(0, 144, 2): a.I(f'v_mov_b64 {vr(ACC + i, 2)}, 0')
    a.I(f's_add_u32 {sr(sE)}, s16, {EXCH_OFF}')
    a.I(f's_addc_u32 {sr(sE + 1)}, s17, 0')
    a.I(f's_mov_b32 {sr(sE + 2)}, {256 * 36864}')
    a.I(f's_mov_b32 {sr(sE + 3)}, 0x20000')
    a.I(f's_add_u32 {sr(sF)}, s16, {FLAG_OFF}')
    a.I(f's_addc_u32 {sr(sF + 1)}, s17, 0')
    a.I(f's_mov_b32 {sr(sF + 2)}, 65536')
    a.I(f's_mov_b32 {sr(sF + 3)}, 0x20000')
    a.I(f's_mul_i32 s3, {sr(sB)}, {144 * 4096}')
    a.I(f's_add_u32 {sr(sD)}, s10, s3')
    a.I(f's_addc_u32 {sr(sD + 1)}, s11, 0')
    a.I(f's_mov_b32 {sr(sD + 2)}, {144 * 4096}')
    a.I(f's_mov_b32 {sr(sD + 3)}, 0x20000')
    def xread(t, slot): return f'ds_read_b128 {vr(XF + 4 * t, 4)}, {vr(vX)} offset:{slot * 18432 + t * 1024}'
    def wreads(W, slot):
        return [f'ds_read_b64_tr_b16 {vr(W + 4 * j + 2 * h, 2)}, {vr(vWp + j)} offset:{slot * 16384 + h * 1024}' for j in range(4) for h in range(2)]
    GT = OPT['gate']
    def kstep(Wc, Wn, nslot):
        wr = wreads(Wn, nslot)
        for t in range(9):
            for j in range(4):
                a.I(f'{MF} {vr(acc(t, j), 4)}, {vr(Wc + 4 * j, 4)}, {vr(XF + 4 * t, 4)}, {vr(acc(t, j), 4)}')
                if t >= GT and j in (0, 2) and wr: a.I(wr.pop(0))
            if t == GT - 1:
                a.I('s_waitcnt lgkmcnt(0)')
                a.I('s_barrier')
                for tt in range(GT): a.I(xread(tt, nslot))
            elif t >= GT: a.I(xread(t, nslot))
        assert not wr
    W0, W1 = WF, WF + 16
    if OPT['cprio']: a.I(f's_setprio {OPT["cprio"]}')
    a.I('s_barrier')
    st.cyc()
    a.many(wreads(W0, 0))
    for t in range(9): a.I(xread(t, 0))
    a.I(f's_mov_b32 {sr(sCNT)}, 0')
    a.I('s_waitcnt lgkmcnt(0)')
    save = (a.ins, a.lg); a.ins = []; a.lg = []
    kstep(W1, W0, 0); lg0 = [set(x) for x in a.lg]
    a.ins, a.lg = save
    a.lg = [set(x) for x in lg0]
    a.label('k2_cloop')
    for i in range(4): kstep((W0, W1)[i & 1], (W1, W0)[i & 1], (i + 1) & 3)
    assert [set(x) for x in a.lg] == lg0
    a.I(f's_add_u32 {sr(sCNT)}, {sr(sCNT)}, 1')
    a.I(f's_cmp_lt_u32 {sr(sCNT)}, 8')
    a.I('s_cbranch_scc1 k2_cloop')
    st.cyc()
    TMP = 40
    a.I(f's_mul_i32 s3, {sr(sR)}, 18432')
    a.I(f'v_add_u32 {vr(t0)}, s3, {vr(vL16)}')
    a.I(f's_xor_b32 s4, {sr(sR)}, 2')
    a.I('s_mul_i32 s4, s4, 18432')
    a.I(f'v_add_u32 {vr(t1)}, s4, {vr(vL16)}')
    a.I('s_waitcnt lgkmcnt(0)')
    for t in range(9):
        for j in range(2): a.I(f'ds_write_b128 {vr(t0)}, {vr(acc(t, 2 + j), 4)} offset:{(t * 2 + j) * 1024}')
    a.I(f's_cmp_eq_u32 {sr(sNH)}, {sr(sKH)}')
    a.I('s_cselect_b32 s5, 1, 0')
    a.I('s_xor_b32 s3, s2, s5')
    a.I('s_lshl_b32 s3, s3, 1')
    a.I(f's_add_u32 s3, s3, {sr(sKS)}')
    a.I(f's_lshl_b32 {sr(sT0)}, s3, 7')
    a.I(f's_mul_i32 {sr(sOX)}, s3, 18432')
    a.I('s_waitcnt lgkmcnt(0)')
    a.I('s_barrier')
    for k in range(18):
        a.I(f'ds_read_b128 {vr(TMP + 4 * k, 4)}, {vr(t1)} offset:{k * 1024}')
        if k == 13: a.I('s_waitcnt lgkmcnt(8)')
    a.I('s_cmp_eq_u32 s5, 1')
    a.I('s_cbranch_scc1 k2_keep')
    lgs = [set(x) for x in a.lg]
    def addpk(t, j, src):
        for k in range(2): a.I(f'v_pk_add_f32 {vr(acc(t, j) + 2 * k, 2)}, {vr(acc(t, j) + 2 * k, 2)}, {vr(src + 2 * k, 2)}')
    XP = NT('xpol')
    for k in range(18):
        t, j = k >> 1, k & 1
        addpk(t, j, TMP + 4 * k)
        a.I(f'buffer_store_dwordx4 {vr(acc(t, j), 4)}, {vr(vL16)}, {sr(sE, 4)}, {sr(sOX)} offen offset:{(k & 3) * 1024}{XP}')
        if k & 3 == 3: a.I(f's_add_u32 {sr(sOX)}, {sr(sOX)}, 4096')
    stn = st.n
    st.cyc()
    a.I(f'v_mov_b32 {vr(t0)}, 0')
    a.I(f'v_mov_b32 {vr(t1)}, 1')
    a.I('s_mov_b64 exec, 1')
    a.I('s_waitcnt vmcnt(0)')
    st.cyc()
    a.I(f'buffer_store_dword {vr(t1)}, {vr(t0)}, {sr(sF, 4)}, {sr(sT0)} offen{XP}')
    a.I('s_mov_b64 exec, -1')
    st.cyc(); st.real()
    st.flush(16, sWAVE, sW, t1)
    a.I('s_endpgm')
    a.label('k2_keep')
    st.n = stn
    a.lg = lgs
    for k in range(18): addpk(k >> 1, k & 1, TMP + 4 * k)
    a.I(f'v_and_b32 {vr(t2)}, 15, v0')
    a.I(f'v_lshlrev_b32 {vr(t2)}, 12, {vr(t2)}')
    a.I(f'v_lshl_add_u32 {vr(t2)}, {vr(g)}, 4, {vr(t2)}')
    a.I(f's_lshl_b32 s3, {sr(sBLK)}, 11')
    a.I(f's_lshl_b32 s4, {sr(sN8)}, 8')
    a.I('s_add_u32 s3, s3, s4')
    a.I(f's_lshl_b32 s4, {sr(sNH)}, 7')
    a.I('s_add_u32 s3, s3, s4')
    a.I(f's_lshl_b32 s4, {sr(sKS)}, 6')
    a.I('s_add_u32 s3, s3, s4')
    a.I(f'v_mov_b32 {vr(t0)}, 0')
    a.I(f's_mov_b32 {sr(sCNT)}, 0')
    st.cyc()
    a.label('k2_poll')
    a.I(f'buffer_load_dword {vr(t1)}, {vr(t0)}, {sr(sF, 4)}, {sr(sT0)} offen{XP}')
    a.I(f's_add_u32 {sr(sCNT)}, {sr(sCNT)}, 1')
    a.I('s_waitcnt vmcnt(0)')
    a.I(f'v_cmp_eq_u32 vcc, 1, {vr(t1)}')
    a.I('s_cbranch_vccnz k2_got ; POLL')
    a.I(f's_cmp_lt_u32 {sr(sCNT)}, {OPT["pollmax"]}')
    a.I('s_cbranch_scc1 k2_poll')
    a.label('k2_got')
    st.cyc()
    for k in range(18):
        a.I(f'buffer_load_dwordx4 {vr(TMP + 4 * k, 4)}, {vr(vL16)}, {sr(sE, 4)}, {sr(sOX)} offen offset:{(k & 3) * 1024}{XP}')
        if k & 3 == 3: a.I(f's_add_u32 {sr(sOX)}, {sr(sOX)}, 4096')
    for t in range(9):
        a.I(f's_waitcnt vmcnt({16 - 2 * t + t})')
        for j in range(2): addpk(t, j, TMP + 4 * (2 * t + j))
        d = acc(t, 0)
        for k in range(4): a.I(f'v_cvt_pk_bf16_f32 {vr(d + k)}, {vr(d + 2 * k)}, {vr(d + 2 * k + 1)}')
        for mn in ('v_permlane32_swap_b32', 'v_permlane16_swap_b32'):
            for k in range(2): a.I(f'{mn} {vr(d + k)}, {vr(d + 2 + k)}')
        a.I(f'buffer_store_dwordx4 {vr(d, 4)}, {vr(t2)}, {sr(sD, 4)}, s3 offen{NT("outp")}')
        a.I('s_add_u32 s3, s3, 65536')
    st.cyc(); st.real()
    st.flush(16, sWAVE, sW, t0)
    a.label('k2_end')
    a.raw('s_endpgm')
    return a

HEADER = open(f'cdna_kernels/{NAME}.s.ref').read().split('; Override launch')[0]
def kd(name, vg, sg=102):
    return f'''.amdhsa_kernel {name}
  .amdhsa_next_free_vgpr {vg}
  .amdhsa_next_free_sgpr {sg}
  .amdhsa_accum_offset {(min(vg, 256) + 3) // 4 * 4}
  .amdhsa_group_segment_fixed_size 0
  .amdhsa_kernarg_size 104
  .amdhsa_user_sgpr_count 2
  .amdhsa_user_sgpr_kernarg_segment_ptr 1
  .amdhsa_system_sgpr_workgroup_id_x 1
.end_amdhsa_kernel
'''
def main():
    ks = [('attn_kernel', gen_k1(), 256, 163840), (('oproj_kernel', gen_k2s(), 256, 139264) if OPT['s2'] else ('oproj_kernel', gen_k2(), 208, 131072))]
    out = HEADER
    for nm, _, _, lds in ks:
        out += f'; @launch kernel={nm} grid=(256,1,1) block=(512,1,1) lds={lds}\n'
    out += '.amdgcn_target "amdgcn-amd-amdhsa--gfx950"\n.text\n'
    for nm, a, vg, lds in ks:
        if OPT.get('novm'):
            seen = False; keep = []
            for x in a.ins:
                if x.mn == 's_barrier': seen = True
                if x.label in ('k2_m1',): seen = False
                if x.label == 'k2_cloop': seen = False; OPT['_stop'] = 1
                if OPT.get('_stop'): seen = False
                if seen and x.kind == 'vmem' and 'load' in x.mn: continue
                keep.append(x)
            a.ins = keep
        if OPT.get('nokv'): a.ins = [x for x in a.ins if not (x.kind == 'vmem' and x.mn == 'buffer_load_dwordx4' and not x.lds and 'nt' in x.mods)]
        if OPT.get('nomfma'): a.ins = [x for x in a.ins if x.kind != 'mfma']
        if OPT.get('nods'): a.ins = [x for x in a.ins if not (x.kind == 'ds' and 'read' in x.mn)]
        n = a.pad_hazards(verbose=bool(OPT.get('v')))
        errs = 0; nbs = set()
        for wave in range(8):
            for pol in (lambda i, x: 'POLL' in x.text, lambda i, x: True):
              for wgid in (3, 4, 5):
                tr = a.trace(wgid, wave, pol)
                e, nb = a.verify_waits(tr, quiet=(errs > 0 or bool(OPT.get('novm')) or OPT['stamp'] == 4)); errs += e; nbs.add(nb)
        assert (len(nbs) == 1 or (nm == 'oproj_kernel' and nbs == {33, 34})) and (errs == 0 or OPT.get('novm') or OPT['stamp'] == 4), (nbs, errs)
        print(f'{nm}: {len(a.ins)} lines, nops added {n}, wait errors {errs}, barriers {nb}, trace len {len(tr)}', file=sys.stderr)
        out += f'.globl {nm}\n.p2align 8\n.type {nm},@function\n{nm}:\n' + a.text()
    out += '.section .rodata,"a"\n'
    for nm, a, vg, lds in ks:
        out += '.p2align 6\n' + kd(nm, vg)
    open(sys.argv[1], 'w').write(out)
main()
```

```python
import sys, math, struct
from asmlib import *

NAME = 'concat_heads__mha_block_cached__mha_block_cached__near_ridge'
OPT = dict(stamp=0, kvnt=1, wnt=0, xnt=0, ont=2, wont=0, oldnt=0, rot1=3, rot2=3, wopf=3, ord=1, desync=1, pre1=1, gate=2, cprio=1, tail=1, rotc=0, rhh=0, vfirst=1, hpmap=2, s2=1, fuse=1, oldf=2, cpf=1, sy=4, nimm=3, aux0=0, auxs=1, pp=0, mv=0, nwo=16, pfp=0, xpol=2, outp=0, pollmax=100000, qprio=1, rs0=10, rs1=13, stag=1, aprio=1, pS=0, pM=0, pV=0, smfirst=0)
for a in sys.argv[2:]:
    k, v = a.split('='); OPT[k] = int(v) if v.lstrip('-').isdigit() else v

def fbits(x): return '0x%08x' % struct.unpack('<I', struct.pack('<f', x))[0]
NT = lambda k: {0: '', 1: ' nt', 2: ' sc1', 3: ' sc0 sc1', 4: ' sc1 nt'}[OPT[k]]
THRV = '0x7f800000' if OPT.get('novm') else fbits(8.0)
O_SLICE = 128 * 9216
STAMP_OFF = 64 << 20
EXCH_OFF = 32 << 20
FLAG_OFF = 48 << 20

class Stamper:
    def __init__(self, a, region):
        self.a = a; self.n = 0; self.region = region
    def real(self):
        if OPT['stamp'] == 4 and self.region == 0 and self.n: return
        if OPT['stamp']:
            self.a.I(f's_memrealtime {sr(76 + 2 * self.n, 2)}'); self.n += 1
    def cyc(self):
        if OPT['stamp'] == 4 and self.region == 0:
            self.a.raw('s_waitcnt lgkmcnt(0)'); self.sh(); return
        if OPT['stamp']:
            self.a.I(f's_memtime {sr(76 + 2 * self.n, 2)}'); self.n += 1
    def sh(self):
        if OPT['stamp'] == 4 and self.region == 0:
            for i in range(13): self.a.raw(f's_mov_b32 s{80 + i}, s{81 + i}')
            self.a.raw('s_mov_b32 s93, s98')
            self.a.raw('s_memtime s[98:99]')
    def flush(self, s_ws, s_wave, srd, vt):
        if not OPT['stamp']: return
        a = self.a
        regs = [76 + 2 * i for i in range(self.n)]
        if OPT['stamp'] == 4 and self.region == 0:
            regs = [76] + list(range(81, 94)) + [98]; self.n = 0
        assert self.n <= 12
        a.I('s_waitcnt vmcnt(0) lgkmcnt(0)')
        a.I(f's_add_u32 {sr(srd)}, {sr(s_ws)}, {STAMP_OFF + self.region * (1 << 20)}')
        a.I(f's_addc_u32 {sr(srd + 1)}, {sr(s_ws + 1)}, 0')
        a.I(f's_mov_b32 {sr(srd + 2)}, {1 << 20}')
        a.I(f's_mov_b32 {sr(srd + 3)}, 0x20000')
        a.I(f's_lshl_b32 s3, s2, 3')
        a.I(f's_add_u32 s3, s3, {sr(s_wave)}')
        a.I(f's_lshl_b32 s3, s3, 6')
        a.I(f'v_mov_b32 {vr(vt)}, 0')
        a.I(f'v_mov_b32 {vr(vt + 1)}, {self.n}')
        a.I(f'buffer_store_dword {vr(vt + 1)}, {vr(vt)}, {sr(srd, 4)}, s3 offen offset:60')
        a.I('s_nop 1')
        for i in range(len(regs)):
            a.I(f'v_mov_b32 {vr(vt + 1)}, {sr(regs[i])}')
            a.I(f'buffer_store_dword {vr(vt + 1)}, {vr(vt)}, {sr(srd, 4)}, s3 offen offset:{4 * i}')
            a.I('s_nop 1')

def gen_k1():
    a = Asm()
    st = Stamper(a, 0)
    MF = 'v_mfma_f32_16x16x32_bf16'
    sX, sW, sK, sV, sO = 20, 24, 28, 32, 36
    sWAVE, sR, sHH, sBLK, sB, sHP = 40, 41, 42, 43, 44, 45
    sM0W, sM0X, sOW, sOX, sLOOSE, sNEXT, sKVI = 46, 47, 48, 49, 50, 51, 52
    sSLW, sSLX = 53, 54
    sCNT, sT0, sT1 = 55, 56, 57
    sKP, sVP, sM0A, sDK, sDV, sOV, sOK = 58, 59, 60, 62, 63, 64, 65
    sTHR, sTHR8, sCL, sCL8 = 66, 67, 68, 69
    sC = 70
    sKPo, sVPo = 72, 73
    sST, sROT = 74, 75
    sLINK = 6
    sH = 61
    sPFO, sMK, sMV = 48, 50, 51
    sJ = 47
    sRS, sRC = 46, 61
    vKa, vVa, vD = 1, 3, 7
    mx, mx8, tA, tB = 8, 9, 10, 11
    ONES, NEGM, Q, S, POOL, O = 12, 16, 28, 76, 116, 148
    ACC, XF, WF = 112, 76, 44
    XB, QB = 49152, 49152
    HB1 = 114688
    def acc(t, j): return ACC + (t * 4 + j) * 4
    def o_(T, d): return O + (T * 9 + (d + 1) % 9) * 4
    JUNK = O + 3
    def q_(T, k): return Q + (T * 4 + k) * 4
    def s_(T, j, tt=0): return S + (T * 2 + j) * 8 + tt * 4 if T < 2 else S + 32 + tt * 4
    def negm(T): return NEGM + 4 * T
    kvreg = {'K0': 160, 'V0': 192, 'K1': 76, 'V1': 108}
    g, n, t0, t1, t2, t3 = 12, 13, 14, 15, 16, 17

    def hfun(dst, src, tmp):
        a.I(f'v_lshrrev_b32 {vr(tmp)}, 1, {vr(src)}')
        a.I(f'v_xor_b32 {vr(dst)}, {vr(src)}, {vr(tmp)}')
        a.I(f'v_and_b32 {vr(dst)}, 1, {vr(dst)}')
        a.I(f'v_lshl_or_b32 {vr(dst)}, {vr(dst)}, 1, {vr(tmp)}')
    def tr_pattern(dst):
        a.I(f'v_lshrrev_b32 {vr(g)}, 4, v0')
        hfun(t0, g, t1)
        a.I(f'v_bfe_u32 {vr(t1)}, v0, 1, 1')
        a.I(f'v_xor_b32 {vr(t0)}, {vr(t0)}, {vr(t1)}')
        a.I(f'v_lshlrev_b32 {vr(t0)}, 4, {vr(t0)}')
        a.I(f'v_lshl_add_u32 {vr(t0)}, {vr(g)}, 12, {vr(t0)}')
        a.I(f'v_bfe_u32 {vr(t1)}, v0, 2, 2')
        a.I(f'v_lshl_add_u32 {vr(t0)}, {vr(t1)}, 7, {vr(t0)}')
        a.I(f'v_bfe_u32 {vr(t1)}, v0, 3, 1')
        a.I(f'v_lshl_add_u32 {vr(t0)}, {vr(t1)}, 6, {vr(t0)}')
        a.I(f'v_and_b32 {vr(t1)}, 1, v0')
        a.I(f'v_lshl_add_u32 {vr(dst)}, {vr(t1)}, 3, {vr(t0)}')

    a.raw('s_cmp_ge_u32 s2, 256')
    a.raw('s_cbranch_scc1 k1_end')
    st.real(); st.cyc()
    a.I('s_and_b32 s3, s2, 7')
    a.I('s_lshr_b32 s4, s2, 3')
    a.I(f's_lshr_b32 {sr(sBLK)}, s3, 2')
    a.I(f's_mul_i32 s5, {sr(sBLK)}, 40')
    a.I('s_load_dwordx8 s[8:15], s[0:1], s5')
    a.I('s_load_dwordx2 s[16:17], s[0:1], 96')
    a.I('s_add_u32 s5, s5, 32')
    a.I('s_load_dwordx2 s[18:19], s[0:1], s5')
    if OPT['fuse']: a.I('s_load_dwordx2 s[100:101], s[0:1], 88')
    a.I('s_and_b32 s5, s4, 3')
    if OPT['hpmap'] == 2: a.I('s_add_u32 s3, s3, s5')
    a.I('s_and_b32 s3, s3, 3')
    a.I(f's_lshl_b32 {sr(sHP)}, s5, 2')
    a.I(f's_add_u32 {sr(sHP)}, {sr(sHP)}, s3')
    a.I(f's_lshr_b32 {sr(sB)}, s4, 2')
    a.I(f's_add_u32 {sr(sROT)}, {sr(sB)}, s5')
    a.I(f'v_lshrrev_b32 {vr(t0)}, 6, v0')
    a.I(f'v_readfirstlane_b32 {sr(sWAVE)}, {vr(t0)} ; WAVEID')
    a.I('v_and_b32 v0, 63, v0')
    a.I(f's_and_b32 {sr(sR)}, {sr(sWAVE)}, 3')
    a.I(f's_lshr_b32 {sr(sHH)}, {sr(sWAVE)}, 2')
    a.I(f's_lshr_b32 s3, {sr(sR)}, 1')
    a.I(f's_xor_b32 {sr(sH)}, {sr(sR)}, s3')
    a.I(f's_and_b32 {sr(sH)}, {sr(sH)}, 1')
    a.I(f's_lshl_b32 {sr(sH)}, {sr(sH)}, 1')
    a.I(f's_or_b32 {sr(sH)}, {sr(sH)}, s3')
    a.I(f'v_and_b32 {vr(t0)}, 7, v0')
    a.I(f'v_xor_b32 {vr(t0)}, {sr(sH)}, {vr(t0)}')
    a.I(f'v_bfe_u32 {vr(t1)}, v0, 4, 1')
    a.I(f'v_lshlrev_b32 {vr(t1)}, 2, {vr(t1)}')
    a.I(f'v_xor_b32 {vr(t0)}, {vr(t0)}, {vr(t1)}')
    a.I(f'v_lshlrev_b32 {vr(t0)}, 4, {vr(t0)}')
    a.I(f'v_lshrrev_b32 {vr(t1)}, 5, v0')
    a.I(f'v_lshl_add_u32 {vr(t0)}, {vr(t1)}, 7, {vr(t0)}')
    a.I(f'v_lshrrev_b32 {vr(g)}, 4, v0')
    a.I(f'v_bfe_u32 {vr(t1)}, v0, 3, 2')
    a.I(f's_lshl_b32 s3, {sr(sR)}, 4')
    a.I(f'v_add_u32 {vr(t1)}, s3, {vr(t1)}')
    a.I(f'v_lshl_add_u32 {vr(vD)}, {vr(t1)}, 8, {vr(t0)}')
    vDW, vDX = 8, 9
    a.I(f'v_lshl_add_u32 {vr(vDW)}, {vr(t1)}, 13, {vr(t0)}')
    a.I(f's_lshl_b32 s3, {sr(sR)}, 2')
    a.I(f'v_add_u32 {vr(t0)}, s3, {vr(g)}')
    a.I(f'v_and_b32 {vr(t0)}, 7, {vr(t0)}')
    a.I(f'v_and_b32 {vr(t1)}, 2, {vr(t0)}')
    a.I(f'v_lshlrev_b32 {vr(t1)}, 1, {vr(t1)}')
    a.I(f'v_xor_b32 {vr(t0)}, {vr(t0)}, {vr(t1)}')
    a.I(f'v_and_b32 {vr(t1)}, 7, v0')
    a.I(f'v_xor_b32 {vr(t0)}, {vr(t0)}, {vr(t1)}')
    a.I(f'v_lshlrev_b32 {vr(t0)}, 4, {vr(t0)}')
    a.I(f'v_lshrrev_b32 {vr(t1)}, 3, v0')
    a.I(f's_lshl_b32 s3, {sr(sR)}, 3')
    a.I(f'v_add_u32 {vr(t1)}, s3, {vr(t1)}')
    a.I(f'v_lshl_add_u32 {vr(vDX)}, {vr(t1)}, 11, {vr(t0)}')
    a.I(f's_lshl_b32 {sr(sM0W)}, {sr(sR)}, 12')
    a.I(f's_lshl_b32 {sr(sM0X)}, {sr(sR)}, 10')
    a.I(f's_add_u32 {sr(sM0X)}, {sr(sM0X)}, {XB}')
    a.I(f's_mul_i32 {sr(sM0A)}, {sr(sHH)}, 81920')
    a.I(f's_add_u32 {sr(sM0A)}, {sr(sM0A)}, {sr(sM0W)}')
    a.I(f's_mov_b32 {sr(sST)}, 0')
    a.I(f's_mov_b32 {sr(sSLW)}, 0')
    a.I(f's_mov_b32 {sr(sSLX)}, 0')
    a.I(f's_and_b32 {sr(sRC)}, {sr(sROT)}, {OPT["rotc"]}')
    a.I(f's_lshl_b32 {sr(sRC)}, {sr(sRC)}, 14')
    a.I('s_waitcnt lgkmcnt(0)')
    a.I(f's_mul_i32 s3, {sr(sB)}, 294912')
    a.I(f's_add_u32 {sr(sX)}, s8, s3')
    a.I(f's_addc_u32 {sr(sX + 1)}, s9, 0')
    a.I(f's_mov_b32 {sr(sX + 2)}, 294912')
    a.I(f's_mov_b32 {sr(sX + 3)}, 0x20000')
    a.I(f's_lshl_b32 s3, {sr(sHP)}, 9')
    a.I(f's_add_u32 {sr(sW)}, s14, s3')
    a.I(f's_addc_u32 {sr(sW + 1)}, s15, 0')
    a.I(f's_sub_u32 {sr(sW + 2)}, 8388608, s3')
    a.I(f's_mov_b32 {sr(sW + 3)}, 0x20000')
    a.I(f's_lshl_b32 s3, {sr(sB)}, 4')
    a.I(f's_add_u32 s3, s3, {sr(sHP)}')
    a.I('s_lshl_b32 s3, s3, 18')
    for (d, p) in ((sK, 10), (sV, 12)):
        a.I(f's_add_u32 {sr(d)}, {sr(p)}, s3')
        a.I(f's_addc_u32 {sr(d + 1)}, {sr(p + 1)}, 0')
        a.I(f's_mov_b32 {sr(d + 2)}, 262144')
        a.I(f's_mov_b32 {sr(d + 3)}, 0x20000')
    a.I(f's_cmp_eq_u32 {sr(sHH)}, 0')
    a.I('s_cbranch_scc1 k1_comp')

    def flag_srd(d):
        a.I(f's_add_u32 {sr(d)}, s16, {FLAG_OFF}')
        a.I(f's_addc_u32 {sr(d + 1)}, s17, 0')
        a.I(f's_mov_b32 {sr(d + 2)}, 98304')
        a.I(f's_mov_b32 {sr(d + 3)}, 0x20000')
    def dbg_srd(d):
        a.I(f's_mov_b32 {sr(d)}, s100')
        a.I(f's_mov_b32 {sr(d + 1)}, s101')
        a.I(f's_mov_b32 {sr(d + 2)}, 256')
        a.I(f's_mov_b32 {sr(d + 3)}, 0x20000')
    def oflag_off(d):
        a.I(f's_lshl_b32 {d}, {sr(sBLK)}, 3')
        a.I(f's_add_u32 {d}, {d}, {sr(sB)}')
        a.I(f's_lshl_b32 {d}, {d}, 4')
        a.I(f's_add_u32 {d}, {d}, {sr(sHP)}')
        a.I(f's_lshl_b32 {d}, {d}, 7')
        a.I(f's_add_u32 {d}, {d}, 65536')
    def wo_srd():
        a.I(f's_lshl_b32 s3, {sr(sB)}, 4')
        a.I(f's_add_u32 s3, s3, {sr(sHP)}')
        a.I('s_lshl_b32 s3, s3, 16')
        a.I(f's_add_u32 {sr(sX)}, s18, s3')
        a.I(f's_addc_u32 {sr(sX + 1)}, s19, 0')
        a.I(f's_mov_b32 {sr(sX + 2)}, 65536')
    def choff(dst, c, hq):
        a.I(f's_add_u32 {sr(dst)}, {sr(sRC)}, {(c + OPT["rhh"] * hq) * 16384}')
        a.I(f's_and_b32 {sr(dst)}, {sr(dst)}, 0x1ffff')
        if hq: a.I(f's_add_u32 {sr(dst)}, {sr(dst)}, 131072')
    def stage_w():
        R = OPT['rot1']
        a.many([f's_add_u32 {sr(sOX)}, {sr(sST)}, {sr(sROT)}',
                f's_and_b32 {sr(sOX)}, {sr(sOX)}, {R}',
                f's_and_b32 {sr(sOW)}, {sr(sST)}, {15 & ~R}',
                f's_or_b32 {sr(sOX)}, {sr(sOX)}, {sr(sOW)}',
                f's_add_u32 {sr(sT0)}, {sr(sM0W)}, {sr(sSLW)}',
                f's_lshl_b32 {sr(sOW)}, {sr(sOX)}, 19',
                f's_lshl_b32 {sr(sOX)}, {sr(sOX)}, 7',
                f's_add_u32 {sr(sST)}, {sr(sST)}, 1'])
        for tq in range(4):
            a.I(f's_mov_b32 m0, {sr(sT0)}')
            a.I(f'buffer_load_dwordx4 {vr(vDW)}, {sr(sW, 4)}, {sr(sOW)} offen offset:{tq * 1024}{NT("wnt")} lds')
            a.I(f's_add_u32 m0, {sr(sT0)}, {HB1 - 256}')
            a.I(f'buffer_load_dwordx4 {vr(vDW)}, {sr(sW, 4)}, {sr(sOW)} offen offset:{tq * 1024 + 256}{NT("wnt")} lds')
            if tq < 3: a.I(f's_add_u32 {sr(sOW)}, {sr(sOW)}, {32768 - 1024}')
    def stage_x():
        a.I(f's_add_u32 {sr(sT0)}, {sr(sM0X)}, {sr(sSLX)}')
        lb = a.newlabel('k1_skipx')
        for i in range(5):
            if i == 4:
                a.I(f's_cmp_ge_u32 {sr(sR)}, 2')
                a.I(f's_cbranch_scc1 {lb}')
            a.I(f's_add_u32 m0, {sr(sT0)}, {i * 4096}')
            a.I(f'buffer_load_dwordx4 {vr(vDX)}, {sr(sX, 4)}, {sr(sOX)} offen{NT("xnt")} lds')
            if i < 4: a.I(f's_add_u32 {sr(sOX)}, {sr(sOX)}, 65536')
        a.label(lb)
        a.I(f's_add_u32 {sr(sSLW)}, {sr(sSLW)}, 16384')
        a.I(f's_add_u32 {sr(sSLX)}, {sr(sSLX)}, 18432')
        a.I(f's_cmp_eq_u32 {sr(sSLW)}, 49152')
        a.I(f's_cselect_b32 {sr(sSLW)}, 0, {sr(sSLW)}')
        a.I(f's_cselect_b32 {sr(sSLX)}, 0, {sr(sSLX)}')
    a.I(f's_call_b64 {sr(sLINK, 2)}, k1_stage')
    stage_w_only = OPT['pre1']
    if stage_w_only:
        stage_w()
        a.I('s_waitcnt vmcnt(8)')
        a.I('s_barrier')
        stage_x()
    else:
        a.I('s_waitcnt vmcnt(0)')
        a.I('s_barrier')
        a.I(f's_call_b64 {sr(sLINK, 2)}, k1_stage')
    st0 = st.n
    st.cyc()
    a.I(f's_call_b64 {sr(sLINK, 2)}, k1_stage')
    a.I(f's_mul_i32 s3, s2, 171')
    a.I(f's_lshr_b32 s3, s3, 9')
    a.I(f's_mul_i32 s3, s3, 3')
    a.I(f's_sub_u32 {sr(sNEXT)}, s2, s3')
    if not OPT['desync']: a.I(f's_mov_b32 {sr(sNEXT)}, 0')
    a.I(f's_mov_b32 {sr(sLOOSE)}, 0')
    a.I(f's_mov_b32 {sr(sKVI)}, 0')
    a.I(f's_mov_b32 {sr(sCNT)}, 0')
    def lbar():
        lb = a.newlabel('k1_loose')
        a.I(f's_cmp_gt_i32 {sr(sLOOSE)}, 0')
        a.I(f's_cbranch_scc1 {lb}')
        a.I('s_waitcnt vmcnt(12)')
        a.label(lb)
        a.I(f's_sub_i32 {sr(sLOOSE)}, {sr(sLOOSE)}, 1')
        a.I('s_waitcnt vmcnt(20)')
        a.I('s_barrier')
    a.label('k1_lloop')
    lbar()
    a.I(f's_call_b64 {sr(sLINK, 2)}, k1_stage')
    a.I(f's_cmp_lg_u32 {sr(sCNT)}, {sr(sNEXT)}')
    a.I('s_cbranch_scc1 k1_kvdone')
    a.I(f's_add_u32 {sr(sNEXT)}, {sr(sNEXT)}, 3')
    a.I(f's_add_u32 {sr(sKVI)}, {sr(sKVI)}, 1')
    for m, it in enumerate(('K0', 'V0', 'K1', 'V1')):
        a.I(f's_cmp_lg_u32 {sr(sKVI)}, {m + 1}')
        a.I(f's_cbranch_scc1 k1_kv{m + 1}')
        a.I(f's_mov_b32 {sr(sLOOSE)}, 2')
        for hq in range(2):
            a.I(f's_mov_b32 {sr(sT0)}, {int(it[1]) * 16384 + hq * 131072}')
            for j in range(4):
                a.I(f'buffer_load_dwordx4 {vr(kvreg[it] + 16 * hq + 4 * j, 4)}, {vr(vD)}, {sr(sK if it[0] == "K" else sV, 4)}, {sr(sT0)} offen offset:{j * 1024}{NT("kvnt")}')
        if m < 3: a.I('s_branch k1_kvdone')
        a.label(f'k1_kv{m + 1}')
    a.label('k1_kvdone')
    a.I(f's_add_u32 {sr(sCNT)}, {sr(sCNT)}, 1')
    a.I(f's_cmp_lt_u32 {sr(sCNT)}, 13')
    a.I('s_cbranch_scc1 k1_lloop')
    a.I(f's_add_u32 s3, {sr(sM0W)}, 16384')
    a.I(f'v_lshl_add_u32 {vr(tA)}, v0, 4, s3')
    a.I(f'v_add_u32 {vr(tB)}, {81920 + 32768}, {vr(tA)}')
    a.I(f'v_add_u32 {vr(mx)}, {81920 - 16384}, {vr(tA)}')
    def kvwrite(it, off, b1=tB, off1=None):
        for hq in range(2):
            o = off if (hq == 0 or off1 is None) else off1
            for j in range(4): a.I(f'ds_write_b128 {vr((tA, b1)[hq])}, {vr(kvreg[it] + 16 * hq + 4 * j, 4)} offset:{o + j * 1024}')
    lbar()
    npf = 0
    if OPT['wopf'] == 3:
        wo_srd()
        a.I(f'v_lshlrev_b32 {vr(t1)}, 4, v0')
        a.I(f's_lshl_b32 {sr(sT0)}, {sr(sR)}, 14')
        for k in range(OPT['nwo']):
            a.I(f'buffer_load_dwordx4 v[224:227], {vr(t1)}, {sr(sX, 4)}, {sr(sT0)} offen offset:{(k & 3) * 1024} ; NOCHECK')
            if k & 3 == 3: a.I(f's_add_u32 {sr(sT0)}, {sr(sT0)}, 4096')
            npf += 1
            if k == 7: kvwrite('K0', 0); a.I(f's_waitcnt vmcnt({npf})'); a.I('s_barrier')
    else:
        kvwrite('K0', 0)
        a.I('s_waitcnt vmcnt(0)')
        a.I('s_barrier')
    kvwrite('V0', 16384)
    a.I('s_barrier')
    if OPT['fuse']:
        dbg_srd(sO)
        a.I(f'v_mov_b32 {vr(t0)}, 0')
        a.I(f's_mov_b32 {sr(sCNT)}, 0')
        a.I('s_movk_i32 s3, 0x100')
        a.label('k1_allin')
        a.I(f'buffer_load_dword {vr(t1)}, {vr(t0)}, {sr(sO, 4)}, 0 offen sc1')
        a.I(f's_add_u32 {sr(sCNT)}, {sr(sCNT)}, 1')
        a.I('s_waitcnt vmcnt(0)')
        a.I(f'v_cmp_eq_u32 vcc, s3, {vr(t1)}')
        a.I('s_cbranch_vccnz k1_allok ; POLL')
        a.I(f's_cmp_lt_u32 {sr(sCNT)}, {OPT["pollmax"]}')
        a.I('s_cbranch_scc1 k1_allin')
        a.label('k1_allok')
    a.I('s_waitcnt vmcnt(0)')
    st.cyc()
    a.I('s_branch k1_join')

    a.label('k1_stage')
    stage_w(); stage_x()
    a.I(f's_setpc_b64 {sr(sLINK, 2)}')

    a.label('k1_comp')
    a.lg = []
    st.n = st0
    vWp, vX, vQW = 1, 5, 8
    if OPT['cpf']:
        a.I(f's_getpc_b64 {sr(sO, 2)}')
        a.label('k1_pc')
        a.I(f's_mov_b32 {sr(sO + 2)}, k1_end-k1_pc')
        a.I(f's_mov_b32 {sr(sO + 3)}, 0x20000')
        a.I(f's_lshl_b32 s3, {sr(sR)}, 13')
        a.I(f'v_lshlrev_b32 {vr(t0)}, 6, v0')
        a.I(f'buffer_load_dword v20, {vr(t0)}, {sr(sO, 4)}, s3 offen ; NOCHECK')
        a.I('s_add_u32 s3, s3, 4096')
        a.I(f'buffer_load_dword v20, {vr(t0)}, {sr(sO, 4)}, s3 offen ; NOCHECK')
    if OPT['fuse']:
        a.I(f's_cmp_lg_u32 {sr(sWAVE)}, 0')
        a.I('s_cbranch_scc1 k1_noreset')
        flag_srd(sO)
        oflag_off('s4')
        a.I('s_lshl_b32 s3, s2, 8')
        a.I(f'v_lshlrev_b32 {vr(t0)}, 2, v0')
        a.I(f'v_and_b32 {vr(t2)}, 127, {vr(t0)}')
        a.I(f'v_mov_b32 {vr(t1)}, 0')
        a.I(f'buffer_store_dword {vr(t1)}, {vr(t0)}, {sr(sO, 4)}, s3 offen sc1')
        a.I(f'buffer_store_dword {vr(t1)}, {vr(t2)}, {sr(sO, 4)}, s4 offen sc1')
        dbg_srd(sO)
        a.I(f'v_mov_b32 {vr(t2)}, 1')
        a.I('s_mov_b64 exec, 1')
        a.I('s_waitcnt vmcnt(0)')
        a.I(f'buffer_atomic_add {vr(t2)}, {vr(t1)}, {sr(sO, 4)}, 0 offen sc1')
        a.I('s_mov_b64 exec, -1')
        a.label('k1_noreset')
    tr_pattern(vWp)
    a.I(f's_lshr_b32 s3, {sr(sR)}, 1')
    a.I(f's_mul_i32 s4, s3, {HB1}')
    a.I(f's_and_b32 s5, {sr(sR)}, 1')
    a.I('s_lshl_b32 s6, s5, 9')
    a.I('s_add_u32 s4, s4, s6')
    a.I(f'v_add_u32 {vr(vWp)}, s4, {vr(vWp)}')
    for j in range(1, 4): a.I(f'v_xor_b32 {vr(vWp + j)}, {32 * j}, {vr(vWp)}')
    a.I(f'v_and_b32 {vr(n)}, 15, v0')
    a.I(f'v_lshrrev_b32 {vr(t0)}, 1, {vr(n)}')
    a.I(f'v_and_b32 {vr(t1)}, 2, {vr(t0)}')
    a.I(f'v_lshlrev_b32 {vr(t1)}, 1, {vr(t1)}')
    a.I(f'v_xor_b32 {vr(t0)}, {vr(t0)}, {vr(t1)}')
    a.I(f'v_lshlrev_b32 {vr(t1)}, 1, {vr(g)}')
    a.I(f'v_xor_b32 {vr(t0)}, {vr(t0)}, {vr(t1)}')
    a.I(f'v_lshlrev_b32 {vr(t0)}, 4, {vr(t0)}')
    a.I(f'v_lshl_add_u32 {vr(t0)}, {vr(n)}, 7, {vr(t0)}')
    a.I(f'v_add_u32 {vr(vX)}, {XB}, {vr(t0)}')
    a.I(f'v_xor_b32 {vr(vX + 1)}, 16, {vr(vX)}')
    a.I(f's_mul_i32 s4, s3, 36864')
    a.I('s_lshl_b32 s6, s5, 11')
    a.I('s_add_u32 s4, s4, s6')
    a.I(f's_add_u32 s4, s4, {QB}')
    a.I(f'v_lshl_add_u32 {vr(t0)}, {vr(n)}, 4, s4')
    a.I(f'v_lshrrev_b32 {vr(t1)}, 1, {vr(g)}')
    a.I(f'v_lshl_add_u32 {vr(t0)}, {vr(t1)}, 8, {vr(t0)}')
    a.I(f'v_and_b32 {vr(t1)}, 1, {vr(g)}')
    a.I(f'v_lshl_add_u32 {vr(vQW)}, {vr(t1)}, 3, {vr(t0)}')
    cval = fbits(128 ** -0.5 * math.log2(math.e))
    a.I(f's_mov_b32 {sr(sC)}, {cval}')
    a.I(f's_mov_b32 {sr(sC + 1)}, {cval}')
    for i in range(0, 144, 2): a.I(f'v_mov_b64 {vr(ACC + i, 2)}, 0')
    def xread(t, slot, ks): return f'ds_read_b128 {vr(XF + 4 * t, 4)}, {vr(vX + ks)} offset:{slot * 18432 + t * 2048}'
    def wreads(W, slot, ks):
        return [f'ds_read_b64_tr_b16 {vr(W + 4 * j + 2 * h, 2)}, {vr(vWp + j)} offset:{slot * 16384 + ks * 2048 + h * 1024}' for j in range(4) for h in range(2)]
    GT = OPT['gate']
    def kstep(Wc, Wn, nslot, nks, gated, last=False):
        wr = wreads(Wn, nslot, nks) if not last else []
        conv = []
        for t in range(9):
            for j in range(4):
                a.I(f'{MF} {vr(acc(t, j), 4)}, {vr(Wc + 4 * j, 4)}, {vr(XF + 4 * t, 4)}, {vr(acc(t, j), 4)}')
                if t >= (GT if gated else 0) and j in (0, 2) and wr: a.I(wr.pop(0))
                for _ in range(5):
                    if conv: a.I(conv.pop(0))
            if gated and t == GT - 1:
                a.I('s_waitcnt lgkmcnt(0)')
                a.I('s_barrier')
                if not last:
                    for tt in range(GT): a.I(xread(tt, nslot, nks))
            elif not last and (not gated or t >= GT): a.I(xread(t, nslot, nks))
            if last and t >= GT - 1:
                lo = 0 if t == GT - 1 else t - 1
                for tc in range(lo, t): conv += convert(tc)
        if last:
            a.many(conv); a.many(convert(8))
        assert not wr
    def convert(t):
        r = []
        for j in range(4): r += [f'v_pk_mul_f32 {vr(acc(t, j) + 2 * k, 2)}, {vr(acc(t, j) + 2 * k, 2)}, {sr(sC, 2)}' for k in range(2)]
        for j in range(4): r += [f'v_cvt_pk_bf16_f32 {vr(acc(t, j) + k)}, {vr(acc(t, j) + 2 * k)}, {vr(acc(t, j) + 2 * k + 1)}' for k in range(2)]
        for j in range(4): r += [f'ds_write_b64 {vr(vQW)}, {vr(acc(t, j), 2)} offset:{t * 4096 + (j >> 1) * 1024 + (j & 1) * 512}']
        return r
    W0, W1 = WF, WF + 16
    if OPT['cprio']: a.I(f's_setprio {OPT["cprio"]}')
    a.I('s_barrier')
    st.cyc()
    a.many(wreads(W0, 0, 0))
    for t in range(9): a.I(xread(t, 0, 0))
    a.I(f's_mov_b32 {sr(sCNT)}, 0')
    a.I('s_waitcnt lgkmcnt(0)')
    class _Dry(Asm): pass
    save = (a.ins, a.lg); a.ins = []; a.lg = []
    kstep(W1, W0, 0, 0, True); lg0 = [set(x) for x in a.lg]
    a.ins, a.lg = save
    a.lg = [set(x) for x in lg0]
    a.label('k1_qloop')
    for i in range(3):
        kstep(W0, W1, i, 1, False)
        kstep(W1, W0, (i + 1) % 3, 0, True)
    assert [set(x) for x in a.lg] == lg0
    a.I(f's_add_u32 {sr(sCNT)}, {sr(sCNT)}, 1')
    a.I(f's_cmp_lt_u32 {sr(sCNT)}, 5')
    a.I('s_cbranch_scc1 k1_qloop')
    kstep(W0, W1, 0, 1, False)
    kstep(W1, W0, 0, 0, True, last=True)
    if OPT['cprio']: a.I('s_setprio 0')
    a.I('s_waitcnt vmcnt(0)')
    st.cyc()

    a.label('k1_join')
    a.lg = [set()]
    a.I(f's_lshl_b32 {sr(sKP)}, {sr(sHH)}, 15')
    a.I(f's_add_u32 {sr(sKP)}, {sr(sKP)}, 16384')
    a.I(f's_add_u32 {sr(sVP)}, {sr(sKP)}, 16384')
    a.I(f's_and_b32 s3, {sr(sR)}, 1')
    a.I('s_lshl_b32 s3, s3, 11')
    a.I(f's_lshl_b32 {sr(sJ)}, s3, 1')
    a.I(f's_sub_u32 {sr(sJ)}, 2048, {sr(sJ)}')
    a.I(f's_mul_i32 s5, {sr(sHH)}, 81920')
    a.I('s_add_u32 s5, s5, s3')
    a.I(f's_add_u32 s4, s5, {sr(sVP)}')
    a.I(f's_add_u32 s5, s5, {sr(sKP)}')
    a.I(f's_mul_i32 s3, {sr(sHH)}, 36864')
    a.I(f's_add_u32 s3, s3, {QB}')
    a.I(f'v_lshl_add_u32 {vr(t3)}, v0, 4, s3')
    a.I(f's_lshl_b32 s3, {sr(sR)}, 13')
    a.I(f'v_add_u32 {vr(t2)}, s3, {vr(t3)}')
    a.I('s_waitcnt lgkmcnt(0)')
    a.I('s_barrier')
    for T in range(2):
        for k in range(4): a.I(f'ds_read_b128 {vr(q_(T, k), 4)}, {vr(t2)} offset:{T * 4096 + k * 1024}')
    for k in range(4): a.I(f'ds_read_b128 {vr(q_(2, k), 4)}, {vr(t3)} offset:{32768 + k * 1024}')
    tr_pattern(vVa)
    a.I(f'v_add_u32 {vr(vVa)}, s4, {vr(vVa)}')
    for j in range(1, 4): a.I(f'v_xor_b32 {vr(vVa + j)}, {32 * j}, {vr(vVa)}')
    a.I(f'v_bfe_u32 {vr(n)}, v0, 2, 2')
    hfun(t0, n, t1)
    a.I(f'v_xor_b32 {vr(t0)}, {vr(t0)}, {vr(g)}')
    a.I(f'v_lshlrev_b32 {vr(t0)}, 4, {vr(t0)}')
    a.I(f'v_lshl_add_u32 {vr(t0)}, {vr(n)}, 12, {vr(t0)}')
    a.I(f'v_and_b32 {vr(t1)}, 3, v0')
    a.I(f'v_lshl_add_u32 {vr(t0)}, {vr(t1)}, 7, {vr(t0)}')
    a.I(f'v_bfe_u32 {vr(t1)}, v0, 1, 1')
    a.I(f'v_lshl_add_u32 {vr(t0)}, {vr(t1)}, 6, {vr(t0)}')
    a.I(f'v_add_u32 {vr(vKa)}, s5, {vr(t0)}')
    a.I(f'v_xor_b32 {vr(vKa + 1)}, 64, {vr(vKa)}')
    for i in range(4): a.I(f'v_mov_b32 {vr(ONES + i)}, 0x3f803f80')
    for i in range(0, 12, 2): a.I(f'v_mov_b64 {vr(NEGM + i, 2)}, 0')
    NEG_BIG = fbits(-3.0e38)
    for s in (sTHR, sTHR8, sCL, sCL8): a.I(f's_mov_b32 {sr(s)}, {NEG_BIG}')
    a.I(f's_lshl_b32 s3, {sr(sHH)}, 17')
    a.I(f'v_add_u32 {vr(vD)}, s3, {vr(vD)}')
    a.I(f's_mov_b32 {sr(sOV)}, 32768')
    a.I(f's_mov_b32 {sr(sOK)}, 32768')
    for i in range(0, 108, 2): a.I(f'v_mov_b64 {vr(O + i, 2)}, 0')
    a.I(f's_lshl_b32 s5, {sr(sHH)}, 15')
    a.I(f's_add_u32 s5, s5, {sr(sM0A)}')
    a.I(f's_mov_b32 {sr(sT1)}, 32768')
    a.I(f's_mov_b32 {sr(sCNT)}, 0')
    a.I(f's_mov_b32 {sr(sRS)}, 0')
    if OPT['wopf'] in (1, 2):
        wo_srd()
        a.I(f's_lshl_b32 {sr(sOX)}, {sr(sWAVE)}, 13')
    a.I('s_waitcnt lgkmcnt(0)')
    a.I('s_barrier')
    a.lg = []
    def dma_ins(kind):
        srd, so = (sK, sOK) if kind == 'K' else (sV, sOV)
        r = [[f'buffer_load_dwordx4 {vr(vD)}, {sr(srd, 4)}, {sr(so)} offen offset:{j * 1024}{NT("kvnt")} lds'] for j in range(4)]
        r[3].append(f's_add_u32 {sr(so)}, {sr(so)}, 16384')
        return r
    def dma_grp(kind, m0):
        r = dma_ins(kind); r[0] = [m0, 's_nop 0'] + r[0]
        return r
    for x in dma_grp('K', 's_mov_b32 m0, s5'): a.many(x)
    a.I(f's_cmp_eq_u32 {sr(sHH)}, 0')
    a.I('s_cbranch_scc1 k1_nowr')
    kvwrite('K1', 32768, mx, 0); kvwrite('V1', 49152, mx, 16384)
    a.label('k1_nowr')
    a.lg = []
    LA, SY = 6, OPT['sy']
    def rd(kind, jl, f):
        if kind == 'K':
            return [f'ds_read_b128 {vr(POOL + 4 * f, 4)}, {vr(vKa + (f & 1))} offset:{(f >> 2) * 1024 + ((f >> 1) & 1) * 512}']
        return [f'ds_read_b64_tr_b16 {vr(POOL + 4 * f + 2 * h, 2)}, {vr(vVa + (f & 3))} offset:{h * 1024 + (f >> 2) * 512}' for h in range(2)]
    def rd_upd(kind, jl, f):
        r = rd(kind, jl, f)
        if kind == 'K' and f >= 6: r.append(f'v_add_u32 {vr(vKa + (f & 1))}, {sr(sDK if jl else sJ)}, {vr(vKa + (f & 1))}')
        if kind == 'V' and f >= 6:
            for x in (f - 2, f): r.append(f'v_add_u32 {vr(vVa + (x & 3))}, {sr(sDV if jl else sJ)}, {vr(vVa + (x & 3))}')
        return r
    for f in range(LA): a.many(rd('K', 0, f))
    lgK = [set(x) for x in a.lg]
    lgV = [set(Insn(x).wr) for f in range(LA) for x in rd('V', 0, f)]
    st.cyc()
    a.I(f's_lshr_b32 s3, {sr(sR)}, 1')
    a.I(f's_xor_b32 s3, s3, {sr(sHH)}')
    a.I('s_cmp_eq_u32 s3, 1')
    a.I('s_cbranch_scc1 k1_proL')

    def maxops(jl, heavy):
        ops = []
        vals = [s_(T, jl, tt) + k for tt in range(2) for T in range(2) for k in range(4)]
        for vs, dst in ((vals, mx),) + ((([s_(2, 0) + k for k in range(8)], mx8),) if heavy else ()):
            o = [f'v_max3_f32 {vr(dst)}, {vr(vs[0])}, {vr(vs[1])}, {vr(vs[2])}']
            for k in range(3, len(vs) - 1, 2): o.append(f'v_max3_f32 {vr(dst)}, {vr(dst)}, {vr(vs[k])}, {vr(vs[k + 1])}')
            o.append(f'v_max_f32 {vr(dst)}, {vr(dst)}, {vr(vs[-1])}')
            ops += o
        return ops
    def expops(jl, heavy):
        ops = []
        Tl = (0, 1, 2) if heavy else (0, 1)
        for k in range(8):
            for T in Tl: ops.append(f'v_exp_f32 {vr(s_(T, jl) + k)}, {vr(s_(T, jl) + k)}')
            if k >= 2 and k % 2 == 0:
                for T in Tl: ops.append(f'v_cvt_pk_bf16_f32 {vr(s_(T, jl) + k // 2 - 1)}, {vr(s_(T, jl) + k - 2)}, {vr(s_(T, jl) + k - 1)}')
        for T in Tl: ops.append(f'v_cvt_pk_bf16_f32 {vr(s_(T, jl) + 3)}, {vr(s_(T, jl) + 6)}, {vr(s_(T, jl) + 7)}')
        return ops
    def check(jl, heavy):
        for (thr, m, fn) in ((sTHR, mx, f'k1_rare{jl}'),) + (((sTHR8, mx8, 'k1_rare8'),) if heavy else ()):
            lb = a.newlabel('k1_ok')
            a.I(f'v_cmp_lt_f32 vcc, {sr(thr)}, {vr(m)}')
            a.I(f's_cbranch_vccz {lb}')
            a.I(f's_call_b64 {sr(sLINK, 2)}, {fn}')
            a.label(lb)
    def mfmas(kind, jl, heavy, f):
        Tl = (0, 1, 2) if heavy else (0, 1)
        P = vr(POOL + 4 * f, 4)
        if kind == 'K':
            tt, ks = f >> 2, f & 3
            return [f'{MF} {vr(s_(T, jl, tt), 4)}, {P}, {vr(q_(T, ks), 4)}, {vr(negm(T) if ks == 0 else s_(T, jl, tt), 4)}' for T in Tl]
        r = [f'{MF} {vr(o_(T, f), 4)}, {P}, {vr(s_(T, jl), 4)}, {vr(o_(T, f), 4)}' for T in Tl]
        if f == 7: r += [f'{MF} {vr(o_(T, 8), 4)}, {vr(ONES, 4)}, {vr(s_(T, jl), 4)}, {vr(o_(T, 8), 4)}' for T in Tl]
        return r
    def ring_step(doK, doV):
        r = []
        for (P, Po, D, on) in ((sKP, sKPo, sDK, doK), (sVP, sVPo, sDV, doV)):
            if not on: continue
            r.append([f's_mov_b32 {sr(Po)}, {sr(P)}',
                      f's_cmp_ge_u32 {sr(P)}, 49152',
                      f's_cselect_b32 {sr(D)}, {-49152 & 0xffffffff:#x}, {sr(sT1)}',
                      f's_add_u32 {sr(P)}, {sr(P)}, {sr(D)}',
                      f's_sub_u32 {sr(D)}, {sr(D)}, {sr(sJ)}'])
        return r
    def cost(x):
        if callable(x): return 8
        return 8 if x.startswith('v_exp') else 4
    def pack(stream, ngaps, reserved):
        for cap_extra in range(0, ngaps + 1):
            big = set((i * ngaps) // cap_extra for i in range(cap_extra)) if cap_extra else set()
            out = [[] for _ in range(ngaps)]; k = 0
            for gi in range(ngaps):
                room = (16 if gi in big else 8) - reserved[gi]
                while k < len(stream) and cost(stream[k]) <= room:
                    out[gi].append(stream[k]); room -= cost(stream[k]); k += 1
            if k == len(stream): return out
        out[-1] += stream[k:]
        return out
    def block(segs, streams, mode, aux0, nvm):
        uses = [(si, f) for si in range(len(segs)) for f in range(8)]
        nU = len(uses)
        gaps = []
        for k, (si, f) in enumerate(uses):
            for n_ in range(len(mfmas(segs[si][0], segs[si][1], segs[si][2], f))): gaps.append((k, n_))
        aux = {gp: [] for gp in gaps}; pre = {gp: [] for gp in gaps}
        for k in range(nU - LA):
            s2, f2 = uses[k + LA]
            rr = rd_upd(segs[s2][0], segs[s2][1], f2)
            for i, x in enumerate([x for x in rr if x.startswith('ds_')]): aux[(k, i)].append(x)
            pre[(k + 1, 0)] += [x for x in rr if x.startswith('v_')]
        if mode != 'fin':
            post = [gp for gp in gaps if gp[0] > nU - 8 + SY]
            q = [(f, x) for f in range(LA) for x in rd('V', 0, f)]
            early = [x for f, x in q if f < OPT['nimm']]; q = [(f, x) for f, x in q if f >= OPT['nimm']]
            per = -(-len(q) // len(post))
            for gp in post:
                for _ in range(per):
                    fdone = gp[0] - (nU - 8) - (0 if gp[1] == 1 else 1)
                    if q and q[0][0] <= fdone: aux[gp].append(q.pop(0)[1])
            assert not q, q
        for gp, x in zip(gaps[OPT['aux0']::OPT['auxs']], aux0): aux[gp].append(x)
        fill = {}
        for (sa, sb, skip, ops) in streams:
            gl = [gp for gp in gaps if sa <= uses[gp[0]][0] <= sb]
            gl = gl[skip:len(gl) - OPT['tail']]
            for gp, ol in zip(gl, pack(ops, len(gl), [4 * len(pre[gp]) for gp in gl])):
                fill[gp] = ol
                assert not (any(callable(x) for x in ol) and uses[gp[0]][0] != sa)
        def emit(x):
            if callable(x): x()
            elif isinstance(x, list):
                for y in x: emit(y)
            else: a.I(x)
        for k, (si, f) in enumerate(uses):
            kind, jl, heavy, after = segs[si]
            if f == 0 and OPT['aprio'] and si: a.I(f's_setprio {len(segs) - 1 - si}')
            for n_, m in enumerate(mfmas(kind, jl, heavy, f)):
                a.I(m)
                emit(pre[(k, n_)]); emit(fill.get((k, n_), [])); emit(aux[(k, n_)])
            if OPT['stamp'] == 3 and mode == 'loop' and f == 7 and si < 3: a.raw(f's_memtime {sr(90 + 2 * si, 2)}')
            if mode != 'fin' and k == nU - 8 + SY:
                if OPT['stamp'] == 3 and mode == 'loop':
                    a.raw('s_mov_b32 s88, s98')
                    a.raw('s_memtime s[96:97]')
                a.I(f's_waitcnt vmcnt({nvm}) lgkmcnt(0)')
                a.I('s_barrier')
                if OPT['aprio']: a.I('s_setprio 3')
                st.sh()
                if OPT['stamp'] == 3 and mode == 'loop': a.raw('s_memtime s[98:99]')
                a.many(early)
            if f == 7 and after: after()
        if mode != 'fin': assert [set(x) for x in a.lg] == lgV, (a.lg, lgV)
    def resc():
        lb = a.newlabel('k1_nors')
        a.I(f's_cmp_eq_u32 {sr(sRS)}, 0')
        a.I(f's_cbranch_scc1 {lb}')
        a.I(f's_call_b64 {sr(sLINK, 2)}, k1_rescale')
        a.label(lb)
    def sm(jl, heavy): return maxops(jl, heavy) + [lambda: check(jl, heavy)] + expops(jl, heavy)
    OFFM0 = 0x30000
    def warm(kind, so):
        r = [[f'buffer_load_dwordx4 {vr(vD)}, {sr(sK if kind == "K" else sV, 4)}, {so} offen offset:{j * 1024}{NT("pfp")} lds'] for j in range(4)]
        r[0] = [f's_mov_b32 m0, {OFFM0}', 's_nop 0'] + r[0]
        return r
    def prologue(h0):
        a.lg = [set(x) for x in lgK]
        ax = ring_step(True, False)
        if OPT['pp']: ax = ax + warm('K', sr(sOK))
        block([('K', 0, h0, lambda: (a.many(maxops(0, h0)), check(0, h0))), ('K', 1, False, None)],
              [(1, 1, 0, expops(0, h0))], 'pro', ax, 63)
    def body_aux():
        r = [[f's_add_u32 {sr(sMK)}, {sr(sM0A)}, {sr(sVPo)}',
              f's_add_u32 {sr(sMV)}, {sr(sM0A)}, {sr(sKPo)}',
              f's_cmp_ge_u32 {sr(sCNT)}, 6',
              f's_cselect_b32 {sr(sMV)}, {OFFM0}, {sr(sMV)}',
              f's_cselect_b32 {sr(sOV)}, 0x1000000, {sr(sOV)}',
              f's_sub_u32 s3, {sr(sCNT)}, 1',
              f's_cmp_ge_u32 s3, 5',
              f's_cselect_b32 m0, {OFFM0}, {sr(sMK)}',
              f's_cselect_b32 s3, 0x1000000, {sr(sOK)}',
              f's_cselect_b32 s4, 0, 16384']]
        r += ring_step(True, True)
        for j in range(4): r.append([f'buffer_load_dwordx4 {vr(vD)}, {sr(sK, 4)}, s3 offen offset:{j * 1024}{NT("kvnt")} lds'])
        r[-1] += [f's_add_u32 {sr(sOK)}, {sr(sOK)}, s4', f's_mov_b32 m0, {sr(sMV)}']
        r += dma_ins('V')
        if OPT['mv']:
            w = warm('V', 's3')
            w[0] = [f's_mov_b32 s4, {OPT["mv"]}', f's_bitcmp1_b32 s4, {sr(sCNT)}', f's_cselect_b32 s3, {sr(sOV)}, 0x1000000'] + w[0]
            return r + w, 8
        return r, 4
    def body(hc, tag, exit_to):
        a.lg = [set(x) for x in lgV]
        hn = not hc
        ax, nvm = body_aux()
        block([('V', 0, hc, resc), ('K', 0, hn, None), ('V', 1, False, resc), ('K', 1, False, None)],
              [(0, 1, 1, sm(1, False)), (2, 3, 1, sm(0, hn))], 'loop', ax, nvm)
        a.I(f's_add_u32 {sr(sCNT)}, {sr(sCNT)}, 1')
        a.I(f's_cmp_eq_u32 {sr(sCNT)}, 7')
        a.I(f's_cbranch_scc1 {exit_to}')
    def final(hc):
        a.lg = [set(x) for x in lgV]
        block([('V', 0, hc, resc), ('V', 1, False, None)], [(0, 0, 1, sm(1, False))], 'fin', [], 0)
        if OPT['aprio']: a.I('s_setprio 0')
    prologue(True)
    a.label('k1_X')
    body(True, 'x', 'k1_finL')
    a.label('k1_Y')
    body(False, 'y', 'k1_finH')
    a.I('s_branch k1_X')
    a.label('k1_proL')
    prologue(False)
    a.I('s_branch k1_Y')

    a.auto = False
    def xg_reduce(x, tmp, op):
        a.I(f'v_mov_b32 {vr(tmp)}, {vr(x)}')
        a.I(f'v_permlane32_swap_b32 {vr(x)}, {vr(tmp)}')
        a.I(f'{op} {vr(x)}, {vr(x)}, {vr(tmp)}')
        a.I(f'v_mov_b32 {vr(tmp)}, {vr(x)}')
        a.I(f'v_permlane16_swap_b32 {vr(x)}, {vr(tmp)}')
        a.I(f'{op} {vr(x)}, {vr(x)}, {vr(tmp)}')
    FREG = {0: mx, 1: tA, 2: mx8}
    def rare(T, vals, scl, canfirst):
        m, tmp = tB, FREG[T]
        a.I(f'v_max3_f32 {vr(m)}, {vr(vals[0])}, {vr(vals[1])}, {vr(vals[2])}')
        for k in range(3, len(vals) - 1, 2): a.I(f'v_max3_f32 {vr(m)}, {vr(m)}, {vr(vals[k])}, {vr(vals[k + 1])}')
        a.I(f'v_max_f32 {vr(m)}, {vr(m)}, {vr(vals[-1])}')
        xg_reduce(m, tmp, 'v_max_f32')
        a.I(f'v_max_f32 {vr(m)}, {sr(scl)}, {vr(m)}')
        for v in vals: a.I(f'v_sub_f32 {vr(v)}, {vr(v)}, {vr(m)}')
        for k in range(4): a.I(f'v_sub_f32 {vr(negm(T) + k)}, {vr(negm(T) + k)}, {vr(m)}')
        lb = a.newlabel('k1_first'); lb2 = a.newlabel('k1_rdone')
        if canfirst:
            a.I(f's_cmp_lg_u32 {sr(scl)}, 0')
            a.I(f's_cbranch_scc1 {lb}')
        a.I(f'v_exp_f32 {vr(tmp)}, -{vr(m)}')
        if T == 2:
            for k in range(36): a.I(f'v_mul_f32 {vr(o_(T, 8) + k)}, {vr(o_(T, 8) + k)}, {vr(tmp)}')
        else:
            a.I(f's_mov_b32 {sr(sRS)}, 1')
        if canfirst: a.label(lb)
    for jl in range(2):
        a.label(f'k1_rare{jl}')
        for T in range(2): rare(T, [s_(T, jl) + k for k in range(8)], sCL, jl == 0)
        a.I(f's_mov_b32 {sr(sTHR)}, {THRV}')
        a.I(f's_mov_b32 {sr(sCL)}, 0')
        a.I(f's_setpc_b64 {sr(sLINK, 2)}')
    a.label('k1_rare8')
    rare(2, [s_(2, 0) + k for k in range(8)], sCL8, True)
    a.I(f's_mov_b32 {sr(sTHR8)}, {THRV}')
    a.I(f's_mov_b32 {sr(sCL8)}, 0')
    a.I(f's_setpc_b64 {sr(sLINK, 2)}')
    a.label('k1_rescale')
    for T in range(2):
        for k in range(36): a.I(f'v_mul_f32 {vr(o_(T, 8) + k)}, {vr(o_(T, 8) + k)}, {vr(FREG[T])}')
    a.I(f's_mov_b32 {sr(sRS)}, 0')
    a.I(f's_setpc_b64 {sr(sLINK, 2)}')
    a.auto = True

    a.label('k1_finH')
    final(True)
    a.I('s_branch k1_epi')
    a.label('k1_finL')
    final(False)
    a.label('k1_epi')
    a.lg = []
    st.cyc()
    e0, e1, e2, e3, e4 = 3, 4, 5, 6, 8
    NM8 = negm(2)
    a.I(f'v_lshlrev_b32 {vr(e0)}, 4, v0')
    a.I(f's_lshl_b32 s5, {sr(sHH)}, 15')
    a.I('s_add_u32 s5, s5, 49152')
    a.I(f's_lshl_b32 s4, {sr(sR)}, 11')
    a.I('s_add_u32 s3, s4, s5')
    a.I(f'v_add_u32 {vr(e1)}, s3, {vr(e0)}')
    for d in range(8): a.I(f'ds_write_b128 {vr(e1)}, {vr(o_(2, d), 4)} offset:{(d >> 1) * 8192 + (d & 1) * 1024}')
    a.I(f's_mul_i32 s3, {sr(sHH)}, {HB1}')
    a.I(f'v_lshl_add_u32 {vr(e2)}, v0, 3, s3')
    a.I(f's_lshl_b32 s3, {sr(sR)}, 9')
    a.I(f'v_add_u32 {vr(e1)}, s3, {vr(e2)}')
    a.I(f'v_mov_b32 {vr(NM8 + 1)}, {vr(o_(2, 8))}')
    a.I(f'ds_write_b64 {vr(e1)}, {vr(NM8, 2)}')
    if OPT['s2'] and not OPT['fuse']:
        a.I(f's_cmp_lg_u32 {sr(sWAVE)}, 0')
        a.I('s_cbranch_scc1 k1_noflag')
        a.I(f's_add_u32 {sr(sO)}, s16, {48 << 20}')
        a.I(f's_addc_u32 {sr(sO + 1)}, s17, 0')
        a.I(f's_mov_b32 {sr(sO + 2)}, 65536')
        a.I(f's_mov_b32 {sr(sO + 3)}, 0x20000')
        a.I('s_lshl_b32 s3, s2, 8')
        a.I(f'v_lshlrev_b32 v10, 2, v0')
        a.I(f'v_mov_b32 v11, 0')
        a.I(f'buffer_store_dword v11, v10, {sr(sO, 4)}, s3 offen{NT("ont")}')
        a.label('k1_noflag')
    a.I(f's_lshl_b32 s3, {sr(sBLK)}, 3')
    a.I(f's_add_u32 s3, s3, {sr(sB)}')
    a.I(f's_mul_i32 s3, s3, {O_SLICE}')
    a.I(f's_mul_i32 s6, {sr(sHP)}, 73728')
    a.I('s_add_u32 s3, s3, s6')
    a.I(f's_add_u32 {sr(sO)}, s16, s3')
    a.I(f's_addc_u32 {sr(sO + 1)}, s17, 0')
    a.I(f's_mov_b32 {sr(sO + 2)}, 73728')
    a.I(f's_mov_b32 {sr(sO + 3)}, 0x20000')
    a.I(f's_mul_i32 s3, {sr(sHH)}, 36864')
    a.I(f'v_add_u32 {vr(e3)}, s4, {vr(e0)}')
    def fin(src, scale2, voff, soff, imm):
        for k in range(4): a.I(f'v_pk_mul_f32 {vr(src + 2 * k, 2)}, {vr(src + 2 * k, 2)}, {vr(scale2, 2)}')
        for k in range(4): a.I(f'v_cvt_pk_bf16_f32 {vr(src + k)}, {vr(src + 2 * k)}, {vr(src + 2 * k + 1)}')
        a.I(f'buffer_store_dwordx4 {vr(src, 4)}, {vr(voff)}, {sr(sO, 4)}, {soff} offen offset:{imm}{NT("ont")}')
    for T in range(2):
        for k in range(2): a.I(f'v_rcp_f32 {vr(o_(T, 8) + k)}, {vr(o_(T, 8) + k)}')
    a.I('s_mov_b32 s6, s3')
    for P in range(4):
        for T in range(2): fin(o_(T, 2 * P), o_(T, 8), e3, 's6', T * 1024)
        if P < 3: a.I('s_add_u32 s6, s6, 9216')
    a.I(f's_lshl_b32 s4, {sr(sR)}, 13')
    a.I('s_add_u32 s4, s4, s5')
    a.I(f'v_add_u32 {vr(e1)}, s4, {vr(e0)}')
    a.I(f's_mul_i32 s6, {sr(sR)}, 9216')
    a.I('s_add_u32 s6, s6, s3')
    a.I(f'v_add_u32 {vr(e3)}, 8192, {vr(e0)}')
    a.I('s_waitcnt lgkmcnt(0)')
    a.I('s_barrier')
    R8 = S
    for sl in range(4): a.I(f'ds_read_b64 {vr(R8 + 32 + 2 * sl, 2)}, {vr(e2)} offset:{sl * 512}')
    for k in range(8): a.I(f'ds_read_b128 {vr(R8 + 4 * k, 4)}, {vr(e1)} offset:{k * 1024}')
    nm = [R8 + 32 + 2 * i for i in range(4)]
    ll = [R8 + 33 + 2 * i for i in range(4)]
    a.I(f'v_min3_f32 {vr(e0)}, {vr(nm[0])}, {vr(nm[1])}, {vr(nm[2])}')
    a.I(f'v_min_f32 {vr(e0)}, {vr(e0)}, {vr(nm[3])}')
    for i in range(4): a.I(f'v_sub_f32 {vr(nm[i])}, {vr(e0)}, {vr(nm[i])}')
    for i in range(4): a.I(f'v_exp_f32 {vr(nm[i])}, {vr(nm[i])}')
    a.I(f'v_mul_f32 {vr(e0)}, {vr(ll[0])}, {vr(nm[0])}')
    for i in range(1, 4): a.I(f'v_fmac_f32 {vr(e0)}, {vr(ll[i])}, {vr(nm[i])}')
    a.I(f'v_rcp_f32 {vr(e4)}, {vr(e0)}')
    a.I(f'v_rcp_f32 {vr(e4 + 1)}, {vr(e0)}')
    for k in range(8): a.I(f'v_mul_f32 {vr(R8 + k)}, {vr(R8 + k)}, {vr(nm[0])}')
    for i in range(1, 4):
        for k in range(8): a.I(f'v_fmac_f32 {vr(R8 + k)}, {vr(R8 + 8 * i + k)}, {vr(nm[i])}')
    fin(R8, e4, e3, 's6', 0)
    if OPT['wopf'] == 2:
        a.I(f'v_lshlrev_b32 {vr(vD)}, 6, v0')
        a.I(f'buffer_load_dword v1, {vr(vD)}, {sr(sX, 4)}, {sr(sOX)} offen')
        a.I(f's_add_u32 {sr(sOX)}, {sr(sOX)}, 4096')
        a.I(f'buffer_load_dword v2, {vr(vD)}, {sr(sX, 4)}, {sr(sOX)} offen')
    if OPT['stamp'] == 3: st.n = 12
    else: st.cyc(); st.real()
    st.flush(16, sWAVE, sK, 10)
    if OPT['fuse']:
        a.I('s_load_dwordx2 s[10:11], s[0:1], 80')
        flag_srd(sO)
        oflag_off('s4')
        a.I('v_mov_b32 v10, 0')
        a.I('v_mov_b32 v11, 1')
        a.I('s_waitcnt vmcnt(0) lgkmcnt(0)')
        a.I('s_barrier')
        a.I(f's_cmp_lg_u32 {sr(sWAVE)}, 0')
        a.I('s_cbranch_scc1 k1_nopub')
        a.I('s_mov_b64 exec, 1')
        a.I(f'buffer_store_dword v11, v10, {sr(sO, 4)}, s4 offen sc1')
        a.I('s_mov_b64 exec, -1')
        a.label('k1_nopub')
        return gen_k2s(a)
    a.label('k1_end')
    a.raw('s_endpgm')
    return a

def gen_k2():
    a = Asm()
    st = Stamper(a, 1)
    sO, sW, sD = 20, 24, 28
    sWAVE, sKQ, sMH, sBLK, sB, sNT = 40, 41, 42, 43, 44, 45
    sM0, sOW0, sOW1, sOB0, sOB1, sCNT = 46, 47, 48, 49, 50, 51
    sST, sROT = 52, 53
    vA = 1
    vDW, vB, vL16 = 5, 6, 7
    t0, t1, t2, t3, g = 8, 9, 10, 11, 12
    ACC, FA, BF = 16, 96, 128
    def acc(i, nt): return ACC + (i * 4 + nt) * 4
    a.raw('s_cmp_ge_u32 s2, 256')
    a.raw('s_cbranch_scc1 k2_end')
    st.real(); st.cyc()
    a.I('s_and_b32 s3, s2, 7')
    a.I('s_lshr_b32 s4, s2, 3')
    a.I(f's_lshr_b32 {sr(sBLK)}, s3, 2')
    a.I(f's_mul_i32 s5, {sr(sBLK)}, 40')
    a.I('s_add_u32 s5, s5, 32')
    a.I('s_load_dwordx2 s[8:9], s[0:1], s5')
    a.I('s_load_dwordx2 s[10:11], s[0:1], 80')
    a.I('s_load_dwordx2 s[16:17], s[0:1], 96')
    a.I('s_bfe_u32 s5, s3, 0x10001')
    a.I('s_lshl_b32 s5, s5, 2')
    a.I('s_and_b32 s6, s4, 3')
    a.I(f's_add_u32 {sr(sB)}, s5, s6')
    a.I('s_and_b32 s5, s3, 1')
    a.I('s_lshl_b32 s5, s5, 3')
    a.I('s_lshr_b32 s6, s4, 2')
    a.I(f's_add_u32 {sr(sNT)}, s5, s6')
    a.I(f'v_lshrrev_b32 {vr(t0)}, 6, v0')
    a.I(f'v_readfirstlane_b32 {sr(sWAVE)}, {vr(t0)} ; WAVEID')
    a.I('v_and_b32 v0, 63, v0')
    a.I(f's_and_b32 {sr(sKQ)}, {sr(sWAVE)}, 3')
    a.I(f's_lshr_b32 {sr(sMH)}, {sr(sWAVE)}, 2')
    a.I(f'v_lshrrev_b32 {vr(g)}, 4, v0')
    a.I(f'v_lshlrev_b32 {vr(vL16)}, 4, v0')
    a.I(f'v_bfe_u32 {vr(t0)}, v0, 1, 2')
    a.I(f'v_xor_b32 {vr(t0)}, {vr(t0)}, {vr(g)}')
    a.I(f'v_lshlrev_b32 {vr(t0)}, 5, {vr(t0)}')
    a.I(f'v_and_b32 {vr(t1)}, 1, v0')
    a.I(f'v_lshl_add_u32 {vr(t0)}, {vr(t1)}, 4, {vr(t0)}')
    a.I(f's_lshl_b32 s3, {sr(sKQ)}, 1')
    a.I(f's_add_u32 s3, s3, {sr(sMH)}')
    a.I(f's_lshl_b32 {sr(sM0)}, s3, 11')
    a.I('s_lshl_b32 s3, s3, 4')
    a.I(f'v_lshrrev_b32 {vr(t1)}, 3, v0')
    a.I(f'v_add_u32 {vr(t1)}, s3, {vr(t1)}')
    a.I(f'v_lshl_add_u32 {vr(vDW)}, {vr(t1)}, 11, {vr(t0)}')
    a.I(f's_mul_i32 s3, {sr(sKQ)}, 9216')
    a.I(f's_mul_i32 s4, {sr(sMH)}, 5120')
    a.I('s_add_u32 s3, s3, s4')
    a.I(f'v_add_u32 {vr(vB)}, s3, {vr(vL16)}')
    a.I(f's_mov_b32 {sr(sST)}, 0')
    a.I(f's_add_u32 {sr(sROT)}, {sr(sB)}, {sr(sNT)}')
    a.I(f'v_lshrrev_b32 {vr(t0)}, 2, v0')
    a.I(f'v_lshlrev_b32 {vr(t1)}, 7, {vr(t0)}')
    a.I(f'v_and_b32 {vr(t2)}, 3, v0')
    a.I(f'v_lshl_add_u32 {vr(t1)}, {vr(t2)}, 3, {vr(t1)}')
    a.I(f's_lshl_b32 s3, {sr(sKQ)}, 12')
    a.I(f'v_add_u32 {vr(t1)}, s3, {vr(t1)}')
    a.I(f'v_bfe_u32 {vr(t0)}, v0, 3, 2')
    for j in range(4):
        a.I(f's_add_u32 s4, {sr(sKQ)}, {j}')
        a.I('s_and_b32 s4, s4, 3')
        a.I(f'v_xor_b32 {vr(t2)}, s4, {vr(t0)}')
        a.I(f'v_lshl_add_u32 {vr(vA + j)}, {vr(t2)}, 5, {vr(t1)}')
    a.I('s_waitcnt lgkmcnt(0)')
    a.I(f's_lshl_b32 s3, {sr(sBLK)}, 3')
    a.I(f's_add_u32 s3, s3, {sr(sB)}')
    a.I(f's_mul_i32 s3, s3, {O_SLICE}')
    a.I(f's_add_u32 {sr(sO)}, s16, s3')
    a.I(f's_addc_u32 {sr(sO + 1)}, s17, 0')
    a.I(f's_mov_b32 {sr(sO + 2)}, {O_SLICE}')
    a.I(f's_mov_b32 {sr(sO + 3)}, 0x20000')
    a.I(f's_lshl_b32 s3, {sr(sNT)}, 7')
    a.I(f's_add_u32 {sr(sW)}, s8, s3')
    a.I(f's_addc_u32 {sr(sW + 1)}, s9, 0')
    a.I(f's_sub_u32 {sr(sW + 2)}, 8388608, s3')
    a.I(f's_mov_b32 {sr(sW + 3)}, 0x20000')
    a.I(f's_mul_i32 s3, {sr(sB)}, {144 * 4096}')
    a.I(f's_add_u32 {sr(sD)}, s10, s3')
    a.I(f's_addc_u32 {sr(sD + 1)}, s11, 0')
    a.I(f's_mov_b32 {sr(sD + 2)}, {144 * 4096}')
    a.I(f's_mov_b32 {sr(sD + 3)}, 0x20000')
    if OPT.get('pt2'):
        a.I(f's_lshl_b32 s3, {sr(sWAVE)}, 6')
        a.I(f'v_add_u32 {vr(t3)}, s3, v0')
        a.I(f'v_lshlrev_b32 {vr(t3)}, {OPT["pt2"]}, {vr(t3)}')
        a.I(f'buffer_load_dword v13, {vr(t3)}, {sr(sW, 4)}, 0 offen')
        a.I(f'buffer_load_dword v14, {vr(t3)}, {sr(sO, 4)}, 0 offen')
    a.I(f's_cmp_eq_u32 {sr(sMH)}, 1')
    a.I('s_cbranch_scc1 k2_m1')

    def wdma(slot):
        R = OPT['rot2']
        return [[f's_add_u32 {sr(sOB0)}, {sr(sST)}, {sr(sROT)}',
                 f's_and_b32 {sr(sOB0)}, {sr(sOB0)}, {R}',
                 f's_and_b32 {sr(sOW0)}, {sr(sST)}, {63 & ~R}',
                 f's_or_b32 {sr(sOB0)}, {sr(sOB0)}, {sr(sOW0)}',
                 f's_add_u32 m0, {sr(sM0)}, {slot * 16384}',
                 f's_lshl_b32 {sr(sOW0)}, {sr(sOB0)}, 18',
                 f'buffer_load_dwordx4 {vr(vDW)}, {sr(sW, 4)}, {sr(sOW0)} offen{NT("wont")} lds',
                 f's_add_u32 {sr(sOW0)}, {sr(sOW0)}, {16384 - 1024}'],
                [f'buffer_load_dwordx4 {vr(vDW)}, {sr(sW, 4)}, {sr(sOW0)} offen offset:1024{NT("wont")} lds',
                 f's_mul_i32 {sr(sOB0)}, {sr(sOB0)}, 36864',
                 f's_add_u32 {sr(sST)}, {sr(sST)}, 1',
                 f's_add_u32 {sr(sOB1)}, {sr(sOB0)}, 4096']]
    def bload(slot, i, nT):
        return [f'buffer_load_dwordx4 {vr(BF + slot * 20 + 4 * i, 4)}, {vr(vB)}, {sr(sO, 4)}, {sr(sOB0 if i < 4 else sOB1)} offen offset:{(i & 3) * 1024}{NT("oldnt")}']
    def areads(slot, F):
        return [f'ds_read_b64_tr_b16 {vr(F + 4 * j + 2 * h, 2)}, {vr(vA + j)} offset:{slot * 16384 + h * 2048}' for j in range(4) for h in range(2)]
    def body(nT, tag):
        a.lg = []
        for s in range(4):
            interleave(a, [], wdma(s))
            for i in range(nT): a.many(bload(s, i, nT))
            if OPT['ord'] and s < 3: a.I('s_barrier')
        for i in range(0, 16 * nT, 2): a.I(f'v_mov_b64 {vr(ACC + i, 2)}, 0')
        a.I(f's_waitcnt vmcnt({nT + 3 * (nT + 2)})')
        a.I('s_barrier')
        st0 = st.n
        st.cyc()
        a.many(areads(0, FA))
        a.I(f's_mov_b32 {sr(sCNT)}, 0')
        a.label(f'k2_loop_{tag}')
        for s in range(4):
            F, Fn = FA + 16 * (s & 1), FA + 16 * ((s + 1) & 1)
            a.I(f's_waitcnt vmcnt({nT + 2 * (nT + 2)}) lgkmcnt(0)')
            a.I('s_barrier')
            fill = wdma(s) + areads((s + 1) & 3, Fn)
            for i in range(nT):
                for j in range(4):
                    a.I(f'v_mfma_f32_16x16x32_bf16 {vr(acc(i, j), 4)}, {vr(F + 4 * j, 4)}, {vr(BF + s * 20 + 4 * i, 4)}, {vr(acc(i, j), 4)}')
                    if j < 3 and fill:
                        x = fill.pop(0)
                        a.many(x if isinstance(x, list) else [x])
                a.many(bload(s, i, nT))
            assert not fill
        a.I(f's_add_u32 {sr(sCNT)}, {sr(sCNT)}, 1')
        a.I(f's_cmp_lt_u32 {sr(sCNT)}, 8')
        a.I(f's_cbranch_scc1 k2_loop_{tag}')
        st.cyc()
        a.I('s_waitcnt vmcnt(0) lgkmcnt(0)')
        a.I('s_barrier')
        a.I(f's_mul_i32 s5, {sr(sMH)}, 61440')
        for jl in range(1, 4):
            a.I(f's_add_u32 s4, {sr(sKQ)}, {jl}')
            a.I('s_and_b32 s4, s4, 3')
            a.I('s_mul_i32 s4, s4, 15360')
            a.I('s_add_u32 s4, s4, s5')
            a.I(f'v_add_u32 {vr(t0)}, s4, {vr(vL16)}')
            for i in range(nT): a.I(f'ds_write_b128 {vr(t0)}, {vr(acc(i, jl), 4)} offset:{(jl - 1) * 5120 + i * 1024}')
        a.I(f's_mul_i32 s4, {sr(sKQ)}, 15360')
        a.I('s_add_u32 s4, s4, s5')
        a.I(f'v_add_u32 {vr(t0)}, s4, {vr(vL16)}')
        a.I(f'v_and_b32 {vr(t1)}, 15, v0')
        a.I(f'v_lshlrev_b32 {vr(t1)}, 12, {vr(t1)}')
        a.I(f'v_lshl_add_u32 {vr(t1)}, {vr(g)}, 3, {vr(t1)}')
        a.I(f's_lshl_b32 s3, {sr(sBLK)}, 11')
        a.I(f's_lshl_b32 s4, {sr(sNT)}, 7')
        a.I('s_add_u32 s3, s3, s4')
        a.I(f's_lshl_b32 s4, {sr(sKQ)}, 5')
        a.I('s_add_u32 s3, s3, s4')
        a.I(f's_mul_i32 s4, {sr(sMH)}, {5 * 65536}')
        a.I('s_add_u32 s3, s3, s4')
        a.I('s_waitcnt lgkmcnt(0)')
        a.I('s_barrier')
        for i in range(nT):
            for sl in range(3): a.I(f'ds_read_b128 {vr(BF + (i * 3 + sl) * 4, 4)}, {vr(t0)} offset:{sl * 5120 + i * 1024}')
            if i == 3: a.I('s_waitcnt lgkmcnt(6)')
        for i in range(nT):
            for sl in range(3):
                for k in range(4): a.I(f'v_add_f32 {vr(acc(i, 0) + k)}, {vr(acc(i, 0) + k)}, {vr(BF + (i * 3 + sl) * 4 + k)}')
            for k in range(2): a.I(f'v_cvt_pk_bf16_f32 {vr(acc(i, 0) + k)}, {vr(acc(i, 0) + 2 * k)}, {vr(acc(i, 0) + 2 * k + 1)}')
            a.I(f'buffer_store_dwordx2 {vr(acc(i, 0), 2)}, {vr(t1)}, {sr(sD, 4)}, s3 offen')
            a.I('s_add_u32 s3, s3, 65536')
        st.cyc(); st.real()
        st.flush(16, sWAVE, sW, t2)
        st.n = st0
    body(5, 'a')
    a.I('s_branch k2_end')
    a.label('k2_m1')
    body(4, 'b')
    a.label('k2_end')
    a.raw('s_endpgm')
    return a

def gen_k2s(a=None):
    FU = a is not None
    if not FU: a = Asm()
    st = Stamper(a, 1)
    MF = 'v_mfma_f32_16x16x32_bf16'
    sO, sW, sD, sE, sF = 20, 24, 28, 32, 36
    sWAVE, sR, sLD, sBLK, sB, sN8, sKH = 40, 41, 42, 43, 44, 45, 46
    sM0W, sM0X, sOW, sOX, sSL, sCNT, sT0, sST, sROT, sH, sNH, sKS = 47, 48, 49, 50, 51, 52, 53, 54, 55, 56, 57, 58
    sLINK = 6
    vWp, vX, vDW, vL16 = 1, 5, 6, 7
    g, n, t0, t1, t2 = 12, 13, 14, 15, 16
    ACC, XF, WF = 112, 76, 44
    XB = 65536
    def acc(t, j): return ACC + (t * 4 + j) * 4
    if not FU:
        a.raw('s_cmp_ge_u32 s2, 256')
        a.raw('s_cbranch_scc1 k2_end')
    st.real(); st.cyc()
    a.I('s_and_b32 s3, s2, 7')
    a.I('s_lshr_b32 s4, s2, 3')
    a.I(f's_lshr_b32 {sr(sBLK)}, s3, 2')
    if not FU:
        a.I(f's_mul_i32 s5, {sr(sBLK)}, 40')
        a.I('s_add_u32 s5, s5, 32')
        a.I('s_load_dwordx2 s[18:19], s[0:1], s5')
        a.I('s_load_dwordx2 s[10:11], s[0:1], 80')
        a.I('s_load_dwordx2 s[16:17], s[0:1], 96')
    a.I(f's_and_b32 {sr(sKH)}, s3, 1')
    a.I('s_and_b32 s5, s3, 2')
    a.I('s_lshl_b32 s5, s5, 1')
    a.I('s_and_b32 s6, s4, 3')
    a.I(f's_add_u32 {sr(sB)}, s5, s6')
    a.I(f's_lshr_b32 {sr(sN8)}, s4, 2')
    a.I(f's_add_u32 {sr(sROT)}, {sr(sB)}, {sr(sN8)}')
    if not FU:
        a.I(f'v_lshrrev_b32 {vr(t0)}, 6, v0')
        a.I(f'v_readfirstlane_b32 {sr(sWAVE)}, {vr(t0)} ; WAVEID')
        a.I('v_and_b32 v0, 63, v0')
    a.I(f's_and_b32 {sr(sR)}, {sr(sWAVE)}, 3')
    a.I(f's_lshr_b32 {sr(sLD)}, {sr(sWAVE)}, 2')
    a.I(f's_and_b32 {sr(sNH)}, {sr(sR)}, 1')
    a.I(f's_lshr_b32 {sr(sKS)}, {sr(sR)}, 1')
    a.I(f's_xor_b32 {sr(sH)}, {sr(sNH)}, {sr(sKS)}')
    a.I(f's_lshl_b32 {sr(sH)}, {sr(sH)}, 1')
    a.I(f's_or_b32 {sr(sH)}, {sr(sH)}, {sr(sKS)}')
    a.I(f'v_lshlrev_b32 {vr(vL16)}, 4, v0')
    a.I(f'v_and_b32 {vr(t0)}, 7, v0')
    a.I(f'v_xor_b32 {vr(t0)}, {sr(sH)}, {vr(t0)}')
    a.I(f'v_bfe_u32 {vr(t1)}, v0, 4, 1')
    a.I(f'v_lshlrev_b32 {vr(t1)}, 2, {vr(t1)}')
    a.I(f'v_xor_b32 {vr(t0)}, {vr(t0)}, {vr(t1)}')
    a.I(f'v_lshlrev_b32 {vr(t0)}, 4, {vr(t0)}')
    a.I(f'v_lshrrev_b32 {vr(t1)}, 5, v0')
    a.I(f'v_lshl_add_u32 {vr(t0)}, {vr(t1)}, 7, {vr(t0)}')
    a.I(f'v_bfe_u32 {vr(t1)}, v0, 3, 2')
    a.I(f's_lshl_b32 s3, {sr(sR)}, 2')
    a.I(f'v_add_u32 {vr(t1)}, s3, {vr(t1)}')
    a.I(f'v_lshl_add_u32 {vr(vDW)}, {vr(t1)}, 11, {vr(t0)}')
    a.I(f's_lshl_b32 {sr(sM0W)}, {sr(sR)}, 12')
    a.I(f's_lshl_b32 {sr(sM0X)}, {sr(sR)}, 10')
    a.I(f's_mov_b32 {sr(sST)}, 0')
    a.I('s_waitcnt lgkmcnt(0)')
    a.I(f's_lshl_b32 s3, {sr(sBLK)}, 3')
    a.I(f's_add_u32 s3, s3, {sr(sB)}')
    a.I('s_lshl_b32 s3, s3, 1')
    a.I(f's_add_u32 s3, s3, {sr(sKH)}')
    a.I(f's_mul_i32 s3, s3, {O_SLICE // 2}')
    a.I(f's_add_u32 {sr(sO)}, s16, s3')
    a.I(f's_addc_u32 {sr(sO + 1)}, s17, 0')
    a.I(f's_mov_b32 {sr(sO + 2)}, {O_SLICE // 2}')
    a.I(f's_mov_b32 {sr(sO + 3)}, 0x20000')
    a.I(f's_lshl_b32 s3, {sr(sN8)}, 8')
    a.I(f's_lshl_b32 s4, {sr(sKH)}, 22')
    a.I('s_add_u32 s3, s3, s4')
    a.I(f's_add_u32 {sr(sW)}, s18, s3')
    a.I(f's_addc_u32 {sr(sW + 1)}, s19, 0')
    a.I(f's_sub_u32 {sr(sW + 2)}, 8388608, s3')
    a.I(f's_mov_b32 {sr(sW + 3)}, 0x20000')
    a.I(f's_add_u32 {sr(sF)}, s16, {FLAG_OFF}')
    a.I(f's_addc_u32 {sr(sF + 1)}, s17, 0')
    a.I(f's_mov_b32 {sr(sF + 2)}, 98304')
    a.I(f's_mov_b32 {sr(sF + 3)}, 0x20000')
    a.I(f's_cmp_eq_u32 {sr(sLD)}, 0')
    a.I('s_cbranch_scc1 k2_comp')
    R = OPT['rot2']
    sSTX, sFO, sPC = 59, 60, 61
    vFA, vFV = 8, 9
    callw = f's_call_b64 {sr(sLINK, 2)}, k2_stw'
    callx = f's_call_b64 {sr(sLINK, 2)}, k2_stx'
    a.I(f's_mov_b32 {sr(sSTX)}, 0')
    if FU:
        a.I(f's_lshl_b32 {sr(sFO)}, {sr(sBLK)}, 3')
        a.I(f's_add_u32 {sr(sFO)}, {sr(sFO)}, {sr(sB)}')
        a.I(f's_lshl_b32 {sr(sFO)}, {sr(sFO)}, 1')
        a.I(f's_add_u32 {sr(sFO)}, {sr(sFO)}, {sr(sKH)}')
        a.I(f's_lshl_b32 {sr(sFO)}, {sr(sFO)}, 10')
        a.I(f's_add_u32 {sr(sFO)}, {sr(sFO)}, 65536')
        a.I(f'v_and_b32 {vr(vFA)}, 7, v0')
        a.I(f'v_lshlrev_b32 {vr(vFA)}, 7, {vr(vFA)}')
        a.I(f'v_mov_b32 {vr(vFV)}, 0')
        for _ in range(4): a.I(callw)
        a.I(callx); a.I(callx)
        a.I('s_waitcnt vmcnt(4)')
        a.I('s_barrier')
        st0 = st.n
        st.cyc()
        a.I(callx); a.I(callx)
        for nv in (8, 12):
            a.I(f's_waitcnt vmcnt({nv})')
            a.I('s_barrier')
            a.I(callw); a.I(callx)
        a.I(f's_mov_b32 {sr(sCNT)}, 2')
    else:
        for _ in range(2): a.I(callw); a.I(callx)
        a.I('s_waitcnt vmcnt(8)')
        a.I('s_barrier')
        st0 = st.n
        st.cyc()
        for _ in range(2): a.I(callw); a.I(callx)
        a.I(f's_mov_b32 {sr(sCNT)}, 0')
    a.label('k2_lloop')
    a.I('s_waitcnt vmcnt(16)')
    a.I('s_barrier')
    a.I(callw); a.I(callx)
    a.I(f's_add_u32 {sr(sCNT)}, {sr(sCNT)}, 1')
    a.I(f's_cmp_lt_u32 {sr(sCNT)}, 28')
    a.I('s_cbranch_scc1 k2_lloop')
    for nv in (16, 8, 0, 0):
        a.I(f's_waitcnt vmcnt({nv})')
        a.I('s_barrier')
    st.cyc(); st.cyc(); st.cyc(); st.cyc(); st.real()
    st.flush(16, sWAVE, sW, t1)
    a.I('s_endpgm')
    def phys(dst, cnt, tmp):
        a.many([f's_add_u32 {sr(dst)}, {sr(cnt)}, {sr(sROT)}',
                f's_and_b32 {sr(dst)}, {sr(dst)}, {R}',
                f's_and_b32 {sr(tmp)}, {sr(cnt)}, {31 & ~R}',
                f's_or_b32 {sr(dst)}, {sr(dst)}, {sr(tmp)}',
                f's_and_b32 {sr(sSL)}, {sr(cnt)}, 3'])
    a.label('k2_stw')
    phys(sOW, sST, sT0)
    a.many([f's_lshl_b32 {sr(sT0)}, {sr(sSL)}, 14',
            f's_add_u32 m0, {sr(sT0)}, {sr(sM0W)}',
            f's_lshl_b32 {sr(sOW)}, {sr(sOW)}, 17',
            f's_add_u32 {sr(sST)}, {sr(sST)}, 1'])
    for tq in range(4):
        a.I(f'buffer_load_dwordx4 {vr(vDW)}, {sr(sW, 4)}, {sr(sOW)} offen offset:{tq * 1024}{NT("wont")} lds')
        if tq < 3: a.I(f's_add_u32 {sr(sOW)}, {sr(sOW)}, {32768 - 1024}')
    a.I(f's_setpc_b64 {sr(sLINK, 2)}')
    a.label('k2_stx')
    phys(sOX, sSTX, sT0)
    if FU:
        assert R == 3
        fl = f'buffer_load_dword {vr(vFV)}, {vr(vFA)}, {sr(sF, 4)}, {sr(sFO)} offen sc1 ; NOCHECK'
        a.I(f's_cmp_eq_u32 {sr(sSL)}, 0')
        a.I('s_cbranch_scc1 k2_chk')
        a.I(f's_cmp_lg_u32 {sr(sSL)}, 1')
        a.I('s_cbranch_scc1 k2_go')
        a.I(fl)
        a.I('s_branch k2_go')
        a.label('k2_chk')
        a.I(f's_lshr_b32 s3, {sr(sSTX)}, 2')
        a.I(f's_mov_b32 {sr(sPC)}, 0')
        a.label('k2_chk2')
        a.I(f'v_cmp_eq_u32 vcc, 1, {vr(vFV)}')
        a.I('s_bitcmp1_b32 vcc_lo, s3')
        a.I('s_cbranch_scc1 k2_go ; TAKEN')
        a.I(fl)
        a.I(f's_add_u32 {sr(sPC)}, {sr(sPC)}, 1')
        a.I('s_waitcnt vmcnt(0)')
        a.I(f's_cmp_lt_u32 {sr(sPC)}, {OPT["pollmax"]}')
        a.I('s_cbranch_scc1 k2_chk2')
        a.label('k2_go')
    a.many([f's_mul_i32 {sr(sOX)}, {sr(sOX)}, 18432',
            f's_mul_i32 {sr(sT0)}, {sr(sSL)}, 18432',
            f's_add_u32 {sr(sOX)}, {sr(sOX)}, {sr(sM0X)}',
            f's_add_u32 {sr(sT0)}, {sr(sT0)}, {sr(sM0X)}',
            f's_add_u32 {sr(sSTX)}, {sr(sSTX)}, 1'])
    OL = NT('oldf') if FU else NT('oldnt')
    for i in range(5):
        if i == 4:
            a.I(f's_cmp_ge_u32 {sr(sR)}, 2')
            a.I('s_cbranch_scc1 k2_skipx')
        a.I(f's_add_u32 m0, {sr(sT0)}, {XB + i * 4096}')
        a.I(f'buffer_load_dwordx4 {vr(vL16)}, {sr(sO, 4)}, {sr(sOX)} offen{OL} lds')
        if i < 4: a.I(f's_add_u32 {sr(sOX)}, {sr(sOX)}, 4096')
    a.label('k2_skipx')
    a.I(f's_setpc_b64 {sr(sLINK, 2)}')
    a.label('k2_comp')
    st.n = st0
    a.lg = []
    a.I(f'v_lshrrev_b32 {vr(g)}, 4, v0')
    a.I(f'v_lshrrev_b32 {vr(t1)}, 1, {vr(g)}')
    a.I(f'v_xor_b32 {vr(t0)}, {vr(g)}, {vr(t1)}')
    a.I(f'v_and_b32 {vr(t0)}, 1, {vr(t0)}')
    a.I(f'v_lshl_or_b32 {vr(t0)}, {vr(t0)}, 1, {vr(t1)}')
    a.I(f'v_bfe_u32 {vr(t1)}, v0, 1, 1')
    a.I(f'v_xor_b32 {vr(t0)}, {vr(t0)}, {vr(t1)}')
    a.I(f'v_lshlrev_b32 {vr(t0)}, 4, {vr(t0)}')
    a.I(f'v_lshl_add_u32 {vr(t0)}, {vr(g)}, 12, {vr(t0)}')
    a.I(f'v_bfe_u32 {vr(t1)}, v0, 2, 2')
    a.I(f'v_lshl_add_u32 {vr(t0)}, {vr(t1)}, 7, {vr(t0)}')
    a.I(f'v_bfe_u32 {vr(t1)}, v0, 3, 1')
    a.I(f'v_xor_b32 {vr(t1)}, {sr(sKS)}, {vr(t1)}')
    a.I(f'v_lshl_add_u32 {vr(t0)}, {vr(t1)}, 6, {vr(t0)}')
    a.I(f'v_and_b32 {vr(t1)}, 1, v0')
    a.I(f'v_lshl_add_u32 {vr(t0)}, {vr(t1)}, 3, {vr(t0)}')
    a.I(f's_lshl_b32 s3, {sr(sNH)}, 9')
    a.I(f's_lshl_b32 s4, {sr(sKS)}, 11')
    a.I('s_add_u32 s3, s3, s4')
    a.I(f'v_add_u32 {vr(vWp)}, s3, {vr(t0)}')
    for j in range(1, 4): a.I(f'v_xor_b32 {vr(vWp + j)}, {32 * j}, {vr(vWp)}')
    a.I(f's_mul_i32 s3, {sr(sKS)}, 9216')
    a.I(f's_add_u32 s3, s3, {XB}')
    a.I(f'v_add_u32 {vr(vX)}, s3, {vr(vL16)}')
    for i in range(0, 144, 2): a.I(f'v_mov_b64 {vr(ACC + i, 2)}, 0')
    a.I(f's_add_u32 {sr(sE)}, s16, {EXCH_OFF}')
    a.I(f's_addc_u32 {sr(sE + 1)}, s17, 0')
    a.I(f's_mov_b32 {sr(sE + 2)}, {256 * 36864}')
    a.I(f's_mov_b32 {sr(sE + 3)}, 0x20000')
    a.I(f's_mul_i32 s3, {sr(sB)}, {144 * 4096}')
    a.I(f's_add_u32 {sr(sD)}, s10, s3')
    a.I(f's_addc_u32 {sr(sD + 1)}, s11, 0')
    a.I(f's_mov_b32 {sr(sD + 2)}, {144 * 4096}')
    a.I(f's_mov_b32 {sr(sD + 3)}, 0x20000')
    def xread(t, slot): return f'ds_read_b128 {vr(XF + 4 * t, 4)}, {vr(vX)} offset:{slot * 18432 + t * 1024}'
    def wreads(W, slot):
        return [f'ds_read_b64_tr_b16 {vr(W + 4 * j + 2 * h, 2)}, {vr(vWp + j)} offset:{slot * 16384 + h * 1024}' for j in range(4) for h in range(2)]
    GT = OPT['gate']
    def kstep(Wc, Wn, nslot):
        wr = wreads(Wn, nslot)
        for t in range(9):
            for j in range(4):
                a.I(f'{MF} {vr(acc(t, j), 4)}, {vr(Wc + 4 * j, 4)}, {vr(XF + 4 * t, 4)}, {vr(acc(t, j), 4)}')
                if t >= GT and j in (0, 2) and wr: a.I(wr.pop(0))
            if t == GT - 1:
                a.I('s_waitcnt lgkmcnt(0)')
                a.I('s_barrier')
                for tt in range(GT): a.I(xread(tt, nslot))
            elif t >= GT: a.I(xread(t, nslot))
        assert not wr
    W0, W1 = WF, WF + 16
    if OPT['cprio']: a.I(f's_setprio {OPT["cprio"]}')
    a.I('s_barrier')
    st.cyc()
    a.many(wreads(W0, 0))
    for t in range(9): a.I(xread(t, 0))
    a.I(f's_mov_b32 {sr(sCNT)}, 0')
    a.I('s_waitcnt lgkmcnt(0)')
    save = (a.ins, a.lg); a.ins = []; a.lg = []
    kstep(W1, W0, 0); lg0 = [set(x) for x in a.lg]
    a.ins, a.lg = save
    a.lg = [set(x) for x in lg0]
    a.label('k2_cloop')
    for i in range(4): kstep((W0, W1)[i & 1], (W1, W0)[i & 1], (i + 1) & 3)
    assert [set(x) for x in a.lg] == lg0
    a.I(f's_add_u32 {sr(sCNT)}, {sr(sCNT)}, 1')
    a.I(f's_cmp_lt_u32 {sr(sCNT)}, 8')
    a.I('s_cbranch_scc1 k2_cloop')
    st.cyc()
    TMP = 40
    a.I(f's_mul_i32 s3, {sr(sR)}, 18432')
    a.I(f'v_add_u32 {vr(t0)}, s3, {vr(vL16)}')
    a.I(f's_xor_b32 s4, {sr(sR)}, 2')
    a.I('s_mul_i32 s4, s4, 18432')
    a.I(f'v_add_u32 {vr(t1)}, s4, {vr(vL16)}')
    a.I('s_waitcnt lgkmcnt(0)')
    for t in range(9):
        for j in range(2): a.I(f'ds_write_b128 {vr(t0)}, {vr(acc(t, 2 + j), 4)} offset:{(t * 2 + j) * 1024}')
    a.I(f's_cmp_eq_u32 {sr(sNH)}, {sr(sKH)}')
    a.I('s_cselect_b32 s5, 1, 0')
    a.I('s_xor_b32 s3, s2, s5')
    a.I('s_lshl_b32 s3, s3, 1')
    a.I(f's_add_u32 s3, s3, {sr(sKS)}')
    a.I(f's_lshl_b32 {sr(sT0)}, s3, 7')
    a.I(f's_mul_i32 {sr(sOX)}, s3, 18432')
    a.I('s_waitcnt lgkmcnt(0)')
    a.I('s_barrier')
    for k in range(18):
        a.I(f'ds_read_b128 {vr(TMP + 4 * k, 4)}, {vr(t1)} offset:{k * 1024}')
        if k == 13: a.I('s_waitcnt lgkmcnt(8)')
    a.I('s_cmp_eq_u32 s5, 1')
    a.I('s_cbranch_scc1 k2_keep')
    lgs = [set(x) for x in a.lg]
    def addpk(t, j, src):
        for k in range(2): a.I(f'v_pk_add_f32 {vr(acc(t, j) + 2 * k, 2)}, {vr(acc(t, j) + 2 * k, 2)}, {vr(src + 2 * k, 2)}')
    XP = NT('xpol')
    for k in range(18):
        t, j = k >> 1, k & 1
        addpk(t, j, TMP + 4 * k)
        a.I(f'buffer_store_dwordx4 {vr(acc(t, j), 4)}, {vr(vL16)}, {sr(sE, 4)}, {sr(sOX)} offen offset:{(k & 3) * 1024}{XP}')
        if k & 3 == 3: a.I(f's_add_u32 {sr(sOX)}, {sr(sOX)}, 4096')
    stn = st.n
    st.cyc()
    a.I(f'v_mov_b32 {vr(t0)}, 0')
    a.I(f'v_mov_b32 {vr(t1)}, 1')
    a.I('s_mov_b64 exec, 1')
    a.I('s_waitcnt vmcnt(0)')
    st.cyc()
    a.I(f'buffer_store_dword {vr(t1)}, {vr(t0)}, {sr(sF, 4)}, {sr(sT0)} offen{XP}')
    a.I('s_mov_b64 exec, -1')
    st.cyc(); st.real()
    st.flush(16, sWAVE, sW, t1)
    a.I('s_endpgm')
    a.label('k2_keep')
    st.n = stn
    a.lg = lgs
    for k in range(18): addpk(k >> 1, k & 1, TMP + 4 * k)
    a.I(f'v_and_b32 {vr(t2)}, 15, v0')
    a.I(f'v_lshlrev_b32 {vr(t2)}, 12, {vr(t2)}')
    a.I(f'v_lshl_add_u32 {vr(t2)}, {vr(g)}, 4, {vr(t2)}')
    a.I(f's_lshl_b32 s3, {sr(sBLK)}, 11')
    a.I(f's_lshl_b32 s4, {sr(sN8)}, 8')
    a.I('s_add_u32 s3, s3, s4')
    a.I(f's_lshl_b32 s4, {sr(sNH)}, 7')
    a.I('s_add_u32 s3, s3, s4')
    a.I(f's_lshl_b32 s4, {sr(sKS)}, 6')
    a.I('s_add_u32 s3, s3, s4')
    a.I(f'v_mov_b32 {vr(t0)}, 0')
    a.I(f's_mov_b32 {sr(sCNT)}, 0')
    st.cyc()
    a.label('k2_poll')
    a.I(f'buffer_load_dword {vr(t1)}, {vr(t0)}, {sr(sF, 4)}, {sr(sT0)} offen{XP}')
    a.I(f's_add_u32 {sr(sCNT)}, {sr(sCNT)}, 1')
    a.I('s_waitcnt vmcnt(0)')
    a.I(f'v_cmp_eq_u32 vcc, 1, {vr(t1)}')
    a.I('s_cbranch_vccnz k2_got ; POLL')
    a.I(f's_cmp_lt_u32 {sr(sCNT)}, {OPT["pollmax"]}')
    a.I('s_cbranch_scc1 k2_poll')
    a.label('k2_got')
    st.cyc()
    for k in range(18):
        a.I(f'buffer_load_dwordx4 {vr(TMP + 4 * k, 4)}, {vr(vL16)}, {sr(sE, 4)}, {sr(sOX)} offen offset:{(k & 3) * 1024}{XP}')
        if k & 3 == 3: a.I(f's_add_u32 {sr(sOX)}, {sr(sOX)}, 4096')
    for t in range(9):
        a.I(f's_waitcnt vmcnt({16 - 2 * t + t})')
        for j in range(2): addpk(t, j, TMP + 4 * (2 * t + j))
        d = acc(t, 0)
        for k in range(4): a.I(f'v_cvt_pk_bf16_f32 {vr(d + k)}, {vr(d + 2 * k)}, {vr(d + 2 * k + 1)}')
        for mn in ('v_permlane32_swap_b32', 'v_permlane16_swap_b32'):
            for k in range(2): a.I(f'{mn} {vr(d + k)}, {vr(d + 2 + k)}')
        a.I(f'buffer_store_dwordx4 {vr(d, 4)}, {vr(t2)}, {sr(sD, 4)}, s3 offen{NT("outp")}')
        a.I('s_add_u32 s3, s3, 65536')
    st.cyc(); st.real()
    st.flush(16, sWAVE, sW, t0)
    a.label('k1_end' if FU else 'k2_end')
    a.raw('s_endpgm')
    return a

HEADER = open(f'cdna_kernels/{NAME}.s.ref').read().split('; Override launch')[0]
def kd(name, vg, sg=102):
    return f'''.amdhsa_kernel {name}
  .amdhsa_next_free_vgpr {vg}
  .amdhsa_next_free_sgpr {sg}
  .amdhsa_accum_offset {(min(vg, 256) + 3) // 4 * 4}
  .amdhsa_group_segment_fixed_size 0
  .amdhsa_kernarg_size 104
  .amdhsa_user_sgpr_count 2
  .amdhsa_user_sgpr_kernarg_segment_ptr 1
  .amdhsa_system_sgpr_workgroup_id_x 1
.end_amdhsa_kernel
'''
def main():
    ks = [('attn_kernel', gen_k1(), 256, 163840), (('oproj_kernel', gen_k2s(), 256, 139264) if OPT['s2'] else ('oproj_kernel', gen_k2(), 208, 131072))]
    out = HEADER
    if OPT['fuse']:
        ks = [(NAME + '_kernel', ks[0][1], 256, 163840)]
        out += '; @launch grid=(256,1,1) block=(512,1,1) lds=163840\n'
    else:
        for nm, _, _, lds in ks:
            out += f'; @launch kernel={nm} grid=(256,1,1) block=(512,1,1) lds={lds}\n'
    out += '.amdgcn_target "amdgcn-amd-amdhsa--gfx950"\n.text\n'
    for nm, a, vg, lds in ks:
        if OPT.get('novm'):
            seen = False; keep = []
            for x in a.ins:
                if x.mn == 's_barrier': seen = True
                if x.label in ('k2_m1',): seen = False
                if x.label == 'k2_cloop': seen = False; OPT['_stop'] = 1
                if OPT.get('_stop'): seen = False
                if seen and x.kind == 'vmem' and 'load' in x.mn: continue
                keep.append(x)
            a.ins = keep
        if OPT.get('nokv'): a.ins = [x for x in a.ins if not (x.kind == 'vmem' and x.mn == 'buffer_load_dwordx4' and not x.lds and 'nt' in x.mods)]
        if OPT.get('nomfma'): a.ins = [x for x in a.ins if x.kind != 'mfma']
        if OPT.get('nods'): a.ins = [x for x in a.ins if not (x.kind == 'ds' and 'read' in x.mn)]
        n = a.pad_hazards(verbose=bool(OPT.get('v')))
        errs = 0; nbs = set()
        for wave in range(8):
            for pol in (lambda i, x: 'POLL' in x.text, lambda i, x: True):
              for wgid in (3, 4, 5):
                tr = a.trace(wgid, wave, pol)
                e, nb = a.verify_waits(tr, quiet=(errs > 0 or bool(OPT.get('novm')) or OPT['stamp'] == 4)); errs += e; nbs.add(nb)
        assert (len(nbs) == 1 or (max(nbs) - min(nbs) == 1 and len(nbs) == 2 and OPT['s2'])) and (errs == 0 or OPT.get('novm') or OPT['stamp'] == 4), (nbs, errs)
        print(f'{nm}: {len(a.ins)} lines, nops added {n}, wait errors {errs}, barriers {nb}, trace len {len(tr)}', file=sys.stderr)
        out += f'.globl {nm}\n.p2align 8\n.type {nm},@function\n{nm}:\n' + a.text()
    out += '.section .rodata,"a"\n'
    for nm, a, vg, lds in ks:
        out += '.p2align 6\n' + kd(nm, vg)
    open(sys.argv[1], 'w').write(out)
main()
```

```python
import sys, math, struct
from asmlib import *

NAME = 'concat_heads__mha_block_cached__mha_block_cached__near_ridge'
OPT = dict(stamp=0, kvnt=1, wnt=0, xnt=0, ont=2, wont=0, oldnt=0, rot1=3, rot2=3, wopf=3, ord=1, desync=1, pre1=1, gate=2, cprio=1, tail=1, rotc=0, rhh=0, vfirst=1, hpmap=2, s2=1, fuse=1, gate2=0, lw2=4, sbar=3, ssplit=1, ntm=255, oldf=2, cpf=1, sy=4, nimm=3, aux0=0, auxs=1, pp=0, mv=0, nwo=16, pfp=0, xpol=2, outp=0, pollmax=100000, qprio=1, rs0=10, rs1=13, stag=1, aprio=1, pS=0, pM=0, pV=0, smfirst=0)
for a in sys.argv[2:]:
    k, v = a.split('='); OPT[k] = int(v) if v.lstrip('-').isdigit() else v

def fbits(x): return '0x%08x' % struct.unpack('<I', struct.pack('<f', x))[0]
NT = lambda k: {0: '', 1: ' nt', 2: ' sc1', 3: ' sc0 sc1', 4: ' sc1 nt'}[OPT[k]]
APOL = lambda kind, j: ' nt' if (OPT['ntm'] >> (j + (4 if kind == 'V' else 0))) & 1 else ''
THRV = '0x7f800000' if OPT.get('novm') else fbits(8.0)
O_SLICE = 128 * 9216
STAMP_OFF = 64 << 20
EXCH_OFF = 32 << 20
FLAG_OFF = 48 << 20

class Stamper:
    def __init__(self, a, region):
        self.a = a; self.n = 0; self.region = region
    def real(self):
        if OPT['stamp'] == 4 and self.region == 0 and self.n: return
        if OPT['stamp']:
            self.a.I(f's_memrealtime {sr(76 + 2 * self.n, 2)}'); self.n += 1
    def cyc(self):
        if OPT['stamp'] == 4 and self.region == 0:
            self.a.raw('s_waitcnt lgkmcnt(0)'); self.sh(); return
        if OPT['stamp']:
            self.a.I(f's_memtime {sr(76 + 2 * self.n, 2)}'); self.n += 1
    def sh(self):
        if OPT['stamp'] == 4 and self.region == 0:
            for i in range(13): self.a.raw(f's_mov_b32 s{80 + i}, s{81 + i}')
            self.a.raw('s_mov_b32 s93, s98')
            self.a.raw('s_memtime s[98:99]')
    def flush(self, s_ws, s_wave, srd, vt):
        if not OPT['stamp']: return
        a = self.a
        regs = [76 + 2 * i for i in range(self.n)]
        if OPT['stamp'] == 4 and self.region == 0:
            regs = [76] + list(range(81, 94)) + [98]; self.n = 0
        assert self.n <= 12
        a.I('s_waitcnt vmcnt(0) lgkmcnt(0)')
        a.I(f's_add_u32 {sr(srd)}, {sr(s_ws)}, {STAMP_OFF + self.region * (1 << 20)}')
        a.I(f's_addc_u32 {sr(srd + 1)}, {sr(s_ws + 1)}, 0')
        a.I(f's_mov_b32 {sr(srd + 2)}, {1 << 20}')
        a.I(f's_mov_b32 {sr(srd + 3)}, 0x20000')
        a.I(f's_lshl_b32 s3, s2, 3')
        a.I(f's_add_u32 s3, s3, {sr(s_wave)}')
        a.I(f's_lshl_b32 s3, s3, 6')
        a.I(f'v_mov_b32 {vr(vt)}, 0')
        a.I(f'v_mov_b32 {vr(vt + 1)}, {self.n}')
        a.I(f'buffer_store_dword {vr(vt + 1)}, {vr(vt)}, {sr(srd, 4)}, s3 offen offset:60')
        a.I('s_nop 1')
        for i in range(len(regs)):
            a.I(f'v_mov_b32 {vr(vt + 1)}, {sr(regs[i])}')
            a.I(f'buffer_store_dword {vr(vt + 1)}, {vr(vt)}, {sr(srd, 4)}, s3 offen offset:{4 * i}')
            a.I('s_nop 1')

def gen_k1():
    a = Asm()
    st = Stamper(a, 0)
    MF = 'v_mfma_f32_16x16x32_bf16'
    sX, sW, sK, sV, sO = 20, 24, 28, 32, 36
    sWAVE, sR, sHH, sBLK, sB, sHP = 40, 41, 42, 43, 44, 45
    sM0W, sM0X, sOW, sOX, sLOOSE, sNEXT, sKVI = 46, 47, 48, 49, 50, 51, 52
    sSLW, sSLX = 53, 54
    sCNT, sT0, sT1 = 55, 56, 57
    sKP, sVP, sM0A, sDK, sDV, sOV, sOK = 58, 59, 60, 62, 63, 64, 65
    sTHR, sTHR8, sCL, sCL8 = 66, 67, 68, 69
    sC = 70
    sKPo, sVPo = 72, 73
    sST, sROT = 74, 75
    sLINK = 6
    sH = 61
    sPFO, sMK, sMV = 48, 50, 51
    sJ = 47
    sRS, sRC = 46, 61
    vKa, vVa, vD = 1, 3, 7
    mx, mx8, tA, tB = 8, 9, 10, 11
    ONES, NEGM, Q, S, POOL, O = 12, 16, 28, 76, 116, 148
    ACC, XF, WF = 112, 76, 44
    XB, QB = 49152, 49152
    HB1 = 114688
    def acc(t, j): return ACC + (t * 4 + j) * 4
    def o_(T, d): return O + (T * 9 + (d + 1) % 9) * 4
    JUNK = O + 3
    def q_(T, k): return Q + (T * 4 + k) * 4
    def s_(T, j, tt=0): return S + (T * 2 + j) * 8 + tt * 4 if T < 2 else S + 32 + tt * 4
    def negm(T): return NEGM + 4 * T
    kvreg = {'K0': 160, 'V0': 192, 'K1': 76, 'V1': 108}
    g, n, t0, t1, t2, t3 = 12, 13, 14, 15, 16, 17

    def hfun(dst, src, tmp):
        a.I(f'v_lshrrev_b32 {vr(tmp)}, 1, {vr(src)}')
        a.I(f'v_xor_b32 {vr(dst)}, {vr(src)}, {vr(tmp)}')
        a.I(f'v_and_b32 {vr(dst)}, 1, {vr(dst)}')
        a.I(f'v_lshl_or_b32 {vr(dst)}, {vr(dst)}, 1, {vr(tmp)}')
    def tr_pattern(dst):
        a.I(f'v_lshrrev_b32 {vr(g)}, 4, v0')
        hfun(t0, g, t1)
        a.I(f'v_bfe_u32 {vr(t1)}, v0, 1, 1')
        a.I(f'v_xor_b32 {vr(t0)}, {vr(t0)}, {vr(t1)}')
        a.I(f'v_lshlrev_b32 {vr(t0)}, 4, {vr(t0)}')
        a.I(f'v_lshl_add_u32 {vr(t0)}, {vr(g)}, 12, {vr(t0)}')
        a.I(f'v_bfe_u32 {vr(t1)}, v0, 2, 2')
        a.I(f'v_lshl_add_u32 {vr(t0)}, {vr(t1)}, 7, {vr(t0)}')
        a.I(f'v_bfe_u32 {vr(t1)}, v0, 3, 1')
        a.I(f'v_lshl_add_u32 {vr(t0)}, {vr(t1)}, 6, {vr(t0)}')
        a.I(f'v_and_b32 {vr(t1)}, 1, v0')
        a.I(f'v_lshl_add_u32 {vr(dst)}, {vr(t1)}, 3, {vr(t0)}')

    a.raw('s_cmp_ge_u32 s2, 256')
    a.raw('s_cbranch_scc1 k1_end')
    st.real(); st.cyc()
    a.I('s_and_b32 s3, s2, 7')
    a.I('s_lshr_b32 s4, s2, 3')
    a.I(f's_lshr_b32 {sr(sBLK)}, s3, 2')
    a.I(f's_mul_i32 s5, {sr(sBLK)}, 40')
    a.I('s_load_dwordx8 s[8:15], s[0:1], s5')
    a.I('s_load_dwordx2 s[16:17], s[0:1], 96')
    a.I('s_add_u32 s5, s5, 32')
    a.I('s_load_dwordx2 s[18:19], s[0:1], s5')
    if OPT['fuse']: a.I('s_load_dwordx2 s[100:101], s[0:1], 88')
    a.I('s_and_b32 s5, s4, 3')
    if OPT['hpmap'] == 2: a.I('s_add_u32 s3, s3, s5')
    a.I('s_and_b32 s3, s3, 3')
    a.I(f's_lshl_b32 {sr(sHP)}, s5, 2')
    a.I(f's_add_u32 {sr(sHP)}, {sr(sHP)}, s3')
    a.I(f's_lshr_b32 {sr(sB)}, s4, 2')
    a.I(f's_add_u32 {sr(sROT)}, {sr(sB)}, s5')
    a.I(f'v_lshrrev_b32 {vr(t0)}, 6, v0')
    a.I(f'v_readfirstlane_b32 {sr(sWAVE)}, {vr(t0)} ; WAVEID')
    a.I('v_and_b32 v0, 63, v0')
    a.I(f's_and_b32 {sr(sR)}, {sr(sWAVE)}, 3')
    a.I(f's_lshr_b32 {sr(sHH)}, {sr(sWAVE)}, 2')
    a.I(f's_lshr_b32 s3, {sr(sR)}, 1')
    a.I(f's_xor_b32 {sr(sH)}, {sr(sR)}, s3')
    a.I(f's_and_b32 {sr(sH)}, {sr(sH)}, 1')
    a.I(f's_lshl_b32 {sr(sH)}, {sr(sH)}, 1')
    a.I(f's_or_b32 {sr(sH)}, {sr(sH)}, s3')
    a.I(f'v_and_b32 {vr(t0)}, 7, v0')
    a.I(f'v_xor_b32 {vr(t0)}, {sr(sH)}, {vr(t0)}')
    a.I(f'v_bfe_u32 {vr(t1)}, v0, 4, 1')
    a.I(f'v_lshlrev_b32 {vr(t1)}, 2, {vr(t1)}')
    a.I(f'v_xor_b32 {vr(t0)}, {vr(t0)}, {vr(t1)}')
    a.I(f'v_lshlrev_b32 {vr(t0)}, 4, {vr(t0)}')
    a.I(f'v_lshrrev_b32 {vr(t1)}, 5, v0')
    a.I(f'v_lshl_add_u32 {vr(t0)}, {vr(t1)}, 7, {vr(t0)}')
    a.I(f'v_lshrrev_b32 {vr(g)}, 4, v0')
    a.I(f'v_bfe_u32 {vr(t1)}, v0, 3, 2')
    a.I(f's_lshl_b32 s3, {sr(sR)}, 4')
    a.I(f'v_add_u32 {vr(t1)}, s3, {vr(t1)}')
    a.I(f'v_lshl_add_u32 {vr(vD)}, {vr(t1)}, 8, {vr(t0)}')
    vDW, vDX = 8, 9
    a.I(f'v_lshl_add_u32 {vr(vDW)}, {vr(t1)}, 13, {vr(t0)}')
    a.I(f's_lshl_b32 s3, {sr(sR)}, 2')
    a.I(f'v_add_u32 {vr(t0)}, s3, {vr(g)}')
    a.I(f'v_and_b32 {vr(t0)}, 7, {vr(t0)}')
    a.I(f'v_and_b32 {vr(t1)}, 2, {vr(t0)}')
    a.I(f'v_lshlrev_b32 {vr(t1)}, 1, {vr(t1)}')
    a.I(f'v_xor_b32 {vr(t0)}, {vr(t0)}, {vr(t1)}')
    a.I(f'v_and_b32 {vr(t1)}, 7, v0')
    a.I(f'v_xor_b32 {vr(t0)}, {vr(t0)}, {vr(t1)}')
    a.I(f'v_lshlrev_b32 {vr(t0)}, 4, {vr(t0)}')
    a.I(f'v_lshrrev_b32 {vr(t1)}, 3, v0')
    a.I(f's_lshl_b32 s3, {sr(sR)}, 3')
    a.I(f'v_add_u32 {vr(t1)}, s3, {vr(t1)}')
    a.I(f'v_lshl_add_u32 {vr(vDX)}, {vr(t1)}, 11, {vr(t0)}')
    a.I(f's_lshl_b32 {sr(sM0W)}, {sr(sR)}, 12')
    a.I(f's_lshl_b32 {sr(sM0X)}, {sr(sR)}, 10')
    a.I(f's_add_u32 {sr(sM0X)}, {sr(sM0X)}, {XB}')
    a.I(f's_mul_i32 {sr(sM0A)}, {sr(sHH)}, 81920')
    a.I(f's_add_u32 {sr(sM0A)}, {sr(sM0A)}, {sr(sM0W)}')
    a.I(f's_mov_b32 {sr(sST)}, 0')
    a.I(f's_mov_b32 {sr(sSLW)}, 0')
    a.I(f's_mov_b32 {sr(sSLX)}, 0')
    a.I(f's_and_b32 {sr(sRC)}, {sr(sROT)}, {OPT["rotc"]}')
    a.I(f's_lshl_b32 {sr(sRC)}, {sr(sRC)}, 14')
    a.I('s_waitcnt lgkmcnt(0)')
    a.I(f's_mul_i32 s3, {sr(sB)}, 294912')
    a.I(f's_add_u32 {sr(sX)}, s8, s3')
    a.I(f's_addc_u32 {sr(sX + 1)}, s9, 0')
    a.I(f's_mov_b32 {sr(sX + 2)}, 294912')
    a.I(f's_mov_b32 {sr(sX + 3)}, 0x20000')
    a.I(f's_lshl_b32 s3, {sr(sHP)}, 9')
    a.I(f's_add_u32 {sr(sW)}, s14, s3')
    a.I(f's_addc_u32 {sr(sW + 1)}, s15, 0')
    a.I(f's_sub_u32 {sr(sW + 2)}, 8388608, s3')
    a.I(f's_mov_b32 {sr(sW + 3)}, 0x20000')
    a.I(f's_lshl_b32 s3, {sr(sB)}, 4')
    a.I(f's_add_u32 s3, s3, {sr(sHP)}')
    a.I('s_lshl_b32 s3, s3, 18')
    for (d, p) in ((sK, 10), (sV, 12)):
        a.I(f's_add_u32 {sr(d)}, {sr(p)}, s3')
        a.I(f's_addc_u32 {sr(d + 1)}, {sr(p + 1)}, 0')
        a.I(f's_mov_b32 {sr(d + 2)}, 262144')
        a.I(f's_mov_b32 {sr(d + 3)}, 0x20000')
    a.I(f's_cmp_eq_u32 {sr(sHH)}, 0')
    a.I('s_cbranch_scc1 k1_comp')

    def flag_srd(d):
        a.I(f's_add_u32 {sr(d)}, s16, {FLAG_OFF}')
        a.I(f's_addc_u32 {sr(d + 1)}, s17, 0')
        a.I(f's_mov_b32 {sr(d + 2)}, 98304')
        a.I(f's_mov_b32 {sr(d + 3)}, 0x20000')
    def dbg_srd(d):
        a.I(f's_mov_b32 {sr(d)}, s100')
        a.I(f's_mov_b32 {sr(d + 1)}, s101')
        a.I(f's_mov_b32 {sr(d + 2)}, 256')
        a.I(f's_mov_b32 {sr(d + 3)}, 0x20000')
    def oflag_off(d):
        a.I(f's_lshl_b32 {d}, {sr(sBLK)}, 3')
        a.I(f's_add_u32 {d}, {d}, {sr(sB)}')
        a.I(f's_lshl_b32 {d}, {d}, 4')
        a.I(f's_add_u32 {d}, {d}, {sr(sHP)}')
        a.I(f's_lshl_b32 {d}, {d}, 7')
        a.I(f's_add_u32 {d}, {d}, 65536')
    def wo_srd():
        a.I(f's_lshl_b32 s3, {sr(sB)}, 4')
        a.I(f's_add_u32 s3, s3, {sr(sHP)}')
        a.I('s_lshl_b32 s3, s3, 16')
        a.I(f's_add_u32 {sr(sX)}, s18, s3')
        a.I(f's_addc_u32 {sr(sX + 1)}, s19, 0')
        a.I(f's_mov_b32 {sr(sX + 2)}, 65536')
    def choff(dst, c, hq):
        a.I(f's_add_u32 {sr(dst)}, {sr(sRC)}, {(c + OPT["rhh"] * hq) * 16384}')
        a.I(f's_and_b32 {sr(dst)}, {sr(dst)}, 0x1ffff')
        if hq: a.I(f's_add_u32 {sr(dst)}, {sr(dst)}, 131072')
    def stage_w():
        R = OPT['rot1']
        a.many([f's_add_u32 {sr(sOX)}, {sr(sST)}, {sr(sROT)}',
                f's_and_b32 {sr(sOX)}, {sr(sOX)}, {R}',
                f's_and_b32 {sr(sOW)}, {sr(sST)}, {15 & ~R}',
                f's_or_b32 {sr(sOX)}, {sr(sOX)}, {sr(sOW)}',
                f's_add_u32 {sr(sT0)}, {sr(sM0W)}, {sr(sSLW)}',
                f's_lshl_b32 {sr(sOW)}, {sr(sOX)}, 19',
                f's_lshl_b32 {sr(sOX)}, {sr(sOX)}, 7',
                f's_add_u32 {sr(sST)}, {sr(sST)}, 1'])
        for tq in range(4):
            a.I(f's_mov_b32 m0, {sr(sT0)}')
            a.I(f'buffer_load_dwordx4 {vr(vDW)}, {sr(sW, 4)}, {sr(sOW)} offen offset:{tq * 1024}{NT("wnt")} lds')
            a.I(f's_add_u32 m0, {sr(sT0)}, {HB1 - 256}')
            a.I(f'buffer_load_dwordx4 {vr(vDW)}, {sr(sW, 4)}, {sr(sOW)} offen offset:{tq * 1024 + 256}{NT("wnt")} lds')
            if tq < 3: a.I(f's_add_u32 {sr(sOW)}, {sr(sOW)}, {32768 - 1024}')
    def stage_x():
        a.I(f's_add_u32 {sr(sT0)}, {sr(sM0X)}, {sr(sSLX)}')
        lb = a.newlabel('k1_skipx')
        for i in range(5):
            if i == 4:
                a.I(f's_cmp_ge_u32 {sr(sR)}, 2')
                a.I(f's_cbranch_scc1 {lb}')
            a.I(f's_add_u32 m0, {sr(sT0)}, {i * 4096}')
            a.I(f'buffer_load_dwordx4 {vr(vDX)}, {sr(sX, 4)}, {sr(sOX)} offen{NT("xnt")} lds')
            if i < 4: a.I(f's_add_u32 {sr(sOX)}, {sr(sOX)}, 65536')
        a.label(lb)
        a.I(f's_add_u32 {sr(sSLW)}, {sr(sSLW)}, 16384')
        a.I(f's_add_u32 {sr(sSLX)}, {sr(sSLX)}, 18432')
        a.I(f's_cmp_eq_u32 {sr(sSLW)}, 49152')
        a.I(f's_cselect_b32 {sr(sSLW)}, 0, {sr(sSLW)}')
        a.I(f's_cselect_b32 {sr(sSLX)}, 0, {sr(sSLX)}')
    a.I(f's_call_b64 {sr(sLINK, 2)}, k1_stage')
    stage_w_only = OPT['pre1']
    if stage_w_only:
        stage_w()
        a.I('s_waitcnt vmcnt(8)')
        a.I('s_barrier')
        stage_x()
    else:
        a.I('s_waitcnt vmcnt(0)')
        a.I('s_barrier')
        a.I(f's_call_b64 {sr(sLINK, 2)}, k1_stage')
    st0 = st.n
    st.cyc()
    a.I(f's_call_b64 {sr(sLINK, 2)}, k1_stage')
    a.I(f's_mul_i32 s3, s2, 171')
    a.I(f's_lshr_b32 s3, s3, 9')
    a.I(f's_mul_i32 s3, s3, 3')
    a.I(f's_sub_u32 {sr(sNEXT)}, s2, s3')
    if not OPT['desync']: a.I(f's_mov_b32 {sr(sNEXT)}, 0')
    a.I(f's_mov_b32 {sr(sLOOSE)}, 0')
    a.I(f's_mov_b32 {sr(sKVI)}, 0')
    a.I(f's_mov_b32 {sr(sCNT)}, 0')
    def lbar():
        lb = a.newlabel('k1_loose')
        a.I(f's_cmp_gt_i32 {sr(sLOOSE)}, 0')
        a.I(f's_cbranch_scc1 {lb}')
        a.I('s_waitcnt vmcnt(12)')
        a.label(lb)
        a.I(f's_sub_i32 {sr(sLOOSE)}, {sr(sLOOSE)}, 1')
        a.I('s_waitcnt vmcnt(20)')
        a.I('s_barrier')
    a.label('k1_lloop')
    lbar()
    a.I(f's_call_b64 {sr(sLINK, 2)}, k1_stage')
    a.I(f's_cmp_lg_u32 {sr(sCNT)}, {sr(sNEXT)}')
    a.I('s_cbranch_scc1 k1_kvdone')
    a.I(f's_add_u32 {sr(sNEXT)}, {sr(sNEXT)}, 3')
    a.I(f's_add_u32 {sr(sKVI)}, {sr(sKVI)}, 1')
    for m, it in enumerate(('K0', 'V0', 'K1', 'V1')):
        a.I(f's_cmp_lg_u32 {sr(sKVI)}, {m + 1}')
        a.I(f's_cbranch_scc1 k1_kv{m + 1}')
        a.I(f's_mov_b32 {sr(sLOOSE)}, 2')
        for hq in range(2):
            a.I(f's_mov_b32 {sr(sT0)}, {int(it[1]) * 16384 + hq * 131072}')
            for j in range(4):
                a.I(f'buffer_load_dwordx4 {vr(kvreg[it] + 16 * hq + 4 * j, 4)}, {vr(vD)}, {sr(sK if it[0] == "K" else sV, 4)}, {sr(sT0)} offen offset:{j * 1024}{NT("kvnt")}')
        if m < 3: a.I('s_branch k1_kvdone')
        a.label(f'k1_kv{m + 1}')
    a.label('k1_kvdone')
    a.I(f's_add_u32 {sr(sCNT)}, {sr(sCNT)}, 1')
    a.I(f's_cmp_lt_u32 {sr(sCNT)}, 13')
    a.I('s_cbranch_scc1 k1_lloop')
    a.I(f's_add_u32 s3, {sr(sM0W)}, 16384')
    a.I(f'v_lshl_add_u32 {vr(tA)}, v0, 4, s3')
    a.I(f'v_add_u32 {vr(tB)}, {81920 + 32768}, {vr(tA)}')
    a.I(f'v_add_u32 {vr(mx)}, {81920 - 16384}, {vr(tA)}')
    def kvwrite(it, off, b1=tB, off1=None):
        for hq in range(2):
            o = off if (hq == 0 or off1 is None) else off1
            for j in range(4): a.I(f'ds_write_b128 {vr((tA, b1)[hq])}, {vr(kvreg[it] + 16 * hq + 4 * j, 4)} offset:{o + j * 1024}')
    lbar()
    npf = 0
    if OPT['wopf'] == 3:
        wo_srd()
        a.I(f'v_lshlrev_b32 {vr(t1)}, 4, v0')
        a.I(f's_lshl_b32 {sr(sT0)}, {sr(sR)}, 14')
        for k in range(OPT['nwo']):
            a.I(f'buffer_load_dwordx4 v[224:227], {vr(t1)}, {sr(sX, 4)}, {sr(sT0)} offen offset:{(k & 3) * 1024} ; NOCHECK')
            if k & 3 == 3: a.I(f's_add_u32 {sr(sT0)}, {sr(sT0)}, 4096')
            npf += 1
            if k == 7: kvwrite('K0', 0); a.I(f's_waitcnt vmcnt({npf})'); a.I('s_barrier')
    else:
        kvwrite('K0', 0)
        a.I('s_waitcnt vmcnt(0)')
        a.I('s_barrier')
    kvwrite('V0', 16384)
    a.I('s_barrier')
    a.I('s_waitcnt vmcnt(0)')
    st.cyc()
    a.I('s_branch k1_join')

    a.label('k1_stage')
    stage_w(); stage_x()
    a.I(f's_setpc_b64 {sr(sLINK, 2)}')

    a.label('k1_comp')
    a.lg = []
    st.n = st0
    vWp, vX, vQW = 1, 5, 8
    if OPT['cpf']:
        a.I(f's_getpc_b64 {sr(sO, 2)}')
        a.label('k1_pc')
        a.I(f's_mov_b32 {sr(sO + 2)}, k1_end-k1_pc')
        a.I(f's_mov_b32 {sr(sO + 3)}, 0x20000')
        a.I(f's_lshl_b32 s3, {sr(sR)}, 13')
        a.I(f'v_lshlrev_b32 {vr(t0)}, 6, v0')
        a.I(f'buffer_load_dword v20, {vr(t0)}, {sr(sO, 4)}, s3 offen ; NOCHECK')
        a.I('s_add_u32 s3, s3, 4096')
        a.I(f'buffer_load_dword v20, {vr(t0)}, {sr(sO, 4)}, s3 offen ; NOCHECK')
    if OPT['fuse']:
        a.I(f's_cmp_lg_u32 {sr(sWAVE)}, 0')
        a.I('s_cbranch_scc1 k1_noreset')
        flag_srd(sO)
        oflag_off('s4')
        a.I('s_lshl_b32 s3, s2, 8')
        a.I(f'v_lshlrev_b32 {vr(t0)}, 2, v0')
        a.I(f'v_and_b32 {vr(t2)}, 127, {vr(t0)}')
        a.I(f'v_mov_b32 {vr(t1)}, 0')
        a.I(f'buffer_store_dword {vr(t1)}, {vr(t0)}, {sr(sO, 4)}, s3 offen sc1')
        a.I(f'buffer_store_dword {vr(t1)}, {vr(t2)}, {sr(sO, 4)}, s4 offen sc1')
        a.label('k1_noreset')
    tr_pattern(vWp)
    a.I(f's_lshr_b32 s3, {sr(sR)}, 1')
    a.I(f's_mul_i32 s4, s3, {HB1}')
    a.I(f's_and_b32 s5, {sr(sR)}, 1')
    a.I('s_lshl_b32 s6, s5, 9')
    a.I('s_add_u32 s4, s4, s6')
    a.I(f'v_add_u32 {vr(vWp)}, s4, {vr(vWp)}')
    for j in range(1, 4): a.I(f'v_xor_b32 {vr(vWp + j)}, {32 * j}, {vr(vWp)}')
    a.I(f'v_and_b32 {vr(n)}, 15, v0')
    a.I(f'v_lshrrev_b32 {vr(t0)}, 1, {vr(n)}')
    a.I(f'v_and_b32 {vr(t1)}, 2, {vr(t0)}')
    a.I(f'v_lshlrev_b32 {vr(t1)}, 1, {vr(t1)}')
    a.I(f'v_xor_b32 {vr(t0)}, {vr(t0)}, {vr(t1)}')
    a.I(f'v_lshlrev_b32 {vr(t1)}, 1, {vr(g)}')
    a.I(f'v_xor_b32 {vr(t0)}, {vr(t0)}, {vr(t1)}')
    a.I(f'v_lshlrev_b32 {vr(t0)}, 4, {vr(t0)}')
    a.I(f'v_lshl_add_u32 {vr(t0)}, {vr(n)}, 7, {vr(t0)}')
    a.I(f'v_add_u32 {vr(vX)}, {XB}, {vr(t0)}')
    a.I(f'v_xor_b32 {vr(vX + 1)}, 16, {vr(vX)}')
    a.I(f's_mul_i32 s4, s3, 36864')
    a.I('s_lshl_b32 s6, s5, 11')
    a.I('s_add_u32 s4, s4, s6')
    a.I(f's_add_u32 s4, s4, {QB}')
    a.I(f'v_lshl_add_u32 {vr(t0)}, {vr(n)}, 4, s4')
    a.I(f'v_lshrrev_b32 {vr(t1)}, 1, {vr(g)}')
    a.I(f'v_lshl_add_u32 {vr(t0)}, {vr(t1)}, 8, {vr(t0)}')
    a.I(f'v_and_b32 {vr(t1)}, 1, {vr(g)}')
    a.I(f'v_lshl_add_u32 {vr(vQW)}, {vr(t1)}, 3, {vr(t0)}')
    cval = fbits(128 ** -0.5 * math.log2(math.e))
    a.I(f's_mov_b32 {sr(sC)}, {cval}')
    a.I(f's_mov_b32 {sr(sC + 1)}, {cval}')
    for i in range(0, 144, 2): a.I(f'v_mov_b64 {vr(ACC + i, 2)}, 0')
    def xread(t, slot, ks): return f'ds_read_b128 {vr(XF + 4 * t, 4)}, {vr(vX + ks)} offset:{slot * 18432 + t * 2048}'
    def wreads(W, slot, ks):
        return [f'ds_read_b64_tr_b16 {vr(W + 4 * j + 2 * h, 2)}, {vr(vWp + j)} offset:{slot * 16384 + ks * 2048 + h * 1024}' for j in range(4) for h in range(2)]
    GT = OPT['gate']
    def kstep(Wc, Wn, nslot, nks, gated, last=False):
        wr = wreads(Wn, nslot, nks) if not last else []
        conv = []
        for t in range(9):
            for j in range(4):
                a.I(f'{MF} {vr(acc(t, j), 4)}, {vr(Wc + 4 * j, 4)}, {vr(XF + 4 * t, 4)}, {vr(acc(t, j), 4)}')
                if t >= (GT if gated else 0) and j in (0, 2) and wr: a.I(wr.pop(0))
                for _ in range(5):
                    if conv: a.I(conv.pop(0))
            if gated and t == GT - 1:
                a.I('s_waitcnt lgkmcnt(0)')
                a.I('s_barrier')
                if not last:
                    for tt in range(GT): a.I(xread(tt, nslot, nks))
            elif not last and (not gated or t >= GT): a.I(xread(t, nslot, nks))
            if last and t >= GT - 1:
                lo = 0 if t == GT - 1 else t - 1
                for tc in range(lo, t): conv += convert(tc)
        if last:
            a.many(conv); a.many(convert(8))
        assert not wr
    def convert(t):
        r = []
        for j in range(4): r += [f'v_pk_mul_f32 {vr(acc(t, j) + 2 * k, 2)}, {vr(acc(t, j) + 2 * k, 2)}, {sr(sC, 2)}' for k in range(2)]
        for j in range(4): r += [f'v_cvt_pk_bf16_f32 {vr(acc(t, j) + k)}, {vr(acc(t, j) + 2 * k)}, {vr(acc(t, j) + 2 * k + 1)}' for k in range(2)]
        for j in range(4): r += [f'ds_write_b64 {vr(vQW)}, {vr(acc(t, j), 2)} offset:{t * 4096 + (j >> 1) * 1024 + (j & 1) * 512}']
        return r
    W0, W1 = WF, WF + 16
    if OPT['cprio']: a.I(f's_setprio {OPT["cprio"]}')
    a.I('s_barrier')
    st.cyc()
    a.many(wreads(W0, 0, 0))
    for t in range(9): a.I(xread(t, 0, 0))
    a.I(f's_mov_b32 {sr(sCNT)}, 0')
    a.I('s_waitcnt lgkmcnt(0)')
    class _Dry(Asm): pass
    save = (a.ins, a.lg); a.ins = []; a.lg = []
    kstep(W1, W0, 0, 0, True); lg0 = [set(x) for x in a.lg]
    a.ins, a.lg = save
    a.lg = [set(x) for x in lg0]
    a.label('k1_qloop')
    for i in range(3):
        kstep(W0, W1, i, 1, False)
        kstep(W1, W0, (i + 1) % 3, 0, True)
    assert [set(x) for x in a.lg] == lg0
    a.I(f's_add_u32 {sr(sCNT)}, {sr(sCNT)}, 1')
    a.I(f's_cmp_lt_u32 {sr(sCNT)}, 5')
    a.I('s_cbranch_scc1 k1_qloop')
    kstep(W0, W1, 0, 1, False)
    kstep(W1, W0, 0, 0, True, last=True)
    if OPT['cprio']: a.I('s_setprio 0')
    a.I('s_waitcnt vmcnt(0)')
    if OPT['fuse']:
        a.I(f's_cmp_lg_u32 {sr(sWAVE)}, 0')
        a.I('s_cbranch_scc1 k1_nocount')
        dbg_srd(sO)
        a.I(f'v_mov_b32 {vr(t1)}, 0')
        a.I(f'v_mov_b32 {vr(t2)}, 1')
        a.I('s_mov_b64 exec, 1')
        a.I(f'buffer_atomic_add {vr(t2)}, {vr(t1)}, {sr(sO, 4)}, 0 offen sc1')
        a.I('s_mov_b64 exec, -1')
        a.label('k1_nocount')
    st.cyc()

    a.label('k1_join')
    a.lg = [set()]
    a.I(f's_lshl_b32 {sr(sKP)}, {sr(sHH)}, 15')
    a.I(f's_add_u32 {sr(sKP)}, {sr(sKP)}, 16384')
    a.I(f's_add_u32 {sr(sVP)}, {sr(sKP)}, 16384')
    a.I(f's_and_b32 s3, {sr(sR)}, 1')
    a.I('s_lshl_b32 s3, s3, 11')
    a.I(f's_lshl_b32 {sr(sJ)}, s3, 1')
    a.I(f's_sub_u32 {sr(sJ)}, 2048, {sr(sJ)}')
    a.I(f's_mul_i32 s5, {sr(sHH)}, 81920')
    a.I('s_add_u32 s5, s5, s3')
    a.I(f's_add_u32 s4, s5, {sr(sVP)}')
    a.I(f's_add_u32 s5, s5, {sr(sKP)}')
    a.I(f's_mul_i32 s3, {sr(sHH)}, 36864')
    a.I(f's_add_u32 s3, s3, {QB}')
    a.I(f'v_lshl_add_u32 {vr(t3)}, v0, 4, s3')
    a.I(f's_lshl_b32 s3, {sr(sR)}, 13')
    a.I(f'v_add_u32 {vr(t2)}, s3, {vr(t3)}')
    a.I('s_waitcnt lgkmcnt(0)')
    a.I('s_barrier')
    for T in range(2):
        for k in range(4): a.I(f'ds_read_b128 {vr(q_(T, k), 4)}, {vr(t2)} offset:{T * 4096 + k * 1024}')
    for k in range(4): a.I(f'ds_read_b128 {vr(q_(2, k), 4)}, {vr(t3)} offset:{32768 + k * 1024}')
    tr_pattern(vVa)
    a.I(f'v_add_u32 {vr(vVa)}, s4, {vr(vVa)}')
    for j in range(1, 4): a.I(f'v_xor_b32 {vr(vVa + j)}, {32 * j}, {vr(vVa)}')
    a.I(f'v_bfe_u32 {vr(n)}, v0, 2, 2')
    hfun(t0, n, t1)
    a.I(f'v_xor_b32 {vr(t0)}, {vr(t0)}, {vr(g)}')
    a.I(f'v_lshlrev_b32 {vr(t0)}, 4, {vr(t0)}')
    a.I(f'v_lshl_add_u32 {vr(t0)}, {vr(n)}, 12, {vr(t0)}')
    a.I(f'v_and_b32 {vr(t1)}, 3, v0')
    a.I(f'v_lshl_add_u32 {vr(t0)}, {vr(t1)}, 7, {vr(t0)}')
    a.I(f'v_bfe_u32 {vr(t1)}, v0, 1, 1')
    a.I(f'v_lshl_add_u32 {vr(t0)}, {vr(t1)}, 6, {vr(t0)}')
    a.I(f'v_add_u32 {vr(vKa)}, s5, {vr(t0)}')
    a.I(f'v_xor_b32 {vr(vKa + 1)}, 64, {vr(vKa)}')
    for i in range(4): a.I(f'v_mov_b32 {vr(ONES + i)}, 0x3f803f80')
    for i in range(0, 12, 2): a.I(f'v_mov_b64 {vr(NEGM + i, 2)}, 0')
    NEG_BIG = fbits(-3.0e38)
    for s in (sTHR, sTHR8, sCL, sCL8): a.I(f's_mov_b32 {sr(s)}, {NEG_BIG}')
    a.I(f's_lshl_b32 s3, {sr(sHH)}, 17')
    a.I(f'v_add_u32 {vr(vD)}, s3, {vr(vD)}')
    a.I(f's_mov_b32 {sr(sOV)}, 32768')
    a.I(f's_mov_b32 {sr(sOK)}, 32768')
    for i in range(0, 108, 2): a.I(f'v_mov_b64 {vr(O + i, 2)}, 0')
    a.I(f's_lshl_b32 s5, {sr(sHH)}, 15')
    a.I(f's_add_u32 s5, s5, {sr(sM0A)}')
    a.I(f's_mov_b32 {sr(sT1)}, 32768')
    a.I(f's_mov_b32 {sr(sCNT)}, 0')
    a.I(f's_mov_b32 {sr(sRS)}, 0')
    if OPT['wopf'] in (1, 2):
        wo_srd()
        a.I(f's_lshl_b32 {sr(sOX)}, {sr(sWAVE)}, 13')
    a.I('s_waitcnt lgkmcnt(0)')
    a.I('s_barrier')
    a.lg = []
    def dma_ins(kind):
        srd, so = (sK, sOK) if kind == 'K' else (sV, sOV)
        r = [[f'buffer_load_dwordx4 {vr(vD)}, {sr(srd, 4)}, {sr(so)} offen offset:{j * 1024}{APOL(kind, j)} lds'] for j in range(4)]
        r[3].append(f's_add_u32 {sr(so)}, {sr(so)}, 16384')
        return r
    def dma_grp(kind, m0):
        r = dma_ins(kind); r[0] = [m0, 's_nop 0'] + r[0]
        return r
    for x in dma_grp('K', 's_mov_b32 m0, s5'): a.many(x)
    a.I(f's_cmp_eq_u32 {sr(sHH)}, 0')
    a.I('s_cbranch_scc1 k1_nowr')
    kvwrite('K1', 32768, mx, 0); kvwrite('V1', 49152, mx, 16384)
    a.label('k1_nowr')
    a.lg = []
    LA, SY = 6, OPT['sy']
    def rd(kind, jl, f):
        if kind == 'K':
            return [f'ds_read_b128 {vr(POOL + 4 * f, 4)}, {vr(vKa + (f & 1))} offset:{(f >> 2) * 1024 + ((f >> 1) & 1) * 512}']
        return [f'ds_read_b64_tr_b16 {vr(POOL + 4 * f + 2 * h, 2)}, {vr(vVa + (f & 3))} offset:{h * 1024 + (f >> 2) * 512}' for h in range(2)]
    def rd_upd(kind, jl, f):
        r = rd(kind, jl, f)
        if kind == 'K' and f >= 6: r.append(f'v_add_u32 {vr(vKa + (f & 1))}, {sr(sDK if jl else sJ)}, {vr(vKa + (f & 1))}')
        if kind == 'V' and f >= 6:
            for x in (f - 2, f): r.append(f'v_add_u32 {vr(vVa + (x & 3))}, {sr(sDV if jl else sJ)}, {vr(vVa + (x & 3))}')
        return r
    for f in range(LA): a.many(rd('K', 0, f))
    lgK = [set(x) for x in a.lg]
    lgV = [set(Insn(x).wr) for f in range(LA) for x in rd('V', 0, f)]
    st.cyc()
    a.I(f's_lshr_b32 s3, {sr(sR)}, 1')
    a.I(f's_xor_b32 s3, s3, {sr(sHH)}')
    a.I('s_cmp_eq_u32 s3, 1')
    a.I('s_cbranch_scc1 k1_proL')

    def maxops(jl, heavy):
        ops = []
        vals = [s_(T, jl, tt) + k for tt in range(2) for T in range(2) for k in range(4)]
        for vs, dst in ((vals, mx),) + ((([s_(2, 0) + k for k in range(8)], mx8),) if heavy else ()):
            o = [f'v_max3_f32 {vr(dst)}, {vr(vs[0])}, {vr(vs[1])}, {vr(vs[2])}']
            for k in range(3, len(vs) - 1, 2): o.append(f'v_max3_f32 {vr(dst)}, {vr(dst)}, {vr(vs[k])}, {vr(vs[k + 1])}')
            o.append(f'v_max_f32 {vr(dst)}, {vr(dst)}, {vr(vs[-1])}')
            ops += o
        return ops
    def expops(jl, heavy):
        ops = []
        Tl = (0, 1, 2) if heavy else (0, 1)
        for k in range(8):
            for T in Tl: ops.append(f'v_exp_f32 {vr(s_(T, jl) + k)}, {vr(s_(T, jl) + k)}')
            if k >= 2 and k % 2 == 0:
                for T in Tl: ops.append(f'v_cvt_pk_bf16_f32 {vr(s_(T, jl) + k // 2 - 1)}, {vr(s_(T, jl) + k - 2)}, {vr(s_(T, jl) + k - 1)}')
        for T in Tl: ops.append(f'v_cvt_pk_bf16_f32 {vr(s_(T, jl) + 3)}, {vr(s_(T, jl) + 6)}, {vr(s_(T, jl) + 7)}')
        return ops
    def check(jl, heavy):
        for (thr, m, fn) in ((sTHR, mx, f'k1_rare{jl}'),) + (((sTHR8, mx8, 'k1_rare8'),) if heavy else ()):
            lb = a.newlabel('k1_ok')
            a.I(f'v_cmp_lt_f32 vcc, {sr(thr)}, {vr(m)}')
            a.I(f's_cbranch_vccz {lb}')
            a.I(f's_call_b64 {sr(sLINK, 2)}, {fn}')
            a.label(lb)
    def mfmas(kind, jl, heavy, f):
        Tl = (0, 1, 2) if heavy else (0, 1)
        P = vr(POOL + 4 * f, 4)
        if kind == 'K':
            tt, ks = f >> 2, f & 3
            return [f'{MF} {vr(s_(T, jl, tt), 4)}, {P}, {vr(q_(T, ks), 4)}, {vr(negm(T) if ks == 0 else s_(T, jl, tt), 4)}' for T in Tl]
        r = [f'{MF} {vr(o_(T, f), 4)}, {P}, {vr(s_(T, jl), 4)}, {vr(o_(T, f), 4)}' for T in Tl]
        if f == 7: r += [f'{MF} {vr(o_(T, 8), 4)}, {vr(ONES, 4)}, {vr(s_(T, jl), 4)}, {vr(o_(T, 8), 4)}' for T in Tl]
        return r
    def ring_step(doK, doV):
        r = []
        for (P, Po, D, on) in ((sKP, sKPo, sDK, doK), (sVP, sVPo, sDV, doV)):
            if not on: continue
            r.append([f's_mov_b32 {sr(Po)}, {sr(P)}',
                      f's_cmp_ge_u32 {sr(P)}, 49152',
                      f's_cselect_b32 {sr(D)}, {-49152 & 0xffffffff:#x}, {sr(sT1)}',
                      f's_add_u32 {sr(P)}, {sr(P)}, {sr(D)}',
                      f's_sub_u32 {sr(D)}, {sr(D)}, {sr(sJ)}'])
        return r
    def cost(x):
        if callable(x): return 8
        return 8 if x.startswith('v_exp') else 4
    def pack(stream, ngaps, reserved):
        for cap_extra in range(0, ngaps + 1):
            big = set((i * ngaps) // cap_extra for i in range(cap_extra)) if cap_extra else set()
            out = [[] for _ in range(ngaps)]; k = 0
            for gi in range(ngaps):
                room = (16 if gi in big else 8) - reserved[gi]
                while k < len(stream) and cost(stream[k]) <= room:
                    out[gi].append(stream[k]); room -= cost(stream[k]); k += 1
            if k == len(stream): return out
        out[-1] += stream[k:]
        return out
    def block(segs, streams, mode, aux0, nvm):
        uses = [(si, f) for si in range(len(segs)) for f in range(8)]
        nU = len(uses)
        gaps = []
        for k, (si, f) in enumerate(uses):
            for n_ in range(len(mfmas(segs[si][0], segs[si][1], segs[si][2], f))): gaps.append((k, n_))
        aux = {gp: [] for gp in gaps}; pre = {gp: [] for gp in gaps}
        for k in range(nU - LA):
            s2, f2 = uses[k + LA]
            rr = rd_upd(segs[s2][0], segs[s2][1], f2)
            for i, x in enumerate([x for x in rr if x.startswith('ds_')]): aux[(k, i)].append(x)
            pre[(k + 1, 0)] += [x for x in rr if x.startswith('v_')]
        if mode != 'fin':
            post = [gp for gp in gaps if gp[0] > nU - 8 + SY]
            q = [(f, x) for f in range(LA) for x in rd('V', 0, f)]
            early = [x for f, x in q if f < OPT['nimm']]; q = [(f, x) for f, x in q if f >= OPT['nimm']]
            per = -(-len(q) // len(post))
            for gp in post:
                for _ in range(per):
                    fdone = gp[0] - (nU - 8) - (0 if gp[1] == 1 else 1)
                    if q and q[0][0] <= fdone: aux[gp].append(q.pop(0)[1])
            assert not q, q
        for gp, x in zip(gaps[OPT['aux0']::OPT['auxs']], aux0): aux[gp].append(x)
        fill = {}
        for (sa, sb, skip, ops) in streams:
            gl = [gp for gp in gaps if sa <= uses[gp[0]][0] <= sb]
            gl = gl[skip:len(gl) - OPT['tail']]
            for gp, ol in zip(gl, pack(ops, len(gl), [4 * len(pre[gp]) for gp in gl])):
                fill[gp] = ol
                assert not (any(callable(x) for x in ol) and uses[gp[0]][0] != sa)
        def emit(x):
            if callable(x): x()
            elif isinstance(x, list):
                for y in x: emit(y)
            else: a.I(x)
        for k, (si, f) in enumerate(uses):
            kind, jl, heavy, after = segs[si]
            if f == 0 and OPT['aprio'] and si: a.I(f's_setprio {len(segs) - 1 - si}')
            for n_, m in enumerate(mfmas(kind, jl, heavy, f)):
                a.I(m)
                emit(pre[(k, n_)]); emit(fill.get((k, n_), [])); emit(aux[(k, n_)])
            if OPT['stamp'] == 3 and mode == 'loop' and f == 7 and si < 3: a.raw(f's_memtime {sr(90 + 2 * si, 2)}')
            if mode != 'fin' and k == nU - 8 + SY:
                if OPT['stamp'] == 3 and mode == 'loop':
                    a.raw('s_mov_b32 s88, s98')
                    a.raw('s_memtime s[96:97]')
                a.I(f's_waitcnt vmcnt({nvm}) lgkmcnt(0)')
                a.I('s_barrier')
                if OPT['aprio']: a.I('s_setprio 3')
                st.sh()
                if OPT['stamp'] == 3 and mode == 'loop': a.raw('s_memtime s[98:99]')
                a.many(early)
            if f == 7 and after: after()
        if mode != 'fin': assert [set(x) for x in a.lg] == lgV, (a.lg, lgV)
    def resc():
        lb = a.newlabel('k1_nors')
        a.I(f's_cmp_eq_u32 {sr(sRS)}, 0')
        a.I(f's_cbranch_scc1 {lb}')
        a.I(f's_call_b64 {sr(sLINK, 2)}, k1_rescale')
        a.label(lb)
    def sm(jl, heavy): return maxops(jl, heavy) + [lambda: check(jl, heavy)] + expops(jl, heavy)
    OFFM0 = 0x30000
    def warm(kind, so):
        r = [[f'buffer_load_dwordx4 {vr(vD)}, {sr(sK if kind == "K" else sV, 4)}, {so} offen offset:{j * 1024}{NT("pfp")} lds'] for j in range(4)]
        r[0] = [f's_mov_b32 m0, {OFFM0}', 's_nop 0'] + r[0]
        return r
    def prologue(h0):
        a.lg = [set(x) for x in lgK]
        ax = ring_step(True, False)
        if OPT['pp']: ax = ax + warm('K', sr(sOK))
        block([('K', 0, h0, lambda: (a.many(maxops(0, h0)), check(0, h0))), ('K', 1, False, None)],
              [(1, 1, 0, expops(0, h0))], 'pro', ax, 63)
    def body_aux():
        r = [[f's_add_u32 {sr(sMK)}, {sr(sM0A)}, {sr(sVPo)}',
              f's_add_u32 {sr(sMV)}, {sr(sM0A)}, {sr(sKPo)}',
              f's_cmp_ge_u32 {sr(sCNT)}, 6',
              f's_cselect_b32 {sr(sMV)}, {OFFM0}, {sr(sMV)}',
              f's_cselect_b32 {sr(sOV)}, 0x1000000, {sr(sOV)}',
              f's_sub_u32 s3, {sr(sCNT)}, 1',
              f's_cmp_ge_u32 s3, 5',
              f's_cselect_b32 m0, {OFFM0}, {sr(sMK)}',
              f's_cselect_b32 s3, 0x1000000, {sr(sOK)}',
              f's_cselect_b32 s4, 0, 16384']]
        r += ring_step(True, True)
        for j in range(4): r.append([f'buffer_load_dwordx4 {vr(vD)}, {sr(sK, 4)}, s3 offen offset:{j * 1024}{APOL("K", j)} lds'])
        r[-1] += [f's_add_u32 {sr(sOK)}, {sr(sOK)}, s4', f's_mov_b32 m0, {sr(sMV)}']
        r += dma_ins('V')
        if OPT['mv']:
            w = warm('V', 's3')
            w[0] = [f's_mov_b32 s4, {OPT["mv"]}', f's_bitcmp1_b32 s4, {sr(sCNT)}', f's_cselect_b32 s3, {sr(sOV)}, 0x1000000'] + w[0]
            return r + w, 8
        return r, 4
    def body(hc, tag, exit_to):
        a.lg = [set(x) for x in lgV]
        hn = not hc
        ax, nvm = body_aux()
        block([('V', 0, hc, resc), ('K', 0, hn, None), ('V', 1, False, resc), ('K', 1, False, None)],
              [(0, 1, 1, sm(1, False)), (2, 3, 1, sm(0, hn))], 'loop', ax, nvm)
        a.I(f's_add_u32 {sr(sCNT)}, {sr(sCNT)}, 1')
        a.I(f's_cmp_eq_u32 {sr(sCNT)}, 7')
        a.I(f's_cbranch_scc1 {exit_to}')
    def final(hc):
        a.lg = [set(x) for x in lgV]
        block([('V', 0, hc, resc), ('V', 1, False, None)], [(0, 0, 1, sm(1, False))], 'fin', [], 0)
        if OPT['aprio']: a.I('s_setprio 0')
    prologue(True)
    a.label('k1_X')
    body(True, 'x', 'k1_finL')
    a.label('k1_Y')
    body(False, 'y', 'k1_finH')
    a.I('s_branch k1_X')
    a.label('k1_proL')
    prologue(False)
    a.I('s_branch k1_Y')

    a.auto = False
    def xg_reduce(x, tmp, op):
        a.I(f'v_mov_b32 {vr(tmp)}, {vr(x)}')
        a.I(f'v_permlane32_swap_b32 {vr(x)}, {vr(tmp)}')
        a.I(f'{op} {vr(x)}, {vr(x)}, {vr(tmp)}')
        a.I(f'v_mov_b32 {vr(tmp)}, {vr(x)}')
        a.I(f'v_permlane16_swap_b32 {vr(x)}, {vr(tmp)}')
        a.I(f'{op} {vr(x)}, {vr(x)}, {vr(tmp)}')
    FREG = {0: mx, 1: tA, 2: mx8}
    def rare(T, vals, scl, canfirst):
        m, tmp = tB, FREG[T]
        a.I(f'v_max3_f32 {vr(m)}, {vr(vals[0])}, {vr(vals[1])}, {vr(vals[2])}')
        for k in range(3, len(vals) - 1, 2): a.I(f'v_max3_f32 {vr(m)}, {vr(m)}, {vr(vals[k])}, {vr(vals[k + 1])}')
        a.I(f'v_max_f32 {vr(m)}, {vr(m)}, {vr(vals[-1])}')
        xg_reduce(m, tmp, 'v_max_f32')
        a.I(f'v_max_f32 {vr(m)}, {sr(scl)}, {vr(m)}')
        for v in vals: a.I(f'v_sub_f32 {vr(v)}, {vr(v)}, {vr(m)}')
        for k in range(4): a.I(f'v_sub_f32 {vr(negm(T) + k)}, {vr(negm(T) + k)}, {vr(m)}')
        lb = a.newlabel('k1_first'); lb2 = a.newlabel('k1_rdone')
        if canfirst:
            a.I(f's_cmp_lg_u32 {sr(scl)}, 0')
            a.I(f's_cbranch_scc1 {lb}')
        a.I(f'v_exp_f32 {vr(tmp)}, -{vr(m)}')
        if T == 2:
            for k in range(36): a.I(f'v_mul_f32 {vr(o_(T, 8) + k)}, {vr(o_(T, 8) + k)}, {vr(tmp)}')
        else:
            a.I(f's_mov_b32 {sr(sRS)}, 1')
        if canfirst: a.label(lb)
    for jl in range(2):
        a.label(f'k1_rare{jl}')
        for T in range(2): rare(T, [s_(T, jl) + k for k in range(8)], sCL, jl == 0)
        a.I(f's_mov_b32 {sr(sTHR)}, {THRV}')
        a.I(f's_mov_b32 {sr(sCL)}, 0')
        a.I(f's_setpc_b64 {sr(sLINK, 2)}')
    a.label('k1_rare8')
    rare(2, [s_(2, 0) + k for k in range(8)], sCL8, True)
    a.I(f's_mov_b32 {sr(sTHR8)}, {THRV}')
    a.I(f's_mov_b32 {sr(sCL8)}, 0')
    a.I(f's_setpc_b64 {sr(sLINK, 2)}')
    a.label('k1_rescale')
    for T in range(2):
        for k in range(36): a.I(f'v_mul_f32 {vr(o_(T, 8) + k)}, {vr(o_(T, 8) + k)}, {vr(FREG[T])}')
    a.I(f's_mov_b32 {sr(sRS)}, 0')
    a.I(f's_setpc_b64 {sr(sLINK, 2)}')
    a.auto = True

    a.label('k1_finH')
    final(True)
    a.I('s_branch k1_epi')
    a.label('k1_finL')
    final(False)
    a.label('k1_epi')
    a.lg = []
    st.cyc()
    K = K2(a)
    e0, e1, e2, e3, e4 = 3, 4, 5, 6, 8
    NM8 = negm(2)
    dbg_srd(sK)
    a.I('v_mov_b32 v10, 0')
    a.I(f'buffer_load_dword v1, v10, {sr(sK, 4)}, 0 offen sc1')
    a.I('s_load_dwordx2 s[10:11], s[0:1], 80')
    a.I(f'v_lshlrev_b32 {vr(e0)}, 4, v0')
    a.I(f's_lshl_b32 s5, {sr(sHH)}, 15')
    a.I('s_add_u32 s5, s5, 49152')
    a.I(f's_lshl_b32 s4, {sr(sR)}, 11')
    a.I('s_add_u32 s3, s4, s5')
    a.I(f'v_add_u32 {vr(e1)}, s3, {vr(e0)}')
    for d in range(8): a.I(f'ds_write_b128 {vr(e1)}, {vr(o_(2, d), 4)} offset:{(d >> 1) * 8192 + (d & 1) * 1024}')
    a.I(f's_lshl_b32 s3, {sr(sHH)}, 11')
    a.I(f's_add_u32 s3, s3, {HB1}')
    a.I(f'v_lshl_add_u32 {vr(e2)}, v0, 3, s3')
    a.I(f's_lshl_b32 s3, {sr(sR)}, 9')
    a.I(f'v_add_u32 {vr(e1)}, s3, {vr(e2)}')
    a.I(f'v_mov_b32 {vr(NM8 + 1)}, {vr(o_(2, 8))}')
    a.I(f'ds_write_b64 {vr(e1)}, {vr(NM8, 2)}')
    sOO = sV
    a.I(f's_lshl_b32 s3, {sr(sBLK)}, 3')
    a.I(f's_add_u32 s3, s3, {sr(sB)}')
    a.I(f's_mul_i32 s3, s3, {O_SLICE}')
    a.I(f's_mul_i32 s6, {sr(sHP)}, 73728')
    a.I('s_add_u32 s3, s3, s6')
    a.I(f's_add_u32 {sr(sOO)}, s16, s3')
    a.I(f's_addc_u32 {sr(sOO + 1)}, s17, 0')
    a.I(f's_mov_b32 {sr(sOO + 2)}, 73728')
    a.I(f's_mov_b32 {sr(sOO + 3)}, 0x20000')
    a.I(f's_mul_i32 s3, {sr(sHH)}, 36864')
    a.I(f'v_add_u32 {vr(e3)}, s4, {vr(e0)}')
    def fin(src, scale2, voff, soff, imm):
        for k in range(4): a.I(f'v_pk_mul_f32 {vr(src + 2 * k, 2)}, {vr(src + 2 * k, 2)}, {vr(scale2, 2)}')
        for k in range(4): a.I(f'v_cvt_pk_bf16_f32 {vr(src + k)}, {vr(src + 2 * k)}, {vr(src + 2 * k + 1)}')
        a.I(f'buffer_store_dwordx4 {vr(src, 4)}, {vr(voff)}, {sr(sOO, 4)}, {soff} offen offset:{imm}{NT("ont")}')
    for T in range(2):
        for k in range(2): a.I(f'v_rcp_f32 {vr(o_(T, 8) + k)}, {vr(o_(T, 8) + k)}')
    a.I(f's_lshl_b32 s4, {sr(sR)}, 13')
    a.I('s_add_u32 s4, s4, s5')
    a.I(f'v_add_u32 {vr(e1)}, s4, {vr(e0)}')
    a.I('s_waitcnt lgkmcnt(0)')
    a.I('s_barrier')
    R8 = S
    for sl in range(4): a.I(f'ds_read_b64 {vr(R8 + 32 + 2 * sl, 2)}, {vr(e2)} offset:{sl * 512}')
    for k in range(8): a.I(f'ds_read_b128 {vr(R8 + 4 * k, 4)}, {vr(e1)} offset:{k * 1024}')
    a.I('s_mov_b32 s6, s3')
    for P in range(4):
        for T in range(2): fin(o_(T, 2 * P), o_(T, 8), e3, 's6', T * 1024)
        if P < 3: a.I('s_add_u32 s6, s6, 9216')
    a.I(f's_mul_i32 s6, {sr(sR)}, 9216')
    a.I('s_add_u32 s6, s6, s3')
    a.I(f'v_add_u32 {vr(e3)}, 8192, {vr(e0)}')
    nm = [R8 + 32 + 2 * i for i in range(4)]
    ll = [R8 + 33 + 2 * i for i in range(4)]
    a.I(f'v_min3_f32 {vr(e0)}, {vr(nm[0])}, {vr(nm[1])}, {vr(nm[2])}')
    a.I(f'v_min_f32 {vr(e0)}, {vr(e0)}, {vr(nm[3])}')
    for i in range(4): a.I(f'v_sub_f32 {vr(nm[i])}, {vr(e0)}, {vr(nm[i])}')
    for i in range(4): a.I(f'v_exp_f32 {vr(nm[i])}, {vr(nm[i])}')
    a.I(f'v_mul_f32 {vr(e0)}, {vr(ll[0])}, {vr(nm[0])}')
    for i in range(1, 4): a.I(f'v_fmac_f32 {vr(e0)}, {vr(ll[i])}, {vr(nm[i])}')
    a.I(f'v_rcp_f32 {vr(e4)}, {vr(e0)}')
    a.I(f'v_rcp_f32 {vr(e4 + 1)}, {vr(e0)}')
    for k in range(8): a.I(f'v_mul_f32 {vr(R8 + k)}, {vr(R8 + k)}, {vr(nm[0])}')
    for i in range(1, 4):
        for k in range(8): a.I(f'v_fmac_f32 {vr(R8 + k)}, {vr(R8 + 8 * i + k)}, {vr(nm[i])}')
    fin(R8, e4, e3, 's6', 0)
    if OPT['stamp'] == 3: st.n = 12
    else: st.cyc(); st.real()
    flag_srd(sO)
    oflag_off('s4')
    K.setup()
    a.I('v_mov_b32 v11, 1')
    a.I(f's_cmp_eq_u32 {sr(sHH)}, 0')
    a.I('s_cbranch_scc1 k1_drain')
    for i in range(3): K.stw(i)
    a.I(f's_mov_b32 {sr(K.sPC)}, 0')
    a.I('s_movk_i32 s3, 0x100')
    a.I('s_waitcnt vmcnt(21)')
    a.label('k1_allin')
    a.I('v_cmp_le_u32 vcc, s3, v1')
    a.I('s_cbranch_vccnz k1_allok ; POLL')
    a.I(f'buffer_load_dword v1, v10, {sr(sK, 4)}, 0 offen sc1')
    a.I(f's_add_u32 {sr(K.sPC)}, {sr(K.sPC)}, 1')
    a.I('s_waitcnt vmcnt(0)')
    a.I(f's_cmp_lt_u32 {sr(K.sPC)}, {OPT["pollmax"]}')
    a.I('s_cbranch_scc1 k1_allin')
    a.label('k1_allok')
    a.I(K.flagload())
    a.label('k1_drain')
    a.I('s_waitcnt vmcnt(0) lgkmcnt(0)')
    a.I('s_barrier')
    a.I(f's_cmp_lg_u32 {sr(sWAVE)}, 0')
    a.I('s_cbranch_scc1 k1_nopub')
    a.I('s_mov_b64 exec, 1')
    a.I(f'buffer_store_dword v11, v10, {sr(sO, 4)}, s4 offen sc1')
    a.I('s_mov_b64 exec, -1')
    a.label('k1_nopub')
    st.flush(16, sWAVE, sK, 24)
    return K.main()

class K2:
    sO, sW, sD, sE, sF = 20, 24, 28, 32, 36
    sWAVE, sR, sLD, sBLK, sB, sN8, sKH = 40, 41, 42, 43, 62, 63, 64
    sM0W, sM0X, sOW, sOX, sSL, sCNT, sT0, sST, sROT, sH, sNH, sKS = 47, 48, 49, 50, 51, 52, 53, 54, 65, 56, 57, 58
    sSTX, sFO, sPC, sHPc = 59, 60, 61, 66
    sRW, sRX, sWB, sXB, sWEX = 68, 72, 54, 59, 8
    sLINK = 8
    vWp, vX, vL16, vFA, vFV, vDW, vDX = 12, 14, 16, 17, 18, 28, 32
    g, t0, t1, t2 = 19, 20, 21, 22
    ACC, XF, WF, TMP = 112, 76, 60, 184
    XB = 65536
    def __init__(self, a):
        self.a = a; self.st = Stamper(a, 1)
    def setup(self):
        a = self.a; K = self
        sO, sW, sF, sR, sB, sN8, sKH, sBLK = K.sO, K.sW, K.sF, K.sR, K.sB, K.sN8, K.sKH, K.sBLK
        t0, t1 = K.t0, K.t1
        a.I('s_and_b32 s12, s2, 7')
        a.I('s_lshr_b32 s13, s2, 3')
        a.I(f's_and_b32 {sr(sKH)}, s12, 1')
        a.I('s_and_b32 s14, s12, 2')
        a.I('s_lshl_b32 s14, s14, 1')
        a.I('s_and_b32 s15, s13, 3')
        a.I(f's_add_u32 {sr(sB)}, s14, s15')
        a.I(f's_lshr_b32 {sr(sN8)}, s13, 2')
        a.I(f's_add_u32 {sr(K.sROT)}, {sr(sB)}, {sr(sN8)}')
        a.I(f's_and_b32 {sr(K.sKS)}, {sr(sR)}, 1')
        a.I(f's_lshr_b32 {sr(K.sNH)}, {sr(sR)}, 1')
        a.I(f's_xor_b32 {sr(K.sH)}, {sr(K.sNH)}, {sr(K.sKS)}')
        a.I(f's_lshl_b32 {sr(K.sH)}, {sr(K.sH)}, 1')
        a.I(f's_or_b32 {sr(K.sH)}, {sr(K.sH)}, {sr(K.sNH)}')
        a.I(f'v_lshlrev_b32 {vr(K.vL16)}, 4, v0')
        a.I(f'v_and_b32 {vr(t0)}, 7, v0')
        a.I(f'v_xor_b32 {vr(t0)}, {sr(K.sH)}, {vr(t0)}')
        a.I(f'v_bfe_u32 {vr(t1)}, v0, 4, 1')
        a.I(f'v_lshlrev_b32 {vr(t1)}, 2, {vr(t1)}')
        a.I(f'v_xor_b32 {vr(t0)}, {vr(t0)}, {vr(t1)}')
        a.I(f'v_lshlrev_b32 {vr(t0)}, 4, {vr(t0)}')
        a.I(f'v_lshrrev_b32 {vr(t1)}, 5, v0')
        a.I(f'v_lshl_add_u32 {vr(t0)}, {vr(t1)}, 7, {vr(t0)}')
        a.I(f'v_bfe_u32 {vr(t1)}, v0, 3, 2')
        a.I(f's_lshl_b32 s12, {sr(sR)}, 2')
        a.I(f'v_add_u32 {vr(t1)}, s12, {vr(t1)}')
        a.I(f'v_lshl_add_u32 {vr(K.vDW)}, {vr(t1)}, 11, {vr(t0)}')
        a.I(f's_lshl_b32 {sr(K.sM0W)}, {sr(sR)}, 12')
        for tq in range(1, 4): a.I(f'v_add_u32 {vr(K.vDW + tq)}, {tq * (32768 - 1024)}, {vr(K.vDW)}')
        a.I(f'v_add_u32 {vr(K.vDX)}, {sr(K.sM0W)}, {vr(K.vL16)}')
        a.I(f's_lshl_b32 {sr(K.sM0X)}, {sr(sR)}, 10')
        a.I(f's_add_u32 {sr(K.sM0X)}, {sr(K.sM0X)}, 16384')
        a.I(f'v_add_u32 {vr(K.vDX + 1)}, {sr(K.sM0X)}, {vr(K.vL16)}')
        for i in range(4):
            a.I(f's_add_u32 s12, {sr(K.sROT)}, {i}')
            a.I('s_and_b32 s12, s12, 3')
            a.I(f's_lshl_b32 {sr(K.sRW + i)}, s12, 17')
            a.I(f's_mul_i32 {sr(K.sRX + i)}, s12, 18432')
        a.I(f's_mul_i32 {sr(K.sHPc)}, {sr(sKH)}, 9')
        a.I(f's_lshl_b32 {sr(K.sWB)}, {sr(K.sHPc)}, 19')
        a.I(f's_mul_i32 {sr(K.sXB)}, {sr(K.sHPc)}, 73728')
        a.I(f's_mov_b64 {sr(K.sWEX, 2)}, -1')
        a.I(f's_lshl_b32 s12, {sr(sBLK)}, 3')
        a.I(f's_add_u32 s12, s12, {sr(sB)}')
        a.I(f's_lshl_b32 {sr(K.sFO)}, s12, 11')
        a.I(f's_add_u32 {sr(K.sFO)}, {sr(K.sFO)}, 65536')
        a.I(f's_mul_i32 s12, s12, {O_SLICE}')
        a.I(f's_add_u32 {sr(sO)}, s16, s12')
        a.I(f's_addc_u32 {sr(sO + 1)}, s17, 0')
        a.I(f's_mov_b32 {sr(sO + 2)}, {O_SLICE}')
        a.I(f's_mov_b32 {sr(sO + 3)}, 0x20000')
        a.I(f's_lshl_b32 s12, {sr(sN8)}, 8')
        a.I(f's_add_u32 {sr(sW)}, s18, s12')
        a.I(f's_addc_u32 {sr(sW + 1)}, s19, 0')
        a.I(f's_sub_u32 {sr(sW + 2)}, 8388608, s12')
        a.I(f's_mov_b32 {sr(sW + 3)}, 0x20000')
        a.I(f'v_and_b32 {vr(K.vFA)}, 15, v0')
        a.I(f'v_lshlrev_b32 {vr(K.vFA)}, 7, {vr(K.vFA)}')
    def stw(self, i):
        a = self.a; K = self
        a.I(f's_add_u32 m0, {sr(K.sM0W)}, {i * 16384}')
        a.I(f's_add_u32 {sr(K.sOW)}, {sr(K.sWB)}, {sr(K.sRW + i)}')
        a.I(f's_mov_b64 exec, {sr(K.sWEX, 2)}')
        for tq in range(4): a.I(f'buffer_load_dwordx4 {vr(K.vDW + tq)}, {sr(K.sW, 4)}, {sr(K.sOW)} offen offset:{tq * 1024}{NT("wont")} lds')
        a.I('s_mov_b64 exec, -1')
    def stx(self, i):
        a = self.a; K = self
        lb = a.newlabel('k2_skipx')
        a.I(f's_add_u32 m0, {sr(K.sM0W)}, {K.XB + i * 18432}')
        a.I(f's_add_u32 {sr(K.sOX)}, {sr(K.sXB)}, {sr(K.sRX + i)}')
        for j in range(4): a.I(f'buffer_load_dwordx4 {vr(K.vDX)}, {sr(K.sO, 4)}, {sr(K.sOX)} offen offset:{j * 1024}{NT("oldf")} lds')
        a.I(f's_add_u32 m0, {sr(K.sM0X)}, {K.XB + i * 18432}')
        a.I(f's_cmp_ge_u32 {sr(K.sR)}, 2')
        a.I(f's_cbranch_scc1 {lb}')
        a.I(f'buffer_load_dwordx4 {vr(K.vDX + 1)}, {sr(K.sO, 4)}, {sr(K.sOX)} offen{NT("oldf")} lds')
        a.label(lb)
    def ready(self):
        a = self.a; K = self
        l1, l2 = a.newlabel('k2_chk'), a.newlabel('k2_go')
        a.I(f's_mov_b32 {sr(K.sPC)}, 0')
        a.label(l1)
        a.I(f'v_cmp_eq_u32 vcc, 1, {vr(K.vFV)}')
        a.I(f's_bitcmp1_b32 vcc_lo, {sr(K.sHPc)}')
        a.I(f's_cbranch_scc1 {l2} ; TAKEN')
        a.I(K.flagload())
        a.I(f's_add_u32 {sr(K.sPC)}, {sr(K.sPC)}, 1')
        a.I('s_waitcnt vmcnt(0)')
        a.I(f's_cmp_lt_u32 {sr(K.sPC)}, {OPT["pollmax"]}')
        a.I(f's_cbranch_scc1 {l1}')
        a.label(l2)
    def flagload(self): return f'buffer_load_dword {vr(self.vFV)}, {vr(self.vFA)}, {sr(self.sF, 4)}, {sr(self.sFO)} offen sc1 ; NOCHECK'
    def main(self):
        a = self.a; st = self.st; K = self
        MF = 'v_mfma_f32_16x16x32_bf16'
        sO, sW, sD, sE, sF, sR, sB, sN8, sKH, sBLK = K.sO, K.sW, K.sD, K.sE, K.sF, K.sR, K.sB, K.sN8, K.sKH, K.sBLK
        sOW, sOX, sSL, sCNT, sT0, sST, sSTX, sPC, sHPc, sNH, sKS = K.sOW, K.sOX, K.sSL, K.sCNT, K.sT0, K.sST, K.sSTX, K.sPC, K.sHPc, K.sNH, K.sKS
        vWp, vX, vDW, vL16, g, t0, t1, t2 = K.vWp, K.vX, K.vDW, K.vL16, K.g, K.t0, K.t1, K.t2
        ACC, XF, WF, TMP, XB = K.ACC, K.XF, K.WF, K.TMP, K.XB
        def acc(t, j): return ACC + (t * 2 + j) * 4
        st.real(); st.cyc()
        a.I(f's_cmp_eq_u32 {sr(K.sLD)}, 0')
        a.I('s_cbranch_scc1 k2_comp')
        K.ready()
        K.stx(0); a.I(K.flagload()); K.stx(1)
        a.I('s_waitcnt vmcnt(4)')
        a.I('s_barrier')
        st0 = st.n
        st.cyc()
        K.stx(2); K.stw(3); K.stx(3)
        a.I(f's_mov_b32 {sr(sCNT)}, 1')
        a.I('s_waitcnt vmcnt(12)')
        a.label('k2_lloop')
        a.I(f's_add_u32 {sr(sHPc)}, {sr(sHPc)}, 1')
        a.I(f's_cmp_eq_u32 {sr(sCNT)}, 7')
        a.I(f's_cselect_b32 {sr(sHPc)}, 7, {sr(sHPc)}')
        a.I(f's_sub_u32 s3, {sr(sKH)}, 1')
        a.I(f's_sub_u32 s4, 0, {sr(sKH)}')
        a.I(f's_cmp_ge_u32 {sr(sCNT)}, 7')
        a.I(f's_cselect_b32 {sr(K.sWEX)}, s3, -1')
        a.I(f's_cselect_b32 {sr(K.sWEX + 1)}, s4, -1')
        a.I(f's_lshl_b32 {sr(K.sWB)}, {sr(sHPc)}, 19')
        a.I(f's_mul_i32 {sr(K.sXB)}, {sr(sHPc)}, 73728')
        for i in range(4):
            a.I('s_waitcnt vmcnt(16)')
            a.I('s_barrier')
            K.stw(i)
            if i == 0: K.ready()
            if i == 1: a.I(K.flagload())
            K.stx(i)
        a.I(f's_add_u32 {sr(sCNT)}, {sr(sCNT)}, 1')
        a.I(f's_cmp_lt_u32 {sr(sCNT)}, 9')
        a.I('s_cbranch_scc1 k2_lloop')
        for nv in (16, 8, 0, 0):
            a.I(f's_waitcnt vmcnt({nv})')
            a.I('s_barrier')
        st.cyc(); st.cyc(); st.cyc(); st.cyc(); st.real()
        st.flush(16, K.sWAVE, sW, t1)
        a.I('s_endpgm')
        a.label('k2_comp')
        st.n = st0
        a.lg = []
        a.I(f'v_lshrrev_b32 {vr(g)}, 4, v0')
        a.I(f'v_lshrrev_b32 {vr(t1)}, 1, {vr(g)}')
        a.I(f'v_xor_b32 {vr(t0)}, {vr(g)}, {vr(t1)}')
        a.I(f'v_and_b32 {vr(t0)}, 1, {vr(t0)}')
        a.I(f'v_lshl_or_b32 {vr(t0)}, {vr(t0)}, 1, {vr(t1)}')
        a.I(f'v_bfe_u32 {vr(t1)}, v0, 1, 1')
        a.I(f'v_xor_b32 {vr(t0)}, {vr(t0)}, {vr(t1)}')
        a.I(f'v_lshlrev_b32 {vr(t0)}, 4, {vr(t0)}')
        a.I(f'v_lshl_add_u32 {vr(t0)}, {vr(g)}, 12, {vr(t0)}')
        a.I(f'v_bfe_u32 {vr(t1)}, v0, 2, 2')
        a.I(f'v_lshl_add_u32 {vr(t0)}, {vr(t1)}, 7, {vr(t0)}')
        a.I(f'v_bfe_u32 {vr(t1)}, v0, 3, 1')
        a.I(f'v_xor_b32 {vr(t1)}, {sr(sKS)}, {vr(t1)}')
        a.I(f'v_lshl_add_u32 {vr(t0)}, {vr(t1)}, 6, {vr(t0)}')
        a.I(f'v_and_b32 {vr(t1)}, 1, v0')
        a.I(f'v_lshl_add_u32 {vr(t0)}, {vr(t1)}, 3, {vr(t0)}')
        a.I(f's_lshl_b32 s3, {sr(sNH)}, 9')
        a.I(f'v_add_u32 {vr(vWp)}, s3, {vr(t0)}')
        a.I(f'v_xor_b32 {vr(vWp + 1)}, 32, {vr(vWp)}')
        a.I(f'v_add_u32 {vr(vX)}, {XB}, {vr(vL16)}')
        a.I(f'v_add_u32 {vr(vX + 1)}, {XB + 9216}, {vr(vL16)}')
        for i in range(0, 72, 2): a.I(f'v_mov_b64 {vr(ACC + i, 2)}, 0')
        a.I(f's_add_u32 {sr(sE)}, s16, {EXCH_OFF}')
        a.I(f's_addc_u32 {sr(sE + 1)}, s17, 0')
        a.I(f's_mov_b32 {sr(sE + 2)}, {256 * 36864}')
        a.I(f's_mov_b32 {sr(sE + 3)}, 0x20000')
        a.I(f's_mul_i32 s3, {sr(sB)}, {144 * 4096}')
        a.I(f's_add_u32 {sr(sD)}, s10, s3')
        a.I(f's_addc_u32 {sr(sD + 1)}, s11, 0')
        a.I(f's_mov_b32 {sr(sD + 2)}, {144 * 4096}')
        a.I(f's_mov_b32 {sr(sD + 3)}, 0x20000')
        a.I(f's_cmp_eq_u32 {sr(sNH)}, {sr(sKH)}')
        a.I('s_cselect_b32 s5, 1, 0')
        a.I(f's_cselect_b32 {sr(sPC)}, 9, 7')
        a.I('s_xor_b32 s3, s2, s5')
        a.I('s_lshl_b32 s3, s3, 1')
        a.I(f's_add_u32 s3, s3, {sr(sKS)}')
        a.I(f's_lshl_b32 {sr(sT0)}, s3, 7')
        a.I(f's_mul_i32 {sr(sOX)}, s3, 18432')
        FS = (24, 68)
        def reads(F, slot, ks):
            w = [f'ds_read_b64_tr_b16 {vr(F + 4 * j + 2 * h, 2)}, {vr(vWp + j)} offset:{slot * 16384 + ks * 2048 + h * 1024}' for j in range(2) for h in range(2)]
            x = [f'ds_read_b128 {vr(F + 8 + 4 * t, 4)}, {vr(vX + ks)} offset:{slot * 18432 + t * 1024}' for t in range(9)]
            return w[:2] + x[:1] + w[2:] + x[1:]
        G2 = OPT['gate2']
        def kstep(Fc, Fn, nslot, nks, gated):
            rd_ = reads(Fn, nslot, nks)
            if not gated: a.I(f's_waitcnt lgkmcnt({OPT["lw2"]})')
            k = 0
            for t in range(9):
                for j in range(2):
                    if gated and k == G2:
                        a.I('s_waitcnt lgkmcnt(0)')
                        a.I('s_barrier')
                    if not gated and k == 6: a.I(f's_waitcnt lgkmcnt(6)')
                    a.I(f'{MF} {vr(acc(t, j), 4)}, {vr(Fc + 4 * j, 4)}, {vr(Fc + 8 + 4 * t, 4)}, {vr(acc(t, j), 4)}')
                    if k >= (G2 if gated else 0) and rd_: a.I(rd_.pop(0))
                    k += 1
            assert not rd_
        if OPT['cprio']: a.I(f's_setprio {OPT["cprio"]}')
        a.I('s_barrier')
        st.cyc()
        a.many(reads(FS[0], 0, 0))
        a.I(f's_mov_b32 {sr(sCNT)}, 0')
        lg0 = [set(x) for x in a.lg]
        a.label('k2_cloop')
        for i in range(4):
            kstep(FS[0], FS[1], i, 1, False)
            kstep(FS[1], FS[0], (i + 1) & 3, 0, True)
        assert [set(x) for x in a.lg] == lg0
        a.I(f's_add_u32 {sr(sCNT)}, {sr(sCNT)}, 1')
        a.I(f's_cmp_lt_u32 {sr(sCNT)}, {sr(sPC)}')
        a.I('s_cbranch_scc1 k2_cloop')
        st.cyc()
        XP = NT('xpol')
        a.I(f'v_mov_b32 {vr(t0)}, 0')
        a.I('s_cmp_eq_u32 s5, 1')
        a.I('s_cbranch_scc1 k2_keep')
        SB = {1: (8,), 2: (5, 11), 0: ()}[OPT['ssplit']]
        for k in range(18):
            a.I(f'buffer_store_dwordx4 {vr(ACC + 4 * k, 4)}, {vr(vL16)}, {sr(sE, 4)}, {sr(sOX)} offen offset:{(k & 3) * 1024}{XP}')
            if k & 3 == 3: a.I(f's_add_u32 {sr(sOX)}, {sr(sOX)}, 4096')
            if k in SB: a.I('s_barrier')
        stn = st.n
        st.cyc()
        for _ in range(OPT['sbar']): a.I('s_barrier')
        a.I(f'v_mov_b32 {vr(t1)}, 1')
        a.I('s_mov_b64 exec, 1')
        a.I('s_waitcnt vmcnt(0)')
        st.cyc()
        a.I(f'buffer_store_dword {vr(t1)}, {vr(t0)}, {sr(sF, 4)}, {sr(sT0)} offen{XP}')
        a.I('s_mov_b64 exec, -1')
        for _ in range(8 - len(SB) - OPT['sbar']): a.I('s_barrier')
        st.cyc(); st.real()
        st.flush(16, K.sWAVE, sW, t1)
        a.I('s_endpgm')
        a.label('k2_keep')
        st.n = stn
        a.I(f's_mov_b32 {sr(sCNT)}, 0')
        st.cyc()
        a.label('k2_poll')
        a.I(f'buffer_load_dword {vr(t1)}, {vr(t0)}, {sr(sF, 4)}, {sr(sT0)} offen{XP}')
        a.I(f's_add_u32 {sr(sCNT)}, {sr(sCNT)}, 1')
        a.I('s_waitcnt vmcnt(0)')
        a.I(f'v_cmp_eq_u32 vcc, 1, {vr(t1)}')
        a.I('s_cbranch_vccnz k2_got ; POLL')
        a.I(f's_cmp_lt_u32 {sr(sCNT)}, {OPT["pollmax"]}')
        a.I('s_cbranch_scc1 k2_poll')
        a.label('k2_got')
        st.cyc()
        for k in range(18):
            a.I(f'buffer_load_dwordx4 {vr(TMP + 4 * k, 4)}, {vr(vL16)}, {sr(sE, 4)}, {sr(sOX)} offen offset:{(k & 3) * 1024}{XP}')
            if k & 3 == 3: a.I(f's_add_u32 {sr(sOX)}, {sr(sOX)}, 4096')
        a.I(f'v_and_b32 {vr(t2)}, 15, v0')
        a.I(f'v_lshlrev_b32 {vr(t2)}, 12, {vr(t2)}')
        a.I(f'v_lshl_add_u32 {vr(t2)}, {vr(g)}, 4, {vr(t2)}')
        a.I(f's_lshl_b32 s3, {sr(sBLK)}, 11')
        a.I(f's_lshl_b32 s4, {sr(sN8)}, 8')
        a.I('s_add_u32 s3, s3, s4')
        a.I(f's_lshl_b32 s4, {sr(sR)}, 6')
        a.I('s_add_u32 s3, s3, s4')
        for t in range(9):
            a.I(f's_waitcnt vmcnt({16 - t})')
            d = acc(t, 0)
            for k in range(4): a.I(f'v_pk_add_f32 {vr(d + 2 * k, 2)}, {vr(d + 2 * k, 2)}, {vr(TMP + 8 * t + 2 * k, 2)}')
            for k in range(4): a.I(f'v_cvt_pk_bf16_f32 {vr(d + k)}, {vr(d + 2 * k)}, {vr(d + 2 * k + 1)}')
            for mn in ('v_permlane32_swap_b32', 'v_permlane16_swap_b32'):
                for k in range(2): a.I(f'{mn} {vr(d + k)}, {vr(d + 2 + k)}')
            a.I(f'buffer_store_dwordx4 {vr(d, 4)}, {vr(t2)}, {sr(sD, 4)}, s3 offen{NT("outp")}')
            a.I('s_add_u32 s3, s3, 65536')
        st.cyc(); st.real()
        st.flush(16, K.sWAVE, sW, t0)
        a.label('k1_end')
        a.raw('s_endpgm')
        return a

HEADER = open(f'cdna_kernels/{NAME}.s.ref').read().split('; Override launch')[0]
def kd(name, vg, sg=102):
    return f'''.amdhsa_kernel {name}
  .amdhsa_next_free_vgpr {vg}
  .amdhsa_next_free_sgpr {sg}
  .amdhsa_accum_offset {(min(vg, 256) + 3) // 4 * 4}
  .amdhsa_group_segment_fixed_size 0
  .amdhsa_kernarg_size 104
  .amdhsa_user_sgpr_count 2
  .amdhsa_user_sgpr_kernarg_segment_ptr 1
  .amdhsa_system_sgpr_workgroup_id_x 1
.end_amdhsa_kernel
'''
def main():
    ks = [('attn_kernel', gen_k1(), 256, 163840)]
    out = HEADER
    if OPT['fuse']:
        ks = [(NAME + '_kernel', ks[0][1], 256, 163840)]
        out += '; @launch grid=(256,1,1) block=(512,1,1) lds=163840\n'
    else:
        for nm, _, _, lds in ks:
            out += f'; @launch kernel={nm} grid=(256,1,1) block=(512,1,1) lds={lds}\n'
    out += '.amdgcn_target "amdgcn-amd-amdhsa--gfx950"\n.text\n'
    for nm, a, vg, lds in ks:
        if OPT.get('novm'):
            seen = False; keep = []
            for x in a.ins:
                if x.mn == 's_barrier': seen = True
                if x.label in ('k2_m1',): seen = False
                if x.label == 'k2_cloop': seen = False; OPT['_stop'] = 1
                if OPT.get('_stop'): seen = False
                if seen and x.mn == 'buffer_load_dwordx4': continue
                keep.append(x)
            a.ins = keep
        if OPT.get('nokv'): a.ins = [x for x in a.ins if not (x.kind == 'vmem' and x.mn == 'buffer_load_dwordx4' and not x.lds and 'nt' in x.mods)]
        if OPT.get('nomfma'): a.ins = [x for x in a.ins if x.kind != 'mfma']
        if OPT.get('nods'): a.ins = [x for x in a.ins if not (x.kind == 'ds' and 'read' in x.mn)]
        n = a.pad_hazards(verbose=bool(OPT.get('v')))
        errs = 0; nbs = set()
        for wave in range(8):
            for pol in (lambda i, x: 'POLL' in x.text, lambda i, x: True):
              for wgid in (3, 4, 5):
                tr = a.trace(wgid, wave, pol)
                e, nb = a.verify_waits(tr, quiet=(errs > 0 or bool(OPT.get('novm')) or OPT['stamp'] == 4)); errs += e; nbs.add(nb)
        assert (len(nbs) == 1 or (len(nbs) == 2 and max(nbs) - min(nbs) == 7 - OPT['sbar'])) and (errs == 0 or OPT.get('novm') or OPT['stamp'] == 4), (nbs, errs)
        print(f'{nm}: {len(a.ins)} lines, nops added {n}, wait errors {errs}, barriers {nb}, trace len {len(tr)}', file=sys.stderr)
        out += f'.globl {nm}\n.p2align 8\n.type {nm},@function\n{nm}:\n' + a.text()
    out += '.section .rodata,"a"\n'
    for nm, a, vg, lds in ks:
        out += '.p2align 6\n' + kd(nm, vg)
    open(sys.argv[1], 'w').write(out)
main()
```

```python
import sys, math, struct
from asmlib import *

NAME = 'concat_heads__mha_block_cached__mha_block_cached__near_ridge'
OPT = dict(stamp=0, kvnt=1, wnt=0, xnt=0, ont=2, wont=0, oldnt=0, rot1=3, rot2=3, wopf=3, ord=1, desync=1, pre1=1, gate=2, cprio=1, tail=1, rotc=0, rhh=0, vfirst=1, hpmap=2, s2=1, fuse=1, gate2=0, lw2=4, sbar=3, ssplit=1, ntm=255, oldf=2, cpf=1, sy=4, nimm=3, aux0=0, auxs=1, pp=0, mv=0, mk=0, nwo=16, pfp=0, xpol=2, outp=0, pollmax=100000, qprio=1, rs0=10, rs1=13, stag=1, aprio=1, pS=0, pM=0, pV=0, smfirst=0)
for a in sys.argv[2:]:
    k, v = a.split('='); OPT[k] = int(v) if v.lstrip('-').isdigit() else v

def fbits(x): return '0x%08x' % struct.unpack('<I', struct.pack('<f', x))[0]
NT = lambda k: {0: '', 1: ' nt', 2: ' sc1', 3: ' sc0 sc1', 4: ' sc1 nt'}[OPT[k]]
APOL = lambda kind, j: ' nt' if (OPT['ntm'] >> (j + (4 if kind == 'V' else 0))) & 1 else ''
THRV = '0x7f800000' if OPT.get('novm') else fbits(8.0)
O_SLICE = 128 * 9216
STAMP_OFF = 64 << 20
EXCH_OFF = 32 << 20
FLAG_OFF = 48 << 20

class Stamper:
    def __init__(self, a, region):
        self.a = a; self.n = 0; self.region = region
    def real(self):
        if OPT['stamp'] == 5:
            if self.region == 0 and not self.n: self.a.I('s_memrealtime s[76:77]'); self.n = 1
            return
        if OPT['stamp'] == 4 and self.region == 0 and self.n: return
        if OPT['stamp']:
            self.a.I(f's_memrealtime {sr(76 + 2 * self.n, 2)}'); self.n += 1
    def cyc(self):
        if OPT['stamp'] == 5: return
        if OPT['stamp'] == 4 and self.region == 0:
            self.a.raw('s_waitcnt lgkmcnt(0)'); self.sh(); return
        if OPT['stamp']:
            self.a.I(f's_memtime {sr(76 + 2 * self.n, 2)}'); self.n += 1
    def sh(self):
        if OPT['stamp'] == 4 and self.region == 0:
            for i in range(13): self.a.raw(f's_mov_b32 s{80 + i}, s{81 + i}')
            self.a.raw('s_mov_b32 s93, s98')
            self.a.raw('s_memtime s[98:99]')
    def flush(self, s_ws, s_wave, srd, vt):
        if not OPT['stamp']: return
        a = self.a
        if OPT['stamp'] == 5:
            if self.region == 0: return
            a.I('s_memrealtime s[78:79]'); self.n = 2
        regs = [76 + 2 * i for i in range(self.n)]
        if OPT['stamp'] == 4 and self.region == 0:
            regs = [76] + list(range(81, 94)) + [98]; self.n = 0
        assert self.n <= 12
        a.I('s_waitcnt vmcnt(0) lgkmcnt(0)')
        a.I(f's_add_u32 {sr(srd)}, {sr(s_ws)}, {STAMP_OFF + self.region * (1 << 20)}')
        a.I(f's_addc_u32 {sr(srd + 1)}, {sr(s_ws + 1)}, 0')
        a.I(f's_mov_b32 {sr(srd + 2)}, {1 << 20}')
        a.I(f's_mov_b32 {sr(srd + 3)}, 0x20000')
        a.I(f's_lshl_b32 s3, s2, 3')
        a.I(f's_add_u32 s3, s3, {sr(s_wave)}')
        a.I(f's_lshl_b32 s3, s3, 6')
        a.I(f'v_mov_b32 {vr(vt)}, 0')
        a.I(f'v_mov_b32 {vr(vt + 1)}, {self.n}')
        a.I(f'buffer_store_dword {vr(vt + 1)}, {vr(vt)}, {sr(srd, 4)}, s3 offen offset:60')
        a.I('s_nop 1')
        for i in range(len(regs)):
            a.I(f'v_mov_b32 {vr(vt + 1)}, {sr(regs[i])}')
            a.I(f'buffer_store_dword {vr(vt + 1)}, {vr(vt)}, {sr(srd, 4)}, s3 offen offset:{4 * i}')
            a.I('s_nop 1')

def gen_k1():
    a = Asm()
    st = Stamper(a, 0)
    MF = 'v_mfma_f32_16x16x32_bf16'
    sX, sW, sK, sV, sO = 20, 24, 28, 32, 36
    sWAVE, sR, sHH, sBLK, sB, sHP = 40, 41, 42, 43, 44, 45
    sM0W, sM0X, sOW, sOX, sLOOSE, sNEXT, sKVI = 46, 47, 48, 49, 50, 51, 52
    sSLW, sSLX = 53, 54
    sCNT, sT0, sT1 = 55, 56, 57
    sKP, sVP, sM0A, sDK, sDV, sOV, sOK = 58, 59, 60, 62, 63, 64, 65
    sTHR, sTHR8, sCL, sCL8 = 66, 67, 68, 69
    sC = 70
    sKPo, sVPo = 72, 73
    sST, sROT = 74, 75
    sLINK = 6
    sH = 61
    sPFO, sMK, sMV = 48, 50, 51
    sJ = 47
    sRS, sRC = 46, 61
    vKa, vVa, vD = 1, 3, 7
    mx, mx8, tA, tB = 8, 9, 10, 11
    ONES, NEGM, Q, S, POOL, O = 12, 16, 28, 76, 116, 148
    ACC, XF, WF = 112, 76, 44
    XB, QB = 49152, 49152
    HB1 = 114688
    def acc(t, j): return ACC + (t * 4 + j) * 4
    def o_(T, d): return O + (T * 9 + (d + 1) % 9) * 4
    JUNK = O + 3
    def q_(T, k): return Q + (T * 4 + k) * 4
    def s_(T, j, tt=0): return S + (T * 2 + j) * 8 + tt * 4 if T < 2 else S + 32 + tt * 4
    def negm(T): return NEGM + 4 * T
    kvreg = {'K0': 160, 'V0': 192, 'K1': 76, 'V1': 108}
    g, n, t0, t1, t2, t3 = 12, 13, 14, 15, 16, 17

    def hfun(dst, src, tmp):
        a.I(f'v_lshrrev_b32 {vr(tmp)}, 1, {vr(src)}')
        a.I(f'v_xor_b32 {vr(dst)}, {vr(src)}, {vr(tmp)}')
        a.I(f'v_and_b32 {vr(dst)}, 1, {vr(dst)}')
        a.I(f'v_lshl_or_b32 {vr(dst)}, {vr(dst)}, 1, {vr(tmp)}')
    def tr_pattern(dst):
        a.I(f'v_lshrrev_b32 {vr(g)}, 4, v0')
        hfun(t0, g, t1)
        a.I(f'v_bfe_u32 {vr(t1)}, v0, 1, 1')
        a.I(f'v_xor_b32 {vr(t0)}, {vr(t0)}, {vr(t1)}')
        a.I(f'v_lshlrev_b32 {vr(t0)}, 4, {vr(t0)}')
        a.I(f'v_lshl_add_u32 {vr(t0)}, {vr(g)}, 12, {vr(t0)}')
        a.I(f'v_bfe_u32 {vr(t1)}, v0, 2, 2')
        a.I(f'v_lshl_add_u32 {vr(t0)}, {vr(t1)}, 7, {vr(t0)}')
        a.I(f'v_bfe_u32 {vr(t1)}, v0, 3, 1')
        a.I(f'v_lshl_add_u32 {vr(t0)}, {vr(t1)}, 6, {vr(t0)}')
        a.I(f'v_and_b32 {vr(t1)}, 1, v0')
        a.I(f'v_lshl_add_u32 {vr(dst)}, {vr(t1)}, 3, {vr(t0)}')

    a.raw('s_cmp_ge_u32 s2, 256')
    a.raw('s_cbranch_scc1 k1_end')
    st.real(); st.cyc()
    a.I('s_and_b32 s3, s2, 7')
    a.I('s_lshr_b32 s4, s2, 3')
    a.I(f's_lshr_b32 {sr(sBLK)}, s3, 2')
    a.I(f's_mul_i32 s5, {sr(sBLK)}, 40')
    a.I('s_load_dwordx8 s[8:15], s[0:1], s5')
    a.I('s_load_dwordx2 s[16:17], s[0:1], 96')
    a.I('s_add_u32 s5, s5, 32')
    a.I('s_load_dwordx2 s[18:19], s[0:1], s5')
    if OPT['fuse']: a.I('s_load_dwordx2 s[100:101], s[0:1], 88')
    a.I('s_and_b32 s5, s4, 3')
    if OPT['hpmap'] == 2: a.I('s_add_u32 s3, s3, s5')
    a.I('s_and_b32 s3, s3, 3')
    a.I(f's_lshl_b32 {sr(sHP)}, s5, 2')
    a.I(f's_add_u32 {sr(sHP)}, {sr(sHP)}, s3')
    a.I(f's_lshr_b32 {sr(sB)}, s4, 2')
    a.I(f's_add_u32 {sr(sROT)}, {sr(sB)}, s5')
    a.I(f'v_lshrrev_b32 {vr(t0)}, 6, v0')
    a.I(f'v_readfirstlane_b32 {sr(sWAVE)}, {vr(t0)} ; WAVEID')
    a.I('v_and_b32 v0, 63, v0')
    a.I(f's_and_b32 {sr(sR)}, {sr(sWAVE)}, 3')
    a.I(f's_lshr_b32 {sr(sHH)}, {sr(sWAVE)}, 2')
    a.I(f's_lshr_b32 s3, {sr(sR)}, 1')
    a.I(f's_xor_b32 {sr(sH)}, {sr(sR)}, s3')
    a.I(f's_and_b32 {sr(sH)}, {sr(sH)}, 1')
    a.I(f's_lshl_b32 {sr(sH)}, {sr(sH)}, 1')
    a.I(f's_or_b32 {sr(sH)}, {sr(sH)}, s3')
    a.I(f'v_and_b32 {vr(t0)}, 7, v0')
    a.I(f'v_xor_b32 {vr(t0)}, {sr(sH)}, {vr(t0)}')
    a.I(f'v_bfe_u32 {vr(t1)}, v0, 4, 1')
    a.I(f'v_lshlrev_b32 {vr(t1)}, 2, {vr(t1)}')
    a.I(f'v_xor_b32 {vr(t0)}, {vr(t0)}, {vr(t1)}')
    a.I(f'v_lshlrev_b32 {vr(t0)}, 4, {vr(t0)}')
    a.I(f'v_lshrrev_b32 {vr(t1)}, 5, v0')
    a.I(f'v_lshl_add_u32 {vr(t0)}, {vr(t1)}, 7, {vr(t0)}')
    a.I(f'v_lshrrev_b32 {vr(g)}, 4, v0')
    a.I(f'v_bfe_u32 {vr(t1)}, v0, 3, 2')
    a.I(f's_lshl_b32 s3, {sr(sR)}, 4')
    a.I(f'v_add_u32 {vr(t1)}, s3, {vr(t1)}')
    a.I(f'v_lshl_add_u32 {vr(vD)}, {vr(t1)}, 8, {vr(t0)}')
    a.I(f's_lshl_b32 {sr(sM0W)}, {sr(sR)}, 12')
    def rest_setup():
        a.I(f's_mul_i32 {sr(sM0A)}, {sr(sHH)}, 81920')
        a.I(f's_add_u32 {sr(sM0A)}, {sr(sM0A)}, {sr(sM0W)}')
        a.I(f's_lshl_b32 s3, {sr(sB)}, 4')
        a.I(f's_add_u32 s3, s3, {sr(sHP)}')
        a.I('s_lshl_b32 s3, s3, 18')
        for (d, p) in ((sK, 10), (sV, 12)):
            a.I(f's_add_u32 {sr(d)}, {sr(p)}, s3')
            a.I(f's_addc_u32 {sr(d + 1)}, {sr(p + 1)}, 0')
            a.I(f's_mov_b32 {sr(d + 2)}, 262144')
            a.I(f's_mov_b32 {sr(d + 3)}, 0x20000')
    a.I(f's_cmp_eq_u32 {sr(sHH)}, 0')
    a.I('s_cbranch_scc1 k1_comp')

    def flag_srd(d):
        a.I(f's_add_u32 {sr(d)}, s16, {FLAG_OFF}')
        a.I(f's_addc_u32 {sr(d + 1)}, s17, 0')
        a.I(f's_mov_b32 {sr(d + 2)}, 98304')
        a.I(f's_mov_b32 {sr(d + 3)}, 0x20000')
    def dbg_srd(d):
        a.I(f's_mov_b32 {sr(d)}, s100')
        a.I(f's_mov_b32 {sr(d + 1)}, s101')
        a.I(f's_mov_b32 {sr(d + 2)}, 256')
        a.I(f's_mov_b32 {sr(d + 3)}, 0x20000')
    def oflag_off(d):
        a.I(f's_lshl_b32 {d}, {sr(sBLK)}, 3')
        a.I(f's_add_u32 {d}, {d}, {sr(sB)}')
        a.I(f's_lshl_b32 {d}, {d}, 4')
        a.I(f's_add_u32 {d}, {d}, {sr(sHP)}')
        a.I(f's_lshl_b32 {d}, {d}, 7')
        a.I(f's_add_u32 {d}, {d}, 65536')
    def wo_srd():
        a.I(f's_lshl_b32 s3, {sr(sB)}, 4')
        a.I(f's_add_u32 s3, s3, {sr(sHP)}')
        a.I('s_lshl_b32 s3, s3, 16')
        a.I(f's_add_u32 {sr(sX)}, s18, s3')
        a.I(f's_addc_u32 {sr(sX + 1)}, s19, 0')
        a.I(f's_mov_b32 {sr(sX + 2)}, 65536')
    vDW, vDX = 20, 24
    a.I(f'v_lshl_add_u32 {vr(vDW)}, {vr(t1)}, 13, {vr(t0)}')
    for tq in range(1, 4): a.I(f'v_add_u32 {vr(vDW + tq)}, {tq * (32768 - 1024)}, {vr(vDW)}')
    a.I(f's_and_b32 {sr(sOX)}, {sr(sROT)}, {OPT["rot1"]}')
    a.I(f's_lshl_b32 {sr(sOW)}, {sr(sOX)}, 19')
    a.I(f's_lshl_b32 s3, {sr(sHP)}, 9')
    a.I(f's_sub_u32 {sr(sW + 2)}, 8388608, s3')
    a.I(f's_mov_b32 {sr(sW + 3)}, 0x20000')
    a.I(f's_mov_b32 m0, {sr(sM0W)}')
    a.I('s_waitcnt lgkmcnt(0)')
    a.I(f's_add_u32 {sr(sW)}, s14, s3')
    a.I(f's_addc_u32 {sr(sW + 1)}, s15, 0')
    def wloads(hq):
        for tq in range(4): a.I(f'buffer_load_dwordx4 {vr(vDW + tq)}, {sr(sW, 4)}, {sr(sOW)} offen offset:{tq * 1024 + hq * 256}{NT("wnt")} lds')
    wloads(0)
    a.I(f's_add_u32 m0, {sr(sM0W)}, {HB1 - 256}')
    a.I(f's_mul_i32 s3, {sr(sB)}, 294912')
    wloads(1)
    a.I(f's_add_u32 {sr(sX)}, s8, s3')
    a.I(f's_addc_u32 {sr(sX + 1)}, s9, 0')
    a.I(f's_mov_b32 {sr(sX + 2)}, 294912')
    a.I(f's_mov_b32 {sr(sX + 3)}, 0x20000')
    a.I(f'v_and_b32 {vr(t1)}, 2, {vr(g)}')
    a.I(f'v_lshlrev_b32 {vr(t1)}, 1, {vr(t1)}')
    a.I(f'v_xor_b32 {vr(t0)}, {vr(g)}, {vr(t1)}')
    a.I(f'v_and_b32 {vr(t1)}, 7, v0')
    a.I(f'v_xor_b32 {vr(t0)}, {vr(t0)}, {vr(t1)}')
    a.I(f'v_lshlrev_b32 {vr(t0)}, 4, {vr(t0)}')
    a.I(f'v_lshrrev_b32 {vr(t1)}, 3, v0')
    a.I(f'v_lshl_add_u32 {vr(t0)}, {vr(t1)}, 11, {vr(t0)}')
    a.I(f'v_xor_b32 {vr(t1)}, 64, {vr(t0)}')
    a.I(f's_lshl_b32 s3, {sr(sR)}, 16')
    for j in range(4):
        a.I(f'v_add_u32 {vr(vDX + j)}, s3, {vr((t0, t1)[j & 1])}')
        if j < 3: a.I(f's_add_u32 s3, s3, {16384 - 1024}')
    a.I(f's_lshl_b32 s3, {sr(sR)}, 6')
    a.I(f'v_xor_b32 {vr(t0)}, s3, {vr(t0)}')
    a.I(f's_lshl_b32 s3, {sr(sR)}, 14')
    a.I('s_add_u32 s3, s3, 262144')
    a.I(f'v_add_u32 {vr(vDX + 4)}, s3, {vr(t0)}')
    a.I(f's_lshl_b32 {sr(sM0X)}, {sr(sR)}, 10')
    a.I(f's_add_u32 {sr(sM0X)}, {sr(sM0X)}, {XB + 16384}')
    a.I(f's_mov_b32 {sr(sST)}, 1')
    a.I(f's_mov_b32 {sr(sSLW)}, 0')
    a.I(f's_mov_b32 {sr(sSLX)}, 0')
    def stage_w():
        R = OPT['rot1']
        a.many([f's_add_u32 {sr(sOX)}, {sr(sST)}, {sr(sROT)}',
                f's_and_b32 {sr(sOX)}, {sr(sOX)}, {R}',
                f's_and_b32 {sr(sOW)}, {sr(sST)}, {15 & ~R}',
                f's_or_b32 {sr(sOX)}, {sr(sOX)}, {sr(sOW)}',
                f's_add_u32 m0, {sr(sM0W)}, {sr(sSLW)}',
                f's_lshl_b32 {sr(sOW)}, {sr(sOX)}, 19'])
        wloads(0)
        a.I(f's_add_u32 m0, m0, {HB1 - 256}')
        a.I(f's_add_u32 {sr(sST)}, {sr(sST)}, 1')
        wloads(1)
    def stage_x():
        lb = a.newlabel('k1_skipx')
        a.I(f's_add_u32 {sr(sT0)}, {sr(sM0W)}, {sr(sSLX)}')
        a.I(f's_add_u32 m0, {sr(sT0)}, {XB}')
        a.I(f's_lshl_b32 {sr(sOX)}, {sr(sOX)}, 7')
        for j in range(4): a.I(f'buffer_load_dwordx4 {vr(vDX + j)}, {sr(sX, 4)}, {sr(sOX)} offen offset:{j * 1024}{NT("xnt")} lds')
        a.I(f's_add_u32 m0, {sr(sM0X)}, {sr(sSLX)}')
        a.I(f's_cmp_ge_u32 {sr(sR)}, 2')
        a.I(f's_cbranch_scc1 {lb}')
        a.I(f'buffer_load_dwordx4 {vr(vDX + 4)}, {sr(sX, 4)}, {sr(sOX)} offen{NT("xnt")} lds')
        a.label(lb)
        a.I(f's_add_u32 {sr(sSLW)}, {sr(sSLW)}, 16384')
        a.I(f's_add_u32 {sr(sSLX)}, {sr(sSLX)}, 18432')
        a.I(f's_cmp_eq_u32 {sr(sSLW)}, 49152')
        a.I(f's_cselect_b32 {sr(sSLW)}, 0, {sr(sSLW)}')
        a.I(f's_cselect_b32 {sr(sSLX)}, 0, {sr(sSLX)}')
    stage_x()
    rest_setup()
    if OPT['pre1']:
        stage_w()
        a.I('s_waitcnt vmcnt(8)')
        a.I('s_barrier')
        stage_x()
    else:
        a.I('s_waitcnt vmcnt(0)')
        a.I('s_barrier')
        stage_w(); stage_x()
    st0 = st.n
    st.cyc()
    stage_w(); stage_x()
    a.I(f's_cmp_lg_u32 {sr(sR)}, 0')
    a.I('s_cbranch_scc1 k1_noreset')
    flag_srd(sO)
    oflag_off('s4')
    a.I('s_lshl_b32 s3, s2, 8')
    a.I(f'v_lshlrev_b32 {vr(t0)}, 2, v0')
    a.I(f'v_and_b32 {vr(t2)}, 127, {vr(t0)}')
    a.I(f'v_mov_b32 {vr(t1)}, 0')
    a.I(f'buffer_store_dword {vr(t1)}, {vr(t0)}, {sr(sO, 4)}, s3 offen sc1')
    a.I(f'buffer_store_dword {vr(t1)}, {vr(t2)}, {sr(sO, 4)}, s4 offen sc1')
    a.label('k1_noreset')
    a.I(f's_mul_i32 s3, s2, 171')
    a.I(f's_lshr_b32 s3, s3, 9')
    a.I(f's_mul_i32 s3, s3, 3')
    a.I(f's_sub_u32 {sr(sNEXT)}, s2, s3')
    if not OPT['desync']: a.I(f's_mov_b32 {sr(sNEXT)}, 0')
    a.I(f's_mov_b32 {sr(sLOOSE)}, 0')
    a.I(f's_mov_b32 {sr(sKVI)}, 0')
    a.I(f's_mov_b32 {sr(sCNT)}, 0')
    def lbar():
        lb = a.newlabel('k1_loose')
        a.I(f's_cmp_gt_i32 {sr(sLOOSE)}, 0')
        a.I(f's_cbranch_scc1 {lb}')
        a.I('s_waitcnt vmcnt(12)')
        a.label(lb)
        a.I(f's_sub_i32 {sr(sLOOSE)}, {sr(sLOOSE)}, 1')
        a.I('s_waitcnt vmcnt(20)')
        a.I('s_barrier')
    a.label('k1_lloop')
    lbar()
    stage_w(); stage_x()
    a.I(f's_cmp_lg_u32 {sr(sCNT)}, {sr(sNEXT)}')
    a.I('s_cbranch_scc1 k1_kvdone')
    a.I(f's_add_u32 {sr(sNEXT)}, {sr(sNEXT)}, 3')
    a.I(f's_add_u32 {sr(sKVI)}, {sr(sKVI)}, 1')
    for m, it in enumerate(('K0', 'V0', 'K1', 'V1')):
        a.I(f's_cmp_lg_u32 {sr(sKVI)}, {m + 1}')
        a.I(f's_cbranch_scc1 k1_kv{m + 1}')
        a.I(f's_mov_b32 {sr(sLOOSE)}, 2')
        for hq in range(2):
            a.I(f's_mov_b32 {sr(sT0)}, {int(it[1]) * 16384 + hq * 131072}')
            for j in range(4):
                a.I(f'buffer_load_dwordx4 {vr(kvreg[it] + 16 * hq + 4 * j, 4)}, {vr(vD)}, {sr(sK if it[0] == "K" else sV, 4)}, {sr(sT0)} offen offset:{j * 1024}{NT("kvnt")}')
        if m < 3: a.I('s_branch k1_kvdone')
        a.label(f'k1_kv{m + 1}')
    a.label('k1_kvdone')
    a.I(f's_add_u32 {sr(sCNT)}, {sr(sCNT)}, 1')
    a.I(f's_cmp_lt_u32 {sr(sCNT)}, 13')
    a.I('s_cbranch_scc1 k1_lloop')
    a.I(f's_add_u32 s3, {sr(sM0W)}, 16384')
    a.I(f'v_lshl_add_u32 {vr(tA)}, v0, 4, s3')
    a.I(f'v_add_u32 {vr(tB)}, {81920 + 32768}, {vr(tA)}')
    a.I(f'v_add_u32 {vr(mx)}, {81920 - 16384}, {vr(tA)}')
    def kvwrite(it, off, b1=tB, off1=None):
        for hq in range(2):
            o = off if (hq == 0 or off1 is None) else off1
            for j in range(4): a.I(f'ds_write_b128 {vr((tA, b1)[hq])}, {vr(kvreg[it] + 16 * hq + 4 * j, 4)} offset:{o + j * 1024}')
    lbar()
    npf = 0
    a.I(f'v_lshlrev_b32 {vr(t1)}, 4, v0')
    if OPT['cpf']:
        a.I(f's_getpc_b64 {sr(sO, 2)}')
        a.label('k1_pc')
        a.I(f's_mov_b32 {sr(sO + 2)}, k1_end-k1_pc')
        a.I(f's_mov_b32 {sr(sO + 3)}, 0x20000')
        a.I(f's_lshr_b32 s3, {sr(sHP)}, 2')
        a.I('s_lshl_b32 s3, s3, 2')
        a.I(f's_add_u32 s3, s3, {sr(sR)}')
        a.I('s_lshl_b32 s3, s3, 11')
        for k in range(2):
            a.I(f'buffer_load_dwordx4 v[228:231], {vr(t1)}, {sr(sO, 4)}, s3 offen offset:{k * 1024} ; NOCHECK')
            npf += 1
    if OPT['wopf'] == 3:
        wo_srd()
        a.I(f's_lshl_b32 {sr(sT0)}, {sr(sR)}, 14')
        for k in range(OPT['nwo']):
            a.I(f'buffer_load_dwordx4 v[224:227], {vr(t1)}, {sr(sX, 4)}, {sr(sT0)} offen offset:{(k & 3) * 1024} ; NOCHECK')
            if k & 3 == 3: a.I(f's_add_u32 {sr(sT0)}, {sr(sT0)}, 4096')
            npf += 1
            if k == 7: kvwrite('K0', 0); a.I(f's_waitcnt vmcnt({npf})'); a.I('s_barrier')
    else:
        kvwrite('K0', 0)
        a.I(f's_waitcnt vmcnt({npf})')
        a.I('s_barrier')
    kvwrite('V0', 16384)
    a.I('s_barrier')
    a.I('s_waitcnt vmcnt(0)')
    a.I(f's_cmp_lg_u32 {sr(sR)}, 0')
    a.I('s_cbranch_scc1 k1_nocount')
    dbg_srd(sO)
    a.I(f'v_mov_b32 {vr(t1)}, 0')
    a.I(f'v_mov_b32 {vr(t2)}, 1')
    a.I('s_mov_b64 exec, 1')
    a.I(f'buffer_atomic_add {vr(t2)}, {vr(t1)}, {sr(sO, 4)}, 0 offen sc1')
    a.I('s_mov_b64 exec, -1')
    a.label('k1_nocount')
    st.cyc()
    a.I('s_branch k1_join')

    a.label('k1_comp')
    a.lg = []
    st.n = st0
    vWp, vX, vQW = 1, 5, 8
    tr_pattern(vWp)
    a.I(f's_lshr_b32 s3, {sr(sR)}, 1')
    a.I(f's_mul_i32 s4, s3, {HB1}')
    a.I(f's_and_b32 s5, {sr(sR)}, 1')
    a.I('s_lshl_b32 s6, s5, 9')
    a.I('s_add_u32 s4, s4, s6')
    a.I(f'v_add_u32 {vr(vWp)}, s4, {vr(vWp)}')
    for j in range(1, 4): a.I(f'v_xor_b32 {vr(vWp + j)}, {32 * j}, {vr(vWp)}')
    a.I(f'v_and_b32 {vr(n)}, 15, v0')
    a.I(f'v_lshrrev_b32 {vr(t0)}, 1, {vr(n)}')
    a.I(f'v_and_b32 {vr(t1)}, 2, {vr(t0)}')
    a.I(f'v_lshlrev_b32 {vr(t1)}, 1, {vr(t1)}')
    a.I(f'v_xor_b32 {vr(t0)}, {vr(t0)}, {vr(t1)}')
    a.I(f'v_lshlrev_b32 {vr(t1)}, 1, {vr(g)}')
    a.I(f'v_xor_b32 {vr(t0)}, {vr(t0)}, {vr(t1)}')
    a.I(f'v_lshlrev_b32 {vr(t0)}, 4, {vr(t0)}')
    a.I(f'v_lshl_add_u32 {vr(t0)}, {vr(n)}, 7, {vr(t0)}')
    a.I(f'v_add_u32 {vr(vX)}, {XB}, {vr(t0)}')
    a.I(f'v_xor_b32 {vr(vX + 1)}, 16, {vr(vX)}')
    a.I(f's_mul_i32 s4, s3, 36864')
    a.I('s_lshl_b32 s6, s5, 11')
    a.I('s_add_u32 s4, s4, s6')
    a.I(f's_add_u32 s4, s4, {QB}')
    a.I(f'v_lshl_add_u32 {vr(t0)}, {vr(n)}, 4, s4')
    a.I(f'v_lshrrev_b32 {vr(t1)}, 1, {vr(g)}')
    a.I(f'v_lshl_add_u32 {vr(t0)}, {vr(t1)}, 8, {vr(t0)}')
    a.I(f'v_and_b32 {vr(t1)}, 1, {vr(g)}')
    a.I(f'v_lshl_add_u32 {vr(vQW)}, {vr(t1)}, 3, {vr(t0)}')
    a.I('s_waitcnt lgkmcnt(0)')
    rest_setup()
    cval = fbits(128 ** -0.5 * math.log2(math.e))
    a.I(f's_mov_b32 {sr(sC)}, {cval}')
    a.I(f's_mov_b32 {sr(sC + 1)}, {cval}')
    for i in range(0, 144, 2): a.I(f'v_mov_b64 {vr(ACC + i, 2)}, 0')
    def xread(t, slot, ks): return f'ds_read_b128 {vr(XF + 4 * t, 4)}, {vr(vX + ks)} offset:{slot * 18432 + t * 2048}'
    def wreads(W, slot, ks):
        return [f'ds_read_b64_tr_b16 {vr(W + 4 * j + 2 * h, 2)}, {vr(vWp + j)} offset:{slot * 16384 + ks * 2048 + h * 1024}' for j in range(4) for h in range(2)]
    GT = OPT['gate']
    def kstep(Wc, Wn, nslot, nks, gated, last=False):
        wr = wreads(Wn, nslot, nks) if not last else []
        conv = []
        for t in range(9):
            for j in range(4):
                a.I(f'{MF} {vr(acc(t, j), 4)}, {vr(Wc + 4 * j, 4)}, {vr(XF + 4 * t, 4)}, {vr(acc(t, j), 4)}')
                if t >= (GT if gated else 0) and j in (0, 2) and wr: a.I(wr.pop(0))
                for _ in range(5):
                    if conv: a.I(conv.pop(0))
            if gated and t == GT - 1:
                a.I('s_waitcnt lgkmcnt(0)')
                a.I('s_barrier')
                if not last:
                    for tt in range(GT): a.I(xread(tt, nslot, nks))
            elif not last and (not gated or t >= GT): a.I(xread(t, nslot, nks))
            if last and t >= GT - 1:
                lo = 0 if t == GT - 1 else t - 1
                for tc in range(lo, t): conv += convert(tc)
        if last:
            a.many(conv); a.many(convert(8))
        assert not wr
    def convert(t):
        r = []
        for j in range(4): r += [f'v_pk_mul_f32 {vr(acc(t, j) + 2 * k, 2)}, {vr(acc(t, j) + 2 * k, 2)}, {sr(sC, 2)}' for k in range(2)]
        for j in range(4): r += [f'v_cvt_pk_bf16_f32 {vr(acc(t, j) + k)}, {vr(acc(t, j) + 2 * k)}, {vr(acc(t, j) + 2 * k + 1)}' for k in range(2)]
        for j in range(4): r += [f'ds_write_b64 {vr(vQW)}, {vr(acc(t, j), 2)} offset:{t * 4096 + (j >> 1) * 1024 + (j & 1) * 512}']
        return r
    W0, W1 = WF, WF + 16
    if OPT['cprio']: a.I(f's_setprio {OPT["cprio"]}')
    a.I('s_barrier')
    st.cyc()
    a.many(wreads(W0, 0, 0))
    for t in range(9): a.I(xread(t, 0, 0))
    a.I(f's_mov_b32 {sr(sCNT)}, 0')
    a.I('s_waitcnt lgkmcnt(0)')
    class _Dry(Asm): pass
    save = (a.ins, a.lg); a.ins = []; a.lg = []
    kstep(W1, W0, 0, 0, True); lg0 = [set(x) for x in a.lg]
    a.ins, a.lg = save
    a.lg = [set(x) for x in lg0]
    a.label('k1_qloop')
    for i in range(3):
        kstep(W0, W1, i, 1, False)
        kstep(W1, W0, (i + 1) % 3, 0, True)
    assert [set(x) for x in a.lg] == lg0
    a.I(f's_add_u32 {sr(sCNT)}, {sr(sCNT)}, 1')
    a.I(f's_cmp_lt_u32 {sr(sCNT)}, 5')
    a.I('s_cbranch_scc1 k1_qloop')
    kstep(W0, W1, 0, 1, False)
    kstep(W1, W0, 0, 0, True, last=True)
    if OPT['cprio']: a.I('s_setprio 0')
    st.cyc()

    a.label('k1_join')
    a.lg = [set()]
    a.I(f's_lshl_b32 {sr(sKP)}, {sr(sHH)}, 15')
    a.I(f's_add_u32 {sr(sKP)}, {sr(sKP)}, 16384')
    a.I(f's_add_u32 {sr(sVP)}, {sr(sKP)}, 16384')
    a.I(f's_and_b32 s3, {sr(sR)}, 1')
    a.I('s_lshl_b32 s3, s3, 11')
    a.I(f's_lshl_b32 {sr(sJ)}, s3, 1')
    a.I(f's_sub_u32 {sr(sJ)}, 2048, {sr(sJ)}')
    a.I(f's_mul_i32 s5, {sr(sHH)}, 81920')
    a.I('s_add_u32 s5, s5, s3')
    a.I(f's_add_u32 s4, s5, {sr(sVP)}')
    a.I(f's_add_u32 s5, s5, {sr(sKP)}')
    a.I(f's_mul_i32 s3, {sr(sHH)}, 36864')
    a.I(f's_add_u32 s3, s3, {QB}')
    a.I(f'v_lshl_add_u32 {vr(t3)}, v0, 4, s3')
    a.I(f's_lshl_b32 s3, {sr(sR)}, 13')
    a.I(f'v_add_u32 {vr(t2)}, s3, {vr(t3)}')
    a.I('s_waitcnt lgkmcnt(0)')
    a.I('s_barrier')
    for T in range(2):
        for k in range(4): a.I(f'ds_read_b128 {vr(q_(T, k), 4)}, {vr(t2)} offset:{T * 4096 + k * 1024}')
    for k in range(4): a.I(f'ds_read_b128 {vr(q_(2, k), 4)}, {vr(t3)} offset:{32768 + k * 1024}')
    tr_pattern(vVa)
    a.I(f'v_add_u32 {vr(vVa)}, s4, {vr(vVa)}')
    for j in range(1, 4): a.I(f'v_xor_b32 {vr(vVa + j)}, {32 * j}, {vr(vVa)}')
    a.I(f'v_bfe_u32 {vr(n)}, v0, 2, 2')
    hfun(t0, n, t1)
    a.I(f'v_xor_b32 {vr(t0)}, {vr(t0)}, {vr(g)}')
    a.I(f'v_lshlrev_b32 {vr(t0)}, 4, {vr(t0)}')
    a.I(f'v_lshl_add_u32 {vr(t0)}, {vr(n)}, 12, {vr(t0)}')
    a.I(f'v_and_b32 {vr(t1)}, 3, v0')
    a.I(f'v_lshl_add_u32 {vr(t0)}, {vr(t1)}, 7, {vr(t0)}')
    a.I(f'v_bfe_u32 {vr(t1)}, v0, 1, 1')
    a.I(f'v_lshl_add_u32 {vr(t0)}, {vr(t1)}, 6, {vr(t0)}')
    a.I(f'v_add_u32 {vr(vKa)}, s5, {vr(t0)}')
    a.I(f'v_xor_b32 {vr(vKa + 1)}, 64, {vr(vKa)}')
    for i in range(4): a.I(f'v_mov_b32 {vr(ONES + i)}, 0x3f803f80')
    for i in range(0, 12, 2): a.I(f'v_mov_b64 {vr(NEGM + i, 2)}, 0')
    NEG_BIG = fbits(-3.0e38)
    for s in (sTHR, sTHR8, sCL, sCL8): a.I(f's_mov_b32 {sr(s)}, {NEG_BIG}')
    a.I(f's_lshl_b32 s3, {sr(sHH)}, 17')
    a.I(f'v_add_u32 {vr(vD)}, s3, {vr(vD)}')
    a.I(f's_mov_b32 {sr(sOV)}, 32768')
    a.I(f's_mov_b32 {sr(sOK)}, 32768')
    for i in range(0, 108, 2): a.I(f'v_mov_b64 {vr(O + i, 2)}, 0')
    a.I(f's_lshl_b32 s5, {sr(sHH)}, 15')
    a.I(f's_add_u32 s5, s5, {sr(sM0A)}')
    a.I(f's_mov_b32 {sr(sT1)}, 32768')
    a.I(f's_mov_b32 {sr(sCNT)}, 0')
    a.I(f's_mov_b32 {sr(sRS)}, 0')
    if OPT['wopf'] in (1, 2):
        wo_srd()
        a.I(f's_lshl_b32 {sr(sOX)}, {sr(sWAVE)}, 13')
    a.I('s_waitcnt lgkmcnt(0)')
    a.I('s_barrier')
    a.lg = []
    def dma_ins(kind):
        srd, so = (sK, sOK) if kind == 'K' else (sV, sOV)
        r = [[f'buffer_load_dwordx4 {vr(vD)}, {sr(srd, 4)}, {sr(so)} offen offset:{j * 1024}{APOL(kind, j)} lds'] for j in range(4)]
        r[3].append(f's_add_u32 {sr(so)}, {sr(so)}, 16384')
        return r
    def dma_grp(kind, m0):
        r = dma_ins(kind); r[0] = [m0, 's_nop 0'] + r[0]
        return r
    if OPT['pp']:
        a.I('s_mov_b32 m0, s5')
        a.I('s_mov_b32 s3, 49152')
        for j in range(4): a.I(f'buffer_load_dwordx4 {vr(vD)}, {sr(sK, 4)}, s3 offen offset:{j * 1024}{NT("pfp")} lds')
    for x in dma_grp('K', 's_mov_b32 m0, s5'): a.many(x)
    a.I(f's_cmp_eq_u32 {sr(sHH)}, 0')
    a.I('s_cbranch_scc1 k1_nowr')
    kvwrite('K1', 32768, mx, 0); kvwrite('V1', 49152, mx, 16384)
    a.label('k1_nowr')
    a.lg = []
    LA, SY = 6, OPT['sy']
    def rd(kind, jl, f):
        if kind == 'K':
            return [f'ds_read_b128 {vr(POOL + 4 * f, 4)}, {vr(vKa + (f & 1))} offset:{(f >> 2) * 1024 + ((f >> 1) & 1) * 512}']
        return [f'ds_read_b64_tr_b16 {vr(POOL + 4 * f + 2 * h, 2)}, {vr(vVa + (f & 3))} offset:{h * 1024 + (f >> 2) * 512}' for h in range(2)]
    def rd_upd(kind, jl, f):
        r = rd(kind, jl, f)
        if kind == 'K' and f >= 6: r.append(f'v_add_u32 {vr(vKa + (f & 1))}, {sr(sDK if jl else sJ)}, {vr(vKa + (f & 1))}')
        if kind == 'V' and f >= 6:
            for x in (f - 2, f): r.append(f'v_add_u32 {vr(vVa + (x & 3))}, {sr(sDV if jl else sJ)}, {vr(vVa + (x & 3))}')
        return r
    for f in range(LA): a.many(rd('K', 0, f))
    lgK = [set(x) for x in a.lg]
    lgV = [set(Insn(x).wr) for f in range(LA) for x in rd('V', 0, f)]
    st.cyc()
    a.I(f's_lshr_b32 s3, {sr(sR)}, 1')
    a.I(f's_xor_b32 s3, s3, {sr(sHH)}')
    a.I('s_cmp_eq_u32 s3, 1')
    a.I('s_cbranch_scc1 k1_proL')

    def maxops(jl, heavy):
        ops = []
        vals = [s_(T, jl, tt) + k for tt in range(2) for T in range(2) for k in range(4)]
        for vs, dst in ((vals, mx),) + ((([s_(2, 0) + k for k in range(8)], mx8),) if heavy else ()):
            o = [f'v_max3_f32 {vr(dst)}, {vr(vs[0])}, {vr(vs[1])}, {vr(vs[2])}']
            for k in range(3, len(vs) - 1, 2): o.append(f'v_max3_f32 {vr(dst)}, {vr(dst)}, {vr(vs[k])}, {vr(vs[k + 1])}')
            o.append(f'v_max_f32 {vr(dst)}, {vr(dst)}, {vr(vs[-1])}')
            ops += o
        return ops
    def expops(jl, heavy):
        ops = []
        Tl = (0, 1, 2) if heavy else (0, 1)
        for k in range(8):
            for T in Tl: ops.append(f'v_exp_f32 {vr(s_(T, jl) + k)}, {vr(s_(T, jl) + k)}')
            if k >= 2 and k % 2 == 0:
                for T in Tl: ops.append(f'v_cvt_pk_bf16_f32 {vr(s_(T, jl) + k // 2 - 1)}, {vr(s_(T, jl) + k - 2)}, {vr(s_(T, jl) + k - 1)}')
        for T in Tl: ops.append(f'v_cvt_pk_bf16_f32 {vr(s_(T, jl) + 3)}, {vr(s_(T, jl) + 6)}, {vr(s_(T, jl) + 7)}')
        return ops
    def check(jl, heavy):
        for (thr, m, fn) in ((sTHR, mx, f'k1_rare{jl}'),) + (((sTHR8, mx8, 'k1_rare8'),) if heavy else ()):
            lb = a.newlabel('k1_ok')
            a.I(f'v_cmp_lt_f32 vcc, {sr(thr)}, {vr(m)}')
            a.I(f's_cbranch_vccz {lb}')
            a.I(f's_call_b64 {sr(sLINK, 2)}, {fn}')
            a.label(lb)
    def mfmas(kind, jl, heavy, f):
        Tl = (0, 1, 2) if heavy else (0, 1)
        P = vr(POOL + 4 * f, 4)
        if kind == 'K':
            tt, ks = f >> 2, f & 3
            return [f'{MF} {vr(s_(T, jl, tt), 4)}, {P}, {vr(q_(T, ks), 4)}, {vr(negm(T) if ks == 0 else s_(T, jl, tt), 4)}' for T in Tl]
        r = [f'{MF} {vr(o_(T, f), 4)}, {P}, {vr(s_(T, jl), 4)}, {vr(o_(T, f), 4)}' for T in Tl]
        if f == 7: r += [f'{MF} {vr(o_(T, 8), 4)}, {vr(ONES, 4)}, {vr(s_(T, jl), 4)}, {vr(o_(T, 8), 4)}' for T in Tl]
        return r
    def ring_step(doK, doV):
        r = []
        for (P, Po, D, on) in ((sKP, sKPo, sDK, doK), (sVP, sVPo, sDV, doV)):
            if not on: continue
            r.append([f's_mov_b32 {sr(Po)}, {sr(P)}',
                      f's_cmp_ge_u32 {sr(P)}, 49152',
                      f's_cselect_b32 {sr(D)}, {-49152 & 0xffffffff:#x}, {sr(sT1)}',
                      f's_add_u32 {sr(P)}, {sr(P)}, {sr(D)}',
                      f's_sub_u32 {sr(D)}, {sr(D)}, {sr(sJ)}'])
        return r
    def cost(x):
        if callable(x): return 8
        return 8 if x.startswith('v_exp') else 4
    def pack(stream, ngaps, reserved):
        for cap_extra in range(0, ngaps + 1):
            big = set((i * ngaps) // cap_extra for i in range(cap_extra)) if cap_extra else set()
            out = [[] for _ in range(ngaps)]; k = 0
            for gi in range(ngaps):
                room = (16 if gi in big else 8) - reserved[gi]
                while k < len(stream) and cost(stream[k]) <= room:
                    out[gi].append(stream[k]); room -= cost(stream[k]); k += 1
            if k == len(stream): return out
        out[-1] += stream[k:]
        return out
    def block(segs, streams, mode, aux0, nvm):
        uses = [(si, f) for si in range(len(segs)) for f in range(8)]
        nU = len(uses)
        gaps = []
        for k, (si, f) in enumerate(uses):
            for n_ in range(len(mfmas(segs[si][0], segs[si][1], segs[si][2], f))): gaps.append((k, n_))
        aux = {gp: [] for gp in gaps}; pre = {gp: [] for gp in gaps}
        for k in range(nU - LA):
            s2, f2 = uses[k + LA]
            rr = rd_upd(segs[s2][0], segs[s2][1], f2)
            for i, x in enumerate([x for x in rr if x.startswith('ds_')]): aux[(k, i)].append(x)
            pre[(k + 1, 0)] += [x for x in rr if x.startswith('v_')]
        if mode != 'fin':
            post = [gp for gp in gaps if gp[0] > nU - 8 + SY]
            q = [(f, x) for f in range(LA) for x in rd('V', 0, f)]
            early = [x for f, x in q if f < OPT['nimm']]; q = [(f, x) for f, x in q if f >= OPT['nimm']]
            per = -(-len(q) // len(post))
            for gp in post:
                for _ in range(per):
                    fdone = gp[0] - (nU - 8) - (0 if gp[1] == 1 else 1)
                    if q and q[0][0] <= fdone: aux[gp].append(q.pop(0)[1])
            assert not q, q
        for gp, x in zip(gaps[OPT['aux0']::OPT['auxs']], aux0): aux[gp].append(x)
        fill = {}
        for (sa, sb, skip, ops) in streams:
            gl = [gp for gp in gaps if sa <= uses[gp[0]][0] <= sb]
            gl = gl[skip:len(gl) - OPT['tail']]
            for gp, ol in zip(gl, pack(ops, len(gl), [4 * len(pre[gp]) for gp in gl])):
                fill[gp] = ol
                assert not (any(callable(x) for x in ol) and uses[gp[0]][0] != sa)
        def emit(x):
            if callable(x): x()
            elif isinstance(x, list):
                for y in x: emit(y)
            else: a.I(x)
        for k, (si, f) in enumerate(uses):
            kind, jl, heavy, after = segs[si]
            if f == 0 and OPT['aprio'] and si: a.I(f's_setprio {len(segs) - 1 - si}')
            for n_, m in enumerate(mfmas(kind, jl, heavy, f)):
                a.I(m)
                emit(pre[(k, n_)]); emit(fill.get((k, n_), [])); emit(aux[(k, n_)])
            if OPT['stamp'] == 3 and mode == 'loop' and f == 7 and si < 3: a.raw(f's_memtime {sr(90 + 2 * si, 2)}')
            if mode != 'fin' and k == nU - 8 + SY:
                if OPT['stamp'] == 3 and mode == 'loop':
                    a.raw('s_mov_b32 s88, s98')
                    a.raw('s_memtime s[96:97]')
                a.I(f's_waitcnt vmcnt({nvm}) lgkmcnt(0)')
                a.I('s_barrier')
                if OPT['aprio']: a.I('s_setprio 3')
                st.sh()
                if OPT['stamp'] == 3 and mode == 'loop': a.raw('s_memtime s[98:99]')
                a.many(early)
            if f == 7 and after: after()
        if mode != 'fin': assert [set(x) for x in a.lg] == lgV, (a.lg, lgV)
    def resc():
        lb = a.newlabel('k1_nors')
        a.I(f's_cmp_eq_u32 {sr(sRS)}, 0')
        a.I(f's_cbranch_scc1 {lb}')
        a.I(f's_call_b64 {sr(sLINK, 2)}, k1_rescale')
        a.label(lb)
    def sm(jl, heavy): return maxops(jl, heavy) + [lambda: check(jl, heavy)] + expops(jl, heavy)
    OFFM0 = 0x30000
    def warm(kind, so):
        return [[f'buffer_load_dwordx4 {vr(vD)}, {sr(sK if kind == "K" else sV, 4)}, {so} offen offset:{j * 1024}{NT("pfp")} lds'] for j in range(4)]
    def prologue(h0):
        a.lg = [set(x) for x in lgK]
        ax = ring_step(True, False)
        block([('K', 0, h0, lambda: (a.many(maxops(0, h0)), check(0, h0))), ('K', 1, False, None)],
              [(1, 1, 0, expops(0, h0))], 'pro', ax, 63)
    def body_aux():
        r = [[f's_add_u32 {sr(sMK)}, {sr(sM0A)}, {sr(sVPo)}',
              f's_add_u32 {sr(sMV)}, {sr(sM0A)}, {sr(sKPo)}',
              f's_cmp_ge_u32 {sr(sCNT)}, 6',
              f's_cselect_b32 {sr(sMV)}, {OFFM0}, {sr(sMV)}',
              f's_cselect_b32 {sr(sOV)}, 0x1000000, {sr(sOV)}',
              f's_sub_u32 s3, {sr(sCNT)}, 1',
              f's_cmp_ge_u32 s3, 5',
              f's_cselect_b32 m0, {OFFM0}, {sr(sMK)}',
              f's_cselect_b32 s3, 0x1000000, {sr(sOK)}',
              f's_cselect_b32 s4, 0, 16384']]
        r += ring_step(True, True)
        for j in range(4): r.append([f'buffer_load_dwordx4 {vr(vD)}, {sr(sK, 4)}, s3 offen offset:{j * 1024}{APOL("K", j)} lds'])
        r[-1] += [f's_add_u32 {sr(sOK)}, {sr(sOK)}, s4', f's_mov_b32 m0, {sr(sMV)}']
        nv = 4
        if OPT['mk']:
            w = warm('K', 's3')
            w[0] = [f's_mov_b32 s4, {OPT["mk"]}', f's_bitcmp1_b32 s4, {sr(sCNT)}', f's_cselect_b32 s3, {sr(sOK)}, 0x1000000'] + w[0]
            r += w; nv += 4
        if OPT['mv']:
            w = warm('V', 's3')
            w[0] = [f's_add_u32 s3, {sr(sOV)}, 16384', f's_mov_b32 s4, {OPT["mv"]}', f's_bitcmp1_b32 s4, {sr(sCNT)}', f's_cselect_b32 s3, s3, 0x1000000'] + w[0]
            r += w; nv += 4
        r += dma_ins('V')
        return r, nv
    def body(hc, tag, exit_to):
        a.lg = [set(x) for x in lgV]
        hn = not hc
        ax, nvm = body_aux()
        block([('V', 0, hc, resc), ('K', 0, hn, None), ('V', 1, False, resc), ('K', 1, False, None)],
              [(0, 1, 1, sm(1, False)), (2, 3, 1, sm(0, hn))], 'loop', ax, nvm)
        a.I(f's_add_u32 {sr(sCNT)}, {sr(sCNT)}, 1')
        a.I(f's_cmp_eq_u32 {sr(sCNT)}, 7')
        a.I(f's_cbranch_scc1 {exit_to}')
    def final(hc):
        a.lg = [set(x) for x in lgV]
        block([('V', 0, hc, resc), ('V', 1, False, None)], [(0, 0, 1, sm(1, False))], 'fin', [], 0)
        if OPT['aprio']: a.I('s_setprio 0')
    prologue(True)
    a.label('k1_X')
    body(True, 'x', 'k1_finL')
    a.label('k1_Y')
    body(False, 'y', 'k1_finH')
    a.I('s_branch k1_X')
    a.label('k1_proL')
    prologue(False)
    a.I('s_branch k1_Y')

    a.auto = False
    def xg_reduce(x, tmp, op):
        a.I(f'v_mov_b32 {vr(tmp)}, {vr(x)}')
        a.I(f'v_permlane32_swap_b32 {vr(x)}, {vr(tmp)}')
        a.I(f'{op} {vr(x)}, {vr(x)}, {vr(tmp)}')
        a.I(f'v_mov_b32 {vr(tmp)}, {vr(x)}')
        a.I(f'v_permlane16_swap_b32 {vr(x)}, {vr(tmp)}')
        a.I(f'{op} {vr(x)}, {vr(x)}, {vr(tmp)}')
    FREG = {0: mx, 1: tA, 2: mx8}
    def rare(T, vals, scl, canfirst):
        m, tmp = tB, FREG[T]
        a.I(f'v_max3_f32 {vr(m)}, {vr(vals[0])}, {vr(vals[1])}, {vr(vals[2])}')
        for k in range(3, len(vals) - 1, 2): a.I(f'v_max3_f32 {vr(m)}, {vr(m)}, {vr(vals[k])}, {vr(vals[k + 1])}')
        a.I(f'v_max_f32 {vr(m)}, {vr(m)}, {vr(vals[-1])}')
        xg_reduce(m, tmp, 'v_max_f32')
        a.I(f'v_max_f32 {vr(m)}, {sr(scl)}, {vr(m)}')
        for v in vals: a.I(f'v_sub_f32 {vr(v)}, {vr(v)}, {vr(m)}')
        for k in range(4): a.I(f'v_sub_f32 {vr(negm(T) + k)}, {vr(negm(T) + k)}, {vr(m)}')
        lb = a.newlabel('k1_first'); lb2 = a.newlabel('k1_rdone')
        if canfirst:
            a.I(f's_cmp_lg_u32 {sr(scl)}, 0')
            a.I(f's_cbranch_scc1 {lb}')
        a.I(f'v_exp_f32 {vr(tmp)}, -{vr(m)}')
        if T == 2:
            for k in range(36): a.I(f'v_mul_f32 {vr(o_(T, 8) + k)}, {vr(o_(T, 8) + k)}, {vr(tmp)}')
        else:
            a.I(f's_mov_b32 {sr(sRS)}, 1')
        if canfirst: a.label(lb)
    for jl in range(2):
        a.label(f'k1_rare{jl}')
        for T in range(2): rare(T, [s_(T, jl) + k for k in range(8)], sCL, jl == 0)
        a.I(f's_mov_b32 {sr(sTHR)}, {THRV}')
        a.I(f's_mov_b32 {sr(sCL)}, 0')
        a.I(f's_setpc_b64 {sr(sLINK, 2)}')
    a.label('k1_rare8')
    rare(2, [s_(2, 0) + k for k in range(8)], sCL8, True)
    a.I(f's_mov_b32 {sr(sTHR8)}, {THRV}')
    a.I(f's_mov_b32 {sr(sCL8)}, 0')
    a.I(f's_setpc_b64 {sr(sLINK, 2)}')
    a.label('k1_rescale')
    for T in range(2):
        for k in range(36): a.I(f'v_mul_f32 {vr(o_(T, 8) + k)}, {vr(o_(T, 8) + k)}, {vr(FREG[T])}')
    a.I(f's_mov_b32 {sr(sRS)}, 0')
    a.I(f's_setpc_b64 {sr(sLINK, 2)}')
    a.auto = True

    a.label('k1_finH')
    final(True)
    a.I('s_branch k1_epi')
    a.label('k1_finL')
    final(False)
    a.label('k1_epi')
    a.lg = []
    st.cyc()
    K = K2(a)
    e0, e1, e2, e3, e4 = 3, 4, 5, 6, 8
    NM8 = negm(2)
    dbg_srd(sK)
    a.I('v_mov_b32 v10, 0')
    a.I(f'buffer_load_dword v1, v10, {sr(sK, 4)}, 0 offen sc1')
    a.I('s_load_dwordx2 s[10:11], s[0:1], 80')
    a.I(f'v_lshlrev_b32 {vr(e0)}, 4, v0')
    a.I(f's_lshl_b32 s5, {sr(sHH)}, 15')
    a.I('s_add_u32 s5, s5, 49152')
    a.I(f's_lshl_b32 s4, {sr(sR)}, 11')
    a.I('s_add_u32 s3, s4, s5')
    a.I(f'v_add_u32 {vr(e1)}, s3, {vr(e0)}')
    for d in range(8): a.I(f'ds_write_b128 {vr(e1)}, {vr(o_(2, d), 4)} offset:{(d >> 1) * 8192 + (d & 1) * 1024}')
    a.I(f's_lshl_b32 s3, {sr(sHH)}, 11')
    a.I(f's_add_u32 s3, s3, {HB1}')
    a.I(f'v_lshl_add_u32 {vr(e2)}, v0, 3, s3')
    a.I(f's_lshl_b32 s3, {sr(sR)}, 9')
    a.I(f'v_add_u32 {vr(e1)}, s3, {vr(e2)}')
    a.I(f'v_mov_b32 {vr(NM8 + 1)}, {vr(o_(2, 8))}')
    a.I(f'ds_write_b64 {vr(e1)}, {vr(NM8, 2)}')
    sOO = sV
    a.I(f's_lshl_b32 s3, {sr(sBLK)}, 3')
    a.I(f's_add_u32 s3, s3, {sr(sB)}')
    a.I(f's_mul_i32 s3, s3, {O_SLICE}')
    a.I(f's_mul_i32 s6, {sr(sHP)}, 73728')
    a.I('s_add_u32 s3, s3, s6')
    a.I(f's_add_u32 {sr(sOO)}, s16, s3')
    a.I(f's_addc_u32 {sr(sOO + 1)}, s17, 0')
    a.I(f's_mov_b32 {sr(sOO + 2)}, 73728')
    a.I(f's_mov_b32 {sr(sOO + 3)}, 0x20000')
    a.I(f's_mul_i32 s3, {sr(sHH)}, 36864')
    a.I(f'v_add_u32 {vr(e3)}, s4, {vr(e0)}')
    def fin(src, scale2, voff, soff, imm):
        for k in range(4): a.I(f'v_pk_mul_f32 {vr(src + 2 * k, 2)}, {vr(src + 2 * k, 2)}, {vr(scale2, 2)}')
        for k in range(4): a.I(f'v_cvt_pk_bf16_f32 {vr(src + k)}, {vr(src + 2 * k)}, {vr(src + 2 * k + 1)}')
        a.I(f'buffer_store_dwordx4 {vr(src, 4)}, {vr(voff)}, {sr(sOO, 4)}, {soff} offen offset:{imm}{NT("ont")}')
    for T in range(2):
        for k in range(2): a.I(f'v_rcp_f32 {vr(o_(T, 8) + k)}, {vr(o_(T, 8) + k)}')
    a.I(f's_lshl_b32 s4, {sr(sR)}, 13')
    a.I('s_add_u32 s4, s4, s5')
    a.I(f'v_add_u32 {vr(e1)}, s4, {vr(e0)}')
    a.I('s_waitcnt lgkmcnt(0)')
    a.I('s_barrier')
    R8 = S
    for sl in range(4): a.I(f'ds_read_b64 {vr(R8 + 32 + 2 * sl, 2)}, {vr(e2)} offset:{sl * 512}')
    for k in range(8): a.I(f'ds_read_b128 {vr(R8 + 4 * k, 4)}, {vr(e1)} offset:{k * 1024}')
    a.I('s_mov_b32 s6, s3')
    for P in range(4):
        for T in range(2): fin(o_(T, 2 * P), o_(T, 8), e3, 's6', T * 1024)
        if P < 3: a.I('s_add_u32 s6, s6, 9216')
    a.I(f's_mul_i32 s6, {sr(sR)}, 9216')
    a.I('s_add_u32 s6, s6, s3')
    a.I(f'v_add_u32 {vr(e3)}, 8192, {vr(e0)}')
    nm = [R8 + 32 + 2 * i for i in range(4)]
    ll = [R8 + 33 + 2 * i for i in range(4)]
    a.I(f'v_min3_f32 {vr(e0)}, {vr(nm[0])}, {vr(nm[1])}, {vr(nm[2])}')
    a.I(f'v_min_f32 {vr(e0)}, {vr(e0)}, {vr(nm[3])}')
    for i in range(4): a.I(f'v_sub_f32 {vr(nm[i])}, {vr(e0)}, {vr(nm[i])}')
    for i in range(4): a.I(f'v_exp_f32 {vr(nm[i])}, {vr(nm[i])}')
    a.I(f'v_mul_f32 {vr(e0)}, {vr(ll[0])}, {vr(nm[0])}')
    for i in range(1, 4): a.I(f'v_fmac_f32 {vr(e0)}, {vr(ll[i])}, {vr(nm[i])}')
    a.I(f'v_rcp_f32 {vr(e4)}, {vr(e0)}')
    a.I(f'v_rcp_f32 {vr(e4 + 1)}, {vr(e0)}')
    for k in range(8): a.I(f'v_mul_f32 {vr(R8 + k)}, {vr(R8 + k)}, {vr(nm[0])}')
    for i in range(1, 4):
        for k in range(8): a.I(f'v_fmac_f32 {vr(R8 + k)}, {vr(R8 + 8 * i + k)}, {vr(nm[i])}')
    fin(R8, e4, e3, 's6', 0)
    if OPT['stamp'] == 3: st.n = 12
    else: st.cyc(); st.real()
    flag_srd(sO)
    oflag_off('s4')
    K.setup()
    a.I('v_mov_b32 v11, 1')
    a.I(f's_cmp_eq_u32 {sr(sHH)}, 0')
    a.I('s_cbranch_scc1 k1_drain')
    for i in range(3): K.stw(i)
    a.I(f's_mov_b32 {sr(K.sPC)}, 0')
    a.I('s_movk_i32 s3, 0x100')
    a.I('s_waitcnt vmcnt(21)')
    a.label('k1_allin')
    a.I('v_cmp_le_u32 vcc, s3, v1')
    a.I('s_cbranch_vccnz k1_allok ; POLL')
    a.I(f'buffer_load_dword v1, v10, {sr(sK, 4)}, 0 offen sc1')
    a.I(f's_add_u32 {sr(K.sPC)}, {sr(K.sPC)}, 1')
    a.I('s_waitcnt vmcnt(0)')
    a.I(f's_cmp_lt_u32 {sr(K.sPC)}, {OPT["pollmax"]}')
    a.I('s_cbranch_scc1 k1_allin')
    a.label('k1_allok')
    a.I(K.flagload())
    a.label('k1_drain')
    a.I('s_waitcnt vmcnt(0) lgkmcnt(0)')
    a.I('s_barrier')
    a.I(f's_cmp_lg_u32 {sr(sWAVE)}, 0')
    a.I('s_cbranch_scc1 k1_nopub')
    a.I('s_mov_b64 exec, 1')
    a.I(f'buffer_store_dword v11, v10, {sr(sO, 4)}, s4 offen sc1')
    a.I('s_mov_b64 exec, -1')
    a.label('k1_nopub')
    st.flush(16, sWAVE, sK, 24)
    return K.main()

class K2:
    sO, sW, sD, sE, sF = 20, 24, 28, 32, 36
    sWAVE, sR, sLD, sBLK, sB, sN8, sKH = 40, 41, 42, 43, 62, 63, 64
    sM0W, sM0X, sOW, sOX, sSL, sCNT, sT0, sST, sROT, sH, sNH, sKS = 47, 48, 49, 50, 51, 52, 53, 54, 65, 56, 57, 58
    sSTX, sFO, sPC, sHPc = 59, 60, 61, 66
    sRW, sRX, sWB, sXB, sWEX = 68, 72, 54, 59, 8
    sLINK = 8
    vWp, vX, vL16, vFA, vFV, vDW, vDX = 12, 14, 16, 17, 18, 28, 32
    g, t0, t1, t2 = 19, 20, 21, 22
    ACC, XF, WF, TMP = 112, 76, 60, 184
    XB = 65536
    def __init__(self, a):
        self.a = a; self.st = Stamper(a, 1)
    def setup(self):
        a = self.a; K = self
        sO, sW, sF, sR, sB, sN8, sKH, sBLK = K.sO, K.sW, K.sF, K.sR, K.sB, K.sN8, K.sKH, K.sBLK
        t0, t1 = K.t0, K.t1
        a.I('s_and_b32 s12, s2, 7')
        a.I('s_lshr_b32 s13, s2, 3')
        a.I(f's_and_b32 {sr(sKH)}, s12, 1')
        a.I('s_and_b32 s14, s12, 2')
        a.I('s_lshl_b32 s14, s14, 1')
        a.I('s_and_b32 s15, s13, 3')
        a.I(f's_add_u32 {sr(sB)}, s14, s15')
        a.I(f's_lshr_b32 {sr(sN8)}, s13, 2')
        a.I(f's_add_u32 {sr(K.sROT)}, {sr(sB)}, {sr(sN8)}')
        a.I(f's_and_b32 {sr(K.sKS)}, {sr(sR)}, 1')
        a.I(f's_lshr_b32 {sr(K.sNH)}, {sr(sR)}, 1')
        a.I(f's_xor_b32 {sr(K.sH)}, {sr(K.sNH)}, {sr(K.sKS)}')
        a.I(f's_lshl_b32 {sr(K.sH)}, {sr(K.sH)}, 1')
        a.I(f's_or_b32 {sr(K.sH)}, {sr(K.sH)}, {sr(K.sNH)}')
        a.I(f'v_lshlrev_b32 {vr(K.vL16)}, 4, v0')
        a.I(f'v_and_b32 {vr(t0)}, 7, v0')
        a.I(f'v_xor_b32 {vr(t0)}, {sr(K.sH)}, {vr(t0)}')
        a.I(f'v_bfe_u32 {vr(t1)}, v0, 4, 1')
        a.I(f'v_lshlrev_b32 {vr(t1)}, 2, {vr(t1)}')
        a.I(f'v_xor_b32 {vr(t0)}, {vr(t0)}, {vr(t1)}')
        a.I(f'v_lshlrev_b32 {vr(t0)}, 4, {vr(t0)}')
        a.I(f'v_lshrrev_b32 {vr(t1)}, 5, v0')
        a.I(f'v_lshl_add_u32 {vr(t0)}, {vr(t1)}, 7, {vr(t0)}')
        a.I(f'v_bfe_u32 {vr(t1)}, v0, 3, 2')
        a.I(f's_lshl_b32 s12, {sr(sR)}, 2')
        a.I(f'v_add_u32 {vr(t1)}, s12, {vr(t1)}')
        a.I(f'v_lshl_add_u32 {vr(K.vDW)}, {vr(t1)}, 11, {vr(t0)}')
        a.I(f's_lshl_b32 {sr(K.sM0W)}, {sr(sR)}, 12')
        for tq in range(1, 4): a.I(f'v_add_u32 {vr(K.vDW + tq)}, {tq * (32768 - 1024)}, {vr(K.vDW)}')
        a.I(f'v_add_u32 {vr(K.vDX)}, {sr(K.sM0W)}, {vr(K.vL16)}')
        a.I(f's_lshl_b32 {sr(K.sM0X)}, {sr(sR)}, 10')
        a.I(f's_add_u32 {sr(K.sM0X)}, {sr(K.sM0X)}, 16384')
        a.I(f'v_add_u32 {vr(K.vDX + 1)}, {sr(K.sM0X)}, {vr(K.vL16)}')
        for i in range(4):
            a.I(f's_add_u32 s12, {sr(K.sROT)}, {i}')
            a.I('s_and_b32 s12, s12, 3')
            a.I(f's_lshl_b32 {sr(K.sRW + i)}, s12, 17')
            a.I(f's_mul_i32 {sr(K.sRX + i)}, s12, 18432')
        a.I(f's_mul_i32 {sr(K.sHPc)}, {sr(sKH)}, 9')
        a.I(f's_lshl_b32 {sr(K.sWB)}, {sr(K.sHPc)}, 19')
        a.I(f's_mul_i32 {sr(K.sXB)}, {sr(K.sHPc)}, 73728')
        a.I(f's_mov_b64 {sr(K.sWEX, 2)}, -1')
        a.I(f's_lshl_b32 s12, {sr(sBLK)}, 3')
        a.I(f's_add_u32 s12, s12, {sr(sB)}')
        a.I(f's_lshl_b32 {sr(K.sFO)}, s12, 11')
        a.I(f's_add_u32 {sr(K.sFO)}, {sr(K.sFO)}, 65536')
        a.I(f's_mul_i32 s12, s12, {O_SLICE}')
        a.I(f's_add_u32 {sr(sO)}, s16, s12')
        a.I(f's_addc_u32 {sr(sO + 1)}, s17, 0')
        a.I(f's_mov_b32 {sr(sO + 2)}, {O_SLICE}')
        a.I(f's_mov_b32 {sr(sO + 3)}, 0x20000')
        a.I(f's_lshl_b32 s12, {sr(sN8)}, 8')
        a.I(f's_add_u32 {sr(sW)}, s18, s12')
        a.I(f's_addc_u32 {sr(sW + 1)}, s19, 0')
        a.I(f's_sub_u32 {sr(sW + 2)}, 8388608, s12')
        a.I(f's_mov_b32 {sr(sW + 3)}, 0x20000')
        a.I(f'v_and_b32 {vr(K.vFA)}, 15, v0')
        a.I(f'v_lshlrev_b32 {vr(K.vFA)}, 7, {vr(K.vFA)}')
    def stw(self, i):
        a = self.a; K = self
        a.I(f's_add_u32 m0, {sr(K.sM0W)}, {i * 16384}')
        a.I(f's_add_u32 {sr(K.sOW)}, {sr(K.sWB)}, {sr(K.sRW + i)}')
        a.I(f's_mov_b64 exec, {sr(K.sWEX, 2)}')
        for tq in range(4): a.I(f'buffer_load_dwordx4 {vr(K.vDW + tq)}, {sr(K.sW, 4)}, {sr(K.sOW)} offen offset:{tq * 1024}{NT("wont")} lds')
        a.I('s_mov_b64 exec, -1')
    def stx(self, i):
        a = self.a; K = self
        lb = a.newlabel('k2_skipx')
        a.I(f's_add_u32 m0, {sr(K.sM0W)}, {K.XB + i * 18432}')
        a.I(f's_add_u32 {sr(K.sOX)}, {sr(K.sXB)}, {sr(K.sRX + i)}')
        for j in range(4): a.I(f'buffer_load_dwordx4 {vr(K.vDX)}, {sr(K.sO, 4)}, {sr(K.sOX)} offen offset:{j * 1024}{NT("oldf")} lds')
        a.I(f's_add_u32 m0, {sr(K.sM0X)}, {K.XB + i * 18432}')
        a.I(f's_cmp_ge_u32 {sr(K.sR)}, 2')
        a.I(f's_cbranch_scc1 {lb}')
        a.I(f'buffer_load_dwordx4 {vr(K.vDX + 1)}, {sr(K.sO, 4)}, {sr(K.sOX)} offen{NT("oldf")} lds')
        a.label(lb)
    def ready(self):
        a = self.a; K = self
        l1, l2 = a.newlabel('k2_chk'), a.newlabel('k2_go')
        a.I(f's_mov_b32 {sr(K.sPC)}, 0')
        a.label(l1)
        a.I(f'v_cmp_eq_u32 vcc, 1, {vr(K.vFV)}')
        a.I(f's_bitcmp1_b32 vcc_lo, {sr(K.sHPc)}')
        a.I(f's_cbranch_scc1 {l2} ; TAKEN')
        a.I(K.flagload())
        a.I(f's_add_u32 {sr(K.sPC)}, {sr(K.sPC)}, 1')
        a.I('s_waitcnt vmcnt(0)')
        a.I(f's_cmp_lt_u32 {sr(K.sPC)}, {OPT["pollmax"]}')
        a.I(f's_cbranch_scc1 {l1}')
        a.label(l2)
    def flagload(self): return f'buffer_load_dword {vr(self.vFV)}, {vr(self.vFA)}, {sr(self.sF, 4)}, {sr(self.sFO)} offen sc1 ; NOCHECK'
    def main(self):
        a = self.a; st = self.st; K = self
        MF = 'v_mfma_f32_16x16x32_bf16'
        sO, sW, sD, sE, sF, sR, sB, sN8, sKH, sBLK = K.sO, K.sW, K.sD, K.sE, K.sF, K.sR, K.sB, K.sN8, K.sKH, K.sBLK
        sOW, sOX, sSL, sCNT, sT0, sST, sSTX, sPC, sHPc, sNH, sKS = K.sOW, K.sOX, K.sSL, K.sCNT, K.sT0, K.sST, K.sSTX, K.sPC, K.sHPc, K.sNH, K.sKS
        vWp, vX, vDW, vL16, g, t0, t1, t2 = K.vWp, K.vX, K.vDW, K.vL16, K.g, K.t0, K.t1, K.t2
        ACC, XF, WF, TMP, XB = K.ACC, K.XF, K.WF, K.TMP, K.XB
        def acc(t, j): return ACC + (t * 2 + j) * 4
        st.real(); st.cyc()
        a.I(f's_cmp_eq_u32 {sr(K.sLD)}, 0')
        a.I('s_cbranch_scc1 k2_comp')
        K.ready()
        K.stx(0); a.I(K.flagload()); K.stx(1)
        a.I('s_waitcnt vmcnt(4)')
        a.I('s_barrier')
        st0 = st.n
        st.cyc()
        K.stx(2); K.stw(3); K.stx(3)
        a.I(f's_mov_b32 {sr(sCNT)}, 1')
        a.I('s_waitcnt vmcnt(12)')
        a.label('k2_lloop')
        a.I(f's_add_u32 {sr(sHPc)}, {sr(sHPc)}, 1')
        a.I(f's_cmp_eq_u32 {sr(sCNT)}, 7')
        a.I(f's_cselect_b32 {sr(sHPc)}, 7, {sr(sHPc)}')
        a.I(f's_sub_u32 s3, {sr(sKH)}, 1')
        a.I(f's_sub_u32 s4, 0, {sr(sKH)}')
        a.I(f's_cmp_ge_u32 {sr(sCNT)}, 7')
        a.I(f's_cselect_b32 {sr(K.sWEX)}, s3, -1')
        a.I(f's_cselect_b32 {sr(K.sWEX + 1)}, s4, -1')
        a.I(f's_lshl_b32 {sr(K.sWB)}, {sr(sHPc)}, 19')
        a.I(f's_mul_i32 {sr(K.sXB)}, {sr(sHPc)}, 73728')
        for i in range(4):
            a.I('s_waitcnt vmcnt(16)')
            a.I('s_barrier')
            K.stw(i)
            if i == 0: K.ready()
            if i == 1: a.I(K.flagload())
            K.stx(i)
        a.I(f's_add_u32 {sr(sCNT)}, {sr(sCNT)}, 1')
        a.I(f's_cmp_lt_u32 {sr(sCNT)}, 9')
        a.I('s_cbranch_scc1 k2_lloop')
        for nv in (16, 8, 0, 0):
            a.I(f's_waitcnt vmcnt({nv})')
            a.I('s_barrier')
        st.cyc(); st.cyc(); st.cyc(); st.cyc(); st.real()
        st.flush(16, K.sWAVE, sW, t1)
        a.I('s_endpgm')
        a.label('k2_comp')
        st.n = st0
        a.lg = []
        a.I(f'v_lshrrev_b32 {vr(g)}, 4, v0')
        a.I(f'v_lshrrev_b32 {vr(t1)}, 1, {vr(g)}')
        a.I(f'v_xor_b32 {vr(t0)}, {vr(g)}, {vr(t1)}')
        a.I(f'v_and_b32 {vr(t0)}, 1, {vr(t0)}')
        a.I(f'v_lshl_or_b32 {vr(t0)}, {vr(t0)}, 1, {vr(t1)}')
        a.I(f'v_bfe_u32 {vr(t1)}, v0, 1, 1')
        a.I(f'v_xor_b32 {vr(t0)}, {vr(t0)}, {vr(t1)}')
        a.I(f'v_lshlrev_b32 {vr(t0)}, 4, {vr(t0)}')
        a.I(f'v_lshl_add_u32 {vr(t0)}, {vr(g)}, 12, {vr(t0)}')
        a.I(f'v_bfe_u32 {vr(t1)}, v0, 2, 2')
        a.I(f'v_lshl_add_u32 {vr(t0)}, {vr(t1)}, 7, {vr(t0)}')
        a.I(f'v_bfe_u32 {vr(t1)}, v0, 3, 1')
        a.I(f'v_xor_b32 {vr(t1)}, {sr(sKS)}, {vr(t1)}')
        a.I(f'v_lshl_add_u32 {vr(t0)}, {vr(t1)}, 6, {vr(t0)}')
        a.I(f'v_and_b32 {vr(t1)}, 1, v0')
        a.I(f'v_lshl_add_u32 {vr(t0)}, {vr(t1)}, 3, {vr(t0)}')
        a.I(f's_lshl_b32 s3, {sr(sNH)}, 9')
        a.I(f'v_add_u32 {vr(vWp)}, s3, {vr(t0)}')
        a.I(f'v_xor_b32 {vr(vWp + 1)}, 32, {vr(vWp)}')
        a.I(f'v_add_u32 {vr(vX)}, {XB}, {vr(vL16)}')
        a.I(f'v_add_u32 {vr(vX + 1)}, {XB + 9216}, {vr(vL16)}')
        for i in range(0, 72, 2): a.I(f'v_mov_b64 {vr(ACC + i, 2)}, 0')
        a.I(f's_add_u32 {sr(sE)}, s16, {EXCH_OFF}')
        a.I(f's_addc_u32 {sr(sE + 1)}, s17, 0')
        a.I(f's_mov_b32 {sr(sE + 2)}, {256 * 36864}')
        a.I(f's_mov_b32 {sr(sE + 3)}, 0x20000')
        a.I(f's_mul_i32 s3, {sr(sB)}, {144 * 4096}')
        a.I(f's_add_u32 {sr(sD)}, s10, s3')
        a.I(f's_addc_u32 {sr(sD + 1)}, s11, 0')
        a.I(f's_mov_b32 {sr(sD + 2)}, {144 * 4096}')
        a.I(f's_mov_b32 {sr(sD + 3)}, 0x20000')
        a.I(f's_cmp_eq_u32 {sr(sNH)}, {sr(sKH)}')
        a.I('s_cselect_b32 s5, 1, 0')
        a.I(f's_cselect_b32 {sr(sPC)}, 9, 7')
        a.I('s_xor_b32 s3, s2, s5')
        a.I('s_lshl_b32 s3, s3, 1')
        a.I(f's_add_u32 s3, s3, {sr(sKS)}')
        a.I(f's_lshl_b32 {sr(sT0)}, s3, 7')
        a.I(f's_mul_i32 {sr(sOX)}, s3, 18432')
        FS = (24, 68)
        def reads(F, slot, ks):
            w = [f'ds_read_b64_tr_b16 {vr(F + 4 * j + 2 * h, 2)}, {vr(vWp + j)} offset:{slot * 16384 + ks * 2048 + h * 1024}' for j in range(2) for h in range(2)]
            x = [f'ds_read_b128 {vr(F + 8 + 4 * t, 4)}, {vr(vX + ks)} offset:{slot * 18432 + t * 1024}' for t in range(9)]
            return w[:2] + x[:1] + w[2:] + x[1:]
        G2 = OPT['gate2']
        def kstep(Fc, Fn, nslot, nks, gated):
            rd_ = reads(Fn, nslot, nks)
            if not gated: a.I(f's_waitcnt lgkmcnt({OPT["lw2"]})')
            k = 0
            for t in range(9):
                for j in range(2):
                    if gated and k == G2:
                        a.I('s_waitcnt lgkmcnt(0)')
                        a.I('s_barrier')
                    if not gated and k == 6: a.I(f's_waitcnt lgkmcnt(6)')
                    a.I(f'{MF} {vr(acc(t, j), 4)}, {vr(Fc + 4 * j, 4)}, {vr(Fc + 8 + 4 * t, 4)}, {vr(acc(t, j), 4)}')
                    if k >= (G2 if gated else 0) and rd_: a.I(rd_.pop(0))
                    k += 1
            assert not rd_
        if OPT['cprio']: a.I(f's_setprio {OPT["cprio"]}')
        a.I('s_barrier')
        st.cyc()
        a.many(reads(FS[0], 0, 0))
        a.I(f's_mov_b32 {sr(sCNT)}, 0')
        lg0 = [set(x) for x in a.lg]
        a.label('k2_cloop')
        for i in range(4):
            kstep(FS[0], FS[1], i, 1, False)
            kstep(FS[1], FS[0], (i + 1) & 3, 0, True)
        assert [set(x) for x in a.lg] == lg0
        a.I(f's_add_u32 {sr(sCNT)}, {sr(sCNT)}, 1')
        a.I(f's_cmp_lt_u32 {sr(sCNT)}, {sr(sPC)}')
        a.I('s_cbranch_scc1 k2_cloop')
        st.cyc()
        XP = NT('xpol')
        a.I(f'v_mov_b32 {vr(t0)}, 0')
        a.I('s_cmp_eq_u32 s5, 1')
        a.I('s_cbranch_scc1 k2_keep')
        SB = {1: (8,), 2: (5, 11), 0: ()}[OPT['ssplit']]
        for k in range(18):
            a.I(f'buffer_store_dwordx4 {vr(ACC + 4 * k, 4)}, {vr(vL16)}, {sr(sE, 4)}, {sr(sOX)} offen offset:{(k & 3) * 1024}{XP}')
            if k & 3 == 3: a.I(f's_add_u32 {sr(sOX)}, {sr(sOX)}, 4096')
            if k in SB: a.I('s_barrier')
        stn = st.n
        st.cyc()
        for _ in range(OPT['sbar']): a.I('s_barrier')
        a.I(f'v_mov_b32 {vr(t1)}, 1')
        a.I('s_mov_b64 exec, 1')
        a.I('s_waitcnt vmcnt(0)')
        st.cyc()
        a.I(f'buffer_store_dword {vr(t1)}, {vr(t0)}, {sr(sF, 4)}, {sr(sT0)} offen{XP}')
        a.I('s_mov_b64 exec, -1')
        for _ in range(8 - len(SB) - OPT['sbar']): a.I('s_barrier')
        st.cyc(); st.real()
        st.flush(16, K.sWAVE, sW, t1)
        a.I('s_endpgm')
        a.label('k2_keep')
        st.n = stn
        a.I(f's_mov_b32 {sr(sCNT)}, 0')
        st.cyc()
        a.label('k2_poll')
        a.I(f'buffer_load_dword {vr(t1)}, {vr(t0)}, {sr(sF, 4)}, {sr(sT0)} offen{XP}')
        a.I(f's_add_u32 {sr(sCNT)}, {sr(sCNT)}, 1')
        a.I('s_waitcnt vmcnt(0)')
        a.I(f'v_cmp_eq_u32 vcc, 1, {vr(t1)}')
        a.I('s_cbranch_vccnz k2_got ; POLL')
        a.I(f's_cmp_lt_u32 {sr(sCNT)}, {OPT["pollmax"]}')
        a.I('s_cbranch_scc1 k2_poll')
        a.label('k2_got')
        st.cyc()
        for k in range(18):
            a.I(f'buffer_load_dwordx4 {vr(TMP + 4 * k, 4)}, {vr(vL16)}, {sr(sE, 4)}, {sr(sOX)} offen offset:{(k & 3) * 1024}{XP}')
            if k & 3 == 3: a.I(f's_add_u32 {sr(sOX)}, {sr(sOX)}, 4096')
        a.I(f'v_and_b32 {vr(t2)}, 15, v0')
        a.I(f'v_lshlrev_b32 {vr(t2)}, 12, {vr(t2)}')
        a.I(f'v_lshl_add_u32 {vr(t2)}, {vr(g)}, 4, {vr(t2)}')
        a.I(f's_lshl_b32 s3, {sr(sBLK)}, 11')
        a.I(f's_lshl_b32 s4, {sr(sN8)}, 8')
        a.I('s_add_u32 s3, s3, s4')
        a.I(f's_lshl_b32 s4, {sr(sR)}, 6')
        a.I('s_add_u32 s3, s3, s4')
        for t in range(9):
            a.I(f's_waitcnt vmcnt({16 - t})')
            d = acc(t, 0)
            for k in range(4): a.I(f'v_pk_add_f32 {vr(d + 2 * k, 2)}, {vr(d + 2 * k, 2)}, {vr(TMP + 8 * t + 2 * k, 2)}')
            for k in range(4): a.I(f'v_cvt_pk_bf16_f32 {vr(d + k)}, {vr(d + 2 * k)}, {vr(d + 2 * k + 1)}')
            for mn in ('v_permlane32_swap_b32', 'v_permlane16_swap_b32'):
                for k in range(2): a.I(f'{mn} {vr(d + k)}, {vr(d + 2 + k)}')
            a.I(f'buffer_store_dwordx4 {vr(d, 4)}, {vr(t2)}, {sr(sD, 4)}, s3 offen{NT("outp")}')
            a.I('s_add_u32 s3, s3, 65536')
        st.cyc(); st.real()
        st.flush(16, K.sWAVE, sW, t0)
        a.label('k1_end')
        a.raw('s_endpgm')
        return a

HEADER = open(f'cdna_kernels/{NAME}.s.ref').read().split('; Override launch')[0]
def kd(name, vg, sg=102):
    return f'''.amdhsa_kernel {name}
  .amdhsa_next_free_vgpr {vg}
  .amdhsa_next_free_sgpr {sg}
  .amdhsa_accum_offset {(min(vg, 256) + 3) // 4 * 4}
  .amdhsa_group_segment_fixed_size 0
  .amdhsa_kernarg_size 104
  .amdhsa_user_sgpr_count 2
  .amdhsa_user_sgpr_kernarg_segment_ptr 1
  .amdhsa_system_sgpr_workgroup_id_x 1
.end_amdhsa_kernel
'''
def main():
    ks = [('attn_kernel', gen_k1(), 256, 163840)]
    out = HEADER
    if OPT['fuse']:
        ks = [(NAME + '_kernel', ks[0][1], 256, 163840)]
        out += '; @launch grid=(256,1,1) block=(512,1,1) lds=163840\n'
    else:
        for nm, _, _, lds in ks:
            out += f'; @launch kernel={nm} grid=(256,1,1) block=(512,1,1) lds={lds}\n'
    out += '.amdgcn_target "amdgcn-amd-amdhsa--gfx950"\n.text\n'
    for nm, a, vg, lds in ks:
        if OPT.get('novm'):
            seen = False; keep = []
            for x in a.ins:
                if x.mn == 's_barrier': seen = True
                if x.label in ('k2_m1',): seen = False
                if x.label == 'k2_cloop': seen = False; OPT['_stop'] = 1
                if OPT.get('_stop'): seen = False
                if seen and x.mn == 'buffer_load_dwordx4': continue
                keep.append(x)
            a.ins = keep
        if OPT.get('nokv'): a.ins = [x for x in a.ins if not (x.kind == 'vmem' and x.mn == 'buffer_load_dwordx4' and not x.lds and 'nt' in x.mods)]
        if OPT.get('nomfma'): a.ins = [x for x in a.ins if x.kind != 'mfma']
        if OPT.get('nods'): a.ins = [x for x in a.ins if not (x.kind == 'ds' and 'read' in x.mn)]
        n = a.pad_hazards(verbose=bool(OPT.get('v')))
        errs = 0; nbs = set()
        for wave in range(8):
            for pol in (lambda i, x: 'POLL' in x.text, lambda i, x: True):
              for wgid in (3, 4, 5):
                tr = a.trace(wgid, wave, pol)
                e, nb = a.verify_waits(tr, quiet=(errs > 0 or bool(OPT.get('novm')) or OPT['stamp'] == 4)); errs += e; nbs.add(nb)
        assert (len(nbs) == 1 or (len(nbs) == 2 and max(nbs) - min(nbs) == 7 - OPT['sbar'])) and (errs == 0 or OPT.get('novm') or OPT['stamp'] == 4), (nbs, errs)
        print(f'{nm}: {len(a.ins)} lines, nops added {n}, wait errors {errs}, barriers {nb}, trace len {len(tr)}', file=sys.stderr)
        out += f'.globl {nm}\n.p2align 8\n.type {nm},@function\n{nm}:\n' + a.text()
    out += '.section .rodata,"a"\n'
    for nm, a, vg, lds in ks:
        out += '.p2align 6\n' + kd(nm, vg)
    open(sys.argv[1], 'w').write(out)
main()
```

```python
import sys, math, struct
from asmlib import *

NAME = 'concat_heads__mha_block_cached__mha_block_cached__near_ridge'
OPT = dict(stamp=0, kvnt=1, wnt=0, xnt=0, ont=2, wont=0, oldnt=0, rot1=3, rot2=3, wopf=3, ord=1, desync=1, pre1=1, gate=2, cprio=1, tail=1, rotc=0, rhh=0, vfirst=1, hpmap=2, s2=1, fuse=1, kv0=0, kvs=3, lprio=0, whalf=0, offm=0, offsh=0, pubat=0, b2at=1, kpf=3, spread=1, gate2=0, lw2=4, sbar=3, ssplit=1, ntm=255, oldf=2, cpf=1, sy=4, nimm=3, aux0=0, auxs=1, pp=0, mv=0, mk=0, nwo=16, pfp=0, xpol=2, outp=0, pollmax=100000, qprio=1, rs0=10, rs1=13, stag=1, aprio=1, pS=0, pM=0, pV=0, smfirst=0)
for a in sys.argv[2:]:
    k, v = a.split('='); OPT[k] = int(v) if v.lstrip('-').isdigit() else v

def fbits(x): return '0x%08x' % struct.unpack('<I', struct.pack('<f', x))[0]
NT = lambda k: {0: '', 1: ' nt', 2: ' sc1', 3: ' sc0 sc1', 4: ' sc1 nt'}[OPT[k]]
APOL = lambda kind, j: ' nt' if (OPT['ntm'] >> (j + (4 if kind == 'V' else 0))) & 1 else ''
THRV = '0x7f800000' if OPT.get('novm') else fbits(8.0)
O_SLICE = 128 * 9216
STAMP_OFF = 64 << 20
EXCH_OFF = 32 << 20
FLAG_OFF = 48 << 20

class Stamper:
    def __init__(self, a, region):
        self.a = a; self.n = 0; self.region = region
        self.on = OPT.get('sreg', 0) == region or OPT['stamp'] == 5
    def real(self):
        if not self.on: return
        if OPT['stamp'] == 5:
            if self.region == 0 and not self.n: self.a.I('s_memrealtime s[76:77]'); self.n = 1
            return
        if OPT['stamp'] == 4 and self.region == 0 and self.n: return
        if OPT['stamp']:
            self.a.I(f's_memrealtime {sr(76 + 2 * self.n, 2)}'); self.n += 1
    def cyc(self):
        if not self.on: return
        if OPT['stamp'] == 5: return
        if OPT['stamp'] == 4 and self.region == 0:
            self.a.raw('s_waitcnt lgkmcnt(0)'); self.sh(); return
        if OPT['stamp']:
            self.a.I(f's_memtime {sr(76 + 2 * self.n, 2)}'); self.n += 1
    def sh(self):
        if not self.on: return
        if OPT['stamp'] == 4 and self.region == 0:
            for i in range(13): self.a.raw(f's_mov_b32 s{80 + i}, s{81 + i}')
            self.a.raw('s_mov_b32 s93, s98')
            self.a.raw('s_memtime s[98:99]')
    def flush(self, s_ws, s_wave, srd, vt):
        if not OPT['stamp'] or not self.on: return
        a = self.a
        if OPT['stamp'] == 5:
            if self.region == 0: return
            a.I('s_memrealtime s[78:79]'); self.n = 2
        regs = [76 + 2 * i for i in range(self.n)]
        if OPT['stamp'] == 4 and self.region == 0:
            regs = [76] + list(range(81, 94)) + [98]; self.n = 0
        assert self.n <= 12
        a.I('s_waitcnt vmcnt(0) lgkmcnt(0)')
        a.I(f's_add_u32 {sr(srd)}, {sr(s_ws)}, {STAMP_OFF + self.region * (1 << 20)}')
        a.I(f's_addc_u32 {sr(srd + 1)}, {sr(s_ws + 1)}, 0')
        a.I(f's_mov_b32 {sr(srd + 2)}, {1 << 20}')
        a.I(f's_mov_b32 {sr(srd + 3)}, 0x20000')
        a.I(f's_lshl_b32 s3, s2, 3')
        a.I(f's_add_u32 s3, s3, {sr(s_wave)}')
        a.I(f's_lshl_b32 s3, s3, 6')
        a.I(f'v_mov_b32 {vr(vt)}, 0')
        a.I(f'v_mov_b32 {vr(vt + 1)}, {self.n}')
        a.I(f'buffer_store_dword {vr(vt + 1)}, {vr(vt)}, {sr(srd, 4)}, s3 offen offset:60')
        a.I('s_nop 1')
        for i in range(len(regs)):
            a.I(f'v_mov_b32 {vr(vt + 1)}, {sr(regs[i])}')
            a.I(f'buffer_store_dword {vr(vt + 1)}, {vr(vt)}, {sr(srd, 4)}, s3 offen offset:{4 * i}')
            a.I('s_nop 1')

def gen_k1():
    a = Asm()
    st = Stamper(a, 0)
    MF = 'v_mfma_f32_16x16x32_bf16'
    sX, sW, sK, sV, sO = 20, 24, 28, 32, 36
    sWAVE, sR, sHH, sBLK, sB, sHP = 40, 41, 42, 43, 44, 45
    sM0W, sM0X, sOW, sOX, sLOOSE, sNEXT, sKVI = 46, 47, 48, 49, 50, 51, 52
    sSLW, sSLX = 53, 54
    sCNT, sT0, sT1 = 55, 56, 57
    sKP, sVP, sM0A, sDK, sDV, sOV, sOK = 58, 59, 60, 62, 63, 64, 65
    sTHR, sTHR8, sCL, sCL8 = 66, 67, 68, 69
    sC = 70
    sKPo, sVPo = 72, 73
    sST, sROT = 74, 75
    sLINK = 6
    sH = 61
    sPFO, sMK, sMV = 48, 50, 51
    sJ = 47
    sRS, sRC = 46, 61
    vKa, vVa, vD = 1, 3, 7
    mx, mx8, tA, tB = 8, 9, 10, 11
    ONES, NEGM, Q, S, POOL, O = 12, 16, 28, 76, 116, 148
    ACC, XF, WF = 112, 76, 44
    XB, QB = 49152, 49152
    HB1 = 114688
    def acc(t, j): return ACC + (t * 4 + j) * 4
    def o_(T, d): return O + (T * 9 + (d + 1) % 9) * 4
    JUNK = O + 3
    def q_(T, k): return Q + (T * 4 + k) * 4
    def s_(T, j, tt=0): return S + (T * 2 + j) * 8 + tt * 4 if T < 2 else S + 32 + tt * 4
    def negm(T): return NEGM + 4 * T
    kvreg = {'K0': 160, 'V0': 192, 'K1': 76, 'V1': 108}
    g, n, t0, t1, t2, t3 = 12, 13, 14, 15, 16, 17

    def hfun(dst, src, tmp):
        a.I(f'v_lshrrev_b32 {vr(tmp)}, 1, {vr(src)}')
        a.I(f'v_xor_b32 {vr(dst)}, {vr(src)}, {vr(tmp)}')
        a.I(f'v_and_b32 {vr(dst)}, 1, {vr(dst)}')
        a.I(f'v_lshl_or_b32 {vr(dst)}, {vr(dst)}, 1, {vr(tmp)}')
    def tr_pattern(dst):
        a.I(f'v_lshrrev_b32 {vr(g)}, 4, v0')
        hfun(t0, g, t1)
        a.I(f'v_bfe_u32 {vr(t1)}, v0, 1, 1')
        a.I(f'v_xor_b32 {vr(t0)}, {vr(t0)}, {vr(t1)}')
        a.I(f'v_lshlrev_b32 {vr(t0)}, 4, {vr(t0)}')
        a.I(f'v_lshl_add_u32 {vr(t0)}, {vr(g)}, 12, {vr(t0)}')
        a.I(f'v_bfe_u32 {vr(t1)}, v0, 2, 2')
        a.I(f'v_lshl_add_u32 {vr(t0)}, {vr(t1)}, 7, {vr(t0)}')
        a.I(f'v_bfe_u32 {vr(t1)}, v0, 3, 1')
        a.I(f'v_lshl_add_u32 {vr(t0)}, {vr(t1)}, 6, {vr(t0)}')
        a.I(f'v_and_b32 {vr(t1)}, 1, v0')
        a.I(f'v_lshl_add_u32 {vr(dst)}, {vr(t1)}, 3, {vr(t0)}')

    a.raw('s_cmp_ge_u32 s2, 256')
    a.raw('s_cbranch_scc1 k1_end')
    st.real(); st.cyc()
    a.I('s_and_b32 s3, s2, 7')
    a.I('s_lshr_b32 s4, s2, 3')
    a.I(f's_lshr_b32 {sr(sBLK)}, s3, 2')
    a.I(f's_mul_i32 s5, {sr(sBLK)}, 40')
    a.I('s_load_dwordx8 s[8:15], s[0:1], s5')
    a.I('s_load_dwordx2 s[16:17], s[0:1], 96')
    a.I('s_add_u32 s5, s5, 32')
    a.I('s_load_dwordx2 s[18:19], s[0:1], s5')
    if OPT['fuse']: a.I('s_load_dwordx2 s[100:101], s[0:1], 88')
    a.I('s_and_b32 s5, s4, 3')
    a.I('s_lshl_b32 s6, s5, 1')
    a.I('s_add_u32 s3, s3, s6')
    a.I('s_and_b32 s3, s3, 3')
    a.I(f's_lshl_b32 {sr(sHP)}, s5, 2')
    a.I(f's_add_u32 {sr(sHP)}, {sr(sHP)}, s3')
    a.I(f's_lshr_b32 {sr(sB)}, s4, 2')
    a.I(f's_add_u32 {sr(sROT)}, {sr(sB)}, s5')
    a.I(f'v_lshrrev_b32 {vr(t0)}, 6, v0')
    a.I(f'v_readfirstlane_b32 {sr(sWAVE)}, {vr(t0)} ; WAVEID')
    a.I('v_and_b32 v0, 63, v0')
    a.I(f's_and_b32 {sr(sR)}, {sr(sWAVE)}, 3')
    a.I(f's_lshr_b32 {sr(sHH)}, {sr(sWAVE)}, 2')
    a.I(f's_lshr_b32 s3, {sr(sR)}, 1')
    a.I(f's_xor_b32 {sr(sH)}, {sr(sR)}, s3')
    a.I(f's_and_b32 {sr(sH)}, {sr(sH)}, 1')
    a.I(f's_lshl_b32 {sr(sH)}, {sr(sH)}, 1')
    a.I(f's_or_b32 {sr(sH)}, {sr(sH)}, s3')
    a.I(f'v_and_b32 {vr(t0)}, 7, v0')
    a.I(f'v_xor_b32 {vr(t0)}, {sr(sH)}, {vr(t0)}')
    a.I(f'v_bfe_u32 {vr(t1)}, v0, 4, 1')
    a.I(f'v_lshlrev_b32 {vr(t1)}, 2, {vr(t1)}')
    a.I(f'v_xor_b32 {vr(t0)}, {vr(t0)}, {vr(t1)}')
    a.I(f'v_lshlrev_b32 {vr(t0)}, 4, {vr(t0)}')
    a.I(f'v_lshrrev_b32 {vr(t1)}, 5, v0')
    a.I(f'v_lshl_add_u32 {vr(t0)}, {vr(t1)}, 7, {vr(t0)}')
    a.I(f'v_lshrrev_b32 {vr(g)}, 4, v0')
    a.I(f'v_bfe_u32 {vr(t1)}, v0, 3, 2')
    a.I(f's_lshl_b32 s3, {sr(sR)}, 4')
    a.I(f'v_add_u32 {vr(t1)}, s3, {vr(t1)}')
    a.I(f'v_lshl_add_u32 {vr(vD)}, {vr(t1)}, 8, {vr(t0)}')
    a.I(f's_lshl_b32 {sr(sM0W)}, {sr(sR)}, 12')
    def rest_setup():
        a.I(f's_mul_i32 {sr(sM0A)}, {sr(sHH)}, 81920')
        a.I(f's_add_u32 {sr(sM0A)}, {sr(sM0A)}, {sr(sM0W)}')
        a.I(f's_lshl_b32 s3, {sr(sB)}, 4')
        a.I(f's_add_u32 s3, s3, {sr(sHP)}')
        a.I('s_lshl_b32 s3, s3, 18')
        for (d, p) in ((sK, 10), (sV, 12)):
            a.I(f's_add_u32 {sr(d)}, {sr(p)}, s3')
            a.I(f's_addc_u32 {sr(d + 1)}, {sr(p + 1)}, 0')
            a.I(f's_mov_b32 {sr(d + 2)}, 262144')
            a.I(f's_mov_b32 {sr(d + 3)}, 0x20000')
    a.I(f's_cmp_eq_u32 {sr(sHH)}, 0')
    a.I('s_cbranch_scc1 k1_comp')

    def flag_srd(d):
        a.I(f's_add_u32 {sr(d)}, s16, {FLAG_OFF}')
        a.I(f's_addc_u32 {sr(d + 1)}, s17, 0')
        a.I(f's_mov_b32 {sr(d + 2)}, 98304')
        a.I(f's_mov_b32 {sr(d + 3)}, 0x20000')
    def dbg_srd(d):
        a.I(f's_mov_b32 {sr(d)}, s100')
        a.I(f's_mov_b32 {sr(d + 1)}, s101')
        a.I(f's_mov_b32 {sr(d + 2)}, 256')
        a.I(f's_mov_b32 {sr(d + 3)}, 0x20000')
    def oflag_off(d):
        a.I(f's_lshl_b32 {d}, {sr(sBLK)}, 3')
        a.I(f's_add_u32 {d}, {d}, {sr(sB)}')
        a.I(f's_lshl_b32 {d}, {d}, 4')
        a.I(f's_add_u32 {d}, {d}, {sr(sHP)}')
        a.I(f's_lshl_b32 {d}, {d}, 7')
        a.I(f's_add_u32 {d}, {d}, 65536')
    def wo_srd():
        a.I(f's_lshl_b32 s3, {sr(sB)}, 4')
        a.I(f's_add_u32 s3, s3, {sr(sHP)}')
        a.I('s_lshl_b32 s3, s3, 16')
        a.I(f's_add_u32 {sr(sX)}, s18, s3')
        a.I(f's_addc_u32 {sr(sX + 1)}, s19, 0')
        a.I(f's_mov_b32 {sr(sX + 2)}, 65536')
    vDW, vDX = 20, 24
    if OPT['lprio']: a.I(f's_setprio {OPT["lprio"]}')
    a.I(f'v_lshl_add_u32 {vr(vDW)}, {vr(t1)}, 13, {vr(t0)}')
    for tq in range(1, 4): a.I(f'v_add_u32 {vr(vDW + tq)}, {tq * (32768 - 1024)}, {vr(vDW)}')
    a.I(f's_lshr_b32 {sr(sST)}, s2, {OPT["offsh"]}')
    a.I(f's_and_b32 {sr(sST)}, {sr(sST)}, {OPT["offm"]}')
    a.I(f's_add_u32 {sr(sOX)}, {sr(sST)}, {sr(sROT)}')
    a.I(f's_and_b32 {sr(sOX)}, {sr(sOX)}, {OPT["rot1"]}')
    a.I(f's_lshl_b32 {sr(sOW)}, {sr(sOX)}, 19')
    a.I(f's_lshl_b32 s3, {sr(sHP)}, 9')
    a.I(f's_sub_u32 {sr(sW + 2)}, 8388608, s3')
    a.I(f's_mov_b32 {sr(sW + 3)}, 0x20000')
    a.I(f's_mov_b32 m0, {sr(sM0W)}')
    a.I('s_waitcnt lgkmcnt(0)')
    a.I(f's_add_u32 {sr(sW)}, s14, s3')
    a.I(f's_addc_u32 {sr(sW + 1)}, s15, 0')
    def wloads(hq):
        if OPT['whalf']:
            for tq in range(4): a.I(f'buffer_load_dwordx4 {vr(vDW + tq)}, {sr(sW, 4)}, {sr(sOW)} offen offset:{tq * 1024}{NT("wnt")} lds')
        else:
            for tq in range(4): a.I(f'buffer_load_dwordx4 {vr(vDW + tq)}, {sr(sW, 4)}, {sr(sOW)} offen offset:{tq * 1024 + hq * 256}{NT("wnt")} lds')
    sHA, sHB = 70, 71
    if OPT['whalf']:
        a.I(f's_lshr_b32 s4, {sr(sB)}, 2')
        a.I(f's_mul_i32 {sr(sHA)}, s4, {HB1}')
        a.I(f's_sub_u32 {sr(sHB)}, {HB1}, {sr(sHA)}')
        a.I(f's_add_u32 {sr(sHA)}, {sr(sHA)}, {sr(sM0W)}')
        a.I(f's_add_u32 {sr(sHB)}, {sr(sHB)}, {sr(sM0W)}')
        a.I(f's_lshl_b32 {sr(sKPo)}, s4, 8')
        a.I(f's_mov_b32 m0, {sr(sHA)}')
        a.I(f's_or_b32 {sr(sOW)}, {sr(sOW)}, {sr(sKPo)}')
    wloads(0)
    a.I(f's_mul_i32 s3, {sr(sB)}, 294912')
    if not OPT['whalf']:
        a.I(f's_add_u32 m0, {sr(sM0W)}, {HB1 - 256}')
        wloads(1)
    a.I(f's_add_u32 {sr(sX)}, s8, s3')
    a.I(f's_addc_u32 {sr(sX + 1)}, s9, 0')
    a.I(f's_mov_b32 {sr(sX + 2)}, 294912')
    a.I(f's_mov_b32 {sr(sX + 3)}, 0x20000')
    a.I(f'v_and_b32 {vr(t1)}, 2, {vr(g)}')
    a.I(f'v_lshlrev_b32 {vr(t1)}, 1, {vr(t1)}')
    a.I(f'v_xor_b32 {vr(t0)}, {vr(g)}, {vr(t1)}')
    a.I(f'v_and_b32 {vr(t1)}, 7, v0')
    a.I(f'v_xor_b32 {vr(t0)}, {vr(t0)}, {vr(t1)}')
    a.I(f'v_lshlrev_b32 {vr(t0)}, 4, {vr(t0)}')
    a.I(f'v_lshrrev_b32 {vr(t1)}, 3, v0')
    a.I(f'v_lshl_add_u32 {vr(t0)}, {vr(t1)}, 11, {vr(t0)}')
    a.I(f'v_xor_b32 {vr(t1)}, 64, {vr(t0)}')
    a.I(f's_lshl_b32 s3, {sr(sR)}, 16')
    for j in range(4):
        a.I(f'v_add_u32 {vr(vDX + j)}, s3, {vr((t0, t1)[j & 1])}')
        if j < 3: a.I(f's_add_u32 s3, s3, {16384 - 1024}')
    a.I(f's_lshl_b32 s3, {sr(sR)}, 6')
    a.I(f'v_xor_b32 {vr(t0)}, s3, {vr(t0)}')
    a.I(f's_lshl_b32 s3, {sr(sR)}, 14')
    a.I('s_add_u32 s3, s3, 262144')
    a.I(f'v_add_u32 {vr(vDX + 4)}, s3, {vr(t0)}')
    a.I(f's_lshl_b32 {sr(sM0X)}, {sr(sR)}, 10')
    a.I(f's_add_u32 {sr(sM0X)}, {sr(sM0X)}, {XB + 16384}')
    a.I(f's_add_u32 {sr(sST)}, {sr(sST)}, 1')
    a.I(f's_mov_b32 {sr(sSLW)}, 0')
    a.I(f's_mov_b32 {sr(sSLX)}, 0')
    def stage_w():
        R = OPT['rot1']
        a.many([f's_add_u32 {sr(sOX)}, {sr(sST)}, {sr(sROT)}',
                f's_and_b32 {sr(sOX)}, {sr(sOX)}, {R}',
                f's_and_b32 {sr(sOW)}, {sr(sST)}, {15 & ~R}',
                f's_or_b32 {sr(sOX)}, {sr(sOX)}, {sr(sOW)}',
                f's_add_u32 m0, {sr(sHA if OPT["whalf"] else sM0W)}, {sr(sSLW)}',
                f's_lshl_b32 {sr(sOW)}, {sr(sOX)}, 19',
                f's_add_u32 {sr(sST)}, {sr(sST)}, 1'])
        if OPT['whalf']: a.I(f's_or_b32 {sr(sOW)}, {sr(sOW)}, {sr(sKPo)}')
        wloads(0)
        if not OPT['whalf']:
            a.I(f's_add_u32 m0, m0, {HB1 - 256}')
            wloads(1)
    def stage_x():
        lb = a.newlabel('k1_skipx')
        a.I(f's_add_u32 {sr(sT0)}, {sr(sM0W)}, {sr(sSLX)}')
        a.I(f's_add_u32 m0, {sr(sT0)}, {XB}')
        a.I(f's_lshl_b32 {sr(sOX)}, {sr(sOX)}, 7')
        for j in range(4): a.I(f'buffer_load_dwordx4 {vr(vDX + j)}, {sr(sX, 4)}, {sr(sOX)} offen offset:{j * 1024}{NT("xnt")} lds')
        a.I(f's_add_u32 m0, {sr(sM0X)}, {sr(sSLX)}')
        a.I(f's_cmp_ge_u32 {sr(sR)}, 2')
        a.I(f's_cbranch_scc1 {lb}')
        a.I(f'buffer_load_dwordx4 {vr(vDX + 4)}, {sr(sX, 4)}, {sr(sOX)} offen{NT("xnt")} lds')
        a.label(lb)
        if OPT['whalf']:
            a.I(f's_add_u32 m0, {sr(sHB)}, {sr(sSLW)}')
            a.I(f's_xor_b32 {sr(sOW)}, {sr(sOW)}, 256')
            wloads(1)
        a.I(f's_add_u32 {sr(sSLW)}, {sr(sSLW)}, 16384')
        a.I(f's_add_u32 {sr(sSLX)}, {sr(sSLX)}, 18432')
        a.I(f's_cmp_eq_u32 {sr(sSLW)}, 49152')
        a.I(f's_cselect_b32 {sr(sSLW)}, 0, {sr(sSLW)}')
        a.I(f's_cselect_b32 {sr(sSLX)}, 0, {sr(sSLX)}')
    stage_x()
    rest_setup()
    if OPT['pre1']:
        stage_w()
        a.I(f's_waitcnt vmcnt({4 if OPT["whalf"] else 8})')
        a.I('s_barrier')
        stage_x()
    else:
        a.I('s_waitcnt vmcnt(0)')
        a.I('s_barrier')
        stage_w(); stage_x()
    st0 = st.n
    st.cyc()
    stage_w(); stage_x()
    a.I(f's_cmp_lg_u32 {sr(sR)}, 0')
    a.I('s_cbranch_scc1 k1_noreset')
    flag_srd(sO)
    oflag_off('s4')
    a.I('s_lshl_b32 s3, s2, 8')
    a.I(f'v_lshlrev_b32 {vr(t0)}, 2, v0')
    a.I(f'v_and_b32 {vr(t2)}, 127, {vr(t0)}')
    a.I(f'v_mov_b32 {vr(t1)}, 0')
    a.I(f'buffer_store_dword {vr(t1)}, {vr(t0)}, {sr(sO, 4)}, s3 offen sc1')
    a.I(f'buffer_store_dword {vr(t1)}, {vr(t2)}, {sr(sO, 4)}, s4 offen sc1')
    a.label('k1_noreset')
    if OPT['kvs'] == 3:
        a.I(f's_mul_i32 s3, s2, 171')
        a.I(f's_lshr_b32 s3, s3, 9')
        a.I(f's_mul_i32 s3, s3, 3')
        a.I(f's_sub_u32 {sr(sNEXT)}, s2, s3')
    else:
        a.I(f's_lshr_b32 s3, s2, 3')
        a.I(f's_and_b32 {sr(sNEXT)}, s3, 1')
    a.I(f's_add_u32 {sr(sNEXT)}, {sr(sNEXT)}, {OPT["kv0"]}')
    assert OPT['kv0'] + 4 * OPT['kvs'] - 1 <= 12
    a.I(f's_mov_b32 {sr(sLOOSE)}, 0')
    a.I(f's_mov_b32 {sr(sKVI)}, 0')
    a.I(f's_mov_b32 {sr(sCNT)}, 0')
    def lbar():
        lb = a.newlabel('k1_loose')
        a.I(f's_cmp_gt_i32 {sr(sLOOSE)}, 0')
        a.I(f's_cbranch_scc1 {lb}')
        a.I('s_waitcnt vmcnt(12)')
        a.label(lb)
        a.I(f's_sub_i32 {sr(sLOOSE)}, {sr(sLOOSE)}, 1')
        a.I('s_waitcnt vmcnt(20)')
        a.I('s_barrier')
        if OPT.get('qst'): st.cyc()
    a.label('k1_lloop')
    lbar()
    stage_w(); stage_x()
    a.I(f's_cmp_lg_u32 {sr(sCNT)}, {sr(sNEXT)}')
    a.I('s_cbranch_scc1 k1_kvdone')
    a.I(f's_add_u32 {sr(sNEXT)}, {sr(sNEXT)}, {OPT["kvs"]}')
    a.I(f's_add_u32 {sr(sKVI)}, {sr(sKVI)}, 1')
    for m, it in enumerate(('K0', 'V0', 'K1', 'V1')):
        a.I(f's_cmp_lg_u32 {sr(sKVI)}, {m + 1}')
        a.I(f's_cbranch_scc1 k1_kv{m + 1}')
        a.I(f's_mov_b32 {sr(sLOOSE)}, 2')
        for hq in range(2):
            a.I(f's_mov_b32 {sr(sT0)}, {int(it[1]) * 16384 + hq * 131072}')
            for j in range(4):
                a.I(f'buffer_load_dwordx4 {vr(kvreg[it] + 16 * hq + 4 * j, 4)}, {vr(vD)}, {sr(sK if it[0] == "K" else sV, 4)}, {sr(sT0)} offen offset:{j * 1024}{NT("kvnt")}')
        if m < 3: a.I('s_branch k1_kvdone')
        a.label(f'k1_kv{m + 1}')
    a.label('k1_kvdone')
    a.I(f's_add_u32 {sr(sCNT)}, {sr(sCNT)}, 1')
    a.I(f's_cmp_lt_u32 {sr(sCNT)}, 13')
    a.I('s_cbranch_scc1 k1_lloop')
    a.I(f's_add_u32 s3, {sr(sM0W)}, 16384')
    a.I(f'v_lshl_add_u32 {vr(tA)}, v0, 4, s3')
    a.I(f'v_add_u32 {vr(tB)}, {81920 + 32768}, {vr(tA)}')
    a.I(f'v_add_u32 {vr(mx)}, {81920 - 16384}, {vr(tA)}')
    def kvwrite(it, off, b1=tB, off1=None):
        for hq in range(2):
            o = off if (hq == 0 or off1 is None) else off1
            for j in range(4): a.I(f'ds_write_b128 {vr((tA, b1)[hq])}, {vr(kvreg[it] + 16 * hq + 4 * j, 4)} offset:{o + j * 1024}')
    lbar()
    npf = 0
    a.I(f'v_lshlrev_b32 {vr(t1)}, 4, v0')
    if OPT['cpf']:
        a.I(f's_getpc_b64 {sr(sO, 2)}')
        a.label('k1_pc')
        a.I(f's_mov_b32 {sr(sO + 2)}, k1_end-k1_pc')
        a.I(f's_mov_b32 {sr(sO + 3)}, 0x20000')
        a.I(f's_lshr_b32 s3, {sr(sHP)}, 2')
        a.I('s_lshl_b32 s3, s3, 2')
        a.I(f's_add_u32 s3, s3, {sr(sR)}')
        a.I('s_lshl_b32 s3, s3, 11')
        for k in range(2):
            a.I(f'buffer_load_dwordx4 v[228:231], {vr(t1)}, {sr(sO, 4)}, s3 offen offset:{k * 1024} ; NOCHECK')
            npf += 1
    if OPT['wopf'] == 3:
        wo_srd()
        a.I(f's_lshl_b32 {sr(sT0)}, {sr(sR)}, 14')
        for k in range(OPT['nwo']):
            a.I(f'buffer_load_dwordx4 v[224:227], {vr(t1)}, {sr(sX, 4)}, {sr(sT0)} offen offset:{(k & 3) * 1024} ; NOCHECK')
            if k & 3 == 3: a.I(f's_add_u32 {sr(sT0)}, {sr(sT0)}, 4096')
            npf += 1
            if k == 7: kvwrite('K0', 0); a.I(f's_waitcnt vmcnt({npf})'); a.I('s_barrier')
    else:
        kvwrite('K0', 0)
        a.I(f's_waitcnt vmcnt({npf})')
        a.I('s_barrier')
    kvwrite('V0', 16384)
    a.I('s_barrier')
    a.I('s_waitcnt vmcnt(0)')
    a.I(f's_cmp_lg_u32 {sr(sR)}, 0')
    a.I('s_cbranch_scc1 k1_nocount')
    dbg_srd(sO)
    a.I(f'v_mov_b32 {vr(t1)}, 0')
    a.I(f'v_mov_b32 {vr(t2)}, 1')
    a.I('s_mov_b64 exec, 1')
    a.I(f'buffer_atomic_add {vr(t2)}, {vr(t1)}, {sr(sO, 4)}, 0 offen sc1')
    a.I('s_mov_b64 exec, -1')
    a.label('k1_nocount')
    if OPT['lprio']: a.I('s_setprio 0')
    st.cyc()
    a.I('s_branch k1_join')

    a.label('k1_comp')
    a.lg = []
    st.n = st0
    vWp, vX, vQW = 1, 5, 8
    tr_pattern(vWp)
    a.I(f's_lshr_b32 s3, {sr(sR)}, 1')
    a.I(f's_mul_i32 s4, s3, {HB1}')
    a.I(f's_and_b32 s5, {sr(sR)}, 1')
    a.I('s_lshl_b32 s6, s5, 9')
    a.I('s_add_u32 s4, s4, s6')
    a.I(f'v_add_u32 {vr(vWp)}, s4, {vr(vWp)}')
    for j in range(1, 4): a.I(f'v_xor_b32 {vr(vWp + j)}, {32 * j}, {vr(vWp)}')
    a.I(f'v_and_b32 {vr(n)}, 15, v0')
    a.I(f'v_lshrrev_b32 {vr(t0)}, 1, {vr(n)}')
    a.I(f'v_and_b32 {vr(t1)}, 2, {vr(t0)}')
    a.I(f'v_lshlrev_b32 {vr(t1)}, 1, {vr(t1)}')
    a.I(f'v_xor_b32 {vr(t0)}, {vr(t0)}, {vr(t1)}')
    a.I(f'v_lshlrev_b32 {vr(t1)}, 1, {vr(g)}')
    a.I(f'v_xor_b32 {vr(t0)}, {vr(t0)}, {vr(t1)}')
    a.I(f'v_lshlrev_b32 {vr(t0)}, 4, {vr(t0)}')
    a.I(f'v_lshl_add_u32 {vr(t0)}, {vr(n)}, 7, {vr(t0)}')
    a.I(f'v_add_u32 {vr(vX)}, {XB}, {vr(t0)}')
    a.I(f'v_xor_b32 {vr(vX + 1)}, 16, {vr(vX)}')
    a.I(f's_mul_i32 s4, s3, 36864')
    a.I('s_lshl_b32 s6, s5, 11')
    a.I('s_add_u32 s4, s4, s6')
    a.I(f's_add_u32 s4, s4, {QB}')
    a.I(f'v_lshl_add_u32 {vr(t0)}, {vr(n)}, 4, s4')
    a.I(f'v_lshrrev_b32 {vr(t1)}, 1, {vr(g)}')
    a.I(f'v_lshl_add_u32 {vr(t0)}, {vr(t1)}, 8, {vr(t0)}')
    a.I(f'v_and_b32 {vr(t1)}, 1, {vr(g)}')
    a.I(f'v_lshl_add_u32 {vr(vQW)}, {vr(t1)}, 3, {vr(t0)}')
    a.I('s_waitcnt lgkmcnt(0)')
    rest_setup()
    cval = fbits(128 ** -0.5 * math.log2(math.e))
    a.I(f's_mov_b32 {sr(sC)}, {cval}')
    a.I(f's_mov_b32 {sr(sC + 1)}, {cval}')
    for i in range(0, 144, 2): a.I(f'v_mov_b64 {vr(ACC + i, 2)}, 0')
    def xread(t, slot, ks): return f'ds_read_b128 {vr(XF + 4 * t, 4)}, {vr(vX + ks)} offset:{slot * 18432 + t * 2048}'
    def wreads(W, slot, ks):
        return [f'ds_read_b64_tr_b16 {vr(W + 4 * j + 2 * h, 2)}, {vr(vWp + j)} offset:{slot * 16384 + ks * 2048 + h * 1024}' for j in range(4) for h in range(2)]
    GT = OPT['gate']
    def kstep(Wc, Wn, nslot, nks, gated, last=False):
        wr = wreads(Wn, nslot, nks) if not last else []
        conv = []
        for t in range(9):
            for j in range(4):
                a.I(f'{MF} {vr(acc(t, j), 4)}, {vr(Wc + 4 * j, 4)}, {vr(XF + 4 * t, 4)}, {vr(acc(t, j), 4)}')
                if t >= (GT if gated else 0) and j in (0, 2) and wr: a.I(wr.pop(0))
                for _ in range(5):
                    if conv: a.I(conv.pop(0))
            if gated and t == GT - 1:
                a.I('s_waitcnt lgkmcnt(0)')
                a.I('s_barrier')
                if not last:
                    for tt in range(GT): a.I(xread(tt, nslot, nks))
            elif not last and (not gated or t >= GT): a.I(xread(t, nslot, nks))
            if last and t >= GT - 1:
                lo = 0 if t == GT - 1 else t - 1
                for tc in range(lo, t): conv += convert(tc)
        if last:
            a.many(conv); a.many(convert(8))
        assert not wr
    def convert(t):
        r = []
        for j in range(4): r += [f'v_pk_mul_f32 {vr(acc(t, j) + 2 * k, 2)}, {vr(acc(t, j) + 2 * k, 2)}, {sr(sC, 2)}' for k in range(2)]
        for j in range(4): r += [f'v_cvt_pk_bf16_f32 {vr(acc(t, j) + k)}, {vr(acc(t, j) + 2 * k)}, {vr(acc(t, j) + 2 * k + 1)}' for k in range(2)]
        for j in range(4): r += [f'ds_write_b64 {vr(vQW)}, {vr(acc(t, j), 2)} offset:{t * 4096 + (j >> 1) * 1024 + (j & 1) * 512}']
        return r
    W0, W1 = WF, WF + 16
    if OPT['cprio']: a.I(f's_setprio {OPT["cprio"]}')
    a.I('s_barrier')
    st.cyc()
    a.many(wreads(W0, 0, 0))
    for t in range(9): a.I(xread(t, 0, 0))
    a.I(f's_mov_b32 {sr(sCNT)}, 0')
    a.I('s_waitcnt lgkmcnt(0)')
    class _Dry(Asm): pass
    save = (a.ins, a.lg); a.ins = []; a.lg = []
    kstep(W1, W0, 0, 0, True); lg0 = [set(x) for x in a.lg]
    a.ins, a.lg = save
    a.lg = [set(x) for x in lg0]
    a.label('k1_qloop')
    for i in range(3):
        kstep(W0, W1, i, 1, False)
        kstep(W1, W0, (i + 1) % 3, 0, True)
    assert [set(x) for x in a.lg] == lg0
    a.I(f's_add_u32 {sr(sCNT)}, {sr(sCNT)}, 1')
    a.I(f's_cmp_lt_u32 {sr(sCNT)}, 5')
    a.I('s_cbranch_scc1 k1_qloop')
    kstep(W0, W1, 0, 1, False)
    kstep(W1, W0, 0, 0, True, last=True)
    if OPT['cprio']: a.I('s_setprio 0')
    st.cyc()

    a.label('k1_join')
    if OPT.get('qst'): st.on = False
    a.lg = [set()]
    a.I(f's_lshl_b32 {sr(sKP)}, {sr(sHH)}, 15')
    a.I(f's_add_u32 {sr(sKP)}, {sr(sKP)}, 16384')
    a.I(f's_add_u32 {sr(sVP)}, {sr(sKP)}, 16384')
    a.I(f's_and_b32 s3, {sr(sR)}, 1')
    a.I('s_lshl_b32 s3, s3, 11')
    a.I(f's_lshl_b32 {sr(sJ)}, s3, 1')
    a.I(f's_sub_u32 {sr(sJ)}, 2048, {sr(sJ)}')
    a.I(f's_mul_i32 s5, {sr(sHH)}, 81920')
    a.I('s_add_u32 s5, s5, s3')
    a.I(f's_add_u32 s4, s5, {sr(sVP)}')
    a.I(f's_add_u32 s5, s5, {sr(sKP)}')
    a.I(f's_mul_i32 s3, {sr(sHH)}, 36864')
    a.I(f's_add_u32 s3, s3, {QB}')
    a.I(f'v_lshl_add_u32 {vr(t3)}, v0, 4, s3')
    a.I(f's_lshl_b32 s3, {sr(sR)}, 13')
    a.I(f'v_add_u32 {vr(t2)}, s3, {vr(t3)}')
    a.I('s_waitcnt lgkmcnt(0)')
    a.I('s_barrier')
    for T in range(2):
        for k in range(4): a.I(f'ds_read_b128 {vr(q_(T, k), 4)}, {vr(t2)} offset:{T * 4096 + k * 1024}')
    for k in range(4): a.I(f'ds_read_b128 {vr(q_(2, k), 4)}, {vr(t3)} offset:{32768 + k * 1024}')
    tr_pattern(vVa)
    a.I(f'v_add_u32 {vr(vVa)}, s4, {vr(vVa)}')
    for j in range(1, 4): a.I(f'v_xor_b32 {vr(vVa + j)}, {32 * j}, {vr(vVa)}')
    a.I(f'v_bfe_u32 {vr(n)}, v0, 2, 2')
    hfun(t0, n, t1)
    a.I(f'v_xor_b32 {vr(t0)}, {vr(t0)}, {vr(g)}')
    a.I(f'v_lshlrev_b32 {vr(t0)}, 4, {vr(t0)}')
    a.I(f'v_lshl_add_u32 {vr(t0)}, {vr(n)}, 12, {vr(t0)}')
    a.I(f'v_and_b32 {vr(t1)}, 3, v0')
    a.I(f'v_lshl_add_u32 {vr(t0)}, {vr(t1)}, 7, {vr(t0)}')
    a.I(f'v_bfe_u32 {vr(t1)}, v0, 1, 1')
    a.I(f'v_lshl_add_u32 {vr(t0)}, {vr(t1)}, 6, {vr(t0)}')
    a.I(f'v_add_u32 {vr(vKa)}, s5, {vr(t0)}')
    a.I(f'v_xor_b32 {vr(vKa + 1)}, 64, {vr(vKa)}')
    for i in range(4): a.I(f'v_mov_b32 {vr(ONES + i)}, 0x3f803f80')
    for i in range(0, 12, 2): a.I(f'v_mov_b64 {vr(NEGM + i, 2)}, 0')
    NEG_BIG = fbits(-3.0e38)
    for s in (sTHR, sTHR8, sCL, sCL8): a.I(f's_mov_b32 {sr(s)}, {NEG_BIG}')
    a.I(f's_lshl_b32 s3, {sr(sHH)}, 17')
    a.I(f'v_add_u32 {vr(vD)}, s3, {vr(vD)}')
    a.I(f's_mov_b32 {sr(sOV)}, 32768')
    a.I(f's_mov_b32 {sr(sOK)}, 32768')
    for i in range(0, 108, 2): a.I(f'v_mov_b64 {vr(O + i, 2)}, 0')
    a.I(f's_lshl_b32 s5, {sr(sHH)}, 15')
    a.I(f's_add_u32 s5, s5, {sr(sM0A)}')
    a.I(f's_mov_b32 {sr(sT1)}, 32768')
    a.I(f's_mov_b32 {sr(sCNT)}, 0')
    a.I(f's_mov_b32 {sr(sRS)}, 0')
    if OPT['wopf'] in (1, 2):
        wo_srd()
        a.I(f's_lshl_b32 {sr(sOX)}, {sr(sWAVE)}, 13')
    a.I('s_waitcnt lgkmcnt(0)')
    a.I('s_barrier')
    a.lg = []
    def dma_ins(kind):
        srd, so = (sK, sOK) if kind == 'K' else (sV, sOV)
        r = [[f'buffer_load_dwordx4 {vr(vD)}, {sr(srd, 4)}, {sr(so)} offen offset:{j * 1024}{APOL(kind, j)} lds'] for j in range(4)]
        r[3].append(f's_add_u32 {sr(so)}, {sr(so)}, 16384')
        return r
    def dma_grp(kind, m0):
        r = dma_ins(kind); r[0] = [m0, 's_nop 0'] + r[0]
        return r
    if OPT['pp']:
        a.I('s_mov_b32 m0, s5')
        a.I('s_mov_b32 s3, 49152')
        for j in range(4): a.I(f'buffer_load_dwordx4 {vr(vD)}, {sr(sK, 4)}, s3 offen offset:{j * 1024}{NT("pfp")} lds')
    for x in dma_grp('K', 's_mov_b32 m0, s5'): a.many(x)
    a.I(f's_cmp_eq_u32 {sr(sHH)}, 0')
    a.I('s_cbranch_scc1 k1_nowr')
    kvwrite('K1', 32768, mx, 0); kvwrite('V1', 49152, mx, 16384)
    a.label('k1_nowr')
    a.lg = []
    LA, SY = 6, OPT['sy']
    def rd(kind, jl, f):
        if kind == 'K':
            return [f'ds_read_b128 {vr(POOL + 4 * f, 4)}, {vr(vKa + (f & 1))} offset:{(f >> 2) * 1024 + ((f >> 1) & 1) * 512}']
        return [f'ds_read_b64_tr_b16 {vr(POOL + 4 * f + 2 * h, 2)}, {vr(vVa + (f & 3))} offset:{h * 1024 + (f >> 2) * 512}' for h in range(2)]
    def rd_upd(kind, jl, f):
        r = rd(kind, jl, f)
        if kind == 'K' and f >= 6: r.append(f'v_add_u32 {vr(vKa + (f & 1))}, {sr(sDK if jl else sJ)}, {vr(vKa + (f & 1))}')
        if kind == 'V' and f >= 6:
            for x in (f - 2, f): r.append(f'v_add_u32 {vr(vVa + (x & 3))}, {sr(sDV if jl else sJ)}, {vr(vVa + (x & 3))}')
        return r
    for f in range(LA): a.many(rd('K', 0, f))
    lgK = [set(x) for x in a.lg]
    lgV = [set(Insn(x).wr) for f in range(LA) for x in rd('V', 0, f)]
    st.cyc()
    a.I(f's_lshr_b32 s3, {sr(sR)}, 1')
    a.I(f's_xor_b32 s3, s3, {sr(sHH)}')
    a.I('s_cmp_eq_u32 s3, 1')
    a.I('s_cbranch_scc1 k1_proL')

    def maxops(jl, heavy):
        def chain(vs, dst, extra=None):
            o = [f'v_max3_f32 {vr(dst)}, {vr(vs[0])}, {vr(vs[1])}, {vr(vs[2])}']
            for k in range(3, len(vs) - 1, 2): o.append(f'v_max3_f32 {vr(dst)}, {vr(dst)}, {vr(vs[k])}, {vr(vs[k + 1])}')
            o.append(f'v_max_f32 {vr(dst)}, {vr(dst)}, {vr(vs[-1])}' if extra is None else f'v_max3_f32 {vr(dst)}, {vr(dst)}, {vr(vs[-1])}, {vr(extra)}')
            return o
        c1 = chain([s_(0, jl) + k for k in range(8)], tB)
        c0 = chain([s_(1, jl) + k for k in range(8)], mx, tB)
        c8 = chain([s_(2, 0) + k for k in range(8)], mx8) if heavy else []
        ops = []
        for k in range(4):
            ops += [c1[k]] + ([c8[k]] if heavy else []) + [c0[k]]
        return ops
    def expops(jl, heavy):
        ops = []
        Tl = (0, 1, 2) if heavy else (0, 1)
        for k in range(8):
            for T in Tl: ops.append(f'v_exp_f32 {vr(s_(T, jl) + k)}, {vr(s_(T, jl) + k)}')
            if k >= 2 and k % 2 == 0:
                for T in Tl: ops.append(f'v_cvt_pk_bf16_f32 {vr(s_(T, jl) + k // 2 - 1)}, {vr(s_(T, jl) + k - 2)}, {vr(s_(T, jl) + k - 1)}')
        for T in Tl: ops.append(f'v_cvt_pk_bf16_f32 {vr(s_(T, jl) + 3)}, {vr(s_(T, jl) + 6)}, {vr(s_(T, jl) + 7)}')
        return ops
    stubs = []
    def check(jl, heavy):
        for (thr, m, fn) in ((sTHR, mx, f'k1_rare{jl}'),) + (((sTHR8, mx8, 'k1_rare8'),) if heavy else ()):
            lb = a.newlabel('k1_ok')
            a.I(f'v_cmp_lt_f32 vcc, {sr(thr)}, {vr(m)}')
            a.I(f's_cbranch_vccnz {lb}_s')
            a.label(lb)
            stubs.append((lb, fn))
    def mfmas(kind, jl, heavy, f):
        Tl = (0, 1, 2) if heavy else (0, 1)
        P = vr(POOL + 4 * f, 4)
        if kind == 'K':
            tt, ks = f >> 2, f & 3
            return [f'{MF} {vr(s_(T, jl, tt), 4)}, {P}, {vr(q_(T, ks), 4)}, {vr(negm(T) if ks == 0 else s_(T, jl, tt), 4)}' for T in Tl]
        r = [f'{MF} {vr(o_(T, f), 4)}, {P}, {vr(s_(T, jl), 4)}, {vr(o_(T, f), 4)}' for T in Tl]
        if f == 7: r += [f'{MF} {vr(o_(T, 8), 4)}, {vr(ONES, 4)}, {vr(s_(T, jl), 4)}, {vr(o_(T, 8), 4)}' for T in Tl]
        return r
    def ring_step(doK, doV):
        r = []
        for (P, Po, D, on) in ((sKP, sKPo, sDK, doK), (sVP, sVPo, sDV, doV)):
            if not on: continue
            r.append([f's_mov_b32 {sr(Po)}, {sr(P)}',
                      f's_cmp_ge_u32 {sr(P)}, 49152',
                      f's_cselect_b32 {sr(D)}, {-49152 & 0xffffffff:#x}, {sr(sT1)}',
                      f's_add_u32 {sr(P)}, {sr(P)}, {sr(D)}',
                      f's_sub_u32 {sr(D)}, {sr(D)}, {sr(sJ)}'])
        return r
    def cost(x):
        if callable(x): return 8
        return 8 if x.startswith('v_exp') else 4
    def pack(stream, ngaps, reserved):
        for cap_extra in range(0, ngaps + 1):
            big = set((i * ngaps) // cap_extra for i in range(cap_extra)) if cap_extra else set()
            out = [[] for _ in range(ngaps)]; k = 0
            for gi in range(ngaps):
                room = (16 if gi in big else 8) - reserved[gi]
                while k < len(stream) and cost(stream[k]) <= room:
                    out[gi].append(stream[k]); room -= cost(stream[k]); k += 1
            if k == len(stream): break
        else:
            out[-1] += stream[k:]
        if cap_extra == 0 and OPT['spread']:
            h = max([gi for gi in range(ngaps) if any(callable(x) for x in out[gi])] + [-1]) + 1
            rest = [x for gi in range(h, ngaps) for x in out[gi]]
            groups = []; room = 0
            for x in rest:
                if cost(x) > room: groups.append([]); room = 8
                groups[-1].append(x); room -= cost(x)
            free = [gi for gi in range(h, ngaps) if reserved[gi] == 0]
            if len(groups) <= len(free):
                for gi in range(h, ngaps): out[gi] = []
                for i, gp in enumerate(groups): out[free[(i * len(free)) // len(groups)]] = gp
        return out
    def block(segs, streams, mode, aux0, nvm, auxat=None):
        uses = [(si, f) for si in range(len(segs)) for f in range(8)]
        nU = len(uses)
        gaps = []
        for k, (si, f) in enumerate(uses):
            for n_ in range(len(mfmas(segs[si][0], segs[si][1], segs[si][2], f))): gaps.append((k, n_))
        aux = {gp: [] for gp in gaps}; pre = {gp: [] for gp in gaps}
        for k in range(nU - LA):
            s2, f2 = uses[k + LA]
            rr = rd_upd(segs[s2][0], segs[s2][1], f2)
            for i, x in enumerate([x for x in rr if x.startswith('ds_')]): aux[(k, i)].append(x)
            pre[(k + 1, 0)] += [x for x in rr if x.startswith('v_')]
        if mode != 'fin':
            post = [gp for gp in gaps if gp[0] > nU - 8 + SY]
            q = [(f, x) for f in range(LA) for x in rd('V', 0, f)]
            early = [x for f, x in q if f < OPT['nimm']]; q = [(f, x) for f, x in q if f >= OPT['nimm']]
            per = -(-len(q) // len(post))
            for gp in post:
                for _ in range(per):
                    fdone = gp[0] - (nU - 8) - (0 if gp[1] == 1 else 1)
                    if q and q[0][0] <= fdone: aux[gp].append(q.pop(0)[1])
            assert not q, q
        gsel = gaps[OPT['aux0']::OPT['auxs']] if auxat is None else [gp for gp in gaps if gp[0] >= auxat]
        assert len(aux0) <= len(gsel)
        for gp, x in zip(gsel, aux0): aux[gp].append(x)
        fill = {}
        for (sa, sb, skip, ops) in streams:
            gl = [gp for gp in gaps if sa <= uses[gp[0]][0] <= sb]
            gl = gl[skip:len(gl) - OPT['tail']]
            for gp, ol in zip(gl, pack(ops, len(gl), [4 * len(pre[gp]) for gp in gl])):
                fill[gp] = ol
                assert not (any(callable(x) for x in ol) and uses[gp[0]][0] != sa)
        def emit(x):
            if callable(x): x()
            elif isinstance(x, list):
                for y in x: emit(y)
            else: a.I(x)
        for k, (si, f) in enumerate(uses):
            kind, jl, heavy, after = segs[si]
            if f == 0 and OPT['aprio'] and si: a.I(f's_setprio {len(segs) - 1 - si}')
            for n_, m in enumerate(mfmas(kind, jl, heavy, f)):
                a.I(m)
                emit(pre[(k, n_)]); emit(fill.get((k, n_), [])); emit(aux[(k, n_)])
            if OPT['stamp'] == 3 and mode == 'loop' and f == 7 and si < 3: a.raw(f's_memtime {sr(90 + 2 * si, 2)}')
            if mode != 'fin' and k == nU - 8 + SY:
                if OPT['stamp'] == 3 and mode == 'loop':
                    a.raw('s_mov_b32 s88, s98')
                    a.raw('s_memtime s[96:97]')
                a.I(f's_waitcnt vmcnt({nvm}) lgkmcnt(0)')
                a.I('s_barrier')
                if OPT['aprio']: a.I('s_setprio 3')
                st.sh()
                if OPT['stamp'] == 3 and mode == 'loop': a.raw('s_memtime s[98:99]')
                a.many(early)
            if f == 7 and after: after()
        if mode != 'fin': assert [set(x) for x in a.lg] == lgV, (a.lg, lgV)
    def resc():
        lb = a.newlabel('k1_nors')
        a.I(f's_cmp_lg_u32 {sr(sRS)}, 0')
        a.I(f's_cbranch_scc1 {lb}_s')
        a.label(lb)
        stubs.append((lb, 'k1_rescale'))
    def sm(jl, heavy): return maxops(jl, heavy) + [lambda: check(jl, heavy)] + expops(jl, heavy)
    OFFM0 = 0x30000
    def warm(kind, so):
        return [[f'buffer_load_dwordx4 {vr(vD)}, {sr(sK if kind == "K" else sV, 4)}, {so} offen offset:{j * 1024}{NT("pfp")} lds'] for j in range(4)]
    def prologue(h0):
        a.lg = [set(x) for x in lgK]
        ax = ring_step(True, False)
        block([('K', 0, h0, lambda: (a.many(maxops(0, h0)), check(0, h0))), ('K', 1, False, None)],
              [(1, 1, 0, expops(0, h0))], 'pro', ax, 63)
    def body_aux():
        r = [[f's_add_u32 {sr(sMK)}, {sr(sM0A)}, {sr(sVPo)}',
              f's_add_u32 {sr(sMV)}, {sr(sM0A)}, {sr(sKPo)}',
              f's_cmp_ge_u32 {sr(sCNT)}, 6',
              f's_cselect_b32 {sr(sMV)}, {OFFM0}, {sr(sMV)}',
              f's_cselect_b32 {sr(sOV)}, 0x1000000, {sr(sOV)}',
              f's_sub_u32 s3, {sr(sCNT)}, 1',
              f's_cmp_ge_u32 s3, 5',
              f's_cselect_b32 m0, {OFFM0}, {sr(sMK)}',
              f's_cselect_b32 s3, 0x1000000, {sr(sOK)}',
              f's_cselect_b32 s4, 0, 16384']]
        r += ring_step(True, True)
        for j in range(4): r.append([f'buffer_load_dwordx4 {vr(vD)}, {sr(sK, 4)}, s3 offen offset:{j * 1024}{APOL("K", j)} lds'])
        r[-1] += [f's_add_u32 {sr(sOK)}, {sr(sOK)}, s4', f's_mov_b32 m0, {sr(sMV)}']
        nv = 4
        if OPT['mk']:
            w = warm('K', 's3')
            w[0] = [f's_mov_b32 s4, {OPT["mk"]}', f's_bitcmp1_b32 s4, {sr(sCNT)}', f's_cselect_b32 s3, {sr(sOK)}, 0x1000000'] + w[0]
            r += w; nv += 4
        if OPT['mv']:
            w = warm('V', 's3')
            w[0] = [f's_add_u32 s3, {sr(sOV)}, 16384', f's_mov_b32 s4, {OPT["mv"]}', f's_bitcmp1_b32 s4, {sr(sCNT)}', f's_cselect_b32 s3, s3, 0x1000000'] + w[0]
            r += w; nv += 4
        r += dma_ins('V')
        return r, nv
    def body(hc, tag, exit_to):
        a.lg = [set(x) for x in lgV]
        hn = not hc
        ax, nvm = body_aux()
        block([('V', 0, hc, resc), ('K', 0, hn, None), ('V', 1, False, resc), ('K', 1, False, None)],
              [(0, 1, 1, sm(1, False)), (2, 3, 1, sm(0, hn))], 'loop', ax, nvm)
        a.I(f's_add_u32 {sr(sCNT)}, {sr(sCNT)}, 1')
        a.I(f's_cmp_eq_u32 {sr(sCNT)}, 7')
        a.I(f's_cbranch_scc1 {exit_to}')
    K = K2(a)
    def final(hc):
        a.lg = [set(x) for x in lgV]
        lb = a.newlabel('k1_early')
        a.I(f's_cmp_eq_u32 {sr(sHH)}, 1')
        a.I(f's_cbranch_scc1 {lb}_s')
        a.label(lb)
        stubs.append((lb, 'k1_early'))
        NM8 = negm(2)
        ax = [[f's_lshl_b32 s5, {sr(sHH)}, 15', 's_add_u32 s5, s5, 81920', f's_lshl_b32 s13, {sr(sHH)}, 14',
               f's_lshl_b32 s4, {sr(sR)}, 11', 's_add_u32 s3, s4, s5', 'v_lshl_add_u32 v1, v0, 4, s3'],
              ['v_add_u32 v2, s13, v1', f's_lshl_b32 s3, {sr(sWAVE)}, 9', f'v_lshl_add_u32 {vr(vD)}, v0, 3, s3'],
              [], [f'v_mov_b32 {vr(NM8 + 1)}, {vr(o_(2, 8))}']]
        ax += [[f'ds_write_b128 {"v1" if d < 4 else "v2"}, {vr(o_(2, d), 4)} offset:{(d >> 1) * 8192 + (d & 1) * 1024}'] for d in range(8)]
        ax += [[f'ds_write_b64 {vr(vD)}, {vr(NM8, 2)}']]
        block([('V', 0, hc, resc), ('V', 1, False, None)], [(0, 0, 1, sm(1, False))], 'fin', ax, 0, auxat=8)
        if OPT['aprio']: a.I('s_setprio 0')
    prologue(True)
    a.label('k1_X')
    body(True, 'x', 'k1_finL')
    a.label('k1_Y')
    body(False, 'y', 'k1_finH')
    a.I('s_branch k1_X')
    a.label('k1_proL')
    prologue(False)
    a.I('s_branch k1_Y')

    a.auto = False
    def xg_reduce(x, tmp, op):
        a.I(f'v_mov_b32 {vr(tmp)}, {vr(x)}')
        a.I(f'v_permlane32_swap_b32 {vr(x)}, {vr(tmp)}')
        a.I(f'{op} {vr(x)}, {vr(x)}, {vr(tmp)}')
        a.I(f'v_mov_b32 {vr(tmp)}, {vr(x)}')
        a.I(f'v_permlane16_swap_b32 {vr(x)}, {vr(tmp)}')
        a.I(f'{op} {vr(x)}, {vr(x)}, {vr(tmp)}')
    FREG = {0: mx, 1: tA, 2: mx8}
    def rare(T, vals, scl, canfirst):
        m, tmp = tB, FREG[T]
        a.I(f'v_max3_f32 {vr(m)}, {vr(vals[0])}, {vr(vals[1])}, {vr(vals[2])}')
        for k in range(3, len(vals) - 1, 2): a.I(f'v_max3_f32 {vr(m)}, {vr(m)}, {vr(vals[k])}, {vr(vals[k + 1])}')
        a.I(f'v_max_f32 {vr(m)}, {vr(m)}, {vr(vals[-1])}')
        xg_reduce(m, tmp, 'v_max_f32')
        a.I(f'v_max_f32 {vr(m)}, {sr(scl)}, {vr(m)}')
        for v in vals: a.I(f'v_sub_f32 {vr(v)}, {vr(v)}, {vr(m)}')
        for k in range(4): a.I(f'v_sub_f32 {vr(negm(T) + k)}, {vr(negm(T) + k)}, {vr(m)}')
        lb = a.newlabel('k1_first'); lb2 = a.newlabel('k1_rdone')
        if canfirst:
            a.I(f's_cmp_lg_u32 {sr(scl)}, 0')
            a.I(f's_cbranch_scc1 {lb}')
        a.I(f'v_exp_f32 {vr(tmp)}, -{vr(m)}')
        if T == 2:
            for k in range(36): a.I(f'v_mul_f32 {vr(o_(T, 8) + k)}, {vr(o_(T, 8) + k)}, {vr(tmp)}')
        else:
            a.I(f's_mov_b32 {sr(sRS)}, 1')
        if canfirst: a.label(lb)
    for jl in range(2):
        a.label(f'k1_rare{jl}')
        for T in range(2): rare(T, [s_(T, jl) + k for k in range(8)], sCL, jl == 0)
        a.I(f's_mov_b32 {sr(sTHR)}, {THRV}')
        a.I(f's_mov_b32 {sr(sCL)}, 0')
        a.I(f's_setpc_b64 {sr(sLINK, 2)}')
    a.label('k1_rare8')
    rare(2, [s_(2, 0) + k for k in range(8)], sCL8, True)
    a.I(f's_mov_b32 {sr(sTHR8)}, {THRV}')
    a.I(f's_mov_b32 {sr(sCL8)}, 0')
    a.I(f's_setpc_b64 {sr(sLINK, 2)}')
    a.label('k1_early')
    K.early()
    a.I(f's_setpc_b64 {sr(sLINK, 2)}')
    a.label('k1_rescale')
    for T in range(2):
        for k in range(36): a.I(f'v_mul_f32 {vr(o_(T, 8) + k)}, {vr(o_(T, 8) + k)}, {vr(FREG[T])}')
    a.I(f's_mov_b32 {sr(sRS)}, 0')
    a.I(f's_setpc_b64 {sr(sLINK, 2)}')
    a.auto = True

    a.label('k1_finH')
    final(True)
    a.I('s_branch k1_epi')
    pos = len(a.ins)
    a.label('k1_finL')
    final(False)
    tailcode = a.ins[pos:]; del a.ins[pos:]
    for lb, fn in stubs:
        a.label(lb + '_s')
        a.raw(f's_call_b64 {sr(sLINK, 2)}, {fn}')
        a.raw(f's_branch {lb}')
    a.ins += tailcode
    a.label('k1_epi')
    a.lg = []
    st.cyc()
    e0, e1, e2, e3, e4 = 3, 4, 5, 6, 8
    NM8 = negm(2)
    a.lg = [set()]
    a.I(f'v_lshlrev_b32 {vr(e0)}, 4, v0')
    a.I(f's_lshl_b32 s3, {sr(sHH)}, 11')
    a.I(f'v_lshl_add_u32 {vr(e2)}, v0, 3, s3')
    a.I(f's_lshl_b32 s6, {sr(sR)}, 13')
    a.I('s_add_u32 s6, s6, s5')
    a.I(f's_cmp_ge_u32 {sr(sR)}, 2')
    a.I('s_cselect_b32 s13, s13, 0')
    a.I('s_add_u32 s6, s6, s13')
    a.I(f'v_add_u32 {vr(e1)}, s6, {vr(e0)}')
    R8 = S
    a.I('s_waitcnt lgkmcnt(0)')
    a.I('s_barrier')
    for sl in range(4): a.I(f'ds_read_b64 {vr(R8 + 32 + 2 * sl, 2)}, {vr(e2)} offset:{sl * 512}')
    for k in range(8): a.I(f'ds_read_b128 {vr(R8 + 4 * k, 4)}, {vr(e1)} offset:{k * 1024}')
    dbg_srd(sK)
    a.I('v_mov_b32 v10, 0')
    a.I(f'buffer_load_dword v1, v10, {sr(sK, 4)}, 0 offen sc1')
    a.I('s_load_dwordx2 s[10:11], s[0:1], 80')
    sOO = sV
    a.I(f's_lshl_b32 s3, {sr(sBLK)}, 3')
    a.I(f's_add_u32 s3, s3, {sr(sB)}')
    a.I(f's_mul_i32 s3, s3, {O_SLICE}')
    a.I(f's_mul_i32 s6, {sr(sHP)}, 73728')
    a.I('s_add_u32 s3, s3, s6')
    a.I(f's_add_u32 {sr(sOO)}, s16, s3')
    a.I(f's_addc_u32 {sr(sOO + 1)}, s17, 0')
    a.I(f's_mov_b32 {sr(sOO + 2)}, 73728')
    a.I(f's_mov_b32 {sr(sOO + 3)}, 0x20000')
    a.I(f's_mul_i32 s3, {sr(sHH)}, 36864')
    a.I(f'v_add_u32 {vr(e3)}, s4, {vr(e0)}')
    def fin(src, scale2, voff, soff, imm):
        for k in range(4): a.I(f'v_pk_mul_f32 {vr(src + 2 * k, 2)}, {vr(src + 2 * k, 2)}, {vr(scale2, 2)}')
        for k in range(4): a.I(f'v_cvt_pk_bf16_f32 {vr(src + k)}, {vr(src + 2 * k)}, {vr(src + 2 * k + 1)}')
        a.I(f'buffer_store_dwordx4 {vr(src, 4)}, {vr(voff)}, {sr(sOO, 4)}, {soff} offen offset:{imm}{NT("ont")}')
    for T in range(2):
        for k in range(2): a.I(f'v_rcp_f32 {vr(o_(T, 8) + k)}, {vr(o_(T, 8) + k)}')
    a.I(f's_add_u32 s6, s3, {K.XB}')
    a.I(f'v_add_u32 {vr(e1)}, s6, {vr(e3)}')
    a.I('s_mov_b32 s6, s3')
    def xw(P): return [f'ds_write_b128 {vr(e1)}, {vr(o_(T, 2 * P), 4)} offset:{P * 9216 + T * 1024}' for T in range(2)]
    for P in range(4):
        for T in range(2): fin(o_(T, 2 * P), o_(T, 8), e3, 's6', T * 1024)
        if P < 3: a.I('s_add_u32 s6, s6, 9216')
        if P == OPT['b2at']:
            a.I('s_waitcnt lgkmcnt(0)')
            a.I('s_barrier')
            for Q_ in range(P): a.many(xw(Q_))
        if P >= OPT['b2at']: a.many(xw(P))
    flag_srd(sO)
    K.ids()
    a.I(f's_mul_i32 s6, {sr(sR)}, 9216')
    a.I('s_add_u32 s6, s6, s3')
    a.I(f'v_add_u32 {vr(e3)}, 8192, {vr(e0)}')
    nm = [R8 + 32 + 2 * i for i in range(4)]
    ll = [R8 + 33 + 2 * i for i in range(4)]
    a.I(f'v_min3_f32 {vr(e0)}, {vr(nm[0])}, {vr(nm[1])}, {vr(nm[2])}')
    a.I(f'v_min_f32 {vr(e0)}, {vr(e0)}, {vr(nm[3])}')
    for i in range(4): a.I(f'v_sub_f32 {vr(nm[i])}, {vr(e0)}, {vr(nm[i])}')
    for i in range(4): a.I(f'v_exp_f32 {vr(nm[i])}, {vr(nm[i])}')
    a.I(f'v_mul_f32 {vr(e0)}, {vr(ll[0])}, {vr(nm[0])}')
    for i in range(1, 4): a.I(f'v_fmac_f32 {vr(e0)}, {vr(ll[i])}, {vr(nm[i])}')
    a.I(f'v_rcp_f32 {vr(e4)}, {vr(e0)}')
    a.I(f'v_rcp_f32 {vr(e4 + 1)}, {vr(e0)}')
    for k in range(8): a.I(f'v_mul_f32 {vr(R8 + k)}, {vr(R8 + k)}, {vr(nm[0])}')
    for i in range(1, 4):
        for k in range(8): a.I(f'v_fmac_f32 {vr(R8 + k)}, {vr(R8 + 8 * i + k)}, {vr(nm[i])}')
    fin(R8, e4, e3, 's6', 0)
    a.I(f's_add_u32 s6, s6, {K.XB}')
    a.I(f'v_add_u32 {vr(e3)}, s6, {vr(e3)}')
    a.I(f'ds_write_b128 {vr(e3)}, {vr(R8, 4)}')
    if OPT['stamp'] == 3: st.n = 12
    else: st.cyc(); st.real()
    K.st1 = st
    if OPT.get('qst'): st.on = True
    return K.main()

class K2:
    sO, sW, sD, sE, sF = 20, 24, 28, 32, 36
    sWAVE, sR, sLD, sBLK, sB, sHP, sN8, sKH, sKC = 40, 41, 42, 43, 44, 45, 67, 64, 62
    sM0W, sM0X, sOW, sOX, sSL, sCNT, sT0, sST, sROT, sH, sNH, sKS = 55, 48, 49, 50, 51, 52, 53, 54, 65, 56, 57, 58
    sSTX, sFO, sPC, sHPc = 59, 60, 61, 66
    sRW, sRX, sWB, sXB, sWEX = 68, 72, 54, 59, 8
    sLINK = 8
    vWp, vX, vL16, vFA, vFV, vDW, vDX = 12, 14, 16, 17, 18, 28, 32
    g, t0, t1, t2 = 19, 20, 21, 22
    ACC, XF, WF, TMP = 112, 76, 60, 184
    XB = 81920
    @staticmethod
    def wslot(i): return 16384 + ((i + 1) & 3) * 16384
    def __init__(self, a):
        self.a = a; self.st = Stamper(a, 1)
    def early(self):
        a = self.a; K = self
        sW, sR = K.sW, K.sR
        t0, t1 = 36, 37
        a.I(f's_lshr_b32 s12, {sr(sR)}, 1')
        a.I(f's_xor_b32 {sr(K.sH)}, {sr(sR)}, s12')
        a.I(f's_and_b32 {sr(K.sH)}, {sr(K.sH)}, 1')
        a.I(f's_lshl_b32 {sr(K.sH)}, {sr(K.sH)}, 1')
        a.I(f's_or_b32 {sr(K.sH)}, {sr(K.sH)}, s12')
        a.I(f'v_and_b32 {vr(t0)}, 7, v0')
        a.I(f'v_xor_b32 {vr(t0)}, {sr(K.sH)}, {vr(t0)}')
        a.I(f'v_bfe_u32 {vr(t1)}, v0, 4, 1')
        a.I(f'v_lshlrev_b32 {vr(t1)}, 2, {vr(t1)}')
        a.I(f'v_xor_b32 {vr(t0)}, {vr(t0)}, {vr(t1)}')
        a.I(f'v_lshlrev_b32 {vr(t0)}, 4, {vr(t0)}')
        a.I(f'v_lshrrev_b32 {vr(t1)}, 5, v0')
        a.I(f'v_lshl_add_u32 {vr(t0)}, {vr(t1)}, 7, {vr(t0)}')
        a.I(f'v_bfe_u32 {vr(t1)}, v0, 3, 2')
        a.I(f's_lshl_b32 s12, {sr(sR)}, 2')
        a.I(f'v_add_u32 {vr(t1)}, s12, {vr(t1)}')
        a.I(f'v_lshl_add_u32 {vr(K.vDW)}, {vr(t1)}, 11, {vr(t0)}')
        a.I(f's_lshl_b32 {sr(K.sM0W)}, {sr(sR)}, 12')
        for tq in range(1, 4): a.I(f'v_add_u32 {vr(K.vDW + tq)}, {tq * (32768 - 1024)}, {vr(K.vDW)}')
        a.I(f's_lshl_b32 {sr(K.sWB)}, {sr(K.sHP)}, 19')
        a.I(f's_mov_b64 {sr(K.sWEX, 2)}, -1')
        a.I(f's_lshr_b32 s12, {sr(K.sHP)}, 1')
        a.I(f's_lshl_b32 s12, s12, 8')
        a.I(f's_add_u32 {sr(sW)}, s18, s12')
        a.I(f's_addc_u32 {sr(sW + 1)}, s19, 0')
        a.I(f's_sub_u32 {sr(sW + 2)}, 8388608, s12')
        a.I(f's_mov_b32 {sr(sW + 3)}, 0x20000')
        for i in range(3): K.stw(i, own=True)
    def ids(self):
        a = self.a; K = self
        a.I(f's_and_b32 {sr(K.sKH)}, {sr(K.sHP)}, 1')
        a.I(f's_lshr_b32 {sr(K.sN8)}, {sr(K.sHP)}, 1')
        a.I(f'v_lshlrev_b32 {vr(K.vL16)}, 4, v0')
    def late(self):
        a = self.a; K = self
        sO, sR, sB, sBLK = K.sO, K.sR, K.sB, K.sBLK
        a.I(f's_lshr_b32 s12, {sr(K.sHP)}, 2')
        a.I(f's_add_u32 {sr(K.sROT)}, {sr(sB)}, s12')
        a.I(f'v_add_u32 {vr(K.vDX)}, {sr(K.sM0W)}, {vr(K.vL16)}')
        a.I(f's_lshl_b32 {sr(K.sM0X)}, {sr(sR)}, 10')
        a.I(f's_add_u32 {sr(K.sM0X)}, {sr(K.sM0X)}, 16384')
        a.I(f'v_add_u32 {vr(K.vDX + 1)}, {sr(K.sM0X)}, {vr(K.vL16)}')
        for i in range(4):
            a.I(f's_add_u32 s12, {sr(K.sROT)}, {i}')
            a.I('s_and_b32 s12, s12, 3')
            a.I(f's_lshl_b32 {sr(K.sRW + i)}, s12, 17')
            a.I(f's_mul_i32 {sr(K.sRX + i)}, s12, 18432')
        a.I(f's_mov_b32 {sr(K.sKC)}, -1')
        a.I(f's_lshl_b32 s12, {sr(sBLK)}, 3')
        a.I(f's_add_u32 s12, s12, {sr(sB)}')
        a.I(f's_lshl_b32 {sr(K.sFO)}, s12, 11')
        a.I(f's_add_u32 {sr(K.sFO)}, {sr(K.sFO)}, 65536')
        a.I(f's_mul_i32 s12, s12, {O_SLICE}')
        a.I(f's_add_u32 {sr(sO)}, s16, s12')
        a.I(f's_addc_u32 {sr(sO + 1)}, s17, 0')
        a.I(f's_mov_b32 {sr(sO + 2)}, {O_SLICE}')
        a.I(f's_mov_b32 {sr(sO + 3)}, 0x20000')
        a.I(f'v_and_b32 {vr(K.vFA)}, 15, v0')
        a.I(f'v_lshlrev_b32 {vr(K.vFA)}, 7, {vr(K.vFA)}')
        a.I(f's_lshl_b32 s4, {sr(K.sHP)}, 7')
        a.I(f's_add_u32 s4, s4, {sr(K.sFO)}')
        a.I('v_mov_b32 v11, 1')
        a.I(f'v_mov_b32 {vr(K.vFV)}, 0')
    def stw(self, i, own=False):
        a = self.a; K = self
        a.I(f's_add_u32 m0, {sr(K.sM0W)}, {K.wslot(i)}')
        a.I(f's_add_u32 {sr(K.sOW)}, {sr(K.sWB)}, {i * 131072 if own else sr(K.sRW + i)}')
        a.I(f's_mov_b64 exec, {sr(K.sWEX, 2)}')
        for tq in range(4): a.I(f'buffer_load_dwordx4 {vr(K.vDW + tq)}, {sr(K.sW, 4)}, {sr(K.sOW)} offen offset:{tq * 1024}{NT("wont")} lds')
        a.I('s_mov_b64 exec, -1')
    def stx(self, i):
        a = self.a; K = self
        lb = a.newlabel('k2_skipx')
        a.I(f's_add_u32 m0, {sr(K.sM0W)}, {K.XB + i * 18432}')
        a.I(f's_add_u32 {sr(K.sOX)}, {sr(K.sXB)}, {sr(K.sRX + i)}')
        for j in range(4): a.I(f'buffer_load_dwordx4 {vr(K.vDX)}, {sr(K.sO, 4)}, {sr(K.sOX)} offen offset:{j * 1024}{NT("oldf")} lds')
        a.I(f's_add_u32 m0, {sr(K.sM0X)}, {K.XB + i * 18432}')
        a.I(f's_cmp_ge_u32 {sr(K.sR)}, 2')
        a.I(f's_cbranch_scc1 {lb}')
        a.I(f'buffer_load_dwordx4 {vr(K.vDX + 1)}, {sr(K.sO, 4)}, {sr(K.sOX)} offen{NT("oldf")} lds')
        a.label(lb)
    def ready(self):
        a = self.a; K = self
        l1, l2 = a.newlabel('k2_chk'), a.newlabel('k2_go')
        a.I(f's_mov_b32 {sr(K.sPC)}, 0')
        a.label(l1)
        a.I(f'v_cmp_eq_u32 vcc, 1, {vr(K.vFV)}')
        a.I(f's_bitcmp1_b32 vcc_lo, {sr(K.sHPc)}')
        a.I(f's_cbranch_scc1 {l2} ; TAKEN')
        a.I(K.flagload())
        a.I(f's_add_u32 {sr(K.sPC)}, {sr(K.sPC)}, 1')
        a.I('s_waitcnt vmcnt(0)')
        a.I(f's_cmp_lt_u32 {sr(K.sPC)}, {OPT["pollmax"]}')
        a.I(f's_cbranch_scc1 {l1}')
        a.label(l2)
    def fl1(self, vt):
        n = self.st1.n; self.st1.flush(16, self.sWAVE, self.sW, vt); self.st1.n = n
    def nextseg(self):
        a = self.a; K = self
        a.I(f's_add_u32 {sr(K.sKC)}, {sr(K.sKC)}, 1')
        a.I(f's_cmp_eq_u32 {sr(K.sKC)}, {sr(K.sN8)}')
        a.I(f's_addc_u32 {sr(K.sKC)}, {sr(K.sKC)}, 0')
        a.I(f's_lshl_b32 {sr(K.sHPc)}, {sr(K.sKC)}, 1')
        a.I(f's_add_u32 {sr(K.sHPc)}, {sr(K.sHPc)}, {sr(K.sKH)}')
        a.I(f's_cmp_eq_u32 {sr(K.sN8)}, 7')
        a.I('s_cselect_b32 s12, 5, 7')
        a.I(f's_add_u32 s12, s12, {sr(K.sCNT)}')
        a.I(f's_sub_u32 s13, {sr(K.sKH)}, 1')
        a.I(f's_sub_u32 s14, 0, {sr(K.sKH)}')
        a.I(f's_cmp_ge_u32 {sr(K.sCNT)}, 7')
        a.I(f's_cselect_b32 {sr(K.sHPc)}, s12, {sr(K.sHPc)}')
        a.I(f's_cselect_b32 {sr(K.sWEX)}, s13, -1')
        a.I(f's_cselect_b32 {sr(K.sWEX + 1)}, s14, -1')
        a.I(f's_lshl_b32 {sr(K.sWB)}, {sr(K.sHPc)}, 19')
        a.I(f's_mul_i32 {sr(K.sXB)}, {sr(K.sHPc)}, 73728')
    def flagload(self): return f'buffer_load_dword {vr(self.vFV)}, {vr(self.vFA)}, {sr(self.sF, 4)}, {sr(self.sFO)} offen sc1 ; NOCHECK'
    def main(self):
        a = self.a; st = self.st; K = self
        MF = 'v_mfma_f32_16x16x32_bf16'
        sO, sW, sD, sE, sF, sR, sB, sN8, sKH, sBLK = K.sO, K.sW, K.sD, K.sE, K.sF, K.sR, K.sB, K.sN8, K.sKH, K.sBLK
        sOW, sOX, sSL, sCNT, sT0, sST, sSTX, sPC, sHPc, sNH, sKS = K.sOW, K.sOX, K.sSL, K.sCNT, K.sT0, K.sST, K.sSTX, K.sPC, K.sHPc, K.sNH, K.sKS
        vWp, vX, vDW, vL16, g, t0, t1, t2 = K.vWp, K.vX, K.vDW, K.vL16, K.g, K.t0, K.t1, K.t2
        ACC, XF, WF, TMP, XB = K.ACC, K.XF, K.WF, K.TMP, K.XB
        def acc(t, j): return ACC + (t * 2 + j) * 4
        st.real(); st.cyc()
        a.I(f's_cmp_eq_u32 {sr(K.sLD)}, 0')
        a.I('s_cbranch_scc1 k2_comp')
        if OPT['lprio']: a.I(f's_setprio {OPT["lprio"]}')
        K.stw(3, own=True)
        a.I('s_waitcnt vmcnt(13) lgkmcnt(0)')
        a.I('s_barrier')
        st0 = st.n
        st.cyc()
        K.late()
        a.I(f's_mov_b32 {sr(sCNT)}, 1')
        K.nextseg()
        PB = OPT['pubat']
        for i in range(3):
            if i == PB: a.I(f's_waitcnt vmcnt({4 * PB + 4})')
            if i == 2: a.I('s_waitcnt vmcnt(8)')
            a.I('s_barrier')
            if i == PB:
                a.I(f's_cmp_lg_u32 {sr(sR)}, 0')
                a.I('s_cbranch_scc1 k2_nopub')
                a.I('s_mov_b64 exec, 1')
                a.I(f'buffer_store_dword v11, v10, {sr(sF, 4)}, s4 offen sc1')
                a.I('s_mov_b64 exec, -1')
                a.label('k2_nopub')
            K.stw(i)
        a.I(f's_mov_b32 {sr(sPC)}, 0')
        a.I('s_movk_i32 s3, 0x100')
        a.label('k2_allin')
        a.I('v_cmp_le_u32 vcc, s3, v1')
        a.I('s_cbranch_vccnz k2_allok ; POLL')
        a.I(f'buffer_load_dword v1, v10, {sr(sD, 4)}, 0 offen sc1')
        a.I(f's_add_u32 {sr(sPC)}, {sr(sPC)}, 1')
        a.I('s_waitcnt vmcnt(0)')
        a.I(f's_cmp_lt_u32 {sr(sPC)}, {OPT["pollmax"]}')
        a.I('s_cbranch_scc1 k2_allin')
        a.label('k2_allok')
        K.ready()
        K.stx(0); K.stx(1); K.stx(2)
        a.I('s_waitcnt vmcnt(8)')
        a.I('s_barrier')
        a.I(K.flagload())
        K.stw(3); K.stx(3)
        a.I(f's_mov_b32 {sr(sCNT)}, 2')
        a.I('s_waitcnt vmcnt(12)')
        a.label('k2_lloop')
        K.nextseg()
        for i in range(4):
            a.I('s_waitcnt vmcnt(16)')
            a.I('s_barrier')
            K.stw(i)
            if i == 0: K.ready()
            if i == 1: a.I(K.flagload())
            K.stx(i)
        a.I(f's_add_u32 {sr(sCNT)}, {sr(sCNT)}, 1')
        a.I(f's_cmp_lt_u32 {sr(sCNT)}, 9')
        a.I('s_cbranch_scc1 k2_lloop')
        for nv in (16, 8, 0, 0):
            a.I(f's_waitcnt vmcnt({nv})')
            a.I('s_barrier')
        st.cyc(); st.cyc(); st.cyc(); st.cyc(); st.real()
        st.flush(16, K.sWAVE, sW, t1); K.fl1(t1)
        a.I('s_endpgm')
        a.label('k2_comp')
        st.n = st0
        a.lg = []
        a.I(f's_and_b32 {sr(sKS)}, {sr(sR)}, 1')
        a.I(f's_lshr_b32 {sr(sNH)}, {sr(sR)}, 1')
        a.I(f'v_lshrrev_b32 {vr(g)}, 4, v0')
        a.I(f'v_lshrrev_b32 {vr(t1)}, 1, {vr(g)}')
        a.I(f'v_xor_b32 {vr(t0)}, {vr(g)}, {vr(t1)}')
        a.I(f'v_and_b32 {vr(t0)}, 1, {vr(t0)}')
        a.I(f'v_lshl_or_b32 {vr(t0)}, {vr(t0)}, 1, {vr(t1)}')
        a.I(f'v_bfe_u32 {vr(t1)}, v0, 1, 1')
        a.I(f'v_xor_b32 {vr(t0)}, {vr(t0)}, {vr(t1)}')
        a.I(f'v_lshlrev_b32 {vr(t0)}, 4, {vr(t0)}')
        a.I(f'v_lshl_add_u32 {vr(t0)}, {vr(g)}, 12, {vr(t0)}')
        a.I(f'v_bfe_u32 {vr(t1)}, v0, 2, 2')
        a.I(f'v_lshl_add_u32 {vr(t0)}, {vr(t1)}, 7, {vr(t0)}')
        a.I(f'v_bfe_u32 {vr(t1)}, v0, 3, 1')
        a.I(f'v_xor_b32 {vr(t1)}, {sr(sKS)}, {vr(t1)}')
        a.I(f'v_lshl_add_u32 {vr(t0)}, {vr(t1)}, 6, {vr(t0)}')
        a.I(f'v_and_b32 {vr(t1)}, 1, v0')
        a.I(f'v_lshl_add_u32 {vr(t0)}, {vr(t1)}, 3, {vr(t0)}')
        a.I(f's_lshl_b32 s3, {sr(sNH)}, 9')
        a.I('s_add_u32 s3, s3, 16384')
        a.I(f'v_add_u32 {vr(vWp)}, s3, {vr(t0)}')
        a.I(f'v_xor_b32 {vr(vWp + 1)}, 32, {vr(vWp)}')
        a.I(f'v_add_u32 {vr(vX)}, {XB}, {vr(vL16)}')
        a.I(f'v_add_u32 {vr(vX + 1)}, {XB + 9216}, {vr(vL16)}')
        for i in range(0, 72, 2): a.I(f'v_mov_b64 {vr(ACC + i, 2)}, 0')
        a.I(f's_add_u32 {sr(sE)}, s16, {EXCH_OFF}')
        a.I(f's_addc_u32 {sr(sE + 1)}, s17, 0')
        a.I(f's_mov_b32 {sr(sE + 2)}, {256 * 36864}')
        a.I(f's_mov_b32 {sr(sE + 3)}, 0x20000')
        a.I(f's_mul_i32 s3, {sr(sB)}, {144 * 4096}')
        a.I(f's_add_u32 {sr(sD)}, s10, s3')
        a.I(f's_addc_u32 {sr(sD + 1)}, s11, 0')
        a.I(f's_mov_b32 {sr(sD + 2)}, {144 * 4096}')
        a.I(f's_mov_b32 {sr(sD + 3)}, 0x20000')
        a.I(f's_cmp_eq_u32 {sr(sNH)}, {sr(sKH)}')
        a.I('s_cselect_b32 s5, 1, 0')
        a.I(f's_cselect_b32 {sr(sPC)}, 9, 7')
        a.I('s_xor_b32 s3, s2, s5')
        a.I('s_lshl_b32 s3, s3, 1')
        a.I(f's_add_u32 s3, s3, {sr(sKS)}')
        a.I(f's_lshl_b32 {sr(sT0)}, s3, 7')
        a.I(f's_mul_i32 {sr(sOX)}, s3, 18432')
        a.I(f'v_mov_b32 {vr(t0)}, 0')
        a.I(f's_mov_b32 {sr(sSL)}, 0')
        FS = (24, 68)
        def reads(F, slot, ks):
            w = [f'ds_read_b64_tr_b16 {vr(F + 4 * j + 2 * h, 2)}, {vr(vWp + j)} offset:{K.wslot(slot) - 16384 + ks * 2048 + h * 1024}' for j in range(2) for h in range(2)]
            x = [f'ds_read_b128 {vr(F + 8 + 4 * t, 4)}, {vr(vX + ks)} offset:{slot * 18432 + t * 1024}' for t in range(9)]
            return w[:2] + x[:1] + w[2:] + x[1:]
        G2 = OPT['gate2']
        def kstep(Fc, Fn, nslot, nks, gated, vm=''):
            rd_ = reads(Fn, nslot, nks)
            if not gated: a.I(f's_waitcnt lgkmcnt({OPT["lw2"]})')
            k = 0
            for t in range(9):
                for j in range(2):
                    if gated and k == G2:
                        a.I(f's_waitcnt {vm}lgkmcnt(0)')
                        a.I('s_barrier')
                    if not gated and k == 6: a.I(f's_waitcnt lgkmcnt(6)')
                    a.I(f'{MF} {vr(acc(t, j), 4)}, {vr(Fc + 4 * j, 4)}, {vr(Fc + 8 + 4 * t, 4)}, {vr(acc(t, j), 4)}')
                    if k >= (G2 if gated else 0) and rd_: a.I(rd_.pop(0))
                    k += 1
            assert not rd_
        if OPT['cprio']: a.I(f's_setprio {OPT["cprio"]}')
        a.I('s_waitcnt lgkmcnt(0)')
        a.I('s_barrier')
        st.cyc()
        a.many(reads(FS[0], 0, 0))
        a.I(f's_mov_b32 {sr(sCNT)}, 0')
        lg0 = [set(x) for x in a.lg]
        a.label('k2_cloop')
        for i in range(4):
            if OPT['kpf'] and i in (OPT['kpf'] - 1, OPT['kpf']):
                a.I(f's_cmp_eq_u32 {sr(sCNT)}, 8')
                a.I(f's_cbranch_scc1 k2_e{i}')
                a.label(f'k2_r{i}')
            kstep(FS[0], FS[1], i, 1, False)
            kstep(FS[1], FS[0], (i + 1) & 3, 0, True, 'vmcnt(0) ' if i == OPT['pubat'] else '')
        assert [set(x) for x in a.lg] == lg0
        a.I(f's_add_u32 {sr(sCNT)}, {sr(sCNT)}, 1')
        a.I(f's_cmp_lt_u32 {sr(sCNT)}, {sr(sPC)}')
        a.I('s_cbranch_scc1 k2_cloop')
        st.cyc()
        XP = NT('xpol')
        a.I('s_cmp_eq_u32 s5, 1')
        a.I('s_cbranch_scc1 k2_keep')
        SB = {1: (8,), 2: (5, 11), 0: ()}[OPT['ssplit']]
        for k in range(18):
            a.I(f'buffer_store_dwordx4 {vr(ACC + 4 * k, 4)}, {vr(vL16)}, {sr(sE, 4)}, {sr(sOX)} offen offset:{(k & 3) * 1024}{XP}')
            if k & 3 == 3: a.I(f's_add_u32 {sr(sOX)}, {sr(sOX)}, 4096')
            if k in SB: a.I('s_barrier')
        stn = st.n
        st.cyc()
        for _ in range(OPT['sbar']): a.I('s_barrier')
        a.I(f'v_mov_b32 {vr(t1)}, 1')
        a.I('s_mov_b64 exec, 1')
        a.I('s_waitcnt vmcnt(0)')
        st.cyc()
        a.I(f'buffer_store_dword {vr(t1)}, {vr(t0)}, {sr(sF, 4)}, {sr(sT0)} offen{XP}')
        a.I('s_mov_b64 exec, -1')
        for _ in range(8 - len(SB) - OPT['sbar']): a.I('s_barrier')
        st.cyc(); st.real()
        st.flush(16, K.sWAVE, sW, t1); K.fl1(t1)
        a.I('s_endpgm')
        def xloads():
            for k in range(18):
                a.I(f'buffer_load_dwordx4 {vr(TMP + 4 * k, 4)}, {vr(vL16)}, {sr(sE, 4)}, {sr(sOX)} offen offset:{(k & 3) * 1024}{XP}')
                if k & 3 == 3: a.I(f's_add_u32 {sr(sOX)}, {sr(sOX)}, 4096')
        if OPT['kpf']:
            a.auto = False
            i = OPT['kpf']
            a.label(f'k2_e{i - 1}')
            a.I(f'buffer_load_dword {vr(t1)}, {vr(t0)}, {sr(sF, 4)}, {sr(sT0)} offen{XP}')
            a.I(f's_branch k2_r{i - 1}')
            a.label(f'k2_e{i}')
            a.I('s_waitcnt vmcnt(0)')
            a.I(f'v_cmp_eq_u32 vcc, 1, {vr(t1)}')
            a.I(f's_cbranch_vccz k2_r{i}')
            xloads()
            a.I(f's_mov_b32 {sr(sSL)}, 1')
            a.I(f's_branch k2_r{i}')
            a.auto = True
        a.label('k2_keep')
        st.n = stn
        a.I(f's_mov_b32 {sr(sCNT)}, 0')
        st.cyc()
        a.I(f's_cmp_eq_u32 {sr(sSL)}, 1')
        a.I('s_cbranch_scc1 k2_have')
        a.label('k2_poll')
        a.I(f'buffer_load_dword {vr(t1)}, {vr(t0)}, {sr(sF, 4)}, {sr(sT0)} offen{XP}')
        a.I(f's_add_u32 {sr(sCNT)}, {sr(sCNT)}, 1')
        a.I('s_waitcnt vmcnt(0)')
        a.I(f'v_cmp_eq_u32 vcc, 1, {vr(t1)}')
        a.I('s_cbranch_vccnz k2_got ; POLL')
        a.I(f's_cmp_lt_u32 {sr(sCNT)}, {OPT["pollmax"]}')
        a.I('s_cbranch_scc1 k2_poll')
        a.label('k2_got')
        xloads()
        a.label('k2_have')
        st.cyc()
        a.I(f'v_and_b32 {vr(t2)}, 15, v0')
        a.I(f'v_lshlrev_b32 {vr(t2)}, 12, {vr(t2)}')
        a.I(f'v_lshl_add_u32 {vr(t2)}, {vr(g)}, 4, {vr(t2)}')
        a.I(f's_lshl_b32 s3, {sr(sBLK)}, 11')
        a.I(f's_lshl_b32 s4, {sr(sN8)}, 8')
        a.I('s_add_u32 s3, s3, s4')
        a.I(f's_lshl_b32 s4, {sr(sR)}, 6')
        a.I('s_add_u32 s3, s3, s4')
        for t in range(9):
            a.I(f's_waitcnt vmcnt({16 - t})')
            d = acc(t, 0)
            for k in range(4): a.I(f'v_pk_add_f32 {vr(d + 2 * k, 2)}, {vr(d + 2 * k, 2)}, {vr(TMP + 8 * t + 2 * k, 2)}')
            for k in range(4): a.I(f'v_cvt_pk_bf16_f32 {vr(d + k)}, {vr(d + 2 * k)}, {vr(d + 2 * k + 1)}')
            for mn in ('v_permlane32_swap_b32', 'v_permlane16_swap_b32'):
                for k in range(2): a.I(f'{mn} {vr(d + k)}, {vr(d + 2 + k)}')
            a.I(f'buffer_store_dwordx4 {vr(d, 4)}, {vr(t2)}, {sr(sD, 4)}, s3 offen{NT("outp")}')
            a.I('s_add_u32 s3, s3, 65536')
        st.cyc(); st.real()
        st.flush(16, K.sWAVE, sW, t0); K.fl1(t0)
        a.label('k1_end')
        a.raw('s_endpgm')
        return a

HEADER = open(f'cdna_kernels/{NAME}.s.ref').read().split('; Override launch')[0]
def kd(name, vg, sg=102):
    return f'''.amdhsa_kernel {name}
  .amdhsa_next_free_vgpr {vg}
  .amdhsa_next_free_sgpr {sg}
  .amdhsa_accum_offset {(min(vg, 256) + 3) // 4 * 4}
  .amdhsa_group_segment_fixed_size 0
  .amdhsa_kernarg_size 104
  .amdhsa_user_sgpr_count 2
  .amdhsa_user_sgpr_kernarg_segment_ptr 1
  .amdhsa_system_sgpr_workgroup_id_x 1
.end_amdhsa_kernel
'''
def main():
    ks = [('attn_kernel', gen_k1(), 256, 163840)]
    out = HEADER
    if OPT['fuse']:
        ks = [(NAME + '_kernel', ks[0][1], 256, 163840)]
        out += '; @launch grid=(256,1,1) block=(512,1,1) lds=163840\n'
    else:
        for nm, _, _, lds in ks:
            out += f'; @launch kernel={nm} grid=(256,1,1) block=(512,1,1) lds={lds}\n'
    out += '.amdgcn_target "amdgcn-amd-amdhsa--gfx950"\n.text\n'
    for nm, a, vg, lds in ks:
        if OPT.get('novm'):
            seen = False; keep = []
            for x in a.ins:
                if x.mn == 's_barrier': seen = True
                if x.label in ('k2_m1',): seen = False
                if x.label == 'k2_cloop': seen = False; OPT['_stop'] = 1
                if OPT.get('_stop'): seen = False
                if seen and x.mn == 'buffer_load_dwordx4': continue
                keep.append(x)
            a.ins = keep
        if OPT.get('nokv'): a.ins = [x for x in a.ins if not (x.kind == 'vmem' and x.mn == 'buffer_load_dwordx4' and not x.lds and 'nt' in x.mods)]
        if OPT.get('nomfma'): a.ins = [x for x in a.ins if x.kind != 'mfma']
        if OPT.get('nods'): a.ins = [x for x in a.ins if not (x.kind == 'ds' and 'read' in x.mn)]
        n = a.pad_hazards(verbose=bool(OPT.get('v')))
        errs = 0; nbs = set()
        for wave in range(8):
            for pol in (lambda i, x: 'POLL' in x.text, lambda i, x: True):
              for wgid in (3, 4, 5):
                tr = a.trace(wgid, wave, pol)
                e, nb = a.verify_waits(tr, quiet=(errs > 0 or bool(OPT.get('novm')) or OPT['stamp'] == 4)); errs += e; nbs.add(nb)
        assert (len(nbs) == 1 or (len(nbs) == 2 and max(nbs) - min(nbs) == 7 - OPT['sbar'])) and (errs == 0 or OPT.get('novm') or OPT['stamp'] == 4), (nbs, errs)
        print(f'{nm}: {len(a.ins)} lines, nops added {n}, wait errors {errs}, barriers {nb}, trace len {len(tr)}', file=sys.stderr)
        out += f'.globl {nm}\n.p2align 8\n.type {nm},@function\n{nm}:\n' + a.text()
    out += '.section .rodata,"a"\n'
    for nm, a, vg, lds in ks:
        out += '.p2align 6\n' + kd(nm, vg)
    open(sys.argv[1], 'w').write(out)
main()
```

```python
import sys, math, struct
from asmlib import *

NAME = 'concat_heads__mha_block_cached__mha_block_cached__near_ridge'
OPT = dict(stamp=0, kvnt=1, wnt=0, xnt=0, ont=2, wont=0, oldnt=0, rot1=3, rot2=3, wopf=3, ord=1, desync=1, pre1=1, gate=2, cprio=1, tail=1, rotc=0, rhh=0, vfirst=1, hpmap=2, s2=1, fuse=1, kv0=0, kvs=3, lprio=0, whalf=0, offm=0, offsh=0, pubat=0, b2at=1, kpf=3, spread=1, gate2=0, lw2=4, sbar=3, ssplit=1, ntm=255, oldf=2, cpf=1, sy=4, nimm=3, aux0=0, auxs=4, pp=0, mv=0, mk=0, nwo=16, pfp=0, xpol=2, outp=0, pollmax=100000, qprio=1, rs0=10, rs1=13, stag=1, aprio=1, pS=0, pM=0, pV=0, smfirst=0)
for a in sys.argv[2:]:
    k, v = a.split('='); OPT[k] = int(v) if v.lstrip('-').isdigit() else v

def fbits(x): return '0x%08x' % struct.unpack('<I', struct.pack('<f', x))[0]
NT = lambda k: {0: '', 1: ' nt', 2: ' sc1', 3: ' sc0 sc1', 4: ' sc1 nt'}[OPT[k]]
APOL = lambda kind, j: ' nt' if (OPT['ntm'] >> (j + (4 if kind == 'V' else 0))) & 1 else ''
THRV = '0x7f800000' if OPT.get('novm') else fbits(8.0)
O_SLICE = 128 * 9216
STAMP_OFF = 64 << 20
EXCH_OFF = 32 << 20
FLAG_OFF = 48 << 20

class Stamper:
    def __init__(self, a, region):
        self.a = a; self.n = 0; self.region = region
        self.on = OPT.get('sreg', 0) == region or OPT['stamp'] == 5
    def real(self):
        if not self.on: return
        if OPT['stamp'] == 5:
            if self.region == 0 and not self.n: self.a.I('s_memrealtime s[76:77]'); self.n = 1
            return
        if OPT['stamp'] == 4 and self.region == 0 and self.n: return
        if OPT['stamp']:
            self.a.I(f's_memrealtime {sr(76 + 2 * self.n, 2)}'); self.n += 1
    def cyc(self):
        if not self.on: return
        if OPT['stamp'] == 5: return
        if OPT['stamp'] == 4 and self.region == 0:
            self.a.raw('s_waitcnt lgkmcnt(0)'); self.sh(); return
        if OPT['stamp']:
            self.a.I(f's_memtime {sr(76 + 2 * self.n, 2)}'); self.n += 1
    def sh(self):
        if not self.on: return
        if OPT['stamp'] == 4 and self.region == 0:
            for i in range(13): self.a.raw(f's_mov_b32 s{80 + i}, s{81 + i}')
            self.a.raw('s_mov_b32 s93, s98')
            self.a.raw('s_memtime s[98:99]')
    def flush(self, s_ws, s_wave, srd, vt):
        if not OPT['stamp'] or not self.on: return
        a = self.a
        if OPT['stamp'] == 5:
            if self.region == 0: return
            a.I('s_memrealtime s[78:79]'); self.n = 2
            if OPT.get('dbgspan'):
                a.I('s_waitcnt vmcnt(0) lgkmcnt(0)')
                a.I(f's_mov_b32 {sr(srd)}, s100'); a.I(f's_mov_b32 {sr(srd + 1)}, s101'); a.I(f's_mov_b32 {sr(srd + 2)}, 256'); a.I(f's_mov_b32 {sr(srd + 3)}, 0x20000')
                a.I('s_not_b32 s76, s76')
                a.I('s_mov_b64 exec, 1')
                a.I(f'v_mov_b32 {vr(vt)}, 0'); a.I(f'v_mov_b32 {vr(vt + 1)}, s78')
                a.I(f'buffer_atomic_umax {vr(vt + 1)}, {vr(vt)}, {sr(srd, 4)}, 0 offen offset:16 sc1')
                a.I('s_nop 1')
                a.I(f'v_mov_b32 {vr(vt + 1)}, s76')
                a.I(f'buffer_atomic_umax {vr(vt + 1)}, {vr(vt)}, {sr(srd, 4)}, 0 offen offset:20 sc1')
                a.I('s_not_b32 s76, s76')
                a.I('s_nop 1')
                a.I(f'v_mov_b32 {vr(vt + 1)}, s76')
                a.I(f'buffer_atomic_umax {vr(vt + 1)}, {vr(vt)}, {sr(srd, 4)}, 0 offen offset:24 sc1')
                return
        regs = [76 + 2 * i for i in range(self.n)]
        if OPT['stamp'] == 4 and self.region == 0:
            regs = [76] + list(range(81, 94)) + [98]; self.n = 0
        assert self.n <= 12
        a.I('s_waitcnt vmcnt(0) lgkmcnt(0)')
        a.I(f's_add_u32 {sr(srd)}, {sr(s_ws)}, {STAMP_OFF + self.region * (1 << 20)}')
        a.I(f's_addc_u32 {sr(srd + 1)}, {sr(s_ws + 1)}, 0')
        a.I(f's_mov_b32 {sr(srd + 2)}, {1 << 20}')
        a.I(f's_mov_b32 {sr(srd + 3)}, 0x20000')
        a.I(f's_lshl_b32 s3, s2, 3')
        a.I(f's_add_u32 s3, s3, {sr(s_wave)}')
        a.I(f's_lshl_b32 s3, s3, 6')
        a.I(f'v_mov_b32 {vr(vt)}, 0')
        a.I(f'v_mov_b32 {vr(vt + 1)}, {self.n}')
        a.I(f'buffer_store_dword {vr(vt + 1)}, {vr(vt)}, {sr(srd, 4)}, s3 offen offset:60')
        a.I('s_nop 1')
        for i in range(len(regs)):
            a.I(f'v_mov_b32 {vr(vt + 1)}, {sr(regs[i])}')
            a.I(f'buffer_store_dword {vr(vt + 1)}, {vr(vt)}, {sr(srd, 4)}, s3 offen offset:{4 * i}')
            a.I('s_nop 1')

def gen_k1():
    a = Asm()
    st = Stamper(a, 0)
    MF = 'v_mfma_f32_16x16x32_bf16'
    sX, sW, sK, sV, sO = 20, 24, 28, 32, 36
    sWAVE, sR, sHH, sBLK, sB, sHP = 40, 41, 42, 43, 44, 45
    sM0W, sM0X, sOW, sOX, sLOOSE, sNEXT, sKVI = 46, 47, 48, 49, 50, 51, 52
    sSLW, sSLX = 53, 54
    sCNT, sT0, sT1 = 55, 56, 57
    sKP, sVP, sM0A, sDK, sDV, sOV, sOK = 58, 59, 60, 62, 63, 64, 65
    sTHR, sTHR8, sCL, sCL8 = 66, 67, 68, 69
    sC = 70
    sKPo, sVPo = 72, 73
    sST, sROT = 74, 75
    sLINK = 6
    sH = 61
    sPFO, sMK, sMV = 48, 50, 51
    sJ = 47
    sRS, sRC = 46, 61
    vKa, vVa, vD = 1, 3, 7
    mx, mx8, tA, tB = 8, 9, 10, 11
    ONES, NEGM, Q, S, POOL, O = 12, 16, 28, 76, 116, 148
    ACC, XF, WF = 112, 76, 44
    XB, QB = 49152, 49152
    HB1 = 114688
    def acc(t, j): return ACC + (t * 4 + j) * 4
    def o_(T, d): return O + (T * 9 + (d + 1) % 9) * 4
    JUNK = O + 3
    def q_(T, k): return Q + (T * 4 + k) * 4
    def s_(T, j, tt=0): return S + (T * 2 + j) * 8 + tt * 4 if T < 2 else S + 32 + tt * 4
    def negm(T): return NEGM + 4 * T
    kvreg = {'K0': 160, 'V0': 192, 'K1': 76, 'V1': 108}
    g, n, t0, t1, t2, t3 = 12, 13, 14, 15, 16, 17

    def hfun(dst, src, tmp):
        a.I(f'v_lshrrev_b32 {vr(tmp)}, 1, {vr(src)}')
        a.I(f'v_xor_b32 {vr(dst)}, {vr(src)}, {vr(tmp)}')
        a.I(f'v_and_b32 {vr(dst)}, 1, {vr(dst)}')
        a.I(f'v_lshl_or_b32 {vr(dst)}, {vr(dst)}, 1, {vr(tmp)}')
    def tr_pattern(dst):
        a.I(f'v_lshrrev_b32 {vr(g)}, 4, v0')
        hfun(t0, g, t1)
        a.I(f'v_bfe_u32 {vr(t1)}, v0, 1, 1')
        a.I(f'v_xor_b32 {vr(t0)}, {vr(t0)}, {vr(t1)}')
        a.I(f'v_lshlrev_b32 {vr(t0)}, 4, {vr(t0)}')
        a.I(f'v_lshl_add_u32 {vr(t0)}, {vr(g)}, 12, {vr(t0)}')
        a.I(f'v_bfe_u32 {vr(t1)}, v0, 2, 2')
        a.I(f'v_lshl_add_u32 {vr(t0)}, {vr(t1)}, 7, {vr(t0)}')
        a.I(f'v_bfe_u32 {vr(t1)}, v0, 3, 1')
        a.I(f'v_lshl_add_u32 {vr(t0)}, {vr(t1)}, 6, {vr(t0)}')
        a.I(f'v_and_b32 {vr(t1)}, 1, v0')
        a.I(f'v_lshl_add_u32 {vr(dst)}, {vr(t1)}, 3, {vr(t0)}')

    a.raw('s_cmp_ge_u32 s2, 256')
    a.raw('s_cbranch_scc1 k1_end')
    st.real(); st.cyc()
    a.I('s_and_b32 s3, s2, 7')
    a.I('s_lshr_b32 s4, s2, 3')
    a.I(f's_lshr_b32 {sr(sBLK)}, s3, 2')
    a.I(f's_mul_i32 s5, {sr(sBLK)}, 40')
    a.I('s_load_dwordx8 s[8:15], s[0:1], s5')
    a.I('s_load_dwordx2 s[16:17], s[0:1], 96')
    a.I('s_add_u32 s5, s5, 32')
    a.I('s_load_dwordx2 s[18:19], s[0:1], s5')
    if OPT['fuse']: a.I('s_load_dwordx2 s[100:101], s[0:1], 88')
    a.I('s_and_b32 s5, s4, 3')
    a.I('s_lshl_b32 s6, s5, 1')
    a.I('s_add_u32 s3, s3, s6')
    a.I('s_and_b32 s3, s3, 3')
    a.I(f's_lshl_b32 {sr(sHP)}, s5, 2')
    a.I(f's_add_u32 {sr(sHP)}, {sr(sHP)}, s3')
    a.I(f's_lshr_b32 {sr(sB)}, s4, 2')
    a.I(f's_add_u32 {sr(sROT)}, {sr(sB)}, s5')
    a.I(f'v_lshrrev_b32 {vr(t0)}, 6, v0')
    a.I(f'v_readfirstlane_b32 {sr(sWAVE)}, {vr(t0)} ; WAVEID')
    a.I('v_and_b32 v0, 63, v0')
    a.I(f's_and_b32 {sr(sR)}, {sr(sWAVE)}, 3')
    a.I(f's_lshr_b32 {sr(sHH)}, {sr(sWAVE)}, 2')
    a.I(f's_lshr_b32 s3, {sr(sR)}, 1')
    a.I(f's_xor_b32 {sr(sH)}, {sr(sR)}, s3')
    a.I(f's_and_b32 {sr(sH)}, {sr(sH)}, 1')
    a.I(f's_lshl_b32 {sr(sH)}, {sr(sH)}, 1')
    a.I(f's_or_b32 {sr(sH)}, {sr(sH)}, s3')
    a.I(f'v_and_b32 {vr(t0)}, 7, v0')
    a.I(f'v_xor_b32 {vr(t0)}, {sr(sH)}, {vr(t0)}')
    a.I(f'v_bfe_u32 {vr(t1)}, v0, 4, 1')
    a.I(f'v_lshlrev_b32 {vr(t1)}, 2, {vr(t1)}')
    a.I(f'v_xor_b32 {vr(t0)}, {vr(t0)}, {vr(t1)}')
    a.I(f'v_lshlrev_b32 {vr(t0)}, 4, {vr(t0)}')
    a.I(f'v_lshrrev_b32 {vr(t1)}, 5, v0')
    a.I(f'v_lshl_add_u32 {vr(t0)}, {vr(t1)}, 7, {vr(t0)}')
    a.I(f'v_lshrrev_b32 {vr(g)}, 4, v0')
    a.I(f'v_bfe_u32 {vr(t1)}, v0, 3, 2')
    a.I(f's_lshl_b32 s3, {sr(sR)}, 4')
    a.I(f'v_add_u32 {vr(t1)}, s3, {vr(t1)}')
    a.I(f'v_lshl_add_u32 {vr(vD)}, {vr(t1)}, 8, {vr(t0)}')
    a.I(f's_lshl_b32 {sr(sM0W)}, {sr(sR)}, 12')
    def rest_setup():
        a.I(f's_mul_i32 {sr(sM0A)}, {sr(sHH)}, 81920')
        a.I(f's_add_u32 {sr(sM0A)}, {sr(sM0A)}, {sr(sM0W)}')
        a.I(f's_lshl_b32 s3, {sr(sB)}, 4')
        a.I(f's_add_u32 s3, s3, {sr(sHP)}')
        a.I('s_lshl_b32 s3, s3, 18')
        for (d, p) in ((sK, 10), (sV, 12)):
            a.I(f's_add_u32 {sr(d)}, {sr(p)}, s3')
            a.I(f's_addc_u32 {sr(d + 1)}, {sr(p + 1)}, 0')
            a.I(f's_mov_b32 {sr(d + 2)}, 262144')
            a.I(f's_mov_b32 {sr(d + 3)}, 0x20000')
    a.I(f's_cmp_eq_u32 {sr(sHH)}, 0')
    a.I('s_cbranch_scc1 k1_comp')

    def flag_srd(d):
        a.I(f's_add_u32 {sr(d)}, s16, {FLAG_OFF}')
        a.I(f's_addc_u32 {sr(d + 1)}, s17, 0')
        a.I(f's_mov_b32 {sr(d + 2)}, 98304')
        a.I(f's_mov_b32 {sr(d + 3)}, 0x20000')
    def dbg_srd(d):
        a.I(f's_mov_b32 {sr(d)}, s100')
        a.I(f's_mov_b32 {sr(d + 1)}, s101')
        a.I(f's_mov_b32 {sr(d + 2)}, 256')
        a.I(f's_mov_b32 {sr(d + 3)}, 0x20000')
    def oflag_off(d):
        a.I(f's_lshl_b32 {d}, {sr(sBLK)}, 3')
        a.I(f's_add_u32 {d}, {d}, {sr(sB)}')
        a.I(f's_lshl_b32 {d}, {d}, 4')
        a.I(f's_add_u32 {d}, {d}, {sr(sHP)}')
        a.I(f's_lshl_b32 {d}, {d}, 7')
        a.I(f's_add_u32 {d}, {d}, 65536')
    def wo_srd():
        a.I(f's_lshl_b32 s3, {sr(sB)}, 4')
        a.I(f's_add_u32 s3, s3, {sr(sHP)}')
        a.I('s_lshl_b32 s3, s3, 16')
        a.I(f's_add_u32 {sr(sX)}, s18, s3')
        a.I(f's_addc_u32 {sr(sX + 1)}, s19, 0')
        a.I(f's_mov_b32 {sr(sX + 2)}, 65536')
    vDW, vDX = 20, 24
    if OPT['lprio']: a.I(f's_setprio {OPT["lprio"]}')
    a.I(f'v_lshl_add_u32 {vr(vDW)}, {vr(t1)}, 13, {vr(t0)}')
    for tq in range(1, 4): a.I(f'v_add_u32 {vr(vDW + tq)}, {tq * (32768 - 1024)}, {vr(vDW)}')
    a.I(f's_lshr_b32 {sr(sST)}, s2, {OPT["offsh"]}')
    a.I(f's_and_b32 {sr(sST)}, {sr(sST)}, {OPT["offm"]}')
    a.I(f's_add_u32 {sr(sOX)}, {sr(sST)}, {sr(sROT)}')
    a.I(f's_and_b32 {sr(sOX)}, {sr(sOX)}, {OPT["rot1"]}')
    a.I(f's_lshl_b32 {sr(sOW)}, {sr(sOX)}, 19')
    a.I(f's_lshl_b32 s3, {sr(sHP)}, 9')
    a.I(f's_sub_u32 {sr(sW + 2)}, 8388608, s3')
    a.I(f's_mov_b32 {sr(sW + 3)}, 0x20000')
    a.I(f's_mov_b32 m0, {sr(sM0W)}')
    a.I('s_waitcnt lgkmcnt(0)')
    a.I(f's_add_u32 {sr(sW)}, s14, s3')
    a.I(f's_addc_u32 {sr(sW + 1)}, s15, 0')
    def wloads(hq):
        if OPT['whalf']:
            for tq in range(4): a.I(f'buffer_load_dwordx4 {vr(vDW + tq)}, {sr(sW, 4)}, {sr(sOW)} offen offset:{tq * 1024}{NT("wnt")} lds')
        else:
            for tq in range(4): a.I(f'buffer_load_dwordx4 {vr(vDW + tq)}, {sr(sW, 4)}, {sr(sOW)} offen offset:{tq * 1024 + hq * 256}{NT("wnt")} lds')
    sHA, sHB = 70, 71
    if OPT['whalf']:
        a.I(f's_lshr_b32 s4, {sr(sB)}, 2')
        a.I(f's_mul_i32 {sr(sHA)}, s4, {HB1}')
        a.I(f's_sub_u32 {sr(sHB)}, {HB1}, {sr(sHA)}')
        a.I(f's_add_u32 {sr(sHA)}, {sr(sHA)}, {sr(sM0W)}')
        a.I(f's_add_u32 {sr(sHB)}, {sr(sHB)}, {sr(sM0W)}')
        a.I(f's_lshl_b32 {sr(sKPo)}, s4, 8')
        a.I(f's_mov_b32 m0, {sr(sHA)}')
        a.I(f's_or_b32 {sr(sOW)}, {sr(sOW)}, {sr(sKPo)}')
    wloads(0)
    a.I(f's_mul_i32 s3, {sr(sB)}, 294912')
    if not OPT['whalf']:
        a.I(f's_add_u32 m0, {sr(sM0W)}, {HB1 - 256}')
        wloads(1)
    a.I(f's_add_u32 {sr(sX)}, s8, s3')
    a.I(f's_addc_u32 {sr(sX + 1)}, s9, 0')
    a.I(f's_mov_b32 {sr(sX + 2)}, 294912')
    a.I(f's_mov_b32 {sr(sX + 3)}, 0x20000')
    a.I(f'v_and_b32 {vr(t1)}, 2, {vr(g)}')
    a.I(f'v_lshlrev_b32 {vr(t1)}, 1, {vr(t1)}')
    a.I(f'v_xor_b32 {vr(t0)}, {vr(g)}, {vr(t1)}')
    a.I(f'v_and_b32 {vr(t1)}, 7, v0')
    a.I(f'v_xor_b32 {vr(t0)}, {vr(t0)}, {vr(t1)}')
    a.I(f'v_lshlrev_b32 {vr(t0)}, 4, {vr(t0)}')
    a.I(f'v_lshrrev_b32 {vr(t1)}, 3, v0')
    a.I(f'v_lshl_add_u32 {vr(t0)}, {vr(t1)}, 11, {vr(t0)}')
    a.I(f'v_xor_b32 {vr(t1)}, 64, {vr(t0)}')
    a.I(f's_lshl_b32 s3, {sr(sR)}, 16')
    for j in range(4):
        a.I(f'v_add_u32 {vr(vDX + j)}, s3, {vr((t0, t1)[j & 1])}')
        if j < 3: a.I(f's_add_u32 s3, s3, {16384 - 1024}')
    a.I(f's_lshl_b32 s3, {sr(sR)}, 6')
    a.I(f'v_xor_b32 {vr(t0)}, s3, {vr(t0)}')
    a.I(f's_lshl_b32 s3, {sr(sR)}, 14')
    a.I('s_add_u32 s3, s3, 262144')
    a.I(f'v_add_u32 {vr(vDX + 4)}, s3, {vr(t0)}')
    a.I(f's_lshl_b32 {sr(sM0X)}, {sr(sR)}, 10')
    a.I(f's_add_u32 {sr(sM0X)}, {sr(sM0X)}, {XB + 16384}')
    a.I(f's_add_u32 {sr(sST)}, {sr(sST)}, 1')
    a.I(f's_mov_b32 {sr(sSLW)}, 0')
    a.I(f's_mov_b32 {sr(sSLX)}, 0')
    def stage_w():
        R = OPT['rot1']
        a.many([f's_add_u32 {sr(sOX)}, {sr(sST)}, {sr(sROT)}',
                f's_and_b32 {sr(sOX)}, {sr(sOX)}, {R}',
                f's_and_b32 {sr(sOW)}, {sr(sST)}, {15 & ~R}',
                f's_or_b32 {sr(sOX)}, {sr(sOX)}, {sr(sOW)}',
                f's_add_u32 m0, {sr(sHA if OPT["whalf"] else sM0W)}, {sr(sSLW)}',
                f's_lshl_b32 {sr(sOW)}, {sr(sOX)}, 19',
                f's_add_u32 {sr(sST)}, {sr(sST)}, 1'])
        if OPT['whalf']: a.I(f's_or_b32 {sr(sOW)}, {sr(sOW)}, {sr(sKPo)}')
        wloads(0)
        if not OPT['whalf']:
            a.I(f's_add_u32 m0, m0, {HB1 - 256}')
            wloads(1)
    def stage_x():
        lb = a.newlabel('k1_skipx')
        a.I(f's_add_u32 {sr(sT0)}, {sr(sM0W)}, {sr(sSLX)}')
        a.I(f's_add_u32 m0, {sr(sT0)}, {XB}')
        a.I(f's_lshl_b32 {sr(sOX)}, {sr(sOX)}, 7')
        for j in range(4): a.I(f'buffer_load_dwordx4 {vr(vDX + j)}, {sr(sX, 4)}, {sr(sOX)} offen offset:{j * 1024}{NT("xnt")} lds')
        a.I(f's_add_u32 m0, {sr(sM0X)}, {sr(sSLX)}')
        a.I(f's_cmp_ge_u32 {sr(sR)}, 2')
        a.I(f's_cbranch_scc1 {lb}')
        a.I(f'buffer_load_dwordx4 {vr(vDX + 4)}, {sr(sX, 4)}, {sr(sOX)} offen{NT("xnt")} lds')
        a.label(lb)
        if OPT['whalf']:
            a.I(f's_add_u32 m0, {sr(sHB)}, {sr(sSLW)}')
            a.I(f's_xor_b32 {sr(sOW)}, {sr(sOW)}, 256')
            wloads(1)
        a.I(f's_add_u32 {sr(sSLW)}, {sr(sSLW)}, 16384')
        a.I(f's_add_u32 {sr(sSLX)}, {sr(sSLX)}, 18432')
        a.I(f's_cmp_eq_u32 {sr(sSLW)}, 49152')
        a.I(f's_cselect_b32 {sr(sSLW)}, 0, {sr(sSLW)}')
        a.I(f's_cselect_b32 {sr(sSLX)}, 0, {sr(sSLX)}')
    stage_x()
    rest_setup()
    if OPT['pre1']:
        stage_w()
        a.I(f's_waitcnt vmcnt({4 if OPT["whalf"] else 8})')
        a.I('s_barrier')
        stage_x()
    else:
        a.I('s_waitcnt vmcnt(0)')
        a.I('s_barrier')
        stage_w(); stage_x()
    st0 = st.n
    st.cyc()
    stage_w(); stage_x()
    a.I(f's_cmp_lg_u32 {sr(sR)}, 0')
    a.I('s_cbranch_scc1 k1_noreset')
    flag_srd(sO)
    oflag_off('s4')
    a.I('s_lshl_b32 s3, s2, 8')
    a.I(f'v_lshlrev_b32 {vr(t0)}, 2, v0')
    a.I(f'v_and_b32 {vr(t2)}, 127, {vr(t0)}')
    a.I(f'v_mov_b32 {vr(t1)}, 0')
    a.I(f'buffer_store_dword {vr(t1)}, {vr(t0)}, {sr(sO, 4)}, s3 offen sc1')
    a.I(f'buffer_store_dword {vr(t1)}, {vr(t2)}, {sr(sO, 4)}, s4 offen sc1')
    a.label('k1_noreset')
    if OPT['kvs'] == 3:
        a.I(f's_mul_i32 s3, s2, 171')
        a.I(f's_lshr_b32 s3, s3, 9')
        a.I(f's_mul_i32 s3, s3, 3')
        a.I(f's_sub_u32 {sr(sNEXT)}, s2, s3')
    else:
        a.I(f's_lshr_b32 s3, s2, 3')
        a.I(f's_and_b32 {sr(sNEXT)}, s3, 1')
    a.I(f's_add_u32 {sr(sNEXT)}, {sr(sNEXT)}, {OPT["kv0"]}')
    assert OPT['kv0'] + 4 * OPT['kvs'] - 1 <= 12
    a.I(f's_mov_b32 {sr(sLOOSE)}, 0')
    a.I(f's_mov_b32 {sr(sKVI)}, 0')
    a.I(f's_mov_b32 {sr(sCNT)}, 0')
    def lbar():
        lb = a.newlabel('k1_loose')
        a.I(f's_cmp_gt_i32 {sr(sLOOSE)}, 0')
        a.I(f's_cbranch_scc1 {lb}')
        a.I('s_waitcnt vmcnt(12)')
        a.label(lb)
        a.I(f's_sub_i32 {sr(sLOOSE)}, {sr(sLOOSE)}, 1')
        a.I('s_waitcnt vmcnt(20)')
        a.I('s_barrier')
        if OPT.get('qst'): st.cyc()
    a.label('k1_lloop')
    lbar()
    stage_w(); stage_x()
    a.I(f's_cmp_lg_u32 {sr(sCNT)}, {sr(sNEXT)}')
    a.I('s_cbranch_scc1 k1_kvdone')
    a.I(f's_add_u32 {sr(sNEXT)}, {sr(sNEXT)}, {OPT["kvs"]}')
    a.I(f's_add_u32 {sr(sKVI)}, {sr(sKVI)}, 1')
    for m, it in enumerate(('K0', 'V0', 'K1', 'V1')):
        a.I(f's_cmp_lg_u32 {sr(sKVI)}, {m + 1}')
        a.I(f's_cbranch_scc1 k1_kv{m + 1}')
        a.I(f's_mov_b32 {sr(sLOOSE)}, 2')
        for hq in range(2):
            a.I(f's_mov_b32 {sr(sT0)}, {int(it[1]) * 16384 + hq * 131072}')
            for j in range(4):
                a.I(f'buffer_load_dwordx4 {vr(kvreg[it] + 16 * hq + 4 * j, 4)}, {vr(vD)}, {sr(sK if it[0] == "K" else sV, 4)}, {sr(sT0)} offen offset:{j * 1024}{NT("kvnt")}')
        if m < 3: a.I('s_branch k1_kvdone')
        a.label(f'k1_kv{m + 1}')
    a.label('k1_kvdone')
    a.I(f's_add_u32 {sr(sCNT)}, {sr(sCNT)}, 1')
    a.I(f's_cmp_lt_u32 {sr(sCNT)}, 13')
    a.I('s_cbranch_scc1 k1_lloop')
    a.I(f's_add_u32 s3, {sr(sM0W)}, 16384')
    a.I(f'v_lshl_add_u32 {vr(tA)}, v0, 4, s3')
    a.I(f'v_add_u32 {vr(tB)}, {81920 + 32768}, {vr(tA)}')
    a.I(f'v_add_u32 {vr(mx)}, {81920 - 16384}, {vr(tA)}')
    def kvwrite(it, off, b1=tB, off1=None):
        for hq in range(2):
            o = off if (hq == 0 or off1 is None) else off1
            for j in range(4): a.I(f'ds_write_b128 {vr((tA, b1)[hq])}, {vr(kvreg[it] + 16 * hq + 4 * j, 4)} offset:{o + j * 1024}')
    lbar()
    npf = 0
    a.I(f'v_lshlrev_b32 {vr(t1)}, 4, v0')
    if OPT['cpf']:
        a.I(f's_getpc_b64 {sr(sO, 2)}')
        a.label('k1_pc')
        a.I(f's_mov_b32 {sr(sO + 2)}, k1_end-k1_pc')
        a.I(f's_mov_b32 {sr(sO + 3)}, 0x20000')
        a.I(f's_lshr_b32 s3, {sr(sHP)}, 2')
        a.I('s_lshl_b32 s3, s3, 2')
        a.I(f's_add_u32 s3, s3, {sr(sR)}')
        a.I('s_lshl_b32 s3, s3, 11')
        for k in range(2):
            a.I(f'buffer_load_dwordx4 v[228:231], {vr(t1)}, {sr(sO, 4)}, s3 offen offset:{k * 1024} ; NOCHECK')
            npf += 1
    if OPT['wopf'] == 3:
        wo_srd()
        a.I(f's_lshl_b32 {sr(sT0)}, {sr(sR)}, 14')
        for k in range(OPT['nwo']):
            a.I(f'buffer_load_dwordx4 v[224:227], {vr(t1)}, {sr(sX, 4)}, {sr(sT0)} offen offset:{(k & 3) * 1024} ; NOCHECK')
            if k & 3 == 3: a.I(f's_add_u32 {sr(sT0)}, {sr(sT0)}, 4096')
            npf += 1
            if k == 7: kvwrite('K0', 0); a.I(f's_waitcnt vmcnt({npf})'); a.I('s_barrier')
    else:
        kvwrite('K0', 0)
        a.I(f's_waitcnt vmcnt({npf})')
        a.I('s_barrier')
    kvwrite('V0', 16384)
    a.I('s_barrier')
    a.I('s_waitcnt vmcnt(0)')
    a.I(f's_cmp_lg_u32 {sr(sR)}, 0')
    a.I('s_cbranch_scc1 k1_nocount')
    dbg_srd(sO)
    a.I(f'v_mov_b32 {vr(t1)}, 0')
    a.I(f'v_mov_b32 {vr(t2)}, 1')
    a.I('s_mov_b64 exec, 1')
    a.I(f'buffer_atomic_add {vr(t2)}, {vr(t1)}, {sr(sO, 4)}, 0 offen sc1')
    a.I('s_mov_b64 exec, -1')
    a.label('k1_nocount')
    if OPT['lprio']: a.I('s_setprio 0')
    st.cyc()
    a.I('s_branch k1_join')

    a.label('k1_comp')
    a.lg = []
    st.n = st0
    vWp, vX, vQW = 1, 5, 8
    tr_pattern(vWp)
    a.I(f's_lshr_b32 s3, {sr(sR)}, 1')
    a.I(f's_mul_i32 s4, s3, {HB1}')
    a.I(f's_and_b32 s5, {sr(sR)}, 1')
    a.I('s_lshl_b32 s6, s5, 9')
    a.I('s_add_u32 s4, s4, s6')
    a.I(f'v_add_u32 {vr(vWp)}, s4, {vr(vWp)}')
    for j in range(1, 4): a.I(f'v_xor_b32 {vr(vWp + j)}, {32 * j}, {vr(vWp)}')
    a.I(f'v_and_b32 {vr(n)}, 15, v0')
    a.I(f'v_lshrrev_b32 {vr(t0)}, 1, {vr(n)}')
    a.I(f'v_and_b32 {vr(t1)}, 2, {vr(t0)}')
    a.I(f'v_lshlrev_b32 {vr(t1)}, 1, {vr(t1)}')
    a.I(f'v_xor_b32 {vr(t0)}, {vr(t0)}, {vr(t1)}')
    a.I(f'v_lshlrev_b32 {vr(t1)}, 1, {vr(g)}')
    a.I(f'v_xor_b32 {vr(t0)}, {vr(t0)}, {vr(t1)}')
    a.I(f'v_lshlrev_b32 {vr(t0)}, 4, {vr(t0)}')
    a.I(f'v_lshl_add_u32 {vr(t0)}, {vr(n)}, 7, {vr(t0)}')
    a.I(f'v_add_u32 {vr(vX)}, {XB}, {vr(t0)}')
    a.I(f'v_xor_b32 {vr(vX + 1)}, 16, {vr(vX)}')
    a.I(f's_mul_i32 s4, s3, 36864')
    a.I('s_lshl_b32 s6, s5, 11')
    a.I('s_add_u32 s4, s4, s6')
    a.I(f's_add_u32 s4, s4, {QB}')
    a.I(f'v_lshl_add_u32 {vr(t0)}, {vr(n)}, 4, s4')
    a.I(f'v_lshrrev_b32 {vr(t1)}, 1, {vr(g)}')
    a.I(f'v_lshl_add_u32 {vr(t0)}, {vr(t1)}, 8, {vr(t0)}')
    a.I(f'v_and_b32 {vr(t1)}, 1, {vr(g)}')
    a.I(f'v_lshl_add_u32 {vr(vQW)}, {vr(t1)}, 3, {vr(t0)}')
    a.I('s_waitcnt lgkmcnt(0)')
    rest_setup()
    cval = fbits(128 ** -0.5 * math.log2(math.e))
    a.I(f's_mov_b32 {sr(sC)}, {cval}')
    a.I(f's_mov_b32 {sr(sC + 1)}, {cval}')
    for i in range(0, 144, 2): a.I(f'v_mov_b64 {vr(ACC + i, 2)}, 0')
    def xread(t, slot, ks): return f'ds_read_b128 {vr(XF + 4 * t, 4)}, {vr(vX + ks)} offset:{slot * 18432 + t * 2048}'
    def wreads(W, slot, ks):
        return [f'ds_read_b64_tr_b16 {vr(W + 4 * j + 2 * h, 2)}, {vr(vWp + j)} offset:{slot * 16384 + ks * 2048 + h * 1024}' for j in range(4) for h in range(2)]
    GT = OPT['gate']
    def kstep(Wc, Wn, nslot, nks, gated, last=False):
        wr = wreads(Wn, nslot, nks) if not last else []
        conv = []
        for t in range(9):
            for j in range(4):
                a.I(f'{MF} {vr(acc(t, j), 4)}, {vr(Wc + 4 * j, 4)}, {vr(XF + 4 * t, 4)}, {vr(acc(t, j), 4)}')
                if t >= (GT if gated else 0) and j in (0, 2) and wr: a.I(wr.pop(0))
                for _ in range(5):
                    if conv: a.I(conv.pop(0))
            if gated and t == GT - 1:
                a.I('s_waitcnt lgkmcnt(0)')
                a.I('s_barrier')
                if not last:
                    for tt in range(GT): a.I(xread(tt, nslot, nks))
            elif not last and (not gated or t >= GT): a.I(xread(t, nslot, nks))
            if last and t >= GT - 1:
                lo = 0 if t == GT - 1 else t - 1
                for tc in range(lo, t): conv += convert(tc)
        if last:
            a.many(conv); a.many(convert(8))
        assert not wr
    def convert(t):
        r = []
        for j in range(4): r += [f'v_pk_mul_f32 {vr(acc(t, j) + 2 * k, 2)}, {vr(acc(t, j) + 2 * k, 2)}, {sr(sC, 2)}' for k in range(2)]
        for j in range(4): r += [f'v_cvt_pk_bf16_f32 {vr(acc(t, j) + k)}, {vr(acc(t, j) + 2 * k)}, {vr(acc(t, j) + 2 * k + 1)}' for k in range(2)]
        for j in range(4): r += [f'ds_write_b64 {vr(vQW)}, {vr(acc(t, j), 2)} offset:{t * 4096 + (j >> 1) * 1024 + (j & 1) * 512}']
        return r
    W0, W1 = WF, WF + 16
    if OPT['cprio']: a.I(f's_setprio {OPT["cprio"]}')
    a.I('s_barrier')
    st.cyc()
    a.many(wreads(W0, 0, 0))
    for t in range(9): a.I(xread(t, 0, 0))
    a.I(f's_mov_b32 {sr(sCNT)}, 0')
    a.I('s_waitcnt lgkmcnt(0)')
    class _Dry(Asm): pass
    save = (a.ins, a.lg); a.ins = []; a.lg = []
    kstep(W1, W0, 0, 0, True); lg0 = [set(x) for x in a.lg]
    a.ins, a.lg = save
    a.lg = [set(x) for x in lg0]
    a.label('k1_qloop')
    for i in range(3):
        kstep(W0, W1, i, 1, False)
        kstep(W1, W0, (i + 1) % 3, 0, True)
    assert [set(x) for x in a.lg] == lg0
    a.I(f's_add_u32 {sr(sCNT)}, {sr(sCNT)}, 1')
    a.I(f's_cmp_lt_u32 {sr(sCNT)}, 5')
    a.I('s_cbranch_scc1 k1_qloop')
    kstep(W0, W1, 0, 1, False)
    kstep(W1, W0, 0, 0, True, last=True)
    if OPT['cprio']: a.I('s_setprio 0')
    st.cyc()

    a.label('k1_join')
    if OPT.get('qst'): st.on = False
    a.lg = [set()]
    a.I(f's_lshl_b32 {sr(sKP)}, {sr(sHH)}, 15')
    a.I(f's_add_u32 {sr(sKP)}, {sr(sKP)}, 16384')
    a.I(f's_add_u32 {sr(sVP)}, {sr(sKP)}, 16384')
    a.I(f's_and_b32 s3, {sr(sR)}, 1')
    a.I('s_lshl_b32 s3, s3, 11')
    a.I(f's_lshl_b32 {sr(sJ)}, s3, 1')
    a.I(f's_sub_u32 {sr(sJ)}, 2048, {sr(sJ)}')
    a.I(f's_mul_i32 s5, {sr(sHH)}, 81920')
    a.I('s_add_u32 s5, s5, s3')
    a.I(f's_add_u32 s4, s5, {sr(sVP)}')
    a.I(f's_add_u32 s5, s5, {sr(sKP)}')
    a.I(f's_mul_i32 s3, {sr(sHH)}, 36864')
    a.I(f's_add_u32 s3, s3, {QB}')
    a.I(f'v_lshl_add_u32 {vr(t3)}, v0, 4, s3')
    a.I(f's_lshl_b32 s3, {sr(sR)}, 13')
    a.I(f'v_add_u32 {vr(t2)}, s3, {vr(t3)}')
    a.I('s_waitcnt lgkmcnt(0)')
    a.I('s_barrier')
    for T in range(2):
        for k in range(4): a.I(f'ds_read_b128 {vr(q_(T, k), 4)}, {vr(t2)} offset:{T * 4096 + k * 1024}')
    for k in range(4): a.I(f'ds_read_b128 {vr(q_(2, k), 4)}, {vr(t3)} offset:{32768 + k * 1024}')
    tr_pattern(vVa)
    a.I(f'v_add_u32 {vr(vVa)}, s4, {vr(vVa)}')
    for j in range(1, 4): a.I(f'v_xor_b32 {vr(vVa + j)}, {32 * j}, {vr(vVa)}')
    a.I(f'v_bfe_u32 {vr(n)}, v0, 2, 2')
    hfun(t0, n, t1)
    a.I(f'v_xor_b32 {vr(t0)}, {vr(t0)}, {vr(g)}')
    a.I(f'v_lshlrev_b32 {vr(t0)}, 4, {vr(t0)}')
    a.I(f'v_lshl_add_u32 {vr(t0)}, {vr(n)}, 12, {vr(t0)}')
    a.I(f'v_and_b32 {vr(t1)}, 3, v0')
    a.I(f'v_lshl_add_u32 {vr(t0)}, {vr(t1)}, 7, {vr(t0)}')
    a.I(f'v_bfe_u32 {vr(t1)}, v0, 1, 1')
    a.I(f'v_lshl_add_u32 {vr(t0)}, {vr(t1)}, 6, {vr(t0)}')
    a.I(f'v_add_u32 {vr(vKa)}, s5, {vr(t0)}')
    a.I(f'v_xor_b32 {vr(vKa + 1)}, 64, {vr(vKa)}')
    for i in range(4): a.I(f'v_mov_b32 {vr(ONES + i)}, 0x3f803f80')
    for i in range(0, 12, 2): a.I(f'v_mov_b64 {vr(NEGM + i, 2)}, 0')
    NEG_BIG = fbits(-3.0e38)
    for s in (sTHR, sTHR8, sCL, sCL8): a.I(f's_mov_b32 {sr(s)}, {NEG_BIG}')
    a.I(f's_lshl_b32 s3, {sr(sHH)}, 17')
    a.I(f'v_add_u32 {vr(vD)}, s3, {vr(vD)}')
    a.I(f's_mov_b32 {sr(sOV)}, 32768')
    a.I(f's_mov_b32 {sr(sOK)}, 32768')
    for i in range(0, 108, 2): a.I(f'v_mov_b64 {vr(O + i, 2)}, 0')
    a.I(f's_lshl_b32 s5, {sr(sHH)}, 15')
    a.I(f's_add_u32 s5, s5, {sr(sM0A)}')
    a.I(f's_mov_b32 {sr(sT1)}, 32768')
    a.I(f's_mov_b32 {sr(sCNT)}, 0')
    a.I(f's_mov_b32 {sr(sRS)}, 0')
    if OPT['wopf'] in (1, 2):
        wo_srd()
        a.I(f's_lshl_b32 {sr(sOX)}, {sr(sWAVE)}, 13')
    a.I('s_waitcnt lgkmcnt(0)')
    a.I('s_barrier')
    a.lg = []
    def dma_ins(kind):
        srd, so = (sK, sOK) if kind == 'K' else (sV, sOV)
        r = [[f'buffer_load_dwordx4 {vr(vD)}, {sr(srd, 4)}, {sr(so)} offen offset:{j * 1024}{APOL(kind, j)} lds'] for j in range(4)]
        r[3].append(f's_add_u32 {sr(so)}, {sr(so)}, 16384')
        return r
    def dma_grp(kind, m0):
        r = dma_ins(kind); r[0] = [m0, 's_nop 0'] + r[0]
        return r
    if OPT['pp']:
        a.I('s_mov_b32 m0, s5')
        a.I('s_mov_b32 s3, 49152')
        for j in range(4): a.I(f'buffer_load_dwordx4 {vr(vD)}, {sr(sK, 4)}, s3 offen offset:{j * 1024}{NT("pfp")} lds')
    for x in dma_grp('K', 's_mov_b32 m0, s5'): a.many(x)
    a.I(f's_cmp_eq_u32 {sr(sHH)}, 0')
    a.I('s_cbranch_scc1 k1_nowr')
    kvwrite('K1', 32768, mx, 0); kvwrite('V1', 49152, mx, 16384)
    a.label('k1_nowr')
    a.lg = []
    LA, SY = 6, OPT['sy']
    def rd(kind, jl, f):
        if kind == 'K':
            return [f'ds_read_b128 {vr(POOL + 4 * f, 4)}, {vr(vKa + (f & 1))} offset:{(f >> 2) * 1024 + ((f >> 1) & 1) * 512}']
        return [f'ds_read_b64_tr_b16 {vr(POOL + 4 * f + 2 * h, 2)}, {vr(vVa + (f & 3))} offset:{h * 1024 + (f >> 2) * 512}' for h in range(2)]
    def rd_upd(kind, jl, f):
        r = rd(kind, jl, f)
        if kind == 'K' and f >= 6: r.append(f'v_add_u32 {vr(vKa + (f & 1))}, {sr(sDK if jl else sJ)}, {vr(vKa + (f & 1))}')
        if kind == 'V' and f >= 6:
            for x in (f - 2, f): r.append(f'v_add_u32 {vr(vVa + (x & 3))}, {sr(sDV if jl else sJ)}, {vr(vVa + (x & 3))}')
        return r
    for f in range(LA): a.many(rd('K', 0, f))
    lgK = [set(x) for x in a.lg]
    lgV = [set(Insn(x).wr) for f in range(LA) for x in rd('V', 0, f)]
    st.cyc()
    a.I(f's_lshr_b32 s3, {sr(sR)}, 1')
    a.I(f's_xor_b32 s3, s3, {sr(sHH)}')
    a.I('s_cmp_eq_u32 s3, 1')
    a.I('s_cbranch_scc1 k1_proL')

    def maxops(jl, heavy):
        def chain(vs, dst, extra=None):
            o = [f'v_max3_f32 {vr(dst)}, {vr(vs[0])}, {vr(vs[1])}, {vr(vs[2])}']
            for k in range(3, len(vs) - 1, 2): o.append(f'v_max3_f32 {vr(dst)}, {vr(dst)}, {vr(vs[k])}, {vr(vs[k + 1])}')
            o.append(f'v_max_f32 {vr(dst)}, {vr(dst)}, {vr(vs[-1])}' if extra is None else f'v_max3_f32 {vr(dst)}, {vr(dst)}, {vr(vs[-1])}, {vr(extra)}')
            return o
        c1 = chain([s_(0, jl) + k for k in range(8)], tB)
        c0 = chain([s_(1, jl) + k for k in range(8)], mx, tB)
        c8 = chain([s_(2, 0) + k for k in range(8)], mx8) if heavy else []
        ops = []
        for k in range(4):
            ops += [c1[k]] + ([c8[k]] if heavy else []) + [c0[k]]
        return ops
    def expops(jl, heavy):
        ops = []
        Tl = (0, 1, 2) if heavy else (0, 1)
        for k in range(8):
            for T in Tl: ops.append(f'v_exp_f32 {vr(s_(T, jl) + k)}, {vr(s_(T, jl) + k)}')
            if k >= 2 and k % 2 == 0:
                for T in Tl: ops.append(f'v_cvt_pk_bf16_f32 {vr(s_(T, jl) + k // 2 - 1)}, {vr(s_(T, jl) + k - 2)}, {vr(s_(T, jl) + k - 1)}')
        for T in Tl: ops.append(f'v_cvt_pk_bf16_f32 {vr(s_(T, jl) + 3)}, {vr(s_(T, jl) + 6)}, {vr(s_(T, jl) + 7)}')
        return ops
    stubs = []
    def check(jl, heavy):
        for (thr, m, fn) in ((sTHR, mx, f'k1_rare{jl}'),) + (((sTHR8, mx8, 'k1_rare8'),) if heavy else ()):
            lb = a.newlabel('k1_ok')
            a.I(f'v_cmp_lt_f32 vcc, {sr(thr)}, {vr(m)}')
            a.I(f's_cbranch_vccnz {lb}_s')
            a.label(lb)
            stubs.append((lb, fn))
    def mfmas(kind, jl, heavy, f):
        Tl = (0, 1, 2) if heavy else (0, 1)
        P = vr(POOL + 4 * f, 4)
        if kind == 'K':
            tt, ks = f >> 2, f & 3
            return [f'{MF} {vr(s_(T, jl, tt), 4)}, {P}, {vr(q_(T, ks), 4)}, {vr(negm(T) if ks == 0 else s_(T, jl, tt), 4)}' for T in Tl]
        r = [f'{MF} {vr(o_(T, f), 4)}, {P}, {vr(s_(T, jl), 4)}, {vr(o_(T, f), 4)}' for T in Tl]
        if f == 7: r += [f'{MF} {vr(o_(T, 8), 4)}, {vr(ONES, 4)}, {vr(s_(T, jl), 4)}, {vr(o_(T, 8), 4)}' for T in Tl]
        return r
    def ring_step(doK, doV):
        r = []
        for (P, Po, D, on) in ((sKP, sKPo, sDK, doK), (sVP, sVPo, sDV, doV)):
            if not on: continue
            r.append([f's_mov_b32 {sr(Po)}, {sr(P)}',
                      f's_cmp_ge_u32 {sr(P)}, 49152',
                      f's_cselect_b32 {sr(D)}, {-49152 & 0xffffffff:#x}, {sr(sT1)}',
                      f's_add_u32 {sr(P)}, {sr(P)}, {sr(D)}',
                      f's_sub_u32 {sr(D)}, {sr(D)}, {sr(sJ)}'])
        return r
    def cost(x):
        if callable(x): return 8
        return 8 if x.startswith('v_exp') else 4
    def pack(stream, ngaps, reserved):
        for cap_extra in range(0, ngaps + 1):
            big = set((i * ngaps) // cap_extra for i in range(cap_extra)) if cap_extra else set()
            out = [[] for _ in range(ngaps)]; k = 0
            for gi in range(ngaps):
                room = (16 if gi in big else 8) - reserved[gi]
                while k < len(stream) and cost(stream[k]) <= room:
                    out[gi].append(stream[k]); room -= cost(stream[k]); k += 1
            if k == len(stream): break
        else:
            out[-1] += stream[k:]
        if cap_extra == 0 and OPT['spread']:
            h = max([gi for gi in range(ngaps) if any(callable(x) for x in out[gi])] + [-1]) + 1
            rest = [x for gi in range(h, ngaps) for x in out[gi]]
            groups = []; room = 0
            for x in rest:
                if cost(x) > room: groups.append([]); room = 8
                groups[-1].append(x); room -= cost(x)
            free = [gi for gi in range(h, ngaps) if reserved[gi] == 0]
            if len(groups) <= len(free):
                for gi in range(h, ngaps): out[gi] = []
                for i, gp in enumerate(groups): out[free[(i * len(free)) // len(groups)]] = gp
        return out
    def block(segs, streams, mode, aux0, nvm, auxat=None):
        uses = [(si, f) for si in range(len(segs)) for f in range(8)]
        nU = len(uses)
        gaps = []
        for k, (si, f) in enumerate(uses):
            for n_ in range(len(mfmas(segs[si][0], segs[si][1], segs[si][2], f))): gaps.append((k, n_))
        aux = {gp: [] for gp in gaps}; pre = {gp: [] for gp in gaps}
        for k in range(nU - LA):
            s2, f2 = uses[k + LA]
            rr = rd_upd(segs[s2][0], segs[s2][1], f2)
            for i, x in enumerate([x for x in rr if x.startswith('ds_')]): aux[(k, i)].append(x)
            pre[(k + 1, 0)] += [x for x in rr if x.startswith('v_')]
        if mode != 'fin':
            post = [gp for gp in gaps if gp[0] > nU - 8 + SY]
            q = [(f, x) for f in range(LA) for x in rd('V', 0, f)]
            early = [x for f, x in q if f < OPT['nimm']]; q = [(f, x) for f, x in q if f >= OPT['nimm']]
            per = -(-len(q) // len(post))
            for gp in post:
                for _ in range(per):
                    fdone = gp[0] - (nU - 8) - (0 if gp[1] == 1 else 1)
                    if q and q[0][0] <= fdone: aux[gp].append(q.pop(0)[1])
            assert not q, q
        gsel = gaps[OPT['aux0']::OPT['auxs']] if auxat is None else [gp for gp in gaps if gp[0] >= auxat]
        assert len(aux0) <= len(gsel)
        for gp, x in zip(gsel, aux0): aux[gp].append(x)
        fill = {}
        for (sa, sb, skip, ops) in streams:
            gl = [gp for gp in gaps if sa <= uses[gp[0]][0] <= sb]
            gl = gl[skip:len(gl) - OPT['tail']]
            for gp, ol in zip(gl, pack(ops, len(gl), [4 * len(pre[gp]) for gp in gl])):
                fill[gp] = ol
                assert not (any(callable(x) for x in ol) and uses[gp[0]][0] != sa)
        def emit(x):
            if callable(x): x()
            elif isinstance(x, list):
                for y in x: emit(y)
            else: a.I(x)
        for k, (si, f) in enumerate(uses):
            kind, jl, heavy, after = segs[si]
            if f == 0 and OPT['aprio'] and si: a.I(f's_setprio {len(segs) - 1 - si}')
            for n_, m in enumerate(mfmas(kind, jl, heavy, f)):
                a.I(m)
                emit(pre[(k, n_)]); emit(fill.get((k, n_), [])); emit(aux[(k, n_)])
            if OPT['stamp'] == 3 and mode == 'loop' and f == 7 and si < 3: a.raw(f's_memtime {sr(90 + 2 * si, 2)}')
            if mode != 'fin' and k == nU - 8 + SY:
                if OPT['stamp'] == 3 and mode == 'loop':
                    a.raw('s_mov_b32 s88, s98')
                    a.raw('s_memtime s[96:97]')
                a.I(f's_waitcnt vmcnt({nvm}) lgkmcnt(0)')
                a.I('s_barrier')
                if OPT['aprio']: a.I('s_setprio 3')
                st.sh()
                if OPT['stamp'] == 3 and mode == 'loop': a.raw('s_memtime s[98:99]')
                a.many(early)
            if f == 7 and after: after()
        if mode != 'fin': assert [set(x) for x in a.lg] == lgV, (a.lg, lgV)
    def resc():
        lb = a.newlabel('k1_nors')
        a.I(f's_cmp_lg_u32 {sr(sRS)}, 0')
        a.I(f's_cbranch_scc1 {lb}_s')
        a.label(lb)
        stubs.append((lb, 'k1_rescale'))
    def sm(jl, heavy): return maxops(jl, heavy) + [lambda: check(jl, heavy)] + expops(jl, heavy)
    OFFM0 = 0x30000
    def warm(kind, so):
        return [[f'buffer_load_dwordx4 {vr(vD)}, {sr(sK if kind == "K" else sV, 4)}, {so} offen offset:{j * 1024}{NT("pfp")} lds'] for j in range(4)]
    def prologue(h0):
        a.lg = [set(x) for x in lgK]
        ax = ring_step(True, False)
        block([('K', 0, h0, lambda: (a.many(maxops(0, h0)), check(0, h0))), ('K', 1, False, None)],
              [(1, 1, 0, expops(0, h0))], 'pro', ax, 63)
    def body_aux():
        r = [[f's_add_u32 {sr(sMK)}, {sr(sM0A)}, {sr(sVPo)}',
              f's_add_u32 {sr(sMV)}, {sr(sM0A)}, {sr(sKPo)}',
              f's_cmp_ge_u32 {sr(sCNT)}, 6',
              f's_cselect_b32 {sr(sMV)}, {OFFM0}, {sr(sMV)}',
              f's_cselect_b32 {sr(sOV)}, 0x1000000, {sr(sOV)}',
              f's_sub_u32 s3, {sr(sCNT)}, 1',
              f's_cmp_ge_u32 s3, 5',
              f's_cselect_b32 m0, {OFFM0}, {sr(sMK)}',
              f's_cselect_b32 s3, 0x1000000, {sr(sOK)}',
              f's_cselect_b32 s4, 0, 16384']]
        r += ring_step(True, True)
        for j in range(4): r.append([f'buffer_load_dwordx4 {vr(vD)}, {sr(sK, 4)}, s3 offen offset:{j * 1024}{APOL("K", j)} lds'])
        r[-1] += [f's_add_u32 {sr(sOK)}, {sr(sOK)}, s4', f's_mov_b32 m0, {sr(sMV)}']
        nv = 4
        if OPT['mk']:
            w = warm('K', 's3')
            w[0] = [f's_mov_b32 s4, {OPT["mk"]}', f's_bitcmp1_b32 s4, {sr(sCNT)}', f's_cselect_b32 s3, {sr(sOK)}, 0x1000000'] + w[0]
            r += w; nv += 4
        if OPT['mv']:
            w = warm('V', 's3')
            w[0] = [f's_add_u32 s3, {sr(sOV)}, 16384', f's_mov_b32 s4, {OPT["mv"]}', f's_bitcmp1_b32 s4, {sr(sCNT)}', f's_cselect_b32 s3, s3, 0x1000000'] + w[0]
            r += w; nv += 4
        r += dma_ins('V')
        return r, nv
    def body(hc, tag, exit_to):
        a.lg = [set(x) for x in lgV]
        hn = not hc
        ax, nvm = body_aux()
        block([('V', 0, hc, resc), ('K', 0, hn, None), ('V', 1, False, resc), ('K', 1, False, None)],
              [(0, 1, 1, sm(1, False)), (2, 3, 1, sm(0, hn))], 'loop', ax, nvm)
        a.I(f's_add_u32 {sr(sCNT)}, {sr(sCNT)}, 1')
        a.I(f's_cmp_eq_u32 {sr(sCNT)}, 7')
        a.I(f's_cbranch_scc1 {exit_to}')
    K = K2(a)
    def final(hc):
        a.lg = [set(x) for x in lgV]
        lb = a.newlabel('k1_early')
        a.I(f's_cmp_eq_u32 {sr(sHH)}, 1')
        a.I(f's_cbranch_scc1 {lb}_s')
        a.label(lb)
        stubs.append((lb, 'k1_early'))
        NM8 = negm(2)
        ax = [[f's_lshl_b32 s5, {sr(sHH)}, 15', 's_add_u32 s5, s5, 81920', f's_lshl_b32 s13, {sr(sHH)}, 14',
               f's_lshl_b32 s4, {sr(sR)}, 11', 's_add_u32 s3, s4, s5', 'v_lshl_add_u32 v1, v0, 4, s3'],
              ['v_add_u32 v2, s13, v1', f's_lshl_b32 s3, {sr(sWAVE)}, 9', f'v_lshl_add_u32 {vr(vD)}, v0, 3, s3'],
              [], [f'v_mov_b32 {vr(NM8 + 1)}, {vr(o_(2, 8))}']]
        ax += [[f'ds_write_b128 {"v1" if d < 4 else "v2"}, {vr(o_(2, d), 4)} offset:{(d >> 1) * 8192 + (d & 1) * 1024}'] for d in range(8)]
        ax += [[f'ds_write_b64 {vr(vD)}, {vr(NM8, 2)}']]
        block([('V', 0, hc, resc), ('V', 1, False, None)], [(0, 0, 1, sm(1, False))], 'fin', ax, 0, auxat=8)
        if OPT['aprio']: a.I('s_setprio 0')
    prologue(True)
    a.label('k1_X')
    body(True, 'x', 'k1_finL')
    a.label('k1_Y')
    body(False, 'y', 'k1_finH')
    a.I('s_branch k1_X')
    a.label('k1_proL')
    prologue(False)
    a.I('s_branch k1_Y')

    a.auto = False
    def xg_reduce(x, tmp, op):
        a.I(f'v_mov_b32 {vr(tmp)}, {vr(x)}')
        a.I(f'v_permlane32_swap_b32 {vr(x)}, {vr(tmp)}')
        a.I(f'{op} {vr(x)}, {vr(x)}, {vr(tmp)}')
        a.I(f'v_mov_b32 {vr(tmp)}, {vr(x)}')
        a.I(f'v_permlane16_swap_b32 {vr(x)}, {vr(tmp)}')
        a.I(f'{op} {vr(x)}, {vr(x)}, {vr(tmp)}')
    FREG = {0: mx, 1: tA, 2: mx8}
    def rare(T, vals, scl, canfirst):
        m, tmp = tB, FREG[T]
        a.I(f'v_max3_f32 {vr(m)}, {vr(vals[0])}, {vr(vals[1])}, {vr(vals[2])}')
        for k in range(3, len(vals) - 1, 2): a.I(f'v_max3_f32 {vr(m)}, {vr(m)}, {vr(vals[k])}, {vr(vals[k + 1])}')
        a.I(f'v_max_f32 {vr(m)}, {vr(m)}, {vr(vals[-1])}')
        xg_reduce(m, tmp, 'v_max_f32')
        a.I(f'v_max_f32 {vr(m)}, {sr(scl)}, {vr(m)}')
        for v in vals: a.I(f'v_sub_f32 {vr(v)}, {vr(v)}, {vr(m)}')
        for k in range(4): a.I(f'v_sub_f32 {vr(negm(T) + k)}, {vr(negm(T) + k)}, {vr(m)}')
        lb = a.newlabel('k1_first'); lb2 = a.newlabel('k1_rdone')
        if canfirst:
            a.I(f's_cmp_lg_u32 {sr(scl)}, 0')
            a.I(f's_cbranch_scc1 {lb}')
        a.I(f'v_exp_f32 {vr(tmp)}, -{vr(m)}')
        if T == 2:
            for k in range(36): a.I(f'v_mul_f32 {vr(o_(T, 8) + k)}, {vr(o_(T, 8) + k)}, {vr(tmp)}')
        else:
            a.I(f's_mov_b32 {sr(sRS)}, 1')
        if canfirst: a.label(lb)
    for jl in range(2):
        a.label(f'k1_rare{jl}')
        for T in range(2): rare(T, [s_(T, jl) + k for k in range(8)], sCL, jl == 0)
        a.I(f's_mov_b32 {sr(sTHR)}, {THRV}')
        a.I(f's_mov_b32 {sr(sCL)}, 0')
        a.I(f's_setpc_b64 {sr(sLINK, 2)}')
    a.label('k1_rare8')
    rare(2, [s_(2, 0) + k for k in range(8)], sCL8, True)
    a.I(f's_mov_b32 {sr(sTHR8)}, {THRV}')
    a.I(f's_mov_b32 {sr(sCL8)}, 0')
    a.I(f's_setpc_b64 {sr(sLINK, 2)}')
    a.label('k1_early')
    K.early()
    a.I(f's_setpc_b64 {sr(sLINK, 2)}')
    a.label('k1_rescale')
    for T in range(2):
        for k in range(36): a.I(f'v_mul_f32 {vr(o_(T, 8) + k)}, {vr(o_(T, 8) + k)}, {vr(FREG[T])}')
    a.I(f's_mov_b32 {sr(sRS)}, 0')
    a.I(f's_setpc_b64 {sr(sLINK, 2)}')
    a.auto = True

    a.label('k1_finH')
    final(True)
    a.I('s_branch k1_epi')
    pos = len(a.ins)
    a.label('k1_finL')
    final(False)
    tailcode = a.ins[pos:]; del a.ins[pos:]
    for lb, fn in stubs:
        a.label(lb + '_s')
        a.raw(f's_call_b64 {sr(sLINK, 2)}, {fn}')
        a.raw(f's_branch {lb}')
    a.ins += tailcode
    a.label('k1_epi')
    a.lg = []
    st.cyc()
    e0, e1, e2, e3, e4 = 3, 4, 5, 6, 8
    NM8 = negm(2)
    a.lg = [set()]
    a.I(f'v_lshlrev_b32 {vr(e0)}, 4, v0')
    a.I(f's_lshl_b32 s3, {sr(sHH)}, 11')
    a.I(f'v_lshl_add_u32 {vr(e2)}, v0, 3, s3')
    a.I(f's_lshl_b32 s6, {sr(sR)}, 13')
    a.I('s_add_u32 s6, s6, s5')
    a.I(f's_cmp_ge_u32 {sr(sR)}, 2')
    a.I('s_cselect_b32 s13, s13, 0')
    a.I('s_add_u32 s6, s6, s13')
    a.I(f'v_add_u32 {vr(e1)}, s6, {vr(e0)}')
    R8 = S
    a.I('s_waitcnt lgkmcnt(0)')
    a.I('s_barrier')
    for sl in range(4): a.I(f'ds_read_b64 {vr(R8 + 32 + 2 * sl, 2)}, {vr(e2)} offset:{sl * 512}')
    for k in range(8): a.I(f'ds_read_b128 {vr(R8 + 4 * k, 4)}, {vr(e1)} offset:{k * 1024}')
    dbg_srd(sK)
    a.I('v_mov_b32 v10, 0')
    a.I(f'buffer_load_dword v1, v10, {sr(sK, 4)}, 0 offen sc1')
    a.I('s_load_dwordx2 s[10:11], s[0:1], 80')
    sOO = sV
    a.I(f's_lshl_b32 s3, {sr(sBLK)}, 3')
    a.I(f's_add_u32 s3, s3, {sr(sB)}')
    a.I(f's_mul_i32 s3, s3, {O_SLICE}')
    a.I(f's_mul_i32 s6, {sr(sHP)}, 73728')
    a.I('s_add_u32 s3, s3, s6')
    a.I(f's_add_u32 {sr(sOO)}, s16, s3')
    a.I(f's_addc_u32 {sr(sOO + 1)}, s17, 0')
    a.I(f's_mov_b32 {sr(sOO + 2)}, 73728')
    a.I(f's_mov_b32 {sr(sOO + 3)}, 0x20000')
    a.I(f's_mul_i32 s3, {sr(sHH)}, 36864')
    a.I(f'v_add_u32 {vr(e3)}, s4, {vr(e0)}')
    def fin(src, scale2, voff, soff, imm):
        for k in range(4): a.I(f'v_pk_mul_f32 {vr(src + 2 * k, 2)}, {vr(src + 2 * k, 2)}, {vr(scale2, 2)}')
        for k in range(4): a.I(f'v_cvt_pk_bf16_f32 {vr(src + k)}, {vr(src + 2 * k)}, {vr(src + 2 * k + 1)}')
        a.I(f'buffer_store_dwordx4 {vr(src, 4)}, {vr(voff)}, {sr(sOO, 4)}, {soff} offen offset:{imm}{NT("ont")}')
    for T in range(2):
        for k in range(2): a.I(f'v_rcp_f32 {vr(o_(T, 8) + k)}, {vr(o_(T, 8) + k)}')
    a.I(f's_add_u32 s6, s3, {K.XB}')
    a.I(f'v_add_u32 {vr(e1)}, s6, {vr(e3)}')
    a.I('s_mov_b32 s6, s3')
    def xw(P): return [f'ds_write_b128 {vr(e1)}, {vr(o_(T, 2 * P), 4)} offset:{P * 9216 + T * 1024}' for T in range(2)]
    for P in range(4):
        for T in range(2): fin(o_(T, 2 * P), o_(T, 8), e3, 's6', T * 1024)
        if P < 3: a.I('s_add_u32 s6, s6, 9216')
        if P == OPT['b2at']:
            a.I('s_waitcnt lgkmcnt(0)')
            a.I('s_barrier')
            for Q_ in range(P): a.many(xw(Q_))
        if P >= OPT['b2at']: a.many(xw(P))
    flag_srd(sO)
    K.ids()
    a.I(f's_mul_i32 s6, {sr(sR)}, 9216')
    a.I('s_add_u32 s6, s6, s3')
    a.I(f'v_add_u32 {vr(e3)}, 8192, {vr(e0)}')
    nm = [R8 + 32 + 2 * i for i in range(4)]
    ll = [R8 + 33 + 2 * i for i in range(4)]
    a.I(f'v_min3_f32 {vr(e0)}, {vr(nm[0])}, {vr(nm[1])}, {vr(nm[2])}')
    a.I(f'v_min_f32 {vr(e0)}, {vr(e0)}, {vr(nm[3])}')
    for i in range(4): a.I(f'v_sub_f32 {vr(nm[i])}, {vr(e0)}, {vr(nm[i])}')
    for i in range(4): a.I(f'v_exp_f32 {vr(nm[i])}, {vr(nm[i])}')
    a.I(f'v_mul_f32 {vr(e0)}, {vr(ll[0])}, {vr(nm[0])}')
    for i in range(1, 4): a.I(f'v_fmac_f32 {vr(e0)}, {vr(ll[i])}, {vr(nm[i])}')
    a.I(f'v_rcp_f32 {vr(e4)}, {vr(e0)}')
    a.I(f'v_rcp_f32 {vr(e4 + 1)}, {vr(e0)}')
    for k in range(8): a.I(f'v_mul_f32 {vr(R8 + k)}, {vr(R8 + k)}, {vr(nm[0])}')
    for i in range(1, 4):
        for k in range(8): a.I(f'v_fmac_f32 {vr(R8 + k)}, {vr(R8 + 8 * i + k)}, {vr(nm[i])}')
    fin(R8, e4, e3, 's6', 0)
    a.I(f's_add_u32 s6, s6, {K.XB}')
    a.I(f'v_add_u32 {vr(e3)}, s6, {vr(e3)}')
    a.I(f'ds_write_b128 {vr(e3)}, {vr(R8, 4)}')
    if OPT['stamp'] == 3: st.n = 12
    else: st.cyc(); st.real()
    K.st1 = st
    if OPT.get('qst'): st.on = True
    return K.main()

class K2:
    sO, sW, sD, sE, sF = 20, 24, 28, 32, 36
    sWAVE, sR, sLD, sBLK, sB, sHP, sN8, sKH, sKC = 40, 41, 42, 43, 44, 45, 67, 64, 62
    sM0W, sM0X, sOW, sOX, sSL, sCNT, sT0, sST, sROT, sH, sNH, sKS = 55, 48, 49, 50, 51, 52, 53, 54, 65, 56, 57, 58
    sSTX, sFO, sPC, sHPc = 59, 60, 61, 66
    sRW, sRX, sWB, sXB, sWEX = 68, 72, 54, 59, 8
    sLINK = 8
    vWp, vX, vL16, vFA, vFV, vDW, vDX = 12, 14, 16, 17, 18, 28, 32
    g, t0, t1, t2 = 19, 20, 21, 22
    ACC, XF, WF, TMP = 112, 76, 60, 184
    XB = 81920
    @staticmethod
    def wslot(i): return 16384 + ((i + 1) & 3) * 16384
    def __init__(self, a):
        self.a = a; self.st = Stamper(a, 1)
    def early(self):
        a = self.a; K = self
        sW, sR = K.sW, K.sR
        t0, t1 = 36, 37
        a.I(f's_lshr_b32 s12, {sr(sR)}, 1')
        a.I(f's_xor_b32 {sr(K.sH)}, {sr(sR)}, s12')
        a.I(f's_and_b32 {sr(K.sH)}, {sr(K.sH)}, 1')
        a.I(f's_lshl_b32 {sr(K.sH)}, {sr(K.sH)}, 1')
        a.I(f's_or_b32 {sr(K.sH)}, {sr(K.sH)}, s12')
        a.I(f'v_and_b32 {vr(t0)}, 7, v0')
        a.I(f'v_xor_b32 {vr(t0)}, {sr(K.sH)}, {vr(t0)}')
        a.I(f'v_bfe_u32 {vr(t1)}, v0, 4, 1')
        a.I(f'v_lshlrev_b32 {vr(t1)}, 2, {vr(t1)}')
        a.I(f'v_xor_b32 {vr(t0)}, {vr(t0)}, {vr(t1)}')
        a.I(f'v_lshlrev_b32 {vr(t0)}, 4, {vr(t0)}')
        a.I(f'v_lshrrev_b32 {vr(t1)}, 5, v0')
        a.I(f'v_lshl_add_u32 {vr(t0)}, {vr(t1)}, 7, {vr(t0)}')
        a.I(f'v_bfe_u32 {vr(t1)}, v0, 3, 2')
        a.I(f's_lshl_b32 s12, {sr(sR)}, 2')
        a.I(f'v_add_u32 {vr(t1)}, s12, {vr(t1)}')
        a.I(f'v_lshl_add_u32 {vr(K.vDW)}, {vr(t1)}, 11, {vr(t0)}')
        a.I(f's_lshl_b32 {sr(K.sM0W)}, {sr(sR)}, 12')
        for tq in range(1, 4): a.I(f'v_add_u32 {vr(K.vDW + tq)}, {tq * (32768 - 1024)}, {vr(K.vDW)}')
        a.I(f's_lshl_b32 {sr(K.sWB)}, {sr(K.sHP)}, 19')
        a.I(f's_mov_b64 {sr(K.sWEX, 2)}, -1')
        a.I(f's_lshr_b32 s12, {sr(K.sHP)}, 1')
        a.I(f's_lshl_b32 s12, s12, 8')
        a.I(f's_add_u32 {sr(sW)}, s18, s12')
        a.I(f's_addc_u32 {sr(sW + 1)}, s19, 0')
        a.I(f's_sub_u32 {sr(sW + 2)}, 8388608, s12')
        a.I(f's_mov_b32 {sr(sW + 3)}, 0x20000')
        for i in range(3): K.stw(i, own=True)
    def ids(self):
        a = self.a; K = self
        a.I(f's_and_b32 {sr(K.sKH)}, {sr(K.sHP)}, 1')
        a.I(f's_lshr_b32 {sr(K.sN8)}, {sr(K.sHP)}, 1')
        a.I(f'v_lshlrev_b32 {vr(K.vL16)}, 4, v0')
    def late(self):
        a = self.a; K = self
        sO, sR, sB, sBLK = K.sO, K.sR, K.sB, K.sBLK
        a.I(f's_lshr_b32 s12, {sr(K.sHP)}, 2')
        a.I(f's_add_u32 {sr(K.sROT)}, {sr(sB)}, s12')
        a.I(f'v_add_u32 {vr(K.vDX)}, {sr(K.sM0W)}, {vr(K.vL16)}')
        a.I(f's_lshl_b32 {sr(K.sM0X)}, {sr(sR)}, 10')
        a.I(f's_add_u32 {sr(K.sM0X)}, {sr(K.sM0X)}, 16384')
        a.I(f'v_add_u32 {vr(K.vDX + 1)}, {sr(K.sM0X)}, {vr(K.vL16)}')
        for i in range(4):
            a.I(f's_add_u32 s12, {sr(K.sROT)}, {i}')
            a.I('s_and_b32 s12, s12, 3')
            a.I(f's_lshl_b32 {sr(K.sRW + i)}, s12, 17')
            a.I(f's_mul_i32 {sr(K.sRX + i)}, s12, 18432')
        a.I(f's_mov_b32 {sr(K.sKC)}, -1')
        a.I(f's_lshl_b32 s12, {sr(sBLK)}, 3')
        a.I(f's_add_u32 s12, s12, {sr(sB)}')
        a.I(f's_lshl_b32 {sr(K.sFO)}, s12, 11')
        a.I(f's_add_u32 {sr(K.sFO)}, {sr(K.sFO)}, 65536')
        a.I(f's_mul_i32 s12, s12, {O_SLICE}')
        a.I(f's_add_u32 {sr(sO)}, s16, s12')
        a.I(f's_addc_u32 {sr(sO + 1)}, s17, 0')
        a.I(f's_mov_b32 {sr(sO + 2)}, {O_SLICE}')
        a.I(f's_mov_b32 {sr(sO + 3)}, 0x20000')
        a.I(f'v_and_b32 {vr(K.vFA)}, 15, v0')
        a.I(f'v_lshlrev_b32 {vr(K.vFA)}, 7, {vr(K.vFA)}')
        a.I(f's_lshl_b32 s4, {sr(K.sHP)}, 7')
        a.I(f's_add_u32 s4, s4, {sr(K.sFO)}')
        a.I('v_mov_b32 v11, 1')
        a.I(f'v_mov_b32 {vr(K.vFV)}, 0')
    def stw(self, i, own=False):
        a = self.a; K = self
        a.I(f's_add_u32 m0, {sr(K.sM0W)}, {K.wslot(i)}')
        a.I(f's_add_u32 {sr(K.sOW)}, {sr(K.sWB)}, {i * 131072 if own else sr(K.sRW + i)}')
        a.I(f's_mov_b64 exec, {sr(K.sWEX, 2)}')
        for tq in range(4): a.I(f'buffer_load_dwordx4 {vr(K.vDW + tq)}, {sr(K.sW, 4)}, {sr(K.sOW)} offen offset:{tq * 1024}{NT("wont")} lds')
        a.I('s_mov_b64 exec, -1')
    def stx(self, i):
        a = self.a; K = self
        lb = a.newlabel('k2_skipx')
        a.I(f's_add_u32 m0, {sr(K.sM0W)}, {K.XB + i * 18432}')
        a.I(f's_add_u32 {sr(K.sOX)}, {sr(K.sXB)}, {sr(K.sRX + i)}')
        for j in range(4): a.I(f'buffer_load_dwordx4 {vr(K.vDX)}, {sr(K.sO, 4)}, {sr(K.sOX)} offen offset:{j * 1024}{NT("oldf")} lds')
        a.I(f's_add_u32 m0, {sr(K.sM0X)}, {K.XB + i * 18432}')
        a.I(f's_cmp_ge_u32 {sr(K.sR)}, 2')
        a.I(f's_cbranch_scc1 {lb}')
        a.I(f'buffer_load_dwordx4 {vr(K.vDX + 1)}, {sr(K.sO, 4)}, {sr(K.sOX)} offen{NT("oldf")} lds')
        a.label(lb)
    def ready(self):
        a = self.a; K = self
        l1, l2 = a.newlabel('k2_chk'), a.newlabel('k2_go')
        a.I(f's_mov_b32 {sr(K.sPC)}, 0')
        a.label(l1)
        a.I(f'v_cmp_eq_u32 vcc, 1, {vr(K.vFV)}')
        a.I(f's_bitcmp1_b32 vcc_lo, {sr(K.sHPc)}')
        a.I(f's_cbranch_scc1 {l2} ; TAKEN')
        a.I(K.flagload())
        a.I(f's_add_u32 {sr(K.sPC)}, {sr(K.sPC)}, 1')
        a.I('s_waitcnt vmcnt(0)')
        a.I(f's_cmp_lt_u32 {sr(K.sPC)}, {OPT["pollmax"]}')
        a.I(f's_cbranch_scc1 {l1}')
        a.label(l2)
    def fl1(self, vt):
        n = self.st1.n; self.st1.flush(16, self.sWAVE, self.sW, vt); self.st1.n = n
    def nextseg(self):
        a = self.a; K = self
        a.I(f's_add_u32 {sr(K.sKC)}, {sr(K.sKC)}, 1')
        a.I(f's_cmp_eq_u32 {sr(K.sKC)}, {sr(K.sN8)}')
        a.I(f's_addc_u32 {sr(K.sKC)}, {sr(K.sKC)}, 0')
        a.I(f's_lshl_b32 {sr(K.sHPc)}, {sr(K.sKC)}, 1')
        a.I(f's_add_u32 {sr(K.sHPc)}, {sr(K.sHPc)}, {sr(K.sKH)}')
        a.I(f's_cmp_eq_u32 {sr(K.sN8)}, 7')
        a.I('s_cselect_b32 s12, 5, 7')
        a.I(f's_add_u32 s12, s12, {sr(K.sCNT)}')
        a.I(f's_sub_u32 s13, {sr(K.sKH)}, 1')
        a.I(f's_sub_u32 s14, 0, {sr(K.sKH)}')
        a.I(f's_cmp_ge_u32 {sr(K.sCNT)}, 7')
        a.I(f's_cselect_b32 {sr(K.sHPc)}, s12, {sr(K.sHPc)}')
        a.I(f's_cselect_b32 {sr(K.sWEX)}, s13, -1')
        a.I(f's_cselect_b32 {sr(K.sWEX + 1)}, s14, -1')
        a.I(f's_lshl_b32 {sr(K.sWB)}, {sr(K.sHPc)}, 19')
        a.I(f's_mul_i32 {sr(K.sXB)}, {sr(K.sHPc)}, 73728')
    def flagload(self): return f'buffer_load_dword {vr(self.vFV)}, {vr(self.vFA)}, {sr(self.sF, 4)}, {sr(self.sFO)} offen sc1 ; NOCHECK'
    def main(self):
        a = self.a; st = self.st; K = self
        MF = 'v_mfma_f32_16x16x32_bf16'
        sO, sW, sD, sE, sF, sR, sB, sN8, sKH, sBLK = K.sO, K.sW, K.sD, K.sE, K.sF, K.sR, K.sB, K.sN8, K.sKH, K.sBLK
        sOW, sOX, sSL, sCNT, sT0, sST, sSTX, sPC, sHPc, sNH, sKS = K.sOW, K.sOX, K.sSL, K.sCNT, K.sT0, K.sST, K.sSTX, K.sPC, K.sHPc, K.sNH, K.sKS
        vWp, vX, vDW, vL16, g, t0, t1, t2 = K.vWp, K.vX, K.vDW, K.vL16, K.g, K.t0, K.t1, K.t2
        ACC, XF, WF, TMP, XB = K.ACC, K.XF, K.WF, K.TMP, K.XB
        def acc(t, j): return ACC + (t * 2 + j) * 4
        st.real(); st.cyc()
        a.I(f's_cmp_eq_u32 {sr(K.sLD)}, 0')
        a.I('s_cbranch_scc1 k2_comp')
        if OPT['lprio']: a.I(f's_setprio {OPT["lprio"]}')
        K.stw(3, own=True)
        a.I('s_waitcnt vmcnt(13) lgkmcnt(0)')
        a.I('s_barrier')
        st0 = st.n
        st.cyc()
        K.late()
        a.I(f's_mov_b32 {sr(sCNT)}, 1')
        K.nextseg()
        PB = OPT['pubat']
        for i in range(3):
            if i == PB: a.I(f's_waitcnt vmcnt({4 * PB + 4})')
            if i == 2: a.I('s_waitcnt vmcnt(8)')
            a.I('s_barrier')
            if i == PB:
                a.I(f's_cmp_lg_u32 {sr(sR)}, 0')
                a.I('s_cbranch_scc1 k2_nopub')
                a.I('s_mov_b64 exec, 1')
                a.I(f'buffer_store_dword v11, v10, {sr(sF, 4)}, s4 offen sc1')
                a.I('s_mov_b64 exec, -1')
                a.label('k2_nopub')
            K.stw(i)
        a.I(f's_mov_b32 {sr(sPC)}, 0')
        a.I('s_movk_i32 s3, 0x100')
        a.label('k2_allin')
        a.I('v_cmp_le_u32 vcc, s3, v1')
        a.I('s_cbranch_vccnz k2_allok ; POLL')
        a.I(f'buffer_load_dword v1, v10, {sr(sD, 4)}, 0 offen sc1')
        a.I(f's_add_u32 {sr(sPC)}, {sr(sPC)}, 1')
        a.I('s_waitcnt vmcnt(0)')
        a.I(f's_cmp_lt_u32 {sr(sPC)}, {OPT["pollmax"]}')
        a.I('s_cbranch_scc1 k2_allin')
        a.label('k2_allok')
        K.ready()
        K.stx(0); K.stx(1); K.stx(2)
        a.I('s_waitcnt vmcnt(8)')
        a.I('s_barrier')
        a.I(K.flagload())
        K.stw(3); K.stx(3)
        a.I(f's_mov_b32 {sr(sCNT)}, 2')
        a.I('s_waitcnt vmcnt(12)')
        a.label('k2_lloop')
        K.nextseg()
        for i in range(4):
            a.I('s_waitcnt vmcnt(16)')
            a.I('s_barrier')
            K.stw(i)
            if i == 0: K.ready()
            if i == 1: a.I(K.flagload())
            K.stx(i)
        a.I(f's_add_u32 {sr(sCNT)}, {sr(sCNT)}, 1')
        a.I(f's_cmp_lt_u32 {sr(sCNT)}, 9')
        a.I('s_cbranch_scc1 k2_lloop')
        for nv in (16, 8, 0, 0):
            a.I(f's_waitcnt vmcnt({nv})')
            a.I('s_barrier')
        st.cyc(); st.cyc(); st.cyc(); st.cyc(); st.real()
        st.flush(16, K.sWAVE, sW, t1); K.fl1(t1)
        a.I('s_endpgm')
        a.label('k2_comp')
        st.n = st0
        a.lg = []
        a.I(f's_and_b32 {sr(sKS)}, {sr(sR)}, 1')
        a.I(f's_lshr_b32 {sr(sNH)}, {sr(sR)}, 1')
        a.I(f'v_lshrrev_b32 {vr(g)}, 4, v0')
        a.I(f'v_lshrrev_b32 {vr(t1)}, 1, {vr(g)}')
        a.I(f'v_xor_b32 {vr(t0)}, {vr(g)}, {vr(t1)}')
        a.I(f'v_and_b32 {vr(t0)}, 1, {vr(t0)}')
        a.I(f'v_lshl_or_b32 {vr(t0)}, {vr(t0)}, 1, {vr(t1)}')
        a.I(f'v_bfe_u32 {vr(t1)}, v0, 1, 1')
        a.I(f'v_xor_b32 {vr(t0)}, {vr(t0)}, {vr(t1)}')
        a.I(f'v_lshlrev_b32 {vr(t0)}, 4, {vr(t0)}')
        a.I(f'v_lshl_add_u32 {vr(t0)}, {vr(g)}, 12, {vr(t0)}')
        a.I(f'v_bfe_u32 {vr(t1)}, v0, 2, 2')
        a.I(f'v_lshl_add_u32 {vr(t0)}, {vr(t1)}, 7, {vr(t0)}')
        a.I(f'v_bfe_u32 {vr(t1)}, v0, 3, 1')
        a.I(f'v_xor_b32 {vr(t1)}, {sr(sKS)}, {vr(t1)}')
        a.I(f'v_lshl_add_u32 {vr(t0)}, {vr(t1)}, 6, {vr(t0)}')
        a.I(f'v_and_b32 {vr(t1)}, 1, v0')
        a.I(f'v_lshl_add_u32 {vr(t0)}, {vr(t1)}, 3, {vr(t0)}')
        a.I(f's_lshl_b32 s3, {sr(sNH)}, 9')
        a.I('s_add_u32 s3, s3, 16384')
        a.I(f'v_add_u32 {vr(vWp)}, s3, {vr(t0)}')
        a.I(f'v_xor_b32 {vr(vWp + 1)}, 32, {vr(vWp)}')
        a.I(f'v_add_u32 {vr(vX)}, {XB}, {vr(vL16)}')
        a.I(f'v_add_u32 {vr(vX + 1)}, {XB + 9216}, {vr(vL16)}')
        for i in range(0, 72, 2): a.I(f'v_mov_b64 {vr(ACC + i, 2)}, 0')
        a.I(f's_add_u32 {sr(sE)}, s16, {EXCH_OFF}')
        a.I(f's_addc_u32 {sr(sE + 1)}, s17, 0')
        a.I(f's_mov_b32 {sr(sE + 2)}, {256 * 36864}')
        a.I(f's_mov_b32 {sr(sE + 3)}, 0x20000')
        a.I(f's_mul_i32 s3, {sr(sB)}, {144 * 4096}')
        a.I(f's_add_u32 {sr(sD)}, s10, s3')
        a.I(f's_addc_u32 {sr(sD + 1)}, s11, 0')
        a.I(f's_mov_b32 {sr(sD + 2)}, {144 * 4096}')
        a.I(f's_mov_b32 {sr(sD + 3)}, 0x20000')
        a.I(f's_cmp_eq_u32 {sr(sNH)}, {sr(sKH)}')
        a.I('s_cselect_b32 s5, 1, 0')
        a.I(f's_cselect_b32 {sr(sPC)}, 9, 7')
        a.I('s_xor_b32 s3, s2, s5')
        a.I('s_lshl_b32 s3, s3, 1')
        a.I(f's_add_u32 s3, s3, {sr(sKS)}')
        a.I(f's_lshl_b32 {sr(sT0)}, s3, 7')
        a.I(f's_mul_i32 {sr(sOX)}, s3, 18432')
        a.I(f'v_mov_b32 {vr(t0)}, 0')
        a.I(f's_mov_b32 {sr(sSL)}, 0')
        FS = (24, 68)
        def reads(F, slot, ks):
            w = [f'ds_read_b64_tr_b16 {vr(F + 4 * j + 2 * h, 2)}, {vr(vWp + j)} offset:{K.wslot(slot) - 16384 + ks * 2048 + h * 1024}' for j in range(2) for h in range(2)]
            x = [f'ds_read_b128 {vr(F + 8 + 4 * t, 4)}, {vr(vX + ks)} offset:{slot * 18432 + t * 1024}' for t in range(9)]
            return w[:2] + x[:1] + w[2:] + x[1:]
        G2 = OPT['gate2']
        def kstep(Fc, Fn, nslot, nks, gated, vm=''):
            rd_ = reads(Fn, nslot, nks)
            if not gated: a.I(f's_waitcnt lgkmcnt({OPT["lw2"]})')
            k = 0
            for t in range(9):
                for j in range(2):
                    if gated and k == G2:
                        a.I(f's_waitcnt {vm}lgkmcnt(0)')
                        a.I('s_barrier')
                    if not gated and k == 6: a.I(f's_waitcnt lgkmcnt(6)')
                    a.I(f'{MF} {vr(acc(t, j), 4)}, {vr(Fc + 4 * j, 4)}, {vr(Fc + 8 + 4 * t, 4)}, {vr(acc(t, j), 4)}')
                    if k >= (G2 if gated else 0) and rd_: a.I(rd_.pop(0))
                    k += 1
            assert not rd_
        if OPT['cprio']: a.I(f's_setprio {OPT["cprio"]}')
        a.I('s_waitcnt lgkmcnt(0)')
        a.I('s_barrier')
        st.cyc()
        a.many(reads(FS[0], 0, 0))
        a.I(f's_mov_b32 {sr(sCNT)}, 0')
        lg0 = [set(x) for x in a.lg]
        a.label('k2_cloop')
        for i in range(4):
            if OPT['kpf'] and i in (OPT['kpf'] - 1, OPT['kpf']):
                a.I(f's_cmp_eq_u32 {sr(sCNT)}, 8')
                a.I(f's_cbranch_scc1 k2_e{i}')
                a.label(f'k2_r{i}')
            kstep(FS[0], FS[1], i, 1, False)
            kstep(FS[1], FS[0], (i + 1) & 3, 0, True, 'vmcnt(0) ' if i == OPT['pubat'] else '')
        assert [set(x) for x in a.lg] == lg0
        a.I(f's_add_u32 {sr(sCNT)}, {sr(sCNT)}, 1')
        a.I(f's_cmp_lt_u32 {sr(sCNT)}, {sr(sPC)}')
        a.I('s_cbranch_scc1 k2_cloop')
        st.cyc()
        XP = NT('xpol')
        a.I('s_cmp_eq_u32 s5, 1')
        a.I('s_cbranch_scc1 k2_keep')
        SB = {1: (8,), 2: (5, 11), 0: ()}[OPT['ssplit']]
        for k in range(18):
            a.I(f'buffer_store_dwordx4 {vr(ACC + 4 * k, 4)}, {vr(vL16)}, {sr(sE, 4)}, {sr(sOX)} offen offset:{(k & 3) * 1024}{XP}')
            if k & 3 == 3: a.I(f's_add_u32 {sr(sOX)}, {sr(sOX)}, 4096')
            if k in SB: a.I('s_barrier')
        stn = st.n
        st.cyc()
        for _ in range(OPT['sbar']): a.I('s_barrier')
        a.I(f'v_mov_b32 {vr(t1)}, 1')
        a.I('s_mov_b64 exec, 1')
        a.I('s_waitcnt vmcnt(0)')
        st.cyc()
        a.I(f'buffer_store_dword {vr(t1)}, {vr(t0)}, {sr(sF, 4)}, {sr(sT0)} offen{XP}')
        a.I('s_mov_b64 exec, -1')
        for _ in range(8 - len(SB) - OPT['sbar']): a.I('s_barrier')
        st.cyc(); st.real()
        st.flush(16, K.sWAVE, sW, t1); K.fl1(t1)
        a.I('s_endpgm')
        def xloads():
            for k in range(18):
                a.I(f'buffer_load_dwordx4 {vr(TMP + 4 * k, 4)}, {vr(vL16)}, {sr(sE, 4)}, {sr(sOX)} offen offset:{(k & 3) * 1024}{XP}')
                if k & 3 == 3: a.I(f's_add_u32 {sr(sOX)}, {sr(sOX)}, 4096')
        if OPT['kpf']:
            a.auto = False
            i = OPT['kpf']
            a.label(f'k2_e{i - 1}')
            a.I(f'buffer_load_dword {vr(t1)}, {vr(t0)}, {sr(sF, 4)}, {sr(sT0)} offen{XP}')
            a.I(f's_branch k2_r{i - 1}')
            a.label(f'k2_e{i}')
            a.I('s_waitcnt vmcnt(0)')
            a.I(f'v_cmp_eq_u32 vcc, 1, {vr(t1)}')
            a.I(f's_cbranch_vccz k2_r{i}')
            xloads()
            a.I(f's_mov_b32 {sr(sSL)}, 1')
            a.I(f's_branch k2_r{i}')
            a.auto = True
        a.label('k2_keep')
        st.n = stn
        a.I(f's_mov_b32 {sr(sCNT)}, 0')
        st.cyc()
        a.I(f's_cmp_eq_u32 {sr(sSL)}, 1')
        a.I('s_cbranch_scc1 k2_have')
        a.label('k2_poll')
        a.I(f'buffer_load_dword {vr(t1)}, {vr(t0)}, {sr(sF, 4)}, {sr(sT0)} offen{XP}')
        a.I(f's_add_u32 {sr(sCNT)}, {sr(sCNT)}, 1')
        a.I('s_waitcnt vmcnt(0)')
        a.I(f'v_cmp_eq_u32 vcc, 1, {vr(t1)}')
        a.I('s_cbranch_vccnz k2_got ; POLL')
        a.I(f's_cmp_lt_u32 {sr(sCNT)}, {OPT["pollmax"]}')
        a.I('s_cbranch_scc1 k2_poll')
        a.label('k2_got')
        xloads()
        a.label('k2_have')
        st.cyc()
        a.I(f'v_and_b32 {vr(t2)}, 15, v0')
        a.I(f'v_lshlrev_b32 {vr(t2)}, 12, {vr(t2)}')
        a.I(f'v_lshl_add_u32 {vr(t2)}, {vr(g)}, 4, {vr(t2)}')
        a.I(f's_lshl_b32 s3, {sr(sBLK)}, 11')
        a.I(f's_lshl_b32 s4, {sr(sN8)}, 8')
        a.I('s_add_u32 s3, s3, s4')
        a.I(f's_lshl_b32 s4, {sr(sR)}, 6')
        a.I('s_add_u32 s3, s3, s4')
        for t in range(9):
            a.I(f's_waitcnt vmcnt({16 - t})')
            d = acc(t, 0)
            for k in range(4): a.I(f'v_pk_add_f32 {vr(d + 2 * k, 2)}, {vr(d + 2 * k, 2)}, {vr(TMP + 8 * t + 2 * k, 2)}')
            for k in range(4): a.I(f'v_cvt_pk_bf16_f32 {vr(d + k)}, {vr(d + 2 * k)}, {vr(d + 2 * k + 1)}')
            for mn in ('v_permlane32_swap_b32', 'v_permlane16_swap_b32'):
                for k in range(2): a.I(f'{mn} {vr(d + k)}, {vr(d + 2 + k)}')
            a.I(f'buffer_store_dwordx4 {vr(d, 4)}, {vr(t2)}, {sr(sD, 4)}, s3 offen{NT("outp")}')
            a.I('s_add_u32 s3, s3, 65536')
        st.cyc(); st.real()
        st.flush(16, K.sWAVE, sW, t0); K.fl1(t0)
        a.label('k1_end')
        a.raw('s_endpgm')
        return a

HEADER = open(f'cdna_kernels/{NAME}.s.ref').read().split('; Override launch')[0]
def kd(name, vg, sg=102):
    return f'''.amdhsa_kernel {name}
  .amdhsa_next_free_vgpr {vg}
  .amdhsa_next_free_sgpr {sg}
  .amdhsa_accum_offset {(min(vg, 256) + 3) // 4 * 4}
  .amdhsa_group_segment_fixed_size 0
  .amdhsa_kernarg_size 104
  .amdhsa_user_sgpr_count 2
  .amdhsa_user_sgpr_kernarg_segment_ptr 1
  .amdhsa_system_sgpr_workgroup_id_x 1
.end_amdhsa_kernel
'''
def main():
    ks = [('attn_kernel', gen_k1(), 256, 163840)]
    out = HEADER
    if OPT['fuse']:
        ks = [(NAME + '_kernel', ks[0][1], 256, 163840)]
        out += '; @launch grid=(256,1,1) block=(512,1,1) lds=163840\n'
    else:
        for nm, _, _, lds in ks:
            out += f'; @launch kernel={nm} grid=(256,1,1) block=(512,1,1) lds={lds}\n'
    out += '.amdgcn_target "amdgcn-amd-amdhsa--gfx950"\n.text\n'
    for nm, a, vg, lds in ks:
        if OPT.get('novm'):
            seen = False; keep = []
            for x in a.ins:
                if x.mn == 's_barrier': seen = True
                if x.label in ('k2_m1',): seen = False
                if x.label == 'k2_cloop': seen = False; OPT['_stop'] = 1
                if OPT.get('_stop'): seen = False
                if seen and x.mn == 'buffer_load_dwordx4': continue
                keep.append(x)
            a.ins = keep
        if OPT.get('nokv'): a.ins = [x for x in a.ins if not (x.kind == 'vmem' and x.mn == 'buffer_load_dwordx4' and not x.lds and 'nt' in x.mods)]
        if OPT.get('nomfma'): a.ins = [x for x in a.ins if x.kind != 'mfma']
        if OPT.get('nods'): a.ins = [x for x in a.ins if not (x.kind == 'ds' and 'read' in x.mn)]
        n = a.pad_hazards(verbose=bool(OPT.get('v')))
        errs = 0; nbs = set()
        for wave in range(8):
            for pol in (lambda i, x: 'POLL' in x.text, lambda i, x: True):
              for wgid in (3, 4, 5):
                tr = a.trace(wgid, wave, pol)
                e, nb = a.verify_waits(tr, quiet=(errs > 0 or bool(OPT.get('novm')) or OPT['stamp'] == 4)); errs += e; nbs.add(nb)
        assert (len(nbs) == 1 or (len(nbs) == 2 and max(nbs) - min(nbs) == 7 - OPT['sbar'])) and (errs == 0 or OPT.get('novm') or OPT['stamp'] == 4), (nbs, errs)
        print(f'{nm}: {len(a.ins)} lines, nops added {n}, wait errors {errs}, barriers {nb}, trace len {len(tr)}', file=sys.stderr)
        out += f'.globl {nm}\n.p2align 8\n.type {nm},@function\n{nm}:\n' + a.text()
    out += '.section .rodata,"a"\n'
    for nm, a, vg, lds in ks:
        out += '.p2align 6\n' + kd(nm, vg)
    open(sys.argv[1], 'w').write(out)
main()
```

```python
import sys, math, struct
from asmlib import *

NAME = 'concat_heads__mha_block_cached__mha_block_cached__near_ridge'
OPT = dict(stamp=0, kvnt=1, wnt=0, xnt=0, ont=2, wont=0, oldnt=0, rot1=3, rot2=3, wopf=3, ord=1, desync=1, pre1=1, gate=2, cprio=1, tail=1, rotc=0, rhh=0, vfirst=1, hpmap=2, s2=1, fuse=1, kv0=0, kvs=3, lprio=0, whalf=0, offm=0, offsh=0, pubat=0, b2at=1, kpf=3, spread=1, gate2=0, lw2=4, sbar=3, ssplit=1, ntm=255, oldf=2, cpf=1, sy=4, nimm=3, aux0=0, auxs=4, pp=0, mv=0, mk=0, nwo=16, pfp=0, xpol=2, outp=0, pollmax=100000, qprio=1, rs0=10, rs1=13, stag=1, aprio=1, pS=0, pM=0, pV=0, smfirst=0)
for a in sys.argv[2:]:
    k, v = a.split('='); OPT[k] = int(v) if v.lstrip('-').isdigit() else v

def fbits(x): return '0x%08x' % struct.unpack('<I', struct.pack('<f', x))[0]
NT = lambda k: {0: '', 1: ' nt', 2: ' sc1', 3: ' sc0 sc1', 4: ' sc1 nt'}[OPT[k]]
APOL = lambda kind, j: ' nt' if (OPT['ntm'] >> (j + (4 if kind == 'V' else 0))) & 1 else ''
THRV = '0x7f800000' if OPT.get('novm') else fbits(8.0)
O_SLICE = 128 * 9216
STAMP_OFF = 64 << 20
EXCH_OFF = 32 << 20
FLAG_OFF = 48 << 20

class Stamper:
    def __init__(self, a, region):
        self.a = a; self.n = 0; self.region = region
        self.on = OPT.get('sreg', 0) == region or OPT['stamp'] == 5
    def real(self):
        if not self.on: return
        if OPT['stamp'] == 5:
            if self.region == 0 and not self.n: self.a.I('s_memrealtime s[76:77]'); self.n = 1
            return
        if OPT['stamp'] == 4 and self.region == 0 and self.n: return
        if OPT['stamp']:
            self.a.I(f's_memrealtime {sr(76 + 2 * self.n, 2)}'); self.n += 1
    def cyc(self):
        if not self.on: return
        if OPT['stamp'] == 5: return
        if OPT['stamp'] == 4 and self.region == 0:
            self.a.raw('s_waitcnt lgkmcnt(0)'); self.sh(); return
        if OPT['stamp']:
            self.a.I(f's_memtime {sr(76 + 2 * self.n, 2)}'); self.n += 1
    def sh(self):
        if not self.on: return
        if OPT['stamp'] == 4 and self.region == 0:
            for i in range(13): self.a.raw(f's_mov_b32 s{80 + i}, s{81 + i}')
            self.a.raw('s_mov_b32 s93, s98')
            self.a.raw('s_memtime s[98:99]')
    def flush(self, s_ws, s_wave, srd, vt):
        if not OPT['stamp'] or not self.on: return
        a = self.a
        if OPT['stamp'] == 5:
            if self.region == 0: return
            a.I('s_memrealtime s[78:79]'); self.n = 2
            if OPT.get('dbgspan'):
                lb = a.newlabel('dbgskip')
                a.I('s_waitcnt vmcnt(0) lgkmcnt(0)')
                a.I('s_and_b32 s3, s2, 9')
                a.I(f's_or_b32 s3, s3, {sr(s_wave)}')
                a.I('s_cmp_lg_u32 s3, 0')
                a.I(f's_cbranch_scc1 {lb}')
                a.I(f's_mov_b32 {sr(srd)}, s100'); a.I(f's_mov_b32 {sr(srd + 1)}, s101'); a.I(f's_mov_b32 {sr(srd + 2)}, 256'); a.I(f's_mov_b32 {sr(srd + 3)}, 0x20000')
                a.I('s_not_b32 s76, s76')
                a.I('s_mov_b64 exec, 1')
                a.I(f'v_mov_b32 {vr(vt)}, 0'); a.I(f'v_mov_b32 {vr(vt + 1)}, s78')
                a.I(f'buffer_atomic_umax {vr(vt + 1)}, {vr(vt)}, {sr(srd, 4)}, 0 offen offset:16 sc1')
                a.I('s_nop 1')
                a.I(f'v_mov_b32 {vr(vt + 1)}, s76')
                a.I(f'buffer_atomic_umax {vr(vt + 1)}, {vr(vt)}, {sr(srd, 4)}, 0 offen offset:20 sc1')
                a.I('s_not_b32 s76, s76')
                a.I('s_nop 1')
                a.I(f'v_mov_b32 {vr(vt + 1)}, s76')
                a.I(f'buffer_atomic_umax {vr(vt + 1)}, {vr(vt)}, {sr(srd, 4)}, 0 offen offset:24 sc1')
                a.label(lb)
                return
        regs = [76 + 2 * i for i in range(self.n)]
        if OPT['stamp'] == 4 and self.region == 0:
            regs = [76] + list(range(81, 94)) + [98]; self.n = 0
        assert self.n <= 12
        a.I('s_waitcnt vmcnt(0) lgkmcnt(0)')
        a.I(f's_add_u32 {sr(srd)}, {sr(s_ws)}, {STAMP_OFF + self.region * (1 << 20)}')
        a.I(f's_addc_u32 {sr(srd + 1)}, {sr(s_ws + 1)}, 0')
        a.I(f's_mov_b32 {sr(srd + 2)}, {1 << 20}')
        a.I(f's_mov_b32 {sr(srd + 3)}, 0x20000')
        a.I(f's_lshl_b32 s3, s2, 3')
        a.I(f's_add_u32 s3, s3, {sr(s_wave)}')
        a.I(f's_lshl_b32 s3, s3, 6')
        a.I(f'v_mov_b32 {vr(vt)}, 0')
        a.I(f'v_mov_b32 {vr(vt + 1)}, {self.n}')
        a.I(f'buffer_store_dword {vr(vt + 1)}, {vr(vt)}, {sr(srd, 4)}, s3 offen offset:60')
        a.I('s_nop 1')
        for i in range(len(regs)):
            a.I(f'v_mov_b32 {vr(vt + 1)}, {sr(regs[i])}')
            a.I(f'buffer_store_dword {vr(vt + 1)}, {vr(vt)}, {sr(srd, 4)}, s3 offen offset:{4 * i}')
            a.I('s_nop 1')

def gen_k1():
    a = Asm()
    st = Stamper(a, 0)
    MF = 'v_mfma_f32_16x16x32_bf16'
    sX, sW, sK, sV, sO = 20, 24, 28, 32, 36
    sWAVE, sR, sHH, sBLK, sB, sHP = 40, 41, 42, 43, 44, 45
    sM0W, sM0X, sOW, sOX, sLOOSE, sNEXT, sKVI = 46, 47, 48, 49, 50, 51, 52
    sSLW, sSLX = 53, 54
    sCNT, sT0, sT1 = 55, 56, 57
    sKP, sVP, sM0A, sDK, sDV, sOV, sOK = 58, 59, 60, 62, 63, 64, 65
    sTHR, sTHR8, sCL, sCL8 = 66, 67, 68, 69
    sC = 70
    sKPo, sVPo = 72, 73
    sST, sROT = 74, 75
    sLINK = 6
    sH = 61
    sPFO, sMK, sMV = 48, 50, 51
    sJ = 47
    sRS, sRC = 46, 61
    vKa, vVa, vD = 1, 3, 7
    mx, mx8, tA, tB = 8, 9, 10, 11
    ONES, NEGM, Q, S, POOL, O = 12, 16, 28, 76, 116, 148
    ACC, XF, WF = 112, 76, 44
    XB, QB = 49152, 49152
    HB1 = 114688
    def acc(t, j): return ACC + (t * 4 + j) * 4
    def o_(T, d): return O + (T * 9 + (d + 1) % 9) * 4
    JUNK = O + 3
    def q_(T, k): return Q + (T * 4 + k) * 4
    def s_(T, j, tt=0): return S + (T * 2 + j) * 8 + tt * 4 if T < 2 else S + 32 + tt * 4
    def negm(T): return NEGM + 4 * T
    kvreg = {'K0': 160, 'V0': 192, 'K1': 76, 'V1': 108}
    g, n, t0, t1, t2, t3 = 12, 13, 14, 15, 16, 17

    def hfun(dst, src, tmp):
        a.I(f'v_lshrrev_b32 {vr(tmp)}, 1, {vr(src)}')
        a.I(f'v_xor_b32 {vr(dst)}, {vr(src)}, {vr(tmp)}')
        a.I(f'v_and_b32 {vr(dst)}, 1, {vr(dst)}')
        a.I(f'v_lshl_or_b32 {vr(dst)}, {vr(dst)}, 1, {vr(tmp)}')
    def tr_pattern(dst):
        a.I(f'v_lshrrev_b32 {vr(g)}, 4, v0')
        hfun(t0, g, t1)
        a.I(f'v_bfe_u32 {vr(t1)}, v0, 1, 1')
        a.I(f'v_xor_b32 {vr(t0)}, {vr(t0)}, {vr(t1)}')
        a.I(f'v_lshlrev_b32 {vr(t0)}, 4, {vr(t0)}')
        a.I(f'v_lshl_add_u32 {vr(t0)}, {vr(g)}, 12, {vr(t0)}')
        a.I(f'v_bfe_u32 {vr(t1)}, v0, 2, 2')
        a.I(f'v_lshl_add_u32 {vr(t0)}, {vr(t1)}, 7, {vr(t0)}')
        a.I(f'v_bfe_u32 {vr(t1)}, v0, 3, 1')
        a.I(f'v_lshl_add_u32 {vr(t0)}, {vr(t1)}, 6, {vr(t0)}')
        a.I(f'v_and_b32 {vr(t1)}, 1, v0')
        a.I(f'v_lshl_add_u32 {vr(dst)}, {vr(t1)}, 3, {vr(t0)}')

    a.raw('s_cmp_ge_u32 s2, 256')
    a.raw('s_cbranch_scc1 k1_end')
    st.real(); st.cyc()
    a.I('s_and_b32 s3, s2, 7')
    a.I('s_lshr_b32 s4, s2, 3')
    a.I(f's_lshr_b32 {sr(sBLK)}, s3, 2')
    a.I(f's_mul_i32 s5, {sr(sBLK)}, 40')
    a.I('s_load_dwordx8 s[8:15], s[0:1], s5')
    a.I('s_load_dwordx2 s[16:17], s[0:1], 96')
    a.I('s_add_u32 s5, s5, 32')
    a.I('s_load_dwordx2 s[18:19], s[0:1], s5')
    if OPT['fuse']: a.I('s_load_dwordx2 s[100:101], s[0:1], 88')
    a.I('s_and_b32 s5, s4, 3')
    a.I('s_lshl_b32 s6, s5, 1')
    a.I('s_add_u32 s3, s3, s6')
    a.I('s_and_b32 s3, s3, 3')
    a.I(f's_lshl_b32 {sr(sHP)}, s5, 2')
    a.I(f's_add_u32 {sr(sHP)}, {sr(sHP)}, s3')
    a.I(f's_lshr_b32 {sr(sB)}, s4, 2')
    a.I(f's_add_u32 {sr(sROT)}, {sr(sB)}, s5')
    a.I(f'v_lshrrev_b32 {vr(t0)}, 6, v0')
    a.I(f'v_readfirstlane_b32 {sr(sWAVE)}, {vr(t0)} ; WAVEID')
    a.I('v_and_b32 v0, 63, v0')
    a.I(f's_and_b32 {sr(sR)}, {sr(sWAVE)}, 3')
    a.I(f's_lshr_b32 {sr(sHH)}, {sr(sWAVE)}, 2')
    a.I(f's_lshr_b32 s3, {sr(sR)}, 1')
    a.I(f's_xor_b32 {sr(sH)}, {sr(sR)}, s3')
    a.I(f's_and_b32 {sr(sH)}, {sr(sH)}, 1')
    a.I(f's_lshl_b32 {sr(sH)}, {sr(sH)}, 1')
    a.I(f's_or_b32 {sr(sH)}, {sr(sH)}, s3')
    a.I(f'v_and_b32 {vr(t0)}, 7, v0')
    a.I(f'v_xor_b32 {vr(t0)}, {sr(sH)}, {vr(t0)}')
    a.I(f'v_bfe_u32 {vr(t1)}, v0, 4, 1')
    a.I(f'v_lshlrev_b32 {vr(t1)}, 2, {vr(t1)}')
    a.I(f'v_xor_b32 {vr(t0)}, {vr(t0)}, {vr(t1)}')
    a.I(f'v_lshlrev_b32 {vr(t0)}, 4, {vr(t0)}')
    a.I(f'v_lshrrev_b32 {vr(t1)}, 5, v0')
    a.I(f'v_lshl_add_u32 {vr(t0)}, {vr(t1)}, 7, {vr(t0)}')
    a.I(f'v_lshrrev_b32 {vr(g)}, 4, v0')
    a.I(f'v_bfe_u32 {vr(t1)}, v0, 3, 2')
    a.I(f's_lshl_b32 s3, {sr(sR)}, 4')
    a.I(f'v_add_u32 {vr(t1)}, s3, {vr(t1)}')
    a.I(f'v_lshl_add_u32 {vr(vD)}, {vr(t1)}, 8, {vr(t0)}')
    a.I(f's_lshl_b32 {sr(sM0W)}, {sr(sR)}, 12')
    def rest_setup():
        a.I(f's_mul_i32 {sr(sM0A)}, {sr(sHH)}, 81920')
        a.I(f's_add_u32 {sr(sM0A)}, {sr(sM0A)}, {sr(sM0W)}')
        a.I(f's_lshl_b32 s3, {sr(sB)}, 4')
        a.I(f's_add_u32 s3, s3, {sr(sHP)}')
        a.I('s_lshl_b32 s3, s3, 18')
        for (d, p) in ((sK, 10), (sV, 12)):
            a.I(f's_add_u32 {sr(d)}, {sr(p)}, s3')
            a.I(f's_addc_u32 {sr(d + 1)}, {sr(p + 1)}, 0')
            a.I(f's_mov_b32 {sr(d + 2)}, 262144')
            a.I(f's_mov_b32 {sr(d + 3)}, 0x20000')
    a.I(f's_cmp_eq_u32 {sr(sHH)}, 0')
    a.I('s_cbranch_scc1 k1_comp')

    def flag_srd(d):
        a.I(f's_add_u32 {sr(d)}, s16, {FLAG_OFF}')
        a.I(f's_addc_u32 {sr(d + 1)}, s17, 0')
        a.I(f's_mov_b32 {sr(d + 2)}, 98304')
        a.I(f's_mov_b32 {sr(d + 3)}, 0x20000')
    def dbg_srd(d):
        a.I(f's_mov_b32 {sr(d)}, s100')
        a.I(f's_mov_b32 {sr(d + 1)}, s101')
        a.I(f's_mov_b32 {sr(d + 2)}, 256')
        a.I(f's_mov_b32 {sr(d + 3)}, 0x20000')
    def oflag_off(d):
        a.I(f's_lshl_b32 {d}, {sr(sBLK)}, 3')
        a.I(f's_add_u32 {d}, {d}, {sr(sB)}')
        a.I(f's_lshl_b32 {d}, {d}, 4')
        a.I(f's_add_u32 {d}, {d}, {sr(sHP)}')
        a.I(f's_lshl_b32 {d}, {d}, 7')
        a.I(f's_add_u32 {d}, {d}, 65536')
    def wo_srd():
        a.I(f's_lshl_b32 s3, {sr(sB)}, 4')
        a.I(f's_add_u32 s3, s3, {sr(sHP)}')
        a.I('s_lshl_b32 s3, s3, 16')
        a.I(f's_add_u32 {sr(sX)}, s18, s3')
        a.I(f's_addc_u32 {sr(sX + 1)}, s19, 0')
        a.I(f's_mov_b32 {sr(sX + 2)}, 65536')
    vDW, vDX = 20, 24
    if OPT['lprio']: a.I(f's_setprio {OPT["lprio"]}')
    a.I(f'v_lshl_add_u32 {vr(vDW)}, {vr(t1)}, 13, {vr(t0)}')
    for tq in range(1, 4): a.I(f'v_add_u32 {vr(vDW + tq)}, {tq * (32768 - 1024)}, {vr(vDW)}')
    a.I(f's_lshr_b32 {sr(sST)}, s2, {OPT["offsh"]}')
    a.I(f's_and_b32 {sr(sST)}, {sr(sST)}, {OPT["offm"]}')
    a.I(f's_add_u32 {sr(sOX)}, {sr(sST)}, {sr(sROT)}')
    a.I(f's_and_b32 {sr(sOX)}, {sr(sOX)}, {OPT["rot1"]}')
    a.I(f's_lshl_b32 {sr(sOW)}, {sr(sOX)}, 19')
    a.I(f's_lshl_b32 s3, {sr(sHP)}, 9')
    a.I(f's_sub_u32 {sr(sW + 2)}, 8388608, s3')
    a.I(f's_mov_b32 {sr(sW + 3)}, 0x20000')
    a.I(f's_mov_b32 m0, {sr(sM0W)}')
    a.I('s_waitcnt lgkmcnt(0)')
    a.I(f's_add_u32 {sr(sW)}, s14, s3')
    a.I(f's_addc_u32 {sr(sW + 1)}, s15, 0')
    def wloads(hq):
        if OPT['whalf']:
            for tq in range(4): a.I(f'buffer_load_dwordx4 {vr(vDW + tq)}, {sr(sW, 4)}, {sr(sOW)} offen offset:{tq * 1024}{NT("wnt")} lds')
        else:
            for tq in range(4): a.I(f'buffer_load_dwordx4 {vr(vDW + tq)}, {sr(sW, 4)}, {sr(sOW)} offen offset:{tq * 1024 + hq * 256}{NT("wnt")} lds')
    sHA, sHB = 70, 71
    if OPT['whalf']:
        a.I(f's_lshr_b32 s4, {sr(sB)}, 2')
        a.I(f's_mul_i32 {sr(sHA)}, s4, {HB1}')
        a.I(f's_sub_u32 {sr(sHB)}, {HB1}, {sr(sHA)}')
        a.I(f's_add_u32 {sr(sHA)}, {sr(sHA)}, {sr(sM0W)}')
        a.I(f's_add_u32 {sr(sHB)}, {sr(sHB)}, {sr(sM0W)}')
        a.I(f's_lshl_b32 {sr(sKPo)}, s4, 8')
        a.I(f's_mov_b32 m0, {sr(sHA)}')
        a.I(f's_or_b32 {sr(sOW)}, {sr(sOW)}, {sr(sKPo)}')
    wloads(0)
    a.I(f's_mul_i32 s3, {sr(sB)}, 294912')
    if not OPT['whalf']:
        a.I(f's_add_u32 m0, {sr(sM0W)}, {HB1 - 256}')
        wloads(1)
    a.I(f's_add_u32 {sr(sX)}, s8, s3')
    a.I(f's_addc_u32 {sr(sX + 1)}, s9, 0')
    a.I(f's_mov_b32 {sr(sX + 2)}, 294912')
    a.I(f's_mov_b32 {sr(sX + 3)}, 0x20000')
    a.I(f'v_and_b32 {vr(t1)}, 2, {vr(g)}')
    a.I(f'v_lshlrev_b32 {vr(t1)}, 1, {vr(t1)}')
    a.I(f'v_xor_b32 {vr(t0)}, {vr(g)}, {vr(t1)}')
    a.I(f'v_and_b32 {vr(t1)}, 7, v0')
    a.I(f'v_xor_b32 {vr(t0)}, {vr(t0)}, {vr(t1)}')
    a.I(f'v_lshlrev_b32 {vr(t0)}, 4, {vr(t0)}')
    a.I(f'v_lshrrev_b32 {vr(t1)}, 3, v0')
    a.I(f'v_lshl_add_u32 {vr(t0)}, {vr(t1)}, 11, {vr(t0)}')
    a.I(f'v_xor_b32 {vr(t1)}, 64, {vr(t0)}')
    a.I(f's_lshl_b32 s3, {sr(sR)}, 16')
    for j in range(4):
        a.I(f'v_add_u32 {vr(vDX + j)}, s3, {vr((t0, t1)[j & 1])}')
        if j < 3: a.I(f's_add_u32 s3, s3, {16384 - 1024}')
    a.I(f's_lshl_b32 s3, {sr(sR)}, 6')
    a.I(f'v_xor_b32 {vr(t0)}, s3, {vr(t0)}')
    a.I(f's_lshl_b32 s3, {sr(sR)}, 14')
    a.I('s_add_u32 s3, s3, 262144')
    a.I(f'v_add_u32 {vr(vDX + 4)}, s3, {vr(t0)}')
    a.I(f's_lshl_b32 {sr(sM0X)}, {sr(sR)}, 10')
    a.I(f's_add_u32 {sr(sM0X)}, {sr(sM0X)}, {XB + 16384}')
    a.I(f's_add_u32 {sr(sST)}, {sr(sST)}, 1')
    a.I(f's_mov_b32 {sr(sSLW)}, 0')
    a.I(f's_mov_b32 {sr(sSLX)}, 0')
    def stage_w():
        R = OPT['rot1']
        a.many([f's_add_u32 {sr(sOX)}, {sr(sST)}, {sr(sROT)}',
                f's_and_b32 {sr(sOX)}, {sr(sOX)}, {R}',
                f's_and_b32 {sr(sOW)}, {sr(sST)}, {15 & ~R}',
                f's_or_b32 {sr(sOX)}, {sr(sOX)}, {sr(sOW)}',
                f's_add_u32 m0, {sr(sHA if OPT["whalf"] else sM0W)}, {sr(sSLW)}',
                f's_lshl_b32 {sr(sOW)}, {sr(sOX)}, 19',
                f's_add_u32 {sr(sST)}, {sr(sST)}, 1'])
        if OPT['whalf']: a.I(f's_or_b32 {sr(sOW)}, {sr(sOW)}, {sr(sKPo)}')
        wloads(0)
        if not OPT['whalf']:
            a.I(f's_add_u32 m0, m0, {HB1 - 256}')
            wloads(1)
    def stage_x():
        lb = a.newlabel('k1_skipx')
        a.I(f's_add_u32 {sr(sT0)}, {sr(sM0W)}, {sr(sSLX)}')
        a.I(f's_add_u32 m0, {sr(sT0)}, {XB}')
        a.I(f's_lshl_b32 {sr(sOX)}, {sr(sOX)}, 7')
        for j in range(4): a.I(f'buffer_load_dwordx4 {vr(vDX + j)}, {sr(sX, 4)}, {sr(sOX)} offen offset:{j * 1024}{NT("xnt")} lds')
        a.I(f's_add_u32 m0, {sr(sM0X)}, {sr(sSLX)}')
        a.I(f's_cmp_ge_u32 {sr(sR)}, 2')
        a.I(f's_cbranch_scc1 {lb}')
        a.I(f'buffer_load_dwordx4 {vr(vDX + 4)}, {sr(sX, 4)}, {sr(sOX)} offen{NT("xnt")} lds')
        a.label(lb)
        if OPT['whalf']:
            a.I(f's_add_u32 m0, {sr(sHB)}, {sr(sSLW)}')
            a.I(f's_xor_b32 {sr(sOW)}, {sr(sOW)}, 256')
            wloads(1)
        a.I(f's_add_u32 {sr(sSLW)}, {sr(sSLW)}, 16384')
        a.I(f's_add_u32 {sr(sSLX)}, {sr(sSLX)}, 18432')
        a.I(f's_cmp_eq_u32 {sr(sSLW)}, 49152')
        a.I(f's_cselect_b32 {sr(sSLW)}, 0, {sr(sSLW)}')
        a.I(f's_cselect_b32 {sr(sSLX)}, 0, {sr(sSLX)}')
    stage_x()
    rest_setup()
    if OPT['pre1']:
        stage_w()
        a.I(f's_waitcnt vmcnt({4 if OPT["whalf"] else 8})')
        a.I('s_barrier')
        stage_x()
    else:
        a.I('s_waitcnt vmcnt(0)')
        a.I('s_barrier')
        stage_w(); stage_x()
    st0 = st.n
    st.cyc()
    stage_w(); stage_x()
    a.I(f's_cmp_lg_u32 {sr(sR)}, 0')
    a.I('s_cbranch_scc1 k1_noreset')
    flag_srd(sO)
    oflag_off('s4')
    a.I('s_lshl_b32 s3, s2, 8')
    a.I(f'v_lshlrev_b32 {vr(t0)}, 2, v0')
    a.I(f'v_and_b32 {vr(t2)}, 127, {vr(t0)}')
    a.I(f'v_mov_b32 {vr(t1)}, 0')
    a.I(f'buffer_store_dword {vr(t1)}, {vr(t0)}, {sr(sO, 4)}, s3 offen sc1')
    a.I(f'buffer_store_dword {vr(t1)}, {vr(t2)}, {sr(sO, 4)}, s4 offen sc1')
    a.label('k1_noreset')
    if OPT['kvs'] == 3:
        a.I(f's_mul_i32 s3, s2, 171')
        a.I(f's_lshr_b32 s3, s3, 9')
        a.I(f's_mul_i32 s3, s3, 3')
        a.I(f's_sub_u32 {sr(sNEXT)}, s2, s3')
    else:
        a.I(f's_lshr_b32 s3, s2, 3')
        a.I(f's_and_b32 {sr(sNEXT)}, s3, 1')
    a.I(f's_add_u32 {sr(sNEXT)}, {sr(sNEXT)}, {OPT["kv0"]}')
    assert OPT['kv0'] + 4 * OPT['kvs'] - 1 <= 12
    a.I(f's_mov_b32 {sr(sLOOSE)}, 0')
    a.I(f's_mov_b32 {sr(sKVI)}, 0')
    a.I(f's_mov_b32 {sr(sCNT)}, 0')
    def lbar():
        lb = a.newlabel('k1_loose')
        a.I(f's_cmp_gt_i32 {sr(sLOOSE)}, 0')
        a.I(f's_cbranch_scc1 {lb}')
        a.I('s_waitcnt vmcnt(12)')
        a.label(lb)
        a.I(f's_sub_i32 {sr(sLOOSE)}, {sr(sLOOSE)}, 1')
        a.I('s_waitcnt vmcnt(20)')
        a.I('s_barrier')
        if OPT.get('qst'): st.cyc()
    a.label('k1_lloop')
    lbar()
    stage_w(); stage_x()
    a.I(f's_cmp_lg_u32 {sr(sCNT)}, {sr(sNEXT)}')
    a.I('s_cbranch_scc1 k1_kvdone')
    a.I(f's_add_u32 {sr(sNEXT)}, {sr(sNEXT)}, {OPT["kvs"]}')
    a.I(f's_add_u32 {sr(sKVI)}, {sr(sKVI)}, 1')
    for m, it in enumerate(('K0', 'V0', 'K1', 'V1')):
        a.I(f's_cmp_lg_u32 {sr(sKVI)}, {m + 1}')
        a.I(f's_cbranch_scc1 k1_kv{m + 1}')
        a.I(f's_mov_b32 {sr(sLOOSE)}, 2')
        for hq in range(2):
            a.I(f's_mov_b32 {sr(sT0)}, {int(it[1]) * 16384 + hq * 131072}')
            for j in range(4):
                a.I(f'buffer_load_dwordx4 {vr(kvreg[it] + 16 * hq + 4 * j, 4)}, {vr(vD)}, {sr(sK if it[0] == "K" else sV, 4)}, {sr(sT0)} offen offset:{j * 1024}{NT("kvnt")}')
        if m < 3: a.I('s_branch k1_kvdone')
        a.label(f'k1_kv{m + 1}')
    a.label('k1_kvdone')
    a.I(f's_add_u32 {sr(sCNT)}, {sr(sCNT)}, 1')
    a.I(f's_cmp_lt_u32 {sr(sCNT)}, 13')
    a.I('s_cbranch_scc1 k1_lloop')
    a.I(f's_add_u32 s3, {sr(sM0W)}, 16384')
    a.I(f'v_lshl_add_u32 {vr(tA)}, v0, 4, s3')
    a.I(f'v_add_u32 {vr(tB)}, {81920 + 32768}, {vr(tA)}')
    a.I(f'v_add_u32 {vr(mx)}, {81920 - 16384}, {vr(tA)}')
    def kvwrite(it, off, b1=tB, off1=None):
        for hq in range(2):
            o = off if (hq == 0 or off1 is None) else off1
            for j in range(4): a.I(f'ds_write_b128 {vr((tA, b1)[hq])}, {vr(kvreg[it] + 16 * hq + 4 * j, 4)} offset:{o + j * 1024}')
    lbar()
    npf = 0
    a.I(f'v_lshlrev_b32 {vr(t1)}, 4, v0')
    if OPT['cpf']:
        a.I(f's_getpc_b64 {sr(sO, 2)}')
        a.label('k1_pc')
        a.I(f's_mov_b32 {sr(sO + 2)}, k1_end-k1_pc')
        a.I(f's_mov_b32 {sr(sO + 3)}, 0x20000')
        a.I(f's_lshr_b32 s3, {sr(sHP)}, 2')
        a.I('s_lshl_b32 s3, s3, 2')
        a.I(f's_add_u32 s3, s3, {sr(sR)}')
        a.I('s_lshl_b32 s3, s3, 11')
        for k in range(2):
            a.I(f'buffer_load_dwordx4 v[228:231], {vr(t1)}, {sr(sO, 4)}, s3 offen offset:{k * 1024} ; NOCHECK')
            npf += 1
    if OPT['wopf'] == 3:
        wo_srd()
        a.I(f's_lshl_b32 {sr(sT0)}, {sr(sR)}, 14')
        for k in range(OPT['nwo']):
            a.I(f'buffer_load_dwordx4 v[224:227], {vr(t1)}, {sr(sX, 4)}, {sr(sT0)} offen offset:{(k & 3) * 1024} ; NOCHECK')
            if k & 3 == 3: a.I(f's_add_u32 {sr(sT0)}, {sr(sT0)}, 4096')
            npf += 1
            if k == 7: kvwrite('K0', 0); a.I(f's_waitcnt vmcnt({npf})'); a.I('s_barrier')
    else:
        kvwrite('K0', 0)
        a.I(f's_waitcnt vmcnt({npf})')
        a.I('s_barrier')
    kvwrite('V0', 16384)
    a.I('s_barrier')
    a.I('s_waitcnt vmcnt(0)')
    a.I(f's_cmp_lg_u32 {sr(sR)}, 0')
    a.I('s_cbranch_scc1 k1_nocount')
    dbg_srd(sO)
    a.I(f'v_mov_b32 {vr(t1)}, 0')
    a.I(f'v_mov_b32 {vr(t2)}, 1')
    a.I('s_mov_b64 exec, 1')
    a.I(f'buffer_atomic_add {vr(t2)}, {vr(t1)}, {sr(sO, 4)}, 0 offen sc1')
    a.I('s_mov_b64 exec, -1')
    a.label('k1_nocount')
    if OPT['lprio']: a.I('s_setprio 0')
    st.cyc()
    a.I('s_branch k1_join')

    a.label('k1_comp')
    a.lg = []
    st.n = st0
    vWp, vX, vQW = 1, 5, 8
    tr_pattern(vWp)
    a.I(f's_lshr_b32 s3, {sr(sR)}, 1')
    a.I(f's_mul_i32 s4, s3, {HB1}')
    a.I(f's_and_b32 s5, {sr(sR)}, 1')
    a.I('s_lshl_b32 s6, s5, 9')
    a.I('s_add_u32 s4, s4, s6')
    a.I(f'v_add_u32 {vr(vWp)}, s4, {vr(vWp)}')
    for j in range(1, 4): a.I(f'v_xor_b32 {vr(vWp + j)}, {32 * j}, {vr(vWp)}')
    a.I(f'v_and_b32 {vr(n)}, 15, v0')
    a.I(f'v_lshrrev_b32 {vr(t0)}, 1, {vr(n)}')
    a.I(f'v_and_b32 {vr(t1)}, 2, {vr(t0)}')
    a.I(f'v_lshlrev_b32 {vr(t1)}, 1, {vr(t1)}')
    a.I(f'v_xor_b32 {vr(t0)}, {vr(t0)}, {vr(t1)}')
    a.I(f'v_lshlrev_b32 {vr(t1)}, 1, {vr(g)}')
    a.I(f'v_xor_b32 {vr(t0)}, {vr(t0)}, {vr(t1)}')
    a.I(f'v_lshlrev_b32 {vr(t0)}, 4, {vr(t0)}')
    a.I(f'v_lshl_add_u32 {vr(t0)}, {vr(n)}, 7, {vr(t0)}')
    a.I(f'v_add_u32 {vr(vX)}, {XB}, {vr(t0)}')
    a.I(f'v_xor_b32 {vr(vX + 1)}, 16, {vr(vX)}')
    a.I(f's_mul_i32 s4, s3, 36864')
    a.I('s_lshl_b32 s6, s5, 11')
    a.I('s_add_u32 s4, s4, s6')
    a.I(f's_add_u32 s4, s4, {QB}')
    a.I(f'v_lshl_add_u32 {vr(t0)}, {vr(n)}, 4, s4')
    a.I(f'v_lshrrev_b32 {vr(t1)}, 1, {vr(g)}')
    a.I(f'v_lshl_add_u32 {vr(t0)}, {vr(t1)}, 8, {vr(t0)}')
    a.I(f'v_and_b32 {vr(t1)}, 1, {vr(g)}')
    a.I(f'v_lshl_add_u32 {vr(vQW)}, {vr(t1)}, 3, {vr(t0)}')
    a.I('s_waitcnt lgkmcnt(0)')
    rest_setup()
    cval = fbits(128 ** -0.5 * math.log2(math.e))
    a.I(f's_mov_b32 {sr(sC)}, {cval}')
    a.I(f's_mov_b32 {sr(sC + 1)}, {cval}')
    for i in range(0, 144, 2): a.I(f'v_mov_b64 {vr(ACC + i, 2)}, 0')
    def xread(t, slot, ks): return f'ds_read_b128 {vr(XF + 4 * t, 4)}, {vr(vX + ks)} offset:{slot * 18432 + t * 2048}'
    def wreads(W, slot, ks):
        return [f'ds_read_b64_tr_b16 {vr(W + 4 * j + 2 * h, 2)}, {vr(vWp + j)} offset:{slot * 16384 + ks * 2048 + h * 1024}' for j in range(4) for h in range(2)]
    GT = OPT['gate']
    def kstep(Wc, Wn, nslot, nks, gated, last=False):
        wr = wreads(Wn, nslot, nks) if not last else []
        conv = []
        for t in range(9):
            for j in range(4):
                a.I(f'{MF} {vr(acc(t, j), 4)}, {vr(Wc + 4 * j, 4)}, {vr(XF + 4 * t, 4)}, {vr(acc(t, j), 4)}')
                if t >= (GT if gated else 0) and j in (0, 2) and wr: a.I(wr.pop(0))
                for _ in range(5):
                    if conv: a.I(conv.pop(0))
            if gated and t == GT - 1:
                a.I('s_waitcnt lgkmcnt(0)')
                a.I('s_barrier')
                if not last:
                    for tt in range(GT): a.I(xread(tt, nslot, nks))
            elif not last and (not gated or t >= GT): a.I(xread(t, nslot, nks))
            if last and t >= GT - 1:
                lo = 0 if t == GT - 1 else t - 1
                for tc in range(lo, t): conv += convert(tc)
        if last:
            a.many(conv); a.many(convert(8))
        assert not wr
    def convert(t):
        r = []
        for j in range(4): r += [f'v_pk_mul_f32 {vr(acc(t, j) + 2 * k, 2)}, {vr(acc(t, j) + 2 * k, 2)}, {sr(sC, 2)}' for k in range(2)]
        for j in range(4): r += [f'v_cvt_pk_bf16_f32 {vr(acc(t, j) + k)}, {vr(acc(t, j) + 2 * k)}, {vr(acc(t, j) + 2 * k + 1)}' for k in range(2)]
        for j in range(4): r += [f'ds_write_b64 {vr(vQW)}, {vr(acc(t, j), 2)} offset:{t * 4096 + (j >> 1) * 1024 + (j & 1) * 512}']
        return r
    W0, W1 = WF, WF + 16
    if OPT['cprio']: a.I(f's_setprio {OPT["cprio"]}')
    a.I('s_barrier')
    st.cyc()
    a.many(wreads(W0, 0, 0))
    for t in range(9): a.I(xread(t, 0, 0))
    a.I(f's_mov_b32 {sr(sCNT)}, 0')
    a.I('s_waitcnt lgkmcnt(0)')
    class _Dry(Asm): pass
    save = (a.ins, a.lg); a.ins = []; a.lg = []
    kstep(W1, W0, 0, 0, True); lg0 = [set(x) for x in a.lg]
    a.ins, a.lg = save
    a.lg = [set(x) for x in lg0]
    a.label('k1_qloop')
    for i in range(3):
        kstep(W0, W1, i, 1, False)
        kstep(W1, W0, (i + 1) % 3, 0, True)
    assert [set(x) for x in a.lg] == lg0
    a.I(f's_add_u32 {sr(sCNT)}, {sr(sCNT)}, 1')
    a.I(f's_cmp_lt_u32 {sr(sCNT)}, 5')
    a.I('s_cbranch_scc1 k1_qloop')
    kstep(W0, W1, 0, 1, False)
    kstep(W1, W0, 0, 0, True, last=True)
    if OPT['cprio']: a.I('s_setprio 0')
    st.cyc()

    a.label('k1_join')
    if OPT.get('qst'): st.on = False
    a.lg = [set()]
    a.I(f's_lshl_b32 {sr(sKP)}, {sr(sHH)}, 15')
    a.I(f's_add_u32 {sr(sKP)}, {sr(sKP)}, 16384')
    a.I(f's_add_u32 {sr(sVP)}, {sr(sKP)}, 16384')
    a.I(f's_and_b32 s3, {sr(sR)}, 1')
    a.I('s_lshl_b32 s3, s3, 11')
    a.I(f's_lshl_b32 {sr(sJ)}, s3, 1')
    a.I(f's_sub_u32 {sr(sJ)}, 2048, {sr(sJ)}')
    a.I(f's_mul_i32 s5, {sr(sHH)}, 81920')
    a.I('s_add_u32 s5, s5, s3')
    a.I(f's_add_u32 s4, s5, {sr(sVP)}')
    a.I(f's_add_u32 s5, s5, {sr(sKP)}')
    a.I(f's_mul_i32 s3, {sr(sHH)}, 36864')
    a.I(f's_add_u32 s3, s3, {QB}')
    a.I(f'v_lshl_add_u32 {vr(t3)}, v0, 4, s3')
    a.I(f's_lshl_b32 s3, {sr(sR)}, 13')
    a.I(f'v_add_u32 {vr(t2)}, s3, {vr(t3)}')
    a.I('s_waitcnt lgkmcnt(0)')
    a.I('s_barrier')
    for T in range(2):
        for k in range(4): a.I(f'ds_read_b128 {vr(q_(T, k), 4)}, {vr(t2)} offset:{T * 4096 + k * 1024}')
    for k in range(4): a.I(f'ds_read_b128 {vr(q_(2, k), 4)}, {vr(t3)} offset:{32768 + k * 1024}')
    tr_pattern(vVa)
    a.I(f'v_add_u32 {vr(vVa)}, s4, {vr(vVa)}')
    for j in range(1, 4): a.I(f'v_xor_b32 {vr(vVa + j)}, {32 * j}, {vr(vVa)}')
    a.I(f'v_bfe_u32 {vr(n)}, v0, 2, 2')
    hfun(t0, n, t1)
    a.I(f'v_xor_b32 {vr(t0)}, {vr(t0)}, {vr(g)}')
    a.I(f'v_lshlrev_b32 {vr(t0)}, 4, {vr(t0)}')
    a.I(f'v_lshl_add_u32 {vr(t0)}, {vr(n)}, 12, {vr(t0)}')
    a.I(f'v_and_b32 {vr(t1)}, 3, v0')
    a.I(f'v_lshl_add_u32 {vr(t0)}, {vr(t1)}, 7, {vr(t0)}')
    a.I(f'v_bfe_u32 {vr(t1)}, v0, 1, 1')
    a.I(f'v_lshl_add_u32 {vr(t0)}, {vr(t1)}, 6, {vr(t0)}')
    a.I(f'v_add_u32 {vr(vKa)}, s5, {vr(t0)}')
    a.I(f'v_xor_b32 {vr(vKa + 1)}, 64, {vr(vKa)}')
    for i in range(4): a.I(f'v_mov_b32 {vr(ONES + i)}, 0x3f803f80')
    for i in range(0, 12, 2): a.I(f'v_mov_b64 {vr(NEGM + i, 2)}, 0')
    NEG_BIG = fbits(-3.0e38)
    for s in (sTHR, sTHR8, sCL, sCL8): a.I(f's_mov_b32 {sr(s)}, {NEG_BIG}')
    a.I(f's_lshl_b32 s3, {sr(sHH)}, 17')
    a.I(f'v_add_u32 {vr(vD)}, s3, {vr(vD)}')
    a.I(f's_mov_b32 {sr(sOV)}, 32768')
    a.I(f's_mov_b32 {sr(sOK)}, 32768')
    for i in range(0, 108, 2): a.I(f'v_mov_b64 {vr(O + i, 2)}, 0')
    a.I(f's_lshl_b32 s5, {sr(sHH)}, 15')
    a.I(f's_add_u32 s5, s5, {sr(sM0A)}')
    a.I(f's_mov_b32 {sr(sT1)}, 32768')
    a.I(f's_mov_b32 {sr(sCNT)}, 0')
    a.I(f's_mov_b32 {sr(sRS)}, 0')
    if OPT['wopf'] in (1, 2):
        wo_srd()
        a.I(f's_lshl_b32 {sr(sOX)}, {sr(sWAVE)}, 13')
    a.I('s_waitcnt lgkmcnt(0)')
    a.I('s_barrier')
    a.lg = []
    def dma_ins(kind):
        srd, so = (sK, sOK) if kind == 'K' else (sV, sOV)
        r = [[f'buffer_load_dwordx4 {vr(vD)}, {sr(srd, 4)}, {sr(so)} offen offset:{j * 1024}{APOL(kind, j)} lds'] for j in range(4)]
        r[3].append(f's_add_u32 {sr(so)}, {sr(so)}, 16384')
        return r
    def dma_grp(kind, m0):
        r = dma_ins(kind); r[0] = [m0, 's_nop 0'] + r[0]
        return r
    if OPT['pp']:
        a.I('s_mov_b32 m0, s5')
        a.I('s_mov_b32 s3, 49152')
        for j in range(4): a.I(f'buffer_load_dwordx4 {vr(vD)}, {sr(sK, 4)}, s3 offen offset:{j * 1024}{NT("pfp")} lds')
    for x in dma_grp('K', 's_mov_b32 m0, s5'): a.many(x)
    a.I(f's_cmp_eq_u32 {sr(sHH)}, 0')
    a.I('s_cbranch_scc1 k1_nowr')
    kvwrite('K1', 32768, mx, 0); kvwrite('V1', 49152, mx, 16384)
    a.label('k1_nowr')
    a.lg = []
    LA, SY = 6, OPT['sy']
    def rd(kind, jl, f):
        if kind == 'K':
            return [f'ds_read_b128 {vr(POOL + 4 * f, 4)}, {vr(vKa + (f & 1))} offset:{(f >> 2) * 1024 + ((f >> 1) & 1) * 512}']
        return [f'ds_read_b64_tr_b16 {vr(POOL + 4 * f + 2 * h, 2)}, {vr(vVa + (f & 3))} offset:{h * 1024 + (f >> 2) * 512}' for h in range(2)]
    def rd_upd(kind, jl, f):
        r = rd(kind, jl, f)
        if kind == 'K' and f >= 6: r.append(f'v_add_u32 {vr(vKa + (f & 1))}, {sr(sDK if jl else sJ)}, {vr(vKa + (f & 1))}')
        if kind == 'V' and f >= 6:
            for x in (f - 2, f): r.append(f'v_add_u32 {vr(vVa + (x & 3))}, {sr(sDV if jl else sJ)}, {vr(vVa + (x & 3))}')
        return r
    for f in range(LA): a.many(rd('K', 0, f))
    lgK = [set(x) for x in a.lg]
    lgV = [set(Insn(x).wr) for f in range(LA) for x in rd('V', 0, f)]
    st.cyc()
    a.I(f's_lshr_b32 s3, {sr(sR)}, 1')
    a.I(f's_xor_b32 s3, s3, {sr(sHH)}')
    a.I('s_cmp_eq_u32 s3, 1')
    a.I('s_cbranch_scc1 k1_proL')

    def maxops(jl, heavy):
        def chain(vs, dst, extra=None):
            o = [f'v_max3_f32 {vr(dst)}, {vr(vs[0])}, {vr(vs[1])}, {vr(vs[2])}']
            for k in range(3, len(vs) - 1, 2): o.append(f'v_max3_f32 {vr(dst)}, {vr(dst)}, {vr(vs[k])}, {vr(vs[k + 1])}')
            o.append(f'v_max_f32 {vr(dst)}, {vr(dst)}, {vr(vs[-1])}' if extra is None else f'v_max3_f32 {vr(dst)}, {vr(dst)}, {vr(vs[-1])}, {vr(extra)}')
            return o
        c1 = chain([s_(0, jl) + k for k in range(8)], tB)
        c0 = chain([s_(1, jl) + k for k in range(8)], mx, tB)
        c8 = chain([s_(2, 0) + k for k in range(8)], mx8) if heavy else []
        ops = []
        for k in range(4):
            ops += [c1[k]] + ([c8[k]] if heavy else []) + [c0[k]]
        return ops
    def expops(jl, heavy):
        ops = []
        Tl = (0, 1, 2) if heavy else (0, 1)
        for k in range(8):
            for T in Tl: ops.append(f'v_exp_f32 {vr(s_(T, jl) + k)}, {vr(s_(T, jl) + k)}')
            if k >= 2 and k % 2 == 0:
                for T in Tl: ops.append(f'v_cvt_pk_bf16_f32 {vr(s_(T, jl) + k // 2 - 1)}, {vr(s_(T, jl) + k - 2)}, {vr(s_(T, jl) + k - 1)}')
        for T in Tl: ops.append(f'v_cvt_pk_bf16_f32 {vr(s_(T, jl) + 3)}, {vr(s_(T, jl) + 6)}, {vr(s_(T, jl) + 7)}')
        return ops
    stubs = []
    def check(jl, heavy):
        for (thr, m, fn) in ((sTHR, mx, f'k1_rare{jl}'),) + (((sTHR8, mx8, 'k1_rare8'),) if heavy else ()):
            lb = a.newlabel('k1_ok')
            a.I(f'v_cmp_lt_f32 vcc, {sr(thr)}, {vr(m)}')
            a.I(f's_cbranch_vccnz {lb}_s')
            a.label(lb)
            stubs.append((lb, fn))
    def mfmas(kind, jl, heavy, f):
        Tl = (0, 1, 2) if heavy else (0, 1)
        P = vr(POOL + 4 * f, 4)
        if kind == 'K':
            tt, ks = f >> 2, f & 3
            return [f'{MF} {vr(s_(T, jl, tt), 4)}, {P}, {vr(q_(T, ks), 4)}, {vr(negm(T) if ks == 0 else s_(T, jl, tt), 4)}' for T in Tl]
        r = [f'{MF} {vr(o_(T, f), 4)}, {P}, {vr(s_(T, jl), 4)}, {vr(o_(T, f), 4)}' for T in Tl]
        if f == 7: r += [f'{MF} {vr(o_(T, 8), 4)}, {vr(ONES, 4)}, {vr(s_(T, jl), 4)}, {vr(o_(T, 8), 4)}' for T in Tl]
        return r
    def ring_step(doK, doV):
        r = []
        for (P, Po, D, on) in ((sKP, sKPo, sDK, doK), (sVP, sVPo, sDV, doV)):
            if not on: continue
            r.append([f's_mov_b32 {sr(Po)}, {sr(P)}',
                      f's_cmp_ge_u32 {sr(P)}, 49152',
                      f's_cselect_b32 {sr(D)}, {-49152 & 0xffffffff:#x}, {sr(sT1)}',
                      f's_add_u32 {sr(P)}, {sr(P)}, {sr(D)}',
                      f's_sub_u32 {sr(D)}, {sr(D)}, {sr(sJ)}'])
        return r
    def cost(x):
        if callable(x): return 8
        return 8 if x.startswith('v_exp') else 4
    def pack(stream, ngaps, reserved):
        for cap_extra in range(0, ngaps + 1):
            big = set((i * ngaps) // cap_extra for i in range(cap_extra)) if cap_extra else set()
            out = [[] for _ in range(ngaps)]; k = 0
            for gi in range(ngaps):
                room = (16 if gi in big else 8) - reserved[gi]
                while k < len(stream) and cost(stream[k]) <= room:
                    out[gi].append(stream[k]); room -= cost(stream[k]); k += 1
            if k == len(stream): break
        else:
            out[-1] += stream[k:]
        if cap_extra == 0 and OPT['spread']:
            h = max([gi for gi in range(ngaps) if any(callable(x) for x in out[gi])] + [-1]) + 1
            rest = [x for gi in range(h, ngaps) for x in out[gi]]
            groups = []; room = 0
            for x in rest:
                if cost(x) > room: groups.append([]); room = 8
                groups[-1].append(x); room -= cost(x)
            free = [gi for gi in range(h, ngaps) if reserved[gi] == 0]
            if len(groups) <= len(free):
                for gi in range(h, ngaps): out[gi] = []
                for i, gp in enumerate(groups): out[free[(i * len(free)) // len(groups)]] = gp
        return out
    def block(segs, streams, mode, aux0, nvm, auxat=None):
        uses = [(si, f) for si in range(len(segs)) for f in range(8)]
        nU = len(uses)
        gaps = []
        for k, (si, f) in enumerate(uses):
            for n_ in range(len(mfmas(segs[si][0], segs[si][1], segs[si][2], f))): gaps.append((k, n_))
        aux = {gp: [] for gp in gaps}; pre = {gp: [] for gp in gaps}
        for k in range(nU - LA):
            s2, f2 = uses[k + LA]
            rr = rd_upd(segs[s2][0], segs[s2][1], f2)
            for i, x in enumerate([x for x in rr if x.startswith('ds_')]): aux[(k, i)].append(x)
            pre[(k + 1, 0)] += [x for x in rr if x.startswith('v_')]
        if mode != 'fin':
            post = [gp for gp in gaps if gp[0] > nU - 8 + SY]
            q = [(f, x) for f in range(LA) for x in rd('V', 0, f)]
            early = [x for f, x in q if f < OPT['nimm']]; q = [(f, x) for f, x in q if f >= OPT['nimm']]
            per = -(-len(q) // len(post))
            for gp in post:
                for _ in range(per):
                    fdone = gp[0] - (nU - 8) - (0 if gp[1] == 1 else 1)
                    if q and q[0][0] <= fdone: aux[gp].append(q.pop(0)[1])
            assert not q, q
        gsel = gaps[OPT['aux0']::OPT['auxs']] if auxat is None else [gp for gp in gaps if gp[0] >= auxat]
        assert len(aux0) <= len(gsel)
        for gp, x in zip(gsel, aux0): aux[gp].append(x)
        fill = {}
        for (sa, sb, skip, ops) in streams:
            gl = [gp for gp in gaps if sa <= uses[gp[0]][0] <= sb]
            gl = gl[skip:len(gl) - OPT['tail']]
            for gp, ol in zip(gl, pack(ops, len(gl), [4 * len(pre[gp]) for gp in gl])):
                fill[gp] = ol
                assert not (any(callable(x) for x in ol) and uses[gp[0]][0] != sa)
        def emit(x):
            if callable(x): x()
            elif isinstance(x, list):
                for y in x: emit(y)
            else: a.I(x)
        for k, (si, f) in enumerate(uses):
            kind, jl, heavy, after = segs[si]
            if f == 0 and OPT['aprio'] and si: a.I(f's_setprio {len(segs) - 1 - si}')
            for n_, m in enumerate(mfmas(kind, jl, heavy, f)):
                a.I(m)
                emit(pre[(k, n_)]); emit(fill.get((k, n_), [])); emit(aux[(k, n_)])
            if OPT['stamp'] == 3 and mode == 'loop' and f == 7 and si < 3: a.raw(f's_memtime {sr(90 + 2 * si, 2)}')
            if mode != 'fin' and k == nU - 8 + SY:
                if OPT['stamp'] == 3 and mode == 'loop':
                    a.raw('s_mov_b32 s88, s98')
                    a.raw('s_memtime s[96:97]')
                a.I(f's_waitcnt vmcnt({nvm}) lgkmcnt(0)')
                a.I('s_barrier')
                if OPT['aprio']: a.I('s_setprio 3')
                st.sh()
                if OPT['stamp'] == 3 and mode == 'loop': a.raw('s_memtime s[98:99]')
                a.many(early)
            if f == 7 and after: after()
        if mode != 'fin': assert [set(x) for x in a.lg] == lgV, (a.lg, lgV)
    def resc():
        lb = a.newlabel('k1_nors')
        a.I(f's_cmp_lg_u32 {sr(sRS)}, 0')
        a.I(f's_cbranch_scc1 {lb}_s')
        a.label(lb)
        stubs.append((lb, 'k1_rescale'))
    def sm(jl, heavy): return maxops(jl, heavy) + [lambda: check(jl, heavy)] + expops(jl, heavy)
    OFFM0 = 0x30000
    def warm(kind, so):
        return [[f'buffer_load_dwordx4 {vr(vD)}, {sr(sK if kind == "K" else sV, 4)}, {so} offen offset:{j * 1024}{NT("pfp")} lds'] for j in range(4)]
    def prologue(h0):
        a.lg = [set(x) for x in lgK]
        ax = ring_step(True, False)
        block([('K', 0, h0, lambda: (a.many(maxops(0, h0)), check(0, h0))), ('K', 1, False, None)],
              [(1, 1, 0, expops(0, h0))], 'pro', ax, 63)
    def body_aux():
        r = [[f's_add_u32 {sr(sMK)}, {sr(sM0A)}, {sr(sVPo)}',
              f's_add_u32 {sr(sMV)}, {sr(sM0A)}, {sr(sKPo)}',
              f's_cmp_ge_u32 {sr(sCNT)}, 6',
              f's_cselect_b32 {sr(sMV)}, {OFFM0}, {sr(sMV)}',
              f's_cselect_b32 {sr(sOV)}, 0x1000000, {sr(sOV)}',
              f's_sub_u32 s3, {sr(sCNT)}, 1',
              f's_cmp_ge_u32 s3, 5',
              f's_cselect_b32 m0, {OFFM0}, {sr(sMK)}',
              f's_cselect_b32 s3, 0x1000000, {sr(sOK)}',
              f's_cselect_b32 s4, 0, 16384']]
        r += ring_step(True, True)
        for j in range(4): r.append([f'buffer_load_dwordx4 {vr(vD)}, {sr(sK, 4)}, s3 offen offset:{j * 1024}{APOL("K", j)} lds'])
        r[-1] += [f's_add_u32 {sr(sOK)}, {sr(sOK)}, s4', f's_mov_b32 m0, {sr(sMV)}']
        nv = 4
        if OPT['mk']:
            w = warm('K', 's3')
            w[0] = [f's_mov_b32 s4, {OPT["mk"]}', f's_bitcmp1_b32 s4, {sr(sCNT)}', f's_cselect_b32 s3, {sr(sOK)}, 0x1000000'] + w[0]
            r += w; nv += 4
        if OPT['mv']:
            w = warm('V', 's3')
            w[0] = [f's_add_u32 s3, {sr(sOV)}, 16384', f's_mov_b32 s4, {OPT["mv"]}', f's_bitcmp1_b32 s4, {sr(sCNT)}', f's_cselect_b32 s3, s3, 0x1000000'] + w[0]
            r += w; nv += 4
        r += dma_ins('V')
        return r, nv
    def body(hc, tag, exit_to):
        a.lg = [set(x) for x in lgV]
        hn = not hc
        ax, nvm = body_aux()
        block([('V', 0, hc, resc), ('K', 0, hn, None), ('V', 1, False, resc), ('K', 1, False, None)],
              [(0, 1, 1, sm(1, False)), (2, 3, 1, sm(0, hn))], 'loop', ax, nvm)
        a.I(f's_add_u32 {sr(sCNT)}, {sr(sCNT)}, 1')
        a.I(f's_cmp_eq_u32 {sr(sCNT)}, 7')
        a.I(f's_cbranch_scc1 {exit_to}')
    K = K2(a)
    def final(hc):
        a.lg = [set(x) for x in lgV]
        lb = a.newlabel('k1_early')
        a.I(f's_cmp_eq_u32 {sr(sHH)}, 1')
        a.I(f's_cbranch_scc1 {lb}_s')
        a.label(lb)
        stubs.append((lb, 'k1_early'))
        NM8 = negm(2)
        ax = [[f's_lshl_b32 s5, {sr(sHH)}, 15', 's_add_u32 s5, s5, 81920', f's_lshl_b32 s13, {sr(sHH)}, 14',
               f's_lshl_b32 s4, {sr(sR)}, 11', 's_add_u32 s3, s4, s5', 'v_lshl_add_u32 v1, v0, 4, s3'],
              ['v_add_u32 v2, s13, v1', f's_lshl_b32 s3, {sr(sWAVE)}, 9', f'v_lshl_add_u32 {vr(vD)}, v0, 3, s3'],
              [], [f'v_mov_b32 {vr(NM8 + 1)}, {vr(o_(2, 8))}']]
        ax += [[f'ds_write_b128 {"v1" if d < 4 else "v2"}, {vr(o_(2, d), 4)} offset:{(d >> 1) * 8192 + (d & 1) * 1024}'] for d in range(8)]
        ax += [[f'ds_write_b64 {vr(vD)}, {vr(NM8, 2)}']]
        block([('V', 0, hc, resc), ('V', 1, False, None)], [(0, 0, 1, sm(1, False))], 'fin', ax, 0, auxat=8)
        if OPT['aprio']: a.I('s_setprio 0')
    prologue(True)
    a.label('k1_X')
    body(True, 'x', 'k1_finL')
    a.label('k1_Y')
    body(False, 'y', 'k1_finH')
    a.I('s_branch k1_X')
    a.label('k1_proL')
    prologue(False)
    a.I('s_branch k1_Y')

    a.auto = False
    def xg_reduce(x, tmp, op):
        a.I(f'v_mov_b32 {vr(tmp)}, {vr(x)}')
        a.I(f'v_permlane32_swap_b32 {vr(x)}, {vr(tmp)}')
        a.I(f'{op} {vr(x)}, {vr(x)}, {vr(tmp)}')
        a.I(f'v_mov_b32 {vr(tmp)}, {vr(x)}')
        a.I(f'v_permlane16_swap_b32 {vr(x)}, {vr(tmp)}')
        a.I(f'{op} {vr(x)}, {vr(x)}, {vr(tmp)}')
    FREG = {0: mx, 1: tA, 2: mx8}
    def rare(T, vals, scl, canfirst):
        m, tmp = tB, FREG[T]
        a.I(f'v_max3_f32 {vr(m)}, {vr(vals[0])}, {vr(vals[1])}, {vr(vals[2])}')
        for k in range(3, len(vals) - 1, 2): a.I(f'v_max3_f32 {vr(m)}, {vr(m)}, {vr(vals[k])}, {vr(vals[k + 1])}')
        a.I(f'v_max_f32 {vr(m)}, {vr(m)}, {vr(vals[-1])}')
        xg_reduce(m, tmp, 'v_max_f32')
        a.I(f'v_max_f32 {vr(m)}, {sr(scl)}, {vr(m)}')
        for v in vals: a.I(f'v_sub_f32 {vr(v)}, {vr(v)}, {vr(m)}')
        for k in range(4): a.I(f'v_sub_f32 {vr(negm(T) + k)}, {vr(negm(T) + k)}, {vr(m)}')
        lb = a.newlabel('k1_first'); lb2 = a.newlabel('k1_rdone')
        if canfirst:
            a.I(f's_cmp_lg_u32 {sr(scl)}, 0')
            a.I(f's_cbranch_scc1 {lb}')
        a.I(f'v_exp_f32 {vr(tmp)}, -{vr(m)}')
        if T == 2:
            for k in range(36): a.I(f'v_mul_f32 {vr(o_(T, 8) + k)}, {vr(o_(T, 8) + k)}, {vr(tmp)}')
        else:
            a.I(f's_mov_b32 {sr(sRS)}, 1')
        if canfirst: a.label(lb)
    for jl in range(2):
        a.label(f'k1_rare{jl}')
        for T in range(2): rare(T, [s_(T, jl) + k for k in range(8)], sCL, jl == 0)
        a.I(f's_mov_b32 {sr(sTHR)}, {THRV}')
        a.I(f's_mov_b32 {sr(sCL)}, 0')
        a.I(f's_setpc_b64 {sr(sLINK, 2)}')
    a.label('k1_rare8')
    rare(2, [s_(2, 0) + k for k in range(8)], sCL8, True)
    a.I(f's_mov_b32 {sr(sTHR8)}, {THRV}')
    a.I(f's_mov_b32 {sr(sCL8)}, 0')
    a.I(f's_setpc_b64 {sr(sLINK, 2)}')
    a.label('k1_early')
    K.early()
    a.I(f's_setpc_b64 {sr(sLINK, 2)}')
    a.label('k1_rescale')
    for T in range(2):
        for k in range(36): a.I(f'v_mul_f32 {vr(o_(T, 8) + k)}, {vr(o_(T, 8) + k)}, {vr(FREG[T])}')
    a.I(f's_mov_b32 {sr(sRS)}, 0')
    a.I(f's_setpc_b64 {sr(sLINK, 2)}')
    a.auto = True

    a.label('k1_finH')
    final(True)
    a.I('s_branch k1_epi')
    pos = len(a.ins)
    a.label('k1_finL')
    final(False)
    tailcode = a.ins[pos:]; del a.ins[pos:]
    for lb, fn in stubs:
        a.label(lb + '_s')
        a.raw(f's_call_b64 {sr(sLINK, 2)}, {fn}')
        a.raw(f's_branch {lb}')
    a.ins += tailcode
    a.label('k1_epi')
    a.lg = []
    st.cyc()
    e0, e1, e2, e3, e4 = 3, 4, 5, 6, 8
    NM8 = negm(2)
    a.lg = [set()]
    a.I(f'v_lshlrev_b32 {vr(e0)}, 4, v0')
    a.I(f's_lshl_b32 s3, {sr(sHH)}, 11')
    a.I(f'v_lshl_add_u32 {vr(e2)}, v0, 3, s3')
    a.I(f's_lshl_b32 s6, {sr(sR)}, 13')
    a.I('s_add_u32 s6, s6, s5')
    a.I(f's_cmp_ge_u32 {sr(sR)}, 2')
    a.I('s_cselect_b32 s13, s13, 0')
    a.I('s_add_u32 s6, s6, s13')
    a.I(f'v_add_u32 {vr(e1)}, s6, {vr(e0)}')
    R8 = S
    a.I('s_waitcnt lgkmcnt(0)')
    a.I('s_barrier')
    for sl in range(4): a.I(f'ds_read_b64 {vr(R8 + 32 + 2 * sl, 2)}, {vr(e2)} offset:{sl * 512}')
    for k in range(8): a.I(f'ds_read_b128 {vr(R8 + 4 * k, 4)}, {vr(e1)} offset:{k * 1024}')
    dbg_srd(sK)
    a.I('v_mov_b32 v10, 0')
    a.I(f'buffer_load_dword v1, v10, {sr(sK, 4)}, 0 offen sc1')
    a.I('s_load_dwordx2 s[10:11], s[0:1], 80')
    sOO = sV
    a.I(f's_lshl_b32 s3, {sr(sBLK)}, 3')
    a.I(f's_add_u32 s3, s3, {sr(sB)}')
    a.I(f's_mul_i32 s3, s3, {O_SLICE}')
    a.I(f's_mul_i32 s6, {sr(sHP)}, 73728')
    a.I('s_add_u32 s3, s3, s6')
    a.I(f's_add_u32 {sr(sOO)}, s16, s3')
    a.I(f's_addc_u32 {sr(sOO + 1)}, s17, 0')
    a.I(f's_mov_b32 {sr(sOO + 2)}, 73728')
    a.I(f's_mov_b32 {sr(sOO + 3)}, 0x20000')
    a.I(f's_mul_i32 s3, {sr(sHH)}, 36864')
    a.I(f'v_add_u32 {vr(e3)}, s4, {vr(e0)}')
    def fin(src, scale2, voff, soff, imm):
        for k in range(4): a.I(f'v_pk_mul_f32 {vr(src + 2 * k, 2)}, {vr(src + 2 * k, 2)}, {vr(scale2, 2)}')
        for k in range(4): a.I(f'v_cvt_pk_bf16_f32 {vr(src + k)}, {vr(src + 2 * k)}, {vr(src + 2 * k + 1)}')
        a.I(f'buffer_store_dwordx4 {vr(src, 4)}, {vr(voff)}, {sr(sOO, 4)}, {soff} offen offset:{imm}{NT("ont")}')
    for T in range(2):
        for k in range(2): a.I(f'v_rcp_f32 {vr(o_(T, 8) + k)}, {vr(o_(T, 8) + k)}')
    a.I(f's_add_u32 s6, s3, {K.XB}')
    a.I(f'v_add_u32 {vr(e1)}, s6, {vr(e3)}')
    a.I('s_mov_b32 s6, s3')
    def xw(P): return [f'ds_write_b128 {vr(e1)}, {vr(o_(T, 2 * P), 4)} offset:{P * 9216 + T * 1024}' for T in range(2)]
    for P in range(4):
        for T in range(2): fin(o_(T, 2 * P), o_(T, 8), e3, 's6', T * 1024)
        if P < 3: a.I('s_add_u32 s6, s6, 9216')
        if P == OPT['b2at']:
            a.I('s_waitcnt lgkmcnt(0)')
            a.I('s_barrier')
            for Q_ in range(P): a.many(xw(Q_))
        if P >= OPT['b2at']: a.many(xw(P))
    flag_srd(sO)
    K.ids()
    a.I(f's_mul_i32 s6, {sr(sR)}, 9216')
    a.I('s_add_u32 s6, s6, s3')
    a.I(f'v_add_u32 {vr(e3)}, 8192, {vr(e0)}')
    nm = [R8 + 32 + 2 * i for i in range(4)]
    ll = [R8 + 33 + 2 * i for i in range(4)]
    a.I(f'v_min3_f32 {vr(e0)}, {vr(nm[0])}, {vr(nm[1])}, {vr(nm[2])}')
    a.I(f'v_min_f32 {vr(e0)}, {vr(e0)}, {vr(nm[3])}')
    for i in range(4): a.I(f'v_sub_f32 {vr(nm[i])}, {vr(e0)}, {vr(nm[i])}')
    for i in range(4): a.I(f'v_exp_f32 {vr(nm[i])}, {vr(nm[i])}')
    a.I(f'v_mul_f32 {vr(e0)}, {vr(ll[0])}, {vr(nm[0])}')
    for i in range(1, 4): a.I(f'v_fmac_f32 {vr(e0)}, {vr(ll[i])}, {vr(nm[i])}')
    a.I(f'v_rcp_f32 {vr(e4)}, {vr(e0)}')
    a.I(f'v_rcp_f32 {vr(e4 + 1)}, {vr(e0)}')
    for k in range(8): a.I(f'v_mul_f32 {vr(R8 + k)}, {vr(R8 + k)}, {vr(nm[0])}')
    for i in range(1, 4):
        for k in range(8): a.I(f'v_fmac_f32 {vr(R8 + k)}, {vr(R8 + 8 * i + k)}, {vr(nm[i])}')
    fin(R8, e4, e3, 's6', 0)
    a.I(f's_add_u32 s6, s6, {K.XB}')
    a.I(f'v_add_u32 {vr(e3)}, s6, {vr(e3)}')
    a.I(f'ds_write_b128 {vr(e3)}, {vr(R8, 4)}')
    if OPT['stamp'] == 3: st.n = 12
    else: st.cyc(); st.real()
    K.st1 = st
    if OPT.get('qst'): st.on = True
    return K.main()

class K2:
    sO, sW, sD, sE, sF = 20, 24, 28, 32, 36
    sWAVE, sR, sLD, sBLK, sB, sHP, sN8, sKH, sKC = 40, 41, 42, 43, 44, 45, 67, 64, 62
    sM0W, sM0X, sOW, sOX, sSL, sCNT, sT0, sST, sROT, sH, sNH, sKS = 55, 48, 49, 50, 51, 52, 53, 54, 65, 56, 57, 58
    sSTX, sFO, sPC, sHPc = 59, 60, 61, 66
    sRW, sRX, sWB, sXB, sWEX = 68, 72, 54, 59, 8
    sLINK = 8
    vWp, vX, vL16, vFA, vFV, vDW, vDX = 12, 14, 16, 17, 18, 28, 32
    g, t0, t1, t2 = 19, 20, 21, 22
    ACC, XF, WF, TMP = 112, 76, 60, 184
    XB = 81920
    @staticmethod
    def wslot(i): return 16384 + ((i + 1) & 3) * 16384
    def __init__(self, a):
        self.a = a; self.st = Stamper(a, 1)
    def early(self):
        a = self.a; K = self
        sW, sR = K.sW, K.sR
        t0, t1 = 36, 37
        a.I(f's_lshr_b32 s12, {sr(sR)}, 1')
        a.I(f's_xor_b32 {sr(K.sH)}, {sr(sR)}, s12')
        a.I(f's_and_b32 {sr(K.sH)}, {sr(K.sH)}, 1')
        a.I(f's_lshl_b32 {sr(K.sH)}, {sr(K.sH)}, 1')
        a.I(f's_or_b32 {sr(K.sH)}, {sr(K.sH)}, s12')
        a.I(f'v_and_b32 {vr(t0)}, 7, v0')
        a.I(f'v_xor_b32 {vr(t0)}, {sr(K.sH)}, {vr(t0)}')
        a.I(f'v_bfe_u32 {vr(t1)}, v0, 4, 1')
        a.I(f'v_lshlrev_b32 {vr(t1)}, 2, {vr(t1)}')
        a.I(f'v_xor_b32 {vr(t0)}, {vr(t0)}, {vr(t1)}')
        a.I(f'v_lshlrev_b32 {vr(t0)}, 4, {vr(t0)}')
        a.I(f'v_lshrrev_b32 {vr(t1)}, 5, v0')
        a.I(f'v_lshl_add_u32 {vr(t0)}, {vr(t1)}, 7, {vr(t0)}')
        a.I(f'v_bfe_u32 {vr(t1)}, v0, 3, 2')
        a.I(f's_lshl_b32 s12, {sr(sR)}, 2')
        a.I(f'v_add_u32 {vr(t1)}, s12, {vr(t1)}')
        a.I(f'v_lshl_add_u32 {vr(K.vDW)}, {vr(t1)}, 11, {vr(t0)}')
        a.I(f's_lshl_b32 {sr(K.sM0W)}, {sr(sR)}, 12')
        for tq in range(1, 4): a.I(f'v_add_u32 {vr(K.vDW + tq)}, {tq * (32768 - 1024)}, {vr(K.vDW)}')
        a.I(f's_lshl_b32 {sr(K.sWB)}, {sr(K.sHP)}, 19')
        a.I(f's_mov_b64 {sr(K.sWEX, 2)}, -1')
        a.I(f's_lshr_b32 s12, {sr(K.sHP)}, 1')
        a.I(f's_lshl_b32 s12, s12, 8')
        a.I(f's_add_u32 {sr(sW)}, s18, s12')
        a.I(f's_addc_u32 {sr(sW + 1)}, s19, 0')
        a.I(f's_sub_u32 {sr(sW + 2)}, 8388608, s12')
        a.I(f's_mov_b32 {sr(sW + 3)}, 0x20000')
        for i in range(3): K.stw(i, own=True)
    def ids(self):
        a = self.a; K = self
        a.I(f's_and_b32 {sr(K.sKH)}, {sr(K.sHP)}, 1')
        a.I(f's_lshr_b32 {sr(K.sN8)}, {sr(K.sHP)}, 1')
        a.I(f'v_lshlrev_b32 {vr(K.vL16)}, 4, v0')
    def late(self):
        a = self.a; K = self
        sO, sR, sB, sBLK = K.sO, K.sR, K.sB, K.sBLK
        a.I(f's_lshr_b32 s12, {sr(K.sHP)}, 2')
        a.I(f's_add_u32 {sr(K.sROT)}, {sr(sB)}, s12')
        a.I(f'v_add_u32 {vr(K.vDX)}, {sr(K.sM0W)}, {vr(K.vL16)}')
        a.I(f's_lshl_b32 {sr(K.sM0X)}, {sr(sR)}, 10')
        a.I(f's_add_u32 {sr(K.sM0X)}, {sr(K.sM0X)}, 16384')
        a.I(f'v_add_u32 {vr(K.vDX + 1)}, {sr(K.sM0X)}, {vr(K.vL16)}')
        for i in range(4):
            a.I(f's_add_u32 s12, {sr(K.sROT)}, {i}')
            a.I('s_and_b32 s12, s12, 3')
            a.I(f's_lshl_b32 {sr(K.sRW + i)}, s12, 17')
            a.I(f's_mul_i32 {sr(K.sRX + i)}, s12, 18432')
        a.I(f's_mov_b32 {sr(K.sKC)}, -1')
        a.I(f's_lshl_b32 s12, {sr(sBLK)}, 3')
        a.I(f's_add_u32 s12, s12, {sr(sB)}')
        a.I(f's_lshl_b32 {sr(K.sFO)}, s12, 11')
        a.I(f's_add_u32 {sr(K.sFO)}, {sr(K.sFO)}, 65536')
        a.I(f's_mul_i32 s12, s12, {O_SLICE}')
        a.I(f's_add_u32 {sr(sO)}, s16, s12')
        a.I(f's_addc_u32 {sr(sO + 1)}, s17, 0')
        a.I(f's_mov_b32 {sr(sO + 2)}, {O_SLICE}')
        a.I(f's_mov_b32 {sr(sO + 3)}, 0x20000')
        a.I(f'v_and_b32 {vr(K.vFA)}, 15, v0')
        a.I(f'v_lshlrev_b32 {vr(K.vFA)}, 7, {vr(K.vFA)}')
        a.I(f's_lshl_b32 s4, {sr(K.sHP)}, 7')
        a.I(f's_add_u32 s4, s4, {sr(K.sFO)}')
        a.I('v_mov_b32 v11, 1')
        a.I(f'v_mov_b32 {vr(K.vFV)}, 0')
    def stw(self, i, own=False):
        a = self.a; K = self
        a.I(f's_add_u32 m0, {sr(K.sM0W)}, {K.wslot(i)}')
        a.I(f's_add_u32 {sr(K.sOW)}, {sr(K.sWB)}, {i * 131072 if own else sr(K.sRW + i)}')
        a.I(f's_mov_b64 exec, {sr(K.sWEX, 2)}')
        for tq in range(4): a.I(f'buffer_load_dwordx4 {vr(K.vDW + tq)}, {sr(K.sW, 4)}, {sr(K.sOW)} offen offset:{tq * 1024}{NT("wont")} lds')
        a.I('s_mov_b64 exec, -1')
    def stx(self, i):
        a = self.a; K = self
        lb = a.newlabel('k2_skipx')
        a.I(f's_add_u32 m0, {sr(K.sM0W)}, {K.XB + i * 18432}')
        a.I(f's_add_u32 {sr(K.sOX)}, {sr(K.sXB)}, {sr(K.sRX + i)}')
        for j in range(4): a.I(f'buffer_load_dwordx4 {vr(K.vDX)}, {sr(K.sO, 4)}, {sr(K.sOX)} offen offset:{j * 1024}{NT("oldf")} lds')
        a.I(f's_add_u32 m0, {sr(K.sM0X)}, {K.XB + i * 18432}')
        a.I(f's_cmp_ge_u32 {sr(K.sR)}, 2')
        a.I(f's_cbranch_scc1 {lb}')
        a.I(f'buffer_load_dwordx4 {vr(K.vDX + 1)}, {sr(K.sO, 4)}, {sr(K.sOX)} offen{NT("oldf")} lds')
        a.label(lb)
    def ready(self):
        a = self.a; K = self
        l1, l2 = a.newlabel('k2_chk'), a.newlabel('k2_go')
        a.I(f's_mov_b32 {sr(K.sPC)}, 0')
        a.label(l1)
        a.I(f'v_cmp_eq_u32 vcc, 1, {vr(K.vFV)}')
        a.I(f's_bitcmp1_b32 vcc_lo, {sr(K.sHPc)}')
        a.I(f's_cbranch_scc1 {l2} ; TAKEN')
        a.I(K.flagload())
        a.I(f's_add_u32 {sr(K.sPC)}, {sr(K.sPC)}, 1')
        a.I('s_waitcnt vmcnt(0)')
        a.I(f's_cmp_lt_u32 {sr(K.sPC)}, {OPT["pollmax"]}')
        a.I(f's_cbranch_scc1 {l1}')
        a.label(l2)
    def fl1(self, vt):
        n = self.st1.n; self.st1.flush(16, self.sWAVE, self.sW, vt); self.st1.n = n
    def nextseg(self):
        a = self.a; K = self
        a.I(f's_add_u32 {sr(K.sKC)}, {sr(K.sKC)}, 1')
        a.I(f's_cmp_eq_u32 {sr(K.sKC)}, {sr(K.sN8)}')
        a.I(f's_addc_u32 {sr(K.sKC)}, {sr(K.sKC)}, 0')
        a.I(f's_lshl_b32 {sr(K.sHPc)}, {sr(K.sKC)}, 1')
        a.I(f's_add_u32 {sr(K.sHPc)}, {sr(K.sHPc)}, {sr(K.sKH)}')
        a.I(f's_cmp_eq_u32 {sr(K.sN8)}, 7')
        a.I('s_cselect_b32 s12, 5, 7')
        a.I(f's_add_u32 s12, s12, {sr(K.sCNT)}')
        a.I(f's_sub_u32 s13, {sr(K.sKH)}, 1')
        a.I(f's_sub_u32 s14, 0, {sr(K.sKH)}')
        a.I(f's_cmp_ge_u32 {sr(K.sCNT)}, 7')
        a.I(f's_cselect_b32 {sr(K.sHPc)}, s12, {sr(K.sHPc)}')
        a.I(f's_cselect_b32 {sr(K.sWEX)}, s13, -1')
        a.I(f's_cselect_b32 {sr(K.sWEX + 1)}, s14, -1')
        a.I(f's_lshl_b32 {sr(K.sWB)}, {sr(K.sHPc)}, 19')
        a.I(f's_mul_i32 {sr(K.sXB)}, {sr(K.sHPc)}, 73728')
    def flagload(self): return f'buffer_load_dword {vr(self.vFV)}, {vr(self.vFA)}, {sr(self.sF, 4)}, {sr(self.sFO)} offen sc1 ; NOCHECK'
    def main(self):
        a = self.a; st = self.st; K = self
        MF = 'v_mfma_f32_16x16x32_bf16'
        sO, sW, sD, sE, sF, sR, sB, sN8, sKH, sBLK = K.sO, K.sW, K.sD, K.sE, K.sF, K.sR, K.sB, K.sN8, K.sKH, K.sBLK
        sOW, sOX, sSL, sCNT, sT0, sST, sSTX, sPC, sHPc, sNH, sKS = K.sOW, K.sOX, K.sSL, K.sCNT, K.sT0, K.sST, K.sSTX, K.sPC, K.sHPc, K.sNH, K.sKS
        vWp, vX, vDW, vL16, g, t0, t1, t2 = K.vWp, K.vX, K.vDW, K.vL16, K.g, K.t0, K.t1, K.t2
        ACC, XF, WF, TMP, XB = K.ACC, K.XF, K.WF, K.TMP, K.XB
        def acc(t, j): return ACC + (t * 2 + j) * 4
        st.real(); st.cyc()
        a.I(f's_cmp_eq_u32 {sr(K.sLD)}, 0')
        a.I('s_cbranch_scc1 k2_comp')
        if OPT['lprio']: a.I(f's_setprio {OPT["lprio"]}')
        K.stw(3, own=True)
        a.I('s_waitcnt vmcnt(13) lgkmcnt(0)')
        a.I('s_barrier')
        st0 = st.n
        st.cyc()
        K.late()
        a.I(f's_mov_b32 {sr(sCNT)}, 1')
        K.nextseg()
        PB = OPT['pubat']
        for i in range(3):
            if i == PB: a.I(f's_waitcnt vmcnt({4 * PB + 4})')
            if i == 2: a.I('s_waitcnt vmcnt(8)')
            a.I('s_barrier')
            if i == PB:
                a.I(f's_cmp_lg_u32 {sr(sR)}, 0')
                a.I('s_cbranch_scc1 k2_nopub')
                a.I('s_mov_b64 exec, 1')
                a.I(f'buffer_store_dword v11, v10, {sr(sF, 4)}, s4 offen sc1')
                a.I('s_mov_b64 exec, -1')
                a.label('k2_nopub')
            K.stw(i)
        a.I(f's_mov_b32 {sr(sPC)}, 0')
        a.I('s_movk_i32 s3, 0x100')
        a.label('k2_allin')
        a.I('v_cmp_le_u32 vcc, s3, v1')
        a.I('s_cbranch_vccnz k2_allok ; POLL')
        a.I(f'buffer_load_dword v1, v10, {sr(sD, 4)}, 0 offen sc1')
        a.I(f's_add_u32 {sr(sPC)}, {sr(sPC)}, 1')
        a.I('s_waitcnt vmcnt(0)')
        a.I(f's_cmp_lt_u32 {sr(sPC)}, {OPT["pollmax"]}')
        a.I('s_cbranch_scc1 k2_allin')
        a.label('k2_allok')
        K.ready()
        K.stx(0); K.stx(1); K.stx(2)
        a.I('s_waitcnt vmcnt(8)')
        a.I('s_barrier')
        a.I(K.flagload())
        K.stw(3); K.stx(3)
        a.I(f's_mov_b32 {sr(sCNT)}, 2')
        a.I('s_waitcnt vmcnt(12)')
        a.label('k2_lloop')
        K.nextseg()
        for i in range(4):
            a.I('s_waitcnt vmcnt(16)')
            a.I('s_barrier')
            K.stw(i)
            if i == 0: K.ready()
            if i == 1: a.I(K.flagload())
            K.stx(i)
        a.I(f's_add_u32 {sr(sCNT)}, {sr(sCNT)}, 1')
        a.I(f's_cmp_lt_u32 {sr(sCNT)}, 9')
        a.I('s_cbranch_scc1 k2_lloop')
        for nv in (16, 8, 0, 0):
            a.I(f's_waitcnt vmcnt({nv})')
            a.I('s_barrier')
        st.cyc(); st.cyc(); st.cyc(); st.cyc(); st.real()
        st.flush(16, K.sWAVE, sW, t1); K.fl1(t1)
        a.I('s_endpgm')
        a.label('k2_comp')
        st.n = st0
        a.lg = []
        a.I(f's_and_b32 {sr(sKS)}, {sr(sR)}, 1')
        a.I(f's_lshr_b32 {sr(sNH)}, {sr(sR)}, 1')
        a.I(f'v_lshrrev_b32 {vr(g)}, 4, v0')
        a.I(f'v_lshrrev_b32 {vr(t1)}, 1, {vr(g)}')
        a.I(f'v_xor_b32 {vr(t0)}, {vr(g)}, {vr(t1)}')
        a.I(f'v_and_b32 {vr(t0)}, 1, {vr(t0)}')
        a.I(f'v_lshl_or_b32 {vr(t0)}, {vr(t0)}, 1, {vr(t1)}')
        a.I(f'v_bfe_u32 {vr(t1)}, v0, 1, 1')
        a.I(f'v_xor_b32 {vr(t0)}, {vr(t0)}, {vr(t1)}')
        a.I(f'v_lshlrev_b32 {vr(t0)}, 4, {vr(t0)}')
        a.I(f'v_lshl_add_u32 {vr(t0)}, {vr(g)}, 12, {vr(t0)}')
        a.I(f'v_bfe_u32 {vr(t1)}, v0, 2, 2')
        a.I(f'v_lshl_add_u32 {vr(t0)}, {vr(t1)}, 7, {vr(t0)}')
        a.I(f'v_bfe_u32 {vr(t1)}, v0, 3, 1')
        a.I(f'v_xor_b32 {vr(t1)}, {sr(sKS)}, {vr(t1)}')
        a.I(f'v_lshl_add_u32 {vr(t0)}, {vr(t1)}, 6, {vr(t0)}')
        a.I(f'v_and_b32 {vr(t1)}, 1, v0')
        a.I(f'v_lshl_add_u32 {vr(t0)}, {vr(t1)}, 3, {vr(t0)}')
        a.I(f's_lshl_b32 s3, {sr(sNH)}, 9')
        a.I('s_add_u32 s3, s3, 16384')
        a.I(f'v_add_u32 {vr(vWp)}, s3, {vr(t0)}')
        a.I(f'v_xor_b32 {vr(vWp + 1)}, 32, {vr(vWp)}')
        a.I(f'v_add_u32 {vr(vX)}, {XB}, {vr(vL16)}')
        a.I(f'v_add_u32 {vr(vX + 1)}, {XB + 9216}, {vr(vL16)}')
        for i in range(0, 72, 2): a.I(f'v_mov_b64 {vr(ACC + i, 2)}, 0')
        a.I(f's_add_u32 {sr(sE)}, s16, {EXCH_OFF}')
        a.I(f's_addc_u32 {sr(sE + 1)}, s17, 0')
        a.I(f's_mov_b32 {sr(sE + 2)}, {256 * 36864}')
        a.I(f's_mov_b32 {sr(sE + 3)}, 0x20000')
        a.I(f's_mul_i32 s3, {sr(sB)}, {144 * 4096}')
        a.I(f's_add_u32 {sr(sD)}, s10, s3')
        a.I(f's_addc_u32 {sr(sD + 1)}, s11, 0')
        a.I(f's_mov_b32 {sr(sD + 2)}, {144 * 4096}')
        a.I(f's_mov_b32 {sr(sD + 3)}, 0x20000')
        a.I(f's_cmp_eq_u32 {sr(sNH)}, {sr(sKH)}')
        a.I('s_cselect_b32 s5, 1, 0')
        a.I(f's_cselect_b32 {sr(sPC)}, 9, 7')
        a.I('s_xor_b32 s3, s2, s5')
        a.I('s_lshl_b32 s3, s3, 1')
        a.I(f's_add_u32 s3, s3, {sr(sKS)}')
        a.I(f's_lshl_b32 {sr(sT0)}, s3, 7')
        a.I(f's_mul_i32 {sr(sOX)}, s3, 18432')
        a.I(f'v_mov_b32 {vr(t0)}, 0')
        a.I(f's_mov_b32 {sr(sSL)}, 0')
        FS = (24, 68)
        def reads(F, slot, ks):
            w = [f'ds_read_b64_tr_b16 {vr(F + 4 * j + 2 * h, 2)}, {vr(vWp + j)} offset:{K.wslot(slot) - 16384 + ks * 2048 + h * 1024}' for j in range(2) for h in range(2)]
            x = [f'ds_read_b128 {vr(F + 8 + 4 * t, 4)}, {vr(vX + ks)} offset:{slot * 18432 + t * 1024}' for t in range(9)]
            return w[:2] + x[:1] + w[2:] + x[1:]
        G2 = OPT['gate2']
        def kstep(Fc, Fn, nslot, nks, gated, vm=''):
            rd_ = reads(Fn, nslot, nks)
            if not gated: a.I(f's_waitcnt lgkmcnt({OPT["lw2"]})')
            k = 0
            for t in range(9):
                for j in range(2):
                    if gated and k == G2:
                        a.I(f's_waitcnt {vm}lgkmcnt(0)')
                        a.I('s_barrier')
                    if not gated and k == 6: a.I(f's_waitcnt lgkmcnt(6)')
                    a.I(f'{MF} {vr(acc(t, j), 4)}, {vr(Fc + 4 * j, 4)}, {vr(Fc + 8 + 4 * t, 4)}, {vr(acc(t, j), 4)}')
                    if k >= (G2 if gated else 0) and rd_: a.I(rd_.pop(0))
                    k += 1
            assert not rd_
        if OPT['cprio']: a.I(f's_setprio {OPT["cprio"]}')
        a.I('s_waitcnt lgkmcnt(0)')
        a.I('s_barrier')
        st.cyc()
        a.many(reads(FS[0], 0, 0))
        a.I(f's_mov_b32 {sr(sCNT)}, 0')
        lg0 = [set(x) for x in a.lg]
        a.label('k2_cloop')
        for i in range(4):
            if OPT['kpf'] and i in (OPT['kpf'] - 1, OPT['kpf']):
                a.I(f's_cmp_eq_u32 {sr(sCNT)}, 8')
                a.I(f's_cbranch_scc1 k2_e{i}')
                a.label(f'k2_r{i}')
            kstep(FS[0], FS[1], i, 1, False)
            kstep(FS[1], FS[0], (i + 1) & 3, 0, True, 'vmcnt(0) ' if i == OPT['pubat'] else '')
        assert [set(x) for x in a.lg] == lg0
        a.I(f's_add_u32 {sr(sCNT)}, {sr(sCNT)}, 1')
        a.I(f's_cmp_lt_u32 {sr(sCNT)}, {sr(sPC)}')
        a.I('s_cbranch_scc1 k2_cloop')
        st.cyc()
        XP = NT('xpol')
        a.I('s_cmp_eq_u32 s5, 1')
        a.I('s_cbranch_scc1 k2_keep')
        SB = {1: (8,), 2: (5, 11), 0: ()}[OPT['ssplit']]
        for k in range(18):
            a.I(f'buffer_store_dwordx4 {vr(ACC + 4 * k, 4)}, {vr(vL16)}, {sr(sE, 4)}, {sr(sOX)} offen offset:{(k & 3) * 1024}{XP}')
            if k & 3 == 3: a.I(f's_add_u32 {sr(sOX)}, {sr(sOX)}, 4096')
            if k in SB: a.I('s_barrier')
        stn = st.n
        st.cyc()
        for _ in range(OPT['sbar']): a.I('s_barrier')
        a.I(f'v_mov_b32 {vr(t1)}, 1')
        a.I('s_mov_b64 exec, 1')
        a.I('s_waitcnt vmcnt(0)')
        st.cyc()
        a.I(f'buffer_store_dword {vr(t1)}, {vr(t0)}, {sr(sF, 4)}, {sr(sT0)} offen{XP}')
        a.I('s_mov_b64 exec, -1')
        for _ in range(8 - len(SB) - OPT['sbar']): a.I('s_barrier')
        st.cyc(); st.real()
        st.flush(16, K.sWAVE, sW, t1); K.fl1(t1)
        a.I('s_endpgm')
        def xloads():
            for k in range(18):
                a.I(f'buffer_load_dwordx4 {vr(TMP + 4 * k, 4)}, {vr(vL16)}, {sr(sE, 4)}, {sr(sOX)} offen offset:{(k & 3) * 1024}{XP}')
                if k & 3 == 3: a.I(f's_add_u32 {sr(sOX)}, {sr(sOX)}, 4096')
        if OPT['kpf']:
            a.auto = False
            i = OPT['kpf']
            a.label(f'k2_e{i - 1}')
            a.I(f'buffer_load_dword {vr(t1)}, {vr(t0)}, {sr(sF, 4)}, {sr(sT0)} offen{XP}')
            a.I(f's_branch k2_r{i - 1}')
            a.label(f'k2_e{i}')
            a.I('s_waitcnt vmcnt(0)')
            a.I(f'v_cmp_eq_u32 vcc, 1, {vr(t1)}')
            a.I(f's_cbranch_vccz k2_r{i}')
            xloads()
            a.I(f's_mov_b32 {sr(sSL)}, 1')
            a.I(f's_branch k2_r{i}')
            a.auto = True
        a.label('k2_keep')
        st.n = stn
        a.I(f's_mov_b32 {sr(sCNT)}, 0')
        st.cyc()
        a.I(f's_cmp_eq_u32 {sr(sSL)}, 1')
        a.I('s_cbranch_scc1 k2_have')
        a.label('k2_poll')
        a.I(f'buffer_load_dword {vr(t1)}, {vr(t0)}, {sr(sF, 4)}, {sr(sT0)} offen{XP}')
        a.I(f's_add_u32 {sr(sCNT)}, {sr(sCNT)}, 1')
        a.I('s_waitcnt vmcnt(0)')
        a.I(f'v_cmp_eq_u32 vcc, 1, {vr(t1)}')
        a.I('s_cbranch_vccnz k2_got ; POLL')
        a.I(f's_cmp_lt_u32 {sr(sCNT)}, {OPT["pollmax"]}')
        a.I('s_cbranch_scc1 k2_poll')
        a.label('k2_got')
        xloads()
        a.label('k2_have')
        st.cyc()
        a.I(f'v_and_b32 {vr(t2)}, 15, v0')
        a.I(f'v_lshlrev_b32 {vr(t2)}, 12, {vr(t2)}')
        a.I(f'v_lshl_add_u32 {vr(t2)}, {vr(g)}, 4, {vr(t2)}')
        a.I(f's_lshl_b32 s3, {sr(sBLK)}, 11')
        a.I(f's_lshl_b32 s4, {sr(sN8)}, 8')
        a.I('s_add_u32 s3, s3, s4')
        a.I(f's_lshl_b32 s4, {sr(sR)}, 6')
        a.I('s_add_u32 s3, s3, s4')
        for t in range(9):
            a.I(f's_waitcnt vmcnt({16 - t})')
            d = acc(t, 0)
            for k in range(4): a.I(f'v_pk_add_f32 {vr(d + 2 * k, 2)}, {vr(d + 2 * k, 2)}, {vr(TMP + 8 * t + 2 * k, 2)}')
            for k in range(4): a.I(f'v_cvt_pk_bf16_f32 {vr(d + k)}, {vr(d + 2 * k)}, {vr(d + 2 * k + 1)}')
            for mn in ('v_permlane32_swap_b32', 'v_permlane16_swap_b32'):
                for k in range(2): a.I(f'{mn} {vr(d + k)}, {vr(d + 2 + k)}')
            a.I(f'buffer_store_dwordx4 {vr(d, 4)}, {vr(t2)}, {sr(sD, 4)}, s3 offen{NT("outp")}')
            a.I('s_add_u32 s3, s3, 65536')
        st.cyc(); st.real()
        st.flush(16, K.sWAVE, sW, t0); K.fl1(t0)
        a.label('k1_end')
        a.raw('s_endpgm')
        return a

HEADER = open(f'cdna_kernels/{NAME}.s.ref').read().split('; Override launch')[0]
def kd(name, vg, sg=102):
    return f'''.amdhsa_kernel {name}
  .amdhsa_next_free_vgpr {vg}
  .amdhsa_next_free_sgpr {sg}
  .amdhsa_accum_offset {(min(vg, 256) + 3) // 4 * 4}
  .amdhsa_group_segment_fixed_size 0
  .amdhsa_kernarg_size 104
  .amdhsa_user_sgpr_count 2
  .amdhsa_user_sgpr_kernarg_segment_ptr 1
  .amdhsa_system_sgpr_workgroup_id_x 1
.end_amdhsa_kernel
'''
def main():
    ks = [('attn_kernel', gen_k1(), 256, 163840)]
    out = HEADER
    if OPT['fuse']:
        ks = [(NAME + '_kernel', ks[0][1], 256, 163840)]
        out += '; @launch grid=(256,1,1) block=(512,1,1) lds=163840\n'
    else:
        for nm, _, _, lds in ks:
            out += f'; @launch kernel={nm} grid=(256,1,1) block=(512,1,1) lds={lds}\n'
    out += '.amdgcn_target "amdgcn-amd-amdhsa--gfx950"\n.text\n'
    for nm, a, vg, lds in ks:
        if OPT.get('novm'):
            seen = False; keep = []
            for x in a.ins:
                if x.mn == 's_barrier': seen = True
                if x.label in ('k2_m1',): seen = False
                if x.label == 'k2_cloop': seen = False; OPT['_stop'] = 1
                if OPT.get('_stop'): seen = False
                if seen and x.mn == 'buffer_load_dwordx4': continue
                keep.append(x)
            a.ins = keep
        if OPT.get('nokv'): a.ins = [x for x in a.ins if not (x.kind == 'vmem' and x.mn == 'buffer_load_dwordx4' and not x.lds and 'nt' in x.mods)]
        if OPT.get('nomfma'): a.ins = [x for x in a.ins if x.kind != 'mfma']
        if OPT.get('nods'): a.ins = [x for x in a.ins if not (x.kind == 'ds' and 'read' in x.mn)]
        n = a.pad_hazards(verbose=bool(OPT.get('v')))
        errs = 0; nbs = set()
        for wave in range(8):
            for pol in (lambda i, x: 'POLL' in x.text, lambda i, x: True):
              for wgid in (3, 4, 5):
                tr = a.trace(wgid, wave, pol)
                e, nb = a.verify_waits(tr, quiet=(errs > 0 or bool(OPT.get('novm')) or OPT['stamp'] == 4)); errs += e; nbs.add(nb)
        assert (len(nbs) == 1 or (len(nbs) == 2 and max(nbs) - min(nbs) == 7 - OPT['sbar'])) and (errs == 0 or OPT.get('novm') or OPT['stamp'] == 4), (nbs, errs)
        print(f'{nm}: {len(a.ins)} lines, nops added {n}, wait errors {errs}, barriers {nb}, trace len {len(tr)}', file=sys.stderr)
        out += f'.globl {nm}\n.p2align 8\n.type {nm},@function\n{nm}:\n' + a.text()
    out += '.section .rodata,"a"\n'
    for nm, a, vg, lds in ks:
        out += '.p2align 6\n' + kd(nm, vg)
    open(sys.argv[1], 'w').write(out)
main()
```

```python
import sys, math, struct
from asmlib import *

NAME = 'concat_heads__mha_block_cached__mha_block_cached__near_ridge'
OPT = dict(stamp=0, kvnt=1, wnt=0, xnt=0, ont=2, wont=0, oldnt=0, rot1=3, rot2=3, wopf=3, ord=1, desync=1, pre1=1, gate=2, cprio=1, tail=1, rotc=0, rhh=0, vfirst=1, hpmap=2, s2=1, fuse=1, grp=4, lin=0, gk=24, gv=32, fast1=1, xbf=0, kvl2=0, cvn=5, cvpk=1, kv0=0, kvs=3, lprio=0, whalf=0, offm=0, offsh=0, pubat=0, b2at=1, kpf=3, spread=1, gate2=0, lw2=4, sbar=3, ssplit=1, ntm=255, oldf=2, cpf=1, sy=4, nimm=3, aux0=0, auxs=4, pp=0, mv=0, mk=0, nwo=16, pfp=0, xpol=2, outp=0, pollmax=100000, qprio=1, rs0=10, rs1=13, stag=1, aprio=1, pS=0, pM=0, pV=0, smfirst=0)
for a in sys.argv[2:]:
    k, v = a.split('='); OPT[k] = int(v) if v.lstrip('-').isdigit() else v

def fbits(x): return '0x%08x' % struct.unpack('<I', struct.pack('<f', x))[0]
NT = lambda k: {0: '', 1: ' nt', 2: ' sc1', 3: ' sc0 sc1', 4: ' sc1 nt'}[OPT[k]]
APOL = lambda kind, j: ' nt' if (OPT['ntm'] >> (j + (4 if kind == 'V' else 0))) & 1 else ''
THRV = '0x7f800000' if OPT.get('novm') else fbits(8.0)
O_SLICE = 128 * 9216
STAMP_OFF = 64 << 20
EXCH_OFF = 32 << 20
FLAG_OFF = 48 << 20

class Stamper:
    def __init__(self, a, region):
        self.a = a; self.n = 0; self.region = region
        self.on = OPT.get('sreg', 0) == region or OPT['stamp'] == 5
    def real(self):
        if not self.on: return
        if OPT['stamp'] == 5:
            if self.region == 0 and not self.n: self.a.I('s_memrealtime s[76:77]'); self.n = 1
            return
        if OPT['stamp'] == 4 and self.n: return
        if OPT['stamp']:
            self.a.I(f's_memrealtime {sr(76 + 2 * self.n, 2)}'); self.n += 1
    def cyc(self):
        if not self.on: return
        if OPT['stamp'] == 5: return
        if OPT['stamp'] == 4:
            self.a.raw('s_waitcnt lgkmcnt(0)'); self.sh(); return
        if OPT['stamp']:
            self.a.I(f's_memtime {sr(76 + 2 * self.n, 2)}'); self.n += 1
    def sh(self):
        if not self.on: return
        if OPT['stamp'] == 4:
            for i in range(13): self.a.raw(f's_mov_b32 s{80 + i}, s{81 + i}')
            self.a.raw('s_mov_b32 s93, s98')
            self.a.raw('s_memtime s[98:99]')
    def flush(self, s_ws, s_wave, srd, vt):
        if not OPT['stamp'] or not self.on: return
        a = self.a
        if OPT['stamp'] == 5:
            if self.region == 0: return
            a.I('s_memrealtime s[78:79]'); self.n = 2
            if OPT.get('dbgspan'):
                lb = a.newlabel('dbgskip')
                a.I('s_waitcnt vmcnt(0) lgkmcnt(0)')
                a.I('s_and_b32 s3, s2, 9')
                a.I(f's_or_b32 s3, s3, {sr(s_wave)}')
                a.I('s_cmp_lg_u32 s3, 0')
                a.I(f's_cbranch_scc1 {lb}')
                a.I(f's_mov_b32 {sr(srd)}, s100'); a.I(f's_mov_b32 {sr(srd + 1)}, s101'); a.I(f's_mov_b32 {sr(srd + 2)}, 256'); a.I(f's_mov_b32 {sr(srd + 3)}, 0x20000')
                a.I('s_not_b32 s76, s76')
                a.I('s_mov_b64 exec, 1')
                a.I(f'v_mov_b32 {vr(vt)}, 0'); a.I(f'v_mov_b32 {vr(vt + 1)}, s78')
                a.I(f'buffer_atomic_umax {vr(vt + 1)}, {vr(vt)}, {sr(srd, 4)}, 0 offen offset:16 sc1')
                a.I('s_nop 1')
                a.I(f'v_mov_b32 {vr(vt + 1)}, s76')
                a.I(f'buffer_atomic_umax {vr(vt + 1)}, {vr(vt)}, {sr(srd, 4)}, 0 offen offset:20 sc1')
                a.I('s_not_b32 s76, s76')
                a.I('s_nop 1')
                a.I(f'v_mov_b32 {vr(vt + 1)}, s76')
                a.I(f'buffer_atomic_umax {vr(vt + 1)}, {vr(vt)}, {sr(srd, 4)}, 0 offen offset:24 sc1')
                a.label(lb)
                return
        regs = [76 + 2 * i for i in range(self.n)]
        if OPT['stamp'] == 4:
            regs = [76] + list(range(81, 94)) + [98]; keepn = self.n; self.n = 0
        assert self.n <= 12
        a.I('s_waitcnt vmcnt(0) lgkmcnt(0)')
        a.I(f's_add_u32 {sr(srd)}, {sr(s_ws)}, {STAMP_OFF + self.region * (1 << 20)}')
        a.I(f's_addc_u32 {sr(srd + 1)}, {sr(s_ws + 1)}, 0')
        a.I(f's_mov_b32 {sr(srd + 2)}, {1 << 20}')
        a.I(f's_mov_b32 {sr(srd + 3)}, 0x20000')
        a.I(f's_lshl_b32 s3, s2, 3')
        a.I(f's_add_u32 s3, s3, {sr(s_wave)}')
        a.I(f's_lshl_b32 s3, s3, 6')
        a.I(f'v_mov_b32 {vr(vt)}, 0')
        a.I(f'v_mov_b32 {vr(vt + 1)}, {self.n}')
        a.I(f'buffer_store_dword {vr(vt + 1)}, {vr(vt)}, {sr(srd, 4)}, s3 offen offset:60')
        a.I('s_nop 1')
        for i in range(len(regs)):
            a.I(f'v_mov_b32 {vr(vt + 1)}, {sr(regs[i])}')
            a.I(f'buffer_store_dword {vr(vt + 1)}, {vr(vt)}, {sr(srd, 4)}, s3 offen offset:{4 * i}')
            a.I('s_nop 1')
        if OPT['stamp'] == 4: self.n = keepn

def gen_k1():
    a = Asm()
    st = Stamper(a, 0)
    MF = 'v_mfma_f32_16x16x32_bf16'
    sX, sW, sK, sV, sO = 20, 24, 28, 32, 36
    sWAVE, sR, sHH, sBLK, sB, sHP = 40, 41, 42, 43, 44, 45
    sM0W, sM0X, sOW, sOX, sLOOSE, sNEXT, sKVI = 46, 47, 48, 49, 50, 51, 52
    sSLW, sSLX = 53, 54
    sCNT, sT0, sT1 = 55, 56, 57
    sKP, sVP, sM0A, sDK, sDV, sOV, sOK = 58, 59, 60, 62, 63, 64, 65
    sTHR, sTHR8, sCL, sCL8 = 66, 67, 68, 69
    sC = 70
    sKPo, sVPo = 72, 73
    sST, sROT = 74, 75
    sLINK = 6
    sH = 61
    sPFO, sMK, sMV = 48, 50, 51
    sJ = 47
    sRS, sRC = 46, 61
    vKa, vVa, vD = 1, 3, 7
    mx, mx8, tA, tB = 8, 9, 10, 11
    ONES, NEGM, Q, S, POOL, O = 12, 16, 28, 76, 116, 148
    ACC, XF, WF = 112, 76, 44
    XB, QB = 49152, 49152
    HB1 = 114688
    def acc(t, j): return ACC + (t * 4 + j) * 4
    def o_(T, d): return O + (T * 9 + (d + 1) % 9) * 4
    JUNK = O + 3
    def q_(T, k): return Q + (T * 4 + k) * 4
    def s_(T, j, tt=0): return S + (T * 2 + j) * 8 + tt * 4 if T < 2 else S + 32 + tt * 4
    def negm(T): return NEGM + 4 * T
    kvreg = {'K0': 160, 'V0': 192, 'K1': 76, 'V1': 108}
    g, n, t0, t1, t2, t3 = 12, 13, 14, 15, 16, 17

    def hfun(dst, src, tmp):
        a.I(f'v_lshrrev_b32 {vr(tmp)}, 1, {vr(src)}')
        a.I(f'v_xor_b32 {vr(dst)}, {vr(src)}, {vr(tmp)}')
        a.I(f'v_and_b32 {vr(dst)}, 1, {vr(dst)}')
        a.I(f'v_lshl_or_b32 {vr(dst)}, {vr(dst)}, 1, {vr(tmp)}')
    def tr_pattern(dst):
        a.I(f'v_lshrrev_b32 {vr(g)}, 4, v0')
        hfun(t0, g, t1)
        a.I(f'v_bfe_u32 {vr(t1)}, v0, 1, 1')
        a.I(f'v_xor_b32 {vr(t0)}, {vr(t0)}, {vr(t1)}')
        a.I(f'v_lshlrev_b32 {vr(t0)}, 4, {vr(t0)}')
        a.I(f'v_lshl_add_u32 {vr(t0)}, {vr(g)}, 12, {vr(t0)}')
        a.I(f'v_bfe_u32 {vr(t1)}, v0, 2, 2')
        a.I(f'v_lshl_add_u32 {vr(t0)}, {vr(t1)}, 7, {vr(t0)}')
        a.I(f'v_bfe_u32 {vr(t1)}, v0, 3, 1')
        a.I(f'v_lshl_add_u32 {vr(t0)}, {vr(t1)}, 6, {vr(t0)}')
        a.I(f'v_and_b32 {vr(t1)}, 1, v0')
        a.I(f'v_lshl_add_u32 {vr(dst)}, {vr(t1)}, 3, {vr(t0)}')

    a.raw('s_cmp_ge_u32 s2, 256')
    a.raw('s_cbranch_scc1 k1_end')
    st.real(); st.cyc()
    a.I('s_and_b32 s3, s2, 7')
    a.I('s_lshr_b32 s4, s2, 3')
    a.I(f's_lshr_b32 {sr(sBLK)}, s3, 2')
    a.I(f's_mul_i32 s5, {sr(sBLK)}, 40')
    a.I('s_load_dwordx8 s[8:15], s[0:1], s5')
    a.I('s_load_dwordx2 s[16:17], s[0:1], 96')
    a.I('s_add_u32 s5, s5, 32')
    a.I('s_load_dwordx2 s[18:19], s[0:1], s5')
    if OPT['fuse']: a.I('s_load_dwordx2 s[100:101], s[0:1], 88')
    a.I('s_and_b32 s5, s4, 3')
    a.I('s_lshl_b32 s6, s5, 1')
    a.I('s_add_u32 s3, s3, s6')
    a.I('s_and_b32 s3, s3, 3')
    a.I(f's_lshl_b32 {sr(sHP)}, s5, 2')
    a.I(f's_add_u32 {sr(sHP)}, {sr(sHP)}, s3')
    a.I(f's_lshr_b32 {sr(sB)}, s4, 2')
    a.I(f's_add_u32 {sr(sROT)}, {sr(sB)}, s5')
    a.I(f'v_lshrrev_b32 {vr(t0)}, 6, v0')
    a.I(f'v_readfirstlane_b32 {sr(sWAVE)}, {vr(t0)} ; WAVEID')
    a.I('v_and_b32 v0, 63, v0')
    a.I(f's_and_b32 {sr(sR)}, {sr(sWAVE)}, 3')
    a.I(f's_lshr_b32 {sr(sHH)}, {sr(sWAVE)}, 2')
    a.I(f's_lshr_b32 s3, {sr(sR)}, 1')
    a.I(f's_xor_b32 {sr(sH)}, {sr(sR)}, s3')
    a.I(f's_and_b32 {sr(sH)}, {sr(sH)}, 1')
    a.I(f's_lshl_b32 {sr(sH)}, {sr(sH)}, 1')
    a.I(f's_or_b32 {sr(sH)}, {sr(sH)}, s3')
    a.I(f'v_and_b32 {vr(t0)}, 7, v0')
    a.I(f'v_xor_b32 {vr(t0)}, {sr(sH)}, {vr(t0)}')
    a.I(f'v_bfe_u32 {vr(t1)}, v0, 4, 1')
    a.I(f'v_lshlrev_b32 {vr(t1)}, 2, {vr(t1)}')
    a.I(f'v_xor_b32 {vr(t0)}, {vr(t0)}, {vr(t1)}')
    a.I(f'v_lshlrev_b32 {vr(t0)}, 4, {vr(t0)}')
    a.I(f'v_lshrrev_b32 {vr(t1)}, 5, v0')
    a.I(f'v_lshl_add_u32 {vr(t0)}, {vr(t1)}, 7, {vr(t0)}')
    a.I(f'v_lshrrev_b32 {vr(g)}, 4, v0')
    a.I(f'v_bfe_u32 {vr(t1)}, v0, 3, 2')
    a.I(f's_lshl_b32 s3, {sr(sR)}, 4')
    a.I(f'v_add_u32 {vr(t1)}, s3, {vr(t1)}')
    a.I(f'v_lshl_add_u32 {vr(vD)}, {vr(t1)}, 8, {vr(t0)}')
    if OPT['lin']:
        a.I(f's_mul_i32 s3, {sr(sR)}, 3072')
        a.I(f'v_subrev_u32 {vr(vD)}, s3, {vr(vD)}')
    a.I(f's_lshl_b32 {sr(sM0W)}, {sr(sR)}, 12')
    def rest_setup():
        a.I(f's_mul_i32 {sr(sM0A)}, {sr(sHH)}, 81920')
        a.I(f's_add_u32 {sr(sM0A)}, {sr(sM0A)}, {sr(sM0W)}')
        a.I(f's_lshl_b32 s3, {sr(sB)}, 4')
        a.I(f's_add_u32 s3, s3, {sr(sHP)}')
        a.I('s_lshl_b32 s3, s3, 18')
        for (d, p) in ((sK, 10), (sV, 12)):
            a.I(f's_add_u32 {sr(d)}, {sr(p)}, s3')
            a.I(f's_addc_u32 {sr(d + 1)}, {sr(p + 1)}, 0')
            a.I(f's_mov_b32 {sr(d + 2)}, 262144')
            a.I(f's_mov_b32 {sr(d + 3)}, 0x20000')
    a.I(f's_cmp_eq_u32 {sr(sHH)}, 0')
    a.I('s_cbranch_scc1 k1_comp')

    def flag_srd(d):
        a.I(f's_add_u32 {sr(d)}, s16, {FLAG_OFF}')
        a.I(f's_addc_u32 {sr(d + 1)}, s17, 0')
        a.I(f's_mov_b32 {sr(d + 2)}, 98304')
        a.I(f's_mov_b32 {sr(d + 3)}, 0x20000')
    def dbg_srd(d):
        a.I(f's_mov_b32 {sr(d)}, s100')
        a.I(f's_mov_b32 {sr(d + 1)}, s101')
        a.I(f's_mov_b32 {sr(d + 2)}, 256')
        a.I(f's_mov_b32 {sr(d + 3)}, 0x20000')
    def oflag_off(d):
        a.I(f's_lshl_b32 {d}, {sr(sBLK)}, 3')
        a.I(f's_add_u32 {d}, {d}, {sr(sB)}')
        a.I(f's_lshl_b32 {d}, {d}, 4')
        a.I(f's_add_u32 {d}, {d}, {sr(sHP)}')
        a.I(f's_lshl_b32 {d}, {d}, 7')
        a.I(f's_add_u32 {d}, {d}, 65536')
    def wo_srd():
        a.I(f's_lshl_b32 s3, {sr(sB)}, 4')
        a.I(f's_add_u32 s3, s3, {sr(sHP)}')
        a.I('s_lshl_b32 s3, s3, 16')
        a.I(f's_add_u32 {sr(sX)}, s18, s3')
        a.I(f's_addc_u32 {sr(sX + 1)}, s19, 0')
        a.I(f's_mov_b32 {sr(sX + 2)}, 65536')
    vDW, vDX = 20, 24
    if OPT['lprio']: a.I(f's_setprio {OPT["lprio"]}')
    a.I(f'v_lshl_add_u32 {vr(vDW)}, {vr(t1)}, 13, {vr(t0)}')
    for tq in range(1, 4): a.I(f'v_add_u32 {vr(vDW + tq)}, {tq * (32768 - 1024)}, {vr(vDW)}')
    a.I(f's_lshr_b32 {sr(sST)}, s2, {OPT["offsh"]}')
    a.I(f's_and_b32 {sr(sST)}, {sr(sST)}, {OPT["offm"]}')
    a.I(f's_add_u32 {sr(sOX)}, {sr(sST)}, {sr(sROT)}')
    a.I(f's_and_b32 {sr(sOX)}, {sr(sOX)}, {OPT["rot1"]}')
    a.I(f's_lshl_b32 {sr(sOW)}, {sr(sOX)}, 19')
    a.I(f's_lshl_b32 s3, {sr(sHP)}, 9')
    a.I(f's_sub_u32 {sr(sW + 2)}, 8388608, s3')
    a.I(f's_mov_b32 {sr(sW + 3)}, 0x20000')
    a.I(f's_mov_b32 m0, {sr(sM0W)}')
    a.I('s_waitcnt lgkmcnt(0)')
    a.I(f's_add_u32 {sr(sW)}, s14, s3')
    a.I(f's_addc_u32 {sr(sW + 1)}, s15, 0')
    def wloads(hq):
        if OPT['whalf']:
            for tq in range(4): a.I(f'buffer_load_dwordx4 {vr(vDW + tq)}, {sr(sW, 4)}, {sr(sOW)} offen offset:{tq * 1024}{NT("wnt")} lds')
        else:
            for tq in range(4): a.I(f'buffer_load_dwordx4 {vr(vDW + tq)}, {sr(sW, 4)}, {sr(sOW)} offen offset:{tq * 1024 + hq * 256}{NT("wnt")} lds')
    sHA, sHB = 70, 71
    if OPT['whalf']:
        a.I(f's_lshr_b32 s4, {sr(sB)}, 2')
        a.I(f's_mul_i32 {sr(sHA)}, s4, {HB1}')
        a.I(f's_sub_u32 {sr(sHB)}, {HB1}, {sr(sHA)}')
        a.I(f's_add_u32 {sr(sHA)}, {sr(sHA)}, {sr(sM0W)}')
        a.I(f's_add_u32 {sr(sHB)}, {sr(sHB)}, {sr(sM0W)}')
        a.I(f's_lshl_b32 {sr(sKPo)}, s4, 8')
        a.I(f's_mov_b32 m0, {sr(sHA)}')
        a.I(f's_or_b32 {sr(sOW)}, {sr(sOW)}, {sr(sKPo)}')
    wloads(0)
    a.I(f's_mul_i32 s3, {sr(sB)}, 294912')
    if not OPT['whalf']:
        a.I(f's_add_u32 m0, {sr(sM0W)}, {HB1 - 256}')
        wloads(1)
    a.I(f's_add_u32 {sr(sX)}, s8, s3')
    a.I(f's_addc_u32 {sr(sX + 1)}, s9, 0')
    a.I(f's_mov_b32 {sr(sX + 2)}, 294912')
    a.I(f's_mov_b32 {sr(sX + 3)}, 0x20000')
    a.I(f'v_and_b32 {vr(t1)}, 2, {vr(g)}')
    a.I(f'v_lshlrev_b32 {vr(t1)}, 1, {vr(t1)}')
    a.I(f'v_xor_b32 {vr(t0)}, {vr(g)}, {vr(t1)}')
    a.I(f'v_and_b32 {vr(t1)}, 7, v0')
    a.I(f'v_xor_b32 {vr(t0)}, {vr(t0)}, {vr(t1)}')
    a.I(f'v_lshlrev_b32 {vr(t0)}, 4, {vr(t0)}')
    a.I(f'v_lshrrev_b32 {vr(t1)}, 3, v0')
    a.I(f'v_lshl_add_u32 {vr(t0)}, {vr(t1)}, 11, {vr(t0)}')
    a.I(f'v_xor_b32 {vr(t1)}, 64, {vr(t0)}')
    a.I(f's_lshl_b32 s3, {sr(sR)}, 16')
    for j in range(4):
        a.I(f'v_add_u32 {vr(vDX + j)}, s3, {vr((t0, t1)[j & 1])}')
        if j < 3: a.I(f's_add_u32 s3, s3, {16384 - 1024}')
    a.I(f's_lshl_b32 s3, {sr(sR)}, 6')
    a.I(f'v_xor_b32 {vr(t0)}, s3, {vr(t0)}')
    a.I(f's_lshl_b32 s3, {sr(sR)}, 14')
    a.I('s_add_u32 s3, s3, 262144')
    a.I(f'v_add_u32 {vr(vDX + 4)}, s3, {vr(t0)}')
    a.I(f's_lshl_b32 {sr(sM0X)}, {sr(sR)}, 10')
    a.I(f's_add_u32 {sr(sM0X)}, {sr(sM0X)}, {XB + 16384}')
    a.I(f's_add_u32 {sr(sST)}, {sr(sST)}, 1')
    a.I(f's_mov_b32 {sr(sSLW)}, 0')
    a.I(f's_mov_b32 {sr(sSLX)}, 0')
    def stage_w():
        R = OPT['rot1']
        a.many([f's_add_u32 {sr(sOX)}, {sr(sST)}, {sr(sROT)}',
                f's_and_b32 {sr(sOX)}, {sr(sOX)}, {R}',
                f's_and_b32 {sr(sOW)}, {sr(sST)}, {15 & ~R}',
                f's_or_b32 {sr(sOX)}, {sr(sOX)}, {sr(sOW)}',
                f's_add_u32 m0, {sr(sHA if OPT["whalf"] else sM0W)}, {sr(sSLW)}',
                f's_lshl_b32 {sr(sOW)}, {sr(sOX)}, 19',
                f's_add_u32 {sr(sST)}, {sr(sST)}, 1'])
        if OPT['whalf']: a.I(f's_or_b32 {sr(sOW)}, {sr(sOW)}, {sr(sKPo)}')
        wloads(0)
        if not OPT['whalf']:
            a.I(f's_add_u32 m0, m0, {HB1 - 256}')
            wloads(1)
    def stage_x():
        lb = a.newlabel('k1_skipx')
        a.I(f's_add_u32 {sr(sT0)}, {sr(sM0W)}, {sr(sSLX)}')
        a.I(f's_add_u32 m0, {sr(sT0)}, {XB}')
        a.I(f's_lshl_b32 {sr(sOX)}, {sr(sOX)}, 7')
        for j in range(4): a.I(f'buffer_load_dwordx4 {vr(vDX + j)}, {sr(sX, 4)}, {sr(sOX)} offen offset:{j * 1024}{NT("xnt")} lds')
        a.I(f's_add_u32 m0, {sr(sM0X)}, {sr(sSLX)}')
        a.I(f's_cmp_ge_u32 {sr(sR)}, 2')
        a.I(f's_cbranch_scc1 {lb}')
        a.I(f'buffer_load_dwordx4 {vr(vDX + 4)}, {sr(sX, 4)}, {sr(sOX)} offen{NT("xnt")} lds')
        a.label(lb)
        if OPT['whalf']:
            a.I(f's_add_u32 m0, {sr(sHB)}, {sr(sSLW)}')
            a.I(f's_xor_b32 {sr(sOW)}, {sr(sOW)}, 256')
            wloads(1)
        a.I(f's_add_u32 {sr(sSLW)}, {sr(sSLW)}, 16384')
        a.I(f's_add_u32 {sr(sSLX)}, {sr(sSLX)}, 18432')
        a.I(f's_cmp_eq_u32 {sr(sSLW)}, 49152')
        a.I(f's_cselect_b32 {sr(sSLW)}, 0, {sr(sSLW)}')
        a.I(f's_cselect_b32 {sr(sSLX)}, 0, {sr(sSLX)}')
    stage_x()
    rest_setup()
    if OPT['pre1']:
        stage_w()
        a.I(f's_waitcnt vmcnt({4 if OPT["whalf"] else 8})')
        a.I('s_barrier')
        stage_x()
    else:
        a.I('s_waitcnt vmcnt(0)')
        a.I('s_barrier')
        stage_w(); stage_x()
    st0 = st.n
    st.cyc()
    stage_w(); stage_x()
    a.I(f's_cmp_lg_u32 {sr(sR)}, 0')
    a.I('s_cbranch_scc1 k1_noreset')
    flag_srd(sO)
    oflag_off('s4')
    a.I('s_lshl_b32 s3, s2, 8')
    a.I(f'v_lshlrev_b32 {vr(t0)}, 2, v0')
    a.I(f'v_and_b32 {vr(t2)}, 127, {vr(t0)}')
    a.I(f'v_mov_b32 {vr(t1)}, 0')
    a.I(f'buffer_store_dword {vr(t1)}, {vr(t0)}, {sr(sO, 4)}, s3 offen sc1')
    a.I(f'buffer_store_dword {vr(t1)}, {vr(t2)}, {sr(sO, 4)}, s4 offen sc1')
    a.label('k1_noreset')
    if OPT['kvs'] == 3:
        a.I(f's_mul_i32 s3, s2, 171')
        a.I(f's_lshr_b32 s3, s3, 9')
        a.I(f's_mul_i32 s3, s3, 3')
        a.I(f's_sub_u32 {sr(sNEXT)}, s2, s3')
    else:
        a.I(f's_lshr_b32 s3, s2, 3')
        a.I(f's_and_b32 {sr(sNEXT)}, s3, 1')
    a.I(f's_add_u32 {sr(sNEXT)}, {sr(sNEXT)}, {OPT["kv0"]}')
    assert OPT['kv0'] + 4 * OPT['kvs'] - 1 <= 12
    a.I(f's_mov_b32 {sr(sLOOSE)}, 0')
    a.I(f's_mov_b32 {sr(sKVI)}, 0')
    a.I(f's_mov_b32 {sr(sCNT)}, 0')
    def lbar():
        lb = a.newlabel('k1_loose')
        a.I(f's_cmp_gt_i32 {sr(sLOOSE)}, 0')
        a.I(f's_cbranch_scc1 {lb}')
        a.I('s_waitcnt vmcnt(12)')
        a.label(lb)
        a.I(f's_sub_i32 {sr(sLOOSE)}, {sr(sLOOSE)}, 1')
        a.I('s_waitcnt vmcnt(20)')
        a.I('s_barrier')
        if OPT.get('qst'): st.cyc()
    a.label('k1_lloop')
    lbar()
    stage_w(); stage_x()
    a.I(f's_cmp_lg_u32 {sr(sCNT)}, {sr(sNEXT)}')
    a.I('s_cbranch_scc1 k1_kvdone')
    a.I(f's_add_u32 {sr(sNEXT)}, {sr(sNEXT)}, {OPT["kvs"]}')
    a.I(f's_add_u32 {sr(sKVI)}, {sr(sKVI)}, 1')
    for m, it in enumerate(('K0', 'V0', 'K1', 'V1')):
        a.I(f's_cmp_lg_u32 {sr(sKVI)}, {m + 1}')
        a.I(f's_cbranch_scc1 k1_kv{m + 1}')
        a.I(f's_mov_b32 {sr(sLOOSE)}, 2')
        for hq in range(2):
            a.I(f's_mov_b32 {sr(sT0)}, {int(it[1]) * 16384 + hq * 131072}')
            for j in range(4):
                a.I(f'buffer_load_dwordx4 {vr(kvreg[it] + 16 * hq + 4 * j, 4)}, {vr(vD)}, {sr(sK if it[0] == "K" else sV, 4)}, {sr(sT0)} offen offset:{j * 1024}{NT("kvnt") if (m < 2 or not OPT["kvl2"]) else ""}')
                if OPT['lin'] and j < 3: a.I(f's_add_u32 {sr(sT0)}, {sr(sT0)}, 3072')
        if m < 3: a.I('s_branch k1_kvdone')
        a.label(f'k1_kv{m + 1}')
    a.label('k1_kvdone')
    a.I(f's_add_u32 {sr(sCNT)}, {sr(sCNT)}, 1')
    a.I(f's_cmp_lt_u32 {sr(sCNT)}, 13')
    a.I('s_cbranch_scc1 k1_lloop')
    a.I(f's_add_u32 s3, {sr(sM0W)}, 16384')
    a.I(f'v_lshl_add_u32 {vr(tA)}, v0, 4, s3')
    a.I(f'v_add_u32 {vr(tB)}, {81920 + 32768}, {vr(tA)}')
    a.I(f'v_add_u32 {vr(mx)}, {81920 - 16384}, {vr(tA)}')
    def kvwrite(it, off, b1=tB, off1=None):
        for hq in range(2):
            o = off if (hq == 0 or off1 is None) else off1
            for j in range(4): a.I(f'ds_write_b128 {vr((tA, b1)[hq])}, {vr(kvreg[it] + 16 * hq + 4 * j, 4)} offset:{o + j * 1024}')
    lbar()
    npf = 0
    a.I(f'v_lshlrev_b32 {vr(t1)}, 4, v0')
    if OPT['cpf']:
        a.I(f's_getpc_b64 {sr(sO, 2)}')
        a.label('k1_pc')
        a.I(f's_mov_b32 {sr(sO + 2)}, k1_end-k1_pc')
        a.I(f's_mov_b32 {sr(sO + 3)}, 0x20000')
        a.I(f's_lshr_b32 s3, {sr(sHP)}, 2')
        a.I('s_lshl_b32 s3, s3, 2')
        a.I(f's_add_u32 s3, s3, {sr(sR)}')
        a.I('s_lshl_b32 s3, s3, 11')
        for k in range(2):
            a.I(f'buffer_load_dwordx4 v[228:231], {vr(t1)}, {sr(sO, 4)}, s3 offen offset:{k * 1024} ; NOCHECK')
            npf += 1
    if OPT['wopf'] == 3:
        wo_srd()
        a.I(f's_lshl_b32 {sr(sT0)}, {sr(sR)}, 14')
        for k in range(OPT['nwo']):
            a.I(f'buffer_load_dwordx4 v[224:227], {vr(t1)}, {sr(sX, 4)}, {sr(sT0)} offen offset:{(k & 3) * 1024} ; NOCHECK')
            if k & 3 == 3: a.I(f's_add_u32 {sr(sT0)}, {sr(sT0)}, 4096')
            npf += 1
            if k == 7: kvwrite('K0', 0); a.I(f's_waitcnt vmcnt({npf})'); a.I('s_barrier')
    else:
        kvwrite('K0', 0)
        a.I(f's_waitcnt vmcnt({npf})')
        a.I('s_barrier')
    kvwrite('V0', 16384)
    a.I('s_barrier')
    a.I('s_waitcnt vmcnt(0)')
    a.I(f's_cmp_lg_u32 {sr(sR)}, 0')
    a.I('s_cbranch_scc1 k1_nocount')
    dbg_srd(sO)
    a.I(f'v_mov_b32 {vr(t1)}, 0')
    a.I(f'v_mov_b32 {vr(t2)}, 1')
    a.I('s_mov_b64 exec, 1')
    a.I(f'buffer_atomic_add {vr(t2)}, {vr(t1)}, {sr(sO, 4)}, 0 offen sc1')
    a.I('s_mov_b64 exec, -1')
    a.label('k1_nocount')
    if OPT['lprio']: a.I('s_setprio 0')
    st.cyc()
    a.I('s_branch k1_join')

    a.label('k1_comp')
    a.lg = []
    st.n = st0
    vWp, vX, vQW = 1, 5, 8
    tr_pattern(vWp)
    a.I(f's_lshr_b32 s3, {sr(sR)}, 1')
    a.I(f's_mul_i32 s4, s3, {HB1}')
    a.I(f's_and_b32 s5, {sr(sR)}, 1')
    a.I('s_lshl_b32 s6, s5, 9')
    a.I('s_add_u32 s4, s4, s6')
    a.I(f'v_add_u32 {vr(vWp)}, s4, {vr(vWp)}')
    for j in range(1, 4): a.I(f'v_xor_b32 {vr(vWp + j)}, {32 * j}, {vr(vWp)}')
    a.I(f'v_and_b32 {vr(n)}, 15, v0')
    a.I(f'v_lshrrev_b32 {vr(t0)}, 1, {vr(n)}')
    a.I(f'v_and_b32 {vr(t1)}, 2, {vr(t0)}')
    a.I(f'v_lshlrev_b32 {vr(t1)}, 1, {vr(t1)}')
    a.I(f'v_xor_b32 {vr(t0)}, {vr(t0)}, {vr(t1)}')
    a.I(f'v_lshlrev_b32 {vr(t1)}, 1, {vr(g)}')
    a.I(f'v_xor_b32 {vr(t0)}, {vr(t0)}, {vr(t1)}')
    a.I(f'v_lshlrev_b32 {vr(t0)}, 4, {vr(t0)}')
    a.I(f'v_lshl_add_u32 {vr(t0)}, {vr(n)}, 7, {vr(t0)}')
    a.I(f'v_add_u32 {vr(vX)}, {XB}, {vr(t0)}')
    a.I(f'v_xor_b32 {vr(vX + 1)}, 16, {vr(vX)}')
    a.I(f's_mul_i32 s4, s3, 36864')
    a.I('s_lshl_b32 s6, s5, 11')
    a.I('s_add_u32 s4, s4, s6')
    a.I(f's_add_u32 s4, s4, {QB}')
    a.I(f'v_lshl_add_u32 {vr(t0)}, {vr(n)}, 4, s4')
    a.I(f'v_lshrrev_b32 {vr(t1)}, 1, {vr(g)}')
    a.I(f'v_lshl_add_u32 {vr(t0)}, {vr(t1)}, 8, {vr(t0)}')
    a.I(f'v_and_b32 {vr(t1)}, 1, {vr(g)}')
    a.I(f'v_lshl_add_u32 {vr(vQW)}, {vr(t1)}, 3, {vr(t0)}')
    a.I('s_waitcnt lgkmcnt(0)')
    rest_setup()
    cval = fbits(128 ** -0.5 * math.log2(math.e))
    a.I(f's_mov_b32 {sr(sC)}, {cval}')
    a.I(f's_mov_b32 {sr(sC + 1)}, {cval}')
    for i in range(0, 144, 2): a.I(f'v_mov_b64 {vr(ACC + i, 2)}, 0')
    def xread(t, slot, ks): return f'ds_read_b128 {vr(XF + 4 * t, 4)}, {vr(vX + ks)} offset:{slot * 18432 + t * 2048}'
    def wreads(W, slot, ks):
        return [f'ds_read_b64_tr_b16 {vr(W + 4 * j + 2 * h, 2)}, {vr(vWp + j)} offset:{slot * 16384 + ks * 2048 + h * 1024}' for j in range(4) for h in range(2)]
    GT = OPT['gate']
    def kstep(Wc, Wn, nslot, nks, gated, last=False):
        wr = wreads(Wn, nslot, nks) if not last else []
        conv = []
        for t in range(9):
            for j in range(4):
                a.I(f'{MF} {vr(acc(t, j), 4)}, {vr(Wc + 4 * j, 4)}, {vr(XF + 4 * t, 4)}, {vr(acc(t, j), 4)}')
                if t >= (GT if gated else 0) and j in (0, 2) and wr: a.I(wr.pop(0))
                for _ in range(OPT['cvn']):
                    if conv: a.I(conv.pop(0))
            if gated and t == GT - 1:
                a.I('s_waitcnt lgkmcnt(0)')
                a.I('s_barrier')
                if not last:
                    for tt in range(GT): a.I(xread(tt, nslot, nks))
            elif not last and (not gated or t >= GT): a.I(xread(t, nslot, nks))
            if last and t >= GT - 1:
                lo = 0 if t == GT - 1 else t - 1
                for tc in range(lo, t): conv += convert(tc)
        if last:
            a.many(conv); a.many(convert(8))
        assert not wr
    def convert(t):
        r = []
        if OPT['cvpk']:
            for j in range(4): r += [f'v_pk_mul_f32 {vr(acc(t, j) + 2 * k, 2)}, {vr(acc(t, j) + 2 * k, 2)}, {sr(sC, 2)}' for k in range(2)]
        else:
            for j in range(4): r += [f'v_mul_f32 {vr(acc(t, j) + k)}, {sr(sC)}, {vr(acc(t, j) + k)}' for k in range(4)]
        for j in range(4): r += [f'v_cvt_pk_bf16_f32 {vr(acc(t, j) + k)}, {vr(acc(t, j) + 2 * k)}, {vr(acc(t, j) + 2 * k + 1)}' for k in range(2)]
        for j in range(4): r += [f'ds_write_b64 {vr(vQW)}, {vr(acc(t, j), 2)} offset:{t * 4096 + (j >> 1) * 1024 + (j & 1) * 512}']
        return r
    W0, W1 = WF, WF + 16
    if OPT['cprio']: a.I(f's_setprio {OPT["cprio"]}')
    a.I('s_barrier')
    st.cyc()
    a.many(wreads(W0, 0, 0))
    for t in range(9): a.I(xread(t, 0, 0))
    a.I(f's_mov_b32 {sr(sCNT)}, 0')
    a.I('s_waitcnt lgkmcnt(0)')
    class _Dry(Asm): pass
    save = (a.ins, a.lg); a.ins = []; a.lg = []
    kstep(W1, W0, 0, 0, True); lg0 = [set(x) for x in a.lg]
    a.ins, a.lg = save
    a.lg = [set(x) for x in lg0]
    a.label('k1_qloop')
    for i in range(3):
        kstep(W0, W1, i, 1, False)
        kstep(W1, W0, (i + 1) % 3, 0, True)
    assert [set(x) for x in a.lg] == lg0
    a.I(f's_add_u32 {sr(sCNT)}, {sr(sCNT)}, 1')
    a.I(f's_cmp_lt_u32 {sr(sCNT)}, 5')
    a.I('s_cbranch_scc1 k1_qloop')
    kstep(W0, W1, 0, 1, False)
    kstep(W1, W0, 0, 0, True, last=True)
    if OPT['cprio']: a.I('s_setprio 0')
    st.cyc()

    a.label('k1_join')
    if OPT.get('qst'): st.on = False
    a.lg = [set()]
    a.I(f's_lshl_b32 {sr(sKP)}, {sr(sHH)}, 15')
    a.I(f's_add_u32 {sr(sKP)}, {sr(sKP)}, 16384')
    a.I(f's_add_u32 {sr(sVP)}, {sr(sKP)}, 16384')
    a.I(f's_and_b32 s3, {sr(sR)}, 1')
    a.I('s_lshl_b32 s3, s3, 11')
    a.I(f's_lshl_b32 {sr(sJ)}, s3, 1')
    a.I(f's_sub_u32 {sr(sJ)}, 2048, {sr(sJ)}')
    a.I(f's_mul_i32 s5, {sr(sHH)}, 81920')
    a.I('s_add_u32 s5, s5, s3')
    a.I(f's_add_u32 s4, s5, {sr(sVP)}')
    a.I(f's_add_u32 s5, s5, {sr(sKP)}')
    a.I(f's_mul_i32 s3, {sr(sHH)}, 36864')
    a.I(f's_add_u32 s3, s3, {QB}')
    a.I(f'v_lshl_add_u32 {vr(t3)}, v0, 4, s3')
    a.I(f's_lshl_b32 s3, {sr(sR)}, 13')
    a.I(f'v_add_u32 {vr(t2)}, s3, {vr(t3)}')
    a.I('s_waitcnt lgkmcnt(0)')
    a.I('s_barrier')
    for T in range(2):
        for k in range(4): a.I(f'ds_read_b128 {vr(q_(T, k), 4)}, {vr(t2)} offset:{T * 4096 + k * 1024}')
    for k in range(4): a.I(f'ds_read_b128 {vr(q_(2, k), 4)}, {vr(t3)} offset:{32768 + k * 1024}')
    tr_pattern(vVa)
    a.I(f'v_add_u32 {vr(vVa)}, s4, {vr(vVa)}')
    for j in range(1, 4): a.I(f'v_xor_b32 {vr(vVa + j)}, {32 * j}, {vr(vVa)}')
    a.I(f'v_bfe_u32 {vr(n)}, v0, 2, 2')
    hfun(t0, n, t1)
    a.I(f'v_xor_b32 {vr(t0)}, {vr(t0)}, {vr(g)}')
    a.I(f'v_lshlrev_b32 {vr(t0)}, 4, {vr(t0)}')
    a.I(f'v_lshl_add_u32 {vr(t0)}, {vr(n)}, 12, {vr(t0)}')
    a.I(f'v_and_b32 {vr(t1)}, 3, v0')
    a.I(f'v_lshl_add_u32 {vr(t0)}, {vr(t1)}, 7, {vr(t0)}')
    a.I(f'v_bfe_u32 {vr(t1)}, v0, 1, 1')
    a.I(f'v_lshl_add_u32 {vr(t0)}, {vr(t1)}, 6, {vr(t0)}')
    a.I(f'v_add_u32 {vr(vKa)}, s5, {vr(t0)}')
    a.I(f'v_xor_b32 {vr(vKa + 1)}, 64, {vr(vKa)}')
    for i in range(4): a.I(f'v_mov_b32 {vr(ONES + i)}, 0x3f803f80')
    for i in range(0, 12, 2): a.I(f'v_mov_b64 {vr(NEGM + i, 2)}, 0')
    NEG_BIG = fbits(-3.0e38)
    for s in (sTHR, sTHR8, sCL, sCL8): a.I(f's_mov_b32 {sr(s)}, {NEG_BIG}')
    a.I(f's_lshl_b32 s3, {sr(sHH)}, 17')
    a.I(f'v_add_u32 {vr(vD)}, s3, {vr(vD)}')
    a.I(f's_mov_b32 {sr(sOV)}, 32768')
    a.I(f's_mov_b32 {sr(sOK)}, 32768')
    for i in range(0, 108, 2): a.I(f'v_mov_b64 {vr(O + i, 2)}, 0')
    a.I(f's_lshl_b32 s5, {sr(sHH)}, 15')
    a.I(f's_add_u32 s5, s5, {sr(sM0A)}')
    a.I(f's_mov_b32 {sr(sT1)}, 32768')
    a.I(f's_mov_b32 {sr(sCNT)}, 0')
    a.I(f's_mov_b32 {sr(sRS)}, 0')
    if OPT['wopf'] in (1, 2):
        wo_srd()
        a.I(f's_lshl_b32 {sr(sOX)}, {sr(sWAVE)}, 13')
    a.I('s_waitcnt lgkmcnt(0)')
    a.I('s_barrier')
    a.lg = []
    def dma_ins(kind):
        srd, so = (sK, sOK) if kind == 'K' else (sV, sOV)
        r = [[f'buffer_load_dwordx4 {vr(vD)}, {sr(srd, 4)}, {sr(so)} offen offset:{j * 1024}{APOL(kind, j)} lds'] for j in range(4)]
        if OPT['lin']:
            for j in range(3): r[j].append(f's_add_u32 {sr(so)}, {sr(so)}, 3072')
        r[3].append(f's_add_u32 {sr(so)}, {sr(so)}, {16384 - (9216 if OPT["lin"] else 0)}')
        return r
    def dma_grp(kind, m0):
        r = dma_ins(kind); r[0] = [m0, 's_nop 0'] + r[0]
        return r
    pro_aux = []
    if OPT['kvl2']:
        a.I(f's_mov_b32 {sr(sOV)}, 16384')
        a.I(f's_mov_b32 {sr(sOK)}, 16384')
        a.I(f's_mul_i32 s3, {sr(sHH)}, 49152')
        a.I('s_sub_u32 s4, 49152, s3')
        a.I(f's_add_u32 s4, s4, {sr(sM0A)}')
        for x in dma_grp('K', 's_mov_b32 m0, s4'): a.many(x)
        pro_aux = dma_grp('V', 's_add_u32 m0, s4, 16384') + dma_grp('K', 's_mov_b32 m0, s5')
    else:
        for x in dma_grp('K', 's_mov_b32 m0, s5'): a.many(x)
        a.I(f's_cmp_eq_u32 {sr(sHH)}, 0')
        a.I('s_cbranch_scc1 k1_nowr')
        kvwrite('K1', 32768, mx, 0); kvwrite('V1', 49152, mx, 16384)
    a.label('k1_nowr')
    a.lg = []
    LA, SY = 6, OPT['sy']
    def rd(kind, jl, f):
        if kind == 'K':
            return [f'ds_read_b128 {vr(POOL + 4 * f, 4)}, {vr(vKa + (f & 1))} offset:{(f >> 2) * 1024 + ((f >> 1) & 1) * 512}']
        return [f'ds_read_b64_tr_b16 {vr(POOL + 4 * f + 2 * h, 2)}, {vr(vVa + (f & 3))} offset:{h * 1024 + (f >> 2) * 512}' for h in range(2)]
    def rd_upd(kind, jl, f):
        r = rd(kind, jl, f)
        if kind == 'K' and f >= 6: r.append(f'v_add_u32 {vr(vKa + (f & 1))}, {sr(sDK if jl else sJ)}, {vr(vKa + (f & 1))}')
        if kind == 'V' and f >= 6:
            for x in (f - 2, f): r.append(f'v_add_u32 {vr(vVa + (x & 3))}, {sr(sDV if jl else sJ)}, {vr(vVa + (x & 3))}')
        return r
    for f in range(LA): a.many(rd('K', 0, f))
    lgK = [set(x) for x in a.lg]
    lgV = [set(Insn(x).wr) for f in range(LA) for x in rd('V', 0, f)]
    st.cyc()
    a.I(f's_lshr_b32 s3, {sr(sR)}, 1')
    a.I(f's_xor_b32 s3, s3, {sr(sHH)}')
    a.I('s_cmp_eq_u32 s3, 1')
    a.I('s_cbranch_scc1 k1_proL')

    def maxops(jl, heavy):
        def chain(vs, dst, extra=None):
            o = [f'v_max3_f32 {vr(dst)}, {vr(vs[0])}, {vr(vs[1])}, {vr(vs[2])}']
            for k in range(3, len(vs) - 1, 2): o.append(f'v_max3_f32 {vr(dst)}, {vr(dst)}, {vr(vs[k])}, {vr(vs[k + 1])}')
            o.append(f'v_max_f32 {vr(dst)}, {vr(dst)}, {vr(vs[-1])}' if extra is None else f'v_max3_f32 {vr(dst)}, {vr(dst)}, {vr(vs[-1])}, {vr(extra)}')
            return o
        c1 = chain([s_(0, jl) + k for k in range(8)], tB)
        c0 = chain([s_(1, jl) + k for k in range(8)], mx, tB)
        c8 = chain([s_(2, 0) + k for k in range(8)], mx8) if heavy else []
        ops = []
        for k in range(4):
            ops += [c1[k]] + ([c8[k]] if heavy else []) + [c0[k]]
        return ops
    def expops(jl, heavy):
        ops = []
        Tl = (0, 1, 2) if heavy else (0, 1)
        for k in range(8):
            for T in Tl: ops.append(f'v_exp_f32 {vr(s_(T, jl) + k)}, {vr(s_(T, jl) + k)}')
            if k >= 2 and k % 2 == 0:
                for T in Tl: ops.append(f'v_cvt_pk_bf16_f32 {vr(s_(T, jl) + k // 2 - 1)}, {vr(s_(T, jl) + k - 2)}, {vr(s_(T, jl) + k - 1)}')
        for T in Tl: ops.append(f'v_cvt_pk_bf16_f32 {vr(s_(T, jl) + 3)}, {vr(s_(T, jl) + 6)}, {vr(s_(T, jl) + 7)}')
        return ops
    stubs = []
    def check(jl, heavy):
        for (thr, m, fn) in ((sTHR, mx, f'k1_rare{jl}'),) + (((sTHR8, mx8, 'k1_rare8'),) if heavy else ()):
            lb = a.newlabel('k1_ok')
            a.I(f'v_cmp_lt_f32 vcc, {sr(thr)}, {vr(m)}')
            a.I(f's_cbranch_vccnz {lb}_s')
            a.label(lb)
            stubs.append((lb, fn))
    def mfmas(kind, jl, heavy, f):
        Tl = (0, 1, 2) if heavy else (0, 1)
        P = vr(POOL + 4 * f, 4)
        if kind == 'K':
            tt, ks = f >> 2, f & 3
            return [f'{MF} {vr(s_(T, jl, tt), 4)}, {P}, {vr(q_(T, ks), 4)}, {vr(negm(T) if ks == 0 else s_(T, jl, tt), 4)}' for T in Tl]
        r = [f'{MF} {vr(o_(T, f), 4)}, {P}, {vr(s_(T, jl), 4)}, {vr(o_(T, f), 4)}' for T in Tl]
        if f == 7: r += [f'{MF} {vr(o_(T, 8), 4)}, {vr(ONES, 4)}, {vr(s_(T, jl), 4)}, {vr(o_(T, 8), 4)}' for T in Tl]
        return r
    def ring_step(doK, doV):
        r = []
        for (P, Po, D, on) in ((sKP, sKPo, sDK, doK), (sVP, sVPo, sDV, doV)):
            if not on: continue
            r.append([f's_mov_b32 {sr(Po)}, {sr(P)}',
                      f's_cmp_ge_u32 {sr(P)}, 49152',
                      f's_cselect_b32 {sr(D)}, {-49152 & 0xffffffff:#x}, {sr(sT1)}',
                      f's_add_u32 {sr(P)}, {sr(P)}, {sr(D)}',
                      f's_sub_u32 {sr(D)}, {sr(D)}, {sr(sJ)}'])
        return r
    def cost(x):
        if callable(x): return 8
        return 8 if x.startswith('v_exp') else 4
    def pack(stream, ngaps, reserved):
        for cap_extra in range(0, ngaps + 1):
            big = set((i * ngaps) // cap_extra for i in range(cap_extra)) if cap_extra else set()
            out = [[] for _ in range(ngaps)]; k = 0
            for gi in range(ngaps):
                room = (16 if gi in big else 8) - reserved[gi]
                while k < len(stream) and cost(stream[k]) <= room:
                    out[gi].append(stream[k]); room -= cost(stream[k]); k += 1
            if k == len(stream): break
        else:
            out[-1] += stream[k:]
        if cap_extra == 0 and OPT['spread']:
            h = max([gi for gi in range(ngaps) if any(callable(x) for x in out[gi])] + [-1]) + 1
            rest = [x for gi in range(h, ngaps) for x in out[gi]]
            groups = []; room = 0
            for x in rest:
                if cost(x) > room: groups.append([]); room = 8
                groups[-1].append(x); room -= cost(x)
            free = [gi for gi in range(h, ngaps) if reserved[gi] == 0]
            if len(groups) <= len(free):
                for gi in range(h, ngaps): out[gi] = []
                for i, gp in enumerate(groups): out[free[(i * len(free)) // len(groups)]] = gp
        return out
    def block(segs, streams, mode, aux0, nvm, auxat=None):
        uses = [(si, f) for si in range(len(segs)) for f in range(8)]
        nU = len(uses)
        gaps = []
        for k, (si, f) in enumerate(uses):
            for n_ in range(len(mfmas(segs[si][0], segs[si][1], segs[si][2], f))): gaps.append((k, n_))
        aux = {gp: [] for gp in gaps}; pre = {gp: [] for gp in gaps}
        for k in range(nU - LA):
            s2, f2 = uses[k + LA]
            rr = rd_upd(segs[s2][0], segs[s2][1], f2)
            for i, x in enumerate([x for x in rr if x.startswith('ds_')]): aux[(k, i)].append(x)
            pre[(k + 1, 0)] += [x for x in rr if x.startswith('v_')]
        if mode != 'fin':
            post = [gp for gp in gaps if gp[0] > nU - 8 + SY]
            q = [(f, x) for f in range(LA) for x in rd('V', 0, f)]
            early = [x for f, x in q if f < OPT['nimm']]; q = [(f, x) for f, x in q if f >= OPT['nimm']]
            per = -(-len(q) // len(post))
            for gp in post:
                for _ in range(per):
                    fdone = gp[0] - (nU - 8) - (0 if gp[1] == 1 else 1)
                    if q and q[0][0] <= fdone: aux[gp].append(q.pop(0)[1])
            assert not q, q
        gsel = gaps[OPT['aux0']::OPT['auxs']] if auxat is None else [gp for gp in gaps if gp[0] >= auxat]
        assert len(aux0) <= len(gsel)
        if mode == 'loop' and OPT['gk'] >= 0:
            gsel = gaps[:3] + [gaps[OPT['gk']], gaps[OPT['gv']]]
            assert len(aux0) == 5
        for gp, x in zip(gsel, aux0): aux[gp].append(x)
        fill = {}
        for (sa, sb, skip, ops) in streams:
            gl = [gp for gp in gaps if sa <= uses[gp[0]][0] <= sb]
            gl = gl[skip:len(gl) - OPT['tail']]
            for gp, ol in zip(gl, pack(ops, len(gl), [4 * len(pre[gp]) for gp in gl])):
                fill[gp] = ol
                assert not (any(callable(x) for x in ol) and uses[gp[0]][0] != sa)
        def emit(x):
            if callable(x): x()
            elif isinstance(x, list):
                for y in x: emit(y)
            else: a.I(x)
        for k, (si, f) in enumerate(uses):
            kind, jl, heavy, after = segs[si]
            if f == 0 and OPT['aprio'] and si: a.I(f's_setprio {len(segs) - 1 - si}')
            for n_, m in enumerate(mfmas(kind, jl, heavy, f)):
                a.I(m)
                emit(pre[(k, n_)]); emit(fill.get((k, n_), [])); emit(aux[(k, n_)])
            if OPT['stamp'] == 3 and mode == 'loop' and f == 7 and si < 3: a.raw(f's_memtime {sr(90 + 2 * si, 2)}')
            if mode != 'fin' and k == nU - 8 + SY:
                if OPT['stamp'] == 3 and mode == 'loop':
                    a.raw('s_mov_b32 s88, s98')
                    a.raw('s_memtime s[96:97]')
                a.I(f's_waitcnt vmcnt({nvm}) lgkmcnt(0)')
                a.I('s_barrier')
                if OPT['aprio']: a.I('s_setprio 3')
                st.sh()
                if OPT['stamp'] == 3 and mode == 'loop': a.raw('s_memtime s[98:99]')
                a.many(early)
            if f == 7 and after: after()
        if mode != 'fin': assert [set(x) for x in a.lg] == lgV, (a.lg, lgV)
    def resc():
        lb = a.newlabel('k1_nors')
        a.I(f's_cmp_lg_u32 {sr(sRS)}, 0')
        a.I(f's_cbranch_scc1 {lb}_s')
        a.label(lb)
        stubs.append((lb, 'k1_rescale'))
    def sm(jl, heavy): return maxops(jl, heavy) + [lambda: check(jl, heavy)] + expops(jl, heavy)
    OFFM0 = 0x30000
    def warm(kind, so):
        return [[f'buffer_load_dwordx4 {vr(vD)}, {sr(sK if kind == "K" else sV, 4)}, {so} offen offset:{j * 1024}{NT("pfp")} lds'] for j in range(4)]
    def prologue(h0):
        a.lg = [set(x) for x in lgK]
        ax = ring_step(True, False) + pro_aux
        block([('K', 0, h0, lambda: (a.many(maxops(0, h0)), check(0, h0))), ('K', 1, False, None)],
              [(1, 1, 0, expops(0, h0))], 'pro', ax, 8 if pro_aux else 63, auxat=0)
    def body_aux():
        r = [[f's_add_u32 {sr(sMK)}, {sr(sM0A)}, {sr(sVPo)}',
              f's_add_u32 {sr(sMV)}, {sr(sM0A)}, {sr(sKPo)}',
              f's_cmp_ge_u32 {sr(sCNT)}, 6',
              f's_cselect_b32 {sr(sMV)}, {OFFM0}, {sr(sMV)}',
              f's_cselect_b32 {sr(sOV)}, 0x1000000, {sr(sOV)}',
              f's_sub_u32 s3, {sr(sCNT)}, 1',
              f's_cmp_ge_u32 s3, 5',
              f's_cselect_b32 m0, {OFFM0}, {sr(sMK)}',
              f's_cselect_b32 s3, 0x1000000, {sr(sOK)}',
              f's_cselect_b32 s4, 0, 16384']]
        r += ring_step(True, True)
        for j in range(4): r.append([f'buffer_load_dwordx4 {vr(vD)}, {sr(sK, 4)}, s3 offen offset:{j * 1024}{APOL("K", j)} lds'] + (['s_add_u32 s3, s3, 3072'] if OPT['lin'] and j < 3 else []))
        r[-1] += [f's_add_u32 {sr(sOK)}, {sr(sOK)}, s4', f's_mov_b32 m0, {sr(sMV)}']
        nv = 4
        if OPT['mk']:
            w = warm('K', 's3')
            w[0] = [f's_mov_b32 s4, {OPT["mk"]}', f's_bitcmp1_b32 s4, {sr(sCNT)}', f's_cselect_b32 s3, {sr(sOK)}, 0x1000000'] + w[0]
            r += w; nv += 4
        if OPT['mv']:
            w = warm('V', 's3')
            w[0] = [f's_add_u32 s3, {sr(sOV)}, 16384', f's_mov_b32 s4, {OPT["mv"]}', f's_bitcmp1_b32 s4, {sr(sCNT)}', f's_cselect_b32 s3, s3, 0x1000000'] + w[0]
            r += w; nv += 4
        r += dma_ins('V')
        G = OPT['grp']
        if G > 1:
            head, d = r[:3], r[3:]
            r = head + [sum(d[i:i + G], []) for i in range(0, len(d), G)]
        return r, nv
    def body(hc, tag, exit_to):
        a.lg = [set(x) for x in lgV]
        hn = not hc
        ax, nvm = body_aux()
        block([('V', 0, hc, resc), ('K', 0, hn, None), ('V', 1, False, resc), ('K', 1, False, None)],
              [(0, 1, 1, sm(1, False)), (2, 3, 1, sm(0, hn))], 'loop', ax, nvm)
        a.I(f's_add_u32 {sr(sCNT)}, {sr(sCNT)}, 1')
        a.I(f's_cmp_eq_u32 {sr(sCNT)}, 7')
        a.I(f's_cbranch_scc1 {exit_to}')
    K = K2(a)
    def final(hc):
        a.lg = [set(x) for x in lgV]
        lb = a.newlabel('k1_early')
        a.I(f's_cmp_eq_u32 {sr(sHH)}, 1')
        a.I(f's_cbranch_scc1 {lb}_s')
        a.label(lb)
        stubs.append((lb, 'k1_early'))
        NM8 = negm(2)
        ax = [[f's_lshl_b32 s5, {sr(sHH)}, 15', 's_add_u32 s5, s5, 81920', f's_lshl_b32 s13, {sr(sHH)}, 14',
               f's_lshl_b32 s4, {sr(sR)}, 11', 's_add_u32 s3, s4, s5', 'v_lshl_add_u32 v1, v0, 4, s3'],
              ['v_add_u32 v2, s13, v1', f's_lshl_b32 s3, {sr(sWAVE)}, 9', f'v_lshl_add_u32 {vr(vD)}, v0, 3, s3'],
              [], [f'v_mov_b32 {vr(NM8 + 1)}, {vr(o_(2, 8))}']]
        ax += [[f'ds_write_b128 {"v1" if d < 4 else "v2"}, {vr(o_(2, d), 4)} offset:{(d >> 1) * 8192 + (d & 1) * 1024}'] for d in range(8)]
        ax += [[f'ds_write_b64 {vr(vD)}, {vr(NM8, 2)}']]
        block([('V', 0, hc, resc), ('V', 1, False, None)], [(0, 0, 1, sm(1, False))], 'fin', ax, 0, auxat=8)
        if OPT['aprio']: a.I('s_setprio 0')
    prologue(True)
    a.label('k1_X')
    body(True, 'x', 'k1_finL')
    a.label('k1_Y')
    body(False, 'y', 'k1_finH')
    a.I('s_branch k1_X')
    a.label('k1_proL')
    prologue(False)
    a.I('s_branch k1_Y')

    a.auto = False
    def xg_reduce(x, tmp, op):
        a.I(f'v_mov_b32 {vr(tmp)}, {vr(x)}')
        a.I(f'v_permlane32_swap_b32 {vr(x)}, {vr(tmp)}')
        a.I(f'{op} {vr(x)}, {vr(x)}, {vr(tmp)}')
        a.I(f'v_mov_b32 {vr(tmp)}, {vr(x)}')
        a.I(f'v_permlane16_swap_b32 {vr(x)}, {vr(tmp)}')
        a.I(f'{op} {vr(x)}, {vr(x)}, {vr(tmp)}')
    FREG = {0: mx, 1: tA, 2: mx8}
    def rare(T, vals, scl, canfirst):
        m, tmp = tB, FREG[T]
        a.I(f'v_max3_f32 {vr(m)}, {vr(vals[0])}, {vr(vals[1])}, {vr(vals[2])}')
        for k in range(3, len(vals) - 1, 2): a.I(f'v_max3_f32 {vr(m)}, {vr(m)}, {vr(vals[k])}, {vr(vals[k + 1])}')
        a.I(f'v_max_f32 {vr(m)}, {vr(m)}, {vr(vals[-1])}')
        xg_reduce(m, tmp, 'v_max_f32')
        a.I(f'v_max_f32 {vr(m)}, {sr(scl)}, {vr(m)}')
        for v in vals: a.I(f'v_sub_f32 {vr(v)}, {vr(v)}, {vr(m)}')
        for k in range(4): a.I(f'v_sub_f32 {vr(negm(T) + k)}, {vr(negm(T) + k)}, {vr(m)}')
        lb = a.newlabel('k1_first'); lb2 = a.newlabel('k1_rdone')
        if canfirst:
            a.I(f's_cmp_lg_u32 {sr(scl)}, 0')
            a.I(f's_cbranch_scc1 {lb}')
        a.I(f'v_exp_f32 {vr(tmp)}, -{vr(m)}')
        if T == 2:
            for k in range(36): a.I(f'v_mul_f32 {vr(o_(T, 8) + k)}, {vr(o_(T, 8) + k)}, {vr(tmp)}')
        else:
            a.I(f's_mov_b32 {sr(sRS)}, 1')
        if canfirst: a.label(lb)
    for jl in range(2):
        a.label(f'k1_rare{jl}')
        for T in range(2): rare(T, [s_(T, jl) + k for k in range(8)], sCL, jl == 0)
        a.I(f's_mov_b32 {sr(sTHR)}, {THRV}')
        a.I(f's_mov_b32 {sr(sCL)}, 0')
        a.I(f's_setpc_b64 {sr(sLINK, 2)}')
    a.label('k1_rare8')
    rare(2, [s_(2, 0) + k for k in range(8)], sCL8, True)
    a.I(f's_mov_b32 {sr(sTHR8)}, {THRV}')
    a.I(f's_mov_b32 {sr(sCL8)}, 0')
    a.I(f's_setpc_b64 {sr(sLINK, 2)}')
    a.label('k1_early')
    K.early()
    a.I(f's_setpc_b64 {sr(sLINK, 2)}')
    a.label('k1_rescale')
    for T in range(2):
        for k in range(36): a.I(f'v_mul_f32 {vr(o_(T, 8) + k)}, {vr(o_(T, 8) + k)}, {vr(FREG[T])}')
    a.I(f's_mov_b32 {sr(sRS)}, 0')
    a.I(f's_setpc_b64 {sr(sLINK, 2)}')
    a.auto = True

    a.label('k1_finH')
    final(True)
    a.I('s_branch k1_epi')
    pos = len(a.ins)
    a.label('k1_finL')
    final(False)
    tailcode = a.ins[pos:]; del a.ins[pos:]
    for lb, fn in stubs:
        a.label(lb + '_s')
        a.raw(f's_call_b64 {sr(sLINK, 2)}, {fn}')
        a.raw(f's_branch {lb}')
    a.ins += tailcode
    a.label('k1_epi')
    a.lg = []
    st.cyc()
    e0, e1, e2, e3, e4 = 3, 4, 5, 6, 8
    NM8 = negm(2)
    a.lg = [set()]
    a.I(f'v_lshlrev_b32 {vr(e0)}, 4, v0')
    a.I(f's_lshl_b32 s3, {sr(sHH)}, 11')
    a.I(f'v_lshl_add_u32 {vr(e2)}, v0, 3, s3')
    a.I(f's_lshl_b32 s6, {sr(sR)}, 13')
    a.I('s_add_u32 s6, s6, s5')
    a.I(f's_cmp_ge_u32 {sr(sR)}, 2')
    a.I('s_cselect_b32 s13, s13, 0')
    a.I('s_add_u32 s6, s6, s13')
    a.I(f'v_add_u32 {vr(e1)}, s6, {vr(e0)}')
    R8 = S
    a.I('s_waitcnt lgkmcnt(0)')
    a.I('s_barrier')
    for sl in range(4): a.I(f'ds_read_b64 {vr(R8 + 32 + 2 * sl, 2)}, {vr(e2)} offset:{sl * 512}')
    for k in range(8): a.I(f'ds_read_b128 {vr(R8 + 4 * k, 4)}, {vr(e1)} offset:{k * 1024}')
    flag_srd(sO)
    a.I(f's_cmp_eq_u32 {sr(sHH)}, 0')
    a.I('s_cbranch_scc1 k1_nosnap')
    K.snapshot()
    a.label('k1_nosnap')
    a.I('s_load_dwordx2 s[10:11], s[0:1], 80')
    sOO = sV
    a.I(f's_lshl_b32 s3, {sr(sBLK)}, 3')
    a.I(f's_add_u32 s3, s3, {sr(sB)}')
    a.I(f's_mul_i32 s3, s3, {O_SLICE}')
    a.I(f's_mul_i32 s6, {sr(sHP)}, 73728')
    a.I('s_add_u32 s3, s3, s6')
    a.I(f's_add_u32 {sr(sOO)}, s16, s3')
    a.I(f's_addc_u32 {sr(sOO + 1)}, s17, 0')
    a.I(f's_mov_b32 {sr(sOO + 2)}, 73728')
    a.I(f's_mov_b32 {sr(sOO + 3)}, 0x20000')
    a.I(f's_mul_i32 s3, {sr(sHH)}, 36864')
    a.I(f'v_add_u32 {vr(e3)}, s4, {vr(e0)}')
    def fin(src, scale2, voff, soff, imm):
        for k in range(4): a.I(f'v_pk_mul_f32 {vr(src + 2 * k, 2)}, {vr(src + 2 * k, 2)}, {vr(scale2, 2)}')
        for k in range(4): a.I(f'v_cvt_pk_bf16_f32 {vr(src + k)}, {vr(src + 2 * k)}, {vr(src + 2 * k + 1)}')
        a.I(f'buffer_store_dwordx4 {vr(src, 4)}, {vr(voff)}, {sr(sOO, 4)}, {soff} offen offset:{imm}{NT("ont")}')
    for T in range(2):
        for k in range(2): a.I(f'v_rcp_f32 {vr(o_(T, 8) + k)}, {vr(o_(T, 8) + k)}')
    a.I(f's_add_u32 s6, s3, {K.XB}')
    a.I(f'v_add_u32 {vr(e1)}, s6, {vr(e3)}')
    a.I('s_mov_b32 s6, s3')
    def xw(P): return [f'ds_write_b128 {vr(e1)}, {vr(o_(T, 2 * P), 4)} offset:{P * 9216 + T * 1024}' for T in range(2)]
    for P in range(4):
        for T in range(2): fin(o_(T, 2 * P), o_(T, 8), e3, 's6', T * 1024)
        if P < 3: a.I('s_add_u32 s6, s6, 9216')
        if P == OPT['b2at']:
            a.I('s_waitcnt lgkmcnt(0)')
            a.I('s_barrier')
            for Q_ in range(P): a.many(xw(Q_))
        if P >= OPT['b2at']: a.many(xw(P))
    K.ids()
    a.I(f's_mul_i32 s6, {sr(sR)}, 9216')
    a.I('s_add_u32 s6, s6, s3')
    a.I(f'v_add_u32 {vr(e3)}, 8192, {vr(e0)}')
    nm = [R8 + 32 + 2 * i for i in range(4)]
    ll = [R8 + 33 + 2 * i for i in range(4)]
    a.I(f'v_min3_f32 {vr(e0)}, {vr(nm[0])}, {vr(nm[1])}, {vr(nm[2])}')
    a.I(f'v_min_f32 {vr(e0)}, {vr(e0)}, {vr(nm[3])}')
    for i in range(4): a.I(f'v_sub_f32 {vr(nm[i])}, {vr(e0)}, {vr(nm[i])}')
    for i in range(4): a.I(f'v_exp_f32 {vr(nm[i])}, {vr(nm[i])}')
    a.I(f'v_mul_f32 {vr(e0)}, {vr(ll[0])}, {vr(nm[0])}')
    for i in range(1, 4): a.I(f'v_fmac_f32 {vr(e0)}, {vr(ll[i])}, {vr(nm[i])}')
    a.I(f'v_rcp_f32 {vr(e4)}, {vr(e0)}')
    a.I(f'v_rcp_f32 {vr(e4 + 1)}, {vr(e0)}')
    for k in range(8): a.I(f'v_mul_f32 {vr(R8 + k)}, {vr(R8 + k)}, {vr(nm[0])}')
    for i in range(1, 4):
        for k in range(8): a.I(f'v_fmac_f32 {vr(R8 + k)}, {vr(R8 + 8 * i + k)}, {vr(nm[i])}')
    fin(R8, e4, e3, 's6', 0)
    a.I(f's_add_u32 s6, s6, {K.XB}')
    a.I(f'v_add_u32 {vr(e3)}, s6, {vr(e3)}')
    a.I(f'ds_write_b128 {vr(e3)}, {vr(R8, 4)}')
    if OPT['stamp'] == 3: st.n = 12
    else: st.cyc(); st.real()
    K.st1 = st
    if OPT.get('qst'): st.on = True
    return K.main()

class K2:
    sO, sW, sD, sE, sF = 20, 24, 28, 32, 36
    sWAVE, sR, sLD, sBLK, sB, sHP, sN8, sKH, sKC = 40, 41, 42, 43, 44, 45, 67, 64, 62
    sM0W, sM0X, sOW, sOX, sSL, sCNT, sT0, sST, sROT, sH, sNH, sKS = 55, 48, 49, 50, 51, 52, 53, 54, 65, 56, 57, 58
    sSTX, sFO, sPC, sHPc = 59, 60, 61, 66
    sRW, sRX, sWB, sXB, sWEX = 68, 72, 54, 59, 8
    sLINK = 8
    vWp, vX, vL16, vFA, vFV, vDW, vDX, vZ, vCT = 12, 14, 16, 34, 35, 28, 32, 38, 39
    g, t0, t1, t2 = 19, 20, 21, 22
    ACC, XF, WF, TMP = 112, 76, 60, 184
    XB = 81920
    @staticmethod
    def wslot(i): return 16384 + ((i + 1) & 3) * 16384
    def __init__(self, a):
        self.a = a; self.st = Stamper(a, 1)
    def early(self):
        a = self.a; K = self
        sW, sR = K.sW, K.sR
        t0, t1 = 36, 37
        a.I(f's_lshr_b32 s12, {sr(sR)}, 1')
        a.I(f's_xor_b32 {sr(K.sH)}, {sr(sR)}, s12')
        a.I(f's_and_b32 {sr(K.sH)}, {sr(K.sH)}, 1')
        a.I(f's_lshl_b32 {sr(K.sH)}, {sr(K.sH)}, 1')
        a.I(f's_or_b32 {sr(K.sH)}, {sr(K.sH)}, s12')
        a.I(f'v_and_b32 {vr(t0)}, 7, v0')
        a.I(f'v_xor_b32 {vr(t0)}, {sr(K.sH)}, {vr(t0)}')
        a.I(f'v_bfe_u32 {vr(t1)}, v0, 4, 1')
        a.I(f'v_lshlrev_b32 {vr(t1)}, 2, {vr(t1)}')
        a.I(f'v_xor_b32 {vr(t0)}, {vr(t0)}, {vr(t1)}')
        a.I(f's_and_b32 s12, {sr(K.sHP)}, 1')
        a.I('s_lshl_b32 s12, s12, 7')
        a.I(f'v_lshl_add_u32 {vr(t0)}, {vr(t0)}, 4, s12')
        a.I(f'v_lshrrev_b32 {vr(t1)}, 5, v0')
        a.I(f'v_lshl_add_u32 {vr(t0)}, {vr(t1)}, 15, {vr(t0)}')
        a.I(f'v_bfe_u32 {vr(t1)}, v0, 3, 2')
        a.I(f's_lshl_b32 s12, {sr(sR)}, 2')
        a.I(f'v_add_u32 {vr(t1)}, s12, {vr(t1)}')
        a.I(f'v_lshl_add_u32 {vr(K.vDW)}, {vr(t1)}, 11, {vr(t0)}')
        a.I(f's_lshl_b32 {sr(K.sM0W)}, {sr(sR)}, 12')
        a.I(f'v_add_u32 {vr(K.vDW + 1)}, {65536 - 1024}, {vr(K.vDW)}')
        a.I(f'v_xor_b32 {vr(K.vDW + 2)}, 0x80, {vr(K.vDW)}')
        a.I(f'v_xor_b32 {vr(K.vDW + 3)}, 0x80, {vr(K.vDW + 1)}')
        a.I(f's_lshl_b32 {sr(K.sWB)}, {sr(K.sHP)}, 19')
        a.I(f's_lshr_b32 s12, {sr(K.sHP)}, 1')
        a.I(f's_lshl_b32 s12, s12, 8')
        a.I(f's_add_u32 {sr(sW)}, s18, s12')
        a.I(f's_addc_u32 {sr(sW + 1)}, s19, 0')
        a.I(f's_sub_u32 {sr(sW + 2)}, 8388608, s12')
        a.I(f's_mov_b32 {sr(sW + 3)}, 0x20000')
        a.I(f's_mov_b32 {sr(K.sD)}, s100')
        a.I(f's_mov_b32 {sr(K.sD + 1)}, s101')
        a.I(f's_mov_b32 {sr(K.sD + 2)}, 256')
        a.I(f's_mov_b32 {sr(K.sD + 3)}, 0x20000')
        a.I(f'v_mov_b32 {vr(K.vZ)}, 0')
        a.I(f'buffer_load_dword {vr(K.vCT)}, {vr(K.vZ)}, {sr(K.sD, 4)}, 0 offen sc1')
        for i in range(3): K.stw(i, own=True)
        a.I(f's_lshl_b32 s12, {sr(K.sBLK)}, 3')
        a.I(f's_add_u32 s12, s12, {sr(K.sB)}')
        a.I(f's_lshl_b32 {sr(K.sFO)}, s12, 11')
        a.I(f's_add_u32 {sr(K.sFO)}, {sr(K.sFO)}, 65536')
        a.I(f'v_and_b32 {vr(K.vFA)}, 15, v0')
        a.I(f'v_lshlrev_b32 {vr(K.vFA)}, 7, {vr(K.vFA)}')
    def snapshot(self):
        a = self.a; K = self
        a.I(f's_mov_b32 {sr(K.sPC)}, 0')
        a.I('s_movk_i32 s12, 0x100')
        a.I('s_waitcnt vmcnt(12)')
        a.label('k2_allin')
        a.I(f'v_cmp_le_u32 vcc, s12, {vr(K.vCT)}')
        a.I('s_cbranch_vccnz k2_allok ; POLL')
        a.I(f'buffer_load_dword {vr(K.vCT)}, {vr(K.vZ)}, {sr(K.sD, 4)}, 0 offen sc1')
        a.I(f's_add_u32 {sr(K.sPC)}, {sr(K.sPC)}, 1')
        a.I('s_waitcnt vmcnt(0)')
        a.I(f's_cmp_lt_u32 {sr(K.sPC)}, {OPT["pollmax"]}')
        a.I('s_cbranch_scc1 k2_allin')
        a.label('k2_allok')
        a.I(K.flagload())
    def publish(self, cond):
        a = self.a; K = self
        lb = a.newlabel('k2_nopub')
        a.I(f's_cmp_lg_u32 {cond}')
        a.I(f's_cbranch_scc1 {lb}')
        a.I('s_mov_b64 exec, 1')
        a.I(f'buffer_store_dword {vr(K.vCT)}, {vr(K.vZ)}, {sr(K.sF, 4)}, s4 offen sc1')
        a.I('s_mov_b64 exec, -1')
        a.label(lb)
    def ids(self):
        a = self.a; K = self
        a.I(f's_and_b32 {sr(K.sKH)}, {sr(K.sHP)}, 1')
        a.I(f's_lshr_b32 {sr(K.sN8)}, {sr(K.sHP)}, 1')
        a.I(f'v_lshlrev_b32 {vr(K.vL16)}, 4, v0')
    def late(self):
        a = self.a; K = self
        sO, sR, sB, sBLK = K.sO, K.sR, K.sB, K.sBLK
        a.I(f's_lshr_b32 s12, {sr(K.sHP)}, 2')
        a.I(f's_add_u32 {sr(K.sROT)}, {sr(sB)}, s12')
        a.I(f'v_add_u32 {vr(K.vDX)}, {sr(K.sM0W)}, {vr(K.vL16)}')
        a.I(f's_lshl_b32 {sr(K.sM0X)}, {sr(sR)}, 10')
        a.I(f's_add_u32 {sr(K.sM0X)}, {sr(K.sM0X)}, 16384')
        a.I(f'v_add_u32 {vr(K.vDX + 1)}, {sr(K.sM0X)}, {vr(K.vL16)}')
        for i in range(4):
            a.I(f's_add_u32 s12, {sr(K.sROT)}, {i}')
            a.I('s_and_b32 s12, s12, 3')
            a.I(f's_lshl_b32 {sr(K.sRW + i)}, s12, 17')
            a.I(f's_mul_i32 {sr(K.sRX + i)}, s12, 18432')
        a.I(f's_mov_b32 {sr(K.sKC)}, -1')
        a.I(f's_lshl_b32 s12, {sr(sBLK)}, 3')
        a.I(f's_add_u32 s12, s12, {sr(sB)}')
        a.I(f's_mul_i32 s12, s12, {O_SLICE}')
        a.I(f's_add_u32 {sr(sO)}, s16, s12')
        a.I(f's_addc_u32 {sr(sO + 1)}, s17, 0')
        a.I(f's_mov_b32 {sr(sO + 2)}, {O_SLICE}')
        a.I(f's_mov_b32 {sr(sO + 3)}, 0x20000')
        a.I(f's_lshl_b32 s4, {sr(K.sHP)}, 7')
        a.I(f's_add_u32 s4, s4, {sr(K.sFO)}')
        a.I(f'v_mov_b32 {vr(K.vCT)}, 1')
        a.I(f's_lshl_b32 s5, {sr(sR)}, 4')
        a.I('s_add_u32 s5, s5, 1')
    def stw(self, i, own=False, tail=False):
        a = self.a; K = self
        a.I(f's_add_u32 m0, {sr(K.sM0W)}, {K.wslot(i)}')
        a.I(f's_add_u32 {sr(K.sOW)}, {sr(K.sWB)}, {i * 131072 if own else sr(K.sRW + i)}')
        for u in range(2 if tail else 4):
            if u == 2: a.I(f's_add_u32 m0, {sr(K.sM0W)}, {K.wslot(i) + 2048}')
            a.I(f'buffer_load_dwordx4 {vr(K.vDW + u)}, {sr(K.sW, 4)}, {sr(K.sOW)} offen offset:{(u & 1) * 1024}{NT("wont")} lds')
    def stx(self, i):
        a = self.a; K = self
        lb = a.newlabel('k2_skipx')
        a.I(f's_add_u32 m0, {sr(K.sM0W)}, {K.XB + i * 18432}')
        a.I(f's_add_u32 {sr(K.sOX)}, {sr(K.sXB)}, {sr(K.sRX + i)}')
        for j in range(4): a.I(f'buffer_load_dwordx4 {vr(K.vDX)}, {sr(K.sO, 4)}, {sr(K.sOX)} offen offset:{j * 1024}{NT("oldf")} lds')
        a.I(f's_add_u32 m0, {sr(K.sM0X)}, {K.XB + i * 18432}')
        a.I(f's_cmp_ge_u32 {sr(K.sR)}, 2')
        a.I(f's_cbranch_scc1 {lb}')
        a.I(f'buffer_load_dwordx4 {vr(K.vDX + 1)}, {sr(K.sO, 4)}, {sr(K.sOX)} offen{NT("oldf")} lds')
        a.label(lb)
    def ready(self):
        a = self.a; K = self
        l1, l2 = a.newlabel('k2_chk'), a.newlabel('k2_go')
        a.I(f's_mov_b32 {sr(K.sPC)}, 0')
        a.label(l1)
        a.I(f'v_cmp_eq_u32 vcc, 1, {vr(K.vFV)}')
        a.I(f's_bitcmp1_b32 vcc_lo, {sr(K.sHPc)}')
        a.I(f's_cbranch_scc1 {l2} ; TAKEN')
        a.I(K.flagload())
        a.I(f's_add_u32 {sr(K.sPC)}, {sr(K.sPC)}, 1')
        a.I('s_waitcnt vmcnt(0)')
        a.I(f's_cmp_lt_u32 {sr(K.sPC)}, {OPT["pollmax"]}')
        a.I(f's_cbranch_scc1 {l1}')
        a.label(l2)
    def fl1(self, vt):
        n = self.st1.n; self.st1.flush(16, self.sWAVE, self.sW, vt); self.st1.n = n
    def nextseg(self, tail=False):
        a = self.a; K = self
        if tail:
            a.I(f's_cmp_eq_u32 {sr(K.sN8)}, 7')
            a.I('s_cselect_b32 s12, 5, 7')
            a.I(f's_add_u32 {sr(K.sHPc)}, s12, {sr(K.sCNT)}')
        else:
            a.I(f's_add_u32 {sr(K.sKC)}, {sr(K.sKC)}, 1')
            a.I(f's_cmp_eq_u32 {sr(K.sKC)}, {sr(K.sN8)}')
            a.I(f's_addc_u32 {sr(K.sKC)}, {sr(K.sKC)}, 0')
            a.I(f's_lshl_b32 {sr(K.sHPc)}, {sr(K.sKC)}, 1')
            a.I(f's_add_u32 {sr(K.sHPc)}, {sr(K.sHPc)}, {sr(K.sKH)}')
        a.I(f's_lshl_b32 {sr(K.sWB)}, {sr(K.sHPc)}, 19')
        a.I(f's_mul_i32 {sr(K.sXB)}, {sr(K.sHPc)}, 73728')
    def flagload(self): return f'buffer_load_dword {vr(self.vFV)}, {vr(self.vFA)}, {sr(self.sF, 4)}, {sr(self.sFO)} offen sc1 ; NOCHECK'
    def main(self):
        a = self.a; st = self.st; K = self
        MF = 'v_mfma_f32_16x16x32_bf16'
        sO, sW, sD, sE, sF, sR, sB, sN8, sKH, sBLK = K.sO, K.sW, K.sD, K.sE, K.sF, K.sR, K.sB, K.sN8, K.sKH, K.sBLK
        sOW, sOX, sSL, sCNT, sT0, sST, sSTX, sPC, sHPc, sNH, sKS = K.sOW, K.sOX, K.sSL, K.sCNT, K.sT0, K.sST, K.sSTX, K.sPC, K.sHPc, K.sNH, K.sKS
        vWp, vX, vDW, vL16, g, t0, t1, t2 = K.vWp, K.vX, K.vDW, K.vL16, K.g, K.t0, K.t1, K.t2
        ACC, XF, WF, TMP, XB = K.ACC, K.XF, K.WF, K.TMP, K.XB
        def acc(t, j): return ACC + (t * 2 + j) * 4
        st.real(); st.cyc()
        a.I(f's_cmp_eq_u32 {sr(K.sLD)}, 0')
        a.I('s_cbranch_scc1 k2_comp')
        if OPT['lprio']: a.I(f's_setprio {OPT["lprio"]}')
        K.stw(3, own=True)
        a.I('s_waitcnt vmcnt(13) lgkmcnt(0)')
        a.I('s_barrier')
        st0 = st.n
        st.cyc()
        K.late()
        a.I(f's_mov_b32 {sr(sCNT)}, 1')
        K.nextseg()
        a.I('s_barrier')
        if OPT['fast1']:
            a.I(f'v_cmp_eq_u32 vcc, 1, {vr(K.vFV)}')
            a.I(f's_bitcmp1_b32 vcc_lo, {sr(sHPc)}')
            a.I('s_cbranch_scc1 k2_fast ; EITHER')
        K.stw(0)
        a.I('s_barrier')
        K.stw(1)
        a.I(K.flagload())
        a.I('s_waitcnt vmcnt(9)')
        a.I('s_barrier')
        K.publish(f'{sr(sR)}, 0')
        K.stw(2)
        a.I('s_waitcnt vmcnt(5)')
        K.ready()
        K.stx(0); K.stx(1); K.stx(2)
        a.I('s_waitcnt vmcnt(8)')
        a.I('s_barrier')
        a.I(K.flagload())
        K.stw(3); K.stx(3)
        a.I(f's_mov_b32 {sr(sCNT)}, 2')
        a.I('s_waitcnt vmcnt(12)')
        for tail in (False, True):
            a.label('k2_tloop' if tail else 'k2_lloop')
            K.nextseg(tail)
            for i in range(4):
                a.I(f's_waitcnt vmcnt({12 if tail else 16})')
                a.I('s_barrier')
                if i == 0 and not tail: a.label('k2_fast')
                if i == 2 and not tail: K.publish(f'{sr(sCNT)}, s5')
                K.stw(i, tail=tail)
                if i == 0: K.ready()
                if i == 1: a.I(K.flagload())
                K.stx(i)
            a.I(f's_add_u32 {sr(sCNT)}, {sr(sCNT)}, 1')
            a.I(f's_cmp_lt_u32 {sr(sCNT)}, {9 if tail else 7}')
            a.I(f's_cbranch_scc1 {"k2_tloop" if tail else "k2_lloop"}')
        for nv in (12, 6, 0, 0):
            a.I(f's_waitcnt vmcnt({nv})')
            a.I('s_barrier')
        st.cyc(); st.cyc(); st.cyc(); st.cyc(); st.real()
        st.flush(16, K.sWAVE, sW, t1); K.fl1(t1)
        a.I('s_endpgm')
        a.label('k2_comp')
        st.n = st0
        a.lg = []
        a.I(f's_and_b32 {sr(sKS)}, {sr(sR)}, 1')
        a.I(f's_lshr_b32 {sr(sNH)}, {sr(sR)}, 1')
        a.I(f'v_lshrrev_b32 {vr(g)}, 4, v0')
        a.I(f'v_lshrrev_b32 {vr(t1)}, 1, {vr(g)}')
        a.I(f'v_xor_b32 {vr(t0)}, {vr(g)}, {vr(t1)}')
        a.I(f'v_and_b32 {vr(t0)}, 1, {vr(t0)}')
        a.I(f'v_lshl_or_b32 {vr(t0)}, {vr(t0)}, 1, {vr(t1)}')
        a.I(f'v_bfe_u32 {vr(t1)}, v0, 1, 1')
        a.I(f'v_xor_b32 {vr(t0)}, {vr(t0)}, {vr(t1)}')
        a.I(f'v_lshlrev_b32 {vr(t0)}, 4, {vr(t0)}')
        a.I(f'v_lshl_add_u32 {vr(t0)}, {vr(g)}, 12, {vr(t0)}')
        a.I(f'v_bfe_u32 {vr(t1)}, v0, 2, 2')
        a.I(f'v_lshl_add_u32 {vr(t0)}, {vr(t1)}, 7, {vr(t0)}')
        a.I(f'v_bfe_u32 {vr(t1)}, v0, 3, 1')
        a.I(f'v_xor_b32 {vr(t1)}, {sr(sKS)}, {vr(t1)}')
        a.I(f'v_lshl_add_u32 {vr(t0)}, {vr(t1)}, 6, {vr(t0)}')
        a.I(f'v_and_b32 {vr(t1)}, 1, v0')
        a.I(f'v_lshl_add_u32 {vr(t0)}, {vr(t1)}, 3, {vr(t0)}')
        a.I(f's_lshl_b32 s3, {sr(sNH)}, 11')
        a.I('s_add_u32 s3, s3, 16384')
        a.I(f'v_add_u32 {vr(vWp)}, s3, {vr(t0)}')
        a.I(f'v_xor_b32 {vr(vWp + 1)}, 32, {vr(vWp)}')
        a.I(f'v_add_u32 {vr(vX)}, {XB}, {vr(vL16)}')
        a.I(f'v_add_u32 {vr(vX + 1)}, {XB + 9216}, {vr(vL16)}')
        for i in range(0, 72, 2): a.I(f'v_mov_b64 {vr(ACC + i, 2)}, 0')
        a.I(f's_add_u32 {sr(sE)}, s16, {EXCH_OFF}')
        a.I(f's_addc_u32 {sr(sE + 1)}, s17, 0')
        a.I(f's_mov_b32 {sr(sE + 2)}, {256 * 36864}')
        a.I(f's_mov_b32 {sr(sE + 3)}, 0x20000')
        a.I(f's_mul_i32 s3, {sr(sB)}, {144 * 4096}')
        a.I(f's_add_u32 {sr(sD)}, s10, s3')
        a.I(f's_addc_u32 {sr(sD + 1)}, s11, 0')
        a.I(f's_mov_b32 {sr(sD + 2)}, {144 * 4096}')
        a.I(f's_mov_b32 {sr(sD + 3)}, 0x20000')
        a.I(f's_cmp_eq_u32 {sr(sNH)}, 0')
        a.I('s_cselect_b32 s5, 1, 0')
        a.I(f's_cselect_b32 {sr(sPC)}, 9, 7')
        a.I('s_xor_b32 s3, s2, s5')
        a.I('s_lshl_b32 s3, s3, 1')
        a.I(f's_add_u32 s3, s3, {sr(sKS)}')
        a.I(f's_lshl_b32 {sr(sT0)}, s3, 7')
        a.I(f's_mul_i32 {sr(sOX)}, s3, 18432')
        a.I(f'v_mov_b32 {vr(t0)}, 0')
        a.I(f's_mov_b32 {sr(sSL)}, 0')
        FS = (24, 68)
        def reads(F, slot, ks):
            w = [f'ds_read_b64_tr_b16 {vr(F + 4 * j + 2 * h, 2)}, {vr(vWp + j)} offset:{K.wslot(slot) - 16384 + ks * 1024 + h * 512}' for j in range(2) for h in range(2)]
            x = [f'ds_read_b128 {vr(F + 8 + 4 * t, 4)}, {vr(vX + ks)} offset:{slot * 18432 + t * 1024}' for t in range(9)]
            return w[:2] + x[:1] + w[2:] + x[1:]
        G2 = OPT['gate2']
        def kstep(Fc, Fn, nslot, nks, gated, vm=''):
            rd_ = reads(Fn, nslot, nks)
            if not gated: a.I(f's_waitcnt lgkmcnt({OPT["lw2"]})')
            k = 0
            for t in range(9):
                for j in range(2):
                    if gated and k == G2:
                        a.I(f's_waitcnt {vm}lgkmcnt(0)')
                        a.I('s_barrier')
                    if not gated and k == 6: a.I(f's_waitcnt lgkmcnt(6)')
                    a.I(f'{MF} {vr(acc(t, j), 4)}, {vr(Fc + 4 * j, 4)}, {vr(Fc + 8 + 4 * t, 4)}, {vr(acc(t, j), 4)}')
                    if k >= (G2 if gated else 0) and rd_: a.I(rd_.pop(0))
                    k += 1
            assert not rd_
        if OPT['cprio']: a.I(f's_setprio {OPT["cprio"]}')
        a.I('s_waitcnt lgkmcnt(0)')
        a.I('s_barrier')
        st.cyc()
        a.many(reads(FS[0], 0, 0))
        a.I(f's_mov_b32 {sr(sCNT)}, 0')
        lg0 = [set(x) for x in a.lg]
        a.label('k2_cloop')
        for i in range(4):
            if OPT['kpf'] and i in (OPT['kpf'] - 1, OPT['kpf']):
                a.I(f's_cmp_eq_u32 {sr(sCNT)}, 8')
                a.I(f's_cbranch_scc1 k2_e{i}')
                a.label(f'k2_r{i}')
            kstep(FS[0], FS[1], i, 1, False)
            kstep(FS[1], FS[0], (i + 1) & 3, 0, True, 'vmcnt(0) ' if i == 2 else '')
        assert [set(x) for x in a.lg] == lg0
        st.sh()
        a.I(f's_add_u32 {sr(sCNT)}, {sr(sCNT)}, 1')
        a.I(f's_cmp_lt_u32 {sr(sCNT)}, {sr(sPC)}')
        a.I('s_cbranch_scc1 k2_cloop')
        st.cyc()
        XP = NT('xpol')
        a.I('s_cmp_eq_u32 s5, 1')
        a.I('s_cbranch_scc1 k2_keep')
        SB = {1: (8,), 2: (5, 11), 0: ()}[OPT['ssplit']]
        H = OPT['xbf']
        NX = 9 if H else 18
        if H: SB = ()
        for k in range(NX):
            src = ACC + (8 if H else 4) * k
            if H:
                for q in range(4): a.I(f'v_cvt_pk_bf16_f32 {vr(src + q)}, {vr(src + 2 * q)}, {vr(src + 2 * q + 1)}')
            a.I(f'buffer_store_dwordx4 {vr(src, 4)}, {vr(vL16)}, {sr(sE, 4)}, {sr(sOX)} offen offset:{(k & 3) * 1024}{XP}')
            if k & 3 == 3: a.I(f's_add_u32 {sr(sOX)}, {sr(sOX)}, 4096')
            if k in SB: a.I('s_barrier')
        stn = st.n
        st.cyc()
        for _ in range(OPT['sbar']): a.I('s_barrier')
        a.I(f'v_mov_b32 {vr(t1)}, 1')
        a.I('s_mov_b64 exec, 1')
        a.I('s_waitcnt vmcnt(0)')
        st.cyc()
        a.I(f'buffer_store_dword {vr(t1)}, {vr(t0)}, {sr(sF, 4)}, {sr(sT0)} offen{XP}')
        a.I('s_mov_b64 exec, -1')
        for _ in range(8 - len(SB) - OPT['sbar']): a.I('s_barrier')
        st.cyc(); st.real()
        st.flush(16, K.sWAVE, sW, t1); K.fl1(t1)
        a.I('s_endpgm')
        def xloads():
            for k in range(NX):
                a.I(f'buffer_load_dwordx4 {vr(TMP + 4 * k, 4)}, {vr(vL16)}, {sr(sE, 4)}, {sr(sOX)} offen offset:{(k & 3) * 1024}{XP}')
                if k & 3 == 3: a.I(f's_add_u32 {sr(sOX)}, {sr(sOX)}, 4096')
        if OPT['kpf']:
            a.auto = False
            i = OPT['kpf']
            a.label(f'k2_e{i - 1}')
            a.I(f'buffer_load_dword {vr(t1)}, {vr(t0)}, {sr(sF, 4)}, {sr(sT0)} offen{XP}')
            a.I(f's_branch k2_r{i - 1}')
            a.label(f'k2_e{i}')
            a.I('s_waitcnt vmcnt(0)')
            a.I(f'v_cmp_eq_u32 vcc, 1, {vr(t1)}')
            a.I(f's_cbranch_vccz k2_r{i}')
            xloads()
            a.I(f's_mov_b32 {sr(sSL)}, 1')
            a.I(f's_branch k2_r{i}')
            a.auto = True
        a.label('k2_keep')
        st.n = stn
        a.I(f's_mov_b32 {sr(sCNT)}, 0')
        st.cyc()
        a.I(f's_cmp_eq_u32 {sr(sSL)}, 1')
        a.I('s_cbranch_scc1 k2_have')
        a.label('k2_poll')
        a.I(f'buffer_load_dword {vr(t1)}, {vr(t0)}, {sr(sF, 4)}, {sr(sT0)} offen{XP}')
        a.I(f's_add_u32 {sr(sCNT)}, {sr(sCNT)}, 1')
        a.I('s_waitcnt vmcnt(0)')
        a.I(f'v_cmp_eq_u32 vcc, 1, {vr(t1)}')
        a.I('s_cbranch_vccnz k2_got ; POLL')
        a.I(f's_cmp_lt_u32 {sr(sCNT)}, {OPT["pollmax"]}')
        a.I('s_cbranch_scc1 k2_poll')
        a.label('k2_got')
        xloads()
        a.label('k2_have')
        st.cyc()
        a.I(f'v_and_b32 {vr(t2)}, 15, v0')
        a.I(f'v_lshlrev_b32 {vr(t2)}, 12, {vr(t2)}')
        a.I(f'v_lshl_add_u32 {vr(t2)}, {vr(g)}, 4, {vr(t2)}')
        a.I(f's_lshl_b32 s3, {sr(sBLK)}, 11')
        a.I(f's_lshl_b32 s4, {sr(K.sHP)}, 7')
        a.I('s_add_u32 s3, s3, s4')
        a.I(f's_lshl_b32 s4, {sr(sKS)}, 6')
        a.I('s_add_u32 s3, s3, s4')
        for t in range(9):
            d = acc(t, 0)
            if H:
                a.I('s_waitcnt vmcnt(8)')
                for k in range(4):
                    a.I(f'v_lshlrev_b32 {vr(TMP + 40 + 2 * k)}, 16, {vr(TMP + 4 * t + k)}')
                    a.I(f'v_and_b32 {vr(TMP + 41 + 2 * k)}, 0xffff0000, {vr(TMP + 4 * t + k)}')
                for k in range(4): a.I(f'v_pk_add_f32 {vr(d + 2 * k, 2)}, {vr(d + 2 * k, 2)}, {vr(TMP + 40 + 2 * k, 2)}')
            else:
                a.I(f's_waitcnt vmcnt({16 - t})')
                for k in range(4): a.I(f'v_pk_add_f32 {vr(d + 2 * k, 2)}, {vr(d + 2 * k, 2)}, {vr(TMP + 8 * t + 2 * k, 2)}')
            for k in range(4): a.I(f'v_cvt_pk_bf16_f32 {vr(d + k)}, {vr(d + 2 * k)}, {vr(d + 2 * k + 1)}')
            for mn in ('v_permlane32_swap_b32', 'v_permlane16_swap_b32'):
                for k in range(2): a.I(f'{mn} {vr(d + k)}, {vr(d + 2 + k)}')
            a.I(f'buffer_store_dwordx4 {vr(d, 4)}, {vr(t2)}, {sr(sD, 4)}, s3 offen{NT("outp")}')
            a.I('s_add_u32 s3, s3, 65536')
        st.cyc(); st.real()
        st.flush(16, K.sWAVE, sW, t0); K.fl1(t0)
        a.label('k1_end')
        a.raw('s_endpgm')
        return a

HEADER = open(f'cdna_kernels/{NAME}.s.ref').read().split('; Override launch')[0]
def kd(name, vg, sg=102):
    return f'''.amdhsa_kernel {name}
  .amdhsa_next_free_vgpr {vg}
  .amdhsa_next_free_sgpr {sg}
  .amdhsa_accum_offset {(min(vg, 256) + 3) // 4 * 4}
  .amdhsa_group_segment_fixed_size 0
  .amdhsa_kernarg_size 104
  .amdhsa_user_sgpr_count 2
  .amdhsa_user_sgpr_kernarg_segment_ptr 1
  .amdhsa_system_sgpr_workgroup_id_x 1
.end_amdhsa_kernel
'''
def main():
    ks = [('attn_kernel', gen_k1(), 256, 163840)]
    out = HEADER
    if OPT['fuse']:
        ks = [(NAME + '_kernel', ks[0][1], 256, 163840)]
        out += '; @launch grid=(256,1,1) block=(512,1,1) lds=163840\n'
    else:
        for nm, _, _, lds in ks:
            out += f'; @launch kernel={nm} grid=(256,1,1) block=(512,1,1) lds={lds}\n'
    out += '.amdgcn_target "amdgcn-amd-amdhsa--gfx950"\n.text\n'
    for nm, a, vg, lds in ks:
        if OPT.get('novm'):
            seen = False; keep = []
            for x in a.ins:
                if x.mn == 's_barrier': seen = True
                if x.label in ('k2_m1',): seen = False
                if x.label == 'k2_cloop': seen = False; OPT['_stop'] = 1
                if OPT.get('_stop'): seen = False
                if seen and x.mn == 'buffer_load_dwordx4': continue
                keep.append(x)
            a.ins = keep
        if OPT.get('nokv'): a.ins = [x for x in a.ins if not (x.kind == 'vmem' and x.mn == 'buffer_load_dwordx4' and not x.lds and 'nt' in x.mods)]
        if OPT.get('nomfma'): a.ins = [x for x in a.ins if x.kind != 'mfma']
        if OPT.get('nods'): a.ins = [x for x in a.ins if not (x.kind == 'ds' and 'read' in x.mn)]
        n = a.pad_hazards(verbose=bool(OPT.get('v')))
        errs = 0; nbs = set()
        for wave in range(8):
            for pol in (lambda i, x: 'POLL' in x.text, lambda i, x: True):
              for wgid in (3, 4, 5):
                tr = a.trace(wgid, wave, pol)
                e, nb = a.verify_waits(tr, quiet=(errs > 0 or bool(OPT.get('novm')) or OPT['stamp'] == 4)); errs += e; nbs.add(nb)
        assert (len(nbs) == 1 or (len(nbs) == 2 and max(nbs) - min(nbs) == 7 - OPT['sbar'])) and (errs == 0 or OPT.get('novm') or OPT['stamp'] == 4), (nbs, errs)
        print(f'{nm}: {len(a.ins)} lines, nops added {n}, wait errors {errs}, barriers {nb}, trace len {len(tr)}', file=sys.stderr)
        out += f'.globl {nm}\n.p2align 8\n.type {nm},@function\n{nm}:\n' + a.text()
    out += '.section .rodata,"a"\n'
    for nm, a, vg, lds in ks:
        out += '.p2align 6\n' + kd(nm, vg)
    open(sys.argv[1], 'w').write(out)
main()
```

```python
import sys, math, struct
from asmlib import *

NAME = 'concat_heads__mha_block_cached__mha_block_cached__near_ridge'
OPT = dict(stamp=0, kvnt=1, wnt=0, xnt=0, ont=2, wont=0, oldnt=0, rot1=0, rot2=3, wopf=3, ord=1, desync=1, pre1=1, gate=2, cprio=1, tail=1, rotc=0, rhh=0, vfirst=1, hpmap=2, s2=1, fuse=1, kvm='-', kw='-', finp=1, b1at=2, grp=4, lin=0, gk=24, gv=32, fast1=1, xbf=1, kvl2=0, cvn=7, cvpk=1, kv0=0, kvs=3, lprio=0, whalf=0, offm=0, offsh=0, pubat=0, b2at=3, kpf=3, spread=1, gate2=0, lw2=4, sbar=3, ssplit=1, ntm=255, oldf=2, cpf=1, sy=4, nimm=3, aux0=0, auxs=4, pp=0, mv=0, mk=0, nwo=16, pfp=0, xpol=2, outp=0, pollmax=100000, qprio=1, rs0=10, rs1=13, stag=1, aprio=1, pS=0, pM=0, pV=0, smfirst=0)
for a in sys.argv[2:]:
    k, v = a.split('='); OPT[k] = int(v) if v.lstrip('-').isdigit() else v

def fbits(x): return '0x%08x' % struct.unpack('<I', struct.pack('<f', x))[0]
NT = lambda k: {0: '', 1: ' nt', 2: ' sc1', 3: ' sc0 sc1', 4: ' sc1 nt'}[OPT[k]]
APOL = lambda kind, j: ' nt' if (OPT['ntm'] >> (j + (4 if kind == 'V' else 0))) & 1 else ''
THRV = '0x7f800000' if OPT.get('novm') else fbits(8.0)
O_SLICE = 128 * 9216
STAMP_OFF = 64 << 20
EXCH_OFF = 32 << 20
FLAG_OFF = 48 << 20

class Stamper:
    def __init__(self, a, region):
        self.a = a; self.n = 0; self.region = region
        self.on = OPT.get('sreg', 0) == region or OPT['stamp'] == 5
    def real(self):
        if not self.on: return
        if OPT['stamp'] == 5:
            if self.region == 0 and not self.n: self.a.I('s_memrealtime s[76:77]'); self.n = 1
            return
        if OPT['stamp'] == 4 and self.n: return
        if OPT['stamp']:
            self.a.I(f's_memrealtime {sr(76 + 2 * self.n, 2)}'); self.n += 1
    def cyc(self):
        if not self.on: return
        if OPT['stamp'] == 5: return
        if OPT['stamp'] == 4:
            self.a.raw('s_waitcnt lgkmcnt(0)'); self.sh(); return
        if OPT['stamp']:
            self.a.I(f's_memtime {sr(76 + 2 * self.n, 2)}'); self.n += 1
    def sh(self):
        if not self.on: return
        if OPT['stamp'] == 4:
            for i in range(13): self.a.raw(f's_mov_b32 s{80 + i}, s{81 + i}')
            self.a.raw('s_mov_b32 s93, s98')
            self.a.raw('s_memtime s[98:99]')
    def flush(self, s_ws, s_wave, srd, vt):
        if not OPT['stamp'] or not self.on: return
        a = self.a
        if OPT['stamp'] == 5:
            if self.region == 0: return
            a.I('s_memrealtime s[78:79]'); self.n = 2
            if OPT.get('dbgspan'):
                lb = a.newlabel('dbgskip')
                a.I('s_waitcnt vmcnt(0) lgkmcnt(0)')
                a.I('s_and_b32 s3, s2, 9')
                a.I(f's_or_b32 s3, s3, {sr(s_wave)}')
                a.I('s_cmp_lg_u32 s3, 0')
                a.I(f's_cbranch_scc1 {lb}')
                a.I(f's_mov_b32 {sr(srd)}, s100'); a.I(f's_mov_b32 {sr(srd + 1)}, s101'); a.I(f's_mov_b32 {sr(srd + 2)}, 256'); a.I(f's_mov_b32 {sr(srd + 3)}, 0x20000')
                a.I('s_not_b32 s76, s76')
                a.I('s_mov_b64 exec, 1')
                a.I(f'v_mov_b32 {vr(vt)}, 0'); a.I(f'v_mov_b32 {vr(vt + 1)}, s78')
                a.I(f'buffer_atomic_umax {vr(vt + 1)}, {vr(vt)}, {sr(srd, 4)}, 0 offen offset:16 sc1')
                a.I('s_nop 1')
                a.I(f'v_mov_b32 {vr(vt + 1)}, s76')
                a.I(f'buffer_atomic_umax {vr(vt + 1)}, {vr(vt)}, {sr(srd, 4)}, 0 offen offset:20 sc1')
                a.I('s_not_b32 s76, s76')
                a.I('s_nop 1')
                a.I(f'v_mov_b32 {vr(vt + 1)}, s76')
                a.I(f'buffer_atomic_umax {vr(vt + 1)}, {vr(vt)}, {sr(srd, 4)}, 0 offen offset:24 sc1')
                a.label(lb)
                return
        regs = [76 + 2 * i for i in range(self.n)]
        if OPT['stamp'] == 4:
            regs = [76] + list(range(81, 94)) + [98]; keepn = self.n; self.n = 0
        assert self.n <= 12
        a.I('s_waitcnt vmcnt(0) lgkmcnt(0)')
        a.I(f's_add_u32 {sr(srd)}, {sr(s_ws)}, {STAMP_OFF + self.region * (1 << 20)}')
        a.I(f's_addc_u32 {sr(srd + 1)}, {sr(s_ws + 1)}, 0')
        a.I(f's_mov_b32 {sr(srd + 2)}, {1 << 20}')
        a.I(f's_mov_b32 {sr(srd + 3)}, 0x20000')
        a.I(f's_lshl_b32 s3, s2, 3')
        a.I(f's_add_u32 s3, s3, {sr(s_wave)}')
        a.I(f's_lshl_b32 s3, s3, 6')
        a.I(f'v_mov_b32 {vr(vt)}, 0')
        a.I(f'v_mov_b32 {vr(vt + 1)}, {self.n}')
        a.I(f'buffer_store_dword {vr(vt + 1)}, {vr(vt)}, {sr(srd, 4)}, s3 offen offset:60')
        a.I('s_nop 1')
        for i in range(len(regs)):
            a.I(f'v_mov_b32 {vr(vt + 1)}, {sr(regs[i])}')
            a.I(f'buffer_store_dword {vr(vt + 1)}, {vr(vt)}, {sr(srd, 4)}, s3 offen offset:{4 * i}')
            a.I('s_nop 1')
        if OPT['stamp'] == 4: self.n = keepn

def gen_k1():
    a = Asm()
    st = Stamper(a, 0)
    MF = 'v_mfma_f32_16x16x32_bf16'
    sX, sW, sK, sV, sO = 20, 24, 28, 32, 36
    sWAVE, sR, sHH, sBLK, sB, sHP = 40, 41, 42, 43, 44, 45
    sM0W, sM0X, sOW, sOX, sLOOSE, sNEXT, sKVI = 46, 47, 48, 49, 50, 51, 52
    sSLW, sSLX = 53, 54
    sCNT, sT0, sT1 = 55, 56, 57
    sKP, sVP, sM0A, sDK, sDV, sOV, sOK = 58, 59, 60, 62, 63, 64, 65
    sTHR, sTHR8, sCL, sCL8 = 66, 67, 68, 69
    sC = 70
    sKPo, sVPo = 72, 73
    sST, sROT = 74, 75
    sLINK = 6
    sH = 61
    sPFO, sMK, sMV = 48, 50, 51
    sJ = 47
    sRS, sRC = 46, 61
    vKa, vVa, vD = 1, 3, 7
    mx, mx8, tA, tB = 8, 9, 10, 11
    ONES, NEGM, Q, S, POOL, O = 12, 16, 28, 76, 116, 148
    ACC, XF, WF = 112, 76, 44
    XB, QB = 49152, 49152
    HB1 = 114688
    def acc(t, j): return ACC + (t * 4 + j) * 4
    def o_(T, d): return O + (T * 9 + (d + 1) % 9) * 4
    JUNK = O + 3
    def q_(T, k): return Q + (T * 4 + k) * 4
    def s_(T, j, tt=0): return S + (T * 2 + j) * 8 + tt * 4 if T < 2 else S + 32 + tt * 4
    def negm(T): return NEGM + 4 * T
    kvreg = {'K0': 160, 'V0': 192, 'K1': 76, 'V1': 108}
    g, n, t0, t1, t2, t3 = 12, 13, 14, 15, 16, 17

    def hfun(dst, src, tmp):
        a.I(f'v_lshrrev_b32 {vr(tmp)}, 1, {vr(src)}')
        a.I(f'v_xor_b32 {vr(dst)}, {vr(src)}, {vr(tmp)}')
        a.I(f'v_and_b32 {vr(dst)}, 1, {vr(dst)}')
        a.I(f'v_lshl_or_b32 {vr(dst)}, {vr(dst)}, 1, {vr(tmp)}')
    def tr_pattern(dst):
        a.I(f'v_lshrrev_b32 {vr(g)}, 4, v0')
        hfun(t0, g, t1)
        a.I(f'v_bfe_u32 {vr(t1)}, v0, 1, 1')
        a.I(f'v_xor_b32 {vr(t0)}, {vr(t0)}, {vr(t1)}')
        a.I(f'v_lshlrev_b32 {vr(t0)}, 4, {vr(t0)}')
        a.I(f'v_lshl_add_u32 {vr(t0)}, {vr(g)}, 12, {vr(t0)}')
        a.I(f'v_bfe_u32 {vr(t1)}, v0, 2, 2')
        a.I(f'v_lshl_add_u32 {vr(t0)}, {vr(t1)}, 7, {vr(t0)}')
        a.I(f'v_bfe_u32 {vr(t1)}, v0, 3, 1')
        a.I(f'v_lshl_add_u32 {vr(t0)}, {vr(t1)}, 6, {vr(t0)}')
        a.I(f'v_and_b32 {vr(t1)}, 1, v0')
        a.I(f'v_lshl_add_u32 {vr(dst)}, {vr(t1)}, 3, {vr(t0)}')

    a.raw('s_cmp_ge_u32 s2, 256')
    a.raw('s_cbranch_scc1 k1_end')
    st.real(); st.cyc()
    a.I('s_and_b32 s3, s2, 7')
    a.I('s_lshr_b32 s4, s2, 3')
    a.I(f's_lshr_b32 {sr(sBLK)}, s3, 2')
    a.I(f's_mul_i32 s5, {sr(sBLK)}, 40')
    a.I('s_load_dwordx8 s[8:15], s[0:1], s5')
    a.I('s_load_dwordx2 s[16:17], s[0:1], 96')
    a.I('s_add_u32 s5, s5, 32')
    a.I('s_load_dwordx2 s[18:19], s[0:1], s5')
    if OPT['fuse']: a.I('s_load_dwordx2 s[100:101], s[0:1], 88')
    a.I('s_and_b32 s5, s4, 3')
    a.I('s_lshl_b32 s6, s5, 1')
    a.I('s_add_u32 s3, s3, s6')
    a.I('s_and_b32 s3, s3, 3')
    a.I(f's_lshl_b32 {sr(sHP)}, s5, 2')
    a.I(f's_add_u32 {sr(sHP)}, {sr(sHP)}, s3')
    a.I(f's_lshr_b32 {sr(sB)}, s4, 2')
    a.I(f's_add_u32 {sr(sROT)}, {sr(sB)}, s5')
    a.I(f'v_lshrrev_b32 {vr(t0)}, 6, v0')
    a.I(f'v_readfirstlane_b32 {sr(sWAVE)}, {vr(t0)} ; WAVEID')
    a.I('v_and_b32 v0, 63, v0')
    a.I(f's_and_b32 {sr(sR)}, {sr(sWAVE)}, 3')
    a.I(f's_lshr_b32 {sr(sHH)}, {sr(sWAVE)}, 2')
    a.I(f's_lshr_b32 s3, {sr(sR)}, 1')
    a.I(f's_xor_b32 {sr(sH)}, {sr(sR)}, s3')
    a.I(f's_and_b32 {sr(sH)}, {sr(sH)}, 1')
    a.I(f's_lshl_b32 {sr(sH)}, {sr(sH)}, 1')
    a.I(f's_or_b32 {sr(sH)}, {sr(sH)}, s3')
    a.I(f'v_and_b32 {vr(t0)}, 7, v0')
    a.I(f'v_xor_b32 {vr(t0)}, {sr(sH)}, {vr(t0)}')
    a.I(f'v_bfe_u32 {vr(t1)}, v0, 4, 1')
    a.I(f'v_lshlrev_b32 {vr(t1)}, 2, {vr(t1)}')
    a.I(f'v_xor_b32 {vr(t0)}, {vr(t0)}, {vr(t1)}')
    a.I(f'v_lshlrev_b32 {vr(t0)}, 4, {vr(t0)}')
    a.I(f'v_lshrrev_b32 {vr(t1)}, 5, v0')
    a.I(f'v_lshl_add_u32 {vr(t0)}, {vr(t1)}, 7, {vr(t0)}')
    a.I(f'v_lshrrev_b32 {vr(g)}, 4, v0')
    a.I(f'v_bfe_u32 {vr(t1)}, v0, 3, 2')
    a.I(f's_lshl_b32 s3, {sr(sR)}, 4')
    a.I(f'v_add_u32 {vr(t1)}, s3, {vr(t1)}')
    a.I(f'v_lshl_add_u32 {vr(vD)}, {vr(t1)}, 8, {vr(t0)}')
    if OPT['lin']:
        a.I(f's_mul_i32 s3, {sr(sR)}, 3072')
        a.I(f'v_subrev_u32 {vr(vD)}, s3, {vr(vD)}')
    a.I(f's_lshl_b32 {sr(sM0W)}, {sr(sR)}, 12')
    def rest_setup():
        a.I(f's_mul_i32 {sr(sM0A)}, {sr(sHH)}, 81920')
        a.I(f's_add_u32 {sr(sM0A)}, {sr(sM0A)}, {sr(sM0W)}')
        a.I(f's_lshl_b32 s3, {sr(sB)}, 4')
        a.I(f's_add_u32 s3, s3, {sr(sHP)}')
        a.I('s_lshl_b32 s3, s3, 18')
        for (d, p) in ((sK, 10), (sV, 12)):
            a.I(f's_add_u32 {sr(d)}, {sr(p)}, s3')
            a.I(f's_addc_u32 {sr(d + 1)}, {sr(p + 1)}, 0')
            a.I(f's_mov_b32 {sr(d + 2)}, 262144')
            a.I(f's_mov_b32 {sr(d + 3)}, 0x20000')
    a.I(f's_cmp_eq_u32 {sr(sHH)}, 0')
    a.I('s_cbranch_scc1 k1_comp')

    def flag_srd(d):
        a.I(f's_add_u32 {sr(d)}, s16, {FLAG_OFF}')
        a.I(f's_addc_u32 {sr(d + 1)}, s17, 0')
        a.I(f's_mov_b32 {sr(d + 2)}, 98304')
        a.I(f's_mov_b32 {sr(d + 3)}, 0x20000')
    def dbg_srd(d):
        a.I(f's_mov_b32 {sr(d)}, s100')
        a.I(f's_mov_b32 {sr(d + 1)}, s101')
        a.I(f's_mov_b32 {sr(d + 2)}, 256')
        a.I(f's_mov_b32 {sr(d + 3)}, 0x20000')
    def oflag_off(d):
        a.I(f's_lshl_b32 {d}, {sr(sBLK)}, 3')
        a.I(f's_add_u32 {d}, {d}, {sr(sB)}')
        a.I(f's_lshl_b32 {d}, {d}, 4')
        a.I(f's_add_u32 {d}, {d}, {sr(sHP)}')
        a.I(f's_lshl_b32 {d}, {d}, 7')
        a.I(f's_add_u32 {d}, {d}, 65536')
    def wo_srd():
        a.I(f's_lshl_b32 s3, {sr(sB)}, 4')
        a.I(f's_add_u32 s3, s3, {sr(sHP)}')
        a.I('s_lshl_b32 s3, s3, 16')
        a.I(f's_add_u32 {sr(sX)}, s18, s3')
        a.I(f's_addc_u32 {sr(sX + 1)}, s19, 0')
        a.I(f's_mov_b32 {sr(sX + 2)}, 65536')
    vDW, vDX = 20, 24
    if OPT['lprio']: a.I(f's_setprio {OPT["lprio"]}')
    a.I(f'v_lshl_add_u32 {vr(vDW)}, {vr(t1)}, 13, {vr(t0)}')
    for tq in range(1, 4): a.I(f'v_add_u32 {vr(vDW + tq)}, {tq * (32768 - 1024)}, {vr(vDW)}')
    a.I(f's_lshr_b32 {sr(sST)}, s2, {OPT["offsh"]}')
    a.I(f's_and_b32 {sr(sST)}, {sr(sST)}, {OPT["offm"]}')
    a.I(f's_add_u32 {sr(sOX)}, {sr(sST)}, {sr(sROT)}')
    a.I(f's_and_b32 {sr(sOX)}, {sr(sOX)}, {OPT["rot1"]}')
    a.I(f's_lshl_b32 {sr(sOW)}, {sr(sOX)}, 19')
    a.I(f's_lshl_b32 s3, {sr(sHP)}, 9')
    a.I(f's_sub_u32 {sr(sW + 2)}, 8388608, s3')
    a.I(f's_mov_b32 {sr(sW + 3)}, 0x20000')
    a.I(f's_mov_b32 m0, {sr(sM0W)}')
    a.I('s_waitcnt lgkmcnt(0)')
    a.I(f's_add_u32 {sr(sW)}, s14, s3')
    a.I(f's_addc_u32 {sr(sW + 1)}, s15, 0')
    def wloads(hq):
        if OPT['whalf']:
            for tq in range(4): a.I(f'buffer_load_dwordx4 {vr(vDW + tq)}, {sr(sW, 4)}, {sr(sOW)} offen offset:{tq * 1024}{NT("wnt")} lds')
        else:
            for tq in range(4): a.I(f'buffer_load_dwordx4 {vr(vDW + tq)}, {sr(sW, 4)}, {sr(sOW)} offen offset:{tq * 1024 + hq * 256}{NT("wnt")} lds')
    sHA, sHB = 70, 71
    if OPT['whalf']:
        a.I(f's_lshr_b32 s4, {sr(sB)}, 2')
        a.I(f's_mul_i32 {sr(sHA)}, s4, {HB1}')
        a.I(f's_sub_u32 {sr(sHB)}, {HB1}, {sr(sHA)}')
        a.I(f's_add_u32 {sr(sHA)}, {sr(sHA)}, {sr(sM0W)}')
        a.I(f's_add_u32 {sr(sHB)}, {sr(sHB)}, {sr(sM0W)}')
        a.I(f's_lshl_b32 {sr(sKPo)}, s4, 8')
        a.I(f's_mov_b32 m0, {sr(sHA)}')
        a.I(f's_or_b32 {sr(sOW)}, {sr(sOW)}, {sr(sKPo)}')
    wloads(0)
    a.I(f's_mul_i32 s3, {sr(sB)}, 294912')
    if not OPT['whalf']:
        a.I(f's_add_u32 m0, {sr(sM0W)}, {HB1 - 256}')
        wloads(1)
    a.I(f's_add_u32 {sr(sX)}, s8, s3')
    a.I(f's_addc_u32 {sr(sX + 1)}, s9, 0')
    a.I(f's_mov_b32 {sr(sX + 2)}, 294912')
    a.I(f's_mov_b32 {sr(sX + 3)}, 0x20000')
    a.I(f'v_and_b32 {vr(t1)}, 2, {vr(g)}')
    a.I(f'v_lshlrev_b32 {vr(t1)}, 1, {vr(t1)}')
    a.I(f'v_xor_b32 {vr(t0)}, {vr(g)}, {vr(t1)}')
    a.I(f'v_and_b32 {vr(t1)}, 7, v0')
    a.I(f'v_xor_b32 {vr(t0)}, {vr(t0)}, {vr(t1)}')
    a.I(f'v_lshlrev_b32 {vr(t0)}, 4, {vr(t0)}')
    a.I(f'v_lshrrev_b32 {vr(t1)}, 3, v0')
    a.I(f'v_lshl_add_u32 {vr(t0)}, {vr(t1)}, 11, {vr(t0)}')
    a.I(f'v_xor_b32 {vr(t1)}, 64, {vr(t0)}')
    a.I(f's_lshl_b32 s3, {sr(sR)}, 16')
    for j in range(4):
        a.I(f'v_add_u32 {vr(vDX + j)}, s3, {vr((t0, t1)[j & 1])}')
        if j < 3: a.I(f's_add_u32 s3, s3, {16384 - 1024}')
    a.I(f's_lshl_b32 s3, {sr(sR)}, 6')
    a.I(f'v_xor_b32 {vr(t0)}, s3, {vr(t0)}')
    a.I(f's_lshl_b32 s3, {sr(sR)}, 14')
    a.I('s_add_u32 s3, s3, 262144')
    a.I(f'v_add_u32 {vr(vDX + 4)}, s3, {vr(t0)}')
    a.I(f's_lshl_b32 {sr(sM0X)}, {sr(sR)}, 10')
    a.I(f's_add_u32 {sr(sM0X)}, {sr(sM0X)}, {XB + 16384}')
    a.I(f's_add_u32 {sr(sST)}, {sr(sST)}, 1')
    a.I(f's_mov_b32 {sr(sSLW)}, 0')
    a.I(f's_mov_b32 {sr(sSLX)}, 0')
    def stage_w():
        R = OPT['rot1']
        a.many([f's_add_u32 {sr(sOX)}, {sr(sST)}, {sr(sROT)}',
                f's_and_b32 {sr(sOX)}, {sr(sOX)}, {R}',
                f's_and_b32 {sr(sOW)}, {sr(sST)}, {15 & ~R}',
                f's_or_b32 {sr(sOX)}, {sr(sOX)}, {sr(sOW)}',
                f's_add_u32 m0, {sr(sHA if OPT["whalf"] else sM0W)}, {sr(sSLW)}',
                f's_lshl_b32 {sr(sOW)}, {sr(sOX)}, 19',
                f's_add_u32 {sr(sST)}, {sr(sST)}, 1'])
        if OPT['whalf']: a.I(f's_or_b32 {sr(sOW)}, {sr(sOW)}, {sr(sKPo)}')
        wloads(0)
        if not OPT['whalf']:
            a.I(f's_add_u32 m0, m0, {HB1 - 256}')
            wloads(1)
    def stage_x():
        lb = a.newlabel('k1_skipx')
        a.I(f's_add_u32 {sr(sT0)}, {sr(sM0W)}, {sr(sSLX)}')
        a.I(f's_add_u32 m0, {sr(sT0)}, {XB}')
        a.I(f's_lshl_b32 {sr(sOX)}, {sr(sOX)}, 7')
        for j in range(4): a.I(f'buffer_load_dwordx4 {vr(vDX + j)}, {sr(sX, 4)}, {sr(sOX)} offen offset:{j * 1024}{NT("xnt")} lds')
        a.I(f's_add_u32 m0, {sr(sM0X)}, {sr(sSLX)}')
        a.I(f's_cmp_ge_u32 {sr(sR)}, 2')
        a.I(f's_cbranch_scc1 {lb}')
        a.I(f'buffer_load_dwordx4 {vr(vDX + 4)}, {sr(sX, 4)}, {sr(sOX)} offen{NT("xnt")} lds')
        a.label(lb)
        if OPT['whalf']:
            a.I(f's_add_u32 m0, {sr(sHB)}, {sr(sSLW)}')
            a.I(f's_xor_b32 {sr(sOW)}, {sr(sOW)}, 256')
            wloads(1)
        a.I(f's_add_u32 {sr(sSLW)}, {sr(sSLW)}, 16384')
        a.I(f's_add_u32 {sr(sSLX)}, {sr(sSLX)}, 18432')
        a.I(f's_cmp_eq_u32 {sr(sSLW)}, 49152')
        a.I(f's_cselect_b32 {sr(sSLW)}, 0, {sr(sSLW)}')
        a.I(f's_cselect_b32 {sr(sSLX)}, 0, {sr(sSLX)}')
    stage_x()
    rest_setup()
    if OPT['pre1']:
        stage_w()
        a.I(f's_waitcnt vmcnt({4 if OPT["whalf"] else 8})')
        a.I('s_barrier')
        stage_x()
    else:
        a.I('s_waitcnt vmcnt(0)')
        a.I('s_barrier')
        stage_w(); stage_x()
    st0 = st.n
    st.cyc()
    stage_w(); stage_x()
    a.I(f's_cmp_lg_u32 {sr(sR)}, 0')
    a.I('s_cbranch_scc1 k1_noreset')
    flag_srd(sO)
    oflag_off('s4')
    a.I('s_lshl_b32 s3, s2, 8')
    a.I(f'v_lshlrev_b32 {vr(t0)}, 2, v0')
    a.I(f'v_and_b32 {vr(t2)}, 127, {vr(t0)}')
    a.I(f'v_mov_b32 {vr(t1)}, 0')
    a.I(f'buffer_store_dword {vr(t1)}, {vr(t0)}, {sr(sO, 4)}, s3 offen sc1')
    a.I(f'buffer_store_dword {vr(t1)}, {vr(t2)}, {sr(sO, 4)}, s4 offen sc1')
    a.label('k1_noreset')
    if OPT['kvs'] == 3:
        a.I(f's_mul_i32 s3, s2, 171')
        a.I(f's_lshr_b32 s3, s3, 9')
        a.I(f's_mul_i32 s3, s3, 3')
        a.I(f's_sub_u32 {sr(sNEXT)}, s2, s3')
    else:
        a.I(f's_lshr_b32 s3, s2, 3')
        a.I(f's_and_b32 {sr(sNEXT)}, s3, 1')
    a.I(f's_add_u32 {sr(sNEXT)}, {sr(sNEXT)}, {OPT["kv0"]}')
    assert OPT['kv0'] + 4 * OPT['kvs'] - 1 <= 12
    if OPT['kvm'] != '-':
        ms = [sum(1 << int(c, 16) for c in m) for m in OPT['kvm'].split('/')]
        a.I('s_lshr_b32 s3, s2, 3')
        a.I(f's_and_b32 s3, s3, {len(ms) - 1}')
        a.I(f's_mov_b32 {sr(sNEXT)}, {ms[0]}')
        for i, m in enumerate(ms[1:], 1):
            a.I(f's_cmp_eq_u32 s3, {i}')
            a.I(f's_cselect_b32 {sr(sNEXT)}, {m}, {sr(sNEXT)}')
    a.I(f's_mov_b32 {sr(sLOOSE)}, 0')
    a.I(f's_mov_b32 {sr(sKVI)}, 0')
    a.I(f's_mov_b32 {sr(sCNT)}, 0')
    def lbar():
        lb = a.newlabel('k1_loose')
        a.I(f's_cmp_gt_i32 {sr(sLOOSE)}, 0')
        a.I(f's_cbranch_scc1 {lb}')
        a.I('s_waitcnt vmcnt(12)')
        a.label(lb)
        a.I(f's_sub_i32 {sr(sLOOSE)}, {sr(sLOOSE)}, 1')
        a.I('s_waitcnt vmcnt(20)')
        a.I('s_barrier')
        if OPT.get('qst'): st.cyc()
    a.label('k1_lloop')
    lbar()
    stage_w(); stage_x()
    if OPT['kvm'] != '-':
        a.I(f's_lshr_b32 s3, {sr(sNEXT)}, {sr(sCNT)}')
        a.I('s_and_b32 s3, s3, 1')
        a.I('s_cbranch_scc0 k1_kvdone')
    else:
        a.I(f's_cmp_lg_u32 {sr(sCNT)}, {sr(sNEXT)}')
        a.I('s_cbranch_scc1 k1_kvdone')
        a.I(f's_add_u32 {sr(sNEXT)}, {sr(sNEXT)}, {OPT["kvs"]}')
    a.I(f's_add_u32 {sr(sKVI)}, {sr(sKVI)}, 1')
    for m, it in enumerate(('K0', 'V0', 'K1', 'V1')):
        a.I(f's_cmp_lg_u32 {sr(sKVI)}, {m + 1}')
        a.I(f's_cbranch_scc1 k1_kv{m + 1}')
        a.I(f's_mov_b32 {sr(sLOOSE)}, 2')
        for hq in range(2):
            a.I(f's_mov_b32 {sr(sT0)}, {int(it[1]) * 16384 + hq * 131072}')
            for j in range(4):
                a.I(f'buffer_load_dwordx4 {vr(kvreg[it] + 16 * hq + 4 * j, 4)}, {vr(vD)}, {sr(sK if it[0] == "K" else sV, 4)}, {sr(sT0)} offen offset:{j * 1024}{NT("kvnt") if (m < 2 or not OPT["kvl2"]) else ""}')
                if OPT['lin'] and j < 3: a.I(f's_add_u32 {sr(sT0)}, {sr(sT0)}, 3072')
        if m < 3: a.I('s_branch k1_kvdone')
        a.label(f'k1_kv{m + 1}')
    a.label('k1_kvdone')
    a.I(f's_add_u32 {sr(sCNT)}, {sr(sCNT)}, 1')
    a.I(f's_cmp_lt_u32 {sr(sCNT)}, 13')
    a.I('s_cbranch_scc1 k1_lloop')
    a.I(f's_add_u32 s3, {sr(sM0W)}, 16384')
    a.I(f'v_lshl_add_u32 {vr(tA)}, v0, 4, s3')
    a.I(f'v_add_u32 {vr(tB)}, {81920 + 32768}, {vr(tA)}')
    a.I(f'v_add_u32 {vr(mx)}, {81920 - 16384}, {vr(tA)}')
    def kvwrite(it, off, b1=tB, off1=None):
        for hq in range(2):
            o = off if (hq == 0 or off1 is None) else off1
            for j in range(4): a.I(f'ds_write_b128 {vr((tA, b1)[hq])}, {vr(kvreg[it] + 16 * hq + 4 * j, 4)} offset:{o + j * 1024}')
    lbar()
    npf = 0
    a.I(f'v_lshlrev_b32 {vr(t1)}, 4, v0')
    if OPT['cpf']:
        a.I(f's_getpc_b64 {sr(sO, 2)}')
        a.label('k1_pc')
        a.I(f's_mov_b32 {sr(sO + 2)}, k1_end-k1_pc')
        a.I(f's_mov_b32 {sr(sO + 3)}, 0x20000')
        a.I(f's_lshr_b32 s3, {sr(sHP)}, 2')
        a.I('s_lshl_b32 s3, s3, 2')
        a.I(f's_add_u32 s3, s3, {sr(sR)}')
        a.I('s_lshl_b32 s3, s3, 11')
        for k in range(2):
            a.I(f'buffer_load_dwordx4 v[228:231], {vr(t1)}, {sr(sO, 4)}, s3 offen offset:{k * 1024} ; NOCHECK')
            npf += 1
    junk = []
    for it in [OPT['kw'][i:i + 2] for i in range(0, len(OPT['kw']), 2) if OPT['kw'][i] in 'KV']:
        for hq in range(2):
            for j in range(4):
                junk.append(([f's_mov_b32 {sr(sT0)}, {int(it[1]) * 16384 + hq * 131072}'] if j == 0 else []) +
                            [f'buffer_load_dwordx4 v[224:227], {vr(vD)}, {sr(sK if it[0] == "K" else sV, 4)}, {sr(sT0)} offen offset:{j * 1024} ; NOCHECK'])
    if OPT['wopf'] == 3:
        wo_srd()
        for k in range(OPT['nwo']):
            junk.append(([f's_lshl_b32 {sr(sT0)}, {sr(sR)}, 14'] if k == 0 else []) + ([f's_add_u32 {sr(sT0)}, {sr(sT0)}, 4096'] if k and k & 3 == 0 else []) +
                        [f'buffer_load_dwordx4 v[224:227], {vr(t1)}, {sr(sX, 4)}, {sr(sT0)} offen offset:{(k & 3) * 1024} ; NOCHECK'])
    for x in junk[:8]: a.many(x); npf += 1
    kvwrite('K0', 0)
    a.I(f's_waitcnt vmcnt({npf})')
    a.I('s_barrier')
    for x in junk[8:16]: a.many(x)
    kvwrite('V0', 16384)
    a.I('s_barrier')
    for x in junk[16:]: a.many(x)
    a.I(f's_call_b64 {sr(sLINK, 2)}, k1_asetup')
    for i in range(O, 256, 2):
        if not 224 <= i < 232: a.I(f'v_mov_b64 {vr(i, 2)}, 0')
    a.I('s_waitcnt vmcnt(0)')
    for i in range(224, 232, 2): a.I(f'v_mov_b64 {vr(i, 2)}, 0')
    a.I(f's_cmp_lg_u32 {sr(sR)}, 0')
    a.I('s_cbranch_scc1 k1_nocount')
    dbg_srd(sO)
    a.I(f'v_mov_b32 {vr(140)}, 0')
    a.I(f'v_mov_b32 {vr(141)}, 1')
    a.I('s_mov_b64 exec, 1')
    a.I(f'buffer_atomic_add {vr(141)}, {vr(140)}, {sr(sO, 4)}, 0 offen sc1')
    a.I('s_mov_b64 exec, -1')
    a.label('k1_nocount')
    if OPT['lprio']: a.I('s_setprio 0')
    st.cyc()
    a.I('s_branch k1_join')

    a.label('k1_asetup')
    a.I(f's_lshl_b32 {sr(sKP)}, {sr(sHH)}, 15')
    a.I(f's_add_u32 {sr(sKP)}, {sr(sKP)}, 16384')
    a.I(f's_add_u32 {sr(sVP)}, {sr(sKP)}, 16384')
    a.I(f's_and_b32 s3, {sr(sR)}, 1')
    a.I('s_lshl_b32 s3, s3, 11')
    a.I(f's_lshl_b32 {sr(sJ)}, s3, 1')
    a.I(f's_sub_u32 {sr(sJ)}, 2048, {sr(sJ)}')
    a.I(f's_mul_i32 s5, {sr(sHH)}, 81920')
    a.I('s_add_u32 s5, s5, s3')
    a.I(f's_add_u32 s4, s5, {sr(sVP)}')
    a.I(f's_add_u32 s5, s5, {sr(sKP)}')
    a.I(f's_mul_i32 s3, {sr(sHH)}, 36864')
    a.I(f's_add_u32 s3, s3, {QB}')
    a.I(f'v_lshl_add_u32 {vr(tB)}, v0, 4, s3')
    a.I(f's_lshl_b32 s3, {sr(sR)}, 13')
    a.I(f'v_add_u32 {vr(mx8)}, s3, {vr(tB)}')
    tr_pattern(vVa)
    a.I(f'v_add_u32 {vr(vVa)}, s4, {vr(vVa)}')
    for j in range(1, 4): a.I(f'v_xor_b32 {vr(vVa + j)}, {32 * j}, {vr(vVa)}')
    a.I(f'v_bfe_u32 {vr(n)}, v0, 2, 2')
    hfun(t0, n, t1)
    a.I(f'v_xor_b32 {vr(t0)}, {vr(t0)}, {vr(g)}')
    a.I(f'v_lshlrev_b32 {vr(t0)}, 4, {vr(t0)}')
    a.I(f'v_lshl_add_u32 {vr(t0)}, {vr(n)}, 12, {vr(t0)}')
    a.I(f'v_and_b32 {vr(t1)}, 3, v0')
    a.I(f'v_lshl_add_u32 {vr(t0)}, {vr(t1)}, 7, {vr(t0)}')
    a.I(f'v_bfe_u32 {vr(t1)}, v0, 1, 1')
    a.I(f'v_lshl_add_u32 {vr(t0)}, {vr(t1)}, 6, {vr(t0)}')
    a.I(f'v_add_u32 {vr(vKa)}, s5, {vr(t0)}')
    a.I(f'v_xor_b32 {vr(vKa + 1)}, 64, {vr(vKa)}')
    for i in range(4): a.I(f'v_mov_b32 {vr(ONES + i)}, 0x3f803f80')
    for i in range(0, 12, 2): a.I(f'v_mov_b64 {vr(NEGM + i, 2)}, 0')
    NEG_BIG = fbits(-3.0e38)
    for s in (sTHR, sTHR8, sCL, sCL8): a.I(f's_mov_b32 {sr(s)}, {NEG_BIG}')
    a.I(f's_lshl_b32 s3, {sr(sHH)}, 17')
    a.I(f'v_add_u32 {vr(vD)}, s3, {vr(vD)}')
    a.I(f's_mov_b32 {sr(sOV)}, 32768')
    a.I(f's_mov_b32 {sr(sOK)}, 32768')
    a.I(f's_mov_b32 {sr(sT1)}, 32768')
    a.I(f's_mov_b32 {sr(sRS)}, 0')
    a.I(f's_setpc_b64 {sr(sLINK, 2)}')

    a.label('k1_comp')
    a.lg = []
    st.n = st0
    vWp, vX, vQW = 28, 32, 34
    tr_pattern(vWp)
    a.I(f's_lshr_b32 s3, {sr(sR)}, 1')
    a.I(f's_mul_i32 s4, s3, {HB1}')
    a.I(f's_and_b32 s5, {sr(sR)}, 1')
    a.I('s_lshl_b32 s6, s5, 9')
    a.I('s_add_u32 s4, s4, s6')
    a.I(f'v_add_u32 {vr(vWp)}, s4, {vr(vWp)}')
    for j in range(1, 4): a.I(f'v_xor_b32 {vr(vWp + j)}, {32 * j}, {vr(vWp)}')
    a.I(f'v_and_b32 {vr(n)}, 15, v0')
    a.I(f'v_lshrrev_b32 {vr(t0)}, 1, {vr(n)}')
    a.I(f'v_and_b32 {vr(t1)}, 2, {vr(t0)}')
    a.I(f'v_lshlrev_b32 {vr(t1)}, 1, {vr(t1)}')
    a.I(f'v_xor_b32 {vr(t0)}, {vr(t0)}, {vr(t1)}')
    a.I(f'v_lshlrev_b32 {vr(t1)}, 1, {vr(g)}')
    a.I(f'v_xor_b32 {vr(t0)}, {vr(t0)}, {vr(t1)}')
    a.I(f'v_lshlrev_b32 {vr(t0)}, 4, {vr(t0)}')
    a.I(f'v_lshl_add_u32 {vr(t0)}, {vr(n)}, 7, {vr(t0)}')
    a.I(f'v_add_u32 {vr(vX)}, {XB}, {vr(t0)}')
    a.I(f'v_xor_b32 {vr(vX + 1)}, 16, {vr(vX)}')
    a.I(f's_mul_i32 s4, s3, 36864')
    a.I('s_lshl_b32 s6, s5, 11')
    a.I('s_add_u32 s4, s4, s6')
    a.I(f's_add_u32 s4, s4, {QB}')
    a.I(f'v_lshl_add_u32 {vr(t0)}, {vr(n)}, 4, s4')
    a.I(f'v_lshrrev_b32 {vr(t1)}, 1, {vr(g)}')
    a.I(f'v_lshl_add_u32 {vr(t0)}, {vr(t1)}, 8, {vr(t0)}')
    a.I(f'v_and_b32 {vr(t1)}, 1, {vr(g)}')
    a.I(f'v_lshl_add_u32 {vr(vQW)}, {vr(t1)}, 3, {vr(t0)}')
    a.I('s_waitcnt lgkmcnt(0)')
    rest_setup()
    a.I(f's_call_b64 {sr(sLINK, 2)}, k1_asetup')
    cval = fbits(128 ** -0.5 * math.log2(math.e))
    a.I(f's_mov_b32 {sr(sC)}, {cval}')
    a.I(f's_mov_b32 {sr(sC + 1)}, {cval}')
    for i in range(0, 144, 2): a.I(f'v_mov_b64 {vr(ACC + i, 2)}, 0')
    def xread(t, slot, ks): return f'ds_read_b128 {vr(XF + 4 * t, 4)}, {vr(vX + ks)} offset:{slot * 18432 + t * 2048}'
    def wreads(W, slot, ks):
        return [f'ds_read_b64_tr_b16 {vr(W + 4 * j + 2 * h, 2)}, {vr(vWp + j)} offset:{slot * 16384 + ks * 2048 + h * 1024}' for j in range(4) for h in range(2)]
    GT = OPT['gate']
    def kstep(Wc, Wn, nslot, nks, gated, last=False):
        wr = wreads(Wn, nslot, nks) if not last else []
        conv = []
        for t in range(9):
            for j in range(4):
                a.I(f'{MF} {vr(acc(t, j), 4)}, {vr(Wc + 4 * j, 4)}, {vr(XF + 4 * t, 4)}, {vr(acc(t, j), 4)}')
                if t >= (GT if gated else 0) and j in (0, 2) and wr: a.I(wr.pop(0))
                for _ in range(OPT['cvn']):
                    if conv: a.I(conv.pop(0))
            if gated and t == GT - 1:
                a.I('s_waitcnt lgkmcnt(0)')
                a.I('s_barrier')
                if not last:
                    for tt in range(GT): a.I(xread(tt, nslot, nks))
            elif not last and (not gated or t >= GT): a.I(xread(t, nslot, nks))
            if last and t >= GT - 1:
                lo = 0 if t == GT - 1 else t - 1
                for tc in range(lo, t): conv += convert(tc)
        if last:
            a.many(conv); a.many(convert(8))
        assert not wr
    def convert(t):
        r = []
        if OPT['cvpk']:
            for j in range(4): r += [f'v_pk_mul_f32 {vr(acc(t, j) + 2 * k, 2)}, {vr(acc(t, j) + 2 * k, 2)}, {sr(sC, 2)}' for k in range(2)]
        else:
            for j in range(4): r += [f'v_mul_f32 {vr(acc(t, j) + k)}, {sr(sC)}, {vr(acc(t, j) + k)}' for k in range(4)]
        for j in range(4): r += [f'v_cvt_pk_bf16_f32 {vr(acc(t, j) + k)}, {vr(acc(t, j) + 2 * k)}, {vr(acc(t, j) + 2 * k + 1)}' for k in range(2)]
        for j in range(4): r += [f'ds_write_b64 {vr(vQW)}, {vr(acc(t, j), 2)} offset:{t * 4096 + (j >> 1) * 1024 + (j & 1) * 512}']
        r += [f'v_mov_b64 {vr(i, 2)}, 0' for i in range(acc(t, 0), acc(t, 0) + 16, 2) if i >= O]
        return r
    W0, W1 = WF, WF + 16
    if OPT['cprio']: a.I(f's_setprio {OPT["cprio"]}')
    a.I('s_barrier')
    st.cyc()
    a.many(wreads(W0, 0, 0))
    for t in range(9): a.I(xread(t, 0, 0))
    a.I(f's_mov_b32 {sr(sCNT)}, 0')
    a.I('s_waitcnt lgkmcnt(0)')
    class _Dry(Asm): pass
    save = (a.ins, a.lg); a.ins = []; a.lg = []
    kstep(W1, W0, 0, 0, True); lg0 = [set(x) for x in a.lg]
    a.ins, a.lg = save
    a.lg = [set(x) for x in lg0]
    a.label('k1_qloop')
    for i in range(3):
        kstep(W0, W1, i, 1, False)
        kstep(W1, W0, (i + 1) % 3, 0, True)
    assert [set(x) for x in a.lg] == lg0
    a.I(f's_add_u32 {sr(sCNT)}, {sr(sCNT)}, 1')
    a.I(f's_cmp_lt_u32 {sr(sCNT)}, 5')
    a.I('s_cbranch_scc1 k1_qloop')
    kstep(W0, W1, 0, 1, False)
    kstep(W1, W0, 0, 0, True, last=True)
    if OPT['cprio']: a.I('s_setprio 0')
    st.cyc()

    a.label('k1_join')
    if OPT.get('qst'): st.on = False
    a.lg = [set()]
    a.I(f's_mov_b32 {sr(sCNT)}, 0')
    a.I(f's_lshl_b32 s5, {sr(sHH)}, 15')
    a.I(f's_add_u32 s5, s5, {sr(sM0A)}')
    a.I('s_waitcnt lgkmcnt(0)')
    a.I('s_barrier')
    for T in range(2):
        for k in range(4): a.I(f'ds_read_b128 {vr(q_(T, k), 4)}, {vr(mx8)} offset:{T * 4096 + k * 1024}')
    for k in range(4): a.I(f'ds_read_b128 {vr(q_(2, k), 4)}, {vr(tB)} offset:{32768 + k * 1024}')
    a.I('s_waitcnt lgkmcnt(0)')
    a.I('s_barrier')
    a.lg = []
    def dma_ins(kind):
        srd, so = (sK, sOK) if kind == 'K' else (sV, sOV)
        r = [[f'buffer_load_dwordx4 {vr(vD)}, {sr(srd, 4)}, {sr(so)} offen offset:{j * 1024}{APOL(kind, j)} lds'] for j in range(4)]
        if OPT['lin']:
            for j in range(3): r[j].append(f's_add_u32 {sr(so)}, {sr(so)}, 3072')
        r[3].append(f's_add_u32 {sr(so)}, {sr(so)}, {16384 - (9216 if OPT["lin"] else 0)}')
        return r
    def dma_grp(kind, m0):
        r = dma_ins(kind); r[0] = [m0, 's_nop 0'] + r[0]
        return r
    pro_aux = []
    if OPT['kvl2']:
        a.I(f's_mov_b32 {sr(sOV)}, 16384')
        a.I(f's_mov_b32 {sr(sOK)}, 16384')
        a.I(f's_mul_i32 s3, {sr(sHH)}, 49152')
        a.I('s_sub_u32 s4, 49152, s3')
        a.I(f's_add_u32 s4, s4, {sr(sM0A)}')
        for x in dma_grp('K', 's_mov_b32 m0, s4'): a.many(x)
        pro_aux = dma_grp('V', 's_add_u32 m0, s4, 16384') + dma_grp('K', 's_mov_b32 m0, s5')
    else:
        for x in dma_grp('K', 's_mov_b32 m0, s5'): a.many(x)
        a.I(f's_cmp_eq_u32 {sr(sHH)}, 0')
        a.I('s_cbranch_scc1 k1_nowr')
        kvwrite('K1', 32768, mx, 0); kvwrite('V1', 49152, mx, 16384)
    a.label('k1_nowr')
    a.lg = []
    LA, SY = 6, OPT['sy']
    def rd(kind, jl, f):
        if kind == 'K':
            return [f'ds_read_b128 {vr(POOL + 4 * f, 4)}, {vr(vKa + (f & 1))} offset:{(f >> 2) * 1024 + ((f >> 1) & 1) * 512}']
        return [f'ds_read_b64_tr_b16 {vr(POOL + 4 * f + 2 * h, 2)}, {vr(vVa + (f & 3))} offset:{h * 1024 + (f >> 2) * 512}' for h in range(2)]
    def rd_upd(kind, jl, f):
        r = rd(kind, jl, f)
        if kind == 'K' and f >= 6: r.append(f'v_add_u32 {vr(vKa + (f & 1))}, {sr(sDK if jl else sJ)}, {vr(vKa + (f & 1))}')
        if kind == 'V' and f >= 6:
            for x in (f - 2, f): r.append(f'v_add_u32 {vr(vVa + (x & 3))}, {sr(sDV if jl else sJ)}, {vr(vVa + (x & 3))}')
        return r
    for f in range(LA): a.many(rd('K', 0, f))
    lgK = [set(x) for x in a.lg]
    lgV = [set(Insn(x).wr) for f in range(LA) for x in rd('V', 0, f)]
    st.cyc()
    a.I(f's_lshr_b32 s3, {sr(sR)}, 1')
    a.I(f's_xor_b32 s3, s3, {sr(sHH)}')
    a.I('s_cmp_eq_u32 s3, 1')
    a.I('s_cbranch_scc1 k1_proL')

    def maxops(jl, heavy):
        def chain(vs, dst, extra=None):
            o = [f'v_max3_f32 {vr(dst)}, {vr(vs[0])}, {vr(vs[1])}, {vr(vs[2])}']
            for k in range(3, len(vs) - 1, 2): o.append(f'v_max3_f32 {vr(dst)}, {vr(dst)}, {vr(vs[k])}, {vr(vs[k + 1])}')
            o.append(f'v_max_f32 {vr(dst)}, {vr(dst)}, {vr(vs[-1])}' if extra is None else f'v_max3_f32 {vr(dst)}, {vr(dst)}, {vr(vs[-1])}, {vr(extra)}')
            return o
        c1 = chain([s_(0, jl) + k for k in range(8)], tB)
        c0 = chain([s_(1, jl) + k for k in range(8)], mx, tB)
        c8 = chain([s_(2, 0) + k for k in range(8)], mx8) if heavy else []
        ops = []
        for k in range(4):
            ops += [c1[k]] + ([c8[k]] if heavy else []) + [c0[k]]
        return ops
    def expops(jl, heavy):
        ops = []
        Tl = (0, 1, 2) if heavy else (0, 1)
        for k in range(8):
            for T in Tl: ops.append(f'v_exp_f32 {vr(s_(T, jl) + k)}, {vr(s_(T, jl) + k)}')
            if k >= 2 and k % 2 == 0:
                for T in Tl: ops.append(f'v_cvt_pk_bf16_f32 {vr(s_(T, jl) + k // 2 - 1)}, {vr(s_(T, jl) + k - 2)}, {vr(s_(T, jl) + k - 1)}')
        for T in Tl: ops.append(f'v_cvt_pk_bf16_f32 {vr(s_(T, jl) + 3)}, {vr(s_(T, jl) + 6)}, {vr(s_(T, jl) + 7)}')
        return ops
    stubs = []
    def check(jl, heavy):
        for (thr, m, fn) in ((sTHR, mx, f'k1_rare{jl}'),) + (((sTHR8, mx8, 'k1_rare8'),) if heavy else ()):
            lb = a.newlabel('k1_ok')
            a.I(f'v_cmp_lt_f32 vcc, {sr(thr)}, {vr(m)}')
            a.I(f's_cbranch_vccnz {lb}_s')
            a.label(lb)
            stubs.append((lb, fn))
    def mfmas(kind, jl, heavy, f):
        Tl = (0, 1, 2) if heavy else (0, 1)
        P = vr(POOL + 4 * f, 4)
        if kind == 'K':
            tt, ks = f >> 2, f & 3
            return [f'{MF} {vr(s_(T, jl, tt), 4)}, {P}, {vr(q_(T, ks), 4)}, {vr(negm(T) if ks == 0 else s_(T, jl, tt), 4)}' for T in Tl]
        r = [f'{MF} {vr(o_(T, f), 4)}, {P}, {vr(s_(T, jl), 4)}, {vr(o_(T, f), 4)}' for T in Tl]
        if f == 7: r += [f'{MF} {vr(o_(T, 8), 4)}, {vr(ONES, 4)}, {vr(s_(T, jl), 4)}, {vr(o_(T, 8), 4)}' for T in Tl]
        return r
    def ring_step(doK, doV):
        r = []
        for (P, Po, D, on) in ((sKP, sKPo, sDK, doK), (sVP, sVPo, sDV, doV)):
            if not on: continue
            r.append([f's_mov_b32 {sr(Po)}, {sr(P)}',
                      f's_cmp_ge_u32 {sr(P)}, 49152',
                      f's_cselect_b32 {sr(D)}, {-49152 & 0xffffffff:#x}, {sr(sT1)}',
                      f's_add_u32 {sr(P)}, {sr(P)}, {sr(D)}',
                      f's_sub_u32 {sr(D)}, {sr(D)}, {sr(sJ)}'])
        return r
    def cost(x):
        if callable(x): return 8
        return 8 if x.startswith('v_exp') else 4
    def pack(stream, ngaps, reserved):
        for cap_extra in range(0, ngaps + 1):
            big = set((i * ngaps) // cap_extra for i in range(cap_extra)) if cap_extra else set()
            out = [[] for _ in range(ngaps)]; k = 0
            for gi in range(ngaps):
                room = (16 if gi in big else 8) - reserved[gi]
                while k < len(stream) and cost(stream[k]) <= room:
                    out[gi].append(stream[k]); room -= cost(stream[k]); k += 1
            if k == len(stream): break
        else:
            out[-1] += stream[k:]
        if cap_extra == 0 and OPT['spread']:
            h = max([gi for gi in range(ngaps) if any(callable(x) for x in out[gi])] + [-1]) + 1
            rest = [x for gi in range(h, ngaps) for x in out[gi]]
            groups = []; room = 0
            for x in rest:
                if cost(x) > room: groups.append([]); room = 8
                groups[-1].append(x); room -= cost(x)
            free = [gi for gi in range(h, ngaps) if reserved[gi] == 0]
            if len(groups) <= len(free):
                for gi in range(h, ngaps): out[gi] = []
                for i, gp in enumerate(groups): out[free[(i * len(free)) // len(groups)]] = gp
        return out
    def block(segs, streams, mode, aux0, nvm, auxat=None):
        uses = [(si, f) for si in range(len(segs)) for f in range(8)]
        nU = len(uses)
        gaps = []
        for k, (si, f) in enumerate(uses):
            for n_ in range(len(mfmas(segs[si][0], segs[si][1], segs[si][2], f))): gaps.append((k, n_))
        aux = {gp: [] for gp in gaps}; pre = {gp: [] for gp in gaps}
        for k in range(nU - LA):
            s2, f2 = uses[k + LA]
            rr = rd_upd(segs[s2][0], segs[s2][1], f2)
            for i, x in enumerate([x for x in rr if x.startswith('ds_')]): aux[(k, i)].append(x)
            pre[(k + 1, 0)] += [x for x in rr if x.startswith('v_')]
        if mode != 'fin':
            post = [gp for gp in gaps if gp[0] > nU - 8 + SY]
            q = [(f, x) for f in range(LA) for x in rd('V', 0, f)]
            early = [x for f, x in q if f < OPT['nimm']]; q = [(f, x) for f, x in q if f >= OPT['nimm']]
            per = -(-len(q) // len(post))
            for gp in post:
                for _ in range(per):
                    fdone = gp[0] - (nU - 8) - (0 if gp[1] == 1 else 1)
                    if q and q[0][0] <= fdone: aux[gp].append(q.pop(0)[1])
            assert not q, q
        gsel = gaps[OPT['aux0']::OPT['auxs']] if auxat is None else [gp for gp in gaps if gp[0] >= auxat]
        assert len(aux0) <= len(gsel)
        if mode == 'loop' and OPT['gk'] >= 0:
            gsel = gaps[:3] + [gaps[OPT['gk']], gaps[OPT['gv']]]
            assert len(aux0) == 5
        for gp, x in zip(gsel, aux0): aux[gp].append(x)
        fill = {}
        for (sa, sb, skip, ops) in streams:
            gl = [gp for gp in gaps if sa <= uses[gp[0]][0] <= sb]
            gl = gl[skip:len(gl) - OPT['tail']]
            for gp, ol in zip(gl, pack(ops, len(gl), [4 * len(pre[gp]) for gp in gl])):
                fill[gp] = ol
                assert not (any(callable(x) for x in ol) and uses[gp[0]][0] != sa)
        def emit(x):
            if callable(x): x()
            elif isinstance(x, list):
                for y in x: emit(y)
            else: a.I(x)
        for k, (si, f) in enumerate(uses):
            kind, jl, heavy, after = segs[si]
            if f == 0 and OPT['aprio'] and si and not (mode == 'fin' and OPT['finp']): a.I(f's_setprio {len(segs) - 1 - si}')
            for n_, m in enumerate(mfmas(kind, jl, heavy, f)):
                a.I(m)
                emit(pre[(k, n_)]); emit(fill.get((k, n_), [])); emit(aux[(k, n_)])
            if OPT['stamp'] == 3 and mode == 'loop' and f == 7 and si < 3: a.raw(f's_memtime {sr(90 + 2 * si, 2)}')
            if mode != 'fin' and k == nU - 8 + SY:
                if OPT['stamp'] == 3 and mode == 'loop':
                    a.raw('s_mov_b32 s88, s98')
                    a.raw('s_memtime s[96:97]')
                a.I(f's_waitcnt vmcnt({nvm}) lgkmcnt(0)')
                a.I('s_barrier')
                if OPT['aprio']: a.I('s_setprio 3')
                st.sh()
                if OPT['stamp'] == 3 and mode == 'loop': a.raw('s_memtime s[98:99]')
                a.many(early)
            if f == 7 and after: after()
        if mode != 'fin': assert [set(x) for x in a.lg] == lgV, (a.lg, lgV)
    def resc():
        lb = a.newlabel('k1_nors')
        a.I(f's_cmp_lg_u32 {sr(sRS)}, 0')
        a.I(f's_cbranch_scc1 {lb}_s')
        a.label(lb)
        stubs.append((lb, 'k1_rescale'))
    def sm(jl, heavy): return maxops(jl, heavy) + [lambda: check(jl, heavy)] + expops(jl, heavy)
    OFFM0 = 0x30000
    def warm(kind, so):
        return [[f'buffer_load_dwordx4 {vr(vD)}, {sr(sK if kind == "K" else sV, 4)}, {so} offen offset:{j * 1024}{NT("pfp")} lds'] for j in range(4)]
    def prologue(h0):
        a.lg = [set(x) for x in lgK]
        ax = ring_step(True, False) + pro_aux
        block([('K', 0, h0, lambda: (a.many(maxops(0, h0)), check(0, h0))), ('K', 1, False, None)],
              [(1, 1, 0, expops(0, h0))], 'pro', ax, 8 if pro_aux else 63, auxat=0)
    def body_aux():
        r = [[f's_add_u32 {sr(sMK)}, {sr(sM0A)}, {sr(sVPo)}',
              f's_add_u32 {sr(sMV)}, {sr(sM0A)}, {sr(sKPo)}',
              f's_cmp_ge_u32 {sr(sCNT)}, 6',
              f's_cselect_b32 {sr(sMV)}, {OFFM0}, {sr(sMV)}',
              f's_cselect_b32 {sr(sOV)}, 0x1000000, {sr(sOV)}',
              f's_sub_u32 s3, {sr(sCNT)}, 1',
              f's_cmp_ge_u32 s3, 5',
              f's_cselect_b32 m0, {OFFM0}, {sr(sMK)}',
              f's_cselect_b32 s3, 0x1000000, {sr(sOK)}',
              f's_cselect_b32 s4, 0, 16384']]
        r += ring_step(True, True)
        for j in range(4): r.append([f'buffer_load_dwordx4 {vr(vD)}, {sr(sK, 4)}, s3 offen offset:{j * 1024}{APOL("K", j)} lds'] + (['s_add_u32 s3, s3, 3072'] if OPT['lin'] and j < 3 else []))
        r[-1] += [f's_add_u32 {sr(sOK)}, {sr(sOK)}, s4', f's_mov_b32 m0, {sr(sMV)}']
        nv = 4
        if OPT['mk']:
            w = warm('K', 's3')
            w[0] = [f's_mov_b32 s4, {OPT["mk"]}', f's_bitcmp1_b32 s4, {sr(sCNT)}', f's_cselect_b32 s3, {sr(sOK)}, 0x1000000'] + w[0]
            r += w; nv += 4
        if OPT['mv']:
            w = warm('V', 's3')
            w[0] = [f's_add_u32 s3, {sr(sOV)}, 16384', f's_mov_b32 s4, {OPT["mv"]}', f's_bitcmp1_b32 s4, {sr(sCNT)}', f's_cselect_b32 s3, s3, 0x1000000'] + w[0]
            r += w; nv += 4
        r += dma_ins('V')
        G = OPT['grp']
        if G > 1:
            head, d = r[:3], r[3:]
            r = head + [sum(d[i:i + G], []) for i in range(0, len(d), G)]
        return r, nv
    def body(hc, tag, exit_to):
        a.lg = [set(x) for x in lgV]
        hn = not hc
        ax, nvm = body_aux()
        block([('V', 0, hc, resc), ('K', 0, hn, None), ('V', 1, False, resc), ('K', 1, False, None)],
              [(0, 1, 1, sm(1, False)), (2, 3, 1, sm(0, hn))], 'loop', ax, nvm)
        a.I(f's_add_u32 {sr(sCNT)}, {sr(sCNT)}, 1')
        a.I(f's_cmp_eq_u32 {sr(sCNT)}, 7')
        a.I(f's_cbranch_scc1 {exit_to}')
    K = K2(a)
    def final(hc):
        a.lg = [set(x) for x in lgV]
        lb = a.newlabel('k1_early')
        a.I(f's_cmp_eq_u32 {sr(sHH)}, 1')
        a.I(f's_cbranch_scc1 {lb}_s')
        a.label(lb)
        stubs.append((lb, 'k1_early'))
        NM8 = negm(2)
        ax = [[f's_lshl_b32 s5, {sr(sHH)}, 15', 's_add_u32 s5, s5, 81920', f's_lshl_b32 s13, {sr(sHH)}, 14',
               f's_lshl_b32 s4, {sr(sR)}, 11', 's_add_u32 s3, s4, s5', 'v_lshl_add_u32 v1, v0, 4, s3'],
              ['v_add_u32 v2, s13, v1', f's_lshl_b32 s3, {sr(sWAVE)}, 9', f'v_lshl_add_u32 {vr(vD)}, v0, 3, s3'],
              [], [f'v_mov_b32 {vr(NM8 + 1)}, {vr(o_(2, 8))}']]
        ax += [[f'ds_write_b128 {"v1" if d < 4 else "v2"}, {vr(o_(2, d), 4)} offset:{(d >> 1) * 8192 + (d & 1) * 1024}'] for d in range(8)]
        ax += [[f'ds_write_b64 {vr(vD)}, {vr(NM8, 2)}']]
        block([('V', 0, hc, resc), ('V', 1, False, None)], [(0, 0, 1, sm(1, False))], 'fin', ax, 0, auxat=8)
        if OPT['aprio']: a.I('s_setprio 0')
    prologue(True)
    a.label('k1_X')
    body(True, 'x', 'k1_finL')
    a.label('k1_Y')
    body(False, 'y', 'k1_finH')
    a.I('s_branch k1_X')
    a.label('k1_proL')
    prologue(False)
    a.I('s_branch k1_Y')

    a.auto = False
    def xg_reduce(x, tmp, op):
        a.I(f'v_mov_b32 {vr(tmp)}, {vr(x)}')
        a.I(f'v_permlane32_swap_b32 {vr(x)}, {vr(tmp)}')
        a.I(f'{op} {vr(x)}, {vr(x)}, {vr(tmp)}')
        a.I(f'v_mov_b32 {vr(tmp)}, {vr(x)}')
        a.I(f'v_permlane16_swap_b32 {vr(x)}, {vr(tmp)}')
        a.I(f'{op} {vr(x)}, {vr(x)}, {vr(tmp)}')
    FREG = {0: mx, 1: tA, 2: mx8}
    def rare(T, vals, scl, canfirst):
        m, tmp = tB, FREG[T]
        a.I(f'v_max3_f32 {vr(m)}, {vr(vals[0])}, {vr(vals[1])}, {vr(vals[2])}')
        for k in range(3, len(vals) - 1, 2): a.I(f'v_max3_f32 {vr(m)}, {vr(m)}, {vr(vals[k])}, {vr(vals[k + 1])}')
        a.I(f'v_max_f32 {vr(m)}, {vr(m)}, {vr(vals[-1])}')
        xg_reduce(m, tmp, 'v_max_f32')
        a.I(f'v_max_f32 {vr(m)}, {sr(scl)}, {vr(m)}')
        for v in vals: a.I(f'v_sub_f32 {vr(v)}, {vr(v)}, {vr(m)}')
        for k in range(4): a.I(f'v_sub_f32 {vr(negm(T) + k)}, {vr(negm(T) + k)}, {vr(m)}')
        lb = a.newlabel('k1_first'); lb2 = a.newlabel('k1_rdone')
        if canfirst:
            a.I(f's_cmp_lg_u32 {sr(scl)}, 0')
            a.I(f's_cbranch_scc1 {lb}')
        a.I(f'v_exp_f32 {vr(tmp)}, -{vr(m)}')
        if T == 2:
            for k in range(36): a.I(f'v_mul_f32 {vr(o_(T, 8) + k)}, {vr(o_(T, 8) + k)}, {vr(tmp)}')
        else:
            a.I(f's_mov_b32 {sr(sRS)}, 1')
        if canfirst: a.label(lb)
    for jl in range(2):
        a.label(f'k1_rare{jl}')
        for T in range(2): rare(T, [s_(T, jl) + k for k in range(8)], sCL, jl == 0)
        a.I(f's_mov_b32 {sr(sTHR)}, {THRV}')
        a.I(f's_mov_b32 {sr(sCL)}, 0')
        a.I(f's_setpc_b64 {sr(sLINK, 2)}')
    a.label('k1_rare8')
    rare(2, [s_(2, 0) + k for k in range(8)], sCL8, True)
    a.I(f's_mov_b32 {sr(sTHR8)}, {THRV}')
    a.I(f's_mov_b32 {sr(sCL8)}, 0')
    a.I(f's_setpc_b64 {sr(sLINK, 2)}')
    a.label('k1_early')
    if OPT['finp']: a.I('s_setprio 0')
    K.early()
    a.I(f's_setpc_b64 {sr(sLINK, 2)}')
    a.label('k1_rescale')
    for T in range(2):
        for k in range(36): a.I(f'v_mul_f32 {vr(o_(T, 8) + k)}, {vr(o_(T, 8) + k)}, {vr(FREG[T])}')
    a.I(f's_mov_b32 {sr(sRS)}, 0')
    a.I(f's_setpc_b64 {sr(sLINK, 2)}')
    a.auto = True

    a.label('k1_finH')
    final(True)
    a.I('s_branch k1_epi')
    pos = len(a.ins)
    a.label('k1_finL')
    final(False)
    tailcode = a.ins[pos:]; del a.ins[pos:]
    for lb, fn in stubs:
        a.label(lb + '_s')
        a.raw(f's_call_b64 {sr(sLINK, 2)}, {fn}')
        a.raw(f's_branch {lb}')
    a.ins += tailcode
    a.label('k1_epi')
    a.lg = []
    st.cyc()
    e0, e1, e2, e3, e4 = 3, 4, 5, 6, 8
    NM8 = negm(2)
    a.lg = [set()]
    a.I(f'v_lshlrev_b32 {vr(e0)}, 4, v0')
    a.I(f's_lshl_b32 s3, {sr(sHH)}, 11')
    a.I(f'v_lshl_add_u32 {vr(e2)}, v0, 3, s3')
    a.I(f's_lshl_b32 s6, {sr(sR)}, 13')
    a.I('s_add_u32 s6, s6, s5')
    a.I(f's_cmp_ge_u32 {sr(sR)}, 2')
    a.I('s_cselect_b32 s13, s13, 0')
    a.I('s_add_u32 s6, s6, s13')
    a.I(f'v_add_u32 {vr(e1)}, s6, {vr(e0)}')
    R8 = S
    a.I(f'v_mov_b32 v2, {vr(e1)}')
    def bar1():
        a.I(f's_cmp_lg_u32 {sr(sHH)}, 0')
        a.I('s_cbranch_scc1 k1_nocs')
        K.comp_setup()
        a.label('k1_nocs')
        a.I('s_waitcnt lgkmcnt(0)')
        a.I('s_barrier')
        for sl in range(4): a.I(f'ds_read_b64 {vr(R8 + 32 + 2 * sl, 2)}, {vr(e2)} offset:{sl * 512}')
        for k in range(8): a.I(f'ds_read_b128 {vr(R8 + 4 * k, 4)}, v2 offset:{k * 1024}')
    if OPT['b1at'] < 0: bar1()
    flag_srd(sO)
    a.I(f's_cmp_eq_u32 {sr(sHH)}, 0')
    a.I('s_cbranch_scc1 k1_nosnap')
    K.snapshot()
    a.label('k1_nosnap')
    a.I('s_load_dwordx2 s[10:11], s[0:1], 80')
    sOO = sV
    a.I(f's_lshl_b32 s3, {sr(sBLK)}, 3')
    a.I(f's_add_u32 s3, s3, {sr(sB)}')
    a.I(f's_mul_i32 s3, s3, {O_SLICE}')
    a.I(f's_mul_i32 s6, {sr(sHP)}, 73728')
    a.I('s_add_u32 s3, s3, s6')
    a.I(f's_add_u32 {sr(sOO)}, s16, s3')
    a.I(f's_addc_u32 {sr(sOO + 1)}, s17, 0')
    a.I(f's_mov_b32 {sr(sOO + 2)}, 73728')
    a.I(f's_mov_b32 {sr(sOO + 3)}, 0x20000')
    a.I(f's_mul_i32 s3, {sr(sHH)}, 36864')
    a.I(f'v_add_u32 {vr(e3)}, s4, {vr(e0)}')
    def fin(src, scale2, voff, soff, imm):
        for k in range(4): a.I(f'v_pk_mul_f32 {vr(src + 2 * k, 2)}, {vr(src + 2 * k, 2)}, {vr(scale2, 2)}')
        for k in range(4): a.I(f'v_cvt_pk_bf16_f32 {vr(src + k)}, {vr(src + 2 * k)}, {vr(src + 2 * k + 1)}')
        a.I(f'buffer_store_dwordx4 {vr(src, 4)}, {vr(voff)}, {sr(sOO, 4)}, {soff} offen offset:{imm}{NT("ont")}')
    for T in range(2):
        for k in range(2): a.I(f'v_rcp_f32 {vr(o_(T, 8) + k)}, {vr(o_(T, 8) + k)}')
    a.I(f's_add_u32 s6, s3, {K.XB}')
    a.I(f'v_add_u32 {vr(e1)}, s6, {vr(e3)}')
    a.I('s_mov_b32 s6, s3')
    def xw(P): return [f'ds_write_b128 {vr(e1)}, {vr(o_(T, 2 * P), 4)} offset:{P * 9216 + T * 1024}' for T in range(2)]
    for P in range(4):
        for T in range(2): fin(o_(T, 2 * P), o_(T, 8), e3, 's6', T * 1024)
        if P < 3: a.I('s_add_u32 s6, s6, 9216')
        if P == OPT['b1at']: bar1()
        if P == OPT['b2at']:
            a.I('s_waitcnt lgkmcnt(0)')
            a.I('s_barrier')
            for Q_ in range(P): a.many(xw(Q_))
        if P >= OPT['b2at']: a.many(xw(P))
    K.ids()
    a.I(f's_mul_i32 s6, {sr(sR)}, 9216')
    a.I('s_add_u32 s6, s6, s3')
    a.I(f'v_add_u32 {vr(e3)}, 8192, {vr(e0)}')
    nm = [R8 + 32 + 2 * i for i in range(4)]
    ll = [R8 + 33 + 2 * i for i in range(4)]
    a.I(f'v_min3_f32 {vr(e0)}, {vr(nm[0])}, {vr(nm[1])}, {vr(nm[2])}')
    a.I(f'v_min_f32 {vr(e0)}, {vr(e0)}, {vr(nm[3])}')
    for i in range(4): a.I(f'v_sub_f32 {vr(nm[i])}, {vr(e0)}, {vr(nm[i])}')
    for i in range(4): a.I(f'v_exp_f32 {vr(nm[i])}, {vr(nm[i])}')
    a.I(f'v_mul_f32 {vr(e0)}, {vr(ll[0])}, {vr(nm[0])}')
    for i in range(1, 4): a.I(f'v_fmac_f32 {vr(e0)}, {vr(ll[i])}, {vr(nm[i])}')
    a.I(f'v_rcp_f32 {vr(e4)}, {vr(e0)}')
    a.I(f'v_rcp_f32 {vr(e4 + 1)}, {vr(e0)}')
    for k in range(8): a.I(f'v_mul_f32 {vr(R8 + k)}, {vr(R8 + k)}, {vr(nm[0])}')
    for i in range(1, 4):
        for k in range(8): a.I(f'v_fmac_f32 {vr(R8 + k)}, {vr(R8 + 8 * i + k)}, {vr(nm[i])}')
    fin(R8, e4, e3, 's6', 0)
    a.I(f's_add_u32 s6, s6, {K.XB}')
    a.I(f'v_add_u32 {vr(e3)}, s6, {vr(e3)}')
    a.I(f'ds_write_b128 {vr(e3)}, {vr(R8, 4)}')
    if OPT['stamp'] == 3: st.n = 12
    else: st.cyc(); st.real()
    K.st1 = st
    if OPT.get('qst'): st.on = True
    return K.main()

class K2:
    sO, sW, sD, sE, sF = 20, 24, 28, 20, 36
    sWAVE, sR, sLD, sBLK, sB, sHP, sN8, sKH, sKC = 40, 41, 42, 43, 44, 45, 67, 64, 62
    sM0W, sM0X, sOW, sOX, sSL, sCNT, sT0, sST, sROT, sH, sNH, sKS = 55, 48, 49, 50, 51, 52, 53, 54, 65, 56, 57, 58
    sSTX, sFO, sPC, sHPc = 59, 60, 61, 66
    sRW, sRX, sWB, sXB, sWEX = 68, 72, 54, 59, 8
    sLINK = 8
    vWp, vX, vL16, vFA, vFV, vDW, vDX, vZ, vCT = 40, 42, 44, 34, 35, 28, 32, 38, 39
    g, t0, t1, t2 = 45, 46, 47, 28
    ACC8 = [48, 56, 64, 116, 124, 132, 140, 220, 228]
    TMP8 = [196, 204, 212, 236, 244, 4, 12, 20, 32]
    FQ = [76 + 4 * i for i in range(10)] + [148 + 4 * i for i in range(12)]
    XB = 81920
    @staticmethod
    def wslot(i): return 16384 + ((i + 1) & 3) * 16384
    def __init__(self, a):
        self.a = a; self.st = Stamper(a, 1)
    def early(self):
        a = self.a; K = self
        sW, sR = K.sW, K.sR
        t0, t1 = 36, 37
        a.I(f's_lshr_b32 s12, {sr(sR)}, 1')
        a.I(f's_xor_b32 {sr(K.sH)}, {sr(sR)}, s12')
        a.I(f's_and_b32 {sr(K.sH)}, {sr(K.sH)}, 1')
        a.I(f's_lshl_b32 {sr(K.sH)}, {sr(K.sH)}, 1')
        a.I(f's_or_b32 {sr(K.sH)}, {sr(K.sH)}, s12')
        a.I(f'v_and_b32 {vr(t0)}, 7, v0')
        a.I(f'v_xor_b32 {vr(t0)}, {sr(K.sH)}, {vr(t0)}')
        a.I(f'v_bfe_u32 {vr(t1)}, v0, 4, 1')
        a.I(f'v_lshlrev_b32 {vr(t1)}, 2, {vr(t1)}')
        a.I(f'v_xor_b32 {vr(t0)}, {vr(t0)}, {vr(t1)}')
        a.I(f's_and_b32 s12, {sr(K.sHP)}, 1')
        a.I('s_lshl_b32 s12, s12, 7')
        a.I(f'v_lshl_add_u32 {vr(t0)}, {vr(t0)}, 4, s12')
        a.I(f'v_lshrrev_b32 {vr(t1)}, 5, v0')
        a.I(f'v_lshl_add_u32 {vr(t0)}, {vr(t1)}, 15, {vr(t0)}')
        a.I(f'v_bfe_u32 {vr(t1)}, v0, 3, 2')
        a.I(f's_lshl_b32 s12, {sr(sR)}, 2')
        a.I(f'v_add_u32 {vr(t1)}, s12, {vr(t1)}')
        a.I(f'v_lshl_add_u32 {vr(K.vDW)}, {vr(t1)}, 11, {vr(t0)}')
        a.I(f's_lshl_b32 {sr(K.sM0W)}, {sr(sR)}, 12')
        a.I(f'v_add_u32 {vr(K.vDW + 1)}, {65536 - 1024}, {vr(K.vDW)}')
        a.I(f'v_xor_b32 {vr(K.vDW + 2)}, 0x80, {vr(K.vDW)}')
        a.I(f'v_xor_b32 {vr(K.vDW + 3)}, 0x80, {vr(K.vDW + 1)}')
        a.I(f's_lshl_b32 {sr(K.sWB)}, {sr(K.sHP)}, 19')
        a.I(f's_lshr_b32 s12, {sr(K.sHP)}, 1')
        a.I(f's_lshl_b32 s12, s12, 8')
        a.I(f's_add_u32 {sr(sW)}, s18, s12')
        a.I(f's_addc_u32 {sr(sW + 1)}, s19, 0')
        a.I(f's_sub_u32 {sr(sW + 2)}, 8388608, s12')
        a.I(f's_mov_b32 {sr(sW + 3)}, 0x20000')
        a.I(f's_mov_b32 {sr(K.sD)}, s100')
        a.I(f's_mov_b32 {sr(K.sD + 1)}, s101')
        a.I(f's_mov_b32 {sr(K.sD + 2)}, 256')
        a.I(f's_mov_b32 {sr(K.sD + 3)}, 0x20000')
        a.I(f'v_mov_b32 {vr(K.vZ)}, 0')
        a.I(f'buffer_load_dword {vr(K.vCT)}, {vr(K.vZ)}, {sr(K.sD, 4)}, 0 offen sc1')
        for i in range(3): K.stw(i, own=True)
        a.I(f's_lshl_b32 s12, {sr(K.sBLK)}, 3')
        a.I(f's_add_u32 s12, s12, {sr(K.sB)}')
        a.I(f's_lshl_b32 {sr(K.sFO)}, s12, 11')
        a.I(f's_add_u32 {sr(K.sFO)}, {sr(K.sFO)}, 65536')
        a.I(f'v_and_b32 {vr(K.vFA)}, 15, v0')
        a.I(f'v_lshlrev_b32 {vr(K.vFA)}, 7, {vr(K.vFA)}')
    def snapshot(self):
        a = self.a; K = self
        a.I(f's_mov_b32 {sr(K.sPC)}, 0')
        a.I('s_movk_i32 s12, 0x100')
        a.I('s_waitcnt vmcnt(12)')
        a.label('k2_allin')
        a.I(f'v_cmp_le_u32 vcc, s12, {vr(K.vCT)}')
        a.I('s_cbranch_vccnz k2_allok ; POLL')
        a.I(f'buffer_load_dword {vr(K.vCT)}, {vr(K.vZ)}, {sr(K.sD, 4)}, 0 offen sc1')
        a.I(f's_add_u32 {sr(K.sPC)}, {sr(K.sPC)}, 1')
        a.I('s_waitcnt vmcnt(0)')
        a.I(f's_cmp_lt_u32 {sr(K.sPC)}, {OPT["pollmax"]}')
        a.I('s_cbranch_scc1 k2_allin')
        a.label('k2_allok')
        a.I(K.flagload())
    def publish(self, cond):
        a = self.a; K = self
        lb = a.newlabel('k2_nopub')
        a.I(f's_cmp_lg_u32 {cond}')
        a.I(f's_cbranch_scc1 {lb}')
        a.I('s_mov_b64 exec, 1')
        a.I(f'buffer_store_dword {vr(K.vCT)}, {vr(K.vZ)}, {sr(K.sF, 4)}, s4 offen sc1')
        a.I('s_mov_b64 exec, -1')
        a.label(lb)
    def ids(self):
        a = self.a; K = self
        a.I(f's_and_b32 {sr(K.sKH)}, {sr(K.sHP)}, 1')
        a.I(f's_lshr_b32 {sr(K.sN8)}, {sr(K.sHP)}, 1')
        a.I(f'v_lshlrev_b32 {vr(K.vL16)}, 4, v0')
    def comp_setup(self):
        a = self.a; K = self
        sKS, sNH, sR, sE, g, t0, t1, vWp, vX, vL16, XB = K.sKS, K.sNH, K.sR, K.sE, K.g, K.t0, K.t1, K.vWp, K.vX, K.vL16, K.XB
        a.I(f's_and_b32 {sr(sKS)}, {sr(sR)}, 1')
        a.I(f's_lshr_b32 {sr(sNH)}, {sr(sR)}, 1')
        a.I(f'v_lshrrev_b32 {vr(g)}, 4, v0')
        a.I(f'v_lshrrev_b32 {vr(t1)}, 1, {vr(g)}')
        a.I(f'v_xor_b32 {vr(t0)}, {vr(g)}, {vr(t1)}')
        a.I(f'v_and_b32 {vr(t0)}, 1, {vr(t0)}')
        a.I(f'v_lshl_or_b32 {vr(t0)}, {vr(t0)}, 1, {vr(t1)}')
        a.I(f'v_bfe_u32 {vr(t1)}, v0, 1, 1')
        a.I(f'v_xor_b32 {vr(t0)}, {vr(t0)}, {vr(t1)}')
        a.I(f'v_lshlrev_b32 {vr(t0)}, 4, {vr(t0)}')
        a.I(f'v_lshl_add_u32 {vr(t0)}, {vr(g)}, 12, {vr(t0)}')
        a.I(f'v_bfe_u32 {vr(t1)}, v0, 2, 2')
        a.I(f'v_lshl_add_u32 {vr(t0)}, {vr(t1)}, 7, {vr(t0)}')
        a.I(f'v_bfe_u32 {vr(t1)}, v0, 3, 1')
        a.I(f'v_xor_b32 {vr(t1)}, {sr(sKS)}, {vr(t1)}')
        a.I(f'v_lshl_add_u32 {vr(t0)}, {vr(t1)}, 6, {vr(t0)}')
        a.I(f'v_and_b32 {vr(t1)}, 1, v0')
        a.I(f'v_lshl_add_u32 {vr(t0)}, {vr(t1)}, 3, {vr(t0)}')
        a.I(f's_lshl_b32 s12, {sr(sNH)}, 11')
        a.I('s_add_u32 s12, s12, 16384')
        a.I(f'v_add_u32 {vr(vWp)}, s12, {vr(t0)}')
        a.I(f'v_xor_b32 {vr(vWp + 1)}, 32, {vr(vWp)}')
        a.I(f'v_lshlrev_b32 {vr(vL16)}, 4, v0')
        a.I(f'v_add_u32 {vr(vX)}, {XB}, {vr(vL16)}')
        a.I(f'v_add_u32 {vr(vX + 1)}, {XB + 9216}, {vr(vL16)}')
        for b in K.ACC8:
            for i in range(0, 8, 2): a.I(f'v_mov_b64 {vr(b + i, 2)}, 0')
        a.I(f's_add_u32 {sr(sE)}, s16, {EXCH_OFF}')
        a.I(f's_addc_u32 {sr(sE + 1)}, s17, 0')
        a.I(f's_mov_b32 {sr(sE + 2)}, {256 * 36864}')
        a.I(f's_mov_b32 {sr(sE + 3)}, 0x20000')
        a.I(f's_cmp_eq_u32 {sr(sNH)}, 0')
        a.I('s_cselect_b32 s12, 1, 0')
        a.I(f's_cselect_b32 {sr(K.sPC)}, 9, 7')
        a.I('s_xor_b32 s12, s2, s12')
        a.I('s_lshl_b32 s12, s12, 1')
        a.I(f's_add_u32 s12, s12, {sr(sKS)}')
        a.I(f's_lshl_b32 {sr(K.sT0)}, s12, 7')
        a.I(f's_mul_i32 {sr(K.sOX)}, s12, 18432')
        a.I(f'v_mov_b32 {vr(t0)}, 0')
        a.I(f's_mov_b32 {sr(K.sSL)}, 0')
    def late(self):
        a = self.a; K = self
        sO, sR, sB, sBLK = K.sO, K.sR, K.sB, K.sBLK
        a.I(f's_lshr_b32 s12, {sr(K.sHP)}, 2')
        a.I(f's_add_u32 {sr(K.sROT)}, {sr(sB)}, s12')
        a.I(f's_and_b32 {sr(K.sROT)}, {sr(K.sROT)}, {OPT["rot2"]}')
        a.I(f'v_add_u32 {vr(K.vDX)}, {sr(K.sM0W)}, {vr(K.vL16)}')
        a.I(f's_lshl_b32 {sr(K.sM0X)}, {sr(sR)}, 10')
        a.I(f's_add_u32 {sr(K.sM0X)}, {sr(K.sM0X)}, 16384')
        a.I(f'v_add_u32 {vr(K.vDX + 1)}, {sr(K.sM0X)}, {vr(K.vL16)}')
        for i in range(4):
            a.I(f's_add_u32 s12, {sr(K.sROT)}, {i}')
            a.I('s_and_b32 s12, s12, 3')
            a.I(f's_lshl_b32 {sr(K.sRW + i)}, s12, 17')
            a.I(f's_mul_i32 {sr(K.sRX + i)}, s12, 18432')
        a.I(f's_mov_b32 {sr(K.sKC)}, -1')
        a.I(f's_lshl_b32 s12, {sr(sBLK)}, 3')
        a.I(f's_add_u32 s12, s12, {sr(sB)}')
        a.I(f's_mul_i32 s12, s12, {O_SLICE}')
        a.I(f's_add_u32 {sr(sO)}, s16, s12')
        a.I(f's_addc_u32 {sr(sO + 1)}, s17, 0')
        a.I(f's_mov_b32 {sr(sO + 2)}, {O_SLICE}')
        a.I(f's_mov_b32 {sr(sO + 3)}, 0x20000')
        a.I(f's_lshl_b32 s4, {sr(K.sHP)}, 7')
        a.I(f's_add_u32 s4, s4, {sr(K.sFO)}')
        a.I(f'v_mov_b32 {vr(K.vCT)}, 1')
        a.I(f's_lshl_b32 s5, {sr(sR)}, 4')
        a.I('s_add_u32 s5, s5, 1')
    def stw(self, i, own=False, tail=False):
        a = self.a; K = self
        a.I(f's_add_u32 m0, {sr(K.sM0W)}, {K.wslot(i)}')
        a.I(f's_add_u32 {sr(K.sOW)}, {sr(K.sWB)}, {i * 131072 if own else sr(K.sRW + i)}')
        for u in range(2 if tail else 4):
            if u == 2: a.I(f's_add_u32 m0, {sr(K.sM0W)}, {K.wslot(i) + 2048}')
            a.I(f'buffer_load_dwordx4 {vr(K.vDW + u)}, {sr(K.sW, 4)}, {sr(K.sOW)} offen offset:{(u & 1) * 1024}{NT("wont")} lds')
    def stx(self, i):
        a = self.a; K = self
        lb = a.newlabel('k2_skipx')
        a.I(f's_add_u32 m0, {sr(K.sM0W)}, {K.XB + i * 18432}')
        a.I(f's_add_u32 {sr(K.sOX)}, {sr(K.sXB)}, {sr(K.sRX + i)}')
        for j in range(4): a.I(f'buffer_load_dwordx4 {vr(K.vDX)}, {sr(K.sO, 4)}, {sr(K.sOX)} offen offset:{j * 1024}{NT("oldf")} lds')
        a.I(f's_add_u32 m0, {sr(K.sM0X)}, {K.XB + i * 18432}')
        a.I(f's_cmp_ge_u32 {sr(K.sR)}, 2')
        a.I(f's_cbranch_scc1 {lb}')
        a.I(f'buffer_load_dwordx4 {vr(K.vDX + 1)}, {sr(K.sO, 4)}, {sr(K.sOX)} offen{NT("oldf")} lds')
        a.label(lb)
    def ready(self):
        a = self.a; K = self
        l1, l2 = a.newlabel('k2_chk'), a.newlabel('k2_go')
        a.I(f's_mov_b32 {sr(K.sPC)}, 0')
        a.label(l1)
        a.I(f'v_cmp_eq_u32 vcc, 1, {vr(K.vFV)}')
        a.I(f's_bitcmp1_b32 vcc_lo, {sr(K.sHPc)}')
        a.I(f's_cbranch_scc1 {l2} ; TAKEN')
        a.I(K.flagload())
        a.I(f's_add_u32 {sr(K.sPC)}, {sr(K.sPC)}, 1')
        a.I('s_waitcnt vmcnt(0)')
        a.I(f's_cmp_lt_u32 {sr(K.sPC)}, {OPT["pollmax"]}')
        a.I(f's_cbranch_scc1 {l1}')
        a.label(l2)
    def fl1(self, vt):
        n = self.st1.n; self.st1.flush(16, self.sWAVE, self.sW, vt); self.st1.n = n
    def nextseg(self, tail=False):
        a = self.a; K = self
        if tail:
            a.I(f's_cmp_eq_u32 {sr(K.sN8)}, 7')
            a.I('s_cselect_b32 s12, 5, 7')
            a.I(f's_add_u32 {sr(K.sHPc)}, s12, {sr(K.sCNT)}')
        else:
            a.I(f's_add_u32 {sr(K.sKC)}, {sr(K.sKC)}, 1')
            a.I(f's_cmp_eq_u32 {sr(K.sKC)}, {sr(K.sN8)}')
            a.I(f's_addc_u32 {sr(K.sKC)}, {sr(K.sKC)}, 0')
            a.I(f's_lshl_b32 {sr(K.sHPc)}, {sr(K.sKC)}, 1')
            a.I(f's_add_u32 {sr(K.sHPc)}, {sr(K.sHPc)}, {sr(K.sKH)}')
        a.I(f's_lshl_b32 {sr(K.sWB)}, {sr(K.sHPc)}, 19')
        a.I(f's_mul_i32 {sr(K.sXB)}, {sr(K.sHPc)}, 73728')
    def flagload(self): return f'buffer_load_dword {vr(self.vFV)}, {vr(self.vFA)}, {sr(self.sF, 4)}, {sr(self.sFO)} offen sc1 ; NOCHECK'
    def main(self):
        a = self.a; st = self.st; K = self
        MF = 'v_mfma_f32_16x16x32_bf16'
        sO, sW, sD, sE, sF, sR, sB, sN8, sKH, sBLK = K.sO, K.sW, K.sD, K.sE, K.sF, K.sR, K.sB, K.sN8, K.sKH, K.sBLK
        sOW, sOX, sSL, sCNT, sT0, sST, sSTX, sPC, sHPc, sNH, sKS = K.sOW, K.sOX, K.sSL, K.sCNT, K.sT0, K.sST, K.sSTX, K.sPC, K.sHPc, K.sNH, K.sKS
        vWp, vX, vDW, vL16, g, t0, t1, t2 = K.vWp, K.vX, K.vDW, K.vL16, K.g, K.t0, K.t1, K.t2
        XB = K.XB
        def acc(t, j): return K.ACC8[t] + 4 * j
        def tmp(k): return K.TMP8[k >> 1] + 4 * (k & 1)
        st.real(); st.cyc()
        a.I(f's_cmp_eq_u32 {sr(K.sLD)}, 0')
        a.I('s_cbranch_scc1 k2_comp')
        if OPT['lprio']: a.I(f's_setprio {OPT["lprio"]}')
        K.stw(3, own=True)
        a.I('s_waitcnt vmcnt(13) lgkmcnt(0)')
        a.I('s_barrier')
        st0 = st.n
        st.cyc()
        K.late()
        a.I(f's_mov_b32 {sr(sCNT)}, 1')
        K.nextseg()
        a.I('s_barrier')
        if OPT['fast1']:
            a.I(f'v_cmp_eq_u32 vcc, 1, {vr(K.vFV)}')
            a.I(f's_bitcmp1_b32 vcc_lo, {sr(sHPc)}')
            a.I('s_cbranch_scc1 k2_fast ; EITHER')
        K.stw(0)
        a.I('s_barrier')
        K.stw(1)
        a.I(K.flagload())
        a.I('s_waitcnt vmcnt(9)')
        a.I('s_barrier')
        K.publish(f'{sr(sR)}, 0')
        K.stw(2)
        a.I('s_waitcnt vmcnt(5)')
        K.ready()
        K.stx(0); K.stx(1); K.stx(2)
        a.I('s_waitcnt vmcnt(8)')
        a.I('s_barrier')
        a.I(K.flagload())
        K.stw(3); K.stx(3)
        a.I(f's_mov_b32 {sr(sCNT)}, 2')
        a.I('s_waitcnt vmcnt(12)')
        for tail in (False, True):
            a.label('k2_tloop' if tail else 'k2_lloop')
            K.nextseg(tail)
            for i in range(4):
                a.I(f's_waitcnt vmcnt({12 if tail else 16})')
                a.I('s_barrier')
                if i == 0 and not tail: a.label('k2_fast')
                if i == 2 and not tail: K.publish(f'{sr(sCNT)}, s5')
                K.stw(i, tail=tail)
                if i == 0: K.ready()
                if i == 1: a.I(K.flagload())
                K.stx(i)
            a.I(f's_add_u32 {sr(sCNT)}, {sr(sCNT)}, 1')
            a.I(f's_cmp_lt_u32 {sr(sCNT)}, {9 if tail else 7}')
            a.I(f's_cbranch_scc1 {"k2_tloop" if tail else "k2_lloop"}')
        for nv in (12, 6, 0, 0):
            a.I(f's_waitcnt vmcnt({nv})')
            a.I('s_barrier')
        st.cyc(); st.cyc(); st.cyc(); st.cyc(); st.real()
        st.flush(16, K.sWAVE, sW, t0); K.fl1(t0)
        a.I('s_endpgm')
        a.label('k2_comp')
        st.n = st0
        a.lg = []
        FS = (K.FQ[:11], K.FQ[11:])
        def reads(F, slot, ks):
            w = [f'ds_read_b64_tr_b16 {vr(F[j] + 2 * h, 2)}, {vr(vWp + j)} offset:{K.wslot(slot) - 16384 + ks * 1024 + h * 512}' for j in range(2) for h in range(2)]
            x = [f'ds_read_b128 {vr(F[2 + t], 4)}, {vr(vX + ks)} offset:{slot * 18432 + t * 1024}' for t in range(9)]
            return w[:2] + x[:1] + w[2:] + x[1:]
        G2 = OPT['gate2']
        def kstep(Fc, Fn, nslot, nks, gated, vm=''):
            rd_ = reads(Fn, nslot, nks)
            if not gated: a.I(f's_waitcnt lgkmcnt({OPT["lw2"]})')
            k = 0
            for t in range(9):
                for j in range(2):
                    if gated and k == G2:
                        a.I(f's_waitcnt {vm}lgkmcnt(0)')
                        a.I('s_barrier')
                    if not gated and k == 6: a.I(f's_waitcnt lgkmcnt(6)')
                    a.I(f'{MF} {vr(acc(t, j), 4)}, {vr(Fc[j], 4)}, {vr(Fc[2 + t], 4)}, {vr(acc(t, j), 4)}')
                    if k >= (G2 if gated else 0) and rd_: a.I(rd_.pop(0))
                    k += 1
            assert not rd_
        if OPT['cprio']: a.I(f's_setprio {OPT["cprio"]}')
        a.I('s_waitcnt lgkmcnt(0)')
        a.I('s_barrier')
        st.cyc()
        a.many(reads(FS[0], 0, 0))
        a.I(f's_mov_b32 {sr(sCNT)}, 0')
        lg0 = [set(x) for x in a.lg]
        a.label('k2_cloop')
        for i in range(4):
            if OPT['kpf'] and i in (OPT['kpf'] - 1, OPT['kpf']):
                a.I(f's_cmp_eq_u32 {sr(sCNT)}, 8')
                a.I(f's_cbranch_scc1 k2_e{i}')
                a.label(f'k2_r{i}')
            kstep(FS[0], FS[1], i, 1, False)
            kstep(FS[1], FS[0], (i + 1) & 3, 0, True, 'vmcnt(0) ' if i == 2 else '')
        assert [set(x) for x in a.lg] == lg0
        st.sh()
        a.I(f's_add_u32 {sr(sCNT)}, {sr(sCNT)}, 1')
        a.I(f's_cmp_lt_u32 {sr(sCNT)}, {sr(sPC)}')
        a.I('s_cbranch_scc1 k2_cloop')
        st.cyc()
        XP = NT('xpol')
        a.I(f's_cmp_eq_u32 {sr(sNH)}, 0')
        a.I('s_cbranch_scc1 k2_keep')
        SB = {1: (8,), 2: (5, 11), 0: ()}[OPT['ssplit']]
        H = OPT['xbf']
        NX = 9 if H else 18
        if H: SB = ()
        for k in range(NX):
            src = acc(k, 0) if H else acc(k >> 1, k & 1)
            if H:
                for q in range(4): a.I(f'v_cvt_pk_bf16_f32 {vr(src + q)}, {vr(src + 2 * q)}, {vr(src + 2 * q + 1)}')
            a.I(f'buffer_store_dwordx4 {vr(src, 4)}, {vr(vL16)}, {sr(sE, 4)}, {sr(sOX)} offen offset:{(k & 3) * 1024}{XP}')
            if k & 3 == 3: a.I(f's_add_u32 {sr(sOX)}, {sr(sOX)}, 4096')
            if k in SB: a.I('s_barrier')
        stn = st.n
        st.cyc()
        for _ in range(OPT['sbar']): a.I('s_barrier')
        a.I(f'v_mov_b32 {vr(t1)}, 1')
        a.I('s_mov_b64 exec, 1')
        a.I('s_waitcnt vmcnt(0)')
        st.cyc()
        a.I(f'buffer_store_dword {vr(t1)}, {vr(t0)}, {sr(sF, 4)}, {sr(sT0)} offen{XP}')
        a.I('s_mov_b64 exec, -1')
        for _ in range(8 - len(SB) - OPT['sbar']): a.I('s_barrier')
        st.cyc(); st.real()
        st.flush(16, K.sWAVE, sW, t0); K.fl1(t0)
        a.I('s_endpgm')
        def xloads():
            for k in range(NX):
                a.I(f'buffer_load_dwordx4 {vr(tmp(k), 4)}, {vr(vL16)}, {sr(sE, 4)}, {sr(sOX)} offen offset:{(k & 3) * 1024}{XP}')
                if k & 3 == 3: a.I(f's_add_u32 {sr(sOX)}, {sr(sOX)}, 4096')
        if OPT['kpf']:
            a.auto = False
            i = OPT['kpf']
            a.label(f'k2_e{i - 1}')
            a.I(f'buffer_load_dword {vr(t1)}, {vr(t0)}, {sr(sF, 4)}, {sr(sT0)} offen{XP}')
            a.I(f's_branch k2_r{i - 1}')
            a.label(f'k2_e{i}')
            a.I('s_waitcnt vmcnt(0)')
            a.I(f'v_cmp_eq_u32 vcc, 1, {vr(t1)}')
            a.I(f's_cbranch_vccz k2_r{i}')
            xloads()
            a.I(f's_mov_b32 {sr(sSL)}, 1')
            a.I(f's_branch k2_r{i}')
            a.auto = True
        a.label('k2_keep')
        st.n = stn
        a.I(f's_mov_b32 {sr(sCNT)}, 0')
        st.cyc()
        a.I(f's_cmp_eq_u32 {sr(sSL)}, 1')
        a.I('s_cbranch_scc1 k2_have')
        a.label('k2_poll')
        a.I(f'buffer_load_dword {vr(t1)}, {vr(t0)}, {sr(sF, 4)}, {sr(sT0)} offen{XP}')
        a.I(f's_add_u32 {sr(sCNT)}, {sr(sCNT)}, 1')
        a.I('s_waitcnt vmcnt(0)')
        a.I(f'v_cmp_eq_u32 vcc, 1, {vr(t1)}')
        a.I('s_cbranch_vccnz k2_got ; POLL')
        a.I(f's_cmp_lt_u32 {sr(sCNT)}, {OPT["pollmax"]}')
        a.I('s_cbranch_scc1 k2_poll')
        a.label('k2_got')
        xloads()
        a.label('k2_have')
        st.cyc()
        a.I(f's_mul_i32 s3, {sr(sB)}, {144 * 4096}')
        a.I(f's_add_u32 {sr(sD)}, s10, s3')
        a.I(f's_addc_u32 {sr(sD + 1)}, s11, 0')
        a.I(f's_mov_b32 {sr(sD + 2)}, {144 * 4096}')
        a.I(f's_mov_b32 {sr(sD + 3)}, 0x20000')
        a.I(f'v_and_b32 {vr(t2)}, 15, v0')
        a.I(f'v_lshlrev_b32 {vr(t2)}, 12, {vr(t2)}')
        a.I(f'v_lshl_add_u32 {vr(t2)}, {vr(g)}, 4, {vr(t2)}')
        a.I(f's_lshl_b32 s3, {sr(sBLK)}, 11')
        a.I(f's_lshl_b32 s4, {sr(K.sHP)}, 7')
        a.I('s_add_u32 s3, s3, s4')
        a.I(f's_lshl_b32 s4, {sr(sKS)}, 6')
        a.I('s_add_u32 s3, s3, s4')
        for t in range(9):
            d = acc(t, 0)
            if H:
                a.I('s_waitcnt vmcnt(8)')
                for k in range(4):
                    a.I(f'v_lshlrev_b32 {vr(K.TMP8[8] + 2 * k)}, 16, {vr(tmp(t) + k)}')
                    a.I(f'v_and_b32 {vr(K.TMP8[8] + 1 + 2 * k)}, 0xffff0000, {vr(tmp(t) + k)}')
                for k in range(4): a.I(f'v_pk_add_f32 {vr(d + 2 * k, 2)}, {vr(d + 2 * k, 2)}, {vr(K.TMP8[8] + 2 * k, 2)}')
            else:
                a.I(f's_waitcnt vmcnt({16 - t})')
                for k in range(4): a.I(f'v_pk_add_f32 {vr(d + 2 * k, 2)}, {vr(d + 2 * k, 2)}, {vr(K.TMP8[t] + 2 * k, 2)}')
            for k in range(4): a.I(f'v_cvt_pk_bf16_f32 {vr(d + k)}, {vr(d + 2 * k)}, {vr(d + 2 * k + 1)}')
            for mn in ('v_permlane32_swap_b32', 'v_permlane16_swap_b32'):
                for k in range(2): a.I(f'{mn} {vr(d + k)}, {vr(d + 2 + k)}')
            a.I(f'buffer_store_dwordx4 {vr(d, 4)}, {vr(t2)}, {sr(sD, 4)}, s3 offen{NT("outp")}')
            a.I('s_add_u32 s3, s3, 65536')
        st.cyc(); st.real()
        st.flush(16, K.sWAVE, sW, t0); K.fl1(t0)
        a.label('k1_end')
        a.raw('s_endpgm')
        return a

HEADER = open(f'cdna_kernels/{NAME}.s.ref').read().split('; Override launch')[0]
def kd(name, vg, sg=102):
    return f'''.amdhsa_kernel {name}
  .amdhsa_next_free_vgpr {vg}
  .amdhsa_next_free_sgpr {sg}
  .amdhsa_accum_offset {(min(vg, 256) + 3) // 4 * 4}
  .amdhsa_group_segment_fixed_size 0
  .amdhsa_kernarg_size 104
  .amdhsa_user_sgpr_count 2
  .amdhsa_user_sgpr_kernarg_segment_ptr 1
  .amdhsa_system_sgpr_workgroup_id_x 1
.end_amdhsa_kernel
'''
def main():
    ks = [('attn_kernel', gen_k1(), 256, 163840)]
    out = HEADER
    if OPT['fuse']:
        ks = [(NAME + '_kernel', ks[0][1], 256, 163840)]
        out += '; @launch grid=(256,1,1) block=(512,1,1) lds=163840\n'
    else:
        for nm, _, _, lds in ks:
            out += f'; @launch kernel={nm} grid=(256,1,1) block=(512,1,1) lds={lds}\n'
    out += '.amdgcn_target "amdgcn-amd-amdhsa--gfx950"\n.text\n'
    for nm, a, vg, lds in ks:
        if OPT.get('novm'):
            seen = False; keep = []
            for x in a.ins:
                if x.mn == 's_barrier': seen = True
                if x.label in ('k2_m1',): seen = False
                if x.label == 'k2_cloop': seen = False; OPT['_stop'] = 1
                if OPT.get('_stop'): seen = False
                if seen and x.mn == 'buffer_load_dwordx4': continue
                keep.append(x)
            a.ins = keep
        if OPT.get('nokv'): a.ins = [x for x in a.ins if not (x.kind == 'vmem' and x.mn == 'buffer_load_dwordx4' and not x.lds and 'nt' in x.mods)]
        if OPT.get('nomfma'): a.ins = [x for x in a.ins if x.kind != 'mfma']
        if OPT.get('nods'): a.ins = [x for x in a.ins if not (x.kind == 'ds' and 'read' in x.mn)]
        n = a.pad_hazards(verbose=bool(OPT.get('v')))
        errs = 0; nbs = set()
        for wave in range(8):
            for pol in (lambda i, x: 'POLL' in x.text, lambda i, x: True):
              for wgid in (3, 12, 21, 30):
                tr = a.trace(wgid, wave, pol)
                e, nb = a.verify_waits(tr, quiet=(errs > 0 or bool(OPT.get('novm')) or OPT['stamp'] == 4)); errs += e; nbs.add(nb)
        assert (len(nbs) == 1 or (len(nbs) == 2 and max(nbs) - min(nbs) == 7 - OPT['sbar'])) and (errs == 0 or OPT.get('novm') or OPT['stamp'] == 4), (nbs, errs)
        print(f'{nm}: {len(a.ins)} lines, nops added {n}, wait errors {errs}, barriers {nb}, trace len {len(tr)}', file=sys.stderr)
        out += f'.globl {nm}\n.p2align 8\n.type {nm},@function\n{nm}:\n' + a.text()
    out += '.section .rodata,"a"\n'
    for nm, a, vg, lds in ks:
        out += '.p2align 6\n' + kd(nm, vg)
    open(sys.argv[1], 'w').write(out)
main()
```

```python
import sys, math, struct
from asmlib import *

NAME = 'concat_heads__mha_block_cached__mha_block_cached__near_ridge'
OPT = dict(stamp=0, kvnt=1, wnt=0, xnt=0, ont=2, wont=0, oldnt=0, rot1=0, rot2=3, wopf=3, ord=1, desync=1, pre1=1, gate=2, cprio=1, tail=1, rotc=0, rhh=0, vfirst=1, hpmap=2, s2=1, fuse=1, lazyj=0, kq='-', px='p3200', py='p3211', kvm='-', kw='-', finp=1, b1at=2, grp=4, lin=0, gk=24, gv=32, fast1=1, xbf=1, kvl2=0, cvn=7, cvpk=1, kv0=0, kvs=3, lprio=0, whalf=0, offm=0, offsh=0, pubat=0, b2at=3, kpf=3, spread=1, gate2=0, lw2=4, sbar=3, ssplit=1, ntm=255, oldf=2, cpf=1, sy=4, nimm=3, aux0=0, auxs=4, pp=0, mv=0, mk=0, nwo=16, pfp=0, xpol=2, outp=3, pollmax=100000, qprio=1, rs0=10, rs1=13, stag=1, aprio=1, pS=0, pM=0, pV=0, smfirst=0)
for a in sys.argv[2:]:
    k, v = a.split('='); OPT[k] = int(v) if v.lstrip('-').isdigit() else v

def fbits(x): return '0x%08x' % struct.unpack('<I', struct.pack('<f', x))[0]
NT = lambda k: {0: '', 1: ' nt', 2: ' sc1', 3: ' sc0 sc1', 4: ' sc1 nt'}[OPT[k]]
APOL = lambda kind, j: ' nt' if (OPT['ntm'] >> (j + (4 if kind == 'V' else 0))) & 1 else ''
THRV = '0x7f800000' if OPT.get('novm') else fbits(8.0)
O_SLICE = 128 * 9216
STAMP_OFF = 64 << 20
EXCH_OFF = 32 << 20
FLAG_OFF = 48 << 20

class Stamper:
    def __init__(self, a, region):
        self.a = a; self.n = 0; self.region = region
        self.on = OPT.get('sreg', 0) == region or OPT['stamp'] == 5
    def real(self):
        if not self.on: return
        if OPT['stamp'] == 5:
            if self.region == 0 and not self.n: self.a.I('s_memrealtime s[76:77]'); self.n = 1
            return
        if OPT['stamp'] == 4 and self.n: return
        if OPT['stamp']:
            self.a.I(f's_memrealtime {sr(76 + 2 * self.n, 2)}'); self.n += 1
    def cyc(self):
        if not self.on: return
        if OPT['stamp'] == 5: return
        if OPT['stamp'] == 4:
            self.a.raw('s_waitcnt lgkmcnt(0)'); self.sh(); return
        if OPT['stamp']:
            self.a.I(f's_memtime {sr(76 + 2 * self.n, 2)}'); self.n += 1
    def sh(self):
        if not self.on: return
        if OPT['stamp'] == 4:
            for i in range(13): self.a.raw(f's_mov_b32 s{80 + i}, s{81 + i}')
            self.a.raw('s_mov_b32 s93, s98')
            self.a.raw('s_memtime s[98:99]')
    def flush(self, s_ws, s_wave, srd, vt):
        if not OPT['stamp'] or not self.on: return
        a = self.a
        if OPT['stamp'] == 5:
            if self.region == 0: return
            a.I('s_memrealtime s[78:79]'); self.n = 2
            if OPT.get('dbgspan'):
                lb = a.newlabel('dbgskip')
                a.I('s_waitcnt vmcnt(0) lgkmcnt(0)')
                a.I('s_and_b32 s3, s2, 9')
                a.I(f's_or_b32 s3, s3, {sr(s_wave)}')
                a.I('s_cmp_lg_u32 s3, 0')
                a.I(f's_cbranch_scc1 {lb}')
                a.I(f's_mov_b32 {sr(srd)}, s100'); a.I(f's_mov_b32 {sr(srd + 1)}, s101'); a.I(f's_mov_b32 {sr(srd + 2)}, 256'); a.I(f's_mov_b32 {sr(srd + 3)}, 0x20000')
                a.I('s_not_b32 s76, s76')
                a.I('s_mov_b64 exec, 1')
                a.I(f'v_mov_b32 {vr(vt)}, 0'); a.I(f'v_mov_b32 {vr(vt + 1)}, s78')
                a.I(f'buffer_atomic_umax {vr(vt + 1)}, {vr(vt)}, {sr(srd, 4)}, 0 offen offset:16 sc1')
                a.I('s_nop 1')
                a.I(f'v_mov_b32 {vr(vt + 1)}, s76')
                a.I(f'buffer_atomic_umax {vr(vt + 1)}, {vr(vt)}, {sr(srd, 4)}, 0 offen offset:20 sc1')
                a.I('s_not_b32 s76, s76')
                a.I('s_nop 1')
                a.I(f'v_mov_b32 {vr(vt + 1)}, s76')
                a.I(f'buffer_atomic_umax {vr(vt + 1)}, {vr(vt)}, {sr(srd, 4)}, 0 offen offset:24 sc1')
                a.label(lb)
                return
        regs = [76 + 2 * i for i in range(self.n)]
        if OPT['stamp'] == 4:
            regs = [76] + list(range(81, 94)) + [98]; keepn = self.n; self.n = 0
        assert self.n <= 12
        a.I('s_waitcnt vmcnt(0) lgkmcnt(0)')
        a.I(f's_add_u32 {sr(srd)}, {sr(s_ws)}, {STAMP_OFF + self.region * (1 << 20)}')
        a.I(f's_addc_u32 {sr(srd + 1)}, {sr(s_ws + 1)}, 0')
        a.I(f's_mov_b32 {sr(srd + 2)}, {1 << 20}')
        a.I(f's_mov_b32 {sr(srd + 3)}, 0x20000')
        a.I(f's_lshl_b32 s3, s2, 3')
        a.I(f's_add_u32 s3, s3, {sr(s_wave)}')
        a.I(f's_lshl_b32 s3, s3, 6')
        a.I(f'v_mov_b32 {vr(vt)}, 0')
        a.I(f'v_mov_b32 {vr(vt + 1)}, {self.n}')
        a.I(f'buffer_store_dword {vr(vt + 1)}, {vr(vt)}, {sr(srd, 4)}, s3 offen offset:60')
        a.I('s_nop 1')
        for i in range(len(regs)):
            a.I(f'v_mov_b32 {vr(vt + 1)}, {sr(regs[i])}')
            a.I(f'buffer_store_dword {vr(vt + 1)}, {vr(vt)}, {sr(srd, 4)}, s3 offen offset:{4 * i}')
            a.I('s_nop 1')
        if OPT['stamp'] == 4: self.n = keepn

def gen_k1():
    a = Asm()
    st = Stamper(a, 0)
    MF = 'v_mfma_f32_16x16x32_bf16'
    sX, sW, sK, sV, sO = 20, 24, 28, 32, 36
    sWAVE, sR, sHH, sBLK, sB, sHP = 40, 41, 42, 43, 44, 45
    sM0W, sM0X, sOW, sOX, sLOOSE, sNEXT, sKVI = 46, 47, 48, 49, 50, 51, 52
    sSLW, sSLX = 53, 54
    sCNT, sT0, sT1 = 55, 56, 57
    sKP, sVP, sM0A, sDK, sDV, sOV, sOK = 58, 59, 60, 62, 63, 64, 65
    sTHR, sTHR8, sCL, sCL8 = 66, 67, 68, 69
    sC = 70
    sKPo, sVPo = 72, 73
    sST, sROT = 74, 75
    sLINK = 6
    sH = 61
    sPFO, sMK, sMV = 48, 50, 51
    sJ = 47
    sRS, sRC = 46, 61
    vKa, vVa, vD = 1, 3, 7
    mx, mx8, tA, tB = 8, 9, 10, 11
    ONES, NEGM, Q, S, POOL, O = 12, 16, 28, 76, 116, 148
    ACC, XF, WF = 112, 76, 44
    XB, QB = 49152, 49152
    HB1 = 114688
    def acc(t, j): return ACC + (t * 4 + j) * 4
    def o_(T, d): return O + (T * 9 + (d + 1) % 9) * 4
    JUNK = O + 3
    def q_(T, k): return Q + (T * 4 + k) * 4
    def s_(T, j, tt=0): return S + (T * 2 + j) * 8 + tt * 4 if T < 2 else S + 32 + tt * 4
    def negm(T): return NEGM + 4 * T
    kvreg = {'K0': 160, 'V0': 192, 'K1': 76, 'V1': 108}
    g, n, t0, t1, t2, t3 = 12, 13, 14, 15, 16, 17

    def hfun(dst, src, tmp):
        a.I(f'v_lshrrev_b32 {vr(tmp)}, 1, {vr(src)}')
        a.I(f'v_xor_b32 {vr(dst)}, {vr(src)}, {vr(tmp)}')
        a.I(f'v_and_b32 {vr(dst)}, 1, {vr(dst)}')
        a.I(f'v_lshl_or_b32 {vr(dst)}, {vr(dst)}, 1, {vr(tmp)}')
    def tr_pattern(dst):
        a.I(f'v_lshrrev_b32 {vr(g)}, 4, v0')
        hfun(t0, g, t1)
        a.I(f'v_bfe_u32 {vr(t1)}, v0, 1, 1')
        a.I(f'v_xor_b32 {vr(t0)}, {vr(t0)}, {vr(t1)}')
        a.I(f'v_lshlrev_b32 {vr(t0)}, 4, {vr(t0)}')
        a.I(f'v_lshl_add_u32 {vr(t0)}, {vr(g)}, 12, {vr(t0)}')
        a.I(f'v_bfe_u32 {vr(t1)}, v0, 2, 2')
        a.I(f'v_lshl_add_u32 {vr(t0)}, {vr(t1)}, 7, {vr(t0)}')
        a.I(f'v_bfe_u32 {vr(t1)}, v0, 3, 1')
        a.I(f'v_lshl_add_u32 {vr(t0)}, {vr(t1)}, 6, {vr(t0)}')
        a.I(f'v_and_b32 {vr(t1)}, 1, v0')
        a.I(f'v_lshl_add_u32 {vr(dst)}, {vr(t1)}, 3, {vr(t0)}')

    a.raw('s_cmp_ge_u32 s2, 256')
    a.raw('s_cbranch_scc1 k1_end')
    st.real(); st.cyc()
    a.I('s_and_b32 s3, s2, 7')
    a.I('s_lshr_b32 s4, s2, 3')
    a.I(f's_lshr_b32 {sr(sBLK)}, s3, 2')
    a.I(f's_mul_i32 s5, {sr(sBLK)}, 40')
    a.I('s_load_dwordx8 s[8:15], s[0:1], s5')
    a.I('s_load_dwordx2 s[16:17], s[0:1], 96')
    a.I('s_add_u32 s5, s5, 32')
    a.I('s_load_dwordx2 s[18:19], s[0:1], s5')
    if OPT['fuse']: a.I('s_load_dwordx2 s[100:101], s[0:1], 88')
    a.I('s_and_b32 s5, s4, 3')
    a.I('s_lshl_b32 s6, s5, 1')
    a.I('s_add_u32 s3, s3, s6')
    a.I('s_and_b32 s3, s3, 3')
    a.I(f's_lshl_b32 {sr(sHP)}, s5, 2')
    a.I(f's_add_u32 {sr(sHP)}, {sr(sHP)}, s3')
    a.I(f's_lshr_b32 {sr(sB)}, s4, 2')
    a.I(f's_add_u32 {sr(sROT)}, {sr(sB)}, s5')
    a.I(f'v_lshrrev_b32 {vr(t0)}, 6, v0')
    a.I(f'v_readfirstlane_b32 {sr(sWAVE)}, {vr(t0)} ; WAVEID')
    a.I('v_and_b32 v0, 63, v0')
    a.I(f's_and_b32 {sr(sR)}, {sr(sWAVE)}, 3')
    a.I(f's_lshr_b32 {sr(sHH)}, {sr(sWAVE)}, 2')
    a.I(f's_lshr_b32 s3, {sr(sR)}, 1')
    a.I(f's_xor_b32 {sr(sH)}, {sr(sR)}, s3')
    a.I(f's_and_b32 {sr(sH)}, {sr(sH)}, 1')
    a.I(f's_lshl_b32 {sr(sH)}, {sr(sH)}, 1')
    a.I(f's_or_b32 {sr(sH)}, {sr(sH)}, s3')
    a.I(f'v_and_b32 {vr(t0)}, 7, v0')
    a.I(f'v_xor_b32 {vr(t0)}, {sr(sH)}, {vr(t0)}')
    a.I(f'v_bfe_u32 {vr(t1)}, v0, 4, 1')
    a.I(f'v_lshlrev_b32 {vr(t1)}, 2, {vr(t1)}')
    a.I(f'v_xor_b32 {vr(t0)}, {vr(t0)}, {vr(t1)}')
    a.I(f'v_lshlrev_b32 {vr(t0)}, 4, {vr(t0)}')
    a.I(f'v_lshrrev_b32 {vr(t1)}, 5, v0')
    a.I(f'v_lshl_add_u32 {vr(t0)}, {vr(t1)}, 7, {vr(t0)}')
    a.I(f'v_lshrrev_b32 {vr(g)}, 4, v0')
    a.I(f'v_bfe_u32 {vr(t1)}, v0, 3, 2')
    a.I(f's_lshl_b32 s3, {sr(sR)}, 4')
    a.I(f'v_add_u32 {vr(t1)}, s3, {vr(t1)}')
    a.I(f'v_lshl_add_u32 {vr(vD)}, {vr(t1)}, 8, {vr(t0)}')
    if OPT['lin']:
        a.I(f's_mul_i32 s3, {sr(sR)}, 3072')
        a.I(f'v_subrev_u32 {vr(vD)}, s3, {vr(vD)}')
    a.I(f's_lshl_b32 {sr(sM0W)}, {sr(sR)}, 12')
    def rest_setup():
        a.I(f's_mul_i32 {sr(sM0A)}, {sr(sHH)}, 81920')
        a.I(f's_add_u32 {sr(sM0A)}, {sr(sM0A)}, {sr(sM0W)}')
        a.I(f's_lshl_b32 s3, {sr(sB)}, 4')
        a.I(f's_add_u32 s3, s3, {sr(sHP)}')
        a.I('s_lshl_b32 s3, s3, 18')
        for (d, p) in ((sK, 10), (sV, 12)):
            a.I(f's_add_u32 {sr(d)}, {sr(p)}, s3')
            a.I(f's_addc_u32 {sr(d + 1)}, {sr(p + 1)}, 0')
            a.I(f's_mov_b32 {sr(d + 2)}, 262144')
            a.I(f's_mov_b32 {sr(d + 3)}, 0x20000')
    a.I(f's_cmp_eq_u32 {sr(sHH)}, 0')
    a.I('s_cbranch_scc1 k1_comp')

    def flag_srd(d):
        a.I(f's_add_u32 {sr(d)}, s16, {FLAG_OFF}')
        a.I(f's_addc_u32 {sr(d + 1)}, s17, 0')
        a.I(f's_mov_b32 {sr(d + 2)}, 98304')
        a.I(f's_mov_b32 {sr(d + 3)}, 0x20000')
    def dbg_srd(d):
        a.I(f's_mov_b32 {sr(d)}, s100')
        a.I(f's_mov_b32 {sr(d + 1)}, s101')
        a.I(f's_mov_b32 {sr(d + 2)}, 256')
        a.I(f's_mov_b32 {sr(d + 3)}, 0x20000')
    def oflag_off(d):
        a.I(f's_lshl_b32 {d}, {sr(sBLK)}, 3')
        a.I(f's_add_u32 {d}, {d}, {sr(sB)}')
        a.I(f's_lshl_b32 {d}, {d}, 4')
        a.I(f's_add_u32 {d}, {d}, {sr(sHP)}')
        a.I(f's_lshl_b32 {d}, {d}, 7')
        a.I(f's_add_u32 {d}, {d}, 65536')
    def wo_srd():
        a.I(f's_lshl_b32 s3, {sr(sB)}, 4')
        a.I(f's_add_u32 s3, s3, {sr(sHP)}')
        a.I('s_lshl_b32 s3, s3, 16')
        a.I(f's_add_u32 {sr(sX)}, s18, s3')
        a.I(f's_addc_u32 {sr(sX + 1)}, s19, 0')
        a.I(f's_mov_b32 {sr(sX + 2)}, 65536')
    vDW, vDX = 20, 24
    if OPT['lprio']: a.I(f's_setprio {OPT["lprio"]}')
    a.I(f'v_lshl_add_u32 {vr(vDW)}, {vr(t1)}, 13, {vr(t0)}')
    for tq in range(1, 4): a.I(f'v_add_u32 {vr(vDW + tq)}, {tq * (32768 - 1024)}, {vr(vDW)}')
    a.I(f's_lshr_b32 {sr(sST)}, s2, {OPT["offsh"]}')
    a.I(f's_and_b32 {sr(sST)}, {sr(sST)}, {OPT["offm"]}')
    a.I(f's_add_u32 {sr(sOX)}, {sr(sST)}, {sr(sROT)}')
    a.I(f's_and_b32 {sr(sOX)}, {sr(sOX)}, {OPT["rot1"]}')
    a.I(f's_lshl_b32 {sr(sOW)}, {sr(sOX)}, 19')
    a.I(f's_lshl_b32 s3, {sr(sHP)}, 9')
    a.I(f's_sub_u32 {sr(sW + 2)}, 8388608, s3')
    a.I(f's_mov_b32 {sr(sW + 3)}, 0x20000')
    a.I(f's_mov_b32 m0, {sr(sM0W)}')
    a.I('s_waitcnt lgkmcnt(0)')
    a.I(f's_add_u32 {sr(sW)}, s14, s3')
    a.I(f's_addc_u32 {sr(sW + 1)}, s15, 0')
    def wloads(hq):
        if OPT['whalf']:
            for tq in range(4): a.I(f'buffer_load_dwordx4 {vr(vDW + tq)}, {sr(sW, 4)}, {sr(sOW)} offen offset:{tq * 1024}{NT("wnt")} lds')
        else:
            for tq in range(4): a.I(f'buffer_load_dwordx4 {vr(vDW + tq)}, {sr(sW, 4)}, {sr(sOW)} offen offset:{tq * 1024 + hq * 256}{NT("wnt")} lds')
    sHA, sHB = 70, 71
    if OPT['whalf']:
        a.I(f's_lshr_b32 s4, {sr(sB)}, 2')
        a.I(f's_mul_i32 {sr(sHA)}, s4, {HB1}')
        a.I(f's_sub_u32 {sr(sHB)}, {HB1}, {sr(sHA)}')
        a.I(f's_add_u32 {sr(sHA)}, {sr(sHA)}, {sr(sM0W)}')
        a.I(f's_add_u32 {sr(sHB)}, {sr(sHB)}, {sr(sM0W)}')
        a.I(f's_lshl_b32 {sr(sKPo)}, s4, 8')
        a.I(f's_mov_b32 m0, {sr(sHA)}')
        a.I(f's_or_b32 {sr(sOW)}, {sr(sOW)}, {sr(sKPo)}')
    wloads(0)
    a.I(f's_mul_i32 s3, {sr(sB)}, 294912')
    if not OPT['whalf']:
        a.I(f's_add_u32 m0, {sr(sM0W)}, {HB1 - 256}')
        wloads(1)
    a.I(f's_add_u32 {sr(sX)}, s8, s3')
    a.I(f's_addc_u32 {sr(sX + 1)}, s9, 0')
    a.I(f's_mov_b32 {sr(sX + 2)}, 294912')
    a.I(f's_mov_b32 {sr(sX + 3)}, 0x20000')
    a.I(f'v_and_b32 {vr(t1)}, 2, {vr(g)}')
    a.I(f'v_lshlrev_b32 {vr(t1)}, 1, {vr(t1)}')
    a.I(f'v_xor_b32 {vr(t0)}, {vr(g)}, {vr(t1)}')
    a.I(f'v_and_b32 {vr(t1)}, 7, v0')
    a.I(f'v_xor_b32 {vr(t0)}, {vr(t0)}, {vr(t1)}')
    a.I(f'v_lshlrev_b32 {vr(t0)}, 4, {vr(t0)}')
    a.I(f'v_lshrrev_b32 {vr(t1)}, 3, v0')
    a.I(f'v_lshl_add_u32 {vr(t0)}, {vr(t1)}, 11, {vr(t0)}')
    a.I(f'v_xor_b32 {vr(t1)}, 64, {vr(t0)}')
    a.I(f's_lshl_b32 s3, {sr(sR)}, 16')
    for j in range(4):
        a.I(f'v_add_u32 {vr(vDX + j)}, s3, {vr((t0, t1)[j & 1])}')
        if j < 3: a.I(f's_add_u32 s3, s3, {16384 - 1024}')
    a.I(f's_lshl_b32 s3, {sr(sR)}, 6')
    a.I(f'v_xor_b32 {vr(t0)}, s3, {vr(t0)}')
    a.I(f's_lshl_b32 s3, {sr(sR)}, 14')
    a.I('s_add_u32 s3, s3, 262144')
    a.I(f'v_add_u32 {vr(vDX + 4)}, s3, {vr(t0)}')
    a.I(f's_lshl_b32 {sr(sM0X)}, {sr(sR)}, 10')
    a.I(f's_add_u32 {sr(sM0X)}, {sr(sM0X)}, {XB + 16384}')
    a.I(f's_add_u32 {sr(sST)}, {sr(sST)}, 1')
    a.I(f's_mov_b32 {sr(sSLW)}, 0')
    a.I(f's_mov_b32 {sr(sSLX)}, 0')
    def stage_w():
        R = OPT['rot1']
        a.many([f's_add_u32 {sr(sOX)}, {sr(sST)}, {sr(sROT)}',
                f's_and_b32 {sr(sOX)}, {sr(sOX)}, {R}',
                f's_and_b32 {sr(sOW)}, {sr(sST)}, {15 & ~R}',
                f's_or_b32 {sr(sOX)}, {sr(sOX)}, {sr(sOW)}',
                f's_add_u32 m0, {sr(sHA if OPT["whalf"] else sM0W)}, {sr(sSLW)}',
                f's_lshl_b32 {sr(sOW)}, {sr(sOX)}, 19',
                f's_add_u32 {sr(sST)}, {sr(sST)}, 1'])
        if OPT['whalf']: a.I(f's_or_b32 {sr(sOW)}, {sr(sOW)}, {sr(sKPo)}')
        wloads(0)
        if not OPT['whalf']:
            a.I(f's_add_u32 m0, m0, {HB1 - 256}')
            wloads(1)
    def stage_x():
        lb = a.newlabel('k1_skipx')
        a.I(f's_add_u32 {sr(sT0)}, {sr(sM0W)}, {sr(sSLX)}')
        a.I(f's_add_u32 m0, {sr(sT0)}, {XB}')
        a.I(f's_lshl_b32 {sr(sOX)}, {sr(sOX)}, 7')
        for j in range(4): a.I(f'buffer_load_dwordx4 {vr(vDX + j)}, {sr(sX, 4)}, {sr(sOX)} offen offset:{j * 1024}{NT("xnt")} lds')
        a.I(f's_add_u32 m0, {sr(sM0X)}, {sr(sSLX)}')
        a.I(f's_cmp_ge_u32 {sr(sR)}, 2')
        a.I(f's_cbranch_scc1 {lb}')
        a.I(f'buffer_load_dwordx4 {vr(vDX + 4)}, {sr(sX, 4)}, {sr(sOX)} offen{NT("xnt")} lds')
        a.label(lb)
        if OPT['whalf']:
            a.I(f's_add_u32 m0, {sr(sHB)}, {sr(sSLW)}')
            a.I(f's_xor_b32 {sr(sOW)}, {sr(sOW)}, 256')
            wloads(1)
        a.I(f's_add_u32 {sr(sSLW)}, {sr(sSLW)}, 16384')
        a.I(f's_add_u32 {sr(sSLX)}, {sr(sSLX)}, 18432')
        a.I(f's_cmp_eq_u32 {sr(sSLW)}, 49152')
        a.I(f's_cselect_b32 {sr(sSLW)}, 0, {sr(sSLW)}')
        a.I(f's_cselect_b32 {sr(sSLX)}, 0, {sr(sSLX)}')
    stage_x()
    rest_setup()
    if OPT['pre1']:
        stage_w()
        a.I(f's_waitcnt vmcnt({4 if OPT["whalf"] else 8})')
        a.I('s_barrier')
        stage_x()
    else:
        a.I('s_waitcnt vmcnt(0)')
        a.I('s_barrier')
        stage_w(); stage_x()
    st0 = st.n
    st.cyc()
    stage_w(); stage_x()
    a.I(f's_cmp_lg_u32 {sr(sR)}, 0')
    a.I('s_cbranch_scc1 k1_noreset')
    flag_srd(sO)
    oflag_off('s4')
    a.I('s_lshl_b32 s3, s2, 8')
    a.I(f'v_lshlrev_b32 {vr(t0)}, 2, v0')
    a.I(f'v_and_b32 {vr(t2)}, 127, {vr(t0)}')
    a.I(f'v_mov_b32 {vr(t1)}, 0')
    a.I(f'buffer_store_dword {vr(t1)}, {vr(t0)}, {sr(sO, 4)}, s3 offen sc1')
    a.I(f'buffer_store_dword {vr(t1)}, {vr(t2)}, {sr(sO, 4)}, s4 offen sc1')
    a.label('k1_noreset')
    if OPT['kvs'] == 3:
        a.I(f's_mul_i32 s3, s2, 171')
        a.I(f's_lshr_b32 s3, s3, 9')
        a.I(f's_mul_i32 s3, s3, 3')
        a.I(f's_sub_u32 {sr(sNEXT)}, s2, s3')
    else:
        a.I(f's_lshr_b32 s3, s2, 3')
        a.I(f's_and_b32 {sr(sNEXT)}, s3, 1')
    a.I(f's_add_u32 {sr(sNEXT)}, {sr(sNEXT)}, {OPT["kv0"]}')
    assert OPT['kv0'] + 4 * OPT['kvs'] - 1 <= 12
    if OPT['kvm'] != '-':
        ms = [sum(1 << int(c, 16) for c in m) for m in OPT['kvm'].split('/')]
        if len(ms) == 3: a.I(f's_sub_u32 s3, {sr(sNEXT)}, {OPT["kv0"]}')
        elif len(ms) == 2:
            a.I('s_lshr_b32 s3, s2, 3'); a.I('s_lshr_b32 s4, s2, 5'); a.I('s_xor_b32 s3, s3, s4'); a.I('s_and_b32 s3, s3, 1')
        else:
            a.I('s_lshr_b32 s3, s2, 3'); a.I('s_lshr_b32 s4, s2, 5'); a.I('s_add_u32 s3, s3, s4'); a.I('s_and_b32 s3, s3, 3')
        a.I(f's_mov_b32 {sr(sNEXT)}, {ms[0]}')
        for i, m in enumerate(ms[1:], 1):
            a.I(f's_cmp_eq_u32 s3, {i}')
            a.I(f's_cselect_b32 {sr(sNEXT)}, {m}, {sr(sNEXT)}')
    a.I(f's_mov_b32 {sr(sLOOSE)}, 0')
    a.I(f's_mov_b32 {sr(sKVI)}, 0')
    a.I(f's_mov_b32 {sr(sCNT)}, 0')
    def lbar():
        lb = a.newlabel('k1_loose')
        a.I(f's_cmp_gt_i32 {sr(sLOOSE)}, 0')
        a.I(f's_cbranch_scc1 {lb}')
        a.I('s_waitcnt vmcnt(12)')
        a.label(lb)
        a.I(f's_sub_i32 {sr(sLOOSE)}, {sr(sLOOSE)}, 1')
        a.I('s_waitcnt vmcnt(20)')
        a.I('s_barrier')
        if OPT.get('qst'): st.cyc()
    a.label('k1_lloop')
    lbar()
    stage_w(); stage_x()
    if OPT['kvm'] != '-':
        a.I(f's_lshr_b32 s3, {sr(sNEXT)}, {sr(sCNT)}')
        a.I('s_and_b32 s3, s3, 1')
        a.I('s_cbranch_scc0 k1_kvdone')
    else:
        a.I(f's_cmp_lg_u32 {sr(sCNT)}, {sr(sNEXT)}')
        a.I('s_cbranch_scc1 k1_kvdone')
        a.I(f's_add_u32 {sr(sNEXT)}, {sr(sNEXT)}, {OPT["kvs"]}')
    a.I(f's_add_u32 {sr(sKVI)}, {sr(sKVI)}, 1')
    items = ['K0', 'V0', 'K1', 'V1'] + [OPT['kq'][i:i + 2] for i in range(0, len(OPT['kq']), 2) if OPT['kq'][i] in 'KV']
    for m, it in enumerate(items):
        a.I(f's_cmp_lg_u32 {sr(sKVI)}, {m + 1}')
        a.I(f's_cbranch_scc1 k1_kv{m + 1}')
        a.I(f's_mov_b32 {sr(sLOOSE)}, 2')
        for hq in range(2):
            a.I(f's_mov_b32 {sr(sT0)}, {int(it[1]) * 16384 + hq * 131072}')
            for j in range(4):
                if m < 4: a.I(f'buffer_load_dwordx4 {vr(kvreg[it] + 16 * hq + 4 * j, 4)}, {vr(vD)}, {sr(sK if it[0] == "K" else sV, 4)}, {sr(sT0)} offen offset:{j * 1024}{NT("kvnt")}')
                else: a.I(f'buffer_load_dwordx4 v[224:227], {vr(vD)}, {sr(sK if it[0] == "K" else sV, 4)}, {sr(sT0)} offen offset:{j * 1024} ; NOCHECK')
                if OPT['lin'] and j < 3: a.I(f's_add_u32 {sr(sT0)}, {sr(sT0)}, 3072')
        if m < len(items) - 1: a.I('s_branch k1_kvdone')
        a.label(f'k1_kv{m + 1}')
    a.label('k1_kvdone')
    a.I(f's_add_u32 {sr(sCNT)}, {sr(sCNT)}, 1')
    a.I(f's_cmp_lt_u32 {sr(sCNT)}, 13')
    a.I('s_cbranch_scc1 k1_lloop')
    a.I(f's_add_u32 s3, {sr(sM0W)}, 16384')
    a.I(f'v_lshl_add_u32 {vr(tA)}, v0, 4, s3')
    a.I(f'v_add_u32 {vr(tB)}, {81920 + 32768}, {vr(tA)}')
    a.I(f'v_add_u32 {vr(mx)}, {81920 - 16384}, {vr(tA)}')
    def kvwrite(it, off, b1=tB, off1=None):
        for hq in range(2):
            o = off if (hq == 0 or off1 is None) else off1
            for j in range(4): a.I(f'ds_write_b128 {vr((tA, b1)[hq])}, {vr(kvreg[it] + 16 * hq + 4 * j, 4)} offset:{o + j * 1024}')
    lbar()
    npf = 0
    a.I(f'v_lshlrev_b32 {vr(t1)}, 4, v0')
    if OPT['cpf']:
        a.I(f's_getpc_b64 {sr(sO, 2)}')
        a.label('k1_pc')
        a.I(f's_mov_b32 {sr(sO + 2)}, k1_end-k1_pc')
        a.I(f's_mov_b32 {sr(sO + 3)}, 0x20000')
        a.I(f's_lshr_b32 s3, {sr(sHP)}, 2')
        a.I('s_lshl_b32 s3, s3, 2')
        a.I(f's_add_u32 s3, s3, {sr(sR)}')
        a.I('s_lshl_b32 s3, s3, 11')
        for k in range(2):
            a.I(f'buffer_load_dwordx4 v[228:231], {vr(t1)}, {sr(sO, 4)}, s3 offen offset:{k * 1024} ; NOCHECK')
            npf += 1
    junk = []
    for it in [OPT['kw'][i:i + 2] for i in range(0, len(OPT['kw']), 2) if OPT['kw'][i] in 'KV']:
        for hq in range(2):
            for j in range(4):
                junk.append(([f's_mov_b32 {sr(sT0)}, {int(it[1]) * 16384 + hq * 131072}'] if j == 0 else []) +
                            [f'buffer_load_dwordx4 v[224:227], {vr(vD)}, {sr(sK if it[0] == "K" else sV, 4)}, {sr(sT0)} offen offset:{j * 1024} ; NOCHECK'])
    if OPT['wopf'] == 3:
        wo_srd()
        for k in range(OPT['nwo']):
            junk.append(([f's_lshl_b32 {sr(sT0)}, {sr(sR)}, 14'] if k == 0 else []) + ([f's_add_u32 {sr(sT0)}, {sr(sT0)}, 4096'] if k and k & 3 == 0 else []) +
                        [f'buffer_load_dwordx4 v[224:227], {vr(t1)}, {sr(sX, 4)}, {sr(sT0)} offen offset:{(k & 3) * 1024} ; NOCHECK'])
    for x in junk[:8]: a.many(x); npf += 1
    kvwrite('K0', 0)
    a.I(f's_waitcnt vmcnt({npf})')
    a.I('s_barrier')
    for x in junk[8:16]: a.many(x)
    kvwrite('V0', 16384)
    a.I('s_barrier')
    for x in junk[16:]: a.many(x)
    a.I(f's_call_b64 {sr(sLINK, 2)}, k1_asetup')
    for i in range(O, 256, 2):
        if not 224 <= i < 232: a.I(f'v_mov_b64 {vr(i, 2)}, 0')
    if not OPT['lazyj']:
        a.I('s_waitcnt vmcnt(0)')
        for i in range(224, 232, 2): a.I(f'v_mov_b64 {vr(i, 2)}, 0')
    a.I(f's_cmp_lg_u32 {sr(sR)}, 0')
    a.I('s_cbranch_scc1 k1_nocount')
    dbg_srd(sO)
    a.I(f'v_mov_b32 {vr(140)}, 0')
    a.I(f'v_mov_b32 {vr(141)}, 1')
    a.I('s_mov_b64 exec, 1')
    a.I(f'buffer_atomic_add {vr(141)}, {vr(140)}, {sr(sO, 4)}, 0 offen sc1')
    a.I('s_mov_b64 exec, -1')
    a.label('k1_nocount')
    if OPT['lprio']: a.I('s_setprio 0')
    st.cyc()
    a.I('s_branch k1_join')

    a.label('k1_asetup')
    a.I(f's_lshl_b32 {sr(sKP)}, {sr(sHH)}, 15')
    a.I(f's_add_u32 {sr(sKP)}, {sr(sKP)}, 16384')
    a.I(f's_add_u32 {sr(sVP)}, {sr(sKP)}, 16384')
    a.I(f's_and_b32 s3, {sr(sR)}, 1')
    a.I('s_lshl_b32 s3, s3, 11')
    a.I(f's_lshl_b32 {sr(sJ)}, s3, 1')
    a.I(f's_sub_u32 {sr(sJ)}, 2048, {sr(sJ)}')
    a.I(f's_mul_i32 s5, {sr(sHH)}, 81920')
    a.I('s_add_u32 s5, s5, s3')
    a.I(f's_add_u32 s4, s5, {sr(sVP)}')
    a.I(f's_add_u32 s5, s5, {sr(sKP)}')
    a.I(f's_mul_i32 s3, {sr(sHH)}, 36864')
    a.I(f's_add_u32 s3, s3, {QB}')
    a.I(f'v_lshl_add_u32 {vr(tB)}, v0, 4, s3')
    a.I(f's_lshl_b32 s3, {sr(sR)}, 13')
    a.I(f'v_add_u32 {vr(mx8)}, s3, {vr(tB)}')
    tr_pattern(vVa)
    a.I(f'v_add_u32 {vr(vVa)}, s4, {vr(vVa)}')
    for j in range(1, 4): a.I(f'v_xor_b32 {vr(vVa + j)}, {32 * j}, {vr(vVa)}')
    a.I(f'v_bfe_u32 {vr(n)}, v0, 2, 2')
    hfun(t0, n, t1)
    a.I(f'v_xor_b32 {vr(t0)}, {vr(t0)}, {vr(g)}')
    a.I(f'v_lshlrev_b32 {vr(t0)}, 4, {vr(t0)}')
    a.I(f'v_lshl_add_u32 {vr(t0)}, {vr(n)}, 12, {vr(t0)}')
    a.I(f'v_and_b32 {vr(t1)}, 3, v0')
    a.I(f'v_lshl_add_u32 {vr(t0)}, {vr(t1)}, 7, {vr(t0)}')
    a.I(f'v_bfe_u32 {vr(t1)}, v0, 1, 1')
    a.I(f'v_lshl_add_u32 {vr(t0)}, {vr(t1)}, 6, {vr(t0)}')
    a.I(f'v_add_u32 {vr(vKa)}, s5, {vr(t0)}')
    a.I(f'v_xor_b32 {vr(vKa + 1)}, 64, {vr(vKa)}')
    for i in range(4): a.I(f'v_mov_b32 {vr(ONES + i)}, 0x3f803f80')
    for i in range(0, 12, 2): a.I(f'v_mov_b64 {vr(NEGM + i, 2)}, 0')
    NEG_BIG = fbits(-3.0e38)
    for s in (sTHR, sTHR8, sCL, sCL8): a.I(f's_mov_b32 {sr(s)}, {NEG_BIG}')
    a.I(f's_lshl_b32 s3, {sr(sHH)}, 17')
    a.I(f'v_add_u32 {vr(vD)}, s3, {vr(vD)}')
    a.I(f's_mov_b32 {sr(sOV)}, 32768')
    a.I(f's_mov_b32 {sr(sOK)}, 32768')
    a.I(f's_mov_b32 {sr(sT1)}, 32768')
    a.I(f's_mov_b32 {sr(sRS)}, 0')
    a.I(f's_setpc_b64 {sr(sLINK, 2)}')

    a.label('k1_comp')
    a.lg = []
    st.n = st0
    vWp, vX, vQW = 28, 32, 34
    tr_pattern(vWp)
    a.I(f's_lshr_b32 s3, {sr(sR)}, 1')
    a.I(f's_mul_i32 s4, s3, {HB1}')
    a.I(f's_and_b32 s5, {sr(sR)}, 1')
    a.I('s_lshl_b32 s6, s5, 9')
    a.I('s_add_u32 s4, s4, s6')
    a.I(f'v_add_u32 {vr(vWp)}, s4, {vr(vWp)}')
    for j in range(1, 4): a.I(f'v_xor_b32 {vr(vWp + j)}, {32 * j}, {vr(vWp)}')
    a.I(f'v_and_b32 {vr(n)}, 15, v0')
    a.I(f'v_lshrrev_b32 {vr(t0)}, 1, {vr(n)}')
    a.I(f'v_and_b32 {vr(t1)}, 2, {vr(t0)}')
    a.I(f'v_lshlrev_b32 {vr(t1)}, 1, {vr(t1)}')
    a.I(f'v_xor_b32 {vr(t0)}, {vr(t0)}, {vr(t1)}')
    a.I(f'v_lshlrev_b32 {vr(t1)}, 1, {vr(g)}')
    a.I(f'v_xor_b32 {vr(t0)}, {vr(t0)}, {vr(t1)}')
    a.I(f'v_lshlrev_b32 {vr(t0)}, 4, {vr(t0)}')
    a.I(f'v_lshl_add_u32 {vr(t0)}, {vr(n)}, 7, {vr(t0)}')
    a.I(f'v_add_u32 {vr(vX)}, {XB}, {vr(t0)}')
    a.I(f'v_xor_b32 {vr(vX + 1)}, 16, {vr(vX)}')
    a.I(f's_mul_i32 s4, s3, 36864')
    a.I('s_lshl_b32 s6, s5, 11')
    a.I('s_add_u32 s4, s4, s6')
    a.I(f's_add_u32 s4, s4, {QB}')
    a.I(f'v_lshl_add_u32 {vr(t0)}, {vr(n)}, 4, s4')
    a.I(f'v_lshrrev_b32 {vr(t1)}, 1, {vr(g)}')
    a.I(f'v_lshl_add_u32 {vr(t0)}, {vr(t1)}, 8, {vr(t0)}')
    a.I(f'v_and_b32 {vr(t1)}, 1, {vr(g)}')
    a.I(f'v_lshl_add_u32 {vr(vQW)}, {vr(t1)}, 3, {vr(t0)}')
    a.I('s_waitcnt lgkmcnt(0)')
    rest_setup()
    a.I(f's_call_b64 {sr(sLINK, 2)}, k1_asetup')
    cval = fbits(128 ** -0.5 * math.log2(math.e))
    a.I(f's_mov_b32 {sr(sC)}, {cval}')
    a.I(f's_mov_b32 {sr(sC + 1)}, {cval}')
    for i in range(0, 144, 2): a.I(f'v_mov_b64 {vr(ACC + i, 2)}, 0')
    def xread(t, slot, ks): return f'ds_read_b128 {vr(XF + 4 * t, 4)}, {vr(vX + ks)} offset:{slot * 18432 + t * 2048}'
    def wreads(W, slot, ks):
        return [f'ds_read_b64_tr_b16 {vr(W + 4 * j + 2 * h, 2)}, {vr(vWp + j)} offset:{slot * 16384 + ks * 2048 + h * 1024}' for j in range(4) for h in range(2)]
    GT = OPT['gate']
    def kstep(Wc, Wn, nslot, nks, gated, last=False):
        wr = wreads(Wn, nslot, nks) if not last else []
        conv = []
        for t in range(9):
            for j in range(4):
                a.I(f'{MF} {vr(acc(t, j), 4)}, {vr(Wc + 4 * j, 4)}, {vr(XF + 4 * t, 4)}, {vr(acc(t, j), 4)}')
                if t >= (GT if gated else 0) and j in (0, 2) and wr: a.I(wr.pop(0))
                for _ in range(OPT['cvn']):
                    if conv: a.I(conv.pop(0))
            if gated and t == GT - 1:
                a.I('s_waitcnt lgkmcnt(0)')
                a.I('s_barrier')
                if not last:
                    for tt in range(GT): a.I(xread(tt, nslot, nks))
            elif not last and (not gated or t >= GT): a.I(xread(t, nslot, nks))
            if last and t >= GT - 1:
                lo = 0 if t == GT - 1 else t - 1
                for tc in range(lo, t): conv += convert(tc)
        if last:
            a.many(conv); a.many(convert(8))
        assert not wr
    def convert(t):
        r = []
        if OPT['cvpk']:
            for j in range(4): r += [f'v_pk_mul_f32 {vr(acc(t, j) + 2 * k, 2)}, {vr(acc(t, j) + 2 * k, 2)}, {sr(sC, 2)}' for k in range(2)]
        else:
            for j in range(4): r += [f'v_mul_f32 {vr(acc(t, j) + k)}, {sr(sC)}, {vr(acc(t, j) + k)}' for k in range(4)]
        for j in range(4): r += [f'v_cvt_pk_bf16_f32 {vr(acc(t, j) + k)}, {vr(acc(t, j) + 2 * k)}, {vr(acc(t, j) + 2 * k + 1)}' for k in range(2)]
        for j in range(4): r += [f'ds_write_b64 {vr(vQW)}, {vr(acc(t, j), 2)} offset:{t * 4096 + (j >> 1) * 1024 + (j & 1) * 512}']
        r += [f'v_mov_b64 {vr(i, 2)}, 0' for i in range(acc(t, 0), acc(t, 0) + 16, 2) if i >= O]
        return r
    W0, W1 = WF, WF + 16
    if OPT['cprio']: a.I(f's_setprio {OPT["cprio"]}')
    a.I('s_barrier')
    st.cyc()
    a.many(wreads(W0, 0, 0))
    for t in range(9): a.I(xread(t, 0, 0))
    a.I(f's_mov_b32 {sr(sCNT)}, 0')
    a.I('s_waitcnt lgkmcnt(0)')
    class _Dry(Asm): pass
    save = (a.ins, a.lg); a.ins = []; a.lg = []
    kstep(W1, W0, 0, 0, True); lg0 = [set(x) for x in a.lg]
    a.ins, a.lg = save
    a.lg = [set(x) for x in lg0]
    a.label('k1_qloop')
    for i in range(3):
        kstep(W0, W1, i, 1, False)
        kstep(W1, W0, (i + 1) % 3, 0, True)
    assert [set(x) for x in a.lg] == lg0
    a.I(f's_add_u32 {sr(sCNT)}, {sr(sCNT)}, 1')
    a.I(f's_cmp_lt_u32 {sr(sCNT)}, 5')
    a.I('s_cbranch_scc1 k1_qloop')
    kstep(W0, W1, 0, 1, False)
    kstep(W1, W0, 0, 0, True, last=True)
    if OPT['cprio']: a.I('s_setprio 0')
    st.cyc()

    a.label('k1_join')
    if OPT.get('qst'): st.on = False
    a.lg = [set()]
    a.I(f's_mov_b32 {sr(sCNT)}, 0')
    a.I(f's_lshl_b32 s5, {sr(sHH)}, 15')
    a.I(f's_add_u32 s5, s5, {sr(sM0A)}')
    a.I('s_waitcnt lgkmcnt(0)')
    a.I('s_barrier')
    for T in range(2):
        for k in range(4): a.I(f'ds_read_b128 {vr(q_(T, k), 4)}, {vr(mx8)} offset:{T * 4096 + k * 1024}')
    for k in range(4): a.I(f'ds_read_b128 {vr(q_(2, k), 4)}, {vr(tB)} offset:{32768 + k * 1024}')
    a.I('s_waitcnt lgkmcnt(0)')
    a.I('s_barrier')
    a.lg = []
    def dma_ins(kind):
        srd, so = (sK, sOK) if kind == 'K' else (sV, sOV)
        r = [[f'buffer_load_dwordx4 {vr(vD)}, {sr(srd, 4)}, {sr(so)} offen offset:{j * 1024}{APOL(kind, j)} lds'] for j in range(4)]
        if OPT['lin']:
            for j in range(3): r[j].append(f's_add_u32 {sr(so)}, {sr(so)}, 3072')
        r[3].append(f's_add_u32 {sr(so)}, {sr(so)}, {16384 - (9216 if OPT["lin"] else 0)}')
        return r
    def dma_grp(kind, m0):
        r = dma_ins(kind); r[0] = [m0, 's_nop 0'] + r[0]
        return r
    pro_aux = []
    if OPT['kvl2']:
        a.I(f's_mov_b32 {sr(sOV)}, 16384')
        a.I(f's_mov_b32 {sr(sOK)}, 16384')
        a.I(f's_mul_i32 s3, {sr(sHH)}, 49152')
        a.I('s_sub_u32 s4, 49152, s3')
        a.I(f's_add_u32 s4, s4, {sr(sM0A)}')
        for x in dma_grp('K', 's_mov_b32 m0, s4'): a.many(x)
        pro_aux = dma_grp('V', 's_add_u32 m0, s4, 16384') + dma_grp('K', 's_mov_b32 m0, s5')
    else:
        for x in dma_grp('K', 's_mov_b32 m0, s5'): a.many(x)
        a.I(f's_cmp_eq_u32 {sr(sHH)}, 0')
        a.I('s_cbranch_scc1 k1_nowr')
        kvwrite('K1', 32768, mx, 0); kvwrite('V1', 49152, mx, 16384)
    a.label('k1_nowr')
    a.lg = []
    LA, SY = 6, OPT['sy']
    def rd(kind, jl, f):
        if kind == 'K':
            return [f'ds_read_b128 {vr(POOL + 4 * f, 4)}, {vr(vKa + (f & 1))} offset:{(f >> 2) * 1024 + ((f >> 1) & 1) * 512}']
        return [f'ds_read_b64_tr_b16 {vr(POOL + 4 * f + 2 * h, 2)}, {vr(vVa + (f & 3))} offset:{h * 1024 + (f >> 2) * 512}' for h in range(2)]
    def rd_upd(kind, jl, f):
        r = rd(kind, jl, f)
        if kind == 'K' and f >= 6: r.append(f'v_add_u32 {vr(vKa + (f & 1))}, {sr(sDK if jl else sJ)}, {vr(vKa + (f & 1))}')
        if kind == 'V' and f >= 6:
            for x in (f - 2, f): r.append(f'v_add_u32 {vr(vVa + (x & 3))}, {sr(sDV if jl else sJ)}, {vr(vVa + (x & 3))}')
        return r
    for f in range(LA): a.many(rd('K', 0, f))
    lgK = [set(x) for x in a.lg]
    lgV = [set(Insn(x).wr) for f in range(LA) for x in rd('V', 0, f)]
    st.cyc()
    a.I(f's_lshr_b32 s3, {sr(sR)}, 1')
    a.I(f's_xor_b32 s3, s3, {sr(sHH)}')
    a.I('s_cmp_eq_u32 s3, 1')
    a.I('s_cbranch_scc1 k1_proL')

    def maxops(jl, heavy):
        def chain(vs, dst, extra=None):
            o = [f'v_max3_f32 {vr(dst)}, {vr(vs[0])}, {vr(vs[1])}, {vr(vs[2])}']
            for k in range(3, len(vs) - 1, 2): o.append(f'v_max3_f32 {vr(dst)}, {vr(dst)}, {vr(vs[k])}, {vr(vs[k + 1])}')
            o.append(f'v_max_f32 {vr(dst)}, {vr(dst)}, {vr(vs[-1])}' if extra is None else f'v_max3_f32 {vr(dst)}, {vr(dst)}, {vr(vs[-1])}, {vr(extra)}')
            return o
        c1 = chain([s_(0, jl) + k for k in range(8)], tB)
        c0 = chain([s_(1, jl) + k for k in range(8)], mx, tB)
        c8 = chain([s_(2, 0) + k for k in range(8)], mx8) if heavy else []
        ops = []
        for k in range(4):
            ops += [c1[k]] + ([c8[k]] if heavy else []) + [c0[k]]
        return ops
    def expops(jl, heavy):
        ops = []
        Tl = (0, 1, 2) if heavy else (0, 1)
        for k in range(8):
            for T in Tl: ops.append(f'v_exp_f32 {vr(s_(T, jl) + k)}, {vr(s_(T, jl) + k)}')
            if k >= 2 and k % 2 == 0:
                for T in Tl: ops.append(f'v_cvt_pk_bf16_f32 {vr(s_(T, jl) + k // 2 - 1)}, {vr(s_(T, jl) + k - 2)}, {vr(s_(T, jl) + k - 1)}')
        for T in Tl: ops.append(f'v_cvt_pk_bf16_f32 {vr(s_(T, jl) + 3)}, {vr(s_(T, jl) + 6)}, {vr(s_(T, jl) + 7)}')
        return ops
    stubs = []
    def check(jl, heavy):
        for (thr, m, fn) in ((sTHR, mx, f'k1_rare{jl}'),) + (((sTHR8, mx8, 'k1_rare8'),) if heavy else ()):
            lb = a.newlabel('k1_ok')
            a.I(f'v_cmp_lt_f32 vcc, {sr(thr)}, {vr(m)}')
            a.I(f's_cbranch_vccnz {lb}_s')
            a.label(lb)
            stubs.append((lb, fn))
    def mfmas(kind, jl, heavy, f):
        Tl = (0, 1, 2) if heavy else (0, 1)
        P = vr(POOL + 4 * f, 4)
        if kind == 'K':
            tt, ks = f >> 2, f & 3
            return [f'{MF} {vr(s_(T, jl, tt), 4)}, {P}, {vr(q_(T, ks), 4)}, {vr(negm(T) if ks == 0 else s_(T, jl, tt), 4)}' for T in Tl]
        r = [f'{MF} {vr(o_(T, f), 4)}, {P}, {vr(s_(T, jl), 4)}, {vr(o_(T, f), 4)}' for T in Tl]
        if f == 7: r += [f'{MF} {vr(o_(T, 8), 4)}, {vr(ONES, 4)}, {vr(s_(T, jl), 4)}, {vr(o_(T, 8), 4)}' for T in Tl]
        return r
    def ring_step(doK, doV):
        r = []
        for (P, Po, D, on) in ((sKP, sKPo, sDK, doK), (sVP, sVPo, sDV, doV)):
            if not on: continue
            r.append([f's_mov_b32 {sr(Po)}, {sr(P)}',
                      f's_cmp_ge_u32 {sr(P)}, 49152',
                      f's_cselect_b32 {sr(D)}, {-49152 & 0xffffffff:#x}, {sr(sT1)}',
                      f's_add_u32 {sr(P)}, {sr(P)}, {sr(D)}',
                      f's_sub_u32 {sr(D)}, {sr(D)}, {sr(sJ)}'])
        return r
    def cost(x):
        if callable(x): return 8
        return 8 if x.startswith('v_exp') else 4
    def pack(stream, ngaps, reserved):
        for cap_extra in range(0, ngaps + 1):
            big = set((i * ngaps) // cap_extra for i in range(cap_extra)) if cap_extra else set()
            out = [[] for _ in range(ngaps)]; k = 0
            for gi in range(ngaps):
                room = (16 if gi in big else 8) - reserved[gi]
                while k < len(stream) and cost(stream[k]) <= room:
                    out[gi].append(stream[k]); room -= cost(stream[k]); k += 1
            if k == len(stream): break
        else:
            out[-1] += stream[k:]
        if cap_extra == 0 and OPT['spread']:
            h = max([gi for gi in range(ngaps) if any(callable(x) for x in out[gi])] + [-1]) + 1
            rest = [x for gi in range(h, ngaps) for x in out[gi]]
            groups = []; room = 0
            for x in rest:
                if cost(x) > room: groups.append([]); room = 8
                groups[-1].append(x); room -= cost(x)
            free = [gi for gi in range(h, ngaps) if reserved[gi] == 0]
            if len(groups) <= len(free):
                for gi in range(h, ngaps): out[gi] = []
                for i, gp in enumerate(groups): out[free[(i * len(free)) // len(groups)]] = gp
        return out
    def block(segs, streams, mode, aux0, nvm, auxat=None, pr=None, prn=3):
        uses = [(si, f) for si in range(len(segs)) for f in range(8)]
        nU = len(uses)
        gaps = []
        for k, (si, f) in enumerate(uses):
            for n_ in range(len(mfmas(segs[si][0], segs[si][1], segs[si][2], f))): gaps.append((k, n_))
        aux = {gp: [] for gp in gaps}; pre = {gp: [] for gp in gaps}
        for k in range(nU - LA):
            s2, f2 = uses[k + LA]
            rr = rd_upd(segs[s2][0], segs[s2][1], f2)
            for i, x in enumerate([x for x in rr if x.startswith('ds_')]): aux[(k, i)].append(x)
            pre[(k + 1, 0)] += [x for x in rr if x.startswith('v_')]
        if mode != 'fin':
            post = [gp for gp in gaps if gp[0] > nU - 8 + SY]
            q = [(f, x) for f in range(LA) for x in rd('V', 0, f)]
            early = [x for f, x in q if f < OPT['nimm']]; q = [(f, x) for f, x in q if f >= OPT['nimm']]
            per = -(-len(q) // len(post))
            for gp in post:
                for _ in range(per):
                    fdone = gp[0] - (nU - 8) - (0 if gp[1] == 1 else 1)
                    if q and q[0][0] <= fdone: aux[gp].append(q.pop(0)[1])
            assert not q, q
        gsel = gaps[OPT['aux0']::OPT['auxs']] if auxat is None else [gp for gp in gaps if gp[0] >= auxat]
        assert len(aux0) <= len(gsel)
        if mode == 'loop' and OPT['gk'] >= 0:
            gsel = gaps[:3] + [gaps[OPT['gk']], gaps[OPT['gv']]]
            assert len(aux0) == 5
        for gp, x in zip(gsel, aux0): aux[gp].append(x)
        fill = {}
        for (sa, sb, skip, ops) in streams:
            gl = [gp for gp in gaps if sa <= uses[gp[0]][0] <= sb]
            gl = gl[skip:len(gl) - OPT['tail']]
            for gp, ol in zip(gl, pack(ops, len(gl), [4 * len(pre[gp]) for gp in gl])):
                fill[gp] = ol
                assert not (any(callable(x) for x in ol) and uses[gp[0]][0] != sa)
        def emit(x):
            if callable(x): x()
            elif isinstance(x, list):
                for y in x: emit(y)
            else: a.I(x)
        for k, (si, f) in enumerate(uses):
            kind, jl, heavy, after = segs[si]
            if f == 0 and OPT['aprio'] and si and not (mode == 'fin' and OPT['finp']): a.I(f's_setprio {pr[si] if pr else len(segs) - 1 - si}')
            for n_, m in enumerate(mfmas(kind, jl, heavy, f)):
                a.I(m)
                emit(pre[(k, n_)]); emit(fill.get((k, n_), [])); emit(aux[(k, n_)])
            if OPT['stamp'] == 3 and mode == 'loop' and f == 7 and si < 3: a.raw(f's_memtime {sr(90 + 2 * si, 2)}')
            if mode != 'fin' and k == nU - 8 + SY:
                if OPT['stamp'] == 3 and mode == 'loop':
                    a.raw('s_mov_b32 s88, s98')
                    a.raw('s_memtime s[96:97]')
                a.I(f's_waitcnt vmcnt({nvm}) lgkmcnt(0)')
                a.I('s_barrier')
                if OPT['aprio']: a.I(f's_setprio {prn}')
                st.sh()
                if OPT['stamp'] == 3 and mode == 'loop': a.raw('s_memtime s[98:99]')
                a.many(early)
                if mode == 'pro' and OPT['lazyj']:
                    for i in range(224, 232, 2): a.I(f'v_mov_b64 {vr(i, 2)}, 0')
            if f == 7 and after: after()
        if mode != 'fin': assert [set(x) for x in a.lg] == lgV, (a.lg, lgV)
    def resc():
        lb = a.newlabel('k1_nors')
        a.I(f's_cmp_lg_u32 {sr(sRS)}, 0')
        a.I(f's_cbranch_scc1 {lb}_s')
        a.label(lb)
        stubs.append((lb, 'k1_rescale'))
    def sm(jl, heavy): return maxops(jl, heavy) + [lambda: check(jl, heavy)] + expops(jl, heavy)
    OFFM0 = 0x30000
    def warm(kind, so):
        return [[f'buffer_load_dwordx4 {vr(vD)}, {sr(sK if kind == "K" else sV, 4)}, {so} offen offset:{j * 1024}{NT("pfp")} lds'] for j in range(4)]
    def prologue(h0):
        a.lg = [set(x) for x in lgK]
        ax = ring_step(True, False) + pro_aux
        block([('K', 0, h0, lambda: (a.many(maxops(0, h0)), check(0, h0))), ('K', 1, False, None)],
              [(1, 1, 0, expops(0, h0))], 'pro', ax, 8 if pro_aux else (4 if OPT['lazyj'] else 63), auxat=0, prn=OPT['px' if h0 else 'py'][1])
    def body_aux():
        r = [[f's_add_u32 {sr(sMK)}, {sr(sM0A)}, {sr(sVPo)}',
              f's_add_u32 {sr(sMV)}, {sr(sM0A)}, {sr(sKPo)}',
              f's_cmp_ge_u32 {sr(sCNT)}, 6',
              f's_cselect_b32 {sr(sMV)}, {OFFM0}, {sr(sMV)}',
              f's_cselect_b32 {sr(sOV)}, 0x1000000, {sr(sOV)}',
              f's_sub_u32 s3, {sr(sCNT)}, 1',
              f's_cmp_ge_u32 s3, 5',
              f's_cselect_b32 m0, {OFFM0}, {sr(sMK)}',
              f's_cselect_b32 s3, 0x1000000, {sr(sOK)}',
              f's_cselect_b32 s4, 0, 16384']]
        r += ring_step(True, True)
        for j in range(4): r.append([f'buffer_load_dwordx4 {vr(vD)}, {sr(sK, 4)}, s3 offen offset:{j * 1024}{APOL("K", j)} lds'] + (['s_add_u32 s3, s3, 3072'] if OPT['lin'] and j < 3 else []))
        r[-1] += [f's_add_u32 {sr(sOK)}, {sr(sOK)}, s4', f's_mov_b32 m0, {sr(sMV)}']
        nv = 4
        if OPT['mk']:
            w = warm('K', 's3')
            w[0] = [f's_mov_b32 s4, {OPT["mk"]}', f's_bitcmp1_b32 s4, {sr(sCNT)}', f's_cselect_b32 s3, {sr(sOK)}, 0x1000000'] + w[0]
            r += w; nv += 4
        if OPT['mv']:
            w = warm('V', 's3')
            w[0] = [f's_add_u32 s3, {sr(sOV)}, 16384', f's_mov_b32 s4, {OPT["mv"]}', f's_bitcmp1_b32 s4, {sr(sCNT)}', f's_cselect_b32 s3, s3, 0x1000000'] + w[0]
            r += w; nv += 4
        r += dma_ins('V')
        G = OPT['grp']
        if G > 1:
            head, d = r[:3], r[3:]
            r = head + [sum(d[i:i + G], []) for i in range(0, len(d), G)]
        return r, nv
    def body(hc, tag, exit_to):
        a.lg = [set(x) for x in lgV]
        hn = not hc
        ax, nvm = body_aux()
        block([('V', 0, hc, resc), ('K', 0, hn, None), ('V', 1, False, resc), ('K', 1, False, None)],
              [(0, 1, 1, sm(1, False)), (2, 3, 1, sm(0, hn))], 'loop', ax, nvm, pr=OPT['px' if hc else 'py'][1:], prn=OPT['py' if hc else 'px'][1])
        a.I(f's_add_u32 {sr(sCNT)}, {sr(sCNT)}, 1')
        a.I(f's_cmp_eq_u32 {sr(sCNT)}, 7')
        a.I(f's_cbranch_scc1 {exit_to}')
    K = K2(a)
    def final(hc):
        a.lg = [set(x) for x in lgV]
        lb = a.newlabel('k1_early')
        if OPT['finp']: a.I('s_setprio 3')
        a.I(f's_cmp_eq_u32 {sr(sHH)}, 1')
        a.I(f's_cbranch_scc1 {lb}_s')
        a.label(lb)
        stubs.append((lb, 'k1_early'))
        NM8 = negm(2)
        ax = [[f's_lshl_b32 s5, {sr(sHH)}, 15', 's_add_u32 s5, s5, 81920', f's_lshl_b32 s13, {sr(sHH)}, 14',
               f's_lshl_b32 s4, {sr(sR)}, 11', 's_add_u32 s3, s4, s5', 'v_lshl_add_u32 v1, v0, 4, s3'],
              ['v_add_u32 v2, s13, v1', f's_lshl_b32 s3, {sr(sWAVE)}, 9', f'v_lshl_add_u32 {vr(vD)}, v0, 3, s3'],
              [], [f'v_mov_b32 {vr(NM8 + 1)}, {vr(o_(2, 8))}']]
        ax += [[f'ds_write_b128 {"v1" if d < 4 else "v2"}, {vr(o_(2, d), 4)} offset:{(d >> 1) * 8192 + (d & 1) * 1024}'] for d in range(8)]
        ax += [[f'ds_write_b64 {vr(vD)}, {vr(NM8, 2)}']]
        block([('V', 0, hc, resc), ('V', 1, False, None)], [(0, 0, 1, sm(1, False))], 'fin', ax, 0, auxat=8)
        if OPT['aprio']: a.I('s_setprio 0')
    prologue(True)
    a.label('k1_X')
    body(True, 'x', 'k1_finL')
    a.label('k1_Y')
    body(False, 'y', 'k1_finH')
    a.I('s_branch k1_X')
    a.label('k1_proL')
    prologue(False)
    a.I('s_branch k1_Y')

    a.auto = False
    def xg_reduce(x, tmp, op):
        a.I(f'v_mov_b32 {vr(tmp)}, {vr(x)}')
        a.I(f'v_permlane32_swap_b32 {vr(x)}, {vr(tmp)}')
        a.I(f'{op} {vr(x)}, {vr(x)}, {vr(tmp)}')
        a.I(f'v_mov_b32 {vr(tmp)}, {vr(x)}')
        a.I(f'v_permlane16_swap_b32 {vr(x)}, {vr(tmp)}')
        a.I(f'{op} {vr(x)}, {vr(x)}, {vr(tmp)}')
    FREG = {0: mx, 1: tA, 2: mx8}
    def rare(T, vals, scl, canfirst):
        m, tmp = tB, FREG[T]
        a.I(f'v_max3_f32 {vr(m)}, {vr(vals[0])}, {vr(vals[1])}, {vr(vals[2])}')
        for k in range(3, len(vals) - 1, 2): a.I(f'v_max3_f32 {vr(m)}, {vr(m)}, {vr(vals[k])}, {vr(vals[k + 1])}')
        a.I(f'v_max_f32 {vr(m)}, {vr(m)}, {vr(vals[-1])}')
        xg_reduce(m, tmp, 'v_max_f32')
        a.I(f'v_max_f32 {vr(m)}, {sr(scl)}, {vr(m)}')
        for v in vals: a.I(f'v_sub_f32 {vr(v)}, {vr(v)}, {vr(m)}')
        for k in range(4): a.I(f'v_sub_f32 {vr(negm(T) + k)}, {vr(negm(T) + k)}, {vr(m)}')
        lb = a.newlabel('k1_first'); lb2 = a.newlabel('k1_rdone')
        if canfirst:
            a.I(f's_cmp_lg_u32 {sr(scl)}, 0')
            a.I(f's_cbranch_scc1 {lb}')
        a.I(f'v_exp_f32 {vr(tmp)}, -{vr(m)}')
        if T == 2:
            for k in range(36): a.I(f'v_mul_f32 {vr(o_(T, 8) + k)}, {vr(o_(T, 8) + k)}, {vr(tmp)}')
        else:
            a.I(f's_mov_b32 {sr(sRS)}, 1')
        if canfirst: a.label(lb)
    for jl in range(2):
        a.label(f'k1_rare{jl}')
        for T in range(2): rare(T, [s_(T, jl) + k for k in range(8)], sCL, jl == 0)
        a.I(f's_mov_b32 {sr(sTHR)}, {THRV}')
        a.I(f's_mov_b32 {sr(sCL)}, 0')
        a.I(f's_setpc_b64 {sr(sLINK, 2)}')
    a.label('k1_rare8')
    rare(2, [s_(2, 0) + k for k in range(8)], sCL8, True)
    a.I(f's_mov_b32 {sr(sTHR8)}, {THRV}')
    a.I(f's_mov_b32 {sr(sCL8)}, 0')
    a.I(f's_setpc_b64 {sr(sLINK, 2)}')
    a.label('k1_early')
    if OPT['finp']: a.I('s_setprio 0')
    K.early()
    a.I(f's_setpc_b64 {sr(sLINK, 2)}')
    a.label('k1_rescale')
    for T in range(2):
        for k in range(36): a.I(f'v_mul_f32 {vr(o_(T, 8) + k)}, {vr(o_(T, 8) + k)}, {vr(FREG[T])}')
    a.I(f's_mov_b32 {sr(sRS)}, 0')
    a.I(f's_setpc_b64 {sr(sLINK, 2)}')
    a.auto = True

    a.label('k1_finH')
    final(True)
    a.I('s_branch k1_epi')
    pos = len(a.ins)
    a.label('k1_finL')
    final(False)
    tailcode = a.ins[pos:]; del a.ins[pos:]
    for lb, fn in stubs:
        a.label(lb + '_s')
        a.raw(f's_call_b64 {sr(sLINK, 2)}, {fn}')
        a.raw(f's_branch {lb}')
    a.ins += tailcode
    a.label('k1_epi')
    a.lg = []
    st.cyc()
    e0, e1, e2, e3, e4 = 3, 4, 5, 6, 8
    NM8 = negm(2)
    a.lg = [set()]
    a.I(f'v_lshlrev_b32 {vr(e0)}, 4, v0')
    a.I(f's_lshl_b32 s3, {sr(sHH)}, 11')
    a.I(f'v_lshl_add_u32 {vr(e2)}, v0, 3, s3')
    a.I(f's_lshl_b32 s6, {sr(sR)}, 13')
    a.I('s_add_u32 s6, s6, s5')
    a.I(f's_cmp_ge_u32 {sr(sR)}, 2')
    a.I('s_cselect_b32 s13, s13, 0')
    a.I('s_add_u32 s6, s6, s13')
    a.I(f'v_add_u32 {vr(e1)}, s6, {vr(e0)}')
    R8 = S
    a.I(f'v_mov_b32 v2, {vr(e1)}')
    def bar1():
        a.I(f's_cmp_lg_u32 {sr(sHH)}, 0')
        a.I('s_cbranch_scc1 k1_nocs')
        K.comp_setup()
        a.label('k1_nocs')
        a.I('s_waitcnt lgkmcnt(0)')
        a.I('s_barrier')
        for sl in range(4): a.I(f'ds_read_b64 {vr(R8 + 32 + 2 * sl, 2)}, {vr(e2)} offset:{sl * 512}')
        for k in range(8): a.I(f'ds_read_b128 {vr(R8 + 4 * k, 4)}, v2 offset:{k * 1024}')
    if OPT['b1at'] < 0: bar1()
    flag_srd(sO)
    a.I(f's_cmp_eq_u32 {sr(sHH)}, 0')
    a.I('s_cbranch_scc1 k1_nosnap')
    K.snapshot()
    a.label('k1_nosnap')
    a.I('s_load_dwordx2 s[10:11], s[0:1], 80')
    sOO = sV
    a.I(f's_lshl_b32 s3, {sr(sBLK)}, 3')
    a.I(f's_add_u32 s3, s3, {sr(sB)}')
    a.I(f's_mul_i32 s3, s3, {O_SLICE}')
    a.I(f's_mul_i32 s6, {sr(sHP)}, 73728')
    a.I('s_add_u32 s3, s3, s6')
    a.I(f's_add_u32 {sr(sOO)}, s16, s3')
    a.I(f's_addc_u32 {sr(sOO + 1)}, s17, 0')
    a.I(f's_mov_b32 {sr(sOO + 2)}, 73728')
    a.I(f's_mov_b32 {sr(sOO + 3)}, 0x20000')
    a.I(f's_mul_i32 s3, {sr(sHH)}, 36864')
    a.I(f'v_add_u32 {vr(e3)}, s4, {vr(e0)}')
    def fin(src, scale2, voff, soff, imm):
        for k in range(4): a.I(f'v_pk_mul_f32 {vr(src + 2 * k, 2)}, {vr(src + 2 * k, 2)}, {vr(scale2, 2)}')
        for k in range(4): a.I(f'v_cvt_pk_bf16_f32 {vr(src + k)}, {vr(src + 2 * k)}, {vr(src + 2 * k + 1)}')
        a.I(f'buffer_store_dwordx4 {vr(src, 4)}, {vr(voff)}, {sr(sOO, 4)}, {soff} offen offset:{imm}{NT("ont")}')
    for T in range(2):
        for k in range(2): a.I(f'v_rcp_f32 {vr(o_(T, 8) + k)}, {vr(o_(T, 8) + k)}')
    a.I(f's_add_u32 s6, s3, {K.XB}')
    a.I(f'v_add_u32 {vr(e1)}, s6, {vr(e3)}')
    a.I('s_mov_b32 s6, s3')
    def xw(P): return [f'ds_write_b128 {vr(e1)}, {vr(o_(T, 2 * P), 4)} offset:{P * 9216 + T * 1024}' for T in range(2)]
    for P in range(4):
        for T in range(2): fin(o_(T, 2 * P), o_(T, 8), e3, 's6', T * 1024)
        if P < 3: a.I('s_add_u32 s6, s6, 9216')
        if P == OPT['b1at']: bar1()
        if P == OPT['b2at']:
            a.I('s_waitcnt lgkmcnt(0)')
            a.I('s_barrier')
            for Q_ in range(P): a.many(xw(Q_))
        if P >= OPT['b2at']: a.many(xw(P))
    K.ids()
    a.I(f's_mul_i32 s6, {sr(sR)}, 9216')
    a.I('s_add_u32 s6, s6, s3')
    a.I(f'v_add_u32 {vr(e3)}, 8192, {vr(e0)}')
    nm = [R8 + 32 + 2 * i for i in range(4)]
    ll = [R8 + 33 + 2 * i for i in range(4)]
    a.I(f'v_min3_f32 {vr(e0)}, {vr(nm[0])}, {vr(nm[1])}, {vr(nm[2])}')
    a.I(f'v_min_f32 {vr(e0)}, {vr(e0)}, {vr(nm[3])}')
    for i in range(4): a.I(f'v_sub_f32 {vr(nm[i])}, {vr(e0)}, {vr(nm[i])}')
    for i in range(4): a.I(f'v_exp_f32 {vr(nm[i])}, {vr(nm[i])}')
    a.I(f'v_mul_f32 {vr(e0)}, {vr(ll[0])}, {vr(nm[0])}')
    for i in range(1, 4): a.I(f'v_fmac_f32 {vr(e0)}, {vr(ll[i])}, {vr(nm[i])}')
    a.I(f'v_rcp_f32 {vr(e4)}, {vr(e0)}')
    a.I(f'v_rcp_f32 {vr(e4 + 1)}, {vr(e0)}')
    for k in range(8): a.I(f'v_mul_f32 {vr(R8 + k)}, {vr(R8 + k)}, {vr(nm[0])}')
    for i in range(1, 4):
        for k in range(8): a.I(f'v_fmac_f32 {vr(R8 + k)}, {vr(R8 + 8 * i + k)}, {vr(nm[i])}')
    fin(R8, e4, e3, 's6', 0)
    a.I(f's_add_u32 s6, s6, {K.XB}')
    a.I(f'v_add_u32 {vr(e3)}, s6, {vr(e3)}')
    a.I(f'ds_write_b128 {vr(e3)}, {vr(R8, 4)}')
    if OPT['stamp'] == 3: st.n = 12
    else: st.cyc(); st.real()
    K.st1 = st
    if OPT.get('qst'): st.on = True
    return K.main()

class K2:
    sO, sW, sD, sE, sF = 20, 24, 28, 20, 36
    sWAVE, sR, sLD, sBLK, sB, sHP, sN8, sKH, sKC = 40, 41, 42, 43, 44, 45, 67, 64, 62
    sM0W, sM0X, sOW, sOX, sSL, sCNT, sT0, sST, sROT, sH, sNH, sKS = 55, 48, 49, 50, 51, 52, 53, 54, 65, 56, 57, 58
    sSTX, sFO, sPC, sHPc = 59, 60, 61, 66
    sRW, sRX, sWB, sXB, sWEX = 68, 72, 54, 59, 8
    sLINK = 8
    vWp, vX, vL16, vFA, vFV, vDW, vDX, vZ, vCT = 40, 42, 44, 34, 35, 28, 32, 38, 39
    g, t0, t1, t2 = 45, 46, 47, 28
    ACC8 = [48, 56, 64, 116, 124, 132, 140, 220, 228]
    TMP8 = [196, 204, 212, 236, 244, 4, 12, 20, 32]
    FQ = [76 + 4 * i for i in range(10)] + [148 + 4 * i for i in range(12)]
    XB = 81920
    @staticmethod
    def wslot(i): return 16384 + ((i + 1) & 3) * 16384
    def __init__(self, a):
        self.a = a; self.st = Stamper(a, 1)
    def early(self):
        a = self.a; K = self
        sW, sR = K.sW, K.sR
        t0, t1 = 36, 37
        a.I(f's_lshr_b32 s12, {sr(sR)}, 1')
        a.I(f's_xor_b32 {sr(K.sH)}, {sr(sR)}, s12')
        a.I(f's_and_b32 {sr(K.sH)}, {sr(K.sH)}, 1')
        a.I(f's_lshl_b32 {sr(K.sH)}, {sr(K.sH)}, 1')
        a.I(f's_or_b32 {sr(K.sH)}, {sr(K.sH)}, s12')
        a.I(f'v_and_b32 {vr(t0)}, 7, v0')
        a.I(f'v_xor_b32 {vr(t0)}, {sr(K.sH)}, {vr(t0)}')
        a.I(f'v_bfe_u32 {vr(t1)}, v0, 4, 1')
        a.I(f'v_lshlrev_b32 {vr(t1)}, 2, {vr(t1)}')
        a.I(f'v_xor_b32 {vr(t0)}, {vr(t0)}, {vr(t1)}')
        a.I(f's_and_b32 s12, {sr(K.sHP)}, 1')
        a.I('s_lshl_b32 s12, s12, 7')
        a.I(f'v_lshl_add_u32 {vr(t0)}, {vr(t0)}, 4, s12')
        a.I(f'v_lshrrev_b32 {vr(t1)}, 5, v0')
        a.I(f'v_lshl_add_u32 {vr(t0)}, {vr(t1)}, 15, {vr(t0)}')
        a.I(f'v_bfe_u32 {vr(t1)}, v0, 3, 2')
        a.I(f's_lshl_b32 s12, {sr(sR)}, 2')
        a.I(f'v_add_u32 {vr(t1)}, s12, {vr(t1)}')
        a.I(f'v_lshl_add_u32 {vr(K.vDW)}, {vr(t1)}, 11, {vr(t0)}')
        a.I(f's_lshl_b32 {sr(K.sM0W)}, {sr(sR)}, 12')
        a.I(f'v_add_u32 {vr(K.vDW + 1)}, {65536 - 1024}, {vr(K.vDW)}')
        a.I(f'v_xor_b32 {vr(K.vDW + 2)}, 0x80, {vr(K.vDW)}')
        a.I(f'v_xor_b32 {vr(K.vDW + 3)}, 0x80, {vr(K.vDW + 1)}')
        a.I(f's_lshl_b32 {sr(K.sWB)}, {sr(K.sHP)}, 19')
        a.I(f's_lshr_b32 s12, {sr(K.sHP)}, 1')
        a.I(f's_lshl_b32 s12, s12, 8')
        a.I(f's_add_u32 {sr(sW)}, s18, s12')
        a.I(f's_addc_u32 {sr(sW + 1)}, s19, 0')
        a.I(f's_sub_u32 {sr(sW + 2)}, 8388608, s12')
        a.I(f's_mov_b32 {sr(sW + 3)}, 0x20000')
        a.I(f's_mov_b32 {sr(K.sD)}, s100')
        a.I(f's_mov_b32 {sr(K.sD + 1)}, s101')
        a.I(f's_mov_b32 {sr(K.sD + 2)}, 256')
        a.I(f's_mov_b32 {sr(K.sD + 3)}, 0x20000')
        a.I(f'v_mov_b32 {vr(K.vZ)}, 0')
        a.I(f'buffer_load_dword {vr(K.vCT)}, {vr(K.vZ)}, {sr(K.sD, 4)}, 0 offen sc1')
        for i in range(3): K.stw(i, own=True)
        a.I(f's_lshl_b32 s12, {sr(K.sBLK)}, 3')
        a.I(f's_add_u32 s12, s12, {sr(K.sB)}')
        a.I(f's_lshl_b32 {sr(K.sFO)}, s12, 11')
        a.I(f's_add_u32 {sr(K.sFO)}, {sr(K.sFO)}, 65536')
        a.I(f'v_and_b32 {vr(K.vFA)}, 15, v0')
        a.I(f'v_lshlrev_b32 {vr(K.vFA)}, 7, {vr(K.vFA)}')
    def snapshot(self):
        a = self.a; K = self
        a.I(f's_mov_b32 {sr(K.sPC)}, 0')
        a.I('s_movk_i32 s12, 0x100')
        a.I('s_waitcnt vmcnt(12)')
        a.label('k2_allin')
        a.I(f'v_cmp_le_u32 vcc, s12, {vr(K.vCT)}')
        a.I('s_cbranch_vccnz k2_allok ; POLL')
        a.I(f'buffer_load_dword {vr(K.vCT)}, {vr(K.vZ)}, {sr(K.sD, 4)}, 0 offen sc1')
        a.I(f's_add_u32 {sr(K.sPC)}, {sr(K.sPC)}, 1')
        a.I('s_waitcnt vmcnt(0)')
        a.I(f's_cmp_lt_u32 {sr(K.sPC)}, {OPT["pollmax"]}')
        a.I('s_cbranch_scc1 k2_allin')
        a.label('k2_allok')
        a.I(K.flagload())
    def publish(self, cond):
        a = self.a; K = self
        lb = a.newlabel('k2_nopub')
        a.I(f's_cmp_lg_u32 {cond}')
        a.I(f's_cbranch_scc1 {lb}')
        a.I('s_mov_b64 exec, 1')
        a.I(f'buffer_store_dword {vr(K.vCT)}, {vr(K.vZ)}, {sr(K.sF, 4)}, s4 offen sc1')
        a.I('s_mov_b64 exec, -1')
        a.label(lb)
    def ids(self):
        a = self.a; K = self
        a.I(f's_and_b32 {sr(K.sKH)}, {sr(K.sHP)}, 1')
        a.I(f's_lshr_b32 {sr(K.sN8)}, {sr(K.sHP)}, 1')
        a.I(f'v_lshlrev_b32 {vr(K.vL16)}, 4, v0')
    def comp_setup(self):
        a = self.a; K = self
        sKS, sNH, sR, sE, g, t0, t1, vWp, vX, vL16, XB = K.sKS, K.sNH, K.sR, K.sE, K.g, K.t0, K.t1, K.vWp, K.vX, K.vL16, K.XB
        a.I(f's_and_b32 {sr(sKS)}, {sr(sR)}, 1')
        a.I(f's_lshr_b32 {sr(sNH)}, {sr(sR)}, 1')
        a.I(f'v_lshrrev_b32 {vr(g)}, 4, v0')
        a.I(f'v_lshrrev_b32 {vr(t1)}, 1, {vr(g)}')
        a.I(f'v_xor_b32 {vr(t0)}, {vr(g)}, {vr(t1)}')
        a.I(f'v_and_b32 {vr(t0)}, 1, {vr(t0)}')
        a.I(f'v_lshl_or_b32 {vr(t0)}, {vr(t0)}, 1, {vr(t1)}')
        a.I(f'v_bfe_u32 {vr(t1)}, v0, 1, 1')
        a.I(f'v_xor_b32 {vr(t0)}, {vr(t0)}, {vr(t1)}')
        a.I(f'v_lshlrev_b32 {vr(t0)}, 4, {vr(t0)}')
        a.I(f'v_lshl_add_u32 {vr(t0)}, {vr(g)}, 12, {vr(t0)}')
        a.I(f'v_bfe_u32 {vr(t1)}, v0, 2, 2')
        a.I(f'v_lshl_add_u32 {vr(t0)}, {vr(t1)}, 7, {vr(t0)}')
        a.I(f'v_bfe_u32 {vr(t1)}, v0, 3, 1')
        a.I(f'v_xor_b32 {vr(t1)}, {sr(sKS)}, {vr(t1)}')
        a.I(f'v_lshl_add_u32 {vr(t0)}, {vr(t1)}, 6, {vr(t0)}')
        a.I(f'v_and_b32 {vr(t1)}, 1, v0')
        a.I(f'v_lshl_add_u32 {vr(t0)}, {vr(t1)}, 3, {vr(t0)}')
        a.I(f's_lshl_b32 s12, {sr(sNH)}, 11')
        a.I('s_add_u32 s12, s12, 16384')
        a.I(f'v_add_u32 {vr(vWp)}, s12, {vr(t0)}')
        a.I(f'v_xor_b32 {vr(vWp + 1)}, 32, {vr(vWp)}')
        a.I(f'v_lshlrev_b32 {vr(vL16)}, 4, v0')
        a.I(f'v_add_u32 {vr(vX)}, {XB}, {vr(vL16)}')
        a.I(f'v_add_u32 {vr(vX + 1)}, {XB + 9216}, {vr(vL16)}')
        for b in K.ACC8:
            for i in range(0, 8, 2): a.I(f'v_mov_b64 {vr(b + i, 2)}, 0')
        a.I(f's_add_u32 {sr(sE)}, s16, {EXCH_OFF}')
        a.I(f's_addc_u32 {sr(sE + 1)}, s17, 0')
        a.I(f's_mov_b32 {sr(sE + 2)}, {256 * 36864}')
        a.I(f's_mov_b32 {sr(sE + 3)}, 0x20000')
        a.I(f's_cmp_eq_u32 {sr(sNH)}, 0')
        a.I('s_cselect_b32 s12, 1, 0')
        a.I(f's_cselect_b32 {sr(K.sPC)}, 9, 7')
        a.I('s_xor_b32 s12, s2, s12')
        a.I('s_lshl_b32 s12, s12, 1')
        a.I(f's_add_u32 s12, s12, {sr(sKS)}')
        a.I(f's_lshl_b32 {sr(K.sT0)}, s12, 7')
        a.I(f's_mul_i32 {sr(K.sOX)}, s12, 18432')
        a.I(f'v_mov_b32 {vr(t0)}, 0')
        a.I(f's_mov_b32 {sr(K.sSL)}, 0')
    def late(self):
        a = self.a; K = self
        sO, sR, sB, sBLK = K.sO, K.sR, K.sB, K.sBLK
        a.I(f's_lshr_b32 s12, {sr(K.sHP)}, 2')
        a.I(f's_add_u32 {sr(K.sROT)}, {sr(sB)}, s12')
        a.I(f's_and_b32 {sr(K.sROT)}, {sr(K.sROT)}, {OPT["rot2"]}')
        a.I(f'v_add_u32 {vr(K.vDX)}, {sr(K.sM0W)}, {vr(K.vL16)}')
        a.I(f's_lshl_b32 {sr(K.sM0X)}, {sr(sR)}, 10')
        a.I(f's_add_u32 {sr(K.sM0X)}, {sr(K.sM0X)}, 16384')
        a.I(f'v_add_u32 {vr(K.vDX + 1)}, {sr(K.sM0X)}, {vr(K.vL16)}')
        for i in range(4):
            a.I(f's_add_u32 s12, {sr(K.sROT)}, {i}')
            a.I('s_and_b32 s12, s12, 3')
            a.I(f's_lshl_b32 {sr(K.sRW + i)}, s12, 17')
            a.I(f's_mul_i32 {sr(K.sRX + i)}, s12, 18432')
        a.I(f's_mov_b32 {sr(K.sKC)}, -1')
        a.I(f's_lshl_b32 s12, {sr(sBLK)}, 3')
        a.I(f's_add_u32 s12, s12, {sr(sB)}')
        a.I(f's_mul_i32 s12, s12, {O_SLICE}')
        a.I(f's_add_u32 {sr(sO)}, s16, s12')
        a.I(f's_addc_u32 {sr(sO + 1)}, s17, 0')
        a.I(f's_mov_b32 {sr(sO + 2)}, {O_SLICE}')
        a.I(f's_mov_b32 {sr(sO + 3)}, 0x20000')
        a.I(f's_lshl_b32 s4, {sr(K.sHP)}, 7')
        a.I(f's_add_u32 s4, s4, {sr(K.sFO)}')
        a.I(f'v_mov_b32 {vr(K.vCT)}, 1')
        a.I(f's_lshl_b32 s5, {sr(sR)}, 4')
        a.I('s_add_u32 s5, s5, 1')
    def stw(self, i, own=False, tail=False):
        a = self.a; K = self
        a.I(f's_add_u32 m0, {sr(K.sM0W)}, {K.wslot(i)}')
        a.I(f's_add_u32 {sr(K.sOW)}, {sr(K.sWB)}, {i * 131072 if own else sr(K.sRW + i)}')
        for u in range(2 if tail else 4):
            if u == 2: a.I(f's_add_u32 m0, {sr(K.sM0W)}, {K.wslot(i) + 2048}')
            a.I(f'buffer_load_dwordx4 {vr(K.vDW + u)}, {sr(K.sW, 4)}, {sr(K.sOW)} offen offset:{(u & 1) * 1024}{NT("wont")} lds')
    def stx(self, i):
        a = self.a; K = self
        lb = a.newlabel('k2_skipx')
        a.I(f's_add_u32 m0, {sr(K.sM0W)}, {K.XB + i * 18432}')
        a.I(f's_add_u32 {sr(K.sOX)}, {sr(K.sXB)}, {sr(K.sRX + i)}')
        for j in range(4): a.I(f'buffer_load_dwordx4 {vr(K.vDX)}, {sr(K.sO, 4)}, {sr(K.sOX)} offen offset:{j * 1024}{NT("oldf")} lds')
        a.I(f's_add_u32 m0, {sr(K.sM0X)}, {K.XB + i * 18432}')
        a.I(f's_cmp_ge_u32 {sr(K.sR)}, 2')
        a.I(f's_cbranch_scc1 {lb}')
        a.I(f'buffer_load_dwordx4 {vr(K.vDX + 1)}, {sr(K.sO, 4)}, {sr(K.sOX)} offen{NT("oldf")} lds')
        a.label(lb)
    def ready(self):
        a = self.a; K = self
        l1, l2 = a.newlabel('k2_chk'), a.newlabel('k2_go')
        a.I(f's_mov_b32 {sr(K.sPC)}, 0')
        a.label(l1)
        a.I(f'v_cmp_eq_u32 vcc, 1, {vr(K.vFV)}')
        a.I(f's_bitcmp1_b32 vcc_lo, {sr(K.sHPc)}')
        a.I(f's_cbranch_scc1 {l2} ; TAKEN')
        a.I(K.flagload())
        a.I(f's_add_u32 {sr(K.sPC)}, {sr(K.sPC)}, 1')
        a.I('s_waitcnt vmcnt(0)')
        a.I(f's_cmp_lt_u32 {sr(K.sPC)}, {OPT["pollmax"]}')
        a.I(f's_cbranch_scc1 {l1}')
        a.label(l2)
    def fl1(self, vt):
        n = self.st1.n; self.st1.flush(16, self.sWAVE, self.sW, vt); self.st1.n = n
    def nextseg(self, tail=False):
        a = self.a; K = self
        if tail:
            a.I(f's_cmp_eq_u32 {sr(K.sN8)}, 7')
            a.I('s_cselect_b32 s12, 5, 7')
            a.I(f's_add_u32 {sr(K.sHPc)}, s12, {sr(K.sCNT)}')
        else:
            a.I(f's_add_u32 {sr(K.sKC)}, {sr(K.sKC)}, 1')
            a.I(f's_cmp_eq_u32 {sr(K.sKC)}, {sr(K.sN8)}')
            a.I(f's_addc_u32 {sr(K.sKC)}, {sr(K.sKC)}, 0')
            a.I(f's_lshl_b32 {sr(K.sHPc)}, {sr(K.sKC)}, 1')
            a.I(f's_add_u32 {sr(K.sHPc)}, {sr(K.sHPc)}, {sr(K.sKH)}')
        a.I(f's_lshl_b32 {sr(K.sWB)}, {sr(K.sHPc)}, 19')
        a.I(f's_mul_i32 {sr(K.sXB)}, {sr(K.sHPc)}, 73728')
    def flagload(self): return f'buffer_load_dword {vr(self.vFV)}, {vr(self.vFA)}, {sr(self.sF, 4)}, {sr(self.sFO)} offen sc1 ; NOCHECK'
    def main(self):
        a = self.a; st = self.st; K = self
        MF = 'v_mfma_f32_16x16x32_bf16'
        sO, sW, sD, sE, sF, sR, sB, sN8, sKH, sBLK = K.sO, K.sW, K.sD, K.sE, K.sF, K.sR, K.sB, K.sN8, K.sKH, K.sBLK
        sOW, sOX, sSL, sCNT, sT0, sST, sSTX, sPC, sHPc, sNH, sKS = K.sOW, K.sOX, K.sSL, K.sCNT, K.sT0, K.sST, K.sSTX, K.sPC, K.sHPc, K.sNH, K.sKS
        vWp, vX, vDW, vL16, g, t0, t1, t2 = K.vWp, K.vX, K.vDW, K.vL16, K.g, K.t0, K.t1, K.t2
        XB = K.XB
        def acc(t, j): return K.ACC8[t] + 4 * j
        def tmp(k): return K.TMP8[k >> 1] + 4 * (k & 1)
        st.real(); st.cyc()
        a.I(f's_cmp_eq_u32 {sr(K.sLD)}, 0')
        a.I('s_cbranch_scc1 k2_comp')
        if OPT['lprio']: a.I(f's_setprio {OPT["lprio"]}')
        K.stw(3, own=True)
        a.I('s_waitcnt vmcnt(13) lgkmcnt(0)')
        a.I('s_barrier')
        st0 = st.n
        st.cyc()
        K.late()
        a.I(f's_mov_b32 {sr(sCNT)}, 1')
        K.nextseg()
        a.I('s_barrier')
        if OPT['fast1']:
            a.I(f'v_cmp_eq_u32 vcc, 1, {vr(K.vFV)}')
            a.I(f's_bitcmp1_b32 vcc_lo, {sr(sHPc)}')
            a.I('s_cbranch_scc1 k2_fast ; EITHER')
        K.stw(0)
        a.I('s_barrier')
        K.stw(1)
        a.I(K.flagload())
        a.I('s_waitcnt vmcnt(9)')
        a.I('s_barrier')
        K.publish(f'{sr(sR)}, 0')
        K.stw(2)
        a.I('s_waitcnt vmcnt(5)')
        K.ready()
        K.stx(0); K.stx(1); K.stx(2)
        a.I('s_waitcnt vmcnt(8)')
        a.I('s_barrier')
        a.I(K.flagload())
        K.stw(3); K.stx(3)
        a.I(f's_mov_b32 {sr(sCNT)}, 2')
        a.I('s_waitcnt vmcnt(12)')
        for tail in (False, True):
            a.label('k2_tloop' if tail else 'k2_lloop')
            K.nextseg(tail)
            for i in range(4):
                a.I(f's_waitcnt vmcnt({12 if tail else 16})')
                a.I('s_barrier')
                if i == 0 and not tail: a.label('k2_fast')
                if i == 2 and not tail: K.publish(f'{sr(sCNT)}, s5')
                K.stw(i, tail=tail)
                if i == 0: K.ready()
                if i == 1: a.I(K.flagload())
                K.stx(i)
            a.I(f's_add_u32 {sr(sCNT)}, {sr(sCNT)}, 1')
            a.I(f's_cmp_lt_u32 {sr(sCNT)}, {9 if tail else 7}')
            a.I(f's_cbranch_scc1 {"k2_tloop" if tail else "k2_lloop"}')
        for nv in (12, 6, 0, 0):
            a.I(f's_waitcnt vmcnt({nv})')
            a.I('s_barrier')
        st.cyc(); st.cyc(); st.cyc(); st.cyc(); st.real()
        st.flush(16, K.sWAVE, sW, t0); K.fl1(t0)
        a.I('s_endpgm')
        a.label('k2_comp')
        st.n = st0
        a.lg = []
        FS = (K.FQ[:11], K.FQ[11:])
        def reads(F, slot, ks):
            w = [f'ds_read_b64_tr_b16 {vr(F[j] + 2 * h, 2)}, {vr(vWp + j)} offset:{K.wslot(slot) - 16384 + ks * 1024 + h * 512}' for j in range(2) for h in range(2)]
            x = [f'ds_read_b128 {vr(F[2 + t], 4)}, {vr(vX + ks)} offset:{slot * 18432 + t * 1024}' for t in range(9)]
            return w[:2] + x[:1] + w[2:] + x[1:]
        G2 = OPT['gate2']
        def kstep(Fc, Fn, nslot, nks, gated, vm=''):
            rd_ = reads(Fn, nslot, nks)
            if not gated: a.I(f's_waitcnt lgkmcnt({OPT["lw2"]})')
            k = 0
            for t in range(9):
                for j in range(2):
                    if gated and k == G2:
                        a.I(f's_waitcnt {vm}lgkmcnt(0)')
                        a.I('s_barrier')
                    if not gated and k == 6: a.I(f's_waitcnt lgkmcnt(6)')
                    a.I(f'{MF} {vr(acc(t, j), 4)}, {vr(Fc[j], 4)}, {vr(Fc[2 + t], 4)}, {vr(acc(t, j), 4)}')
                    if k >= (G2 if gated else 0) and rd_: a.I(rd_.pop(0))
                    k += 1
            assert not rd_
        if OPT['cprio']: a.I(f's_setprio {OPT["cprio"]}')
        a.I('s_waitcnt lgkmcnt(0)')
        a.I('s_barrier')
        st.cyc()
        a.many(reads(FS[0], 0, 0))
        a.I(f's_mov_b32 {sr(sCNT)}, 0')
        lg0 = [set(x) for x in a.lg]
        a.label('k2_cloop')
        for i in range(4):
            if OPT['kpf'] and i in (OPT['kpf'] - 1, OPT['kpf']):
                a.I(f's_cmp_eq_u32 {sr(sCNT)}, 8')
                a.I(f's_cbranch_scc1 k2_e{i}')
                a.label(f'k2_r{i}')
            kstep(FS[0], FS[1], i, 1, False)
            kstep(FS[1], FS[0], (i + 1) & 3, 0, True, 'vmcnt(0) ' if i == 2 else '')
        assert [set(x) for x in a.lg] == lg0
        st.sh()
        a.I(f's_add_u32 {sr(sCNT)}, {sr(sCNT)}, 1')
        a.I(f's_cmp_lt_u32 {sr(sCNT)}, {sr(sPC)}')
        a.I('s_cbranch_scc1 k2_cloop')
        st.cyc()
        XP = NT('xpol')
        a.I(f's_cmp_eq_u32 {sr(sNH)}, 0')
        a.I('s_cbranch_scc1 k2_keep')
        SB = {1: (8,), 2: (5, 11), 0: ()}[OPT['ssplit']]
        H = OPT['xbf']
        NX = 9 if H else 18
        if H: SB = ()
        for k in range(NX):
            src = acc(k, 0) if H else acc(k >> 1, k & 1)
            if H:
                for q in range(4): a.I(f'v_cvt_pk_bf16_f32 {vr(src + q)}, {vr(src + 2 * q)}, {vr(src + 2 * q + 1)}')
            a.I(f'buffer_store_dwordx4 {vr(src, 4)}, {vr(vL16)}, {sr(sE, 4)}, {sr(sOX)} offen offset:{(k & 3) * 1024}{XP}')
            if k & 3 == 3: a.I(f's_add_u32 {sr(sOX)}, {sr(sOX)}, 4096')
            if k in SB: a.I('s_barrier')
        stn = st.n
        st.cyc()
        for _ in range(OPT['sbar']): a.I('s_barrier')
        a.I(f'v_mov_b32 {vr(t1)}, 1')
        a.I('s_mov_b64 exec, 1')
        a.I('s_waitcnt vmcnt(0)')
        st.cyc()
        a.I(f'buffer_store_dword {vr(t1)}, {vr(t0)}, {sr(sF, 4)}, {sr(sT0)} offen{XP}')
        a.I('s_mov_b64 exec, -1')
        for _ in range(8 - len(SB) - OPT['sbar']): a.I('s_barrier')
        st.cyc(); st.real()
        st.flush(16, K.sWAVE, sW, t0); K.fl1(t0)
        a.I('s_endpgm')
        def xloads():
            for k in range(NX):
                a.I(f'buffer_load_dwordx4 {vr(tmp(k), 4)}, {vr(vL16)}, {sr(sE, 4)}, {sr(sOX)} offen offset:{(k & 3) * 1024}{XP}')
                if k & 3 == 3: a.I(f's_add_u32 {sr(sOX)}, {sr(sOX)}, 4096')
        if OPT['kpf']:
            a.auto = False
            i = OPT['kpf']
            a.label(f'k2_e{i - 1}')
            a.I(f'buffer_load_dword {vr(t1)}, {vr(t0)}, {sr(sF, 4)}, {sr(sT0)} offen{XP}')
            a.I(f's_branch k2_r{i - 1}')
            a.label(f'k2_e{i}')
            a.I('s_waitcnt vmcnt(0)')
            a.I(f'v_cmp_eq_u32 vcc, 1, {vr(t1)}')
            a.I(f's_cbranch_vccz k2_r{i}')
            xloads()
            a.I(f's_mov_b32 {sr(sSL)}, 1')
            a.I(f's_branch k2_r{i}')
            a.auto = True
        a.label('k2_keep')
        st.n = stn
        a.I(f's_mov_b32 {sr(sCNT)}, 0')
        st.cyc()
        a.I(f's_cmp_eq_u32 {sr(sSL)}, 1')
        a.I('s_cbranch_scc1 k2_have')
        a.label('k2_poll')
        a.I(f'buffer_load_dword {vr(t1)}, {vr(t0)}, {sr(sF, 4)}, {sr(sT0)} offen{XP}')
        a.I(f's_add_u32 {sr(sCNT)}, {sr(sCNT)}, 1')
        a.I('s_waitcnt vmcnt(0)')
        a.I(f'v_cmp_eq_u32 vcc, 1, {vr(t1)}')
        a.I('s_cbranch_vccnz k2_got ; POLL')
        a.I(f's_cmp_lt_u32 {sr(sCNT)}, {OPT["pollmax"]}')
        a.I('s_cbranch_scc1 k2_poll')
        a.label('k2_got')
        xloads()
        a.label('k2_have')
        st.cyc()
        a.I(f's_mul_i32 s3, {sr(sB)}, {144 * 4096}')
        a.I(f's_add_u32 {sr(sD)}, s10, s3')
        a.I(f's_addc_u32 {sr(sD + 1)}, s11, 0')
        a.I(f's_mov_b32 {sr(sD + 2)}, {144 * 4096}')
        a.I(f's_mov_b32 {sr(sD + 3)}, 0x20000')
        a.I(f'v_and_b32 {vr(t2)}, 15, v0')
        a.I(f'v_lshlrev_b32 {vr(t2)}, 12, {vr(t2)}')
        a.I(f'v_lshl_add_u32 {vr(t2)}, {vr(g)}, 4, {vr(t2)}')
        a.I(f's_lshl_b32 s3, {sr(sBLK)}, 11')
        a.I(f's_lshl_b32 s4, {sr(K.sHP)}, 7')
        a.I('s_add_u32 s3, s3, s4')
        a.I(f's_lshl_b32 s4, {sr(sKS)}, 6')
        a.I('s_add_u32 s3, s3, s4')
        for t in range(9):
            d = acc(t, 0)
            if H:
                a.I('s_waitcnt vmcnt(8)')
                for k in range(4):
                    a.I(f'v_lshlrev_b32 {vr(K.TMP8[8] + 2 * k)}, 16, {vr(tmp(t) + k)}')
                    a.I(f'v_and_b32 {vr(K.TMP8[8] + 1 + 2 * k)}, 0xffff0000, {vr(tmp(t) + k)}')
                for k in range(4): a.I(f'v_pk_add_f32 {vr(d + 2 * k, 2)}, {vr(d + 2 * k, 2)}, {vr(K.TMP8[8] + 2 * k, 2)}')
            else:
                a.I(f's_waitcnt vmcnt({16 - t})')
                for k in range(4): a.I(f'v_pk_add_f32 {vr(d + 2 * k, 2)}, {vr(d + 2 * k, 2)}, {vr(K.TMP8[t] + 2 * k, 2)}')
            for k in range(4): a.I(f'v_cvt_pk_bf16_f32 {vr(d + k)}, {vr(d + 2 * k)}, {vr(d + 2 * k + 1)}')
            for mn in ('v_permlane32_swap_b32', 'v_permlane16_swap_b32'):
                for k in range(2): a.I(f'{mn} {vr(d + k)}, {vr(d + 2 + k)}')
            a.I(f'buffer_store_dwordx4 {vr(d, 4)}, {vr(t2)}, {sr(sD, 4)}, s3 offen{NT("outp")}')
            a.I('s_add_u32 s3, s3, 65536')
        st.cyc(); st.real()
        st.flush(16, K.sWAVE, sW, t0); K.fl1(t0)
        a.label('k1_end')
        a.raw('s_endpgm')
        return a

HEADER = open(f'cdna_kernels/{NAME}.s.ref').read().split('; Override launch')[0]
def kd(name, vg, sg=102):
    return f'''.amdhsa_kernel {name}
  .amdhsa_next_free_vgpr {vg}
  .amdhsa_next_free_sgpr {sg}
  .amdhsa_accum_offset {(min(vg, 256) + 3) // 4 * 4}
  .amdhsa_group_segment_fixed_size 0
  .amdhsa_kernarg_size 104
  .amdhsa_user_sgpr_count 2
  .amdhsa_user_sgpr_kernarg_segment_ptr 1
  .amdhsa_system_sgpr_workgroup_id_x 1
.end_amdhsa_kernel
'''
def main():
    ks = [('attn_kernel', gen_k1(), 256, 163840)]
    out = HEADER
    if OPT['fuse']:
        ks = [(NAME + '_kernel', ks[0][1], 256, 163840)]
        out += '; @launch grid=(256,1,1) block=(512,1,1) lds=163840\n'
    else:
        for nm, _, _, lds in ks:
            out += f'; @launch kernel={nm} grid=(256,1,1) block=(512,1,1) lds={lds}\n'
    out += '.amdgcn_target "amdgcn-amd-amdhsa--gfx950"\n.text\n'
    for nm, a, vg, lds in ks:
        if OPT.get('novm'):
            seen = False; keep = []
            for x in a.ins:
                if x.mn == 's_barrier': seen = True
                if x.label in ('k2_m1',): seen = False
                if x.label == 'k2_cloop': seen = False; OPT['_stop'] = 1
                if OPT.get('_stop'): seen = False
                if seen and x.mn == 'buffer_load_dwordx4': continue
                keep.append(x)
            a.ins = keep
        if OPT.get('nokv'): a.ins = [x for x in a.ins if not (x.kind == 'vmem' and x.mn == 'buffer_load_dwordx4' and not x.lds and 'nt' in x.mods)]
        if OPT.get('nomfma'): a.ins = [x for x in a.ins if x.kind != 'mfma']
        if OPT.get('nods'): a.ins = [x for x in a.ins if not (x.kind == 'ds' and 'read' in x.mn)]
        n = a.pad_hazards(verbose=bool(OPT.get('v')))
        errs = 0; nbs = set()
        for wave in range(8):
            for pol in (lambda i, x: 'POLL' in x.text, lambda i, x: True):
              for wgid in (3, 12, 21, 30):
                tr = a.trace(wgid, wave, pol)
                e, nb = a.verify_waits(tr, quiet=(errs > 0 or bool(OPT.get('novm')) or OPT['stamp'] == 4)); errs += e; nbs.add(nb)
        assert (len(nbs) == 1 or (len(nbs) == 2 and max(nbs) - min(nbs) == 7 - OPT['sbar'])) and (errs == 0 or OPT.get('novm') or OPT['stamp'] == 4), (nbs, errs)
        print(f'{nm}: {len(a.ins)} lines, nops added {n}, wait errors {errs}, barriers {nb}, trace len {len(tr)}', file=sys.stderr)
        out += f'.globl {nm}\n.p2align 8\n.type {nm},@function\n{nm}:\n' + a.text()
    out += '.section .rodata,"a"\n'
    for nm, a, vg, lds in ks:
        out += '.p2align 6\n' + kd(nm, vg)
    open(sys.argv[1], 'w').write(out)
main()
```

```python
import sys, math, struct
from asmlib import *

NAME = 'concat_heads__mha_block_cached__mha_block_cached__near_ridge'
OPT = dict(stamp=0, kvnt=1, wnt=0, xnt=0, ont=2, wont=0, oldnt=0, rot1=1, rot2=3, wopf=3, ord=1, desync=1, pre1=1, gate=2, cprio=1, tail=1, rotc=0, rhh=0, vfirst=1, hpmap=2, s2=1, fuse=1, g2from=7, gk2=4, gv2=40, rotfrom=6, pofs=-1, lazyj=0, kq='-', px='p3200', py='p3211', kvm='-', kw='-', finp=1, b1at=2, grp=4, lin=0, gk=24, gv=32, fast1=1, xbf=1, kvl2=0, cvn=7, cvpk=1, kv0=0, kvs=3, lprio=0, whalf=0, offm=0, offsh=0, pubat=0, b2at=3, kpf=3, spread=1, gate2=0, lw2=4, sbar=3, ssplit=1, ntm=255, oldf=2, cpf=1, sy=4, nimm=3, aux0=0, auxs=4, pp=0, mv=0, mk=0, nwo=16, pfp=0, xpol=2, outp=3, pollmax=100000, qprio=1, rs0=10, rs1=13, stag=1, aprio=1, pS=0, pM=0, pV=0, smfirst=0)
for a in sys.argv[2:]:
    k, v = a.split('='); OPT[k] = int(v) if v.lstrip('-').isdigit() else v

def fbits(x): return '0x%08x' % struct.unpack('<I', struct.pack('<f', x))[0]
NT = lambda k: {0: '', 1: ' nt', 2: ' sc1', 3: ' sc0 sc1', 4: ' sc1 nt'}[OPT[k]]
APOL = lambda kind, j: ' nt' if (OPT['ntm'] >> (j + (4 if kind == 'V' else 0))) & 1 else ''
THRV = '0x7f800000' if OPT.get('novm') else fbits(8.0)
O_SLICE = 128 * 9216
STAMP_OFF = 64 << 20
EXCH_OFF = 32 << 20
FLAG_OFF = 48 << 20

class Stamper:
    def __init__(self, a, region):
        self.a = a; self.n = 0; self.region = region
        self.on = OPT.get('sreg', 0) == region or OPT['stamp'] == 5
    def real(self):
        if not self.on: return
        if OPT['stamp'] == 5:
            if self.region == 0 and not self.n: self.a.I('s_memrealtime s[76:77]'); self.n = 1
            return
        if OPT['stamp'] == 4 and self.n: return
        if OPT['stamp']:
            self.a.I(f's_memrealtime {sr(76 + 2 * self.n, 2)}'); self.n += 1
    def cyc(self):
        if not self.on: return
        if OPT['stamp'] == 5: return
        if OPT['stamp'] == 4:
            self.a.raw('s_waitcnt lgkmcnt(0)'); self.sh(); return
        if OPT['stamp']:
            self.a.I(f's_memtime {sr(76 + 2 * self.n, 2)}'); self.n += 1
    def sh(self):
        if not self.on: return
        if OPT['stamp'] == 4:
            for i in range(13): self.a.raw(f's_mov_b32 s{80 + i}, s{81 + i}')
            self.a.raw('s_mov_b32 s93, s98')
            self.a.raw('s_memtime s[98:99]')
    def flush(self, s_ws, s_wave, srd, vt):
        if not OPT['stamp'] or not self.on: return
        a = self.a
        if OPT['stamp'] == 5:
            if self.region == 0: return
            a.I('s_memrealtime s[78:79]'); self.n = 2
            if OPT.get('dbgspan'):
                lb = a.newlabel('dbgskip')
                a.I('s_waitcnt vmcnt(0) lgkmcnt(0)')
                a.I('s_and_b32 s3, s2, 9')
                a.I(f's_or_b32 s3, s3, {sr(s_wave)}')
                a.I('s_cmp_lg_u32 s3, 0')
                a.I(f's_cbranch_scc1 {lb}')
                a.I(f's_mov_b32 {sr(srd)}, s100'); a.I(f's_mov_b32 {sr(srd + 1)}, s101'); a.I(f's_mov_b32 {sr(srd + 2)}, 256'); a.I(f's_mov_b32 {sr(srd + 3)}, 0x20000')
                a.I('s_not_b32 s76, s76')
                a.I('s_mov_b64 exec, 1')
                a.I(f'v_mov_b32 {vr(vt)}, 0'); a.I(f'v_mov_b32 {vr(vt + 1)}, s78')
                a.I(f'buffer_atomic_umax {vr(vt + 1)}, {vr(vt)}, {sr(srd, 4)}, 0 offen offset:16 sc1')
                a.I('s_nop 1')
                a.I(f'v_mov_b32 {vr(vt + 1)}, s76')
                a.I(f'buffer_atomic_umax {vr(vt + 1)}, {vr(vt)}, {sr(srd, 4)}, 0 offen offset:20 sc1')
                a.I('s_not_b32 s76, s76')
                a.I('s_nop 1')
                a.I(f'v_mov_b32 {vr(vt + 1)}, s76')
                a.I(f'buffer_atomic_umax {vr(vt + 1)}, {vr(vt)}, {sr(srd, 4)}, 0 offen offset:24 sc1')
                a.label(lb)
                return
        regs = [76 + 2 * i for i in range(self.n)]
        if OPT['stamp'] == 4:
            regs = [76] + list(range(81, 94)) + [98]; keepn = self.n; self.n = 0
        assert self.n <= 12
        a.I('s_waitcnt vmcnt(0) lgkmcnt(0)')
        a.I(f's_add_u32 {sr(srd)}, {sr(s_ws)}, {STAMP_OFF + self.region * (1 << 20)}')
        a.I(f's_addc_u32 {sr(srd + 1)}, {sr(s_ws + 1)}, 0')
        a.I(f's_mov_b32 {sr(srd + 2)}, {1 << 20}')
        a.I(f's_mov_b32 {sr(srd + 3)}, 0x20000')
        a.I(f's_lshl_b32 s3, s2, 3')
        a.I(f's_add_u32 s3, s3, {sr(s_wave)}')
        a.I(f's_lshl_b32 s3, s3, 6')
        a.I(f'v_mov_b32 {vr(vt)}, 0')
        a.I(f'v_mov_b32 {vr(vt + 1)}, {self.n}')
        a.I(f'buffer_store_dword {vr(vt + 1)}, {vr(vt)}, {sr(srd, 4)}, s3 offen offset:60')
        a.I('s_nop 1')
        for i in range(len(regs)):
            a.I(f'v_mov_b32 {vr(vt + 1)}, {sr(regs[i])}')
            a.I(f'buffer_store_dword {vr(vt + 1)}, {vr(vt)}, {sr(srd, 4)}, s3 offen offset:{4 * i}')
            a.I('s_nop 1')
        if OPT['stamp'] == 4: self.n = keepn

def gen_k1():
    a = Asm()
    st = Stamper(a, 0)
    MF = 'v_mfma_f32_16x16x32_bf16'
    sX, sW, sK, sV, sO = 20, 24, 28, 32, 36
    sWAVE, sR, sHH, sBLK, sB, sHP = 40, 41, 42, 43, 44, 45
    sM0W, sM0X, sOW, sOX, sLOOSE, sNEXT, sKVI = 46, 47, 48, 49, 50, 51, 52
    sSLW, sSLX = 53, 54
    sCNT, sT0, sT1 = 55, 56, 57
    sKP, sVP, sM0A, sDK, sDV, sOV, sOK = 58, 59, 60, 62, 63, 64, 65
    sTHR, sTHR8, sCL, sCL8 = 66, 67, 68, 69
    sC = 70
    sKPo, sVPo = 72, 73
    sST, sROT = 74, 75
    sLINK = 6
    sH = 61
    sPFO, sMK, sMV = 48, 50, 51
    sJ = 47
    sRS, sRC = 46, 61
    vKa, vVa, vD = 1, 3, 7
    mx, mx8, tA, tB = 8, 9, 10, 11
    ONES, NEGM, Q, S, POOL, O = 12, 16, 28, 76, 116, 148
    ACC, XF, WF = 112, 76, 44
    XB, QB = 49152, 49152
    HB1 = 114688
    def acc(t, j): return ACC + (t * 4 + j) * 4
    def o_(T, d): return O + (T * 9 + (d + 1) % 9) * 4
    JUNK = O + 3
    def q_(T, k): return Q + (T * 4 + k) * 4
    def s_(T, j, tt=0): return S + (T * 2 + j) * 8 + tt * 4 if T < 2 else S + 32 + tt * 4
    def negm(T): return NEGM + 4 * T
    kvreg = {'K0': 160, 'V0': 192, 'K1': 76, 'V1': 108}
    g, n, t0, t1, t2, t3 = 12, 13, 14, 15, 16, 17

    def hfun(dst, src, tmp):
        a.I(f'v_lshrrev_b32 {vr(tmp)}, 1, {vr(src)}')
        a.I(f'v_xor_b32 {vr(dst)}, {vr(src)}, {vr(tmp)}')
        a.I(f'v_and_b32 {vr(dst)}, 1, {vr(dst)}')
        a.I(f'v_lshl_or_b32 {vr(dst)}, {vr(dst)}, 1, {vr(tmp)}')
    def tr_pattern(dst):
        a.I(f'v_lshrrev_b32 {vr(g)}, 4, v0')
        hfun(t0, g, t1)
        a.I(f'v_bfe_u32 {vr(t1)}, v0, 1, 1')
        a.I(f'v_xor_b32 {vr(t0)}, {vr(t0)}, {vr(t1)}')
        a.I(f'v_lshlrev_b32 {vr(t0)}, 4, {vr(t0)}')
        a.I(f'v_lshl_add_u32 {vr(t0)}, {vr(g)}, 12, {vr(t0)}')
        a.I(f'v_bfe_u32 {vr(t1)}, v0, 2, 2')
        a.I(f'v_lshl_add_u32 {vr(t0)}, {vr(t1)}, 7, {vr(t0)}')
        a.I(f'v_bfe_u32 {vr(t1)}, v0, 3, 1')
        a.I(f'v_lshl_add_u32 {vr(t0)}, {vr(t1)}, 6, {vr(t0)}')
        a.I(f'v_and_b32 {vr(t1)}, 1, v0')
        a.I(f'v_lshl_add_u32 {vr(dst)}, {vr(t1)}, 3, {vr(t0)}')

    a.raw('s_cmp_ge_u32 s2, 256')
    a.raw('s_cbranch_scc1 k1_end')
    st.real(); st.cyc()
    a.I('s_and_b32 s3, s2, 7')
    a.I('s_lshr_b32 s4, s2, 3')
    a.I(f's_lshr_b32 {sr(sBLK)}, s3, 2')
    a.I(f's_mul_i32 s5, {sr(sBLK)}, 40')
    a.I('s_load_dwordx8 s[8:15], s[0:1], s5')
    a.I('s_load_dwordx2 s[16:17], s[0:1], 96')
    a.I('s_add_u32 s5, s5, 32')
    a.I('s_load_dwordx2 s[18:19], s[0:1], s5')
    if OPT['fuse']: a.I('s_load_dwordx2 s[100:101], s[0:1], 88')
    a.I('s_and_b32 s5, s4, 3')
    a.I('s_lshl_b32 s6, s5, 1')
    a.I('s_add_u32 s3, s3, s6')
    a.I('s_and_b32 s3, s3, 3')
    a.I(f's_lshl_b32 {sr(sHP)}, s5, 2')
    a.I(f's_add_u32 {sr(sHP)}, {sr(sHP)}, s3')
    a.I(f's_lshr_b32 {sr(sB)}, s4, 2')
    a.I(f's_add_u32 {sr(sROT)}, {sr(sB)}, s5')
    a.I(f'v_lshrrev_b32 {vr(t0)}, 6, v0')
    a.I(f'v_readfirstlane_b32 {sr(sWAVE)}, {vr(t0)} ; WAVEID')
    a.I('v_and_b32 v0, 63, v0')
    a.I(f's_and_b32 {sr(sR)}, {sr(sWAVE)}, 3')
    a.I(f's_lshr_b32 {sr(sHH)}, {sr(sWAVE)}, 2')
    a.I(f's_lshr_b32 s3, {sr(sR)}, 1')
    a.I(f's_xor_b32 {sr(sH)}, {sr(sR)}, s3')
    a.I(f's_and_b32 {sr(sH)}, {sr(sH)}, 1')
    a.I(f's_lshl_b32 {sr(sH)}, {sr(sH)}, 1')
    a.I(f's_or_b32 {sr(sH)}, {sr(sH)}, s3')
    a.I(f'v_and_b32 {vr(t0)}, 7, v0')
    a.I(f'v_xor_b32 {vr(t0)}, {sr(sH)}, {vr(t0)}')
    a.I(f'v_bfe_u32 {vr(t1)}, v0, 4, 1')
    a.I(f'v_lshlrev_b32 {vr(t1)}, 2, {vr(t1)}')
    a.I(f'v_xor_b32 {vr(t0)}, {vr(t0)}, {vr(t1)}')
    a.I(f'v_lshlrev_b32 {vr(t0)}, 4, {vr(t0)}')
    a.I(f'v_lshrrev_b32 {vr(t1)}, 5, v0')
    a.I(f'v_lshl_add_u32 {vr(t0)}, {vr(t1)}, 7, {vr(t0)}')
    a.I(f'v_lshrrev_b32 {vr(g)}, 4, v0')
    a.I(f'v_bfe_u32 {vr(t1)}, v0, 3, 2')
    a.I(f's_lshl_b32 s3, {sr(sR)}, 4')
    a.I(f'v_add_u32 {vr(t1)}, s3, {vr(t1)}')
    a.I(f'v_lshl_add_u32 {vr(vD)}, {vr(t1)}, 8, {vr(t0)}')
    if OPT['lin']:
        a.I(f's_mul_i32 s3, {sr(sR)}, 3072')
        a.I(f'v_subrev_u32 {vr(vD)}, s3, {vr(vD)}')
    a.I(f's_lshl_b32 {sr(sM0W)}, {sr(sR)}, 12')
    def rest_setup():
        a.I(f's_mul_i32 {sr(sM0A)}, {sr(sHH)}, 81920')
        a.I(f's_add_u32 {sr(sM0A)}, {sr(sM0A)}, {sr(sM0W)}')
        a.I(f's_lshl_b32 s3, {sr(sB)}, 4')
        a.I(f's_add_u32 s3, s3, {sr(sHP)}')
        a.I('s_lshl_b32 s3, s3, 18')
        for (d, p) in ((sK, 10), (sV, 12)):
            a.I(f's_add_u32 {sr(d)}, {sr(p)}, s3')
            a.I(f's_addc_u32 {sr(d + 1)}, {sr(p + 1)}, 0')
            a.I(f's_mov_b32 {sr(d + 2)}, 262144')
            a.I(f's_mov_b32 {sr(d + 3)}, 0x20000')
    a.I(f's_cmp_eq_u32 {sr(sHH)}, 0')
    a.I('s_cbranch_scc1 k1_comp')

    def flag_srd(d):
        a.I(f's_add_u32 {sr(d)}, s16, {FLAG_OFF}')
        a.I(f's_addc_u32 {sr(d + 1)}, s17, 0')
        a.I(f's_mov_b32 {sr(d + 2)}, 98304')
        a.I(f's_mov_b32 {sr(d + 3)}, 0x20000')
    def dbg_srd(d):
        a.I(f's_mov_b32 {sr(d)}, s100')
        a.I(f's_mov_b32 {sr(d + 1)}, s101')
        a.I(f's_mov_b32 {sr(d + 2)}, 256')
        a.I(f's_mov_b32 {sr(d + 3)}, 0x20000')
    def oflag_off(d):
        a.I(f's_lshl_b32 {d}, {sr(sBLK)}, 3')
        a.I(f's_add_u32 {d}, {d}, {sr(sB)}')
        a.I(f's_lshl_b32 {d}, {d}, 4')
        a.I(f's_add_u32 {d}, {d}, {sr(sHP)}')
        a.I(f's_lshl_b32 {d}, {d}, 7')
        a.I(f's_add_u32 {d}, {d}, 65536')
    def wo_srd():
        a.I(f's_lshl_b32 s3, {sr(sB)}, 4')
        a.I(f's_add_u32 s3, s3, {sr(sHP)}')
        a.I('s_lshl_b32 s3, s3, 16')
        a.I(f's_add_u32 {sr(sX)}, s18, s3')
        a.I(f's_addc_u32 {sr(sX + 1)}, s19, 0')
        a.I(f's_mov_b32 {sr(sX + 2)}, 65536')
    vDW, vDX = 20, 24
    if OPT['lprio']: a.I(f's_setprio {OPT["lprio"]}')
    a.I(f'v_lshl_add_u32 {vr(vDW)}, {vr(t1)}, 13, {vr(t0)}')
    for tq in range(1, 4): a.I(f'v_add_u32 {vr(vDW + tq)}, {tq * (32768 - 1024)}, {vr(vDW)}')
    a.I(f's_lshr_b32 {sr(sST)}, s2, {OPT["offsh"]}')
    a.I(f's_and_b32 {sr(sST)}, {sr(sST)}, {OPT["offm"]}')
    a.I(f's_add_u32 {sr(sOX)}, {sr(sST)}, {sr(sROT)}')
    a.I(f's_and_b32 {sr(sOX)}, {sr(sOX)}, {0 if OPT["rotfrom"] else OPT["rot1"]}')
    a.I(f's_lshl_b32 {sr(sOW)}, {sr(sOX)}, 19')
    a.I(f's_lshl_b32 s3, {sr(sHP)}, 9')
    a.I(f's_sub_u32 {sr(sW + 2)}, 8388608, s3')
    a.I(f's_mov_b32 {sr(sW + 3)}, 0x20000')
    a.I(f's_mov_b32 m0, {sr(sM0W)}')
    a.I('s_waitcnt lgkmcnt(0)')
    a.I(f's_add_u32 {sr(sW)}, s14, s3')
    a.I(f's_addc_u32 {sr(sW + 1)}, s15, 0')
    def wloads(hq):
        if OPT['whalf']:
            for tq in range(4): a.I(f'buffer_load_dwordx4 {vr(vDW + tq)}, {sr(sW, 4)}, {sr(sOW)} offen offset:{tq * 1024}{NT("wnt")} lds')
        else:
            for tq in range(4): a.I(f'buffer_load_dwordx4 {vr(vDW + tq)}, {sr(sW, 4)}, {sr(sOW)} offen offset:{tq * 1024 + hq * 256}{NT("wnt")} lds')
    sHA, sHB = 70, 71
    if OPT['whalf']:
        a.I(f's_lshr_b32 s4, {sr(sB)}, 2')
        a.I(f's_mul_i32 {sr(sHA)}, s4, {HB1}')
        a.I(f's_sub_u32 {sr(sHB)}, {HB1}, {sr(sHA)}')
        a.I(f's_add_u32 {sr(sHA)}, {sr(sHA)}, {sr(sM0W)}')
        a.I(f's_add_u32 {sr(sHB)}, {sr(sHB)}, {sr(sM0W)}')
        a.I(f's_lshl_b32 {sr(sKPo)}, s4, 8')
        a.I(f's_mov_b32 m0, {sr(sHA)}')
        a.I(f's_or_b32 {sr(sOW)}, {sr(sOW)}, {sr(sKPo)}')
    wloads(0)
    a.I(f's_mul_i32 s3, {sr(sB)}, 294912')
    if not OPT['whalf']:
        a.I(f's_add_u32 m0, {sr(sM0W)}, {HB1 - 256}')
        wloads(1)
    a.I(f's_add_u32 {sr(sX)}, s8, s3')
    a.I(f's_addc_u32 {sr(sX + 1)}, s9, 0')
    a.I(f's_mov_b32 {sr(sX + 2)}, 294912')
    a.I(f's_mov_b32 {sr(sX + 3)}, 0x20000')
    a.I(f'v_and_b32 {vr(t1)}, 2, {vr(g)}')
    a.I(f'v_lshlrev_b32 {vr(t1)}, 1, {vr(t1)}')
    a.I(f'v_xor_b32 {vr(t0)}, {vr(g)}, {vr(t1)}')
    a.I(f'v_and_b32 {vr(t1)}, 7, v0')
    a.I(f'v_xor_b32 {vr(t0)}, {vr(t0)}, {vr(t1)}')
    a.I(f'v_lshlrev_b32 {vr(t0)}, 4, {vr(t0)}')
    a.I(f'v_lshrrev_b32 {vr(t1)}, 3, v0')
    a.I(f'v_lshl_add_u32 {vr(t0)}, {vr(t1)}, 11, {vr(t0)}')
    a.I(f'v_xor_b32 {vr(t1)}, 64, {vr(t0)}')
    a.I(f's_lshl_b32 s3, {sr(sR)}, 16')
    for j in range(4):
        a.I(f'v_add_u32 {vr(vDX + j)}, s3, {vr((t0, t1)[j & 1])}')
        if j < 3: a.I(f's_add_u32 s3, s3, {16384 - 1024}')
    a.I(f's_lshl_b32 s3, {sr(sR)}, 6')
    a.I(f'v_xor_b32 {vr(t0)}, s3, {vr(t0)}')
    a.I(f's_lshl_b32 s3, {sr(sR)}, 14')
    a.I('s_add_u32 s3, s3, 262144')
    a.I(f'v_add_u32 {vr(vDX + 4)}, s3, {vr(t0)}')
    a.I(f's_lshl_b32 {sr(sM0X)}, {sr(sR)}, 10')
    a.I(f's_add_u32 {sr(sM0X)}, {sr(sM0X)}, {XB + 16384}')
    a.I(f's_add_u32 {sr(sST)}, {sr(sST)}, 1')
    a.I(f's_mov_b32 {sr(sSLW)}, 0')
    a.I(f's_mov_b32 {sr(sSLX)}, 0')
    sPO = 73
    if OPT['pofs'] >= 0:
        a.I(f's_lshr_b32 {sr(sPO)}, s2, {OPT["pofs"]}')
        a.I(f's_and_b32 {sr(sPO)}, {sr(sPO)}, 1')
    def stage_w():
        R = OPT['rot1']
        if OPT['pofs'] >= 0:
            a.I(f's_sub_u32 {sr(sOW)}, {sr(sST)}, {sr(sPO)}')
            a.I(f's_add_u32 {sr(sT0)}, {sr(sST)}, {sr(sPO)}')
            a.I(f's_cmp_ge_i32 {sr(sOW)}, {OPT["rotfrom"]}')
            a.I(f's_cselect_b32 {sr(sOX)}, {sr(sROT)}, 0')
            a.I(f's_cmp_lt_u32 {sr(sT0)}, 16')
            a.I(f's_cselect_b32 {sr(sOX)}, {sr(sOX)}, 0')
            a.I(f's_and_b32 {sr(sOX)}, {sr(sOX)}, 1')
            a.I(f's_xor_b32 {sr(sOX)}, {sr(sOX)}, {sr(sOW)}')
            a.I(f's_add_u32 {sr(sOX)}, {sr(sOX)}, {sr(sPO)}')
            pre_ = []
        else:
            if OPT['rotfrom']:
                a.I(f's_cmp_ge_u32 {sr(sST)}, {OPT["rotfrom"]}')
                a.I(f's_cselect_b32 {sr(sOX)}, {sr(sROT)}, 0')
            pre_ = [f's_add_u32 {sr(sOX)}, {sr(sST)}, {sr(sOX if OPT["rotfrom"] else sROT)}',
                    f's_and_b32 {sr(sOX)}, {sr(sOX)}, {R}',
                    f's_and_b32 {sr(sOW)}, {sr(sST)}, {15 & ~R}',
                    f's_or_b32 {sr(sOX)}, {sr(sOX)}, {sr(sOW)}']
        a.many(pre_ + [
                f's_add_u32 m0, {sr(sHA if OPT["whalf"] else sM0W)}, {sr(sSLW)}',
                f's_lshl_b32 {sr(sOW)}, {sr(sOX)}, 19',
                f's_add_u32 {sr(sST)}, {sr(sST)}, 1'])
        if OPT['whalf']: a.I(f's_or_b32 {sr(sOW)}, {sr(sOW)}, {sr(sKPo)}')
        wloads(0)
        if not OPT['whalf']:
            a.I(f's_add_u32 m0, m0, {HB1 - 256}')
            wloads(1)
    def stage_x():
        lb = a.newlabel('k1_skipx')
        a.I(f's_add_u32 {sr(sT0)}, {sr(sM0W)}, {sr(sSLX)}')
        a.I(f's_add_u32 m0, {sr(sT0)}, {XB}')
        a.I(f's_lshl_b32 {sr(sOX)}, {sr(sOX)}, 7')
        for j in range(4): a.I(f'buffer_load_dwordx4 {vr(vDX + j)}, {sr(sX, 4)}, {sr(sOX)} offen offset:{j * 1024}{NT("xnt")} lds')
        a.I(f's_add_u32 m0, {sr(sM0X)}, {sr(sSLX)}')
        a.I(f's_cmp_ge_u32 {sr(sR)}, 2')
        a.I(f's_cbranch_scc1 {lb}')
        a.I(f'buffer_load_dwordx4 {vr(vDX + 4)}, {sr(sX, 4)}, {sr(sOX)} offen{NT("xnt")} lds')
        a.label(lb)
        if OPT['whalf']:
            a.I(f's_add_u32 m0, {sr(sHB)}, {sr(sSLW)}')
            a.I(f's_xor_b32 {sr(sOW)}, {sr(sOW)}, 256')
            wloads(1)
        a.I(f's_add_u32 {sr(sSLW)}, {sr(sSLW)}, 16384')
        a.I(f's_add_u32 {sr(sSLX)}, {sr(sSLX)}, 18432')
        a.I(f's_cmp_eq_u32 {sr(sSLW)}, 49152')
        a.I(f's_cselect_b32 {sr(sSLW)}, 0, {sr(sSLW)}')
        a.I(f's_cselect_b32 {sr(sSLX)}, 0, {sr(sSLX)}')
    stage_x()
    rest_setup()
    if OPT['pre1']:
        stage_w()
        a.I(f's_waitcnt vmcnt({4 if OPT["whalf"] else 8})')
        a.I('s_barrier')
        stage_x()
    else:
        a.I('s_waitcnt vmcnt(0)')
        a.I('s_barrier')
        stage_w(); stage_x()
    st0 = st.n
    st.cyc()
    stage_w(); stage_x()
    a.I(f's_cmp_lg_u32 {sr(sR)}, 0')
    a.I('s_cbranch_scc1 k1_noreset')
    flag_srd(sO)
    oflag_off('s4')
    a.I('s_lshl_b32 s3, s2, 8')
    a.I(f'v_lshlrev_b32 {vr(t0)}, 2, v0')
    a.I(f'v_and_b32 {vr(t2)}, 127, {vr(t0)}')
    a.I(f'v_mov_b32 {vr(t1)}, 0')
    a.I(f'buffer_store_dword {vr(t1)}, {vr(t0)}, {sr(sO, 4)}, s3 offen sc1')
    a.I(f'buffer_store_dword {vr(t1)}, {vr(t2)}, {sr(sO, 4)}, s4 offen sc1')
    a.label('k1_noreset')
    if OPT['kvs'] == 3:
        a.I(f's_mul_i32 s3, s2, 171')
        a.I(f's_lshr_b32 s3, s3, 9')
        a.I(f's_mul_i32 s3, s3, 3')
        a.I(f's_sub_u32 {sr(sNEXT)}, s2, s3')
    else:
        a.I(f's_lshr_b32 s3, s2, 3')
        a.I(f's_and_b32 {sr(sNEXT)}, s3, 1')
    a.I(f's_add_u32 {sr(sNEXT)}, {sr(sNEXT)}, {OPT["kv0"]}')
    assert OPT['kv0'] + 4 * OPT['kvs'] - 1 <= 12
    if OPT['kvm'] != '-':
        ms = [sum(1 << int(c, 16) for c in m) for m in OPT['kvm'].split('/')]
        if len(ms) == 3: a.I(f's_sub_u32 s3, {sr(sNEXT)}, {OPT["kv0"]}')
        elif len(ms) == 2:
            a.I('s_lshr_b32 s3, s2, 3'); a.I('s_lshr_b32 s4, s2, 5'); a.I('s_xor_b32 s3, s3, s4'); a.I('s_and_b32 s3, s3, 1')
        else:
            a.I('s_lshr_b32 s3, s2, 3'); a.I('s_lshr_b32 s4, s2, 5'); a.I('s_add_u32 s3, s3, s4'); a.I('s_and_b32 s3, s3, 3')
        a.I(f's_mov_b32 {sr(sNEXT)}, {ms[0]}')
        for i, m in enumerate(ms[1:], 1):
            a.I(f's_cmp_eq_u32 s3, {i}')
            a.I(f's_cselect_b32 {sr(sNEXT)}, {m}, {sr(sNEXT)}')
    a.I(f's_mov_b32 {sr(sLOOSE)}, 0')
    a.I(f's_mov_b32 {sr(sKVI)}, 0')
    a.I(f's_mov_b32 {sr(sCNT)}, 0')
    def lbar():
        lb = a.newlabel('k1_loose')
        a.I(f's_cmp_gt_i32 {sr(sLOOSE)}, 0')
        a.I(f's_cbranch_scc1 {lb}')
        a.I('s_waitcnt vmcnt(12)')
        a.label(lb)
        a.I(f's_sub_i32 {sr(sLOOSE)}, {sr(sLOOSE)}, 1')
        a.I('s_waitcnt vmcnt(20)')
        a.I('s_barrier')
        if OPT.get('qst'): st.cyc()
    a.label('k1_lloop')
    lbar()
    stage_w(); stage_x()
    if OPT['kvm'] != '-':
        a.I(f's_lshr_b32 s3, {sr(sNEXT)}, {sr(sCNT)}')
        a.I('s_and_b32 s3, s3, 1')
        a.I('s_cbranch_scc0 k1_kvdone')
    else:
        a.I(f's_cmp_lg_u32 {sr(sCNT)}, {sr(sNEXT)}')
        a.I('s_cbranch_scc1 k1_kvdone')
        a.I(f's_add_u32 {sr(sNEXT)}, {sr(sNEXT)}, {OPT["kvs"]}')
    a.I(f's_add_u32 {sr(sKVI)}, {sr(sKVI)}, 1')
    items = ['K0', 'V0', 'K1', 'V1'] + [OPT['kq'][i:i + 2] for i in range(0, len(OPT['kq']), 2) if OPT['kq'][i] in 'KV']
    for m, it in enumerate(items):
        a.I(f's_cmp_lg_u32 {sr(sKVI)}, {m + 1}')
        a.I(f's_cbranch_scc1 k1_kv{m + 1}')
        a.I(f's_mov_b32 {sr(sLOOSE)}, 2')
        for hq in range(2):
            a.I(f's_mov_b32 {sr(sT0)}, {int(it[1]) * 16384 + hq * 131072}')
            for j in range(4):
                if m < 4: a.I(f'buffer_load_dwordx4 {vr(kvreg[it] + 16 * hq + 4 * j, 4)}, {vr(vD)}, {sr(sK if it[0] == "K" else sV, 4)}, {sr(sT0)} offen offset:{j * 1024}{NT("kvnt")}')
                else: a.I(f'buffer_load_dwordx4 v[224:227], {vr(vD)}, {sr(sK if it[0] == "K" else sV, 4)}, {sr(sT0)} offen offset:{j * 1024} ; NOCHECK')
                if OPT['lin'] and j < 3: a.I(f's_add_u32 {sr(sT0)}, {sr(sT0)}, 3072')
        if m < len(items) - 1: a.I('s_branch k1_kvdone')
        a.label(f'k1_kv{m + 1}')
    a.label('k1_kvdone')
    a.I(f's_add_u32 {sr(sCNT)}, {sr(sCNT)}, 1')
    a.I(f's_cmp_lt_u32 {sr(sCNT)}, 13')
    a.I('s_cbranch_scc1 k1_lloop')
    a.I(f's_add_u32 s3, {sr(sM0W)}, 16384')
    a.I(f'v_lshl_add_u32 {vr(tA)}, v0, 4, s3')
    a.I(f'v_add_u32 {vr(tB)}, {81920 + 32768}, {vr(tA)}')
    a.I(f'v_add_u32 {vr(mx)}, {81920 - 16384}, {vr(tA)}')
    def kvwrite(it, off, b1=tB, off1=None):
        for hq in range(2):
            o = off if (hq == 0 or off1 is None) else off1
            for j in range(4): a.I(f'ds_write_b128 {vr((tA, b1)[hq])}, {vr(kvreg[it] + 16 * hq + 4 * j, 4)} offset:{o + j * 1024}')
    lbar()
    npf = 0
    a.I(f'v_lshlrev_b32 {vr(t1)}, 4, v0')
    if OPT['cpf']:
        a.I(f's_getpc_b64 {sr(sO, 2)}')
        a.label('k1_pc')
        a.I(f's_mov_b32 {sr(sO + 2)}, k1_end-k1_pc')
        a.I(f's_mov_b32 {sr(sO + 3)}, 0x20000')
        a.I(f's_lshr_b32 s3, {sr(sHP)}, 2')
        a.I('s_lshl_b32 s3, s3, 2')
        a.I(f's_add_u32 s3, s3, {sr(sR)}')
        a.I('s_lshl_b32 s3, s3, 11')
        for k in range(2):
            a.I(f'buffer_load_dwordx4 v[228:231], {vr(t1)}, {sr(sO, 4)}, s3 offen offset:{k * 1024} ; NOCHECK')
            npf += 1
    junk = []
    for it in [OPT['kw'][i:i + 2] for i in range(0, len(OPT['kw']), 2) if OPT['kw'][i] in 'KV']:
        for hq in range(2):
            for j in range(4):
                junk.append(([f's_mov_b32 {sr(sT0)}, {int(it[1]) * 16384 + hq * 131072}'] if j == 0 else []) +
                            [f'buffer_load_dwordx4 v[224:227], {vr(vD)}, {sr(sK if it[0] == "K" else sV, 4)}, {sr(sT0)} offen offset:{j * 1024} ; NOCHECK'])
    if OPT['wopf'] == 3:
        wo_srd()
        for k in range(OPT['nwo']):
            junk.append(([f's_lshl_b32 {sr(sT0)}, {sr(sR)}, 14'] if k == 0 else []) + ([f's_add_u32 {sr(sT0)}, {sr(sT0)}, 4096'] if k and k & 3 == 0 else []) +
                        [f'buffer_load_dwordx4 v[224:227], {vr(t1)}, {sr(sX, 4)}, {sr(sT0)} offen offset:{(k & 3) * 1024} ; NOCHECK'])
    for x in junk[:8]: a.many(x); npf += 1
    kvwrite('K0', 0)
    a.I(f's_waitcnt vmcnt({npf})')
    a.I('s_barrier')
    for x in junk[8:16]: a.many(x)
    kvwrite('V0', 16384)
    a.I('s_barrier')
    for x in junk[16:]: a.many(x)
    a.I(f's_call_b64 {sr(sLINK, 2)}, k1_asetup')
    for i in range(O, 256, 2):
        if not 224 <= i < 232: a.I(f'v_mov_b64 {vr(i, 2)}, 0')
    if not OPT['lazyj']:
        a.I('s_waitcnt vmcnt(0)')
        for i in range(224, 232, 2): a.I(f'v_mov_b64 {vr(i, 2)}, 0')
    a.I(f's_cmp_lg_u32 {sr(sR)}, 0')
    a.I('s_cbranch_scc1 k1_nocount')
    dbg_srd(sO)
    a.I(f'v_mov_b32 {vr(140)}, 0')
    a.I(f'v_mov_b32 {vr(141)}, 1')
    a.I('s_mov_b64 exec, 1')
    a.I(f'buffer_atomic_add {vr(141)}, {vr(140)}, {sr(sO, 4)}, 0 offen sc1')
    a.I('s_mov_b64 exec, -1')
    a.label('k1_nocount')
    if OPT['lprio']: a.I('s_setprio 0')
    st.cyc()
    a.I('s_branch k1_join')

    a.label('k1_asetup')
    a.I(f's_lshl_b32 {sr(sKP)}, {sr(sHH)}, 15')
    a.I(f's_add_u32 {sr(sKP)}, {sr(sKP)}, 16384')
    a.I(f's_add_u32 {sr(sVP)}, {sr(sKP)}, 16384')
    a.I(f's_and_b32 s3, {sr(sR)}, 1')
    a.I('s_lshl_b32 s3, s3, 11')
    a.I(f's_lshl_b32 {sr(sJ)}, s3, 1')
    a.I(f's_sub_u32 {sr(sJ)}, 2048, {sr(sJ)}')
    a.I(f's_mul_i32 s5, {sr(sHH)}, 81920')
    a.I('s_add_u32 s5, s5, s3')
    a.I(f's_add_u32 s4, s5, {sr(sVP)}')
    a.I(f's_add_u32 s5, s5, {sr(sKP)}')
    a.I(f's_mul_i32 s3, {sr(sHH)}, 36864')
    a.I(f's_add_u32 s3, s3, {QB}')
    a.I(f'v_lshl_add_u32 {vr(tB)}, v0, 4, s3')
    a.I(f's_lshl_b32 s3, {sr(sR)}, 13')
    a.I(f'v_add_u32 {vr(mx8)}, s3, {vr(tB)}')
    tr_pattern(vVa)
    a.I(f'v_add_u32 {vr(vVa)}, s4, {vr(vVa)}')
    for j in range(1, 4): a.I(f'v_xor_b32 {vr(vVa + j)}, {32 * j}, {vr(vVa)}')
    a.I(f'v_bfe_u32 {vr(n)}, v0, 2, 2')
    hfun(t0, n, t1)
    a.I(f'v_xor_b32 {vr(t0)}, {vr(t0)}, {vr(g)}')
    a.I(f'v_lshlrev_b32 {vr(t0)}, 4, {vr(t0)}')
    a.I(f'v_lshl_add_u32 {vr(t0)}, {vr(n)}, 12, {vr(t0)}')
    a.I(f'v_and_b32 {vr(t1)}, 3, v0')
    a.I(f'v_lshl_add_u32 {vr(t0)}, {vr(t1)}, 7, {vr(t0)}')
    a.I(f'v_bfe_u32 {vr(t1)}, v0, 1, 1')
    a.I(f'v_lshl_add_u32 {vr(t0)}, {vr(t1)}, 6, {vr(t0)}')
    a.I(f'v_add_u32 {vr(vKa)}, s5, {vr(t0)}')
    a.I(f'v_xor_b32 {vr(vKa + 1)}, 64, {vr(vKa)}')
    for i in range(4): a.I(f'v_mov_b32 {vr(ONES + i)}, 0x3f803f80')
    for i in range(0, 12, 2): a.I(f'v_mov_b64 {vr(NEGM + i, 2)}, 0')
    NEG_BIG = fbits(-3.0e38)
    for s in (sTHR, sTHR8, sCL, sCL8): a.I(f's_mov_b32 {sr(s)}, {NEG_BIG}')
    a.I(f's_lshl_b32 s3, {sr(sHH)}, 17')
    a.I(f'v_add_u32 {vr(vD)}, s3, {vr(vD)}')
    a.I(f's_mov_b32 {sr(sOV)}, 32768')
    a.I(f's_mov_b32 {sr(sOK)}, 32768')
    a.I(f's_mov_b32 {sr(sT1)}, 32768')
    a.I(f's_mov_b32 {sr(sRS)}, 0')
    a.I(f's_setpc_b64 {sr(sLINK, 2)}')

    a.label('k1_comp')
    a.lg = []
    st.n = st0
    vWp, vX, vQW = 28, 32, 34
    tr_pattern(vWp)
    a.I(f's_lshr_b32 s3, {sr(sR)}, 1')
    a.I(f's_mul_i32 s4, s3, {HB1}')
    a.I(f's_and_b32 s5, {sr(sR)}, 1')
    a.I('s_lshl_b32 s6, s5, 9')
    a.I('s_add_u32 s4, s4, s6')
    a.I(f'v_add_u32 {vr(vWp)}, s4, {vr(vWp)}')
    for j in range(1, 4): a.I(f'v_xor_b32 {vr(vWp + j)}, {32 * j}, {vr(vWp)}')
    a.I(f'v_and_b32 {vr(n)}, 15, v0')
    a.I(f'v_lshrrev_b32 {vr(t0)}, 1, {vr(n)}')
    a.I(f'v_and_b32 {vr(t1)}, 2, {vr(t0)}')
    a.I(f'v_lshlrev_b32 {vr(t1)}, 1, {vr(t1)}')
    a.I(f'v_xor_b32 {vr(t0)}, {vr(t0)}, {vr(t1)}')
    a.I(f'v_lshlrev_b32 {vr(t1)}, 1, {vr(g)}')
    a.I(f'v_xor_b32 {vr(t0)}, {vr(t0)}, {vr(t1)}')
    a.I(f'v_lshlrev_b32 {vr(t0)}, 4, {vr(t0)}')
    a.I(f'v_lshl_add_u32 {vr(t0)}, {vr(n)}, 7, {vr(t0)}')
    a.I(f'v_add_u32 {vr(vX)}, {XB}, {vr(t0)}')
    a.I(f'v_xor_b32 {vr(vX + 1)}, 16, {vr(vX)}')
    a.I(f's_mul_i32 s4, s3, 36864')
    a.I('s_lshl_b32 s6, s5, 11')
    a.I('s_add_u32 s4, s4, s6')
    a.I(f's_add_u32 s4, s4, {QB}')
    a.I(f'v_lshl_add_u32 {vr(t0)}, {vr(n)}, 4, s4')
    a.I(f'v_lshrrev_b32 {vr(t1)}, 1, {vr(g)}')
    a.I(f'v_lshl_add_u32 {vr(t0)}, {vr(t1)}, 8, {vr(t0)}')
    a.I(f'v_and_b32 {vr(t1)}, 1, {vr(g)}')
    a.I(f'v_lshl_add_u32 {vr(vQW)}, {vr(t1)}, 3, {vr(t0)}')
    a.I('s_waitcnt lgkmcnt(0)')
    rest_setup()
    a.I(f's_call_b64 {sr(sLINK, 2)}, k1_asetup')
    cval = fbits(128 ** -0.5 * math.log2(math.e))
    a.I(f's_mov_b32 {sr(sC)}, {cval}')
    a.I(f's_mov_b32 {sr(sC + 1)}, {cval}')
    for i in range(0, 144, 2): a.I(f'v_mov_b64 {vr(ACC + i, 2)}, 0')
    def xread(t, slot, ks): return f'ds_read_b128 {vr(XF + 4 * t, 4)}, {vr(vX + ks)} offset:{slot * 18432 + t * 2048}'
    def wreads(W, slot, ks):
        return [f'ds_read_b64_tr_b16 {vr(W + 4 * j + 2 * h, 2)}, {vr(vWp + j)} offset:{slot * 16384 + ks * 2048 + h * 1024}' for j in range(4) for h in range(2)]
    GT = OPT['gate']
    def kstep(Wc, Wn, nslot, nks, gated, last=False):
        wr = wreads(Wn, nslot, nks) if not last else []
        conv = []
        for t in range(9):
            for j in range(4):
                a.I(f'{MF} {vr(acc(t, j), 4)}, {vr(Wc + 4 * j, 4)}, {vr(XF + 4 * t, 4)}, {vr(acc(t, j), 4)}')
                if t >= (GT if gated else 0) and j in (0, 2) and wr: a.I(wr.pop(0))
                for _ in range(OPT['cvn']):
                    if conv: a.I(conv.pop(0))
            if gated and t == GT - 1:
                a.I('s_waitcnt lgkmcnt(0)')
                a.I('s_barrier')
                if not last:
                    for tt in range(GT): a.I(xread(tt, nslot, nks))
            elif not last and (not gated or t >= GT): a.I(xread(t, nslot, nks))
            if last and t >= GT - 1:
                lo = 0 if t == GT - 1 else t - 1
                for tc in range(lo, t): conv += convert(tc)
        if last:
            a.many(conv); a.many(convert(8))
        assert not wr
    def convert(t):
        r = []
        if OPT['cvpk']:
            for j in range(4): r += [f'v_pk_mul_f32 {vr(acc(t, j) + 2 * k, 2)}, {vr(acc(t, j) + 2 * k, 2)}, {sr(sC, 2)}' for k in range(2)]
        else:
            for j in range(4): r += [f'v_mul_f32 {vr(acc(t, j) + k)}, {sr(sC)}, {vr(acc(t, j) + k)}' for k in range(4)]
        for j in range(4): r += [f'v_cvt_pk_bf16_f32 {vr(acc(t, j) + k)}, {vr(acc(t, j) + 2 * k)}, {vr(acc(t, j) + 2 * k + 1)}' for k in range(2)]
        for j in range(4): r += [f'ds_write_b64 {vr(vQW)}, {vr(acc(t, j), 2)} offset:{t * 4096 + (j >> 1) * 1024 + (j & 1) * 512}']
        r += [f'v_mov_b64 {vr(i, 2)}, 0' for i in range(acc(t, 0), acc(t, 0) + 16, 2) if i >= O]
        return r
    W0, W1 = WF, WF + 16
    if OPT['cprio']: a.I(f's_setprio {OPT["cprio"]}')
    a.I('s_barrier')
    st.cyc()
    a.many(wreads(W0, 0, 0))
    for t in range(9): a.I(xread(t, 0, 0))
    a.I(f's_mov_b32 {sr(sCNT)}, 0')
    a.I('s_waitcnt lgkmcnt(0)')
    class _Dry(Asm): pass
    save = (a.ins, a.lg); a.ins = []; a.lg = []
    kstep(W1, W0, 0, 0, True); lg0 = [set(x) for x in a.lg]
    a.ins, a.lg = save
    a.lg = [set(x) for x in lg0]
    a.label('k1_qloop')
    for i in range(3):
        kstep(W0, W1, i, 1, False)
        kstep(W1, W0, (i + 1) % 3, 0, True)
    assert [set(x) for x in a.lg] == lg0
    a.I(f's_add_u32 {sr(sCNT)}, {sr(sCNT)}, 1')
    a.I(f's_cmp_lt_u32 {sr(sCNT)}, 5')
    a.I('s_cbranch_scc1 k1_qloop')
    kstep(W0, W1, 0, 1, False)
    kstep(W1, W0, 0, 0, True, last=True)
    if OPT['cprio']: a.I('s_setprio 0')
    st.cyc()

    a.label('k1_join')
    if OPT.get('qst'): st.on = False
    a.lg = [set()]
    a.I(f's_mov_b32 {sr(sCNT)}, 0')
    a.I(f's_lshl_b32 s5, {sr(sHH)}, 15')
    a.I(f's_add_u32 s5, s5, {sr(sM0A)}')
    a.I('s_waitcnt lgkmcnt(0)')
    a.I('s_barrier')
    for T in range(2):
        for k in range(4): a.I(f'ds_read_b128 {vr(q_(T, k), 4)}, {vr(mx8)} offset:{T * 4096 + k * 1024}')
    for k in range(4): a.I(f'ds_read_b128 {vr(q_(2, k), 4)}, {vr(tB)} offset:{32768 + k * 1024}')
    a.I('s_waitcnt lgkmcnt(0)')
    a.I('s_barrier')
    a.lg = []
    def dma_ins(kind):
        srd, so = (sK, sOK) if kind == 'K' else (sV, sOV)
        r = [[f'buffer_load_dwordx4 {vr(vD)}, {sr(srd, 4)}, {sr(so)} offen offset:{j * 1024}{APOL(kind, j)} lds'] for j in range(4)]
        if OPT['lin']:
            for j in range(3): r[j].append(f's_add_u32 {sr(so)}, {sr(so)}, 3072')
        r[3].append(f's_add_u32 {sr(so)}, {sr(so)}, {16384 - (9216 if OPT["lin"] else 0)}')
        return r
    def dma_grp(kind, m0):
        r = dma_ins(kind); r[0] = [m0, 's_nop 0'] + r[0]
        return r
    pro_aux = []
    if OPT['kvl2']:
        a.I(f's_mov_b32 {sr(sOV)}, 16384')
        a.I(f's_mov_b32 {sr(sOK)}, 16384')
        a.I(f's_mul_i32 s3, {sr(sHH)}, 49152')
        a.I('s_sub_u32 s4, 49152, s3')
        a.I(f's_add_u32 s4, s4, {sr(sM0A)}')
        for x in dma_grp('K', 's_mov_b32 m0, s4'): a.many(x)
        pro_aux = dma_grp('V', 's_add_u32 m0, s4, 16384') + dma_grp('K', 's_mov_b32 m0, s5')
    else:
        for x in dma_grp('K', 's_mov_b32 m0, s5'): a.many(x)
        a.I(f's_cmp_eq_u32 {sr(sHH)}, 0')
        a.I('s_cbranch_scc1 k1_nowr')
        kvwrite('K1', 32768, mx, 0); kvwrite('V1', 49152, mx, 16384)
    a.label('k1_nowr')
    a.lg = []
    LA, SY = 6, OPT['sy']
    def rd(kind, jl, f):
        if kind == 'K':
            return [f'ds_read_b128 {vr(POOL + 4 * f, 4)}, {vr(vKa + (f & 1))} offset:{(f >> 2) * 1024 + ((f >> 1) & 1) * 512}']
        return [f'ds_read_b64_tr_b16 {vr(POOL + 4 * f + 2 * h, 2)}, {vr(vVa + (f & 3))} offset:{h * 1024 + (f >> 2) * 512}' for h in range(2)]
    def rd_upd(kind, jl, f):
        r = rd(kind, jl, f)
        if kind == 'K' and f >= 6: r.append(f'v_add_u32 {vr(vKa + (f & 1))}, {sr(sDK if jl else sJ)}, {vr(vKa + (f & 1))}')
        if kind == 'V' and f >= 6:
            for x in (f - 2, f): r.append(f'v_add_u32 {vr(vVa + (x & 3))}, {sr(sDV if jl else sJ)}, {vr(vVa + (x & 3))}')
        return r
    for f in range(LA): a.many(rd('K', 0, f))
    lgK = [set(x) for x in a.lg]
    lgV = [set(Insn(x).wr) for f in range(LA) for x in rd('V', 0, f)]
    st.cyc()
    a.I(f's_lshr_b32 s3, {sr(sR)}, 1')
    a.I(f's_xor_b32 s3, s3, {sr(sHH)}')
    a.I('s_cmp_eq_u32 s3, 1')
    a.I('s_cbranch_scc1 k1_proL')

    def maxops(jl, heavy):
        def chain(vs, dst, extra=None):
            o = [f'v_max3_f32 {vr(dst)}, {vr(vs[0])}, {vr(vs[1])}, {vr(vs[2])}']
            for k in range(3, len(vs) - 1, 2): o.append(f'v_max3_f32 {vr(dst)}, {vr(dst)}, {vr(vs[k])}, {vr(vs[k + 1])}')
            o.append(f'v_max_f32 {vr(dst)}, {vr(dst)}, {vr(vs[-1])}' if extra is None else f'v_max3_f32 {vr(dst)}, {vr(dst)}, {vr(vs[-1])}, {vr(extra)}')
            return o
        c1 = chain([s_(0, jl) + k for k in range(8)], tB)
        c0 = chain([s_(1, jl) + k for k in range(8)], mx, tB)
        c8 = chain([s_(2, 0) + k for k in range(8)], mx8) if heavy else []
        ops = []
        for k in range(4):
            ops += [c1[k]] + ([c8[k]] if heavy else []) + [c0[k]]
        return ops
    def expops(jl, heavy):
        ops = []
        Tl = (0, 1, 2) if heavy else (0, 1)
        for k in range(8):
            for T in Tl: ops.append(f'v_exp_f32 {vr(s_(T, jl) + k)}, {vr(s_(T, jl) + k)}')
            if k >= 2 and k % 2 == 0:
                for T in Tl: ops.append(f'v_cvt_pk_bf16_f32 {vr(s_(T, jl) + k // 2 - 1)}, {vr(s_(T, jl) + k - 2)}, {vr(s_(T, jl) + k - 1)}')
        for T in Tl: ops.append(f'v_cvt_pk_bf16_f32 {vr(s_(T, jl) + 3)}, {vr(s_(T, jl) + 6)}, {vr(s_(T, jl) + 7)}')
        return ops
    stubs = []
    def check(jl, heavy):
        for (thr, m, fn) in ((sTHR, mx, f'k1_rare{jl}'),) + (((sTHR8, mx8, 'k1_rare8'),) if heavy else ()):
            lb = a.newlabel('k1_ok')
            a.I(f'v_cmp_lt_f32 vcc, {sr(thr)}, {vr(m)}')
            a.I(f's_cbranch_vccnz {lb}_s')
            a.label(lb)
            stubs.append((lb, fn))
    def mfmas(kind, jl, heavy, f):
        Tl = (0, 1, 2) if heavy else (0, 1)
        P = vr(POOL + 4 * f, 4)
        if kind == 'K':
            tt, ks = f >> 2, f & 3
            return [f'{MF} {vr(s_(T, jl, tt), 4)}, {P}, {vr(q_(T, ks), 4)}, {vr(negm(T) if ks == 0 else s_(T, jl, tt), 4)}' for T in Tl]
        r = [f'{MF} {vr(o_(T, f), 4)}, {P}, {vr(s_(T, jl), 4)}, {vr(o_(T, f), 4)}' for T in Tl]
        if f == 7: r += [f'{MF} {vr(o_(T, 8), 4)}, {vr(ONES, 4)}, {vr(s_(T, jl), 4)}, {vr(o_(T, 8), 4)}' for T in Tl]
        return r
    def ring_step(doK, doV):
        r = []
        for (P, Po, D, on) in ((sKP, sKPo, sDK, doK), (sVP, sVPo, sDV, doV)):
            if not on: continue
            r.append([f's_mov_b32 {sr(Po)}, {sr(P)}',
                      f's_cmp_ge_u32 {sr(P)}, 49152',
                      f's_cselect_b32 {sr(D)}, {-49152 & 0xffffffff:#x}, {sr(sT1)}',
                      f's_add_u32 {sr(P)}, {sr(P)}, {sr(D)}',
                      f's_sub_u32 {sr(D)}, {sr(D)}, {sr(sJ)}'])
        return r
    def cost(x):
        if callable(x): return 8
        return 8 if x.startswith('v_exp') else 4
    def pack(stream, ngaps, reserved):
        for cap_extra in range(0, ngaps + 1):
            big = set((i * ngaps) // cap_extra for i in range(cap_extra)) if cap_extra else set()
            out = [[] for _ in range(ngaps)]; k = 0
            for gi in range(ngaps):
                room = (16 if gi in big else 8) - reserved[gi]
                while k < len(stream) and cost(stream[k]) <= room:
                    out[gi].append(stream[k]); room -= cost(stream[k]); k += 1
            if k == len(stream): break
        else:
            out[-1] += stream[k:]
        if cap_extra == 0 and OPT['spread']:
            h = max([gi for gi in range(ngaps) if any(callable(x) for x in out[gi])] + [-1]) + 1
            rest = [x for gi in range(h, ngaps) for x in out[gi]]
            groups = []; room = 0
            for x in rest:
                if cost(x) > room: groups.append([]); room = 8
                groups[-1].append(x); room -= cost(x)
            free = [gi for gi in range(h, ngaps) if reserved[gi] == 0]
            if len(groups) <= len(free):
                for gi in range(h, ngaps): out[gi] = []
                for i, gp in enumerate(groups): out[free[(i * len(free)) // len(groups)]] = gp
        return out
    def block(segs, streams, mode, aux0, nvm, auxat=None, pr=None, prn=3):
        uses = [(si, f) for si in range(len(segs)) for f in range(8)]
        nU = len(uses)
        gaps = []
        for k, (si, f) in enumerate(uses):
            for n_ in range(len(mfmas(segs[si][0], segs[si][1], segs[si][2], f))): gaps.append((k, n_))
        aux = {gp: [] for gp in gaps}; pre = {gp: [] for gp in gaps}
        for k in range(nU - LA):
            s2, f2 = uses[k + LA]
            rr = rd_upd(segs[s2][0], segs[s2][1], f2)
            for i, x in enumerate([x for x in rr if x.startswith('ds_')]): aux[(k, i)].append(x)
            pre[(k + 1, 0)] += [x for x in rr if x.startswith('v_')]
        if mode != 'fin':
            post = [gp for gp in gaps if gp[0] > nU - 8 + SY]
            q = [(f, x) for f in range(LA) for x in rd('V', 0, f)]
            early = [x for f, x in q if f < OPT['nimm']]; q = [(f, x) for f, x in q if f >= OPT['nimm']]
            per = -(-len(q) // len(post))
            for gp in post:
                for _ in range(per):
                    fdone = gp[0] - (nU - 8) - (0 if gp[1] == 1 else 1)
                    if q and q[0][0] <= fdone: aux[gp].append(q.pop(0)[1])
            assert not q, q
        gsel = gaps[OPT['aux0']::OPT['auxs']] if auxat is None else [gp for gp in gaps if gp[0] >= auxat]
        assert len(aux0) <= len(gsel)
        if mode == 'loop' and OPT['gk'] >= 0:
            gsel = gaps[:3] + [gaps[OPT['gk']], gaps[OPT['gv']]]
            assert len(aux0) == 5
            if OPT['g2from'] < 7:
                def cond(grp, late):
                    def f():
                        lb = a.newlabel('k1_site')
                        a.I(f's_cmp_ge_u32 {sr(sCNT)}, {OPT["g2from"]}')
                        a.I(f's_cbranch_scc{0 if late else 1} {lb}')
                        a.many(grp)
                        a.label(lb)
                    return f
                gsel = gsel + [gaps[OPT['gk2']], gaps[OPT['gv2']]]
                aux0 = aux0[:3] + [cond(aux0[3], False), cond(aux0[4], False), cond(aux0[3], True), cond(aux0[4], True)]
        for gp, x in zip(gsel, aux0): aux[gp].append(x)
        fill = {}
        for (sa, sb, skip, ops) in streams:
            gl = [gp for gp in gaps if sa <= uses[gp[0]][0] <= sb]
            gl = gl[skip:len(gl) - OPT['tail']]
            for gp, ol in zip(gl, pack(ops, len(gl), [4 * len(pre[gp]) for gp in gl])):
                fill[gp] = ol
                assert not (any(callable(x) for x in ol) and uses[gp[0]][0] != sa)
        def emit(x):
            if callable(x): x()
            elif isinstance(x, list):
                for y in x: emit(y)
            else: a.I(x)
        for k, (si, f) in enumerate(uses):
            kind, jl, heavy, after = segs[si]
            if f == 0 and OPT['aprio'] and si and not (mode == 'fin' and OPT['finp']): a.I(f's_setprio {pr[si] if pr else len(segs) - 1 - si}')
            for n_, m in enumerate(mfmas(kind, jl, heavy, f)):
                a.I(m)
                emit(pre[(k, n_)]); emit(fill.get((k, n_), [])); emit(aux[(k, n_)])
            if OPT['stamp'] == 3 and mode == 'loop' and f == 7 and si < 3: a.raw(f's_memtime {sr(90 + 2 * si, 2)}')
            if mode != 'fin' and k == nU - 8 + SY:
                if OPT['stamp'] == 3 and mode == 'loop':
                    a.raw('s_mov_b32 s88, s98')
                    a.raw('s_memtime s[96:97]')
                a.I(f's_waitcnt vmcnt({nvm}) lgkmcnt(0)')
                a.I('s_barrier')
                if OPT['aprio']: a.I(f's_setprio {prn}')
                st.sh()
                if OPT['stamp'] == 3 and mode == 'loop': a.raw('s_memtime s[98:99]')
                a.many(early)
                if mode == 'pro' and OPT['lazyj']:
                    for i in range(224, 232, 2): a.I(f'v_mov_b64 {vr(i, 2)}, 0')
            if f == 7 and after: after()
        if mode != 'fin': assert [set(x) for x in a.lg] == lgV, (a.lg, lgV)
    def resc():
        lb = a.newlabel('k1_nors')
        a.I(f's_cmp_lg_u32 {sr(sRS)}, 0')
        a.I(f's_cbranch_scc1 {lb}_s')
        a.label(lb)
        stubs.append((lb, 'k1_rescale'))
    def sm(jl, heavy): return maxops(jl, heavy) + [lambda: check(jl, heavy)] + expops(jl, heavy)
    OFFM0 = 0x30000
    def warm(kind, so):
        return [[f'buffer_load_dwordx4 {vr(vD)}, {sr(sK if kind == "K" else sV, 4)}, {so} offen offset:{j * 1024}{NT("pfp")} lds'] for j in range(4)]
    def prologue(h0):
        a.lg = [set(x) for x in lgK]
        ax = ring_step(True, False) + pro_aux
        block([('K', 0, h0, lambda: (a.many(maxops(0, h0)), check(0, h0))), ('K', 1, False, None)],
              [(1, 1, 0, expops(0, h0))], 'pro', ax, 8 if pro_aux else (4 if OPT['lazyj'] else 63), auxat=0, prn=OPT['px' if h0 else 'py'][1])
    def body_aux():
        r = [[f's_add_u32 {sr(sMK)}, {sr(sM0A)}, {sr(sVPo)}',
              f's_add_u32 {sr(sMV)}, {sr(sM0A)}, {sr(sKPo)}',
              f's_cmp_ge_u32 {sr(sCNT)}, 6',
              f's_cselect_b32 {sr(sMV)}, {OFFM0}, {sr(sMV)}',
              f's_cselect_b32 {sr(sOV)}, 0x1000000, {sr(sOV)}',
              f's_sub_u32 s3, {sr(sCNT)}, 1',
              f's_cmp_ge_u32 s3, 5',
              f's_cselect_b32 m0, {OFFM0}, {sr(sMK)}',
              f's_cselect_b32 s3, 0x1000000, {sr(sOK)}',
              f's_cselect_b32 s4, 0, 16384']]
        r += ring_step(True, True)
        for j in range(4): r.append([f'buffer_load_dwordx4 {vr(vD)}, {sr(sK, 4)}, s3 offen offset:{j * 1024}{APOL("K", j)} lds'] + (['s_add_u32 s3, s3, 3072'] if OPT['lin'] and j < 3 else []))
        r[-1] += [f's_add_u32 {sr(sOK)}, {sr(sOK)}, s4', f's_mov_b32 m0, {sr(sMV)}']
        nv = 4
        if OPT['mk']:
            w = warm('K', 's3')
            w[0] = [f's_mov_b32 s4, {OPT["mk"]}', f's_bitcmp1_b32 s4, {sr(sCNT)}', f's_cselect_b32 s3, {sr(sOK)}, 0x1000000'] + w[0]
            r += w; nv += 4
        if OPT['mv']:
            w = warm('V', 's3')
            w[0] = [f's_add_u32 s3, {sr(sOV)}, 16384', f's_mov_b32 s4, {OPT["mv"]}', f's_bitcmp1_b32 s4, {sr(sCNT)}', f's_cselect_b32 s3, s3, 0x1000000'] + w[0]
            r += w; nv += 4
        r += dma_ins('V')
        G = OPT['grp']
        if G > 1:
            head, d = r[:3], r[3:]
            r = head + [sum(d[i:i + G], []) for i in range(0, len(d), G)]
        return r, nv
    def body(hc, tag, exit_to):
        a.lg = [set(x) for x in lgV]
        hn = not hc
        ax, nvm = body_aux()
        block([('V', 0, hc, resc), ('K', 0, hn, None), ('V', 1, False, resc), ('K', 1, False, None)],
              [(0, 1, 1, sm(1, False)), (2, 3, 1, sm(0, hn))], 'loop', ax, nvm, pr=OPT['px' if hc else 'py'][1:], prn=OPT['py' if hc else 'px'][1])
        a.I(f's_add_u32 {sr(sCNT)}, {sr(sCNT)}, 1')
        a.I(f's_cmp_eq_u32 {sr(sCNT)}, 7')
        a.I(f's_cbranch_scc1 {exit_to}')
    K = K2(a)
    def final(hc):
        a.lg = [set(x) for x in lgV]
        lb = a.newlabel('k1_early')
        if OPT['finp']: a.I(f's_setprio {3 if OPT["finp"] == 1 else 0}')
        a.I(f's_cmp_eq_u32 {sr(sHH)}, 1')
        a.I(f's_cbranch_scc1 {lb}_s')
        a.label(lb)
        stubs.append((lb, 'k1_early'))
        NM8 = negm(2)
        ax = [[f's_lshl_b32 s5, {sr(sHH)}, 15', 's_add_u32 s5, s5, 81920', f's_lshl_b32 s13, {sr(sHH)}, 14',
               f's_lshl_b32 s4, {sr(sR)}, 11', 's_add_u32 s3, s4, s5', 'v_lshl_add_u32 v1, v0, 4, s3'],
              ['v_add_u32 v2, s13, v1', f's_lshl_b32 s3, {sr(sWAVE)}, 9', f'v_lshl_add_u32 {vr(vD)}, v0, 3, s3'],
              [], [f'v_mov_b32 {vr(NM8 + 1)}, {vr(o_(2, 8))}']]
        ax += [[f'ds_write_b128 {"v1" if d < 4 else "v2"}, {vr(o_(2, d), 4)} offset:{(d >> 1) * 8192 + (d & 1) * 1024}'] for d in range(8)]
        ax += [[f'ds_write_b64 {vr(vD)}, {vr(NM8, 2)}']]
        block([('V', 0, hc, resc), ('V', 1, False, None)], [(0, 0, 1, sm(1, False))], 'fin', ax, 0, auxat=8)
        if OPT['aprio']: a.I('s_setprio 0')
    prologue(True)
    a.label('k1_X')
    body(True, 'x', 'k1_finL')
    a.label('k1_Y')
    body(False, 'y', 'k1_finH')
    a.I('s_branch k1_X')
    a.label('k1_proL')
    prologue(False)
    a.I('s_branch k1_Y')

    a.auto = False
    def xg_reduce(x, tmp, op):
        a.I(f'v_mov_b32 {vr(tmp)}, {vr(x)}')
        a.I(f'v_permlane32_swap_b32 {vr(x)}, {vr(tmp)}')
        a.I(f'{op} {vr(x)}, {vr(x)}, {vr(tmp)}')
        a.I(f'v_mov_b32 {vr(tmp)}, {vr(x)}')
        a.I(f'v_permlane16_swap_b32 {vr(x)}, {vr(tmp)}')
        a.I(f'{op} {vr(x)}, {vr(x)}, {vr(tmp)}')
    FREG = {0: mx, 1: tA, 2: mx8}
    def rare(T, vals, scl, canfirst):
        m, tmp = tB, FREG[T]
        a.I(f'v_max3_f32 {vr(m)}, {vr(vals[0])}, {vr(vals[1])}, {vr(vals[2])}')
        for k in range(3, len(vals) - 1, 2): a.I(f'v_max3_f32 {vr(m)}, {vr(m)}, {vr(vals[k])}, {vr(vals[k + 1])}')
        a.I(f'v_max_f32 {vr(m)}, {vr(m)}, {vr(vals[-1])}')
        xg_reduce(m, tmp, 'v_max_f32')
        a.I(f'v_max_f32 {vr(m)}, {sr(scl)}, {vr(m)}')
        for v in vals: a.I(f'v_sub_f32 {vr(v)}, {vr(v)}, {vr(m)}')
        for k in range(4): a.I(f'v_sub_f32 {vr(negm(T) + k)}, {vr(negm(T) + k)}, {vr(m)}')
        lb = a.newlabel('k1_first'); lb2 = a.newlabel('k1_rdone')
        if canfirst:
            a.I(f's_cmp_lg_u32 {sr(scl)}, 0')
            a.I(f's_cbranch_scc1 {lb}')
        a.I(f'v_exp_f32 {vr(tmp)}, -{vr(m)}')
        if T == 2:
            for k in range(36): a.I(f'v_mul_f32 {vr(o_(T, 8) + k)}, {vr(o_(T, 8) + k)}, {vr(tmp)}')
        else:
            a.I(f's_mov_b32 {sr(sRS)}, 1')
        if canfirst: a.label(lb)
    for jl in range(2):
        a.label(f'k1_rare{jl}')
        for T in range(2): rare(T, [s_(T, jl) + k for k in range(8)], sCL, jl == 0)
        a.I(f's_mov_b32 {sr(sTHR)}, {THRV}')
        a.I(f's_mov_b32 {sr(sCL)}, 0')
        a.I(f's_setpc_b64 {sr(sLINK, 2)}')
    a.label('k1_rare8')
    rare(2, [s_(2, 0) + k for k in range(8)], sCL8, True)
    a.I(f's_mov_b32 {sr(sTHR8)}, {THRV}')
    a.I(f's_mov_b32 {sr(sCL8)}, 0')
    a.I(f's_setpc_b64 {sr(sLINK, 2)}')
    a.label('k1_early')
    if OPT['finp']: a.I(f's_setprio {0 if OPT["finp"] == 1 else 3}')
    K.early()
    a.I(f's_setpc_b64 {sr(sLINK, 2)}')
    a.label('k1_rescale')
    for T in range(2):
        for k in range(36): a.I(f'v_mul_f32 {vr(o_(T, 8) + k)}, {vr(o_(T, 8) + k)}, {vr(FREG[T])}')
    a.I(f's_mov_b32 {sr(sRS)}, 0')
    a.I(f's_setpc_b64 {sr(sLINK, 2)}')
    a.auto = True

    a.label('k1_finH')
    final(True)
    a.I('s_branch k1_epi')
    pos = len(a.ins)
    a.label('k1_finL')
    final(False)
    tailcode = a.ins[pos:]; del a.ins[pos:]
    for lb, fn in stubs:
        a.label(lb + '_s')
        a.raw(f's_call_b64 {sr(sLINK, 2)}, {fn}')
        a.raw(f's_branch {lb}')
    a.ins += tailcode
    a.label('k1_epi')
    a.lg = []
    st.cyc()
    e0, e1, e2, e3, e4 = 3, 4, 5, 6, 8
    NM8 = negm(2)
    a.lg = [set()]
    a.I(f'v_lshlrev_b32 {vr(e0)}, 4, v0')
    a.I(f's_lshl_b32 s3, {sr(sHH)}, 11')
    a.I(f'v_lshl_add_u32 {vr(e2)}, v0, 3, s3')
    a.I(f's_lshl_b32 s6, {sr(sR)}, 13')
    a.I('s_add_u32 s6, s6, s5')
    a.I(f's_cmp_ge_u32 {sr(sR)}, 2')
    a.I('s_cselect_b32 s13, s13, 0')
    a.I('s_add_u32 s6, s6, s13')
    a.I(f'v_add_u32 {vr(e1)}, s6, {vr(e0)}')
    R8 = S
    a.I(f'v_mov_b32 v2, {vr(e1)}')
    def bar1():
        a.I(f's_cmp_lg_u32 {sr(sHH)}, 0')
        a.I('s_cbranch_scc1 k1_nocs')
        K.comp_setup()
        a.label('k1_nocs')
        a.I('s_waitcnt lgkmcnt(0)')
        a.I('s_barrier')
        for sl in range(4): a.I(f'ds_read_b64 {vr(R8 + 32 + 2 * sl, 2)}, {vr(e2)} offset:{sl * 512}')
        for k in range(8): a.I(f'ds_read_b128 {vr(R8 + 4 * k, 4)}, v2 offset:{k * 1024}')
    if OPT['b1at'] < 0: bar1()
    flag_srd(sO)
    a.I(f's_cmp_eq_u32 {sr(sHH)}, 0')
    a.I('s_cbranch_scc1 k1_nosnap')
    K.snapshot()
    a.label('k1_nosnap')
    a.I('s_load_dwordx2 s[10:11], s[0:1], 80')
    sOO = sV
    a.I(f's_lshl_b32 s3, {sr(sBLK)}, 3')
    a.I(f's_add_u32 s3, s3, {sr(sB)}')
    a.I(f's_mul_i32 s3, s3, {O_SLICE}')
    a.I(f's_mul_i32 s6, {sr(sHP)}, 73728')
    a.I('s_add_u32 s3, s3, s6')
    a.I(f's_add_u32 {sr(sOO)}, s16, s3')
    a.I(f's_addc_u32 {sr(sOO + 1)}, s17, 0')
    a.I(f's_mov_b32 {sr(sOO + 2)}, 73728')
    a.I(f's_mov_b32 {sr(sOO + 3)}, 0x20000')
    a.I(f's_mul_i32 s3, {sr(sHH)}, 36864')
    a.I(f'v_add_u32 {vr(e3)}, s4, {vr(e0)}')
    def fin(src, scale2, voff, soff, imm):
        for k in range(4): a.I(f'v_pk_mul_f32 {vr(src + 2 * k, 2)}, {vr(src + 2 * k, 2)}, {vr(scale2, 2)}')
        for k in range(4): a.I(f'v_cvt_pk_bf16_f32 {vr(src + k)}, {vr(src + 2 * k)}, {vr(src + 2 * k + 1)}')
        a.I(f'buffer_store_dwordx4 {vr(src, 4)}, {vr(voff)}, {sr(sOO, 4)}, {soff} offen offset:{imm}{NT("ont")}')
    for T in range(2):
        for k in range(2): a.I(f'v_rcp_f32 {vr(o_(T, 8) + k)}, {vr(o_(T, 8) + k)}')
    a.I(f's_add_u32 s6, s3, {K.XB}')
    a.I(f'v_add_u32 {vr(e1)}, s6, {vr(e3)}')
    a.I('s_mov_b32 s6, s3')
    def xw(P): return [f'ds_write_b128 {vr(e1)}, {vr(o_(T, 2 * P), 4)} offset:{P * 9216 + T * 1024}' for T in range(2)]
    for P in range(4):
        for T in range(2): fin(o_(T, 2 * P), o_(T, 8), e3, 's6', T * 1024)
        if P < 3: a.I('s_add_u32 s6, s6, 9216')
        if P == OPT['b1at']: bar1()
        if P == OPT['b2at']:
            a.I('s_waitcnt lgkmcnt(0)')
            a.I('s_barrier')
            for Q_ in range(P): a.many(xw(Q_))
        if P >= OPT['b2at']: a.many(xw(P))
    K.ids()
    a.I(f's_mul_i32 s6, {sr(sR)}, 9216')
    a.I('s_add_u32 s6, s6, s3')
    a.I(f'v_add_u32 {vr(e3)}, 8192, {vr(e0)}')
    nm = [R8 + 32 + 2 * i for i in range(4)]
    ll = [R8 + 33 + 2 * i for i in range(4)]
    a.I(f'v_min3_f32 {vr(e0)}, {vr(nm[0])}, {vr(nm[1])}, {vr(nm[2])}')
    a.I(f'v_min_f32 {vr(e0)}, {vr(e0)}, {vr(nm[3])}')
    for i in range(4): a.I(f'v_sub_f32 {vr(nm[i])}, {vr(e0)}, {vr(nm[i])}')
    for i in range(4): a.I(f'v_exp_f32 {vr(nm[i])}, {vr(nm[i])}')
    a.I(f'v_mul_f32 {vr(e0)}, {vr(ll[0])}, {vr(nm[0])}')
    for i in range(1, 4): a.I(f'v_fmac_f32 {vr(e0)}, {vr(ll[i])}, {vr(nm[i])}')
    a.I(f'v_rcp_f32 {vr(e4)}, {vr(e0)}')
    a.I(f'v_rcp_f32 {vr(e4 + 1)}, {vr(e0)}')
    for k in range(8): a.I(f'v_mul_f32 {vr(R8 + k)}, {vr(R8 + k)}, {vr(nm[0])}')
    for i in range(1, 4):
        for k in range(8): a.I(f'v_fmac_f32 {vr(R8 + k)}, {vr(R8 + 8 * i + k)}, {vr(nm[i])}')
    fin(R8, e4, e3, 's6', 0)
    a.I(f's_add_u32 s6, s6, {K.XB}')
    a.I(f'v_add_u32 {vr(e3)}, s6, {vr(e3)}')
    a.I(f'ds_write_b128 {vr(e3)}, {vr(R8, 4)}')
    if OPT['stamp'] == 3: st.n = 12
    else: st.cyc(); st.real()
    K.st1 = st
    if OPT.get('qst'): st.on = True
    return K.main()

class K2:
    sO, sW, sD, sE, sF = 20, 24, 28, 20, 36
    sWAVE, sR, sLD, sBLK, sB, sHP, sN8, sKH, sKC = 40, 41, 42, 43, 44, 45, 67, 64, 62
    sM0W, sM0X, sOW, sOX, sSL, sCNT, sT0, sST, sROT, sH, sNH, sKS = 55, 48, 49, 50, 51, 52, 53, 54, 65, 56, 57, 58
    sSTX, sFO, sPC, sHPc = 59, 60, 61, 66
    sRW, sRX, sWB, sXB, sWEX = 68, 72, 54, 59, 8
    sLINK = 8
    vWp, vX, vL16, vFA, vFV, vDW, vDX, vZ, vCT = 40, 42, 44, 34, 35, 28, 32, 38, 39
    g, t0, t1, t2 = 45, 46, 47, 28
    ACC8 = [48, 56, 64, 116, 124, 132, 140, 220, 228]
    TMP8 = [196, 204, 212, 236, 244, 4, 12, 20, 32]
    FQ = [76 + 4 * i for i in range(10)] + [148 + 4 * i for i in range(12)]
    XB = 81920
    @staticmethod
    def wslot(i): return 16384 + ((i + 1) & 3) * 16384
    def __init__(self, a):
        self.a = a; self.st = Stamper(a, 1)
    def early(self):
        a = self.a; K = self
        sW, sR = K.sW, K.sR
        t0, t1 = 36, 37
        a.I(f's_lshr_b32 s12, {sr(sR)}, 1')
        a.I(f's_xor_b32 {sr(K.sH)}, {sr(sR)}, s12')
        a.I(f's_and_b32 {sr(K.sH)}, {sr(K.sH)}, 1')
        a.I(f's_lshl_b32 {sr(K.sH)}, {sr(K.sH)}, 1')
        a.I(f's_or_b32 {sr(K.sH)}, {sr(K.sH)}, s12')
        a.I(f'v_and_b32 {vr(t0)}, 7, v0')
        a.I(f'v_xor_b32 {vr(t0)}, {sr(K.sH)}, {vr(t0)}')
        a.I(f'v_bfe_u32 {vr(t1)}, v0, 4, 1')
        a.I(f'v_lshlrev_b32 {vr(t1)}, 2, {vr(t1)}')
        a.I(f'v_xor_b32 {vr(t0)}, {vr(t0)}, {vr(t1)}')
        a.I(f's_and_b32 s12, {sr(K.sHP)}, 1')
        a.I('s_lshl_b32 s12, s12, 7')
        a.I(f'v_lshl_add_u32 {vr(t0)}, {vr(t0)}, 4, s12')
        a.I(f'v_lshrrev_b32 {vr(t1)}, 5, v0')
        a.I(f'v_lshl_add_u32 {vr(t0)}, {vr(t1)}, 15, {vr(t0)}')
        a.I(f'v_bfe_u32 {vr(t1)}, v0, 3, 2')
        a.I(f's_lshl_b32 s12, {sr(sR)}, 2')
        a.I(f'v_add_u32 {vr(t1)}, s12, {vr(t1)}')
        a.I(f'v_lshl_add_u32 {vr(K.vDW)}, {vr(t1)}, 11, {vr(t0)}')
        a.I(f's_lshl_b32 {sr(K.sM0W)}, {sr(sR)}, 12')
        a.I(f'v_add_u32 {vr(K.vDW + 1)}, {65536 - 1024}, {vr(K.vDW)}')
        a.I(f'v_xor_b32 {vr(K.vDW + 2)}, 0x80, {vr(K.vDW)}')
        a.I(f'v_xor_b32 {vr(K.vDW + 3)}, 0x80, {vr(K.vDW + 1)}')
        a.I(f's_lshl_b32 {sr(K.sWB)}, {sr(K.sHP)}, 19')
        a.I(f's_lshr_b32 s12, {sr(K.sHP)}, 1')
        a.I(f's_lshl_b32 s12, s12, 8')
        a.I(f's_add_u32 {sr(sW)}, s18, s12')
        a.I(f's_addc_u32 {sr(sW + 1)}, s19, 0')
        a.I(f's_sub_u32 {sr(sW + 2)}, 8388608, s12')
        a.I(f's_mov_b32 {sr(sW + 3)}, 0x20000')
        a.I(f's_mov_b32 {sr(K.sD)}, s100')
        a.I(f's_mov_b32 {sr(K.sD + 1)}, s101')
        a.I(f's_mov_b32 {sr(K.sD + 2)}, 256')
        a.I(f's_mov_b32 {sr(K.sD + 3)}, 0x20000')
        a.I(f'v_mov_b32 {vr(K.vZ)}, 0')
        a.I(f'buffer_load_dword {vr(K.vCT)}, {vr(K.vZ)}, {sr(K.sD, 4)}, 0 offen sc1')
        for i in range(3): K.stw(i, own=True)
        a.I(f's_lshl_b32 s12, {sr(K.sBLK)}, 3')
        a.I(f's_add_u32 s12, s12, {sr(K.sB)}')
        a.I(f's_lshl_b32 {sr(K.sFO)}, s12, 11')
        a.I(f's_add_u32 {sr(K.sFO)}, {sr(K.sFO)}, 65536')
        a.I(f'v_and_b32 {vr(K.vFA)}, 15, v0')
        a.I(f'v_lshlrev_b32 {vr(K.vFA)}, 7, {vr(K.vFA)}')
    def snapshot(self):
        a = self.a; K = self
        a.I(f's_mov_b32 {sr(K.sPC)}, 0')
        a.I('s_movk_i32 s12, 0x100')
        a.I('s_waitcnt vmcnt(12)')
        a.label('k2_allin')
        a.I(f'v_cmp_le_u32 vcc, s12, {vr(K.vCT)}')
        a.I('s_cbranch_vccnz k2_allok ; POLL')
        a.I(f'buffer_load_dword {vr(K.vCT)}, {vr(K.vZ)}, {sr(K.sD, 4)}, 0 offen sc1')
        a.I(f's_add_u32 {sr(K.sPC)}, {sr(K.sPC)}, 1')
        a.I('s_waitcnt vmcnt(0)')
        a.I(f's_cmp_lt_u32 {sr(K.sPC)}, {OPT["pollmax"]}')
        a.I('s_cbranch_scc1 k2_allin')
        a.label('k2_allok')
        a.I(K.flagload())
    def publish(self, cond):
        a = self.a; K = self
        lb = a.newlabel('k2_nopub')
        a.I(f's_cmp_lg_u32 {cond}')
        a.I(f's_cbranch_scc1 {lb}')
        a.I('s_mov_b64 exec, 1')
        a.I(f'buffer_store_dword {vr(K.vCT)}, {vr(K.vZ)}, {sr(K.sF, 4)}, s4 offen sc1')
        a.I('s_mov_b64 exec, -1')
        a.label(lb)
    def ids(self):
        a = self.a; K = self
        a.I(f's_and_b32 {sr(K.sKH)}, {sr(K.sHP)}, 1')
        a.I(f's_lshr_b32 {sr(K.sN8)}, {sr(K.sHP)}, 1')
        a.I(f'v_lshlrev_b32 {vr(K.vL16)}, 4, v0')
    def comp_setup(self):
        a = self.a; K = self
        sKS, sNH, sR, sE, g, t0, t1, vWp, vX, vL16, XB = K.sKS, K.sNH, K.sR, K.sE, K.g, K.t0, K.t1, K.vWp, K.vX, K.vL16, K.XB
        a.I(f's_and_b32 {sr(sKS)}, {sr(sR)}, 1')
        a.I(f's_lshr_b32 {sr(sNH)}, {sr(sR)}, 1')
        a.I(f'v_lshrrev_b32 {vr(g)}, 4, v0')
        a.I(f'v_lshrrev_b32 {vr(t1)}, 1, {vr(g)}')
        a.I(f'v_xor_b32 {vr(t0)}, {vr(g)}, {vr(t1)}')
        a.I(f'v_and_b32 {vr(t0)}, 1, {vr(t0)}')
        a.I(f'v_lshl_or_b32 {vr(t0)}, {vr(t0)}, 1, {vr(t1)}')
        a.I(f'v_bfe_u32 {vr(t1)}, v0, 1, 1')
        a.I(f'v_xor_b32 {vr(t0)}, {vr(t0)}, {vr(t1)}')
        a.I(f'v_lshlrev_b32 {vr(t0)}, 4, {vr(t0)}')
        a.I(f'v_lshl_add_u32 {vr(t0)}, {vr(g)}, 12, {vr(t0)}')
        a.I(f'v_bfe_u32 {vr(t1)}, v0, 2, 2')
        a.I(f'v_lshl_add_u32 {vr(t0)}, {vr(t1)}, 7, {vr(t0)}')
        a.I(f'v_bfe_u32 {vr(t1)}, v0, 3, 1')
        a.I(f'v_xor_b32 {vr(t1)}, {sr(sKS)}, {vr(t1)}')
        a.I(f'v_lshl_add_u32 {vr(t0)}, {vr(t1)}, 6, {vr(t0)}')
        a.I(f'v_and_b32 {vr(t1)}, 1, v0')
        a.I(f'v_lshl_add_u32 {vr(t0)}, {vr(t1)}, 3, {vr(t0)}')
        a.I(f's_lshl_b32 s12, {sr(sNH)}, 11')
        a.I('s_add_u32 s12, s12, 16384')
        a.I(f'v_add_u32 {vr(vWp)}, s12, {vr(t0)}')
        a.I(f'v_xor_b32 {vr(vWp + 1)}, 32, {vr(vWp)}')
        a.I(f'v_lshlrev_b32 {vr(vL16)}, 4, v0')
        a.I(f'v_add_u32 {vr(vX)}, {XB}, {vr(vL16)}')
        a.I(f'v_add_u32 {vr(vX + 1)}, {XB + 9216}, {vr(vL16)}')
        for b in K.ACC8:
            for i in range(0, 8, 2): a.I(f'v_mov_b64 {vr(b + i, 2)}, 0')
        a.I(f's_add_u32 {sr(sE)}, s16, {EXCH_OFF}')
        a.I(f's_addc_u32 {sr(sE + 1)}, s17, 0')
        a.I(f's_mov_b32 {sr(sE + 2)}, {256 * 36864}')
        a.I(f's_mov_b32 {sr(sE + 3)}, 0x20000')
        a.I(f's_cmp_eq_u32 {sr(sNH)}, 0')
        a.I('s_cselect_b32 s12, 1, 0')
        a.I(f's_cselect_b32 {sr(K.sPC)}, 9, 7')
        a.I('s_xor_b32 s12, s2, s12')
        a.I('s_lshl_b32 s12, s12, 1')
        a.I(f's_add_u32 s12, s12, {sr(sKS)}')
        a.I(f's_lshl_b32 {sr(K.sT0)}, s12, 7')
        a.I(f's_mul_i32 {sr(K.sOX)}, s12, 18432')
        a.I(f'v_mov_b32 {vr(t0)}, 0')
        a.I(f's_mov_b32 {sr(K.sSL)}, 0')
    def late(self):
        a = self.a; K = self
        sO, sR, sB, sBLK = K.sO, K.sR, K.sB, K.sBLK
        a.I(f's_lshr_b32 s12, {sr(K.sHP)}, 2')
        a.I(f's_add_u32 {sr(K.sROT)}, {sr(sB)}, s12')
        a.I(f's_and_b32 {sr(K.sROT)}, {sr(K.sROT)}, {OPT["rot2"]}')
        a.I(f'v_add_u32 {vr(K.vDX)}, {sr(K.sM0W)}, {vr(K.vL16)}')
        a.I(f's_lshl_b32 {sr(K.sM0X)}, {sr(sR)}, 10')
        a.I(f's_add_u32 {sr(K.sM0X)}, {sr(K.sM0X)}, 16384')
        a.I(f'v_add_u32 {vr(K.vDX + 1)}, {sr(K.sM0X)}, {vr(K.vL16)}')
        for i in range(4):
            a.I(f's_add_u32 s12, {sr(K.sROT)}, {i}')
            a.I('s_and_b32 s12, s12, 3')
            a.I(f's_lshl_b32 {sr(K.sRW + i)}, s12, 17')
            a.I(f's_mul_i32 {sr(K.sRX + i)}, s12, 18432')
        a.I(f's_mov_b32 {sr(K.sKC)}, -1')
        a.I(f's_lshl_b32 s12, {sr(sBLK)}, 3')
        a.I(f's_add_u32 s12, s12, {sr(sB)}')
        a.I(f's_mul_i32 s12, s12, {O_SLICE}')
        a.I(f's_add_u32 {sr(sO)}, s16, s12')
        a.I(f's_addc_u32 {sr(sO + 1)}, s17, 0')
        a.I(f's_mov_b32 {sr(sO + 2)}, {O_SLICE}')
        a.I(f's_mov_b32 {sr(sO + 3)}, 0x20000')
        a.I(f's_lshl_b32 s4, {sr(K.sHP)}, 7')
        a.I(f's_add_u32 s4, s4, {sr(K.sFO)}')
        a.I(f'v_mov_b32 {vr(K.vCT)}, 1')
        a.I(f's_lshl_b32 s5, {sr(sR)}, 4')
        a.I('s_add_u32 s5, s5, 1')
    def stw(self, i, own=False, tail=False):
        a = self.a; K = self
        a.I(f's_add_u32 m0, {sr(K.sM0W)}, {K.wslot(i)}')
        a.I(f's_add_u32 {sr(K.sOW)}, {sr(K.sWB)}, {i * 131072 if own else sr(K.sRW + i)}')
        for u in range(2 if tail else 4):
            if u == 2: a.I(f's_add_u32 m0, {sr(K.sM0W)}, {K.wslot(i) + 2048}')
            a.I(f'buffer_load_dwordx4 {vr(K.vDW + u)}, {sr(K.sW, 4)}, {sr(K.sOW)} offen offset:{(u & 1) * 1024}{NT("wont")} lds')
    def stx(self, i):
        a = self.a; K = self
        lb = a.newlabel('k2_skipx')
        a.I(f's_add_u32 m0, {sr(K.sM0W)}, {K.XB + i * 18432}')
        a.I(f's_add_u32 {sr(K.sOX)}, {sr(K.sXB)}, {sr(K.sRX + i)}')
        for j in range(4): a.I(f'buffer_load_dwordx4 {vr(K.vDX)}, {sr(K.sO, 4)}, {sr(K.sOX)} offen offset:{j * 1024}{NT("oldf")} lds')
        a.I(f's_add_u32 m0, {sr(K.sM0X)}, {K.XB + i * 18432}')
        a.I(f's_cmp_ge_u32 {sr(K.sR)}, 2')
        a.I(f's_cbranch_scc1 {lb}')
        a.I(f'buffer_load_dwordx4 {vr(K.vDX + 1)}, {sr(K.sO, 4)}, {sr(K.sOX)} offen{NT("oldf")} lds')
        a.label(lb)
    def ready(self):
        a = self.a; K = self
        l1, l2 = a.newlabel('k2_chk'), a.newlabel('k2_go')
        a.I(f's_mov_b32 {sr(K.sPC)}, 0')
        a.label(l1)
        a.I(f'v_cmp_eq_u32 vcc, 1, {vr(K.vFV)}')
        a.I(f's_bitcmp1_b32 vcc_lo, {sr(K.sHPc)}')
        a.I(f's_cbranch_scc1 {l2} ; TAKEN')
        a.I(K.flagload())
        a.I(f's_add_u32 {sr(K.sPC)}, {sr(K.sPC)}, 1')
        a.I('s_waitcnt vmcnt(0)')
        a.I(f's_cmp_lt_u32 {sr(K.sPC)}, {OPT["pollmax"]}')
        a.I(f's_cbranch_scc1 {l1}')
        a.label(l2)
    def fl1(self, vt):
        n = self.st1.n; self.st1.flush(16, self.sWAVE, self.sW, vt); self.st1.n = n
    def nextseg(self, tail=False):
        a = self.a; K = self
        if tail:
            a.I(f's_cmp_eq_u32 {sr(K.sN8)}, 7')
            a.I('s_cselect_b32 s12, 5, 7')
            a.I(f's_add_u32 {sr(K.sHPc)}, s12, {sr(K.sCNT)}')
        else:
            a.I(f's_add_u32 {sr(K.sKC)}, {sr(K.sKC)}, 1')
            a.I(f's_cmp_eq_u32 {sr(K.sKC)}, {sr(K.sN8)}')
            a.I(f's_addc_u32 {sr(K.sKC)}, {sr(K.sKC)}, 0')
            a.I(f's_lshl_b32 {sr(K.sHPc)}, {sr(K.sKC)}, 1')
            a.I(f's_add_u32 {sr(K.sHPc)}, {sr(K.sHPc)}, {sr(K.sKH)}')
        a.I(f's_lshl_b32 {sr(K.sWB)}, {sr(K.sHPc)}, 19')
        a.I(f's_mul_i32 {sr(K.sXB)}, {sr(K.sHPc)}, 73728')
    def flagload(self): return f'buffer_load_dword {vr(self.vFV)}, {vr(self.vFA)}, {sr(self.sF, 4)}, {sr(self.sFO)} offen sc1 ; NOCHECK'
    def main(self):
        a = self.a; st = self.st; K = self
        MF = 'v_mfma_f32_16x16x32_bf16'
        sO, sW, sD, sE, sF, sR, sB, sN8, sKH, sBLK = K.sO, K.sW, K.sD, K.sE, K.sF, K.sR, K.sB, K.sN8, K.sKH, K.sBLK
        sOW, sOX, sSL, sCNT, sT0, sST, sSTX, sPC, sHPc, sNH, sKS = K.sOW, K.sOX, K.sSL, K.sCNT, K.sT0, K.sST, K.sSTX, K.sPC, K.sHPc, K.sNH, K.sKS
        vWp, vX, vDW, vL16, g, t0, t1, t2 = K.vWp, K.vX, K.vDW, K.vL16, K.g, K.t0, K.t1, K.t2
        XB = K.XB
        def acc(t, j): return K.ACC8[t] + 4 * j
        def tmp(k): return K.TMP8[k >> 1] + 4 * (k & 1)
        st.real(); st.cyc()
        a.I(f's_cmp_eq_u32 {sr(K.sLD)}, 0')
        a.I('s_cbranch_scc1 k2_comp')
        if OPT['lprio']: a.I(f's_setprio {OPT["lprio"]}')
        K.stw(3, own=True)
        a.I('s_waitcnt vmcnt(13) lgkmcnt(0)')
        a.I('s_barrier')
        st0 = st.n
        st.cyc()
        K.late()
        a.I(f's_mov_b32 {sr(sCNT)}, 1')
        K.nextseg()
        a.I('s_barrier')
        if OPT['fast1']:
            a.I(f'v_cmp_eq_u32 vcc, 1, {vr(K.vFV)}')
            a.I(f's_bitcmp1_b32 vcc_lo, {sr(sHPc)}')
            a.I('s_cbranch_scc1 k2_fast ; EITHER')
        K.stw(0)
        a.I('s_barrier')
        K.stw(1)
        a.I(K.flagload())
        a.I('s_waitcnt vmcnt(9)')
        a.I('s_barrier')
        K.publish(f'{sr(sR)}, 0')
        K.stw(2)
        a.I('s_waitcnt vmcnt(5)')
        K.ready()
        K.stx(0); K.stx(1); K.stx(2)
        a.I('s_waitcnt vmcnt(8)')
        a.I('s_barrier')
        a.I(K.flagload())
        K.stw(3); K.stx(3)
        a.I(f's_mov_b32 {sr(sCNT)}, 2')
        a.I('s_waitcnt vmcnt(12)')
        for tail in (False, True):
            a.label('k2_tloop' if tail else 'k2_lloop')
            K.nextseg(tail)
            for i in range(4):
                a.I(f's_waitcnt vmcnt({12 if tail else 16})')
                a.I('s_barrier')
                if i == 0 and not tail: a.label('k2_fast')
                if i == 2 and not tail: K.publish(f'{sr(sCNT)}, s5')
                K.stw(i, tail=tail)
                if i == 0: K.ready()
                if i == 1: a.I(K.flagload())
                K.stx(i)
            a.I(f's_add_u32 {sr(sCNT)}, {sr(sCNT)}, 1')
            a.I(f's_cmp_lt_u32 {sr(sCNT)}, {9 if tail else 7}')
            a.I(f's_cbranch_scc1 {"k2_tloop" if tail else "k2_lloop"}')
        for nv in (12, 6, 0, 0):
            a.I(f's_waitcnt vmcnt({nv})')
            a.I('s_barrier')
        st.cyc(); st.cyc(); st.cyc(); st.cyc(); st.real()
        st.flush(16, K.sWAVE, sW, t0); K.fl1(t0)
        a.I('s_endpgm')
        a.label('k2_comp')
        st.n = st0
        a.lg = []
        FS = (K.FQ[:11], K.FQ[11:])
        def reads(F, slot, ks):
            w = [f'ds_read_b64_tr_b16 {vr(F[j] + 2 * h, 2)}, {vr(vWp + j)} offset:{K.wslot(slot) - 16384 + ks * 1024 + h * 512}' for j in range(2) for h in range(2)]
            x = [f'ds_read_b128 {vr(F[2 + t], 4)}, {vr(vX + ks)} offset:{slot * 18432 + t * 1024}' for t in range(9)]
            return w[:2] + x[:1] + w[2:] + x[1:]
        G2 = OPT['gate2']
        def kstep(Fc, Fn, nslot, nks, gated, vm=''):
            rd_ = reads(Fn, nslot, nks)
            if not gated: a.I(f's_waitcnt lgkmcnt({OPT["lw2"]})')
            k = 0
            for t in range(9):
                for j in range(2):
                    if gated and k == G2:
                        a.I(f's_waitcnt {vm}lgkmcnt(0)')
                        a.I('s_barrier')
                    if not gated and k == 6: a.I(f's_waitcnt lgkmcnt(6)')
                    a.I(f'{MF} {vr(acc(t, j), 4)}, {vr(Fc[j], 4)}, {vr(Fc[2 + t], 4)}, {vr(acc(t, j), 4)}')
                    if k >= (G2 if gated else 0) and rd_: a.I(rd_.pop(0))
                    k += 1
            assert not rd_
        if OPT['cprio']: a.I(f's_setprio {OPT["cprio"]}')
        a.I('s_waitcnt lgkmcnt(0)')
        a.I('s_barrier')
        st.cyc()
        a.many(reads(FS[0], 0, 0))
        a.I(f's_mov_b32 {sr(sCNT)}, 0')
        lg0 = [set(x) for x in a.lg]
        a.label('k2_cloop')
        for i in range(4):
            if OPT['kpf'] and i in (OPT['kpf'] - 1, OPT['kpf']):
                a.I(f's_cmp_eq_u32 {sr(sCNT)}, 8')
                a.I(f's_cbranch_scc1 k2_e{i}')
                a.label(f'k2_r{i}')
            kstep(FS[0], FS[1], i, 1, False)
            kstep(FS[1], FS[0], (i + 1) & 3, 0, True, 'vmcnt(0) ' if i == 2 else '')
        assert [set(x) for x in a.lg] == lg0
        st.sh()
        a.I(f's_add_u32 {sr(sCNT)}, {sr(sCNT)}, 1')
        a.I(f's_cmp_lt_u32 {sr(sCNT)}, {sr(sPC)}')
        a.I('s_cbranch_scc1 k2_cloop')
        st.cyc()
        XP = NT('xpol')
        a.I(f's_cmp_eq_u32 {sr(sNH)}, 0')
        a.I('s_cbranch_scc1 k2_keep')
        SB = {1: (8,), 2: (5, 11), 0: ()}[OPT['ssplit']]
        H = OPT['xbf']
        NX = 9 if H else 18
        if H: SB = ()
        for k in range(NX):
            src = acc(k, 0) if H else acc(k >> 1, k & 1)
            if H:
                for q in range(4): a.I(f'v_cvt_pk_bf16_f32 {vr(src + q)}, {vr(src + 2 * q)}, {vr(src + 2 * q + 1)}')
            a.I(f'buffer_store_dwordx4 {vr(src, 4)}, {vr(vL16)}, {sr(sE, 4)}, {sr(sOX)} offen offset:{(k & 3) * 1024}{XP}')
            if k & 3 == 3: a.I(f's_add_u32 {sr(sOX)}, {sr(sOX)}, 4096')
            if k in SB: a.I('s_barrier')
        stn = st.n
        st.cyc()
        for _ in range(OPT['sbar']): a.I('s_barrier')
        a.I(f'v_mov_b32 {vr(t1)}, 1')
        a.I('s_mov_b64 exec, 1')
        a.I('s_waitcnt vmcnt(0)')
        st.cyc()
        a.I(f'buffer_store_dword {vr(t1)}, {vr(t0)}, {sr(sF, 4)}, {sr(sT0)} offen{XP}')
        a.I('s_mov_b64 exec, -1')
        for _ in range(8 - len(SB) - OPT['sbar']): a.I('s_barrier')
        st.cyc(); st.real()
        st.flush(16, K.sWAVE, sW, t0); K.fl1(t0)
        a.I('s_endpgm')
        def xloads():
            for k in range(NX):
                a.I(f'buffer_load_dwordx4 {vr(tmp(k), 4)}, {vr(vL16)}, {sr(sE, 4)}, {sr(sOX)} offen offset:{(k & 3) * 1024}{XP}')
                if k & 3 == 3: a.I(f's_add_u32 {sr(sOX)}, {sr(sOX)}, 4096')
        if OPT['kpf']:
            a.auto = False
            i = OPT['kpf']
            a.label(f'k2_e{i - 1}')
            a.I(f'buffer_load_dword {vr(t1)}, {vr(t0)}, {sr(sF, 4)}, {sr(sT0)} offen{XP}')
            a.I(f's_branch k2_r{i - 1}')
            a.label(f'k2_e{i}')
            a.I('s_waitcnt vmcnt(0)')
            a.I(f'v_cmp_eq_u32 vcc, 1, {vr(t1)}')
            a.I(f's_cbranch_vccz k2_r{i}')
            xloads()
            a.I(f's_mov_b32 {sr(sSL)}, 1')
            a.I(f's_branch k2_r{i}')
            a.auto = True
        a.label('k2_keep')
        st.n = stn
        a.I(f's_mov_b32 {sr(sCNT)}, 0')
        st.cyc()
        a.I(f's_cmp_eq_u32 {sr(sSL)}, 1')
        a.I('s_cbranch_scc1 k2_have')
        a.label('k2_poll')
        a.I(f'buffer_load_dword {vr(t1)}, {vr(t0)}, {sr(sF, 4)}, {sr(sT0)} offen{XP}')
        a.I(f's_add_u32 {sr(sCNT)}, {sr(sCNT)}, 1')
        a.I('s_waitcnt vmcnt(0)')
        a.I(f'v_cmp_eq_u32 vcc, 1, {vr(t1)}')
        a.I('s_cbranch_vccnz k2_got ; POLL')
        a.I(f's_cmp_lt_u32 {sr(sCNT)}, {OPT["pollmax"]}')
        a.I('s_cbranch_scc1 k2_poll')
        a.label('k2_got')
        xloads()
        a.label('k2_have')
        st.cyc()
        a.I(f's_mul_i32 s3, {sr(sB)}, {144 * 4096}')
        a.I(f's_add_u32 {sr(sD)}, s10, s3')
        a.I(f's_addc_u32 {sr(sD + 1)}, s11, 0')
        a.I(f's_mov_b32 {sr(sD + 2)}, {144 * 4096}')
        a.I(f's_mov_b32 {sr(sD + 3)}, 0x20000')
        a.I(f'v_and_b32 {vr(t2)}, 15, v0')
        a.I(f'v_lshlrev_b32 {vr(t2)}, 12, {vr(t2)}')
        a.I(f'v_lshl_add_u32 {vr(t2)}, {vr(g)}, 4, {vr(t2)}')
        a.I(f's_lshl_b32 s3, {sr(sBLK)}, 11')
        a.I(f's_lshl_b32 s4, {sr(K.sHP)}, 7')
        a.I('s_add_u32 s3, s3, s4')
        a.I(f's_lshl_b32 s4, {sr(sKS)}, 6')
        a.I('s_add_u32 s3, s3, s4')
        for t in range(9):
            d = acc(t, 0)
            if H:
                a.I('s_waitcnt vmcnt(8)')
                for k in range(4):
                    a.I(f'v_lshlrev_b32 {vr(K.TMP8[8] + 2 * k)}, 16, {vr(tmp(t) + k)}')
                    a.I(f'v_and_b32 {vr(K.TMP8[8] + 1 + 2 * k)}, 0xffff0000, {vr(tmp(t) + k)}')
                for k in range(4): a.I(f'v_pk_add_f32 {vr(d + 2 * k, 2)}, {vr(d + 2 * k, 2)}, {vr(K.TMP8[8] + 2 * k, 2)}')
            else:
                a.I(f's_waitcnt vmcnt({16 - t})')
                for k in range(4): a.I(f'v_pk_add_f32 {vr(d + 2 * k, 2)}, {vr(d + 2 * k, 2)}, {vr(K.TMP8[t] + 2 * k, 2)}')
            for k in range(4): a.I(f'v_cvt_pk_bf16_f32 {vr(d + k)}, {vr(d + 2 * k)}, {vr(d + 2 * k + 1)}')
            for mn in ('v_permlane32_swap_b32', 'v_permlane16_swap_b32'):
                for k in range(2): a.I(f'{mn} {vr(d + k)}, {vr(d + 2 + k)}')
            a.I(f'buffer_store_dwordx4 {vr(d, 4)}, {vr(t2)}, {sr(sD, 4)}, s3 offen{NT("outp")}')
            a.I('s_add_u32 s3, s3, 65536')
        st.cyc(); st.real()
        st.flush(16, K.sWAVE, sW, t0); K.fl1(t0)
        a.label('k1_end')
        a.raw('s_endpgm')
        return a

HEADER = open(f'cdna_kernels/{NAME}.s.ref').read().split('; Override launch')[0]
DOC = """;
; One persistent launch, one workgroup (8 waves) per CU = (block, batch, head pair); generated by a hand-written script.
;  1. q projection: waves 4-7 stream x / wq tiles into a 3-stage LDS ring (LDS-DMA) and prefetch the first K/V chunks,
;     waves 0-3 run the 144x256x1024 MFMA loop; q (scaled by log2(e)/sqrt(128), bf16) is redistributed through LDS.
;  2. attention: 4 waves per head, 32 rows + a quarter of the ninth 16-row tile each; S^T = K q^T with the running
;     max folded into the accumulator input, online softmax with a checked lazy rescale (true max whenever a score
;     exceeds the reference by 2^8), P stays in registers, row sums by MFMA, K/V through a 5-slot LDS ring per head.
;  3. out projection: o goes to d_ws in fragment order (write-through) with per-workgroup ready flags; each workgroup
;     computes a 144x128 tile over half of the heads (own heads first, straight from LDS) and swaps half a tile with
;     its partner workgroup.  Flags are reset by their owner at entry; d_debug[0] counts the workgroups that did so.
"""
def kd(name, vg, sg=102):
    return f'''.amdhsa_kernel {name}
  .amdhsa_next_free_vgpr {vg}
  .amdhsa_next_free_sgpr {sg}
  .amdhsa_accum_offset {(min(vg, 256) + 3) // 4 * 4}
  .amdhsa_group_segment_fixed_size 0
  .amdhsa_kernarg_size 104
  .amdhsa_user_sgpr_count 2
  .amdhsa_user_sgpr_kernarg_segment_ptr 1
  .amdhsa_system_sgpr_workgroup_id_x 1
.end_amdhsa_kernel
'''
def main():
    ks = [('attn_kernel', gen_k1(), 256, 163840)]
    out = HEADER
    if OPT['fuse']:
        ks = [(NAME + '_kernel', ks[0][1], 256, 163840)]
        out += '; @launch grid=(256,1,1) block=(512,1,1) lds=163840\n'
        out += DOC
    else:
        for nm, _, _, lds in ks:
            out += f'; @launch kernel={nm} grid=(256,1,1) block=(512,1,1) lds={lds}\n'
    out += '.amdgcn_target "amdgcn-amd-amdhsa--gfx950"\n.text\n'
    for nm, a, vg, lds in ks:
        if OPT.get('novm'):
            seen = False; keep = []
            for x in a.ins:
                if x.mn == 's_barrier': seen = True
                if x.label in ('k2_m1',): seen = False
                if x.label == 'k2_cloop': seen = False; OPT['_stop'] = 1
                if OPT.get('_stop'): seen = False
                if seen and x.mn == 'buffer_load_dwordx4': continue
                keep.append(x)
            a.ins = keep
        if OPT.get('nokv'): a.ins = [x for x in a.ins if not (x.kind == 'vmem' and x.mn == 'buffer_load_dwordx4' and not x.lds and 'nt' in x.mods)]
        if OPT.get('nomfma'): a.ins = [x for x in a.ins if x.kind != 'mfma']
        if OPT.get('nods'): a.ins = [x for x in a.ins if not (x.kind == 'ds' and 'read' in x.mn)]
        n = a.pad_hazards(verbose=bool(OPT.get('v')))
        errs = 0; nbs = set()
        for wave in range(8):
            for pol in (lambda i, x: 'POLL' in x.text, lambda i, x: True):
              for wgid in (3, 12, 21, 30):
                tr = a.trace(wgid, wave, pol)
                e, nb = a.verify_waits(tr, quiet=(errs > 0 or bool(OPT.get('novm')) or OPT['stamp'] == 4)); errs += e; nbs.add(nb)
        assert (len(nbs) == 1 or (len(nbs) == 2 and max(nbs) - min(nbs) == 7 - OPT['sbar'])) and (errs == 0 or OPT.get('novm') or OPT['stamp'] == 4), (nbs, errs)
        print(f'{nm}: {len(a.ins)} lines, nops added {n}, wait errors {errs}, barriers {nb}, trace len {len(tr)}', file=sys.stderr)
        out += f'.globl {nm}\n.p2align 8\n.type {nm},@function\n{nm}:\n' + a.text()
    out += '.section .rodata,"a"\n'
    for nm, a, vg, lds in ks:
        out += '.p2align 6\n' + kd(nm, vg)
    open(sys.argv[1], 'w').write(out)
main()
```

```python
import sys, math, struct
from asmlib import *

NAME = 'concat_heads__mha_block_cached__mha_block_cached__near_ridge'
OPT = dict(stamp=0, kvnt=1, wnt=0, xnt=0, ont=2, wont=0, oldnt=0, rot1=1, rot2=3, wopf=3, ord=1, desync=1, pre1=1, gate=2, cprio=1, tail=1, rotc=0, rhh=0, vfirst=1, hpmap=2, s2=1, fuse=1, g2from=7, gk2=4, gv2=40, rotfrom=6, pofs=-1, lazyj=0, kq='-', px='p3200', py='p3211', kvm='-', kw='-', finp=1, b1at=2, grp=4, lin=0, gk=24, gv=32, fast1=1, xbf=1, kvl2=0, cvn=7, cvpk=1, kv0=0, kvs=3, lprio=0, whalf=0, offm=0, offsh=0, pubat=0, b2at=3, kpf=3, spread=1, gate2=0, lw2=4, sbar=3, ssplit=1, ntm=255, oldf=2, cpf=1, sy=4, nimm=3, aux0=0, auxs=4, pp=0, mv=0, mk=0, nwo=16, pfp=0, xpol=2, outp=3, pollmax=100000, qprio=1, rs0=10, rs1=13, stag=1, aprio=1, pS=0, pM=0, pV=0, smfirst=0)
for a in sys.argv[2:]:
    k, v = a.split('='); OPT[k] = int(v) if v.lstrip('-').isdigit() else v

def fbits(x): return '0x%08x' % struct.unpack('<I', struct.pack('<f', x))[0]
NT = lambda k: {0: '', 1: ' nt', 2: ' sc1', 3: ' sc0 sc1', 4: ' sc1 nt'}[OPT[k]]
APOL = lambda kind, j: ' nt' if (OPT['ntm'] >> (j + (4 if kind == 'V' else 0))) & 1 else ''
THRV = '0x7f800000' if OPT.get('novm') else fbits(8.0)
O_SLICE = 128 * 9216
STAMP_OFF = 64 << 20
EXCH_OFF = 32 << 20
FLAG_OFF = 48 << 20

class Stamper:
    def __init__(self, a, region):
        self.a = a; self.n = 0; self.region = region
        self.on = OPT.get('sreg', 0) == region or OPT['stamp'] in (5, 8)
    def real(self):
        if not self.on or OPT['stamp'] == 8: return
        if OPT['stamp'] == 5:
            if self.region == 0 and not self.n: self.a.I('s_memrealtime s[76:77]'); self.n = 1
            return
        if OPT['stamp'] == 4 and self.n: return
        if OPT['stamp']:
            self.a.I(f's_memrealtime {sr(76 + 2 * self.n, 2)}'); self.n += 1
    def cyc(self):
        if not self.on: return
        if OPT['stamp'] == 8:
            self.a.I(f's_memrealtime {sr(76 + 2 * self.n, 2)}'); self.n += 1; return
        if OPT['stamp'] == 5: return
        if OPT['stamp'] == 4:
            self.a.raw('s_waitcnt lgkmcnt(0)'); self.sh(); return
        if OPT['stamp']:
            self.a.I(f's_memtime {sr(76 + 2 * self.n, 2)}'); self.n += 1
    def sh(self):
        if not self.on: return
        if OPT['stamp'] == 4:
            for i in range(13): self.a.raw(f's_mov_b32 s{80 + i}, s{81 + i}')
            self.a.raw('s_mov_b32 s93, s98')
            self.a.raw('s_memtime s[98:99]')
    def flush(self, s_ws, s_wave, srd, vt):
        if not OPT['stamp'] or not self.on: return
        a = self.a
        if OPT['stamp'] == 8:
            if self.region == 0: return
            assert self.n <= 12
            lb = a.newlabel('dbgskip')
            a.I('s_waitcnt vmcnt(0) lgkmcnt(0)')
            a.I(f's_xor_b32 s3, s2, {OPT.get("dwg", 0)}')
            a.I(f's_or_b32 s3, s3, {sr(s_wave)}')
            a.I('s_cmp_lg_u32 s3, 0')
            a.I(f's_cbranch_scc1 {lb}')
            a.I(f's_mov_b32 {sr(srd)}, s100'); a.I(f's_mov_b32 {sr(srd + 1)}, s101'); a.I(f's_mov_b32 {sr(srd + 2)}, 256'); a.I(f's_mov_b32 {sr(srd + 3)}, 0x20000')
            a.I(f'v_mov_b32 {vr(vt)}, 0')
            for i in range(1, self.n):
                a.I(f's_sub_u32 s3, {sr(76 + 2 * i)}, s76')
                a.I(f'v_mov_b32 {vr(vt + 1)}, s3')
                a.I(f'buffer_store_dword {vr(vt + 1)}, {vr(vt)}, {sr(srd, 4)}, 0 offen offset:{4 * (i + 1)}')
                a.I('s_nop 1')
            a.label(lb)
            return
        if OPT['stamp'] == 5:
            if self.region == 0: return
            a.I('s_memrealtime s[78:79]'); self.n = 2
            if OPT.get('dbgspan'):
                lb = a.newlabel('dbgskip')
                a.I('s_waitcnt vmcnt(0) lgkmcnt(0)')
                a.I('s_and_b32 s3, s2, 9')
                a.I(f's_or_b32 s3, s3, {sr(s_wave)}')
                a.I('s_cmp_lg_u32 s3, 0')
                a.I(f's_cbranch_scc1 {lb}')
                a.I(f's_mov_b32 {sr(srd)}, s100'); a.I(f's_mov_b32 {sr(srd + 1)}, s101'); a.I(f's_mov_b32 {sr(srd + 2)}, 256'); a.I(f's_mov_b32 {sr(srd + 3)}, 0x20000')
                a.I('s_not_b32 s76, s76')
                a.I('s_mov_b64 exec, 1')
                a.I(f'v_mov_b32 {vr(vt)}, 0'); a.I(f'v_mov_b32 {vr(vt + 1)}, s78')
                a.I(f'buffer_atomic_umax {vr(vt + 1)}, {vr(vt)}, {sr(srd, 4)}, 0 offen offset:16 sc1')
                a.I('s_nop 1')
                a.I(f'v_mov_b32 {vr(vt + 1)}, s76')
                a.I(f'buffer_atomic_umax {vr(vt + 1)}, {vr(vt)}, {sr(srd, 4)}, 0 offen offset:20 sc1')
                a.I('s_not_b32 s76, s76')
                a.I('s_nop 1')
                a.I(f'v_mov_b32 {vr(vt + 1)}, s76')
                a.I(f'buffer_atomic_umax {vr(vt + 1)}, {vr(vt)}, {sr(srd, 4)}, 0 offen offset:24 sc1')
                a.label(lb)
                return
        regs = [76 + 2 * i for i in range(self.n)]
        if OPT['stamp'] == 4:
            regs = [76] + list(range(81, 94)) + [98]; keepn = self.n; self.n = 0
        assert self.n <= 12
        a.I('s_waitcnt vmcnt(0) lgkmcnt(0)')
        a.I(f's_add_u32 {sr(srd)}, {sr(s_ws)}, {STAMP_OFF + self.region * (1 << 20)}')
        a.I(f's_addc_u32 {sr(srd + 1)}, {sr(s_ws + 1)}, 0')
        a.I(f's_mov_b32 {sr(srd + 2)}, {1 << 20}')
        a.I(f's_mov_b32 {sr(srd + 3)}, 0x20000')
        a.I(f's_lshl_b32 s3, s2, 3')
        a.I(f's_add_u32 s3, s3, {sr(s_wave)}')
        a.I(f's_lshl_b32 s3, s3, 6')
        a.I(f'v_mov_b32 {vr(vt)}, 0')
        a.I(f'v_mov_b32 {vr(vt + 1)}, {self.n}')
        a.I(f'buffer_store_dword {vr(vt + 1)}, {vr(vt)}, {sr(srd, 4)}, s3 offen offset:60')
        a.I('s_nop 1')
        for i in range(len(regs)):
            a.I(f'v_mov_b32 {vr(vt + 1)}, {sr(regs[i])}')
            a.I(f'buffer_store_dword {vr(vt + 1)}, {vr(vt)}, {sr(srd, 4)}, s3 offen offset:{4 * i}')
            a.I('s_nop 1')
        if OPT['stamp'] == 4: self.n = keepn

def gen_k1():
    a = Asm()
    st = Stamper(a, 0)
    MF = 'v_mfma_f32_16x16x32_bf16'
    sX, sW, sK, sV, sO = 20, 24, 28, 32, 36
    sWAVE, sR, sHH, sBLK, sB, sHP = 40, 41, 42, 43, 44, 45
    sM0W, sM0X, sOW, sOX, sLOOSE, sNEXT, sKVI = 46, 47, 48, 49, 50, 51, 52
    sSLW, sSLX = 53, 54
    sCNT, sT0, sT1 = 55, 56, 57
    sKP, sVP, sM0A, sDK, sDV, sOV, sOK = 58, 59, 60, 62, 63, 64, 65
    sTHR, sTHR8, sCL, sCL8 = 66, 67, 68, 69
    sC = 70
    sKPo, sVPo = 72, 73
    sST, sROT = 74, 75
    sLINK = 6
    sH = 61
    sPFO, sMK, sMV = 48, 50, 51
    sJ = 47
    sRS, sRC = 46, 61
    vKa, vVa, vD = 1, 3, 7
    mx, mx8, tA, tB = 8, 9, 10, 11
    ONES, NEGM, Q, S, POOL, O = 12, 16, 28, 76, 116, 148
    ACC, XF, WF = 112, 76, 44
    XB, QB = 49152, 49152
    HB1 = 114688
    def acc(t, j): return ACC + (t * 4 + j) * 4
    def o_(T, d): return O + (T * 9 + (d + 1) % 9) * 4
    JUNK = O + 3
    def q_(T, k): return Q + (T * 4 + k) * 4
    def s_(T, j, tt=0): return S + (T * 2 + j) * 8 + tt * 4 if T < 2 else S + 32 + tt * 4
    def negm(T): return NEGM + 4 * T
    kvreg = {'K0': 160, 'V0': 192, 'K1': 76, 'V1': 108}
    g, n, t0, t1, t2, t3 = 12, 13, 14, 15, 16, 17

    def hfun(dst, src, tmp):
        a.I(f'v_lshrrev_b32 {vr(tmp)}, 1, {vr(src)}')
        a.I(f'v_xor_b32 {vr(dst)}, {vr(src)}, {vr(tmp)}')
        a.I(f'v_and_b32 {vr(dst)}, 1, {vr(dst)}')
        a.I(f'v_lshl_or_b32 {vr(dst)}, {vr(dst)}, 1, {vr(tmp)}')
    def tr_pattern(dst):
        a.I(f'v_lshrrev_b32 {vr(g)}, 4, v0')
        hfun(t0, g, t1)
        a.I(f'v_bfe_u32 {vr(t1)}, v0, 1, 1')
        a.I(f'v_xor_b32 {vr(t0)}, {vr(t0)}, {vr(t1)}')
        a.I(f'v_lshlrev_b32 {vr(t0)}, 4, {vr(t0)}')
        a.I(f'v_lshl_add_u32 {vr(t0)}, {vr(g)}, 12, {vr(t0)}')
        a.I(f'v_bfe_u32 {vr(t1)}, v0, 2, 2')
        a.I(f'v_lshl_add_u32 {vr(t0)}, {vr(t1)}, 7, {vr(t0)}')
        a.I(f'v_bfe_u32 {vr(t1)}, v0, 3, 1')
        a.I(f'v_lshl_add_u32 {vr(t0)}, {vr(t1)}, 6, {vr(t0)}')
        a.I(f'v_and_b32 {vr(t1)}, 1, v0')
        a.I(f'v_lshl_add_u32 {vr(dst)}, {vr(t1)}, 3, {vr(t0)}')

    a.raw('s_cmp_ge_u32 s2, 256')
    a.raw('s_cbranch_scc1 k1_end')
    st.real(); st.cyc()
    a.I('s_and_b32 s3, s2, 7')
    a.I('s_lshr_b32 s4, s2, 3')
    a.I(f's_lshr_b32 {sr(sBLK)}, s3, 2')
    a.I(f's_mul_i32 s5, {sr(sBLK)}, 40')
    a.I('s_load_dwordx8 s[8:15], s[0:1], s5')
    a.I('s_load_dwordx2 s[16:17], s[0:1], 96')
    a.I('s_add_u32 s5, s5, 32')
    a.I('s_load_dwordx2 s[18:19], s[0:1], s5')
    if OPT['fuse']: a.I('s_load_dwordx2 s[100:101], s[0:1], 88')
    a.I('s_and_b32 s5, s4, 3')
    a.I('s_lshl_b32 s6, s5, 1')
    a.I('s_add_u32 s3, s3, s6')
    a.I('s_and_b32 s3, s3, 3')
    a.I(f's_lshl_b32 {sr(sHP)}, s5, 2')
    a.I(f's_add_u32 {sr(sHP)}, {sr(sHP)}, s3')
    a.I(f's_lshr_b32 {sr(sB)}, s4, 2')
    a.I(f's_add_u32 {sr(sROT)}, {sr(sB)}, s5')
    a.I(f'v_lshrrev_b32 {vr(t0)}, 6, v0')
    a.I(f'v_readfirstlane_b32 {sr(sWAVE)}, {vr(t0)} ; WAVEID')
    a.I('v_and_b32 v0, 63, v0')
    a.I(f's_and_b32 {sr(sR)}, {sr(sWAVE)}, 3')
    a.I(f's_lshr_b32 {sr(sHH)}, {sr(sWAVE)}, 2')
    a.I(f's_lshr_b32 s3, {sr(sR)}, 1')
    a.I(f's_xor_b32 {sr(sH)}, {sr(sR)}, s3')
    a.I(f's_and_b32 {sr(sH)}, {sr(sH)}, 1')
    a.I(f's_lshl_b32 {sr(sH)}, {sr(sH)}, 1')
    a.I(f's_or_b32 {sr(sH)}, {sr(sH)}, s3')
    a.I(f'v_and_b32 {vr(t0)}, 7, v0')
    a.I(f'v_xor_b32 {vr(t0)}, {sr(sH)}, {vr(t0)}')
    a.I(f'v_bfe_u32 {vr(t1)}, v0, 4, 1')
    a.I(f'v_lshlrev_b32 {vr(t1)}, 2, {vr(t1)}')
    a.I(f'v_xor_b32 {vr(t0)}, {vr(t0)}, {vr(t1)}')
    a.I(f'v_lshlrev_b32 {vr(t0)}, 4, {vr(t0)}')
    a.I(f'v_lshrrev_b32 {vr(t1)}, 5, v0')
    a.I(f'v_lshl_add_u32 {vr(t0)}, {vr(t1)}, 7, {vr(t0)}')
    a.I(f'v_lshrrev_b32 {vr(g)}, 4, v0')
    a.I(f'v_bfe_u32 {vr(t1)}, v0, 3, 2')
    a.I(f's_lshl_b32 s3, {sr(sR)}, 4')
    a.I(f'v_add_u32 {vr(t1)}, s3, {vr(t1)}')
    a.I(f'v_lshl_add_u32 {vr(vD)}, {vr(t1)}, 8, {vr(t0)}')
    if OPT['lin']:
        a.I(f's_mul_i32 s3, {sr(sR)}, 3072')
        a.I(f'v_subrev_u32 {vr(vD)}, s3, {vr(vD)}')
    a.I(f's_lshl_b32 {sr(sM0W)}, {sr(sR)}, 12')
    def rest_setup():
        a.I(f's_mul_i32 {sr(sM0A)}, {sr(sHH)}, 81920')
        a.I(f's_add_u32 {sr(sM0A)}, {sr(sM0A)}, {sr(sM0W)}')
        a.I(f's_lshl_b32 s3, {sr(sB)}, 4')
        a.I(f's_add_u32 s3, s3, {sr(sHP)}')
        a.I('s_lshl_b32 s3, s3, 18')
        for (d, p) in ((sK, 10), (sV, 12)):
            a.I(f's_add_u32 {sr(d)}, {sr(p)}, s3')
            a.I(f's_addc_u32 {sr(d + 1)}, {sr(p + 1)}, 0')
            a.I(f's_mov_b32 {sr(d + 2)}, 262144')
            a.I(f's_mov_b32 {sr(d + 3)}, 0x20000')
    a.I(f's_cmp_eq_u32 {sr(sHH)}, 0')
    a.I('s_cbranch_scc1 k1_comp')

    def flag_srd(d):
        a.I(f's_add_u32 {sr(d)}, s16, {FLAG_OFF}')
        a.I(f's_addc_u32 {sr(d + 1)}, s17, 0')
        a.I(f's_mov_b32 {sr(d + 2)}, 98304')
        a.I(f's_mov_b32 {sr(d + 3)}, 0x20000')
    def dbg_srd(d):
        a.I(f's_mov_b32 {sr(d)}, s100')
        a.I(f's_mov_b32 {sr(d + 1)}, s101')
        a.I(f's_mov_b32 {sr(d + 2)}, 256')
        a.I(f's_mov_b32 {sr(d + 3)}, 0x20000')
    def oflag_off(d):
        a.I(f's_lshl_b32 {d}, {sr(sBLK)}, 3')
        a.I(f's_add_u32 {d}, {d}, {sr(sB)}')
        a.I(f's_lshl_b32 {d}, {d}, 4')
        a.I(f's_add_u32 {d}, {d}, {sr(sHP)}')
        a.I(f's_lshl_b32 {d}, {d}, 7')
        a.I(f's_add_u32 {d}, {d}, 65536')
    def wo_srd():
        a.I(f's_lshl_b32 s3, {sr(sB)}, 4')
        a.I(f's_add_u32 s3, s3, {sr(sHP)}')
        a.I('s_lshl_b32 s3, s3, 16')
        a.I(f's_add_u32 {sr(sX)}, s18, s3')
        a.I(f's_addc_u32 {sr(sX + 1)}, s19, 0')
        a.I(f's_mov_b32 {sr(sX + 2)}, 65536')
    vDW, vDX = 20, 24
    if OPT['lprio']: a.I(f's_setprio {OPT["lprio"]}')
    a.I(f'v_lshl_add_u32 {vr(vDW)}, {vr(t1)}, 13, {vr(t0)}')
    for tq in range(1, 4): a.I(f'v_add_u32 {vr(vDW + tq)}, {tq * (32768 - 1024)}, {vr(vDW)}')
    a.I(f's_lshr_b32 {sr(sST)}, s2, {OPT["offsh"]}')
    a.I(f's_and_b32 {sr(sST)}, {sr(sST)}, {OPT["offm"]}')
    a.I(f's_add_u32 {sr(sOX)}, {sr(sST)}, {sr(sROT)}')
    a.I(f's_and_b32 {sr(sOX)}, {sr(sOX)}, {0 if OPT["rotfrom"] else OPT["rot1"]}')
    a.I(f's_lshl_b32 {sr(sOW)}, {sr(sOX)}, 19')
    a.I(f's_lshl_b32 s3, {sr(sHP)}, 9')
    a.I(f's_sub_u32 {sr(sW + 2)}, 8388608, s3')
    a.I(f's_mov_b32 {sr(sW + 3)}, 0x20000')
    a.I(f's_mov_b32 m0, {sr(sM0W)}')
    a.I('s_waitcnt lgkmcnt(0)')
    a.I(f's_add_u32 {sr(sW)}, s14, s3')
    a.I(f's_addc_u32 {sr(sW + 1)}, s15, 0')
    def wloads(hq):
        if OPT['whalf']:
            for tq in range(4): a.I(f'buffer_load_dwordx4 {vr(vDW + tq)}, {sr(sW, 4)}, {sr(sOW)} offen offset:{tq * 1024}{NT("wnt")} lds')
        else:
            for tq in range(4): a.I(f'buffer_load_dwordx4 {vr(vDW + tq)}, {sr(sW, 4)}, {sr(sOW)} offen offset:{tq * 1024 + hq * 256}{NT("wnt")} lds')
    sHA, sHB = 70, 71
    if OPT['whalf']:
        a.I(f's_lshr_b32 s4, {sr(sB)}, 2')
        a.I(f's_mul_i32 {sr(sHA)}, s4, {HB1}')
        a.I(f's_sub_u32 {sr(sHB)}, {HB1}, {sr(sHA)}')
        a.I(f's_add_u32 {sr(sHA)}, {sr(sHA)}, {sr(sM0W)}')
        a.I(f's_add_u32 {sr(sHB)}, {sr(sHB)}, {sr(sM0W)}')
        a.I(f's_lshl_b32 {sr(sKPo)}, s4, 8')
        a.I(f's_mov_b32 m0, {sr(sHA)}')
        a.I(f's_or_b32 {sr(sOW)}, {sr(sOW)}, {sr(sKPo)}')
    wloads(0)
    a.I(f's_mul_i32 s3, {sr(sB)}, 294912')
    if not OPT['whalf']:
        a.I(f's_add_u32 m0, {sr(sM0W)}, {HB1 - 256}')
        wloads(1)
    a.I(f's_add_u32 {sr(sX)}, s8, s3')
    a.I(f's_addc_u32 {sr(sX + 1)}, s9, 0')
    a.I(f's_mov_b32 {sr(sX + 2)}, 294912')
    a.I(f's_mov_b32 {sr(sX + 3)}, 0x20000')
    a.I(f'v_and_b32 {vr(t1)}, 2, {vr(g)}')
    a.I(f'v_lshlrev_b32 {vr(t1)}, 1, {vr(t1)}')
    a.I(f'v_xor_b32 {vr(t0)}, {vr(g)}, {vr(t1)}')
    a.I(f'v_and_b32 {vr(t1)}, 7, v0')
    a.I(f'v_xor_b32 {vr(t0)}, {vr(t0)}, {vr(t1)}')
    a.I(f'v_lshlrev_b32 {vr(t0)}, 4, {vr(t0)}')
    a.I(f'v_lshrrev_b32 {vr(t1)}, 3, v0')
    a.I(f'v_lshl_add_u32 {vr(t0)}, {vr(t1)}, 11, {vr(t0)}')
    a.I(f'v_xor_b32 {vr(t1)}, 64, {vr(t0)}')
    a.I(f's_lshl_b32 s3, {sr(sR)}, 16')
    for j in range(4):
        a.I(f'v_add_u32 {vr(vDX + j)}, s3, {vr((t0, t1)[j & 1])}')
        if j < 3: a.I(f's_add_u32 s3, s3, {16384 - 1024}')
    a.I(f's_lshl_b32 s3, {sr(sR)}, 6')
    a.I(f'v_xor_b32 {vr(t0)}, s3, {vr(t0)}')
    a.I(f's_lshl_b32 s3, {sr(sR)}, 14')
    a.I('s_add_u32 s3, s3, 262144')
    a.I(f'v_add_u32 {vr(vDX + 4)}, s3, {vr(t0)}')
    a.I(f's_lshl_b32 {sr(sM0X)}, {sr(sR)}, 10')
    a.I(f's_add_u32 {sr(sM0X)}, {sr(sM0X)}, {XB + 16384}')
    a.I(f's_add_u32 {sr(sST)}, {sr(sST)}, 1')
    a.I(f's_mov_b32 {sr(sSLW)}, 0')
    a.I(f's_mov_b32 {sr(sSLX)}, 0')
    sPO = 73
    if OPT['pofs'] >= 0:
        a.I(f's_lshr_b32 {sr(sPO)}, s2, {OPT["pofs"]}')
        a.I(f's_and_b32 {sr(sPO)}, {sr(sPO)}, 1')
    def stage_w():
        R = OPT['rot1']
        if OPT['pofs'] >= 0:
            a.I(f's_sub_u32 {sr(sOW)}, {sr(sST)}, {sr(sPO)}')
            a.I(f's_add_u32 {sr(sT0)}, {sr(sST)}, {sr(sPO)}')
            a.I(f's_cmp_ge_i32 {sr(sOW)}, {OPT["rotfrom"]}')
            a.I(f's_cselect_b32 {sr(sOX)}, {sr(sROT)}, 0')
            a.I(f's_cmp_lt_u32 {sr(sT0)}, 16')
            a.I(f's_cselect_b32 {sr(sOX)}, {sr(sOX)}, 0')
            a.I(f's_and_b32 {sr(sOX)}, {sr(sOX)}, 1')
            a.I(f's_xor_b32 {sr(sOX)}, {sr(sOX)}, {sr(sOW)}')
            a.I(f's_add_u32 {sr(sOX)}, {sr(sOX)}, {sr(sPO)}')
            pre_ = []
        else:
            if OPT['rotfrom']:
                a.I(f's_cmp_ge_u32 {sr(sST)}, {OPT["rotfrom"]}')
                a.I(f's_cselect_b32 {sr(sOX)}, {sr(sROT)}, 0')
            pre_ = [f's_add_u32 {sr(sOX)}, {sr(sST)}, {sr(sOX if OPT["rotfrom"] else sROT)}',
                    f's_and_b32 {sr(sOX)}, {sr(sOX)}, {R}',
                    f's_and_b32 {sr(sOW)}, {sr(sST)}, {15 & ~R}',
                    f's_or_b32 {sr(sOX)}, {sr(sOX)}, {sr(sOW)}']
        a.many(pre_ + [
                f's_add_u32 m0, {sr(sHA if OPT["whalf"] else sM0W)}, {sr(sSLW)}',
                f's_lshl_b32 {sr(sOW)}, {sr(sOX)}, 19',
                f's_add_u32 {sr(sST)}, {sr(sST)}, 1'])
        if OPT['whalf']: a.I(f's_or_b32 {sr(sOW)}, {sr(sOW)}, {sr(sKPo)}')
        wloads(0)
        if not OPT['whalf']:
            a.I(f's_add_u32 m0, m0, {HB1 - 256}')
            wloads(1)
    def stage_x():
        lb = a.newlabel('k1_skipx')
        a.I(f's_add_u32 {sr(sT0)}, {sr(sM0W)}, {sr(sSLX)}')
        a.I(f's_add_u32 m0, {sr(sT0)}, {XB}')
        a.I(f's_lshl_b32 {sr(sOX)}, {sr(sOX)}, 7')
        for j in range(4): a.I(f'buffer_load_dwordx4 {vr(vDX + j)}, {sr(sX, 4)}, {sr(sOX)} offen offset:{j * 1024}{NT("xnt")} lds')
        a.I(f's_add_u32 m0, {sr(sM0X)}, {sr(sSLX)}')
        a.I(f's_cmp_ge_u32 {sr(sR)}, 2')
        a.I(f's_cbranch_scc1 {lb}')
        a.I(f'buffer_load_dwordx4 {vr(vDX + 4)}, {sr(sX, 4)}, {sr(sOX)} offen{NT("xnt")} lds')
        a.label(lb)
        if OPT['whalf']:
            a.I(f's_add_u32 m0, {sr(sHB)}, {sr(sSLW)}')
            a.I(f's_xor_b32 {sr(sOW)}, {sr(sOW)}, 256')
            wloads(1)
        a.I(f's_add_u32 {sr(sSLW)}, {sr(sSLW)}, 16384')
        a.I(f's_add_u32 {sr(sSLX)}, {sr(sSLX)}, 18432')
        a.I(f's_cmp_eq_u32 {sr(sSLW)}, 49152')
        a.I(f's_cselect_b32 {sr(sSLW)}, 0, {sr(sSLW)}')
        a.I(f's_cselect_b32 {sr(sSLX)}, 0, {sr(sSLX)}')
    stage_x()
    rest_setup()
    if OPT['pre1']:
        stage_w()
        a.I(f's_waitcnt vmcnt({4 if OPT["whalf"] else 8})')
        a.I('s_barrier')
        stage_x()
    else:
        a.I('s_waitcnt vmcnt(0)')
        a.I('s_barrier')
        stage_w(); stage_x()
    st0 = st.n
    st.cyc()
    stage_w(); stage_x()
    a.I(f's_cmp_lg_u32 {sr(sR)}, 0')
    a.I('s_cbranch_scc1 k1_noreset')
    flag_srd(sO)
    oflag_off('s4')
    a.I('s_lshl_b32 s3, s2, 8')
    a.I(f'v_lshlrev_b32 {vr(t0)}, 2, v0')
    a.I(f'v_and_b32 {vr(t2)}, 127, {vr(t0)}')
    a.I(f'v_mov_b32 {vr(t1)}, 0')
    a.I(f'buffer_store_dword {vr(t1)}, {vr(t0)}, {sr(sO, 4)}, s3 offen sc1')
    a.I(f'buffer_store_dword {vr(t1)}, {vr(t2)}, {sr(sO, 4)}, s4 offen sc1')
    a.label('k1_noreset')
    if OPT['kvs'] == 3:
        a.I(f's_mul_i32 s3, s2, 171')
        a.I(f's_lshr_b32 s3, s3, 9')
        a.I(f's_mul_i32 s3, s3, 3')
        a.I(f's_sub_u32 {sr(sNEXT)}, s2, s3')
    else:
        a.I(f's_lshr_b32 s3, s2, 3')
        a.I(f's_and_b32 {sr(sNEXT)}, s3, 1')
    a.I(f's_add_u32 {sr(sNEXT)}, {sr(sNEXT)}, {OPT["kv0"]}')
    assert OPT['kv0'] + 4 * OPT['kvs'] - 1 <= 12
    if OPT['kvm'] != '-':
        ms = [sum(1 << int(c, 16) for c in m) for m in OPT['kvm'].split('/')]
        if len(ms) == 3: a.I(f's_sub_u32 s3, {sr(sNEXT)}, {OPT["kv0"]}')
        elif len(ms) == 2:
            a.I('s_lshr_b32 s3, s2, 3'); a.I('s_lshr_b32 s4, s2, 5'); a.I('s_xor_b32 s3, s3, s4'); a.I('s_and_b32 s3, s3, 1')
        else:
            a.I('s_lshr_b32 s3, s2, 3'); a.I('s_lshr_b32 s4, s2, 5'); a.I('s_add_u32 s3, s3, s4'); a.I('s_and_b32 s3, s3, 3')
        a.I(f's_mov_b32 {sr(sNEXT)}, {ms[0]}')
        for i, m in enumerate(ms[1:], 1):
            a.I(f's_cmp_eq_u32 s3, {i}')
            a.I(f's_cselect_b32 {sr(sNEXT)}, {m}, {sr(sNEXT)}')
    a.I(f's_mov_b32 {sr(sLOOSE)}, 0')
    a.I(f's_mov_b32 {sr(sKVI)}, 0')
    a.I(f's_mov_b32 {sr(sCNT)}, 0')
    def lbar():
        lb = a.newlabel('k1_loose')
        a.I(f's_cmp_gt_i32 {sr(sLOOSE)}, 0')
        a.I(f's_cbranch_scc1 {lb}')
        a.I('s_waitcnt vmcnt(12)')
        a.label(lb)
        a.I(f's_sub_i32 {sr(sLOOSE)}, {sr(sLOOSE)}, 1')
        a.I('s_waitcnt vmcnt(20)')
        a.I('s_barrier')
        if OPT.get('qst'): st.cyc()
    a.label('k1_lloop')
    lbar()
    stage_w(); stage_x()
    if OPT['kvm'] != '-':
        a.I(f's_lshr_b32 s3, {sr(sNEXT)}, {sr(sCNT)}')
        a.I('s_and_b32 s3, s3, 1')
        a.I('s_cbranch_scc0 k1_kvdone')
    else:
        a.I(f's_cmp_lg_u32 {sr(sCNT)}, {sr(sNEXT)}')
        a.I('s_cbranch_scc1 k1_kvdone')
        a.I(f's_add_u32 {sr(sNEXT)}, {sr(sNEXT)}, {OPT["kvs"]}')
    a.I(f's_add_u32 {sr(sKVI)}, {sr(sKVI)}, 1')
    items = ['K0', 'V0', 'K1', 'V1'] + [OPT['kq'][i:i + 2] for i in range(0, len(OPT['kq']), 2) if OPT['kq'][i] in 'KV']
    for m, it in enumerate(items):
        a.I(f's_cmp_lg_u32 {sr(sKVI)}, {m + 1}')
        a.I(f's_cbranch_scc1 k1_kv{m + 1}')
        a.I(f's_mov_b32 {sr(sLOOSE)}, 2')
        for hq in range(2):
            a.I(f's_mov_b32 {sr(sT0)}, {int(it[1]) * 16384 + hq * 131072}')
            for j in range(4):
                if m < 4: a.I(f'buffer_load_dwordx4 {vr(kvreg[it] + 16 * hq + 4 * j, 4)}, {vr(vD)}, {sr(sK if it[0] == "K" else sV, 4)}, {sr(sT0)} offen offset:{j * 1024}{NT("kvnt")}')
                else: a.I(f'buffer_load_dwordx4 v[224:227], {vr(vD)}, {sr(sK if it[0] == "K" else sV, 4)}, {sr(sT0)} offen offset:{j * 1024} ; NOCHECK')
                if OPT['lin'] and j < 3: a.I(f's_add_u32 {sr(sT0)}, {sr(sT0)}, 3072')
        if m < len(items) - 1: a.I('s_branch k1_kvdone')
        a.label(f'k1_kv{m + 1}')
    a.label('k1_kvdone')
    a.I(f's_add_u32 {sr(sCNT)}, {sr(sCNT)}, 1')
    a.I(f's_cmp_lt_u32 {sr(sCNT)}, 13')
    a.I('s_cbranch_scc1 k1_lloop')
    a.I(f's_add_u32 s3, {sr(sM0W)}, 16384')
    a.I(f'v_lshl_add_u32 {vr(tA)}, v0, 4, s3')
    a.I(f'v_add_u32 {vr(tB)}, {81920 + 32768}, {vr(tA)}')
    a.I(f'v_add_u32 {vr(mx)}, {81920 - 16384}, {vr(tA)}')
    def kvwrite(it, off, b1=tB, off1=None):
        for hq in range(2):
            o = off if (hq == 0 or off1 is None) else off1
            for j in range(4): a.I(f'ds_write_b128 {vr((tA, b1)[hq])}, {vr(kvreg[it] + 16 * hq + 4 * j, 4)} offset:{o + j * 1024}')
    lbar()
    npf = 0
    a.I(f'v_lshlrev_b32 {vr(t1)}, 4, v0')
    if OPT['cpf']:
        a.I(f's_getpc_b64 {sr(sO, 2)}')
        a.label('k1_pc')
        a.I(f's_mov_b32 {sr(sO + 2)}, k1_end-k1_pc')
        a.I(f's_mov_b32 {sr(sO + 3)}, 0x20000')
        a.I(f's_lshr_b32 s3, {sr(sHP)}, 2')
        a.I('s_lshl_b32 s3, s3, 2')
        a.I(f's_add_u32 s3, s3, {sr(sR)}')
        a.I('s_lshl_b32 s3, s3, 11')
        for k in range(2):
            a.I(f'buffer_load_dwordx4 v[228:231], {vr(t1)}, {sr(sO, 4)}, s3 offen offset:{k * 1024} ; NOCHECK')
            npf += 1
    junk = []
    for it in [OPT['kw'][i:i + 2] for i in range(0, len(OPT['kw']), 2) if OPT['kw'][i] in 'KV']:
        for hq in range(2):
            for j in range(4):
                junk.append(([f's_mov_b32 {sr(sT0)}, {int(it[1]) * 16384 + hq * 131072}'] if j == 0 else []) +
                            [f'buffer_load_dwordx4 v[224:227], {vr(vD)}, {sr(sK if it[0] == "K" else sV, 4)}, {sr(sT0)} offen offset:{j * 1024} ; NOCHECK'])
    if OPT['wopf'] == 3:
        wo_srd()
        for k in range(OPT['nwo']):
            junk.append(([f's_lshl_b32 {sr(sT0)}, {sr(sR)}, 14'] if k == 0 else []) + ([f's_add_u32 {sr(sT0)}, {sr(sT0)}, 4096'] if k and k & 3 == 0 else []) +
                        [f'buffer_load_dwordx4 v[224:227], {vr(t1)}, {sr(sX, 4)}, {sr(sT0)} offen offset:{(k & 3) * 1024} ; NOCHECK'])
    for x in junk[:8]: a.many(x); npf += 1
    kvwrite('K0', 0)
    a.I(f's_waitcnt vmcnt({npf})')
    a.I('s_barrier')
    for x in junk[8:16]: a.many(x)
    kvwrite('V0', 16384)
    a.I('s_barrier')
    for x in junk[16:]: a.many(x)
    a.I(f's_call_b64 {sr(sLINK, 2)}, k1_asetup')
    for i in range(O, 256, 2):
        if not 224 <= i < 232: a.I(f'v_mov_b64 {vr(i, 2)}, 0')
    if not OPT['lazyj']:
        a.I('s_waitcnt vmcnt(0)')
        for i in range(224, 232, 2): a.I(f'v_mov_b64 {vr(i, 2)}, 0')
    a.I(f's_cmp_lg_u32 {sr(sR)}, 0')
    a.I('s_cbranch_scc1 k1_nocount')
    dbg_srd(sO)
    a.I(f'v_mov_b32 {vr(140)}, 0')
    a.I(f'v_mov_b32 {vr(141)}, 1')
    a.I('s_mov_b64 exec, 1')
    a.I(f'buffer_atomic_add {vr(141)}, {vr(140)}, {sr(sO, 4)}, 0 offen sc1')
    a.I('s_mov_b64 exec, -1')
    a.label('k1_nocount')
    if OPT['lprio']: a.I('s_setprio 0')
    st.cyc()
    a.I('s_branch k1_join')

    a.label('k1_asetup')
    a.I(f's_lshl_b32 {sr(sKP)}, {sr(sHH)}, 15')
    a.I(f's_add_u32 {sr(sKP)}, {sr(sKP)}, 16384')
    a.I(f's_add_u32 {sr(sVP)}, {sr(sKP)}, 16384')
    a.I(f's_and_b32 s3, {sr(sR)}, 1')
    a.I('s_lshl_b32 s3, s3, 11')
    a.I(f's_lshl_b32 {sr(sJ)}, s3, 1')
    a.I(f's_sub_u32 {sr(sJ)}, 2048, {sr(sJ)}')
    a.I(f's_mul_i32 s5, {sr(sHH)}, 81920')
    a.I('s_add_u32 s5, s5, s3')
    a.I(f's_add_u32 s4, s5, {sr(sVP)}')
    a.I(f's_add_u32 s5, s5, {sr(sKP)}')
    a.I(f's_mul_i32 s3, {sr(sHH)}, 36864')
    a.I(f's_add_u32 s3, s3, {QB}')
    a.I(f'v_lshl_add_u32 {vr(tB)}, v0, 4, s3')
    a.I(f's_lshl_b32 s3, {sr(sR)}, 13')
    a.I(f'v_add_u32 {vr(mx8)}, s3, {vr(tB)}')
    tr_pattern(vVa)
    a.I(f'v_add_u32 {vr(vVa)}, s4, {vr(vVa)}')
    for j in range(1, 4): a.I(f'v_xor_b32 {vr(vVa + j)}, {32 * j}, {vr(vVa)}')
    a.I(f'v_bfe_u32 {vr(n)}, v0, 2, 2')
    hfun(t0, n, t1)
    a.I(f'v_xor_b32 {vr(t0)}, {vr(t0)}, {vr(g)}')
    a.I(f'v_lshlrev_b32 {vr(t0)}, 4, {vr(t0)}')
    a.I(f'v_lshl_add_u32 {vr(t0)}, {vr(n)}, 12, {vr(t0)}')
    a.I(f'v_and_b32 {vr(t1)}, 3, v0')
    a.I(f'v_lshl_add_u32 {vr(t0)}, {vr(t1)}, 7, {vr(t0)}')
    a.I(f'v_bfe_u32 {vr(t1)}, v0, 1, 1')
    a.I(f'v_lshl_add_u32 {vr(t0)}, {vr(t1)}, 6, {vr(t0)}')
    a.I(f'v_add_u32 {vr(vKa)}, s5, {vr(t0)}')
    a.I(f'v_xor_b32 {vr(vKa + 1)}, 64, {vr(vKa)}')
    for i in range(4): a.I(f'v_mov_b32 {vr(ONES + i)}, 0x3f803f80')
    for i in range(0, 12, 2): a.I(f'v_mov_b64 {vr(NEGM + i, 2)}, 0')
    NEG_BIG = fbits(-3.0e38)
    for s in (sTHR, sTHR8, sCL, sCL8): a.I(f's_mov_b32 {sr(s)}, {NEG_BIG}')
    a.I(f's_lshl_b32 s3, {sr(sHH)}, 17')
    a.I(f'v_add_u32 {vr(vD)}, s3, {vr(vD)}')
    a.I(f's_mov_b32 {sr(sOV)}, 32768')
    a.I(f's_mov_b32 {sr(sOK)}, 32768')
    a.I(f's_mov_b32 {sr(sT1)}, 32768')
    a.I(f's_mov_b32 {sr(sRS)}, 0')
    a.I(f's_setpc_b64 {sr(sLINK, 2)}')

    a.label('k1_comp')
    a.lg = []
    st.n = st0
    vWp, vX, vQW = 28, 32, 34
    tr_pattern(vWp)
    a.I(f's_lshr_b32 s3, {sr(sR)}, 1')
    a.I(f's_mul_i32 s4, s3, {HB1}')
    a.I(f's_and_b32 s5, {sr(sR)}, 1')
    a.I('s_lshl_b32 s6, s5, 9')
    a.I('s_add_u32 s4, s4, s6')
    a.I(f'v_add_u32 {vr(vWp)}, s4, {vr(vWp)}')
    for j in range(1, 4): a.I(f'v_xor_b32 {vr(vWp + j)}, {32 * j}, {vr(vWp)}')
    a.I(f'v_and_b32 {vr(n)}, 15, v0')
    a.I(f'v_lshrrev_b32 {vr(t0)}, 1, {vr(n)}')
    a.I(f'v_and_b32 {vr(t1)}, 2, {vr(t0)}')
    a.I(f'v_lshlrev_b32 {vr(t1)}, 1, {vr(t1)}')
    a.I(f'v_xor_b32 {vr(t0)}, {vr(t0)}, {vr(t1)}')
    a.I(f'v_lshlrev_b32 {vr(t1)}, 1, {vr(g)}')
    a.I(f'v_xor_b32 {vr(t0)}, {vr(t0)}, {vr(t1)}')
    a.I(f'v_lshlrev_b32 {vr(t0)}, 4, {vr(t0)}')
    a.I(f'v_lshl_add_u32 {vr(t0)}, {vr(n)}, 7, {vr(t0)}')
    a.I(f'v_add_u32 {vr(vX)}, {XB}, {vr(t0)}')
    a.I(f'v_xor_b32 {vr(vX + 1)}, 16, {vr(vX)}')
    a.I(f's_mul_i32 s4, s3, 36864')
    a.I('s_lshl_b32 s6, s5, 11')
    a.I('s_add_u32 s4, s4, s6')
    a.I(f's_add_u32 s4, s4, {QB}')
    a.I(f'v_lshl_add_u32 {vr(t0)}, {vr(n)}, 4, s4')
    a.I(f'v_lshrrev_b32 {vr(t1)}, 1, {vr(g)}')
    a.I(f'v_lshl_add_u32 {vr(t0)}, {vr(t1)}, 8, {vr(t0)}')
    a.I(f'v_and_b32 {vr(t1)}, 1, {vr(g)}')
    a.I(f'v_lshl_add_u32 {vr(vQW)}, {vr(t1)}, 3, {vr(t0)}')
    a.I('s_waitcnt lgkmcnt(0)')
    rest_setup()
    a.I(f's_call_b64 {sr(sLINK, 2)}, k1_asetup')
    cval = fbits(128 ** -0.5 * math.log2(math.e))
    a.I(f's_mov_b32 {sr(sC)}, {cval}')
    a.I(f's_mov_b32 {sr(sC + 1)}, {cval}')
    for i in range(0, 144, 2): a.I(f'v_mov_b64 {vr(ACC + i, 2)}, 0')
    def xread(t, slot, ks): return f'ds_read_b128 {vr(XF + 4 * t, 4)}, {vr(vX + ks)} offset:{slot * 18432 + t * 2048}'
    def wreads(W, slot, ks):
        return [f'ds_read_b64_tr_b16 {vr(W + 4 * j + 2 * h, 2)}, {vr(vWp + j)} offset:{slot * 16384 + ks * 2048 + h * 1024}' for j in range(4) for h in range(2)]
    GT = OPT['gate']
    def kstep(Wc, Wn, nslot, nks, gated, last=False):
        wr = wreads(Wn, nslot, nks) if not last else []
        conv = []
        for t in range(9):
            for j in range(4):
                a.I(f'{MF} {vr(acc(t, j), 4)}, {vr(Wc + 4 * j, 4)}, {vr(XF + 4 * t, 4)}, {vr(acc(t, j), 4)}')
                if t >= (GT if gated else 0) and j in (0, 2) and wr: a.I(wr.pop(0))
                for _ in range(OPT['cvn']):
                    if conv: a.I(conv.pop(0))
            if gated and t == GT - 1:
                a.I('s_waitcnt lgkmcnt(0)')
                a.I('s_barrier')
                if not last:
                    for tt in range(GT): a.I(xread(tt, nslot, nks))
            elif not last and (not gated or t >= GT): a.I(xread(t, nslot, nks))
            if last and t >= GT - 1:
                lo = 0 if t == GT - 1 else t - 1
                for tc in range(lo, t): conv += convert(tc)
        if last:
            a.many(conv); a.many(convert(8))
        assert not wr
    def convert(t):
        r = []
        if OPT['cvpk']:
            for j in range(4): r += [f'v_pk_mul_f32 {vr(acc(t, j) + 2 * k, 2)}, {vr(acc(t, j) + 2 * k, 2)}, {sr(sC, 2)}' for k in range(2)]
        else:
            for j in range(4): r += [f'v_mul_f32 {vr(acc(t, j) + k)}, {sr(sC)}, {vr(acc(t, j) + k)}' for k in range(4)]
        for j in range(4): r += [f'v_cvt_pk_bf16_f32 {vr(acc(t, j) + k)}, {vr(acc(t, j) + 2 * k)}, {vr(acc(t, j) + 2 * k + 1)}' for k in range(2)]
        for j in range(4): r += [f'ds_write_b64 {vr(vQW)}, {vr(acc(t, j), 2)} offset:{t * 4096 + (j >> 1) * 1024 + (j & 1) * 512}']
        r += [f'v_mov_b64 {vr(i, 2)}, 0' for i in range(acc(t, 0), acc(t, 0) + 16, 2) if i >= O]
        return r
    W0, W1 = WF, WF + 16
    if OPT['cprio']: a.I(f's_setprio {OPT["cprio"]}')
    a.I('s_barrier')
    st.cyc()
    a.many(wreads(W0, 0, 0))
    for t in range(9): a.I(xread(t, 0, 0))
    a.I(f's_mov_b32 {sr(sCNT)}, 0')
    a.I('s_waitcnt lgkmcnt(0)')
    class _Dry(Asm): pass
    save = (a.ins, a.lg); a.ins = []; a.lg = []
    kstep(W1, W0, 0, 0, True); lg0 = [set(x) for x in a.lg]
    a.ins, a.lg = save
    a.lg = [set(x) for x in lg0]
    a.label('k1_qloop')
    for i in range(3):
        kstep(W0, W1, i, 1, False)
        kstep(W1, W0, (i + 1) % 3, 0, True)
    assert [set(x) for x in a.lg] == lg0
    a.I(f's_add_u32 {sr(sCNT)}, {sr(sCNT)}, 1')
    a.I(f's_cmp_lt_u32 {sr(sCNT)}, 5')
    a.I('s_cbranch_scc1 k1_qloop')
    kstep(W0, W1, 0, 1, False)
    kstep(W1, W0, 0, 0, True, last=True)
    if OPT['cprio']: a.I('s_setprio 0')
    st.cyc()

    a.label('k1_join')
    if OPT.get('qst'): st.on = False
    a.lg = [set()]
    a.I(f's_mov_b32 {sr(sCNT)}, 0')
    a.I(f's_lshl_b32 s5, {sr(sHH)}, 15')
    a.I(f's_add_u32 s5, s5, {sr(sM0A)}')
    a.I('s_waitcnt lgkmcnt(0)')
    a.I('s_barrier')
    for T in range(2):
        for k in range(4): a.I(f'ds_read_b128 {vr(q_(T, k), 4)}, {vr(mx8)} offset:{T * 4096 + k * 1024}')
    for k in range(4): a.I(f'ds_read_b128 {vr(q_(2, k), 4)}, {vr(tB)} offset:{32768 + k * 1024}')
    a.I('s_waitcnt lgkmcnt(0)')
    a.I('s_barrier')
    a.lg = []
    def dma_ins(kind):
        srd, so = (sK, sOK) if kind == 'K' else (sV, sOV)
        r = [[f'buffer_load_dwordx4 {vr(vD)}, {sr(srd, 4)}, {sr(so)} offen offset:{j * 1024}{APOL(kind, j)} lds'] for j in range(4)]
        if OPT['lin']:
            for j in range(3): r[j].append(f's_add_u32 {sr(so)}, {sr(so)}, 3072')
        r[3].append(f's_add_u32 {sr(so)}, {sr(so)}, {16384 - (9216 if OPT["lin"] else 0)}')
        return r
    def dma_grp(kind, m0):
        r = dma_ins(kind); r[0] = [m0, 's_nop 0'] + r[0]
        return r
    pro_aux = []
    if OPT['kvl2']:
        a.I(f's_mov_b32 {sr(sOV)}, 16384')
        a.I(f's_mov_b32 {sr(sOK)}, 16384')
        a.I(f's_mul_i32 s3, {sr(sHH)}, 49152')
        a.I('s_sub_u32 s4, 49152, s3')
        a.I(f's_add_u32 s4, s4, {sr(sM0A)}')
        for x in dma_grp('K', 's_mov_b32 m0, s4'): a.many(x)
        pro_aux = dma_grp('V', 's_add_u32 m0, s4, 16384') + dma_grp('K', 's_mov_b32 m0, s5')
    else:
        for x in dma_grp('K', 's_mov_b32 m0, s5'): a.many(x)
        a.I(f's_cmp_eq_u32 {sr(sHH)}, 0')
        a.I('s_cbranch_scc1 k1_nowr')
        kvwrite('K1', 32768, mx, 0); kvwrite('V1', 49152, mx, 16384)
    a.label('k1_nowr')
    a.lg = []
    LA, SY = 6, OPT['sy']
    def rd(kind, jl, f):
        if kind == 'K':
            return [f'ds_read_b128 {vr(POOL + 4 * f, 4)}, {vr(vKa + (f & 1))} offset:{(f >> 2) * 1024 + ((f >> 1) & 1) * 512}']
        return [f'ds_read_b64_tr_b16 {vr(POOL + 4 * f + 2 * h, 2)}, {vr(vVa + (f & 3))} offset:{h * 1024 + (f >> 2) * 512}' for h in range(2)]
    def rd_upd(kind, jl, f):
        r = rd(kind, jl, f)
        if kind == 'K' and f >= 6: r.append(f'v_add_u32 {vr(vKa + (f & 1))}, {sr(sDK if jl else sJ)}, {vr(vKa + (f & 1))}')
        if kind == 'V' and f >= 6:
            for x in (f - 2, f): r.append(f'v_add_u32 {vr(vVa + (x & 3))}, {sr(sDV if jl else sJ)}, {vr(vVa + (x & 3))}')
        return r
    for f in range(LA): a.many(rd('K', 0, f))
    lgK = [set(x) for x in a.lg]
    lgV = [set(Insn(x).wr) for f in range(LA) for x in rd('V', 0, f)]
    st.cyc()
    a.I(f's_lshr_b32 s3, {sr(sR)}, 1')
    a.I(f's_xor_b32 s3, s3, {sr(sHH)}')
    a.I('s_cmp_eq_u32 s3, 1')
    a.I('s_cbranch_scc1 k1_proL')

    def maxops(jl, heavy):
        def chain(vs, dst, extra=None):
            o = [f'v_max3_f32 {vr(dst)}, {vr(vs[0])}, {vr(vs[1])}, {vr(vs[2])}']
            for k in range(3, len(vs) - 1, 2): o.append(f'v_max3_f32 {vr(dst)}, {vr(dst)}, {vr(vs[k])}, {vr(vs[k + 1])}')
            o.append(f'v_max_f32 {vr(dst)}, {vr(dst)}, {vr(vs[-1])}' if extra is None else f'v_max3_f32 {vr(dst)}, {vr(dst)}, {vr(vs[-1])}, {vr(extra)}')
            return o
        c1 = chain([s_(0, jl) + k for k in range(8)], tB)
        c0 = chain([s_(1, jl) + k for k in range(8)], mx, tB)
        c8 = chain([s_(2, 0) + k for k in range(8)], mx8) if heavy else []
        ops = []
        for k in range(4):
            ops += [c1[k]] + ([c8[k]] if heavy else []) + [c0[k]]
        return ops
    def expops(jl, heavy):
        ops = []
        Tl = (0, 1, 2) if heavy else (0, 1)
        for k in range(8):
            for T in Tl: ops.append(f'v_exp_f32 {vr(s_(T, jl) + k)}, {vr(s_(T, jl) + k)}')
            if k >= 2 and k % 2 == 0:
                for T in Tl: ops.append(f'v_cvt_pk_bf16_f32 {vr(s_(T, jl) + k // 2 - 1)}, {vr(s_(T, jl) + k - 2)}, {vr(s_(T, jl) + k - 1)}')
        for T in Tl: ops.append(f'v_cvt_pk_bf16_f32 {vr(s_(T, jl) + 3)}, {vr(s_(T, jl) + 6)}, {vr(s_(T, jl) + 7)}')
        return ops
    stubs = []
    def check(jl, heavy):
        for (thr, m, fn) in ((sTHR, mx, f'k1_rare{jl}'),) + (((sTHR8, mx8, 'k1_rare8'),) if heavy else ()):
            lb = a.newlabel('k1_ok')
            a.I(f'v_cmp_lt_f32 vcc, {sr(thr)}, {vr(m)}')
            a.I(f's_cbranch_vccnz {lb}_s')
            a.label(lb)
            stubs.append((lb, fn))
    def mfmas(kind, jl, heavy, f):
        Tl = (0, 1, 2) if heavy else (0, 1)
        P = vr(POOL + 4 * f, 4)
        if kind == 'K':
            tt, ks = f >> 2, f & 3
            return [f'{MF} {vr(s_(T, jl, tt), 4)}, {P}, {vr(q_(T, ks), 4)}, {vr(negm(T) if ks == 0 else s_(T, jl, tt), 4)}' for T in Tl]
        r = [f'{MF} {vr(o_(T, f), 4)}, {P}, {vr(s_(T, jl), 4)}, {vr(o_(T, f), 4)}' for T in Tl]
        if f == 7: r += [f'{MF} {vr(o_(T, 8), 4)}, {vr(ONES, 4)}, {vr(s_(T, jl), 4)}, {vr(o_(T, 8), 4)}' for T in Tl]
        return r
    def ring_step(doK, doV):
        r = []
        for (P, Po, D, on) in ((sKP, sKPo, sDK, doK), (sVP, sVPo, sDV, doV)):
            if not on: continue
            r.append([f's_mov_b32 {sr(Po)}, {sr(P)}',
                      f's_cmp_ge_u32 {sr(P)}, 49152',
                      f's_cselect_b32 {sr(D)}, {-49152 & 0xffffffff:#x}, {sr(sT1)}',
                      f's_add_u32 {sr(P)}, {sr(P)}, {sr(D)}',
                      f's_sub_u32 {sr(D)}, {sr(D)}, {sr(sJ)}'])
        return r
    def cost(x):
        if callable(x): return 8
        return 8 if x.startswith('v_exp') else 4
    def pack(stream, ngaps, reserved):
        for cap_extra in range(0, ngaps + 1):
            big = set((i * ngaps) // cap_extra for i in range(cap_extra)) if cap_extra else set()
            out = [[] for _ in range(ngaps)]; k = 0
            for gi in range(ngaps):
                room = (16 if gi in big else 8) - reserved[gi]
                while k < len(stream) and cost(stream[k]) <= room:
                    out[gi].append(stream[k]); room -= cost(stream[k]); k += 1
            if k == len(stream): break
        else:
            out[-1] += stream[k:]
        if cap_extra == 0 and OPT['spread']:
            h = max([gi for gi in range(ngaps) if any(callable(x) for x in out[gi])] + [-1]) + 1
            rest = [x for gi in range(h, ngaps) for x in out[gi]]
            groups = []; room = 0
            for x in rest:
                if cost(x) > room: groups.append([]); room = 8
                groups[-1].append(x); room -= cost(x)
            free = [gi for gi in range(h, ngaps) if reserved[gi] == 0]
            if len(groups) <= len(free):
                for gi in range(h, ngaps): out[gi] = []
                for i, gp in enumerate(groups): out[free[(i * len(free)) // len(groups)]] = gp
        return out
    def block(segs, streams, mode, aux0, nvm, auxat=None, pr=None, prn=3):
        uses = [(si, f) for si in range(len(segs)) for f in range(8)]
        nU = len(uses)
        gaps = []
        for k, (si, f) in enumerate(uses):
            for n_ in range(len(mfmas(segs[si][0], segs[si][1], segs[si][2], f))): gaps.append((k, n_))
        aux = {gp: [] for gp in gaps}; pre = {gp: [] for gp in gaps}
        for k in range(nU - LA):
            s2, f2 = uses[k + LA]
            rr = rd_upd(segs[s2][0], segs[s2][1], f2)
            for i, x in enumerate([x for x in rr if x.startswith('ds_')]): aux[(k, i)].append(x)
            pre[(k + 1, 0)] += [x for x in rr if x.startswith('v_')]
        if mode != 'fin':
            post = [gp for gp in gaps if gp[0] > nU - 8 + SY]
            q = [(f, x) for f in range(LA) for x in rd('V', 0, f)]
            early = [x for f, x in q if f < OPT['nimm']]; q = [(f, x) for f, x in q if f >= OPT['nimm']]
            per = -(-len(q) // len(post))
            for gp in post:
                for _ in range(per):
                    fdone = gp[0] - (nU - 8) - (0 if gp[1] == 1 else 1)
                    if q and q[0][0] <= fdone: aux[gp].append(q.pop(0)[1])
            assert not q, q
        gsel = gaps[OPT['aux0']::OPT['auxs']] if auxat is None else [gp for gp in gaps if gp[0] >= auxat]
        assert len(aux0) <= len(gsel)
        if mode == 'loop' and OPT['gk'] >= 0:
            gsel = gaps[:3] + [gaps[OPT['gk']], gaps[OPT['gv']]]
            assert len(aux0) == 5
            if OPT['g2from'] < 7:
                def cond(grp, late):
                    def f():
                        lb = a.newlabel('k1_site')
                        a.I(f's_cmp_ge_u32 {sr(sCNT)}, {OPT["g2from"]}')
                        a.I(f's_cbranch_scc{0 if late else 1} {lb}')
                        a.many(grp)
                        a.label(lb)
                    return f
                gsel = gsel + [gaps[OPT['gk2']], gaps[OPT['gv2']]]
                aux0 = aux0[:3] + [cond(aux0[3], False), cond(aux0[4], False), cond(aux0[3], True), cond(aux0[4], True)]
        for gp, x in zip(gsel, aux0): aux[gp].append(x)
        fill = {}
        for (sa, sb, skip, ops) in streams:
            gl = [gp for gp in gaps if sa <= uses[gp[0]][0] <= sb]
            gl = gl[skip:len(gl) - OPT['tail']]
            for gp, ol in zip(gl, pack(ops, len(gl), [4 * len(pre[gp]) for gp in gl])):
                fill[gp] = ol
                assert not (any(callable(x) for x in ol) and uses[gp[0]][0] != sa)
        def emit(x):
            if callable(x): x()
            elif isinstance(x, list):
                for y in x: emit(y)
            else: a.I(x)
        for k, (si, f) in enumerate(uses):
            kind, jl, heavy, after = segs[si]
            if f == 0 and OPT['aprio'] and si and not (mode == 'fin' and OPT['finp']): a.I(f's_setprio {pr[si] if pr else len(segs) - 1 - si}')
            for n_, m in enumerate(mfmas(kind, jl, heavy, f)):
                a.I(m)
                emit(pre[(k, n_)]); emit(fill.get((k, n_), [])); emit(aux[(k, n_)])
            if OPT['stamp'] == 3 and mode == 'loop' and f == 7 and si < 3: a.raw(f's_memtime {sr(90 + 2 * si, 2)}')
            if mode != 'fin' and k == nU - 8 + SY:
                if OPT['stamp'] == 3 and mode == 'loop':
                    a.raw('s_mov_b32 s88, s98')
                    a.raw('s_memtime s[96:97]')
                a.I(f's_waitcnt vmcnt({nvm}) lgkmcnt(0)')
                a.I('s_barrier')
                if OPT['aprio']: a.I(f's_setprio {prn}')
                st.sh()
                if OPT['stamp'] == 3 and mode == 'loop': a.raw('s_memtime s[98:99]')
                a.many(early)
                if mode == 'pro' and OPT['lazyj']:
                    for i in range(224, 232, 2): a.I(f'v_mov_b64 {vr(i, 2)}, 0')
            if f == 7 and after: after()
        if mode != 'fin': assert [set(x) for x in a.lg] == lgV, (a.lg, lgV)
    def resc():
        lb = a.newlabel('k1_nors')
        a.I(f's_cmp_lg_u32 {sr(sRS)}, 0')
        a.I(f's_cbranch_scc1 {lb}_s')
        a.label(lb)
        stubs.append((lb, 'k1_rescale'))
    def sm(jl, heavy): return maxops(jl, heavy) + [lambda: check(jl, heavy)] + expops(jl, heavy)
    OFFM0 = 0x30000
    def warm(kind, so):
        return [[f'buffer_load_dwordx4 {vr(vD)}, {sr(sK if kind == "K" else sV, 4)}, {so} offen offset:{j * 1024}{NT("pfp")} lds'] for j in range(4)]
    def prologue(h0):
        a.lg = [set(x) for x in lgK]
        ax = ring_step(True, False) + pro_aux
        block([('K', 0, h0, lambda: (a.many(maxops(0, h0)), check(0, h0))), ('K', 1, False, None)],
              [(1, 1, 0, expops(0, h0))], 'pro', ax, 8 if pro_aux else (4 if OPT['lazyj'] else 63), auxat=0, prn=OPT['px' if h0 else 'py'][1])
    def body_aux():
        r = [[f's_add_u32 {sr(sMK)}, {sr(sM0A)}, {sr(sVPo)}',
              f's_add_u32 {sr(sMV)}, {sr(sM0A)}, {sr(sKPo)}',
              f's_cmp_ge_u32 {sr(sCNT)}, 6',
              f's_cselect_b32 {sr(sMV)}, {OFFM0}, {sr(sMV)}',
              f's_cselect_b32 {sr(sOV)}, 0x1000000, {sr(sOV)}',
              f's_sub_u32 s3, {sr(sCNT)}, 1',
              f's_cmp_ge_u32 s3, 5',
              f's_cselect_b32 m0, {OFFM0}, {sr(sMK)}',
              f's_cselect_b32 s3, 0x1000000, {sr(sOK)}',
              f's_cselect_b32 s4, 0, 16384']]
        r += ring_step(True, True)
        for j in range(4): r.append([f'buffer_load_dwordx4 {vr(vD)}, {sr(sK, 4)}, s3 offen offset:{j * 1024}{APOL("K", j)} lds'] + (['s_add_u32 s3, s3, 3072'] if OPT['lin'] and j < 3 else []))
        r[-1] += [f's_add_u32 {sr(sOK)}, {sr(sOK)}, s4', f's_mov_b32 m0, {sr(sMV)}']
        nv = 4
        if OPT['mk']:
            w = warm('K', 's3')
            w[0] = [f's_mov_b32 s4, {OPT["mk"]}', f's_bitcmp1_b32 s4, {sr(sCNT)}', f's_cselect_b32 s3, {sr(sOK)}, 0x1000000'] + w[0]
            r += w; nv += 4
        if OPT['mv']:
            w = warm('V', 's3')
            w[0] = [f's_add_u32 s3, {sr(sOV)}, 16384', f's_mov_b32 s4, {OPT["mv"]}', f's_bitcmp1_b32 s4, {sr(sCNT)}', f's_cselect_b32 s3, s3, 0x1000000'] + w[0]
            r += w; nv += 4
        r += dma_ins('V')
        G = OPT['grp']
        if G > 1:
            head, d = r[:3], r[3:]
            r = head + [sum(d[i:i + G], []) for i in range(0, len(d), G)]
        return r, nv
    def body(hc, tag, exit_to):
        a.lg = [set(x) for x in lgV]
        hn = not hc
        ax, nvm = body_aux()
        block([('V', 0, hc, resc), ('K', 0, hn, None), ('V', 1, False, resc), ('K', 1, False, None)],
              [(0, 1, 1, sm(1, False)), (2, 3, 1, sm(0, hn))], 'loop', ax, nvm, pr=OPT['px' if hc else 'py'][1:], prn=OPT['py' if hc else 'px'][1])
        a.I(f's_add_u32 {sr(sCNT)}, {sr(sCNT)}, 1')
        a.I(f's_cmp_eq_u32 {sr(sCNT)}, 7')
        a.I(f's_cbranch_scc1 {exit_to}')
    K = K2(a)
    def final(hc):
        a.lg = [set(x) for x in lgV]
        lb = a.newlabel('k1_early')
        if OPT['finp']: a.I(f's_setprio {3 if OPT["finp"] == 1 else 0}')
        a.I(f's_cmp_eq_u32 {sr(sHH)}, 1')
        a.I(f's_cbranch_scc1 {lb}_s')
        a.label(lb)
        stubs.append((lb, 'k1_early'))
        NM8 = negm(2)
        ax = [[f's_lshl_b32 s5, {sr(sHH)}, 15', 's_add_u32 s5, s5, 81920', f's_lshl_b32 s13, {sr(sHH)}, 14',
               f's_lshl_b32 s4, {sr(sR)}, 11', 's_add_u32 s3, s4, s5', 'v_lshl_add_u32 v1, v0, 4, s3'],
              ['v_add_u32 v2, s13, v1', f's_lshl_b32 s3, {sr(sWAVE)}, 9', f'v_lshl_add_u32 {vr(vD)}, v0, 3, s3'],
              [], [f'v_mov_b32 {vr(NM8 + 1)}, {vr(o_(2, 8))}']]
        ax += [[f'ds_write_b128 {"v1" if d < 4 else "v2"}, {vr(o_(2, d), 4)} offset:{(d >> 1) * 8192 + (d & 1) * 1024}'] for d in range(8)]
        ax += [[f'ds_write_b64 {vr(vD)}, {vr(NM8, 2)}']]
        block([('V', 0, hc, resc), ('V', 1, False, None)], [(0, 0, 1, sm(1, False))], 'fin', ax, 0, auxat=8)
        if OPT['aprio']: a.I('s_setprio 0')
    prologue(True)
    a.label('k1_X')
    body(True, 'x', 'k1_finL')
    a.label('k1_Y')
    body(False, 'y', 'k1_finH')
    a.I('s_branch k1_X')
    a.label('k1_proL')
    prologue(False)
    a.I('s_branch k1_Y')

    a.auto = False
    def xg_reduce(x, tmp, op):
        a.I(f'v_mov_b32 {vr(tmp)}, {vr(x)}')
        a.I(f'v_permlane32_swap_b32 {vr(x)}, {vr(tmp)}')
        a.I(f'{op} {vr(x)}, {vr(x)}, {vr(tmp)}')
        a.I(f'v_mov_b32 {vr(tmp)}, {vr(x)}')
        a.I(f'v_permlane16_swap_b32 {vr(x)}, {vr(tmp)}')
        a.I(f'{op} {vr(x)}, {vr(x)}, {vr(tmp)}')
    FREG = {0: mx, 1: tA, 2: mx8}
    def rare(T, vals, scl, canfirst):
        m, tmp = tB, FREG[T]
        a.I(f'v_max3_f32 {vr(m)}, {vr(vals[0])}, {vr(vals[1])}, {vr(vals[2])}')
        for k in range(3, len(vals) - 1, 2): a.I(f'v_max3_f32 {vr(m)}, {vr(m)}, {vr(vals[k])}, {vr(vals[k + 1])}')
        a.I(f'v_max_f32 {vr(m)}, {vr(m)}, {vr(vals[-1])}')
        xg_reduce(m, tmp, 'v_max_f32')
        a.I(f'v_max_f32 {vr(m)}, {sr(scl)}, {vr(m)}')
        for v in vals: a.I(f'v_sub_f32 {vr(v)}, {vr(v)}, {vr(m)}')
        for k in range(4): a.I(f'v_sub_f32 {vr(negm(T) + k)}, {vr(negm(T) + k)}, {vr(m)}')
        lb = a.newlabel('k1_first'); lb2 = a.newlabel('k1_rdone')
        if canfirst:
            a.I(f's_cmp_lg_u32 {sr(scl)}, 0')
            a.I(f's_cbranch_scc1 {lb}')
        a.I(f'v_exp_f32 {vr(tmp)}, -{vr(m)}')
        if T == 2:
            for k in range(36): a.I(f'v_mul_f32 {vr(o_(T, 8) + k)}, {vr(o_(T, 8) + k)}, {vr(tmp)}')
        else:
            a.I(f's_mov_b32 {sr(sRS)}, 1')
        if canfirst: a.label(lb)
    for jl in range(2):
        a.label(f'k1_rare{jl}')
        for T in range(2): rare(T, [s_(T, jl) + k for k in range(8)], sCL, jl == 0)
        a.I(f's_mov_b32 {sr(sTHR)}, {THRV}')
        a.I(f's_mov_b32 {sr(sCL)}, 0')
        a.I(f's_setpc_b64 {sr(sLINK, 2)}')
    a.label('k1_rare8')
    rare(2, [s_(2, 0) + k for k in range(8)], sCL8, True)
    a.I(f's_mov_b32 {sr(sTHR8)}, {THRV}')
    a.I(f's_mov_b32 {sr(sCL8)}, 0')
    a.I(f's_setpc_b64 {sr(sLINK, 2)}')
    a.label('k1_early')
    if OPT['finp']: a.I(f's_setprio {0 if OPT["finp"] == 1 else 3}')
    K.early()
    a.I(f's_setpc_b64 {sr(sLINK, 2)}')
    a.label('k1_rescale')
    for T in range(2):
        for k in range(36): a.I(f'v_mul_f32 {vr(o_(T, 8) + k)}, {vr(o_(T, 8) + k)}, {vr(FREG[T])}')
    a.I(f's_mov_b32 {sr(sRS)}, 0')
    a.I(f's_setpc_b64 {sr(sLINK, 2)}')
    a.auto = True

    a.label('k1_finH')
    final(True)
    a.I('s_branch k1_epi')
    pos = len(a.ins)
    a.label('k1_finL')
    final(False)
    tailcode = a.ins[pos:]; del a.ins[pos:]
    for lb, fn in stubs:
        a.label(lb + '_s')
        a.raw(f's_call_b64 {sr(sLINK, 2)}, {fn}')
        a.raw(f's_branch {lb}')
    a.ins += tailcode
    a.label('k1_epi')
    a.lg = []
    st.cyc()
    e0, e1, e2, e3, e4 = 3, 4, 5, 6, 8
    NM8 = negm(2)
    a.lg = [set()]
    a.I(f'v_lshlrev_b32 {vr(e0)}, 4, v0')
    a.I(f's_lshl_b32 s3, {sr(sHH)}, 11')
    a.I(f'v_lshl_add_u32 {vr(e2)}, v0, 3, s3')
    a.I(f's_lshl_b32 s6, {sr(sR)}, 13')
    a.I('s_add_u32 s6, s6, s5')
    a.I(f's_cmp_ge_u32 {sr(sR)}, 2')
    a.I('s_cselect_b32 s13, s13, 0')
    a.I('s_add_u32 s6, s6, s13')
    a.I(f'v_add_u32 {vr(e1)}, s6, {vr(e0)}')
    R8 = S
    a.I(f'v_mov_b32 v2, {vr(e1)}')
    def bar1():
        a.I(f's_cmp_lg_u32 {sr(sHH)}, 0')
        a.I('s_cbranch_scc1 k1_nocs')
        K.comp_setup()
        a.label('k1_nocs')
        a.I('s_waitcnt lgkmcnt(0)')
        a.I('s_barrier')
        for sl in range(4): a.I(f'ds_read_b64 {vr(R8 + 32 + 2 * sl, 2)}, {vr(e2)} offset:{sl * 512}')
        for k in range(8): a.I(f'ds_read_b128 {vr(R8 + 4 * k, 4)}, v2 offset:{k * 1024}')
    if OPT['b1at'] < 0: bar1()
    flag_srd(sO)
    a.I(f's_cmp_eq_u32 {sr(sHH)}, 0')
    a.I('s_cbranch_scc1 k1_nosnap')
    K.snapshot()
    a.label('k1_nosnap')
    a.I('s_load_dwordx2 s[10:11], s[0:1], 80')
    sOO = sV
    a.I(f's_lshl_b32 s3, {sr(sBLK)}, 3')
    a.I(f's_add_u32 s3, s3, {sr(sB)}')
    a.I(f's_mul_i32 s3, s3, {O_SLICE}')
    a.I(f's_mul_i32 s6, {sr(sHP)}, 73728')
    a.I('s_add_u32 s3, s3, s6')
    a.I(f's_add_u32 {sr(sOO)}, s16, s3')
    a.I(f's_addc_u32 {sr(sOO + 1)}, s17, 0')
    a.I(f's_mov_b32 {sr(sOO + 2)}, 73728')
    a.I(f's_mov_b32 {sr(sOO + 3)}, 0x20000')
    a.I(f's_mul_i32 s3, {sr(sHH)}, 36864')
    a.I(f'v_add_u32 {vr(e3)}, s4, {vr(e0)}')
    def fin(src, scale2, voff, soff, imm):
        for k in range(4): a.I(f'v_pk_mul_f32 {vr(src + 2 * k, 2)}, {vr(src + 2 * k, 2)}, {vr(scale2, 2)}')
        for k in range(4): a.I(f'v_cvt_pk_bf16_f32 {vr(src + k)}, {vr(src + 2 * k)}, {vr(src + 2 * k + 1)}')
        a.I(f'buffer_store_dwordx4 {vr(src, 4)}, {vr(voff)}, {sr(sOO, 4)}, {soff} offen offset:{imm}{NT("ont")}')
    for T in range(2):
        for k in range(2): a.I(f'v_rcp_f32 {vr(o_(T, 8) + k)}, {vr(o_(T, 8) + k)}')
    a.I(f's_add_u32 s6, s3, {K.XB}')
    a.I(f'v_add_u32 {vr(e1)}, s6, {vr(e3)}')
    a.I('s_mov_b32 s6, s3')
    def xw(P): return [f'ds_write_b128 {vr(e1)}, {vr(o_(T, 2 * P), 4)} offset:{P * 9216 + T * 1024}' for T in range(2)]
    for P in range(4):
        for T in range(2): fin(o_(T, 2 * P), o_(T, 8), e3, 's6', T * 1024)
        if P < 3: a.I('s_add_u32 s6, s6, 9216')
        if P == OPT['b1at']: bar1()
        if P == OPT['b2at']:
            a.I('s_waitcnt lgkmcnt(0)')
            a.I('s_barrier')
            for Q_ in range(P): a.many(xw(Q_))
        if P >= OPT['b2at']: a.many(xw(P))
    K.ids()
    a.I(f's_mul_i32 s6, {sr(sR)}, 9216')
    a.I('s_add_u32 s6, s6, s3')
    a.I(f'v_add_u32 {vr(e3)}, 8192, {vr(e0)}')
    nm = [R8 + 32 + 2 * i for i in range(4)]
    ll = [R8 + 33 + 2 * i for i in range(4)]
    a.I(f'v_min3_f32 {vr(e0)}, {vr(nm[0])}, {vr(nm[1])}, {vr(nm[2])}')
    a.I(f'v_min_f32 {vr(e0)}, {vr(e0)}, {vr(nm[3])}')
    for i in range(4): a.I(f'v_sub_f32 {vr(nm[i])}, {vr(e0)}, {vr(nm[i])}')
    for i in range(4): a.I(f'v_exp_f32 {vr(nm[i])}, {vr(nm[i])}')
    a.I(f'v_mul_f32 {vr(e0)}, {vr(ll[0])}, {vr(nm[0])}')
    for i in range(1, 4): a.I(f'v_fmac_f32 {vr(e0)}, {vr(ll[i])}, {vr(nm[i])}')
    a.I(f'v_rcp_f32 {vr(e4)}, {vr(e0)}')
    a.I(f'v_rcp_f32 {vr(e4 + 1)}, {vr(e0)}')
    for k in range(8): a.I(f'v_mul_f32 {vr(R8 + k)}, {vr(R8 + k)}, {vr(nm[0])}')
    for i in range(1, 4):
        for k in range(8): a.I(f'v_fmac_f32 {vr(R8 + k)}, {vr(R8 + 8 * i + k)}, {vr(nm[i])}')
    fin(R8, e4, e3, 's6', 0)
    a.I(f's_add_u32 s6, s6, {K.XB}')
    a.I(f'v_add_u32 {vr(e3)}, s6, {vr(e3)}')
    a.I(f'ds_write_b128 {vr(e3)}, {vr(R8, 4)}')
    if OPT['stamp'] == 3: st.n = 12
    else: st.cyc(); st.real()
    K.st1 = st
    if OPT['stamp'] == 8: K.st.n = st.n
    if OPT.get('qst'): st.on = True
    return K.main()

class K2:
    sO, sW, sD, sE, sF = 20, 24, 28, 20, 36
    sWAVE, sR, sLD, sBLK, sB, sHP, sN8, sKH, sKC = 40, 41, 42, 43, 44, 45, 67, 64, 62
    sM0W, sM0X, sOW, sOX, sSL, sCNT, sT0, sST, sROT, sH, sNH, sKS = 55, 48, 49, 50, 51, 52, 53, 54, 65, 56, 57, 58
    sSTX, sFO, sPC, sHPc = 59, 60, 61, 66
    sRW, sRX, sWB, sXB, sWEX = 68, 72, 54, 59, 8
    sLINK = 8
    vWp, vX, vL16, vFA, vFV, vDW, vDX, vZ, vCT = 40, 42, 44, 34, 35, 28, 32, 38, 39
    g, t0, t1, t2 = 45, 46, 47, 28
    ACC8 = [48, 56, 64, 116, 124, 132, 140, 220, 228]
    TMP8 = [196, 204, 212, 236, 244, 4, 12, 20, 32]
    FQ = [76 + 4 * i for i in range(10)] + [148 + 4 * i for i in range(12)]
    XB = 81920
    @staticmethod
    def wslot(i): return 16384 + ((i + 1) & 3) * 16384
    def __init__(self, a):
        self.a = a; self.st = Stamper(a, 1)
    def early(self):
        a = self.a; K = self
        sW, sR = K.sW, K.sR
        t0, t1 = 36, 37
        a.I(f's_lshr_b32 s12, {sr(sR)}, 1')
        a.I(f's_xor_b32 {sr(K.sH)}, {sr(sR)}, s12')
        a.I(f's_and_b32 {sr(K.sH)}, {sr(K.sH)}, 1')
        a.I(f's_lshl_b32 {sr(K.sH)}, {sr(K.sH)}, 1')
        a.I(f's_or_b32 {sr(K.sH)}, {sr(K.sH)}, s12')
        a.I(f'v_and_b32 {vr(t0)}, 7, v0')
        a.I(f'v_xor_b32 {vr(t0)}, {sr(K.sH)}, {vr(t0)}')
        a.I(f'v_bfe_u32 {vr(t1)}, v0, 4, 1')
        a.I(f'v_lshlrev_b32 {vr(t1)}, 2, {vr(t1)}')
        a.I(f'v_xor_b32 {vr(t0)}, {vr(t0)}, {vr(t1)}')
        a.I(f's_and_b32 s12, {sr(K.sHP)}, 1')
        a.I('s_lshl_b32 s12, s12, 7')
        a.I(f'v_lshl_add_u32 {vr(t0)}, {vr(t0)}, 4, s12')
        a.I(f'v_lshrrev_b32 {vr(t1)}, 5, v0')
        a.I(f'v_lshl_add_u32 {vr(t0)}, {vr(t1)}, 15, {vr(t0)}')
        a.I(f'v_bfe_u32 {vr(t1)}, v0, 3, 2')
        a.I(f's_lshl_b32 s12, {sr(sR)}, 2')
        a.I(f'v_add_u32 {vr(t1)}, s12, {vr(t1)}')
        a.I(f'v_lshl_add_u32 {vr(K.vDW)}, {vr(t1)}, 11, {vr(t0)}')
        a.I(f's_lshl_b32 {sr(K.sM0W)}, {sr(sR)}, 12')
        a.I(f'v_add_u32 {vr(K.vDW + 1)}, {65536 - 1024}, {vr(K.vDW)}')
        a.I(f'v_xor_b32 {vr(K.vDW + 2)}, 0x80, {vr(K.vDW)}')
        a.I(f'v_xor_b32 {vr(K.vDW + 3)}, 0x80, {vr(K.vDW + 1)}')
        a.I(f's_lshl_b32 {sr(K.sWB)}, {sr(K.sHP)}, 19')
        a.I(f's_lshr_b32 s12, {sr(K.sHP)}, 1')
        a.I(f's_lshl_b32 s12, s12, 8')
        a.I(f's_add_u32 {sr(sW)}, s18, s12')
        a.I(f's_addc_u32 {sr(sW + 1)}, s19, 0')
        a.I(f's_sub_u32 {sr(sW + 2)}, 8388608, s12')
        a.I(f's_mov_b32 {sr(sW + 3)}, 0x20000')
        a.I(f's_mov_b32 {sr(K.sD)}, s100')
        a.I(f's_mov_b32 {sr(K.sD + 1)}, s101')
        a.I(f's_mov_b32 {sr(K.sD + 2)}, 256')
        a.I(f's_mov_b32 {sr(K.sD + 3)}, 0x20000')
        a.I(f'v_mov_b32 {vr(K.vZ)}, 0')
        a.I(f'buffer_load_dword {vr(K.vCT)}, {vr(K.vZ)}, {sr(K.sD, 4)}, 0 offen sc1')
        for i in range(3): K.stw(i, own=True)
        a.I(f's_lshl_b32 s12, {sr(K.sBLK)}, 3')
        a.I(f's_add_u32 s12, s12, {sr(K.sB)}')
        a.I(f's_lshl_b32 {sr(K.sFO)}, s12, 11')
        a.I(f's_add_u32 {sr(K.sFO)}, {sr(K.sFO)}, 65536')
        a.I(f'v_and_b32 {vr(K.vFA)}, 15, v0')
        a.I(f'v_lshlrev_b32 {vr(K.vFA)}, 7, {vr(K.vFA)}')
    def snapshot(self):
        a = self.a; K = self
        a.I(f's_mov_b32 {sr(K.sPC)}, 0')
        a.I('s_movk_i32 s12, 0x100')
        a.I('s_waitcnt vmcnt(12)')
        a.label('k2_allin')
        a.I(f'v_cmp_le_u32 vcc, s12, {vr(K.vCT)}')
        a.I('s_cbranch_vccnz k2_allok ; POLL')
        a.I(f'buffer_load_dword {vr(K.vCT)}, {vr(K.vZ)}, {sr(K.sD, 4)}, 0 offen sc1')
        a.I(f's_add_u32 {sr(K.sPC)}, {sr(K.sPC)}, 1')
        a.I('s_waitcnt vmcnt(0)')
        a.I(f's_cmp_lt_u32 {sr(K.sPC)}, {OPT["pollmax"]}')
        a.I('s_cbranch_scc1 k2_allin')
        a.label('k2_allok')
        a.I(K.flagload())
    def publish(self, cond):
        a = self.a; K = self
        lb = a.newlabel('k2_nopub')
        a.I(f's_cmp_lg_u32 {cond}')
        a.I(f's_cbranch_scc1 {lb}')
        a.I('s_mov_b64 exec, 1')
        a.I(f'buffer_store_dword {vr(K.vCT)}, {vr(K.vZ)}, {sr(K.sF, 4)}, s4 offen sc1')
        a.I('s_mov_b64 exec, -1')
        a.label(lb)
    def ids(self):
        a = self.a; K = self
        a.I(f's_and_b32 {sr(K.sKH)}, {sr(K.sHP)}, 1')
        a.I(f's_lshr_b32 {sr(K.sN8)}, {sr(K.sHP)}, 1')
        a.I(f'v_lshlrev_b32 {vr(K.vL16)}, 4, v0')
    def comp_setup(self):
        a = self.a; K = self
        sKS, sNH, sR, sE, g, t0, t1, vWp, vX, vL16, XB = K.sKS, K.sNH, K.sR, K.sE, K.g, K.t0, K.t1, K.vWp, K.vX, K.vL16, K.XB
        a.I(f's_and_b32 {sr(sKS)}, {sr(sR)}, 1')
        a.I(f's_lshr_b32 {sr(sNH)}, {sr(sR)}, 1')
        a.I(f'v_lshrrev_b32 {vr(g)}, 4, v0')
        a.I(f'v_lshrrev_b32 {vr(t1)}, 1, {vr(g)}')
        a.I(f'v_xor_b32 {vr(t0)}, {vr(g)}, {vr(t1)}')
        a.I(f'v_and_b32 {vr(t0)}, 1, {vr(t0)}')
        a.I(f'v_lshl_or_b32 {vr(t0)}, {vr(t0)}, 1, {vr(t1)}')
        a.I(f'v_bfe_u32 {vr(t1)}, v0, 1, 1')
        a.I(f'v_xor_b32 {vr(t0)}, {vr(t0)}, {vr(t1)}')
        a.I(f'v_lshlrev_b32 {vr(t0)}, 4, {vr(t0)}')
        a.I(f'v_lshl_add_u32 {vr(t0)}, {vr(g)}, 12, {vr(t0)}')
        a.I(f'v_bfe_u32 {vr(t1)}, v0, 2, 2')
        a.I(f'v_lshl_add_u32 {vr(t0)}, {vr(t1)}, 7, {vr(t0)}')
        a.I(f'v_bfe_u32 {vr(t1)}, v0, 3, 1')
        a.I(f'v_xor_b32 {vr(t1)}, {sr(sKS)}, {vr(t1)}')
        a.I(f'v_lshl_add_u32 {vr(t0)}, {vr(t1)}, 6, {vr(t0)}')
        a.I(f'v_and_b32 {vr(t1)}, 1, v0')
        a.I(f'v_lshl_add_u32 {vr(t0)}, {vr(t1)}, 3, {vr(t0)}')
        a.I(f's_lshl_b32 s12, {sr(sNH)}, 11')
        a.I('s_add_u32 s12, s12, 16384')
        a.I(f'v_add_u32 {vr(vWp)}, s12, {vr(t0)}')
        a.I(f'v_xor_b32 {vr(vWp + 1)}, 32, {vr(vWp)}')
        a.I(f'v_lshlrev_b32 {vr(vL16)}, 4, v0')
        a.I(f'v_add_u32 {vr(vX)}, {XB}, {vr(vL16)}')
        a.I(f'v_add_u32 {vr(vX + 1)}, {XB + 9216}, {vr(vL16)}')
        for b in K.ACC8:
            for i in range(0, 8, 2): a.I(f'v_mov_b64 {vr(b + i, 2)}, 0')
        a.I(f's_add_u32 {sr(sE)}, s16, {EXCH_OFF}')
        a.I(f's_addc_u32 {sr(sE + 1)}, s17, 0')
        a.I(f's_mov_b32 {sr(sE + 2)}, {256 * 36864}')
        a.I(f's_mov_b32 {sr(sE + 3)}, 0x20000')
        a.I(f's_cmp_eq_u32 {sr(sNH)}, 0')
        a.I('s_cselect_b32 s12, 1, 0')
        a.I(f's_cselect_b32 {sr(K.sPC)}, 9, 7')
        a.I('s_xor_b32 s12, s2, s12')
        a.I('s_lshl_b32 s12, s12, 1')
        a.I(f's_add_u32 s12, s12, {sr(sKS)}')
        a.I(f's_lshl_b32 {sr(K.sT0)}, s12, 7')
        a.I(f's_mul_i32 {sr(K.sOX)}, s12, 18432')
        a.I(f'v_mov_b32 {vr(t0)}, 0')
        a.I(f's_mov_b32 {sr(K.sSL)}, 0')
    def late(self):
        a = self.a; K = self
        sO, sR, sB, sBLK = K.sO, K.sR, K.sB, K.sBLK
        a.I(f's_lshr_b32 s12, {sr(K.sHP)}, 2')
        a.I(f's_add_u32 {sr(K.sROT)}, {sr(sB)}, s12')
        a.I(f's_and_b32 {sr(K.sROT)}, {sr(K.sROT)}, {OPT["rot2"]}')
        a.I(f'v_add_u32 {vr(K.vDX)}, {sr(K.sM0W)}, {vr(K.vL16)}')
        a.I(f's_lshl_b32 {sr(K.sM0X)}, {sr(sR)}, 10')
        a.I(f's_add_u32 {sr(K.sM0X)}, {sr(K.sM0X)}, 16384')
        a.I(f'v_add_u32 {vr(K.vDX + 1)}, {sr(K.sM0X)}, {vr(K.vL16)}')
        for i in range(4):
            a.I(f's_add_u32 s12, {sr(K.sROT)}, {i}')
            a.I('s_and_b32 s12, s12, 3')
            a.I(f's_lshl_b32 {sr(K.sRW + i)}, s12, 17')
            a.I(f's_mul_i32 {sr(K.sRX + i)}, s12, 18432')
        a.I(f's_mov_b32 {sr(K.sKC)}, -1')
        a.I(f's_lshl_b32 s12, {sr(sBLK)}, 3')
        a.I(f's_add_u32 s12, s12, {sr(sB)}')
        a.I(f's_mul_i32 s12, s12, {O_SLICE}')
        a.I(f's_add_u32 {sr(sO)}, s16, s12')
        a.I(f's_addc_u32 {sr(sO + 1)}, s17, 0')
        a.I(f's_mov_b32 {sr(sO + 2)}, {O_SLICE}')
        a.I(f's_mov_b32 {sr(sO + 3)}, 0x20000')
        a.I(f's_lshl_b32 s4, {sr(K.sHP)}, 7')
        a.I(f's_add_u32 s4, s4, {sr(K.sFO)}')
        a.I(f'v_mov_b32 {vr(K.vCT)}, 1')
        a.I(f's_lshl_b32 s5, {sr(sR)}, 4')
        a.I('s_add_u32 s5, s5, 1')
    def stw(self, i, own=False, tail=False):
        a = self.a; K = self
        a.I(f's_add_u32 m0, {sr(K.sM0W)}, {K.wslot(i)}')
        a.I(f's_add_u32 {sr(K.sOW)}, {sr(K.sWB)}, {i * 131072 if own else sr(K.sRW + i)}')
        for u in range(2 if tail else 4):
            if u == 2: a.I(f's_add_u32 m0, {sr(K.sM0W)}, {K.wslot(i) + 2048}')
            a.I(f'buffer_load_dwordx4 {vr(K.vDW + u)}, {sr(K.sW, 4)}, {sr(K.sOW)} offen offset:{(u & 1) * 1024}{NT("wont")} lds')
    def stx(self, i):
        a = self.a; K = self
        lb = a.newlabel('k2_skipx')
        a.I(f's_add_u32 m0, {sr(K.sM0W)}, {K.XB + i * 18432}')
        a.I(f's_add_u32 {sr(K.sOX)}, {sr(K.sXB)}, {sr(K.sRX + i)}')
        for j in range(4): a.I(f'buffer_load_dwordx4 {vr(K.vDX)}, {sr(K.sO, 4)}, {sr(K.sOX)} offen offset:{j * 1024}{NT("oldf")} lds')
        a.I(f's_add_u32 m0, {sr(K.sM0X)}, {K.XB + i * 18432}')
        a.I(f's_cmp_ge_u32 {sr(K.sR)}, 2')
        a.I(f's_cbranch_scc1 {lb}')
        a.I(f'buffer_load_dwordx4 {vr(K.vDX + 1)}, {sr(K.sO, 4)}, {sr(K.sOX)} offen{NT("oldf")} lds')
        a.label(lb)
    def ready(self):
        a = self.a; K = self
        l1, l2 = a.newlabel('k2_chk'), a.newlabel('k2_go')
        a.I(f's_mov_b32 {sr(K.sPC)}, 0')
        a.label(l1)
        a.I(f'v_cmp_eq_u32 vcc, 1, {vr(K.vFV)}')
        a.I(f's_bitcmp1_b32 vcc_lo, {sr(K.sHPc)}')
        a.I(f's_cbranch_scc1 {l2} ; TAKEN')
        a.I(K.flagload())
        a.I(f's_add_u32 {sr(K.sPC)}, {sr(K.sPC)}, 1')
        a.I('s_waitcnt vmcnt(0)')
        a.I(f's_cmp_lt_u32 {sr(K.sPC)}, {OPT["pollmax"]}')
        a.I(f's_cbranch_scc1 {l1}')
        a.label(l2)
    def fl1(self, vt):
        n = self.st1.n; self.st1.flush(16, self.sWAVE, self.sW, vt); self.st1.n = n
    def nextseg(self, tail=False):
        a = self.a; K = self
        if tail:
            a.I(f's_cmp_eq_u32 {sr(K.sN8)}, 7')
            a.I('s_cselect_b32 s12, 5, 7')
            a.I(f's_add_u32 {sr(K.sHPc)}, s12, {sr(K.sCNT)}')
        else:
            a.I(f's_add_u32 {sr(K.sKC)}, {sr(K.sKC)}, 1')
            a.I(f's_cmp_eq_u32 {sr(K.sKC)}, {sr(K.sN8)}')
            a.I(f's_addc_u32 {sr(K.sKC)}, {sr(K.sKC)}, 0')
            a.I(f's_lshl_b32 {sr(K.sHPc)}, {sr(K.sKC)}, 1')
            a.I(f's_add_u32 {sr(K.sHPc)}, {sr(K.sHPc)}, {sr(K.sKH)}')
        a.I(f's_lshl_b32 {sr(K.sWB)}, {sr(K.sHPc)}, 19')
        a.I(f's_mul_i32 {sr(K.sXB)}, {sr(K.sHPc)}, 73728')
    def flagload(self): return f'buffer_load_dword {vr(self.vFV)}, {vr(self.vFA)}, {sr(self.sF, 4)}, {sr(self.sFO)} offen sc1 ; NOCHECK'
    def main(self):
        a = self.a; st = self.st; K = self
        MF = 'v_mfma_f32_16x16x32_bf16'
        sO, sW, sD, sE, sF, sR, sB, sN8, sKH, sBLK = K.sO, K.sW, K.sD, K.sE, K.sF, K.sR, K.sB, K.sN8, K.sKH, K.sBLK
        sOW, sOX, sSL, sCNT, sT0, sST, sSTX, sPC, sHPc, sNH, sKS = K.sOW, K.sOX, K.sSL, K.sCNT, K.sT0, K.sST, K.sSTX, K.sPC, K.sHPc, K.sNH, K.sKS
        vWp, vX, vDW, vL16, g, t0, t1, t2 = K.vWp, K.vX, K.vDW, K.vL16, K.g, K.t0, K.t1, K.t2
        XB = K.XB
        def acc(t, j): return K.ACC8[t] + 4 * j
        def tmp(k): return K.TMP8[k >> 1] + 4 * (k & 1)
        st.real(); st.cyc()
        a.I(f's_cmp_eq_u32 {sr(K.sLD)}, 0')
        a.I('s_cbranch_scc1 k2_comp')
        if OPT['lprio']: a.I(f's_setprio {OPT["lprio"]}')
        K.stw(3, own=True)
        a.I('s_waitcnt vmcnt(13) lgkmcnt(0)')
        a.I('s_barrier')
        st0 = st.n
        st.cyc()
        K.late()
        a.I(f's_mov_b32 {sr(sCNT)}, 1')
        K.nextseg()
        a.I('s_barrier')
        if OPT['fast1']:
            a.I(f'v_cmp_eq_u32 vcc, 1, {vr(K.vFV)}')
            a.I(f's_bitcmp1_b32 vcc_lo, {sr(sHPc)}')
            a.I('s_cbranch_scc1 k2_fast ; EITHER')
        K.stw(0)
        a.I('s_barrier')
        K.stw(1)
        a.I(K.flagload())
        a.I('s_waitcnt vmcnt(9)')
        a.I('s_barrier')
        K.publish(f'{sr(sR)}, 0')
        K.stw(2)
        a.I('s_waitcnt vmcnt(5)')
        K.ready()
        K.stx(0); K.stx(1); K.stx(2)
        a.I('s_waitcnt vmcnt(8)')
        a.I('s_barrier')
        a.I(K.flagload())
        K.stw(3); K.stx(3)
        a.I(f's_mov_b32 {sr(sCNT)}, 2')
        a.I('s_waitcnt vmcnt(12)')
        for tail in (False, True):
            a.label('k2_tloop' if tail else 'k2_lloop')
            K.nextseg(tail)
            for i in range(4):
                a.I(f's_waitcnt vmcnt({12 if tail else 16})')
                a.I('s_barrier')
                if i == 0 and not tail: a.label('k2_fast')
                if i == 2 and not tail: K.publish(f'{sr(sCNT)}, s5')
                K.stw(i, tail=tail)
                if i == 0: K.ready()
                if i == 1: a.I(K.flagload())
                K.stx(i)
            a.I(f's_add_u32 {sr(sCNT)}, {sr(sCNT)}, 1')
            a.I(f's_cmp_lt_u32 {sr(sCNT)}, {9 if tail else 7}')
            a.I(f's_cbranch_scc1 {"k2_tloop" if tail else "k2_lloop"}')
        for nv in (12, 6, 0, 0):
            a.I(f's_waitcnt vmcnt({nv})')
            a.I('s_barrier')
        st.cyc(); st.cyc(); st.cyc(); st.cyc(); st.real()
        st.flush(16, K.sWAVE, sW, t0); K.fl1(t0)
        a.I('s_endpgm')
        a.label('k2_comp')
        st.n = st0
        a.lg = []
        FS = (K.FQ[:11], K.FQ[11:])
        def reads(F, slot, ks):
            w = [f'ds_read_b64_tr_b16 {vr(F[j] + 2 * h, 2)}, {vr(vWp + j)} offset:{K.wslot(slot) - 16384 + ks * 1024 + h * 512}' for j in range(2) for h in range(2)]
            x = [f'ds_read_b128 {vr(F[2 + t], 4)}, {vr(vX + ks)} offset:{slot * 18432 + t * 1024}' for t in range(9)]
            return w[:2] + x[:1] + w[2:] + x[1:]
        G2 = OPT['gate2']
        def kstep(Fc, Fn, nslot, nks, gated, vm=''):
            rd_ = reads(Fn, nslot, nks)
            if not gated: a.I(f's_waitcnt lgkmcnt({OPT["lw2"]})')
            k = 0
            for t in range(9):
                for j in range(2):
                    if gated and k == G2:
                        a.I(f's_waitcnt {vm}lgkmcnt(0)')
                        a.I('s_barrier')
                    if not gated and k == 6: a.I(f's_waitcnt lgkmcnt(6)')
                    a.I(f'{MF} {vr(acc(t, j), 4)}, {vr(Fc[j], 4)}, {vr(Fc[2 + t], 4)}, {vr(acc(t, j), 4)}')
                    if k >= (G2 if gated else 0) and rd_: a.I(rd_.pop(0))
                    k += 1
            assert not rd_
        if OPT['cprio']: a.I(f's_setprio {OPT["cprio"]}')
        a.I('s_waitcnt lgkmcnt(0)')
        a.I('s_barrier')
        st.cyc()
        a.many(reads(FS[0], 0, 0))
        a.I(f's_mov_b32 {sr(sCNT)}, 0')
        lg0 = [set(x) for x in a.lg]
        a.label('k2_cloop')
        for i in range(4):
            if OPT['kpf'] and i in (OPT['kpf'] - 1, OPT['kpf']):
                a.I(f's_cmp_eq_u32 {sr(sCNT)}, 8')
                a.I(f's_cbranch_scc1 k2_e{i}')
                a.label(f'k2_r{i}')
            kstep(FS[0], FS[1], i, 1, False)
            kstep(FS[1], FS[0], (i + 1) & 3, 0, True, 'vmcnt(0) ' if i == 2 else '')
        assert [set(x) for x in a.lg] == lg0
        st.sh()
        a.I(f's_add_u32 {sr(sCNT)}, {sr(sCNT)}, 1')
        a.I(f's_cmp_lt_u32 {sr(sCNT)}, {sr(sPC)}')
        a.I('s_cbranch_scc1 k2_cloop')
        st.cyc()
        XP = NT('xpol')
        a.I(f's_cmp_eq_u32 {sr(sNH)}, 0')
        a.I('s_cbranch_scc1 k2_keep')
        SB = {1: (8,), 2: (5, 11), 0: ()}[OPT['ssplit']]
        H = OPT['xbf']
        NX = 9 if H else 18
        if H: SB = ()
        for k in range(NX):
            src = acc(k, 0) if H else acc(k >> 1, k & 1)
            if H:
                for q in range(4): a.I(f'v_cvt_pk_bf16_f32 {vr(src + q)}, {vr(src + 2 * q)}, {vr(src + 2 * q + 1)}')
            a.I(f'buffer_store_dwordx4 {vr(src, 4)}, {vr(vL16)}, {sr(sE, 4)}, {sr(sOX)} offen offset:{(k & 3) * 1024}{XP}')
            if k & 3 == 3: a.I(f's_add_u32 {sr(sOX)}, {sr(sOX)}, 4096')
            if k in SB: a.I('s_barrier')
        stn = st.n
        st.cyc()
        for _ in range(OPT['sbar']): a.I('s_barrier')
        a.I(f'v_mov_b32 {vr(t1)}, 1')
        a.I('s_mov_b64 exec, 1')
        a.I('s_waitcnt vmcnt(0)')
        st.cyc()
        a.I(f'buffer_store_dword {vr(t1)}, {vr(t0)}, {sr(sF, 4)}, {sr(sT0)} offen{XP}')
        a.I('s_mov_b64 exec, -1')
        for _ in range(8 - len(SB) - OPT['sbar']): a.I('s_barrier')
        st.cyc(); st.real()
        st.flush(16, K.sWAVE, sW, t0); K.fl1(t0)
        a.I('s_endpgm')
        def xloads():
            for k in range(NX):
                a.I(f'buffer_load_dwordx4 {vr(tmp(k), 4)}, {vr(vL16)}, {sr(sE, 4)}, {sr(sOX)} offen offset:{(k & 3) * 1024}{XP}')
                if k & 3 == 3: a.I(f's_add_u32 {sr(sOX)}, {sr(sOX)}, 4096')
        if OPT['kpf']:
            a.auto = False
            i = OPT['kpf']
            a.label(f'k2_e{i - 1}')
            a.I(f'buffer_load_dword {vr(t1)}, {vr(t0)}, {sr(sF, 4)}, {sr(sT0)} offen{XP}')
            a.I(f's_branch k2_r{i - 1}')
            a.label(f'k2_e{i}')
            a.I('s_waitcnt vmcnt(0)')
            a.I(f'v_cmp_eq_u32 vcc, 1, {vr(t1)}')
            a.I(f's_cbranch_vccz k2_r{i}')
            xloads()
            a.I(f's_mov_b32 {sr(sSL)}, 1')
            a.I(f's_branch k2_r{i}')
            a.auto = True
        a.label('k2_keep')
        st.n = stn
        a.I(f's_mov_b32 {sr(sCNT)}, 0')
        st.cyc()
        a.I(f's_cmp_eq_u32 {sr(sSL)}, 1')
        a.I('s_cbranch_scc1 k2_have')
        a.label('k2_poll')
        a.I(f'buffer_load_dword {vr(t1)}, {vr(t0)}, {sr(sF, 4)}, {sr(sT0)} offen{XP}')
        a.I(f's_add_u32 {sr(sCNT)}, {sr(sCNT)}, 1')
        a.I('s_waitcnt vmcnt(0)')
        a.I(f'v_cmp_eq_u32 vcc, 1, {vr(t1)}')
        a.I('s_cbranch_vccnz k2_got ; POLL')
        a.I(f's_cmp_lt_u32 {sr(sCNT)}, {OPT["pollmax"]}')
        a.I('s_cbranch_scc1 k2_poll')
        a.label('k2_got')
        xloads()
        a.label('k2_have')
        st.cyc()
        a.I(f's_mul_i32 s3, {sr(sB)}, {144 * 4096}')
        a.I(f's_add_u32 {sr(sD)}, s10, s3')
        a.I(f's_addc_u32 {sr(sD + 1)}, s11, 0')
        a.I(f's_mov_b32 {sr(sD + 2)}, {144 * 4096}')
        a.I(f's_mov_b32 {sr(sD + 3)}, 0x20000')
        a.I(f'v_and_b32 {vr(t2)}, 15, v0')
        a.I(f'v_lshlrev_b32 {vr(t2)}, 12, {vr(t2)}')
        a.I(f'v_lshl_add_u32 {vr(t2)}, {vr(g)}, 4, {vr(t2)}')
        a.I(f's_lshl_b32 s3, {sr(sBLK)}, 11')
        a.I(f's_lshl_b32 s4, {sr(K.sHP)}, 7')
        a.I('s_add_u32 s3, s3, s4')
        a.I(f's_lshl_b32 s4, {sr(sKS)}, 6')
        a.I('s_add_u32 s3, s3, s4')
        for t in range(9):
            d = acc(t, 0)
            if H:
                a.I('s_waitcnt vmcnt(8)')
                for k in range(4):
                    a.I(f'v_lshlrev_b32 {vr(K.TMP8[8] + 2 * k)}, 16, {vr(tmp(t) + k)}')
                    a.I(f'v_and_b32 {vr(K.TMP8[8] + 1 + 2 * k)}, 0xffff0000, {vr(tmp(t) + k)}')
                for k in range(4): a.I(f'v_pk_add_f32 {vr(d + 2 * k, 2)}, {vr(d + 2 * k, 2)}, {vr(K.TMP8[8] + 2 * k, 2)}')
            else:
                a.I(f's_waitcnt vmcnt({16 - t})')
                for k in range(4): a.I(f'v_pk_add_f32 {vr(d + 2 * k, 2)}, {vr(d + 2 * k, 2)}, {vr(K.TMP8[t] + 2 * k, 2)}')
            for k in range(4): a.I(f'v_cvt_pk_bf16_f32 {vr(d + k)}, {vr(d + 2 * k)}, {vr(d + 2 * k + 1)}')
            for mn in ('v_permlane32_swap_b32', 'v_permlane16_swap_b32'):
                for k in range(2): a.I(f'{mn} {vr(d + k)}, {vr(d + 2 + k)}')
            a.I(f'buffer_store_dwordx4 {vr(d, 4)}, {vr(t2)}, {sr(sD, 4)}, s3 offen{NT("outp")}')
            a.I('s_add_u32 s3, s3, 65536')
        st.cyc(); st.real()
        st.flush(16, K.sWAVE, sW, t0); K.fl1(t0)
        a.label('k1_end')
        a.raw('s_endpgm')
        return a

HEADER = open(f'cdna_kernels/{NAME}.s.ref').read().split('; Override launch')[0]
DOC = """;
; One persistent launch, one workgroup (8 waves) per CU = (block, batch, head pair); generated by a hand-written script.
;  1. q projection: waves 4-7 stream x / wq tiles into a 3-stage LDS ring (LDS-DMA) and prefetch the first K/V chunks,
;     waves 0-3 run the 144x256x1024 MFMA loop; q (scaled by log2(e)/sqrt(128), bf16) is redistributed through LDS.
;  2. attention: 4 waves per head, 32 rows + a quarter of the ninth 16-row tile each; S^T = K q^T with the running
;     max folded into the accumulator input, online softmax with a checked lazy rescale (true max whenever a score
;     exceeds the reference by 2^8), P stays in registers, row sums by MFMA, K/V through a 5-slot LDS ring per head.
;  3. out projection: o goes to d_ws in fragment order (write-through) with per-workgroup ready flags; each workgroup
;     computes a 144x128 tile over half of the heads (own heads first, straight from LDS) and swaps half a tile with
;     its partner workgroup.  Flags are reset by their owner at entry; d_debug[0] counts the workgroups that did so.
"""
def kd(name, vg, sg=102):
    return f'''.amdhsa_kernel {name}
  .amdhsa_next_free_vgpr {vg}
  .amdhsa_next_free_sgpr {sg}
  .amdhsa_accum_offset {(min(vg, 256) + 3) // 4 * 4}
  .amdhsa_group_segment_fixed_size 0
  .amdhsa_kernarg_size 104
  .amdhsa_user_sgpr_count 2
  .amdhsa_user_sgpr_kernarg_segment_ptr 1
  .amdhsa_system_sgpr_workgroup_id_x 1
.end_amdhsa_kernel
'''
def main():
    ks = [('attn_kernel', gen_k1(), 256, 163840)]
    out = HEADER
    if OPT['fuse']:
        ks = [(NAME + '_kernel', ks[0][1], 256, 163840)]
        out += '; @launch grid=(256,1,1) block=(512,1,1) lds=163840\n'
        out += DOC
    else:
        for nm, _, _, lds in ks:
            out += f'; @launch kernel={nm} grid=(256,1,1) block=(512,1,1) lds={lds}\n'
    out += '.amdgcn_target "amdgcn-amd-amdhsa--gfx950"\n.text\n'
    for nm, a, vg, lds in ks:
        if OPT.get('novm'):
            seen = False; keep = []
            for x in a.ins:
                if x.mn == 's_barrier': seen = True
                if x.label in ('k2_m1',): seen = False
                if x.label == 'k2_cloop': seen = False; OPT['_stop'] = 1
                if OPT.get('_stop'): seen = False
                if seen and x.mn == 'buffer_load_dwordx4': continue
                keep.append(x)
            a.ins = keep
        if OPT.get('nokv'): a.ins = [x for x in a.ins if not (x.kind == 'vmem' and x.mn == 'buffer_load_dwordx4' and not x.lds and 'nt' in x.mods)]
        if OPT.get('nomfma'): a.ins = [x for x in a.ins if x.kind != 'mfma']
        if OPT.get('nods'): a.ins = [x for x in a.ins if not (x.kind == 'ds' and 'read' in x.mn)]
        n = a.pad_hazards(verbose=bool(OPT.get('v')))
        errs = 0; nbs = set()
        for wave in range(8):
            for pol in (lambda i, x: 'POLL' in x.text, lambda i, x: True):
              for wgid in (3, 12, 21, 30):
                tr = a.trace(wgid, wave, pol)
                e, nb = a.verify_waits(tr, quiet=(errs > 0 or bool(OPT.get('novm')) or OPT['stamp'] == 4)); errs += e; nbs.add(nb)
        assert (len(nbs) == 1 or (len(nbs) == 2 and max(nbs) - min(nbs) == 7 - OPT['sbar'])) and (errs == 0 or OPT.get('novm') or OPT['stamp'] == 4), (nbs, errs)
        print(f'{nm}: {len(a.ins)} lines, nops added {n}, wait errors {errs}, barriers {nb}, trace len {len(tr)}', file=sys.stderr)
        out += f'.globl {nm}\n.p2align 8\n.type {nm},@function\n{nm}:\n' + a.text()
    out += '.section .rodata,"a"\n'
    for nm, a, vg, lds in ks:
        out += '.p2align 6\n' + kd(nm, vg)
    open(sys.argv[1], 'w').write(out)
main()
```

```python
import sys, math, struct
from asmlib import *

NAME = 'concat_heads__mha_block_cached__mha_block_cached__near_ridge'
OPT = dict(stamp=0, kvnt=1, wnt=0, xnt=0, ont=2, wont=0, oldnt=0, rot1=1, rot2=3, wopf=3, ord=1, desync=1, pre1=1, gate=2, cprio=1, tail=1, rotc=0, rhh=0, vfirst=1, hpmap=2, s2=1, fuse=1, qpf=0, wol2=0, jmaj=0, g2from=7, gk2=4, gv2=40, rotfrom=6, pofs=-1, lazyj=0, kq='-', px='p3200', py='p3211', kvm='-', kw='-', finp=1, b1at=2, grp=4, lin=0, gk=24, gv=32, fast1=1, xbf=1, kvl2=0, cvn=7, cvpk=1, kv0=1, kvs=3, lprio=0, whalf=0, offm=0, offsh=0, pubat=0, b2at=3, kpf=3, spread=1, gate2=0, lw2=4, sbar=3, ssplit=1, ntm=255, oldf=2, cpf=1, sy=4, nimm=3, aux0=0, auxs=4, pp=0, mv=0, mk=0, nwo=16, pfp=0, xpol=2, outp=3, pollmax=100000, qprio=1, rs0=10, rs1=13, stag=1, aprio=1, pS=0, pM=0, pV=0, smfirst=0)
for a in sys.argv[2:]:
    k, v = a.split('='); OPT[k] = int(v) if v.lstrip('-').isdigit() else v

def fbits(x): return '0x%08x' % struct.unpack('<I', struct.pack('<f', x))[0]
NT = lambda k: {0: '', 1: ' nt', 2: ' sc1', 3: ' sc0 sc1', 4: ' sc1 nt'}[OPT[k]]
APOL = lambda kind, j: ' nt' if (OPT['ntm'] >> (j + (4 if kind == 'V' else 0))) & 1 else ''
THRV = '0x7f800000' if OPT.get('novm') else fbits(8.0)
O_SLICE = 128 * 9216
STAMP_OFF = 64 << 20
EXCH_OFF = 32 << 20
FLAG_OFF = 48 << 20

class Stamper:
    def __init__(self, a, region):
        self.a = a; self.n = 0; self.region = region
        self.on = OPT.get('sreg', 0) == region or OPT['stamp'] in (5, 8)
    def real(self):
        if not self.on or OPT['stamp'] == 8: return
        if OPT['stamp'] == 5:
            if self.region == 0 and not self.n: self.a.I('s_memrealtime s[76:77]'); self.n = 1
            return
        if OPT['stamp'] == 4 and self.n: return
        if OPT['stamp']:
            self.a.I(f's_memrealtime {sr(76 + 2 * self.n, 2)}'); self.n += 1
    def cyc(self):
        if not self.on: return
        if OPT['stamp'] == 8:
            self.a.I(f's_memrealtime {sr(76 + 2 * self.n, 2)}'); self.n += 1; return
        if OPT['stamp'] == 5: return
        if OPT['stamp'] == 4:
            self.a.raw('s_waitcnt lgkmcnt(0)'); self.sh(); return
        if OPT['stamp']:
            self.a.I(f's_memtime {sr(76 + 2 * self.n, 2)}'); self.n += 1
    def sh(self):
        if not self.on: return
        if OPT['stamp'] == 4:
            for i in range(13): self.a.raw(f's_mov_b32 s{80 + i}, s{81 + i}')
            self.a.raw('s_mov_b32 s93, s98')
            self.a.raw('s_memtime s[98:99]')
    def flush(self, s_ws, s_wave, srd, vt):
        if not OPT['stamp'] or not self.on: return
        a = self.a
        if OPT['stamp'] == 8:
            if self.region == 0: return
            assert self.n <= 12
            lb = a.newlabel('dbgskip')
            a.I('s_waitcnt vmcnt(0) lgkmcnt(0)')
            a.I(f's_xor_b32 s3, s2, {OPT.get("dwg", 0)}')
            a.I(f's_or_b32 s3, s3, {sr(s_wave)}')
            a.I('s_cmp_lg_u32 s3, 0')
            a.I(f's_cbranch_scc1 {lb}')
            a.I(f's_mov_b32 {sr(srd)}, s100'); a.I(f's_mov_b32 {sr(srd + 1)}, s101'); a.I(f's_mov_b32 {sr(srd + 2)}, 256'); a.I(f's_mov_b32 {sr(srd + 3)}, 0x20000')
            a.I(f'v_mov_b32 {vr(vt)}, 0')
            for i in range(1, self.n):
                a.I(f's_sub_u32 s3, {sr(76 + 2 * i)}, s76')
                a.I(f'v_mov_b32 {vr(vt + 1)}, s3')
                a.I(f'buffer_store_dword {vr(vt + 1)}, {vr(vt)}, {sr(srd, 4)}, 0 offen offset:{4 * (i + 1)}')
                a.I('s_nop 1')
            a.label(lb)
            return
        if OPT['stamp'] == 5:
            if self.region == 0: return
            a.I('s_memrealtime s[78:79]'); self.n = 2
            if OPT.get('dbgspan'):
                lb = a.newlabel('dbgskip')
                a.I('s_waitcnt vmcnt(0) lgkmcnt(0)')
                a.I('s_and_b32 s3, s2, 9')
                a.I(f's_or_b32 s3, s3, {sr(s_wave)}')
                a.I('s_cmp_lg_u32 s3, 0')
                a.I(f's_cbranch_scc1 {lb}')
                a.I(f's_mov_b32 {sr(srd)}, s100'); a.I(f's_mov_b32 {sr(srd + 1)}, s101'); a.I(f's_mov_b32 {sr(srd + 2)}, 256'); a.I(f's_mov_b32 {sr(srd + 3)}, 0x20000')
                a.I('s_not_b32 s76, s76')
                a.I('s_mov_b64 exec, 1')
                a.I(f'v_mov_b32 {vr(vt)}, 0'); a.I(f'v_mov_b32 {vr(vt + 1)}, s78')
                a.I(f'buffer_atomic_umax {vr(vt + 1)}, {vr(vt)}, {sr(srd, 4)}, 0 offen offset:16 sc1')
                a.I('s_nop 1')
                a.I(f'v_mov_b32 {vr(vt + 1)}, s76')
                a.I(f'buffer_atomic_umax {vr(vt + 1)}, {vr(vt)}, {sr(srd, 4)}, 0 offen offset:20 sc1')
                a.I('s_not_b32 s76, s76')
                a.I('s_nop 1')
                a.I(f'v_mov_b32 {vr(vt + 1)}, s76')
                a.I(f'buffer_atomic_umax {vr(vt + 1)}, {vr(vt)}, {sr(srd, 4)}, 0 offen offset:24 sc1')
                a.label(lb)
                return
        regs = [76 + 2 * i for i in range(self.n)]
        if OPT['stamp'] == 4:
            regs = [76] + list(range(81, 94)) + [98]; keepn = self.n; self.n = 0
        assert self.n <= 12
        a.I('s_waitcnt vmcnt(0) lgkmcnt(0)')
        a.I(f's_add_u32 {sr(srd)}, {sr(s_ws)}, {STAMP_OFF + self.region * (1 << 20)}')
        a.I(f's_addc_u32 {sr(srd + 1)}, {sr(s_ws + 1)}, 0')
        a.I(f's_mov_b32 {sr(srd + 2)}, {1 << 20}')
        a.I(f's_mov_b32 {sr(srd + 3)}, 0x20000')
        a.I(f's_lshl_b32 s3, s2, 3')
        a.I(f's_add_u32 s3, s3, {sr(s_wave)}')
        a.I(f's_lshl_b32 s3, s3, 6')
        a.I(f'v_mov_b32 {vr(vt)}, 0')
        a.I(f'v_mov_b32 {vr(vt + 1)}, {self.n}')
        a.I(f'buffer_store_dword {vr(vt + 1)}, {vr(vt)}, {sr(srd, 4)}, s3 offen offset:60')
        a.I('s_nop 1')
        for i in range(len(regs)):
            a.I(f'v_mov_b32 {vr(vt + 1)}, {sr(regs[i])}')
            a.I(f'buffer_store_dword {vr(vt + 1)}, {vr(vt)}, {sr(srd, 4)}, s3 offen offset:{4 * i}')
            a.I('s_nop 1')
        if OPT['stamp'] == 4: self.n = keepn

def gen_k1():
    a = Asm()
    st = Stamper(a, 0)
    MF = 'v_mfma_f32_16x16x32_bf16'
    sX, sW, sK, sV, sO = 20, 24, 28, 32, 36
    sWAVE, sR, sHH, sBLK, sB, sHP = 40, 41, 42, 43, 44, 45
    sM0W, sM0X, sOW, sOX, sLOOSE, sNEXT, sKVI = 46, 47, 48, 49, 50, 51, 52
    sSLW, sSLX = 53, 54
    sCNT, sT0, sT1 = 55, 56, 57
    sKP, sVP, sM0A, sDK, sDV, sOV, sOK = 58, 59, 60, 62, 63, 64, 65
    sTHR, sTHR8, sCL, sCL8 = 66, 67, 68, 69
    sC = 70
    sKPo, sVPo = 72, 73
    sST, sROT = 74, 75
    sLINK = 6
    sH = 61
    sPFO, sMK, sMV = 48, 50, 51
    sJ = 47
    sRS, sRC = 46, 61
    vKa, vVa, vD = 1, 3, 7
    mx, mx8, tA, tB = 8, 9, 10, 11
    ONES, NEGM, Q, S, POOL, O = 12, 16, 28, 76, 116, 148
    ACC, XF, WF = 112, 76, 44
    XB, QB = 49152, 49152
    HB1 = 114688
    def acc(t, j): return ACC + (t * 4 + j) * 4
    def o_(T, d): return O + (T * 9 + (d + 1) % 9) * 4
    JUNK = O + 3
    def q_(T, k): return Q + (T * 4 + k) * 4
    def s_(T, j, tt=0): return S + (T * 2 + j) * 8 + tt * 4 if T < 2 else S + 32 + tt * 4
    def negm(T): return NEGM + 4 * T
    kvreg = {'K0': 160, 'V0': 192, 'K1': 76, 'V1': 108}
    g, n, t0, t1, t2, t3 = 12, 13, 14, 15, 16, 17

    def hfun(dst, src, tmp):
        a.I(f'v_lshrrev_b32 {vr(tmp)}, 1, {vr(src)}')
        a.I(f'v_xor_b32 {vr(dst)}, {vr(src)}, {vr(tmp)}')
        a.I(f'v_and_b32 {vr(dst)}, 1, {vr(dst)}')
        a.I(f'v_lshl_or_b32 {vr(dst)}, {vr(dst)}, 1, {vr(tmp)}')
    def tr_pattern(dst):
        a.I(f'v_lshrrev_b32 {vr(g)}, 4, v0')
        hfun(t0, g, t1)
        a.I(f'v_bfe_u32 {vr(t1)}, v0, 1, 1')
        a.I(f'v_xor_b32 {vr(t0)}, {vr(t0)}, {vr(t1)}')
        a.I(f'v_lshlrev_b32 {vr(t0)}, 4, {vr(t0)}')
        a.I(f'v_lshl_add_u32 {vr(t0)}, {vr(g)}, 12, {vr(t0)}')
        a.I(f'v_bfe_u32 {vr(t1)}, v0, 2, 2')
        a.I(f'v_lshl_add_u32 {vr(t0)}, {vr(t1)}, 7, {vr(t0)}')
        a.I(f'v_bfe_u32 {vr(t1)}, v0, 3, 1')
        a.I(f'v_lshl_add_u32 {vr(t0)}, {vr(t1)}, 6, {vr(t0)}')
        a.I(f'v_and_b32 {vr(t1)}, 1, v0')
        a.I(f'v_lshl_add_u32 {vr(dst)}, {vr(t1)}, 3, {vr(t0)}')

    a.raw('s_cmp_ge_u32 s2, 256')
    a.raw('s_cbranch_scc1 k1_end')
    st.real(); st.cyc()
    a.I('s_and_b32 s3, s2, 7')
    a.I('s_lshr_b32 s4, s2, 3')
    a.I(f's_lshr_b32 {sr(sBLK)}, s3, 2')
    a.I(f's_mul_i32 s5, {sr(sBLK)}, 40')
    a.I('s_load_dwordx8 s[8:15], s[0:1], s5')
    a.I('s_load_dwordx2 s[16:17], s[0:1], 96')
    a.I('s_add_u32 s5, s5, 32')
    a.I('s_load_dwordx2 s[18:19], s[0:1], s5')
    if OPT['fuse']: a.I('s_load_dwordx2 s[100:101], s[0:1], 88')
    a.I('s_and_b32 s5, s4, 3')
    a.I('s_lshl_b32 s6, s5, 1')
    a.I('s_add_u32 s3, s3, s6')
    a.I('s_and_b32 s3, s3, 3')
    a.I(f's_lshl_b32 {sr(sHP)}, s5, 2')
    a.I(f's_add_u32 {sr(sHP)}, {sr(sHP)}, s3')
    a.I(f's_lshr_b32 {sr(sB)}, s4, 2')
    a.I(f's_add_u32 {sr(sROT)}, {sr(sB)}, s5')
    a.I(f'v_lshrrev_b32 {vr(t0)}, 6, v0')
    a.I(f'v_readfirstlane_b32 {sr(sWAVE)}, {vr(t0)} ; WAVEID')
    a.I('v_and_b32 v0, 63, v0')
    a.I(f's_and_b32 {sr(sR)}, {sr(sWAVE)}, 3')
    a.I(f's_lshr_b32 {sr(sHH)}, {sr(sWAVE)}, 2')
    a.I(f's_lshr_b32 s3, {sr(sR)}, 1')
    a.I(f's_xor_b32 {sr(sH)}, {sr(sR)}, s3')
    a.I(f's_and_b32 {sr(sH)}, {sr(sH)}, 1')
    a.I(f's_lshl_b32 {sr(sH)}, {sr(sH)}, 1')
    a.I(f's_or_b32 {sr(sH)}, {sr(sH)}, s3')
    a.I(f'v_and_b32 {vr(t0)}, 7, v0')
    a.I(f'v_xor_b32 {vr(t0)}, {sr(sH)}, {vr(t0)}')
    a.I(f'v_bfe_u32 {vr(t1)}, v0, 4, 1')
    a.I(f'v_lshlrev_b32 {vr(t1)}, 2, {vr(t1)}')
    a.I(f'v_xor_b32 {vr(t0)}, {vr(t0)}, {vr(t1)}')
    a.I(f'v_lshlrev_b32 {vr(t0)}, 4, {vr(t0)}')
    a.I(f'v_lshrrev_b32 {vr(t1)}, 5, v0')
    a.I(f'v_lshl_add_u32 {vr(t0)}, {vr(t1)}, 7, {vr(t0)}')
    a.I(f'v_lshrrev_b32 {vr(g)}, 4, v0')
    a.I(f'v_bfe_u32 {vr(t1)}, v0, 3, 2')
    a.I(f's_lshl_b32 s3, {sr(sR)}, 4')
    a.I(f'v_add_u32 {vr(t1)}, s3, {vr(t1)}')
    a.I(f'v_lshl_add_u32 {vr(vD)}, {vr(t1)}, 8, {vr(t0)}')
    if OPT['lin']:
        a.I(f's_mul_i32 s3, {sr(sR)}, 3072')
        a.I(f'v_subrev_u32 {vr(vD)}, s3, {vr(vD)}')
    a.I(f's_lshl_b32 {sr(sM0W)}, {sr(sR)}, 12')
    def rest_setup():
        a.I(f's_mul_i32 {sr(sM0A)}, {sr(sHH)}, 81920')
        a.I(f's_add_u32 {sr(sM0A)}, {sr(sM0A)}, {sr(sM0W)}')
        a.I(f's_lshl_b32 s3, {sr(sB)}, 4')
        a.I(f's_add_u32 s3, s3, {sr(sHP)}')
        a.I('s_lshl_b32 s3, s3, 18')
        for (d, p) in ((sK, 10), (sV, 12)):
            a.I(f's_add_u32 {sr(d)}, {sr(p)}, s3')
            a.I(f's_addc_u32 {sr(d + 1)}, {sr(p + 1)}, 0')
            a.I(f's_mov_b32 {sr(d + 2)}, 262144')
            a.I(f's_mov_b32 {sr(d + 3)}, 0x20000')
    a.I(f's_cmp_eq_u32 {sr(sHH)}, 0')
    a.I('s_cbranch_scc1 k1_comp')

    def flag_srd(d):
        a.I(f's_add_u32 {sr(d)}, s16, {FLAG_OFF}')
        a.I(f's_addc_u32 {sr(d + 1)}, s17, 0')
        a.I(f's_mov_b32 {sr(d + 2)}, 98304')
        a.I(f's_mov_b32 {sr(d + 3)}, 0x20000')
    def dbg_srd(d):
        a.I(f's_mov_b32 {sr(d)}, s100')
        a.I(f's_mov_b32 {sr(d + 1)}, s101')
        a.I(f's_mov_b32 {sr(d + 2)}, 256')
        a.I(f's_mov_b32 {sr(d + 3)}, 0x20000')
    def oflag_off(d):
        a.I(f's_lshl_b32 {d}, {sr(sBLK)}, 3')
        a.I(f's_add_u32 {d}, {d}, {sr(sB)}')
        a.I(f's_lshl_b32 {d}, {d}, 4')
        a.I(f's_add_u32 {d}, {d}, {sr(sHP)}')
        a.I(f's_lshl_b32 {d}, {d}, 7')
        a.I(f's_add_u32 {d}, {d}, 65536')
    def wo_srd():
        a.I(f's_lshl_b32 s3, {sr(sB)}, 4')
        a.I(f's_add_u32 s3, s3, {sr(sHP)}')
        a.I('s_lshl_b32 s3, s3, 16')
        a.I(f's_add_u32 {sr(sX)}, s18, s3')
        a.I(f's_addc_u32 {sr(sX + 1)}, s19, 0')
        a.I(f's_mov_b32 {sr(sX + 2)}, 65536')
    vDW, vDX = 20, 24
    if OPT['lprio']: a.I(f's_setprio {OPT["lprio"]}')
    a.I(f'v_lshl_add_u32 {vr(vDW)}, {vr(t1)}, 13, {vr(t0)}')
    for tq in range(1, 4): a.I(f'v_add_u32 {vr(vDW + tq)}, {tq * (32768 - 1024)}, {vr(vDW)}')
    a.I(f's_lshr_b32 {sr(sST)}, s2, {OPT["offsh"]}')
    a.I(f's_and_b32 {sr(sST)}, {sr(sST)}, {OPT["offm"]}')
    a.I(f's_add_u32 {sr(sOX)}, {sr(sST)}, {sr(sROT)}')
    a.I(f's_and_b32 {sr(sOX)}, {sr(sOX)}, {0 if OPT["rotfrom"] else OPT["rot1"]}')
    a.I(f's_lshl_b32 {sr(sOW)}, {sr(sOX)}, 19')
    a.I(f's_lshl_b32 s3, {sr(sHP)}, 9')
    a.I(f's_sub_u32 {sr(sW + 2)}, 8388608, s3')
    a.I(f's_mov_b32 {sr(sW + 3)}, 0x20000')
    a.I(f's_mov_b32 m0, {sr(sM0W)}')
    a.I('s_waitcnt lgkmcnt(0)')
    a.I(f's_add_u32 {sr(sW)}, s14, s3')
    a.I(f's_addc_u32 {sr(sW + 1)}, s15, 0')
    def wloads(hq):
        if OPT['whalf']:
            for tq in range(4): a.I(f'buffer_load_dwordx4 {vr(vDW + tq)}, {sr(sW, 4)}, {sr(sOW)} offen offset:{tq * 1024}{NT("wnt")} lds')
        else:
            for tq in range(4): a.I(f'buffer_load_dwordx4 {vr(vDW + tq)}, {sr(sW, 4)}, {sr(sOW)} offen offset:{tq * 1024 + hq * 256}{NT("wnt")} lds')
    sHA, sHB = 70, 71
    if OPT['whalf']:
        a.I(f's_lshr_b32 s4, {sr(sB)}, 2')
        a.I(f's_mul_i32 {sr(sHA)}, s4, {HB1}')
        a.I(f's_sub_u32 {sr(sHB)}, {HB1}, {sr(sHA)}')
        a.I(f's_add_u32 {sr(sHA)}, {sr(sHA)}, {sr(sM0W)}')
        a.I(f's_add_u32 {sr(sHB)}, {sr(sHB)}, {sr(sM0W)}')
        a.I(f's_lshl_b32 {sr(sKPo)}, s4, 8')
        a.I(f's_mov_b32 m0, {sr(sHA)}')
        a.I(f's_or_b32 {sr(sOW)}, {sr(sOW)}, {sr(sKPo)}')
    wloads(0)
    a.I(f's_mul_i32 s3, {sr(sB)}, 294912')
    if not OPT['whalf']:
        a.I(f's_add_u32 m0, {sr(sM0W)}, {HB1 - 256}')
        wloads(1)
    a.I(f's_add_u32 {sr(sX)}, s8, s3')
    a.I(f's_addc_u32 {sr(sX + 1)}, s9, 0')
    a.I(f's_mov_b32 {sr(sX + 2)}, 294912')
    a.I(f's_mov_b32 {sr(sX + 3)}, 0x20000')
    a.I(f'v_and_b32 {vr(t1)}, 2, {vr(g)}')
    a.I(f'v_lshlrev_b32 {vr(t1)}, 1, {vr(t1)}')
    a.I(f'v_xor_b32 {vr(t0)}, {vr(g)}, {vr(t1)}')
    a.I(f'v_and_b32 {vr(t1)}, 7, v0')
    a.I(f'v_xor_b32 {vr(t0)}, {vr(t0)}, {vr(t1)}')
    a.I(f'v_lshlrev_b32 {vr(t0)}, 4, {vr(t0)}')
    a.I(f'v_lshrrev_b32 {vr(t1)}, 3, v0')
    a.I(f'v_lshl_add_u32 {vr(t0)}, {vr(t1)}, 11, {vr(t0)}')
    a.I(f'v_xor_b32 {vr(t1)}, 64, {vr(t0)}')
    a.I(f's_lshl_b32 s3, {sr(sR)}, 16')
    for j in range(4):
        a.I(f'v_add_u32 {vr(vDX + j)}, s3, {vr((t0, t1)[j & 1])}')
        if j < 3: a.I(f's_add_u32 s3, s3, {16384 - 1024}')
    a.I(f's_lshl_b32 s3, {sr(sR)}, 6')
    a.I(f'v_xor_b32 {vr(t0)}, s3, {vr(t0)}')
    a.I(f's_lshl_b32 s3, {sr(sR)}, 14')
    a.I('s_add_u32 s3, s3, 262144')
    a.I(f'v_add_u32 {vr(vDX + 4)}, s3, {vr(t0)}')
    a.I(f's_lshl_b32 {sr(sM0X)}, {sr(sR)}, 10')
    a.I(f's_add_u32 {sr(sM0X)}, {sr(sM0X)}, {XB + 16384}')
    a.I(f's_add_u32 {sr(sST)}, {sr(sST)}, 1')
    a.I(f's_mov_b32 {sr(sSLW)}, 0')
    a.I(f's_mov_b32 {sr(sSLX)}, 0')
    sPO = 73
    if OPT['pofs'] >= 0:
        a.I(f's_lshr_b32 {sr(sPO)}, s2, {OPT["pofs"]}')
        a.I(f's_and_b32 {sr(sPO)}, {sr(sPO)}, 1')
    def stage_w():
        R = OPT['rot1']
        if OPT['pofs'] >= 0:
            a.I(f's_sub_u32 {sr(sOW)}, {sr(sST)}, {sr(sPO)}')
            a.I(f's_add_u32 {sr(sT0)}, {sr(sST)}, {sr(sPO)}')
            a.I(f's_cmp_ge_i32 {sr(sOW)}, {OPT["rotfrom"]}')
            a.I(f's_cselect_b32 {sr(sOX)}, {sr(sROT)}, 0')
            a.I(f's_cmp_lt_u32 {sr(sT0)}, 16')
            a.I(f's_cselect_b32 {sr(sOX)}, {sr(sOX)}, 0')
            a.I(f's_and_b32 {sr(sOX)}, {sr(sOX)}, 1')
            a.I(f's_xor_b32 {sr(sOX)}, {sr(sOX)}, {sr(sOW)}')
            a.I(f's_add_u32 {sr(sOX)}, {sr(sOX)}, {sr(sPO)}')
            pre_ = []
        else:
            if OPT['rotfrom']:
                a.I(f's_cmp_ge_u32 {sr(sST)}, {OPT["rotfrom"]}')
                a.I(f's_cselect_b32 {sr(sOX)}, {sr(sROT)}, 0')
            pre_ = [f's_add_u32 {sr(sOX)}, {sr(sST)}, {sr(sOX if OPT["rotfrom"] else sROT)}',
                    f's_and_b32 {sr(sOX)}, {sr(sOX)}, {R}',
                    f's_and_b32 {sr(sOW)}, {sr(sST)}, {15 & ~R}',
                    f's_or_b32 {sr(sOX)}, {sr(sOX)}, {sr(sOW)}']
        a.many(pre_ + [
                f's_add_u32 m0, {sr(sHA if OPT["whalf"] else sM0W)}, {sr(sSLW)}',
                f's_lshl_b32 {sr(sOW)}, {sr(sOX)}, 19',
                f's_add_u32 {sr(sST)}, {sr(sST)}, 1'])
        if OPT['whalf']: a.I(f's_or_b32 {sr(sOW)}, {sr(sOW)}, {sr(sKPo)}')
        wloads(0)
        if not OPT['whalf']:
            a.I(f's_add_u32 m0, m0, {HB1 - 256}')
            wloads(1)
    def stage_x():
        lb = a.newlabel('k1_skipx')
        a.I(f's_add_u32 {sr(sT0)}, {sr(sM0W)}, {sr(sSLX)}')
        a.I(f's_add_u32 m0, {sr(sT0)}, {XB}')
        a.I(f's_lshl_b32 {sr(sOX)}, {sr(sOX)}, 7')
        for j in range(4): a.I(f'buffer_load_dwordx4 {vr(vDX + j)}, {sr(sX, 4)}, {sr(sOX)} offen offset:{j * 1024}{NT("xnt")} lds')
        a.I(f's_add_u32 m0, {sr(sM0X)}, {sr(sSLX)}')
        a.I(f's_cmp_ge_u32 {sr(sR)}, 2')
        a.I(f's_cbranch_scc1 {lb}')
        a.I(f'buffer_load_dwordx4 {vr(vDX + 4)}, {sr(sX, 4)}, {sr(sOX)} offen{NT("xnt")} lds')
        a.label(lb)
        if OPT['whalf']:
            a.I(f's_add_u32 m0, {sr(sHB)}, {sr(sSLW)}')
            a.I(f's_xor_b32 {sr(sOW)}, {sr(sOW)}, 256')
            wloads(1)
        a.I(f's_add_u32 {sr(sSLW)}, {sr(sSLW)}, 16384')
        a.I(f's_add_u32 {sr(sSLX)}, {sr(sSLX)}, 18432')
        a.I(f's_cmp_eq_u32 {sr(sSLW)}, 49152')
        a.I(f's_cselect_b32 {sr(sSLW)}, 0, {sr(sSLW)}')
        a.I(f's_cselect_b32 {sr(sSLX)}, 0, {sr(sSLX)}')
    stage_x()
    rest_setup()
    if OPT['pre1']:
        stage_w()
        a.I(f's_waitcnt vmcnt({4 if OPT["whalf"] else 8})')
        a.I('s_barrier')
        stage_x()
    else:
        a.I('s_waitcnt vmcnt(0)')
        a.I('s_barrier')
        stage_w(); stage_x()
    st0 = st.n
    st.cyc()
    stage_w(); stage_x()
    a.I(f's_cmp_lg_u32 {sr(sR)}, 0')
    a.I('s_cbranch_scc1 k1_noreset')
    flag_srd(sO)
    oflag_off('s4')
    a.I('s_lshl_b32 s3, s2, 8')
    a.I(f'v_lshlrev_b32 {vr(t0)}, 2, v0')
    a.I(f'v_and_b32 {vr(t2)}, 127, {vr(t0)}')
    a.I(f'v_mov_b32 {vr(t1)}, 0')
    a.I(f'buffer_store_dword {vr(t1)}, {vr(t0)}, {sr(sO, 4)}, s3 offen sc1')
    a.I(f'buffer_store_dword {vr(t1)}, {vr(t2)}, {sr(sO, 4)}, s4 offen sc1')
    a.label('k1_noreset')
    if OPT['kvs'] == 3:
        a.I(f's_mul_i32 s3, s2, 171')
        a.I(f's_lshr_b32 s3, s3, 9')
        a.I(f's_mul_i32 s3, s3, 3')
        a.I(f's_sub_u32 {sr(sNEXT)}, s2, s3')
    else:
        a.I(f's_lshr_b32 s3, s2, 3')
        a.I(f's_and_b32 {sr(sNEXT)}, s3, 1')
    a.I(f's_add_u32 {sr(sNEXT)}, {sr(sNEXT)}, {OPT["kv0"]}')
    assert OPT['kv0'] + 4 * OPT['kvs'] - 1 <= 12
    if OPT['kvm'] != '-':
        ms = [sum(1 << int(c, 16) for c in m) for m in OPT['kvm'].split('/')]
        if len(ms) == 3: a.I(f's_sub_u32 s3, {sr(sNEXT)}, {OPT["kv0"]}')
        elif len(ms) == 2:
            a.I('s_lshr_b32 s3, s2, 3'); a.I('s_lshr_b32 s4, s2, 5'); a.I('s_xor_b32 s3, s3, s4'); a.I('s_and_b32 s3, s3, 1')
        else:
            a.I('s_lshr_b32 s3, s2, 3'); a.I('s_lshr_b32 s4, s2, 5'); a.I('s_add_u32 s3, s3, s4'); a.I('s_and_b32 s3, s3, 3')
        a.I(f's_mov_b32 {sr(sNEXT)}, {ms[0]}')
        for i, m in enumerate(ms[1:], 1):
            a.I(f's_cmp_eq_u32 s3, {i}')
            a.I(f's_cselect_b32 {sr(sNEXT)}, {m}, {sr(sNEXT)}')
    if OPT['qpf']:
        a.I(f's_lshl_b32 s3, {sr(sB)}, 2')
        a.I(f's_add_u32 s3, s3, {sr(sR)}')
        a.I('s_lshl_b32 s3, s3, 14')
        a.I('v_and_b32 v30, 31, v0')
        a.I('v_lshl_add_u32 v30, v30, 4, s3')
        a.I('v_lshrrev_b32 v31, 5, v0')
        a.I('v_lshl_add_u32 v30, v31, 13, v30')
        a.I(f's_and_b32 s3, {sr(sHP)}, 12')
        a.I(f's_add_u32 s3, s3, {sr(sR)}')
        a.I('s_mul_i32 s3, s3, 18432')
        a.I('s_add_u32 s3, s3, 1024')
        a.I('v_lshl_add_u32 v31, v0, 4, s3')
    a.I(f's_mov_b32 {sr(sLOOSE)}, 0')
    a.I(f's_mov_b32 {sr(sKVI)}, 0')
    a.I(f's_mov_b32 {sr(sCNT)}, 0')
    def lbar():
        lb = a.newlabel('k1_loose')
        a.I(f's_cmp_gt_i32 {sr(sLOOSE)}, 0')
        a.I(f's_cbranch_scc1 {lb}')
        a.I('s_waitcnt vmcnt(12)')
        a.label(lb)
        a.I(f's_sub_i32 {sr(sLOOSE)}, {sr(sLOOSE)}, 1')
        a.I('s_waitcnt vmcnt(20)')
        a.I('s_barrier')
        if OPT.get('qst'): st.cyc()
    a.label('k1_lloop')
    lbar()
    stage_w(); stage_x()
    if OPT['kvm'] != '-':
        a.I(f's_lshr_b32 s3, {sr(sNEXT)}, {sr(sCNT)}')
        a.I('s_and_b32 s3, s3, 1')
        a.I('s_cbranch_scc0 k1_kvdone')
    else:
        a.I(f's_cmp_lg_u32 {sr(sCNT)}, {sr(sNEXT)}')
        a.I('s_cbranch_scc1 k1_kvdone')
        a.I(f's_add_u32 {sr(sNEXT)}, {sr(sNEXT)}, {OPT["kvs"]}')
    a.I(f's_add_u32 {sr(sKVI)}, {sr(sKVI)}, 1')
    items = ['K0', 'V0', 'K1', 'V1'] + [OPT['kq'][i:i + 2] for i in range(0, len(OPT['kq']), 2) if OPT['kq'][i] in 'KV']
    if OPT['qpf']: items = ['PA'] + items
    def wshare(stages):
        for s_i in stages:
            a.I(f's_mov_b32 {sr(sT0)}, {s_i * 524288}')
            a.I(f'buffer_load_dwordx4 v[224:227], v30, {sr(sW, 4)}, {sr(sT0)} offen ; NOCHECK')
    for m, it in enumerate(items):
        a.I(f's_cmp_lg_u32 {sr(sKVI)}, {m + 1}')
        a.I(f's_cbranch_scc1 k1_kv{m + 1}')
        a.I(f's_mov_b32 {sr(sLOOSE)}, 2')
        if it == 'PA':
            wshare(range(8, 12))
            for k in range(9):
                a.I(f's_mov_b32 {sr(sT0)}, {k * 2048}')
                a.I(f'buffer_load_dwordx4 v[224:227], v31, {sr(sX, 4)}, {sr(sT0)} offen ; NOCHECK')
        else:
            if OPT['qpf'] and it == 'K0': wshare(range(12, 16))
            for hq in range(2):
                a.I(f's_mov_b32 {sr(sT0)}, {int(it[1]) * 16384 + hq * 131072}')
                for j in range(4):
                    if it in kvreg: a.I(f'buffer_load_dwordx4 {vr(kvreg[it] + 16 * hq + 4 * j, 4)}, {vr(vD)}, {sr(sK if it[0] == "K" else sV, 4)}, {sr(sT0)} offen offset:{j * 1024}{NT("kvnt")}')
                    else: a.I(f'buffer_load_dwordx4 v[224:227], {vr(vD)}, {sr(sK if it[0] == "K" else sV, 4)}, {sr(sT0)} offen offset:{j * 1024} ; NOCHECK')
                    if OPT['lin'] and j < 3: a.I(f's_add_u32 {sr(sT0)}, {sr(sT0)}, 3072')
        if m < len(items) - 1: a.I('s_branch k1_kvdone')
        a.label(f'k1_kv{m + 1}')
    a.label('k1_kvdone')
    a.I(f's_add_u32 {sr(sCNT)}, {sr(sCNT)}, 1')
    a.I(f's_cmp_lt_u32 {sr(sCNT)}, 13')
    a.I('s_cbranch_scc1 k1_lloop')
    a.I(f's_add_u32 s3, {sr(sM0W)}, 16384')
    a.I(f'v_lshl_add_u32 {vr(tA)}, v0, 4, s3')
    a.I(f'v_add_u32 {vr(tB)}, {81920 + 32768}, {vr(tA)}')
    a.I(f'v_add_u32 {vr(mx)}, {81920 - 16384}, {vr(tA)}')
    def kvwrite(it, off, b1=tB, off1=None):
        for hq in range(2):
            o = off if (hq == 0 or off1 is None) else off1
            for j in range(4): a.I(f'ds_write_b128 {vr((tA, b1)[hq])}, {vr(kvreg[it] + 16 * hq + 4 * j, 4)} offset:{o + j * 1024}')
    lbar()
    npf = 0
    a.I(f'v_lshlrev_b32 {vr(t1)}, 4, v0')
    if OPT['cpf']:
        a.I(f's_getpc_b64 {sr(sO, 2)}')
        a.label('k1_pc')
        a.I(f's_mov_b32 {sr(sO + 2)}, k1_end-k1_pc')
        a.I(f's_mov_b32 {sr(sO + 3)}, 0x20000')
        a.I(f's_lshr_b32 s3, {sr(sHP)}, 2')
        a.I('s_lshl_b32 s3, s3, 2')
        a.I(f's_add_u32 s3, s3, {sr(sR)}')
        a.I('s_lshl_b32 s3, s3, 11')
        for k in range(2):
            a.I(f'buffer_load_dwordx4 v[228:231], {vr(t1)}, {sr(sO, 4)}, s3 offen offset:{k * 1024} ; NOCHECK')
            npf += 1
    junk = []
    for it in [OPT['kw'][i:i + 2] for i in range(0, len(OPT['kw']), 2) if OPT['kw'][i] in 'KV']:
        for hq in range(2):
            for j in range(4):
                junk.append(([f's_mov_b32 {sr(sT0)}, {int(it[1]) * 16384 + hq * 131072}'] if j == 0 else []) +
                            [f'buffer_load_dwordx4 v[224:227], {vr(vD)}, {sr(sK if it[0] == "K" else sV, 4)}, {sr(sT0)} offen offset:{j * 1024} ; NOCHECK'])
    if OPT['wopf'] == 3:
        if OPT['wol2']:
            a.I(f's_and_b32 s3, {sr(sHP)}, 1')
            a.I(f's_lshl_b32 s4, {sr(sB)}, 1')
            a.I('s_add_u32 s3, s3, s4')
            a.I('s_lshl_b32 s3, s3, 19')
            a.I(f's_lshr_b32 s4, {sr(sHP)}, 1')
            a.I('s_lshl_b32 s4, s4, 8')
            a.I('s_add_u32 s3, s3, s4')
            a.I(f's_add_u32 {sr(sX)}, s18, s3')
            a.I(f's_addc_u32 {sr(sX + 1)}, s19, 0')
            a.I(f's_sub_u32 {sr(sX + 2)}, 8388608, s3')
            a.I(f'v_lshrrev_b32 {vr(t2)}, 4, v0')
            a.I(f'v_and_b32 {vr(t3)}, 255, {vr(t1)}')
            a.I(f'v_lshl_add_u32 {vr(t2)}, {vr(t2)}, 11, {vr(t3)}')
            for k in range(16):
                junk.append([f's_lshl_b32 {sr(sT0)}, {sr(sR)}, 17' if k == 0 else f's_add_u32 {sr(sT0)}, {sr(sT0)}, 8192',
                             f'buffer_load_dwordx4 v[224:227], {vr(t2)}, {sr(sX, 4)}, {sr(sT0)} offen ; NOCHECK'])
        else:
            wo_srd()
            for k in range(OPT['nwo']):
                junk.append(([f's_lshl_b32 {sr(sT0)}, {sr(sR)}, 14'] if k == 0 else []) + ([f's_add_u32 {sr(sT0)}, {sr(sT0)}, 4096'] if k and k & 3 == 0 else []) +
                            [f'buffer_load_dwordx4 v[224:227], {vr(t1)}, {sr(sX, 4)}, {sr(sT0)} offen offset:{(k & 3) * 1024} ; NOCHECK'])
    for x in junk[:8]: a.many(x); npf += 1
    kvwrite('K0', 0)
    a.I(f's_waitcnt vmcnt({npf})')
    a.I('s_barrier')
    for x in junk[8:16]: a.many(x)
    kvwrite('V0', 16384)
    a.I('s_barrier')
    for x in junk[16:]: a.many(x)
    a.I(f's_call_b64 {sr(sLINK, 2)}, k1_asetup')
    for i in range(O, 256, 2):
        if not 224 <= i < 232: a.I(f'v_mov_b64 {vr(i, 2)}, 0')
    if not OPT['lazyj']:
        a.I('s_waitcnt vmcnt(0)')
        for i in range(224, 232, 2): a.I(f'v_mov_b64 {vr(i, 2)}, 0')
    a.I(f's_cmp_lg_u32 {sr(sR)}, 0')
    a.I('s_cbranch_scc1 k1_nocount')
    dbg_srd(sO)
    a.I(f'v_mov_b32 {vr(140)}, 0')
    a.I(f'v_mov_b32 {vr(141)}, 1')
    a.I('s_mov_b64 exec, 1')
    a.I(f'buffer_atomic_add {vr(141)}, {vr(140)}, {sr(sO, 4)}, 0 offen sc1')
    a.I('s_mov_b64 exec, -1')
    a.label('k1_nocount')
    if OPT['lprio']: a.I('s_setprio 0')
    st.cyc()
    a.I('s_branch k1_join')

    a.label('k1_asetup')
    a.I(f's_lshl_b32 {sr(sKP)}, {sr(sHH)}, 15')
    a.I(f's_add_u32 {sr(sKP)}, {sr(sKP)}, 16384')
    a.I(f's_add_u32 {sr(sVP)}, {sr(sKP)}, 16384')
    a.I(f's_and_b32 s3, {sr(sR)}, 1')
    a.I('s_lshl_b32 s3, s3, 11')
    a.I(f's_lshl_b32 {sr(sJ)}, s3, 1')
    a.I(f's_sub_u32 {sr(sJ)}, 2048, {sr(sJ)}')
    a.I(f's_mul_i32 s5, {sr(sHH)}, 81920')
    a.I('s_add_u32 s5, s5, s3')
    a.I(f's_add_u32 s4, s5, {sr(sVP)}')
    a.I(f's_add_u32 s5, s5, {sr(sKP)}')
    a.I(f's_mul_i32 s3, {sr(sHH)}, 36864')
    a.I(f's_add_u32 s3, s3, {QB}')
    a.I(f'v_lshl_add_u32 {vr(tB)}, v0, 4, s3')
    a.I(f's_lshl_b32 s3, {sr(sR)}, 13')
    a.I(f'v_add_u32 {vr(mx8)}, s3, {vr(tB)}')
    tr_pattern(vVa)
    a.I(f'v_add_u32 {vr(vVa)}, s4, {vr(vVa)}')
    for j in range(1, 4): a.I(f'v_xor_b32 {vr(vVa + j)}, {32 * j}, {vr(vVa)}')
    a.I(f'v_bfe_u32 {vr(n)}, v0, 2, 2')
    hfun(t0, n, t1)
    a.I(f'v_xor_b32 {vr(t0)}, {vr(t0)}, {vr(g)}')
    a.I(f'v_lshlrev_b32 {vr(t0)}, 4, {vr(t0)}')
    a.I(f'v_lshl_add_u32 {vr(t0)}, {vr(n)}, 12, {vr(t0)}')
    a.I(f'v_and_b32 {vr(t1)}, 3, v0')
    a.I(f'v_lshl_add_u32 {vr(t0)}, {vr(t1)}, 7, {vr(t0)}')
    a.I(f'v_bfe_u32 {vr(t1)}, v0, 1, 1')
    a.I(f'v_lshl_add_u32 {vr(t0)}, {vr(t1)}, 6, {vr(t0)}')
    a.I(f'v_add_u32 {vr(vKa)}, s5, {vr(t0)}')
    a.I(f'v_xor_b32 {vr(vKa + 1)}, 64, {vr(vKa)}')
    for i in range(4): a.I(f'v_mov_b32 {vr(ONES + i)}, 0x3f803f80')
    for i in range(0, 12, 2): a.I(f'v_mov_b64 {vr(NEGM + i, 2)}, 0')
    NEG_BIG = fbits(-3.0e38)
    for s in (sTHR, sTHR8, sCL, sCL8): a.I(f's_mov_b32 {sr(s)}, {NEG_BIG}')
    a.I(f's_lshl_b32 s3, {sr(sHH)}, 17')
    a.I(f'v_add_u32 {vr(vD)}, s3, {vr(vD)}')
    a.I(f's_mov_b32 {sr(sOV)}, 32768')
    a.I(f's_mov_b32 {sr(sOK)}, 32768')
    a.I(f's_mov_b32 {sr(sT1)}, 32768')
    a.I(f's_mov_b32 {sr(sRS)}, 0')
    a.I(f's_setpc_b64 {sr(sLINK, 2)}')

    a.label('k1_comp')
    a.lg = []
    st.n = st0
    vWp, vX, vQW = 28, 32, 34
    tr_pattern(vWp)
    a.I(f's_lshr_b32 s3, {sr(sR)}, 1')
    a.I(f's_mul_i32 s4, s3, {HB1}')
    a.I(f's_and_b32 s5, {sr(sR)}, 1')
    a.I('s_lshl_b32 s6, s5, 9')
    a.I('s_add_u32 s4, s4, s6')
    a.I(f'v_add_u32 {vr(vWp)}, s4, {vr(vWp)}')
    for j in range(1, 4): a.I(f'v_xor_b32 {vr(vWp + j)}, {32 * j}, {vr(vWp)}')
    a.I(f'v_and_b32 {vr(n)}, 15, v0')
    a.I(f'v_lshrrev_b32 {vr(t0)}, 1, {vr(n)}')
    a.I(f'v_and_b32 {vr(t1)}, 2, {vr(t0)}')
    a.I(f'v_lshlrev_b32 {vr(t1)}, 1, {vr(t1)}')
    a.I(f'v_xor_b32 {vr(t0)}, {vr(t0)}, {vr(t1)}')
    a.I(f'v_lshlrev_b32 {vr(t1)}, 1, {vr(g)}')
    a.I(f'v_xor_b32 {vr(t0)}, {vr(t0)}, {vr(t1)}')
    a.I(f'v_lshlrev_b32 {vr(t0)}, 4, {vr(t0)}')
    a.I(f'v_lshl_add_u32 {vr(t0)}, {vr(n)}, 7, {vr(t0)}')
    a.I(f'v_add_u32 {vr(vX)}, {XB}, {vr(t0)}')
    a.I(f'v_xor_b32 {vr(vX + 1)}, 16, {vr(vX)}')
    a.I(f's_mul_i32 s4, s3, 36864')
    a.I('s_lshl_b32 s6, s5, 11')
    a.I('s_add_u32 s4, s4, s6')
    a.I(f's_add_u32 s4, s4, {QB}')
    a.I(f'v_lshl_add_u32 {vr(t0)}, {vr(n)}, 4, s4')
    a.I(f'v_lshrrev_b32 {vr(t1)}, 1, {vr(g)}')
    a.I(f'v_lshl_add_u32 {vr(t0)}, {vr(t1)}, 8, {vr(t0)}')
    a.I(f'v_and_b32 {vr(t1)}, 1, {vr(g)}')
    a.I(f'v_lshl_add_u32 {vr(vQW)}, {vr(t1)}, 3, {vr(t0)}')
    a.I('s_waitcnt lgkmcnt(0)')
    rest_setup()
    a.I(f's_call_b64 {sr(sLINK, 2)}, k1_asetup')
    cval = fbits(128 ** -0.5 * math.log2(math.e))
    a.I(f's_mov_b32 {sr(sC)}, {cval}')
    a.I(f's_mov_b32 {sr(sC + 1)}, {cval}')
    for i in range(0, 144, 2): a.I(f'v_mov_b64 {vr(ACC + i, 2)}, 0')
    def xread(t, slot, ks): return f'ds_read_b128 {vr(XF + 4 * t, 4)}, {vr(vX + ks)} offset:{slot * 18432 + t * 2048}'
    def wreads(W, slot, ks):
        return [f'ds_read_b64_tr_b16 {vr(W + 4 * j + 2 * h, 2)}, {vr(vWp + j)} offset:{slot * 16384 + ks * 2048 + h * 1024}' for j in range(4) for h in range(2)]
    GT = OPT['gate']
    def kstep(Wc, Wn, nslot, nks, gated, last=False):
        wr = wreads(Wn, nslot, nks) if not last else []
        conv = []
        for t in range(9):
            for j in range(4):
                a.I(f'{MF} {vr(acc(t, j), 4)}, {vr(Wc + 4 * j, 4)}, {vr(XF + 4 * t, 4)}, {vr(acc(t, j), 4)}')
                if t >= (GT if gated else 0) and j in (0, 2) and wr: a.I(wr.pop(0))
                for _ in range(OPT['cvn']):
                    if conv: a.I(conv.pop(0))
            if gated and t == GT - 1:
                a.I('s_waitcnt lgkmcnt(0)')
                a.I('s_barrier')
                if not last:
                    for tt in range(GT): a.I(xread(tt, nslot, nks))
            elif not last and (not gated or t >= GT): a.I(xread(t, nslot, nks))
            if last and t >= GT - 1:
                lo = 0 if t == GT - 1 else t - 1
                for tc in range(lo, t): conv += convert(tc)
        if last:
            a.many(conv); a.many(convert(8))
        assert not wr
    def convert(t):
        r = []
        if OPT['cvpk']:
            for j in range(4): r += [f'v_pk_mul_f32 {vr(acc(t, j) + 2 * k, 2)}, {vr(acc(t, j) + 2 * k, 2)}, {sr(sC, 2)}' for k in range(2)]
        else:
            for j in range(4): r += [f'v_mul_f32 {vr(acc(t, j) + k)}, {sr(sC)}, {vr(acc(t, j) + k)}' for k in range(4)]
        for j in range(4): r += [f'v_cvt_pk_bf16_f32 {vr(acc(t, j) + k)}, {vr(acc(t, j) + 2 * k)}, {vr(acc(t, j) + 2 * k + 1)}' for k in range(2)]
        for j in range(4): r += [f'ds_write_b64 {vr(vQW)}, {vr(acc(t, j), 2)} offset:{t * 4096 + (j >> 1) * 1024 + (j & 1) * 512}']
        r += [f'v_mov_b64 {vr(i, 2)}, 0' for i in range(acc(t, 0), acc(t, 0) + 16, 2) if i >= O]
        return r
    W0, W1 = WF, WF + 16
    if OPT['cprio']: a.I(f's_setprio {OPT["cprio"]}')
    a.I('s_barrier')
    st.cyc()
    a.many(wreads(W0, 0, 0))
    for t in range(9): a.I(xread(t, 0, 0))
    a.I(f's_mov_b32 {sr(sCNT)}, 0')
    a.I('s_waitcnt lgkmcnt(0)')
    class _Dry(Asm): pass
    save = (a.ins, a.lg); a.ins = []; a.lg = []
    kstep(W1, W0, 0, 0, True); lg0 = [set(x) for x in a.lg]
    a.ins, a.lg = save
    a.lg = [set(x) for x in lg0]
    a.label('k1_qloop')
    for i in range(3):
        kstep(W0, W1, i, 1, False)
        kstep(W1, W0, (i + 1) % 3, 0, True)
    assert [set(x) for x in a.lg] == lg0
    a.I(f's_add_u32 {sr(sCNT)}, {sr(sCNT)}, 1')
    a.I(f's_cmp_lt_u32 {sr(sCNT)}, 5')
    a.I('s_cbranch_scc1 k1_qloop')
    kstep(W0, W1, 0, 1, False)
    kstep(W1, W0, 0, 0, True, last=True)
    if OPT['cprio']: a.I('s_setprio 0')
    st.cyc()

    a.label('k1_join')
    if OPT.get('qst'): st.on = False
    a.lg = [set()]
    a.I(f's_mov_b32 {sr(sCNT)}, 0')
    a.I(f's_lshl_b32 s5, {sr(sHH)}, 15')
    a.I(f's_add_u32 s5, s5, {sr(sM0A)}')
    a.I('s_waitcnt lgkmcnt(0)')
    a.I('s_barrier')
    for T in range(2):
        for k in range(4): a.I(f'ds_read_b128 {vr(q_(T, k), 4)}, {vr(mx8)} offset:{T * 4096 + k * 1024}')
    for k in range(4): a.I(f'ds_read_b128 {vr(q_(2, k), 4)}, {vr(tB)} offset:{32768 + k * 1024}')
    a.I('s_waitcnt lgkmcnt(0)')
    a.I('s_barrier')
    a.lg = []
    def dma_ins(kind):
        srd, so = (sK, sOK) if kind == 'K' else (sV, sOV)
        r = [[f'buffer_load_dwordx4 {vr(vD)}, {sr(srd, 4)}, {sr(so)} offen offset:{j * 1024}{APOL(kind, j)} lds'] for j in range(4)]
        if OPT['lin']:
            for j in range(3): r[j].append(f's_add_u32 {sr(so)}, {sr(so)}, 3072')
        r[3].append(f's_add_u32 {sr(so)}, {sr(so)}, {16384 - (9216 if OPT["lin"] else 0)}')
        return r
    def dma_grp(kind, m0):
        r = dma_ins(kind); r[0] = [m0, 's_nop 0'] + r[0]
        return r
    pro_aux = []
    if OPT['kvl2']:
        a.I(f's_mov_b32 {sr(sOV)}, 16384')
        a.I(f's_mov_b32 {sr(sOK)}, 16384')
        a.I(f's_mul_i32 s3, {sr(sHH)}, 49152')
        a.I('s_sub_u32 s4, 49152, s3')
        a.I(f's_add_u32 s4, s4, {sr(sM0A)}')
        for x in dma_grp('K', 's_mov_b32 m0, s4'): a.many(x)
        pro_aux = dma_grp('V', 's_add_u32 m0, s4, 16384') + dma_grp('K', 's_mov_b32 m0, s5')
    else:
        for x in dma_grp('K', 's_mov_b32 m0, s5'): a.many(x)
        a.I(f's_cmp_eq_u32 {sr(sHH)}, 0')
        a.I('s_cbranch_scc1 k1_nowr')
        kvwrite('K1', 32768, mx, 0); kvwrite('V1', 49152, mx, 16384)
    a.label('k1_nowr')
    a.lg = []
    LA, SY = 6, OPT['sy']
    def rd(kind, jl, f):
        if kind == 'K':
            return [f'ds_read_b128 {vr(POOL + 4 * f, 4)}, {vr(vKa + (f & 1))} offset:{(f >> 2) * 1024 + ((f >> 1) & 1) * 512}']
        return [f'ds_read_b64_tr_b16 {vr(POOL + 4 * f + 2 * h, 2)}, {vr(vVa + (f & 3))} offset:{h * 1024 + (f >> 2) * 512}' for h in range(2)]
    def rd_upd(kind, jl, f):
        r = rd(kind, jl, f)
        if kind == 'K' and f >= 6: r.append(f'v_add_u32 {vr(vKa + (f & 1))}, {sr(sDK if jl else sJ)}, {vr(vKa + (f & 1))}')
        if kind == 'V' and f >= 6:
            for x in (f - 2, f): r.append(f'v_add_u32 {vr(vVa + (x & 3))}, {sr(sDV if jl else sJ)}, {vr(vVa + (x & 3))}')
        return r
    for f in range(LA): a.many(rd('K', 0, f))
    lgK = [set(x) for x in a.lg]
    lgV = [set(Insn(x).wr) for f in range(LA) for x in rd('V', 0, f)]
    st.cyc()
    a.I(f's_lshr_b32 s3, {sr(sR)}, 1')
    a.I(f's_xor_b32 s3, s3, {sr(sHH)}')
    a.I('s_cmp_eq_u32 s3, 1')
    a.I('s_cbranch_scc1 k1_proL')

    def maxops(jl, heavy):
        def chain(vs, dst, extra=None):
            o = [f'v_max3_f32 {vr(dst)}, {vr(vs[0])}, {vr(vs[1])}, {vr(vs[2])}']
            for k in range(3, len(vs) - 1, 2): o.append(f'v_max3_f32 {vr(dst)}, {vr(dst)}, {vr(vs[k])}, {vr(vs[k + 1])}')
            o.append(f'v_max_f32 {vr(dst)}, {vr(dst)}, {vr(vs[-1])}' if extra is None else f'v_max3_f32 {vr(dst)}, {vr(dst)}, {vr(vs[-1])}, {vr(extra)}')
            return o
        c1 = chain([s_(0, jl) + k for k in range(8)], tB)
        c0 = chain([s_(1, jl) + k for k in range(8)], mx, tB)
        c8 = chain([s_(2, 0) + k for k in range(8)], mx8) if heavy else []
        ops = []
        for k in range(4):
            ops += [c1[k]] + ([c8[k]] if heavy else []) + [c0[k]]
        return ops
    def expops(jl, heavy):
        ops = []
        Tl = (0, 1, 2) if heavy else (0, 1)
        for k in range(8):
            for T in Tl: ops.append(f'v_exp_f32 {vr(s_(T, jl) + k)}, {vr(s_(T, jl) + k)}')
            if k >= 2 and k % 2 == 0:
                for T in Tl: ops.append(f'v_cvt_pk_bf16_f32 {vr(s_(T, jl) + k // 2 - 1)}, {vr(s_(T, jl) + k - 2)}, {vr(s_(T, jl) + k - 1)}')
        for T in Tl: ops.append(f'v_cvt_pk_bf16_f32 {vr(s_(T, jl) + 3)}, {vr(s_(T, jl) + 6)}, {vr(s_(T, jl) + 7)}')
        return ops
    stubs = []
    def check(jl, heavy):
        for (thr, m, fn) in ((sTHR, mx, f'k1_rare{jl}'),) + (((sTHR8, mx8, 'k1_rare8'),) if heavy else ()):
            lb = a.newlabel('k1_ok')
            a.I(f'v_cmp_lt_f32 vcc, {sr(thr)}, {vr(m)}')
            a.I(f's_cbranch_vccnz {lb}_s')
            a.label(lb)
            stubs.append((lb, fn))
    def mfmas(kind, jl, heavy, f):
        Tl = (0, 1, 2) if heavy else (0, 1)
        P = vr(POOL + 4 * f, 4)
        if kind == 'K':
            tt, ks = f >> 2, f & 3
            return [f'{MF} {vr(s_(T, jl, tt), 4)}, {P}, {vr(q_(T, ks), 4)}, {vr(negm(T) if ks == 0 else s_(T, jl, tt), 4)}' for T in Tl]
        r = [f'{MF} {vr(o_(T, f), 4)}, {P}, {vr(s_(T, jl), 4)}, {vr(o_(T, f), 4)}' for T in Tl]
        if f == 7: r += [f'{MF} {vr(o_(T, 8), 4)}, {vr(ONES, 4)}, {vr(s_(T, jl), 4)}, {vr(o_(T, 8), 4)}' for T in Tl]
        return r
    def ring_step(doK, doV):
        r = []
        for (P, Po, D, on) in ((sKP, sKPo, sDK, doK), (sVP, sVPo, sDV, doV)):
            if not on: continue
            r.append([f's_mov_b32 {sr(Po)}, {sr(P)}',
                      f's_cmp_ge_u32 {sr(P)}, 49152',
                      f's_cselect_b32 {sr(D)}, {-49152 & 0xffffffff:#x}, {sr(sT1)}',
                      f's_add_u32 {sr(P)}, {sr(P)}, {sr(D)}',
                      f's_sub_u32 {sr(D)}, {sr(D)}, {sr(sJ)}'])
        return r
    def cost(x):
        if callable(x): return 8
        return 8 if x.startswith('v_exp') else 4
    def pack(stream, ngaps, reserved):
        for cap_extra in range(0, ngaps + 1):
            big = set((i * ngaps) // cap_extra for i in range(cap_extra)) if cap_extra else set()
            out = [[] for _ in range(ngaps)]; k = 0
            for gi in range(ngaps):
                room = (16 if gi in big else 8) - reserved[gi]
                while k < len(stream) and cost(stream[k]) <= room:
                    out[gi].append(stream[k]); room -= cost(stream[k]); k += 1
            if k == len(stream): break
        else:
            out[-1] += stream[k:]
        if cap_extra == 0 and OPT['spread']:
            h = max([gi for gi in range(ngaps) if any(callable(x) for x in out[gi])] + [-1]) + 1
            rest = [x for gi in range(h, ngaps) for x in out[gi]]
            groups = []; room = 0
            for x in rest:
                if cost(x) > room: groups.append([]); room = 8
                groups[-1].append(x); room -= cost(x)
            free = [gi for gi in range(h, ngaps) if reserved[gi] == 0]
            if len(groups) <= len(free):
                for gi in range(h, ngaps): out[gi] = []
                for i, gp in enumerate(groups): out[free[(i * len(free)) // len(groups)]] = gp
        return out
    def block(segs, streams, mode, aux0, nvm, auxat=None, pr=None, prn=3):
        uses = [(si, f) for si in range(len(segs)) for f in range(8)]
        nU = len(uses)
        gaps = []
        for k, (si, f) in enumerate(uses):
            for n_ in range(len(mfmas(segs[si][0], segs[si][1], segs[si][2], f))): gaps.append((k, n_))
        aux = {gp: [] for gp in gaps}; pre = {gp: [] for gp in gaps}
        for k in range(nU - LA):
            s2, f2 = uses[k + LA]
            rr = rd_upd(segs[s2][0], segs[s2][1], f2)
            for i, x in enumerate([x for x in rr if x.startswith('ds_')]): aux[(k, i)].append(x)
            pre[(k + 1, 0)] += [x for x in rr if x.startswith('v_')]
        if mode != 'fin':
            post = [gp for gp in gaps if gp[0] > nU - 8 + SY]
            q = [(f, x) for f in range(LA) for x in rd('V', 0, f)]
            early = [x for f, x in q if f < OPT['nimm']]; q = [(f, x) for f, x in q if f >= OPT['nimm']]
            per = -(-len(q) // len(post))
            for gp in post:
                for _ in range(per):
                    fdone = gp[0] - (nU - 8) - (0 if gp[1] == 1 else 1)
                    if q and q[0][0] <= fdone: aux[gp].append(q.pop(0)[1])
            assert not q, q
        gsel = gaps[OPT['aux0']::OPT['auxs']] if auxat is None else [gp for gp in gaps if gp[0] >= auxat]
        assert len(aux0) <= len(gsel)
        if mode == 'loop' and OPT['gk'] >= 0:
            gsel = gaps[:3] + [gaps[OPT['gk']], gaps[OPT['gv']]]
            assert len(aux0) == 5
            if OPT['g2from'] < 7:
                def cond(grp, late):
                    def f():
                        lb = a.newlabel('k1_site')
                        a.I(f's_cmp_ge_u32 {sr(sCNT)}, {OPT["g2from"]}')
                        a.I(f's_cbranch_scc{0 if late else 1} {lb}')
                        a.many(grp)
                        a.label(lb)
                    return f
                gsel = gsel + [gaps[OPT['gk2']], gaps[OPT['gv2']]]
                aux0 = aux0[:3] + [cond(aux0[3], False), cond(aux0[4], False), cond(aux0[3], True), cond(aux0[4], True)]
        for gp, x in zip(gsel, aux0): aux[gp].append(x)
        fill = {}
        for (sa, sb, skip, ops) in streams:
            gl = [gp for gp in gaps if sa <= uses[gp[0]][0] <= sb]
            gl = gl[skip:len(gl) - OPT['tail']]
            for gp, ol in zip(gl, pack(ops, len(gl), [4 * len(pre[gp]) for gp in gl])):
                fill[gp] = ol
                assert not (any(callable(x) for x in ol) and uses[gp[0]][0] != sa)
        def emit(x):
            if callable(x): x()
            elif isinstance(x, list):
                for y in x: emit(y)
            else: a.I(x)
        for k, (si, f) in enumerate(uses):
            kind, jl, heavy, after = segs[si]
            if f == 0 and OPT['aprio'] and si and not (mode == 'fin' and OPT['finp']): a.I(f's_setprio {pr[si] if pr else len(segs) - 1 - si}')
            for n_, m in enumerate(mfmas(kind, jl, heavy, f)):
                a.I(m)
                emit(pre[(k, n_)]); emit(fill.get((k, n_), [])); emit(aux[(k, n_)])
            if OPT['stamp'] == 3 and mode == 'loop' and f == 7 and si < 3: a.raw(f's_memtime {sr(90 + 2 * si, 2)}')
            if mode != 'fin' and k == nU - 8 + SY:
                if OPT['stamp'] == 3 and mode == 'loop':
                    a.raw('s_mov_b32 s88, s98')
                    a.raw('s_memtime s[96:97]')
                a.I(f's_waitcnt vmcnt({nvm}) lgkmcnt(0)')
                a.I('s_barrier')
                if OPT['aprio']: a.I(f's_setprio {prn}')
                st.sh()
                if OPT['stamp'] == 3 and mode == 'loop': a.raw('s_memtime s[98:99]')
                a.many(early)
                if mode == 'pro' and OPT['lazyj']:
                    for i in range(224, 232, 2): a.I(f'v_mov_b64 {vr(i, 2)}, 0')
            if f == 7 and after: after()
        if mode != 'fin': assert [set(x) for x in a.lg] == lgV, (a.lg, lgV)
    def resc():
        lb = a.newlabel('k1_nors')
        a.I(f's_cmp_lg_u32 {sr(sRS)}, 0')
        a.I(f's_cbranch_scc1 {lb}_s')
        a.label(lb)
        stubs.append((lb, 'k1_rescale'))
    def sm(jl, heavy): return maxops(jl, heavy) + [lambda: check(jl, heavy)] + expops(jl, heavy)
    OFFM0 = 0x30000
    def warm(kind, so):
        return [[f'buffer_load_dwordx4 {vr(vD)}, {sr(sK if kind == "K" else sV, 4)}, {so} offen offset:{j * 1024}{NT("pfp")} lds'] for j in range(4)]
    def prologue(h0):
        a.lg = [set(x) for x in lgK]
        ax = ring_step(True, False) + pro_aux
        block([('K', 0, h0, lambda: (a.many(maxops(0, h0)), check(0, h0))), ('K', 1, False, None)],
              [(1, 1, 0, expops(0, h0))], 'pro', ax, 8 if pro_aux else (4 if OPT['lazyj'] else 63), auxat=0, prn=OPT['px' if h0 else 'py'][1])
    def body_aux():
        r = [[f's_add_u32 {sr(sMK)}, {sr(sM0A)}, {sr(sVPo)}',
              f's_add_u32 {sr(sMV)}, {sr(sM0A)}, {sr(sKPo)}',
              f's_cmp_ge_u32 {sr(sCNT)}, 6',
              f's_cselect_b32 {sr(sMV)}, {OFFM0}, {sr(sMV)}',
              f's_cselect_b32 {sr(sOV)}, 0x1000000, {sr(sOV)}',
              f's_sub_u32 s3, {sr(sCNT)}, 1',
              f's_cmp_ge_u32 s3, 5',
              f's_cselect_b32 m0, {OFFM0}, {sr(sMK)}',
              f's_cselect_b32 s3, 0x1000000, {sr(sOK)}',
              f's_cselect_b32 s4, 0, 16384']]
        r += ring_step(True, True)
        for j in range(4): r.append([f'buffer_load_dwordx4 {vr(vD)}, {sr(sK, 4)}, s3 offen offset:{j * 1024}{APOL("K", j)} lds'] + (['s_add_u32 s3, s3, 3072'] if OPT['lin'] and j < 3 else []))
        r[-1] += [f's_add_u32 {sr(sOK)}, {sr(sOK)}, s4', f's_mov_b32 m0, {sr(sMV)}']
        nv = 4
        if OPT['mk']:
            w = warm('K', 's3')
            w[0] = [f's_mov_b32 s4, {OPT["mk"]}', f's_bitcmp1_b32 s4, {sr(sCNT)}', f's_cselect_b32 s3, {sr(sOK)}, 0x1000000'] + w[0]
            r += w; nv += 4
        if OPT['mv']:
            w = warm('V', 's3')
            w[0] = [f's_add_u32 s3, {sr(sOV)}, 16384', f's_mov_b32 s4, {OPT["mv"]}', f's_bitcmp1_b32 s4, {sr(sCNT)}', f's_cselect_b32 s3, s3, 0x1000000'] + w[0]
            r += w; nv += 4
        r += dma_ins('V')
        G = OPT['grp']
        if G > 1:
            head, d = r[:3], r[3:]
            r = head + [sum(d[i:i + G], []) for i in range(0, len(d), G)]
        return r, nv
    def body(hc, tag, exit_to):
        a.lg = [set(x) for x in lgV]
        hn = not hc
        ax, nvm = body_aux()
        block([('V', 0, hc, resc), ('K', 0, hn, None), ('V', 1, False, resc), ('K', 1, False, None)],
              [(0, 1, 1, sm(1, False)), (2, 3, 1, sm(0, hn))], 'loop', ax, nvm, pr=OPT['px' if hc else 'py'][1:], prn=OPT['py' if hc else 'px'][1])
        a.I(f's_add_u32 {sr(sCNT)}, {sr(sCNT)}, 1')
        a.I(f's_cmp_eq_u32 {sr(sCNT)}, 7')
        a.I(f's_cbranch_scc1 {exit_to}')
    K = K2(a)
    def final(hc):
        a.lg = [set(x) for x in lgV]
        lb = a.newlabel('k1_early')
        if OPT['finp']: a.I(f's_setprio {3 if OPT["finp"] == 1 else 0}')
        a.I(f's_cmp_eq_u32 {sr(sHH)}, 1')
        a.I(f's_cbranch_scc1 {lb}_s')
        a.label(lb)
        stubs.append((lb, 'k1_early'))
        NM8 = negm(2)
        ax = [[f's_lshl_b32 s5, {sr(sHH)}, 15', 's_add_u32 s5, s5, 81920', f's_lshl_b32 s13, {sr(sHH)}, 14',
               f's_lshl_b32 s4, {sr(sR)}, 11', 's_add_u32 s3, s4, s5', 'v_lshl_add_u32 v1, v0, 4, s3'],
              ['v_add_u32 v2, s13, v1', f's_lshl_b32 s3, {sr(sWAVE)}, 9', f'v_lshl_add_u32 {vr(vD)}, v0, 3, s3'],
              [], [f'v_mov_b32 {vr(NM8 + 1)}, {vr(o_(2, 8))}']]
        ax += [[f'ds_write_b128 {"v1" if d < 4 else "v2"}, {vr(o_(2, d), 4)} offset:{(d >> 1) * 8192 + (d & 1) * 1024}'] for d in range(8)]
        ax += [[f'ds_write_b64 {vr(vD)}, {vr(NM8, 2)}']]
        block([('V', 0, hc, resc), ('V', 1, False, None)], [(0, 0, 1, sm(1, False))], 'fin', ax, 0, auxat=8)
        if OPT['aprio']: a.I('s_setprio 0')
    prologue(True)
    a.label('k1_X')
    body(True, 'x', 'k1_finL')
    a.label('k1_Y')
    body(False, 'y', 'k1_finH')
    a.I('s_branch k1_X')
    a.label('k1_proL')
    prologue(False)
    a.I('s_branch k1_Y')

    a.auto = False
    def xg_reduce(x, tmp, op):
        a.I(f'v_mov_b32 {vr(tmp)}, {vr(x)}')
        a.I(f'v_permlane32_swap_b32 {vr(x)}, {vr(tmp)}')
        a.I(f'{op} {vr(x)}, {vr(x)}, {vr(tmp)}')
        a.I(f'v_mov_b32 {vr(tmp)}, {vr(x)}')
        a.I(f'v_permlane16_swap_b32 {vr(x)}, {vr(tmp)}')
        a.I(f'{op} {vr(x)}, {vr(x)}, {vr(tmp)}')
    FREG = {0: mx, 1: tA, 2: mx8}
    def rare(T, vals, scl, canfirst):
        m, tmp = tB, FREG[T]
        a.I(f'v_max3_f32 {vr(m)}, {vr(vals[0])}, {vr(vals[1])}, {vr(vals[2])}')
        for k in range(3, len(vals) - 1, 2): a.I(f'v_max3_f32 {vr(m)}, {vr(m)}, {vr(vals[k])}, {vr(vals[k + 1])}')
        a.I(f'v_max_f32 {vr(m)}, {vr(m)}, {vr(vals[-1])}')
        xg_reduce(m, tmp, 'v_max_f32')
        a.I(f'v_max_f32 {vr(m)}, {sr(scl)}, {vr(m)}')
        for v in vals: a.I(f'v_sub_f32 {vr(v)}, {vr(v)}, {vr(m)}')
        for k in range(4): a.I(f'v_sub_f32 {vr(negm(T) + k)}, {vr(negm(T) + k)}, {vr(m)}')
        lb = a.newlabel('k1_first'); lb2 = a.newlabel('k1_rdone')
        if canfirst:
            a.I(f's_cmp_lg_u32 {sr(scl)}, 0')
            a.I(f's_cbranch_scc1 {lb}')
        a.I(f'v_exp_f32 {vr(tmp)}, -{vr(m)}')
        if T == 2:
            for k in range(36): a.I(f'v_mul_f32 {vr(o_(T, 8) + k)}, {vr(o_(T, 8) + k)}, {vr(tmp)}')
        else:
            a.I(f's_mov_b32 {sr(sRS)}, 1')
        if canfirst: a.label(lb)
    for jl in range(2):
        a.label(f'k1_rare{jl}')
        for T in range(2): rare(T, [s_(T, jl) + k for k in range(8)], sCL, jl == 0)
        a.I(f's_mov_b32 {sr(sTHR)}, {THRV}')
        a.I(f's_mov_b32 {sr(sCL)}, 0')
        a.I(f's_setpc_b64 {sr(sLINK, 2)}')
    a.label('k1_rare8')
    rare(2, [s_(2, 0) + k for k in range(8)], sCL8, True)
    a.I(f's_mov_b32 {sr(sTHR8)}, {THRV}')
    a.I(f's_mov_b32 {sr(sCL8)}, 0')
    a.I(f's_setpc_b64 {sr(sLINK, 2)}')
    a.label('k1_early')
    if OPT['finp']: a.I(f's_setprio {0 if OPT["finp"] == 1 else 3}')
    K.early()
    a.I(f's_setpc_b64 {sr(sLINK, 2)}')
    a.label('k1_rescale')
    for T in range(2):
        for k in range(36): a.I(f'v_mul_f32 {vr(o_(T, 8) + k)}, {vr(o_(T, 8) + k)}, {vr(FREG[T])}')
    a.I(f's_mov_b32 {sr(sRS)}, 0')
    a.I(f's_setpc_b64 {sr(sLINK, 2)}')
    a.auto = True

    a.label('k1_finH')
    final(True)
    a.I('s_branch k1_epi')
    pos = len(a.ins)
    a.label('k1_finL')
    final(False)
    tailcode = a.ins[pos:]; del a.ins[pos:]
    for lb, fn in stubs:
        a.label(lb + '_s')
        a.raw(f's_call_b64 {sr(sLINK, 2)}, {fn}')
        a.raw(f's_branch {lb}')
    a.ins += tailcode
    a.label('k1_epi')
    a.lg = []
    st.cyc()
    e0, e1, e2, e3, e4 = 3, 4, 5, 6, 8
    NM8 = negm(2)
    a.lg = [set()]
    a.I(f'v_lshlrev_b32 {vr(e0)}, 4, v0')
    a.I(f's_lshl_b32 s3, {sr(sHH)}, 11')
    a.I(f'v_lshl_add_u32 {vr(e2)}, v0, 3, s3')
    a.I(f's_lshl_b32 s6, {sr(sR)}, 13')
    a.I('s_add_u32 s6, s6, s5')
    a.I(f's_cmp_ge_u32 {sr(sR)}, 2')
    a.I('s_cselect_b32 s13, s13, 0')
    a.I('s_add_u32 s6, s6, s13')
    a.I(f'v_add_u32 {vr(e1)}, s6, {vr(e0)}')
    R8 = S
    a.I(f'v_mov_b32 v2, {vr(e1)}')
    def bar1():
        a.I(f's_cmp_lg_u32 {sr(sHH)}, 0')
        a.I('s_cbranch_scc1 k1_nocs')
        K.comp_setup()
        a.label('k1_nocs')
        a.I('s_waitcnt lgkmcnt(0)')
        a.I('s_barrier')
        for sl in range(4): a.I(f'ds_read_b64 {vr(R8 + 32 + 2 * sl, 2)}, {vr(e2)} offset:{sl * 512}')
        for k in range(8): a.I(f'ds_read_b128 {vr(R8 + 4 * k, 4)}, v2 offset:{k * 1024}')
    if OPT['b1at'] < 0: bar1()
    flag_srd(sO)
    a.I(f's_cmp_eq_u32 {sr(sHH)}, 0')
    a.I('s_cbranch_scc1 k1_nosnap')
    K.snapshot()
    a.label('k1_nosnap')
    a.I('s_load_dwordx2 s[10:11], s[0:1], 80')
    sOO = sV
    a.I(f's_lshl_b32 s3, {sr(sBLK)}, 3')
    a.I(f's_add_u32 s3, s3, {sr(sB)}')
    a.I(f's_mul_i32 s3, s3, {O_SLICE}')
    a.I(f's_mul_i32 s6, {sr(sHP)}, 73728')
    a.I('s_add_u32 s3, s3, s6')
    a.I(f's_add_u32 {sr(sOO)}, s16, s3')
    a.I(f's_addc_u32 {sr(sOO + 1)}, s17, 0')
    a.I(f's_mov_b32 {sr(sOO + 2)}, 73728')
    a.I(f's_mov_b32 {sr(sOO + 3)}, 0x20000')
    a.I(f's_mul_i32 s3, {sr(sHH)}, 36864')
    a.I(f'v_add_u32 {vr(e3)}, s4, {vr(e0)}')
    def fin(src, scale2, voff, soff, imm):
        for k in range(4): a.I(f'v_pk_mul_f32 {vr(src + 2 * k, 2)}, {vr(src + 2 * k, 2)}, {vr(scale2, 2)}')
        for k in range(4): a.I(f'v_cvt_pk_bf16_f32 {vr(src + k)}, {vr(src + 2 * k)}, {vr(src + 2 * k + 1)}')
        a.I(f'buffer_store_dwordx4 {vr(src, 4)}, {vr(voff)}, {sr(sOO, 4)}, {soff} offen offset:{imm}{NT("ont")}')
    for T in range(2):
        for k in range(2): a.I(f'v_rcp_f32 {vr(o_(T, 8) + k)}, {vr(o_(T, 8) + k)}')
    a.I(f's_add_u32 s6, s3, {K.XB}')
    a.I(f'v_add_u32 {vr(e1)}, s6, {vr(e3)}')
    a.I('s_mov_b32 s6, s3')
    def xw(P): return [f'ds_write_b128 {vr(e1)}, {vr(o_(T, 2 * P), 4)} offset:{P * 9216 + T * 1024}' for T in range(2)]
    for P in range(4):
        for T in range(2): fin(o_(T, 2 * P), o_(T, 8), e3, 's6', T * 1024)
        if P < 3: a.I('s_add_u32 s6, s6, 9216')
        if P == OPT['b1at']: bar1()
        if P == OPT['b2at']:
            a.I('s_waitcnt lgkmcnt(0)')
            a.I('s_barrier')
            for Q_ in range(P): a.many(xw(Q_))
        if P >= OPT['b2at']: a.many(xw(P))
    K.ids()
    a.I(f's_mul_i32 s6, {sr(sR)}, 9216')
    a.I('s_add_u32 s6, s6, s3')
    a.I(f'v_add_u32 {vr(e3)}, 8192, {vr(e0)}')
    nm = [R8 + 32 + 2 * i for i in range(4)]
    ll = [R8 + 33 + 2 * i for i in range(4)]
    a.I(f'v_min3_f32 {vr(e0)}, {vr(nm[0])}, {vr(nm[1])}, {vr(nm[2])}')
    a.I(f'v_min_f32 {vr(e0)}, {vr(e0)}, {vr(nm[3])}')
    for i in range(4): a.I(f'v_sub_f32 {vr(nm[i])}, {vr(e0)}, {vr(nm[i])}')
    for i in range(4): a.I(f'v_exp_f32 {vr(nm[i])}, {vr(nm[i])}')
    a.I(f'v_mul_f32 {vr(e0)}, {vr(ll[0])}, {vr(nm[0])}')
    for i in range(1, 4): a.I(f'v_fmac_f32 {vr(e0)}, {vr(ll[i])}, {vr(nm[i])}')
    a.I(f'v_rcp_f32 {vr(e4)}, {vr(e0)}')
    a.I(f'v_rcp_f32 {vr(e4 + 1)}, {vr(e0)}')
    for k in range(8): a.I(f'v_mul_f32 {vr(R8 + k)}, {vr(R8 + k)}, {vr(nm[0])}')
    for i in range(1, 4):
        for k in range(8): a.I(f'v_fmac_f32 {vr(R8 + k)}, {vr(R8 + 8 * i + k)}, {vr(nm[i])}')
    fin(R8, e4, e3, 's6', 0)
    a.I(f's_add_u32 s6, s6, {K.XB}')
    a.I(f'v_add_u32 {vr(e3)}, s6, {vr(e3)}')
    a.I(f'ds_write_b128 {vr(e3)}, {vr(R8, 4)}')
    if OPT['stamp'] == 3: st.n = 12
    else: st.cyc(); st.real()
    K.st1 = st
    if OPT['stamp'] == 8: K.st.n = st.n
    if OPT.get('qst'): st.on = True
    return K.main()

class K2:
    sO, sW, sD, sE, sF = 20, 24, 28, 20, 36
    sWAVE, sR, sLD, sBLK, sB, sHP, sN8, sKH, sKC = 40, 41, 42, 43, 44, 45, 67, 64, 62
    sM0W, sM0X, sOW, sOX, sSL, sCNT, sT0, sST, sROT, sH, sNH, sKS = 55, 48, 49, 50, 51, 52, 53, 54, 65, 56, 57, 58
    sSTX, sFO, sPC, sHPc = 59, 60, 61, 66
    sRW, sRX, sWB, sXB, sWEX = 68, 72, 54, 59, 8
    sLINK = 8
    vWp, vX, vL16, vFA, vFV, vDW, vDX, vZ, vCT = 40, 42, 44, 34, 35, 28, 32, 38, 39
    g, t0, t1, t2 = 45, 46, 47, 28
    ACC8 = [48, 56, 64, 116, 124, 132, 140, 220, 228]
    TMP8 = [196, 204, 212, 236, 244, 4, 12, 20, 32]
    FQ = [76 + 4 * i for i in range(10)] + [148 + 4 * i for i in range(12)]
    XB = 81920
    @staticmethod
    def wslot(i): return 16384 + ((i + 1) & 3) * 16384
    def __init__(self, a):
        self.a = a; self.st = Stamper(a, 1)
    def early(self):
        a = self.a; K = self
        sW, sR = K.sW, K.sR
        t0, t1 = 36, 37
        a.I(f's_lshr_b32 s12, {sr(sR)}, 1')
        a.I(f's_xor_b32 {sr(K.sH)}, {sr(sR)}, s12')
        a.I(f's_and_b32 {sr(K.sH)}, {sr(K.sH)}, 1')
        a.I(f's_lshl_b32 {sr(K.sH)}, {sr(K.sH)}, 1')
        a.I(f's_or_b32 {sr(K.sH)}, {sr(K.sH)}, s12')
        a.I(f'v_and_b32 {vr(t0)}, 7, v0')
        a.I(f'v_xor_b32 {vr(t0)}, {sr(K.sH)}, {vr(t0)}')
        a.I(f'v_bfe_u32 {vr(t1)}, v0, 4, 1')
        a.I(f'v_lshlrev_b32 {vr(t1)}, 2, {vr(t1)}')
        a.I(f'v_xor_b32 {vr(t0)}, {vr(t0)}, {vr(t1)}')
        a.I(f's_and_b32 s12, {sr(K.sHP)}, 1')
        a.I('s_lshl_b32 s12, s12, 7')
        a.I(f'v_lshl_add_u32 {vr(t0)}, {vr(t0)}, 4, s12')
        a.I(f'v_lshrrev_b32 {vr(t1)}, 5, v0')
        a.I(f'v_lshl_add_u32 {vr(t0)}, {vr(t1)}, 15, {vr(t0)}')
        a.I(f'v_bfe_u32 {vr(t1)}, v0, 3, 2')
        a.I(f's_lshl_b32 s12, {sr(sR)}, 2')
        a.I(f'v_add_u32 {vr(t1)}, s12, {vr(t1)}')
        a.I(f'v_lshl_add_u32 {vr(K.vDW)}, {vr(t1)}, 11, {vr(t0)}')
        a.I(f's_lshl_b32 {sr(K.sM0W)}, {sr(sR)}, 12')
        a.I(f'v_add_u32 {vr(K.vDW + 1)}, {65536 - 1024}, {vr(K.vDW)}')
        a.I(f'v_xor_b32 {vr(K.vDW + 2)}, 0x80, {vr(K.vDW)}')
        a.I(f'v_xor_b32 {vr(K.vDW + 3)}, 0x80, {vr(K.vDW + 1)}')
        a.I(f's_lshl_b32 {sr(K.sWB)}, {sr(K.sHP)}, 19')
        a.I(f's_lshr_b32 s12, {sr(K.sHP)}, 1')
        a.I(f's_lshl_b32 s12, s12, 8')
        a.I(f's_add_u32 {sr(sW)}, s18, s12')
        a.I(f's_addc_u32 {sr(sW + 1)}, s19, 0')
        a.I(f's_sub_u32 {sr(sW + 2)}, 8388608, s12')
        a.I(f's_mov_b32 {sr(sW + 3)}, 0x20000')
        a.I(f's_mov_b32 {sr(K.sD)}, s100')
        a.I(f's_mov_b32 {sr(K.sD + 1)}, s101')
        a.I(f's_mov_b32 {sr(K.sD + 2)}, 256')
        a.I(f's_mov_b32 {sr(K.sD + 3)}, 0x20000')
        a.I(f'v_mov_b32 {vr(K.vZ)}, 0')
        a.I(f'buffer_load_dword {vr(K.vCT)}, {vr(K.vZ)}, {sr(K.sD, 4)}, 0 offen sc1')
        for i in range(3): K.stw(i, own=True)
        a.I(f's_lshl_b32 s12, {sr(K.sBLK)}, 3')
        a.I(f's_add_u32 s12, s12, {sr(K.sB)}')
        a.I(f's_lshl_b32 {sr(K.sFO)}, s12, 11')
        a.I(f's_add_u32 {sr(K.sFO)}, {sr(K.sFO)}, 65536')
        a.I(f'v_and_b32 {vr(K.vFA)}, 15, v0')
        a.I(f'v_lshlrev_b32 {vr(K.vFA)}, 7, {vr(K.vFA)}')
    def snapshot(self):
        a = self.a; K = self
        a.I(f's_mov_b32 {sr(K.sPC)}, 0')
        a.I('s_movk_i32 s12, 0x100')
        a.I('s_waitcnt vmcnt(12)')
        a.label('k2_allin')
        a.I(f'v_cmp_le_u32 vcc, s12, {vr(K.vCT)}')
        a.I('s_cbranch_vccnz k2_allok ; POLL')
        a.I(f'buffer_load_dword {vr(K.vCT)}, {vr(K.vZ)}, {sr(K.sD, 4)}, 0 offen sc1')
        a.I(f's_add_u32 {sr(K.sPC)}, {sr(K.sPC)}, 1')
        a.I('s_waitcnt vmcnt(0)')
        a.I(f's_cmp_lt_u32 {sr(K.sPC)}, {OPT["pollmax"]}')
        a.I('s_cbranch_scc1 k2_allin')
        a.label('k2_allok')
        a.I(K.flagload())
    def publish(self, cond):
        a = self.a; K = self
        lb = a.newlabel('k2_nopub')
        a.I(f's_cmp_lg_u32 {cond}')
        a.I(f's_cbranch_scc1 {lb}')
        a.I('s_mov_b64 exec, 1')
        a.I(f'buffer_store_dword {vr(K.vCT)}, {vr(K.vZ)}, {sr(K.sF, 4)}, s4 offen sc1')
        a.I('s_mov_b64 exec, -1')
        a.label(lb)
    def ids(self):
        a = self.a; K = self
        a.I(f's_and_b32 {sr(K.sKH)}, {sr(K.sHP)}, 1')
        a.I(f's_lshr_b32 {sr(K.sN8)}, {sr(K.sHP)}, 1')
        a.I(f'v_lshlrev_b32 {vr(K.vL16)}, 4, v0')
    def comp_setup(self):
        a = self.a; K = self
        sKS, sNH, sR, sE, g, t0, t1, vWp, vX, vL16, XB = K.sKS, K.sNH, K.sR, K.sE, K.g, K.t0, K.t1, K.vWp, K.vX, K.vL16, K.XB
        a.I(f's_and_b32 {sr(sKS)}, {sr(sR)}, 1')
        a.I(f's_lshr_b32 {sr(sNH)}, {sr(sR)}, 1')
        a.I(f'v_lshrrev_b32 {vr(g)}, 4, v0')
        a.I(f'v_lshrrev_b32 {vr(t1)}, 1, {vr(g)}')
        a.I(f'v_xor_b32 {vr(t0)}, {vr(g)}, {vr(t1)}')
        a.I(f'v_and_b32 {vr(t0)}, 1, {vr(t0)}')
        a.I(f'v_lshl_or_b32 {vr(t0)}, {vr(t0)}, 1, {vr(t1)}')
        a.I(f'v_bfe_u32 {vr(t1)}, v0, 1, 1')
        a.I(f'v_xor_b32 {vr(t0)}, {vr(t0)}, {vr(t1)}')
        a.I(f'v_lshlrev_b32 {vr(t0)}, 4, {vr(t0)}')
        a.I(f'v_lshl_add_u32 {vr(t0)}, {vr(g)}, 12, {vr(t0)}')
        a.I(f'v_bfe_u32 {vr(t1)}, v0, 2, 2')
        a.I(f'v_lshl_add_u32 {vr(t0)}, {vr(t1)}, 7, {vr(t0)}')
        a.I(f'v_bfe_u32 {vr(t1)}, v0, 3, 1')
        a.I(f'v_xor_b32 {vr(t1)}, {sr(sKS)}, {vr(t1)}')
        a.I(f'v_lshl_add_u32 {vr(t0)}, {vr(t1)}, 6, {vr(t0)}')
        a.I(f'v_and_b32 {vr(t1)}, 1, v0')
        a.I(f'v_lshl_add_u32 {vr(t0)}, {vr(t1)}, 3, {vr(t0)}')
        a.I(f's_lshl_b32 s12, {sr(sNH)}, 11')
        a.I('s_add_u32 s12, s12, 16384')
        a.I(f'v_add_u32 {vr(vWp)}, s12, {vr(t0)}')
        a.I(f'v_xor_b32 {vr(vWp + 1)}, 32, {vr(vWp)}')
        a.I(f'v_lshlrev_b32 {vr(vL16)}, 4, v0')
        a.I(f'v_add_u32 {vr(vX)}, {XB}, {vr(vL16)}')
        a.I(f'v_add_u32 {vr(vX + 1)}, {XB + 9216}, {vr(vL16)}')
        for b in K.ACC8:
            for i in range(0, 8, 2): a.I(f'v_mov_b64 {vr(b + i, 2)}, 0')
        a.I(f's_add_u32 {sr(sE)}, s16, {EXCH_OFF}')
        a.I(f's_addc_u32 {sr(sE + 1)}, s17, 0')
        a.I(f's_mov_b32 {sr(sE + 2)}, {256 * 36864}')
        a.I(f's_mov_b32 {sr(sE + 3)}, 0x20000')
        a.I(f's_cmp_eq_u32 {sr(sNH)}, 0')
        a.I('s_cselect_b32 s12, 1, 0')
        a.I(f's_cselect_b32 {sr(K.sPC)}, 9, 7')
        a.I('s_xor_b32 s12, s2, s12')
        a.I('s_lshl_b32 s12, s12, 1')
        a.I(f's_add_u32 s12, s12, {sr(sKS)}')
        a.I(f's_lshl_b32 {sr(K.sT0)}, s12, 7')
        a.I(f's_mul_i32 {sr(K.sOX)}, s12, 18432')
        a.I(f'v_mov_b32 {vr(t0)}, 0')
        a.I(f's_mov_b32 {sr(K.sSL)}, 0')
    def late(self):
        a = self.a; K = self
        sO, sR, sB, sBLK = K.sO, K.sR, K.sB, K.sBLK
        a.I(f's_lshr_b32 s12, {sr(K.sHP)}, 2')
        a.I(f's_add_u32 {sr(K.sROT)}, {sr(sB)}, s12')
        a.I(f's_and_b32 {sr(K.sROT)}, {sr(K.sROT)}, {OPT["rot2"]}')
        a.I(f'v_add_u32 {vr(K.vDX)}, {sr(K.sM0W)}, {vr(K.vL16)}')
        a.I(f's_lshl_b32 {sr(K.sM0X)}, {sr(sR)}, 10')
        a.I(f's_add_u32 {sr(K.sM0X)}, {sr(K.sM0X)}, 16384')
        a.I(f'v_add_u32 {vr(K.vDX + 1)}, {sr(K.sM0X)}, {vr(K.vL16)}')
        for i in range(4):
            a.I(f's_add_u32 s12, {sr(K.sROT)}, {i}')
            a.I('s_and_b32 s12, s12, 3')
            a.I(f's_lshl_b32 {sr(K.sRW + i)}, s12, 17')
            a.I(f's_mul_i32 {sr(K.sRX + i)}, s12, 18432')
        a.I(f's_mov_b32 {sr(K.sKC)}, -1')
        a.I(f's_lshl_b32 s12, {sr(sBLK)}, 3')
        a.I(f's_add_u32 s12, s12, {sr(sB)}')
        a.I(f's_mul_i32 s12, s12, {O_SLICE}')
        a.I(f's_add_u32 {sr(sO)}, s16, s12')
        a.I(f's_addc_u32 {sr(sO + 1)}, s17, 0')
        a.I(f's_mov_b32 {sr(sO + 2)}, {O_SLICE}')
        a.I(f's_mov_b32 {sr(sO + 3)}, 0x20000')
        a.I(f's_lshl_b32 s4, {sr(K.sHP)}, 7')
        a.I(f's_add_u32 s4, s4, {sr(K.sFO)}')
        a.I(f'v_mov_b32 {vr(K.vCT)}, 1')
        a.I(f's_lshl_b32 s5, {sr(sR)}, 4')
        a.I('s_add_u32 s5, s5, 1')
    def stw(self, i, own=False, tail=False):
        a = self.a; K = self
        a.I(f's_add_u32 m0, {sr(K.sM0W)}, {K.wslot(i)}')
        a.I(f's_add_u32 {sr(K.sOW)}, {sr(K.sWB)}, {i * 131072 if own else sr(K.sRW + i)}')
        for u in range(2 if tail else 4):
            if u == 2: a.I(f's_add_u32 m0, {sr(K.sM0W)}, {K.wslot(i) + 2048}')
            a.I(f'buffer_load_dwordx4 {vr(K.vDW + u)}, {sr(K.sW, 4)}, {sr(K.sOW)} offen offset:{(u & 1) * 1024}{NT("wont")} lds')
    def stx(self, i):
        a = self.a; K = self
        lb = a.newlabel('k2_skipx')
        a.I(f's_add_u32 m0, {sr(K.sM0W)}, {K.XB + i * 18432}')
        a.I(f's_add_u32 {sr(K.sOX)}, {sr(K.sXB)}, {sr(K.sRX + i)}')
        for j in range(4): a.I(f'buffer_load_dwordx4 {vr(K.vDX)}, {sr(K.sO, 4)}, {sr(K.sOX)} offen offset:{j * 1024}{NT("oldf")} lds')
        a.I(f's_add_u32 m0, {sr(K.sM0X)}, {K.XB + i * 18432}')
        a.I(f's_cmp_ge_u32 {sr(K.sR)}, 2')
        a.I(f's_cbranch_scc1 {lb}')
        a.I(f'buffer_load_dwordx4 {vr(K.vDX + 1)}, {sr(K.sO, 4)}, {sr(K.sOX)} offen{NT("oldf")} lds')
        a.label(lb)
    def ready(self):
        a = self.a; K = self
        l1, l2 = a.newlabel('k2_chk'), a.newlabel('k2_go')
        a.I(f's_mov_b32 {sr(K.sPC)}, 0')
        a.label(l1)
        a.I(f'v_cmp_eq_u32 vcc, 1, {vr(K.vFV)}')
        a.I(f's_bitcmp1_b32 vcc_lo, {sr(K.sHPc)}')
        a.I(f's_cbranch_scc1 {l2} ; TAKEN')
        a.I(K.flagload())
        a.I(f's_add_u32 {sr(K.sPC)}, {sr(K.sPC)}, 1')
        a.I('s_waitcnt vmcnt(0)')
        a.I(f's_cmp_lt_u32 {sr(K.sPC)}, {OPT["pollmax"]}')
        a.I(f's_cbranch_scc1 {l1}')
        a.label(l2)
    def fl1(self, vt):
        n = self.st1.n; self.st1.flush(16, self.sWAVE, self.sW, vt); self.st1.n = n
    def nextseg(self, tail=False):
        a = self.a; K = self
        if tail:
            a.I(f's_cmp_eq_u32 {sr(K.sN8)}, 7')
            a.I('s_cselect_b32 s12, 5, 7')
            a.I(f's_add_u32 {sr(K.sHPc)}, s12, {sr(K.sCNT)}')
        else:
            a.I(f's_add_u32 {sr(K.sKC)}, {sr(K.sKC)}, 1')
            a.I(f's_cmp_eq_u32 {sr(K.sKC)}, {sr(K.sN8)}')
            a.I(f's_addc_u32 {sr(K.sKC)}, {sr(K.sKC)}, 0')
            a.I(f's_lshl_b32 {sr(K.sHPc)}, {sr(K.sKC)}, 1')
            a.I(f's_add_u32 {sr(K.sHPc)}, {sr(K.sHPc)}, {sr(K.sKH)}')
        a.I(f's_lshl_b32 {sr(K.sWB)}, {sr(K.sHPc)}, 19')
        a.I(f's_mul_i32 {sr(K.sXB)}, {sr(K.sHPc)}, 73728')
    def flagload(self): return f'buffer_load_dword {vr(self.vFV)}, {vr(self.vFA)}, {sr(self.sF, 4)}, {sr(self.sFO)} offen sc1 ; NOCHECK'
    def main(self):
        a = self.a; st = self.st; K = self
        MF = 'v_mfma_f32_16x16x32_bf16'
        sO, sW, sD, sE, sF, sR, sB, sN8, sKH, sBLK = K.sO, K.sW, K.sD, K.sE, K.sF, K.sR, K.sB, K.sN8, K.sKH, K.sBLK
        sOW, sOX, sSL, sCNT, sT0, sST, sSTX, sPC, sHPc, sNH, sKS = K.sOW, K.sOX, K.sSL, K.sCNT, K.sT0, K.sST, K.sSTX, K.sPC, K.sHPc, K.sNH, K.sKS
        vWp, vX, vDW, vL16, g, t0, t1, t2 = K.vWp, K.vX, K.vDW, K.vL16, K.g, K.t0, K.t1, K.t2
        XB = K.XB
        def acc(t, j): return K.ACC8[t] + 4 * j
        def tmp(k): return K.TMP8[k >> 1] + 4 * (k & 1)
        st.real(); st.cyc()
        a.I(f's_cmp_eq_u32 {sr(K.sLD)}, 0')
        a.I('s_cbranch_scc1 k2_comp')
        if OPT['lprio']: a.I(f's_setprio {OPT["lprio"]}')
        K.stw(3, own=True)
        a.I('s_waitcnt vmcnt(13) lgkmcnt(0)')
        a.I('s_barrier')
        st0 = st.n
        st.cyc()
        K.late()
        a.I(f's_mov_b32 {sr(sCNT)}, 1')
        K.nextseg()
        a.I('s_barrier')
        if OPT['fast1']:
            a.I(f'v_cmp_eq_u32 vcc, 1, {vr(K.vFV)}')
            a.I(f's_bitcmp1_b32 vcc_lo, {sr(sHPc)}')
            a.I('s_cbranch_scc1 k2_fast ; EITHER')
        K.stw(0)
        a.I('s_barrier')
        K.stw(1)
        a.I(K.flagload())
        a.I('s_waitcnt vmcnt(9)')
        a.I('s_barrier')
        K.publish(f'{sr(sR)}, 0')
        K.stw(2)
        a.I('s_waitcnt vmcnt(5)')
        K.ready()
        K.stx(0); K.stx(1); K.stx(2)
        a.I('s_waitcnt vmcnt(8)')
        a.I('s_barrier')
        a.I(K.flagload())
        K.stw(3); K.stx(3)
        a.I(f's_mov_b32 {sr(sCNT)}, 2')
        a.I('s_waitcnt vmcnt(12)')
        for tail in (False, True):
            a.label('k2_tloop' if tail else 'k2_lloop')
            K.nextseg(tail)
            for i in range(4):
                a.I(f's_waitcnt vmcnt({12 if tail else 16})')
                a.I('s_barrier')
                if i == 0 and not tail: a.label('k2_fast')
                if i == 2 and not tail: K.publish(f'{sr(sCNT)}, s5')
                K.stw(i, tail=tail)
                if i == 0: K.ready()
                if i == 1: a.I(K.flagload())
                K.stx(i)
            a.I(f's_add_u32 {sr(sCNT)}, {sr(sCNT)}, 1')
            a.I(f's_cmp_lt_u32 {sr(sCNT)}, {9 if tail else 7}')
            a.I(f's_cbranch_scc1 {"k2_tloop" if tail else "k2_lloop"}')
        for nv in (12, 6, 0, 0):
            a.I(f's_waitcnt vmcnt({nv})')
            a.I('s_barrier')
        st.cyc(); st.cyc(); st.cyc(); st.cyc(); st.real()
        st.flush(16, K.sWAVE, sW, t0); K.fl1(t0)
        a.I('s_endpgm')
        a.label('k2_comp')
        st.n = st0
        a.lg = []
        FS = (K.FQ[:11], K.FQ[11:])
        def reads(F, slot, ks):
            w = [f'ds_read_b64_tr_b16 {vr(F[j] + 2 * h, 2)}, {vr(vWp + j)} offset:{K.wslot(slot) - 16384 + ks * 1024 + h * 512}' for j in range(2) for h in range(2)]
            x = [f'ds_read_b128 {vr(F[2 + t], 4)}, {vr(vX + ks)} offset:{slot * 18432 + t * 1024}' for t in range(9)]
            if OPT['jmaj'] == 1: return w[:2] + x + w[2:]
            return w[:2] + x[:1] + w[2:] + x[1:]
        G2 = OPT['gate2']
        def kstep(Fc, Fn, nslot, nks, gated, vm=''):
            rd_ = reads(Fn, nslot, nks)
            if not gated: a.I(f's_waitcnt lgkmcnt({OPT["lw2"]})')
            k = 0
            order = [(t, j) for t in range(9) for j in range(2)]
            if OPT['jmaj'] == 1: order = [(t, j) for j in range(2) for t in range(9)]
            if OPT['jmaj'] == 2: order = [(t, j ^ (t & 1)) for t in range(9) for j in range(2)]
            for t, j in order:
                if True:
                    if gated and k == G2:
                        a.I(f's_waitcnt {vm}lgkmcnt(0)')
                        a.I('s_barrier')
                    if not gated and k == 6: a.I(f's_waitcnt lgkmcnt(6)')
                    a.I(f'{MF} {vr(acc(t, j), 4)}, {vr(Fc[j], 4)}, {vr(Fc[2 + t], 4)}, {vr(acc(t, j), 4)}')
                    if k >= (G2 if gated else 0) and rd_: a.I(rd_.pop(0))
                    k += 1
            assert not rd_
        if OPT['cprio']: a.I(f's_setprio {OPT["cprio"]}')
        a.I('s_waitcnt lgkmcnt(0)')
        a.I('s_barrier')
        st.cyc()
        a.many(reads(FS[0], 0, 0))
        a.I(f's_mov_b32 {sr(sCNT)}, 0')
        lg0 = [set(x) for x in a.lg]
        a.label('k2_cloop')
        for i in range(4):
            if OPT['kpf'] and i in (OPT['kpf'] - 1, OPT['kpf']):
                a.I(f's_cmp_eq_u32 {sr(sCNT)}, 8')
                a.I(f's_cbranch_scc1 k2_e{i}')
                a.label(f'k2_r{i}')
            kstep(FS[0], FS[1], i, 1, False)
            kstep(FS[1], FS[0], (i + 1) & 3, 0, True, 'vmcnt(0) ' if i == 2 else '')
        assert [set(x) for x in a.lg] == lg0
        st.sh()
        a.I(f's_add_u32 {sr(sCNT)}, {sr(sCNT)}, 1')
        a.I(f's_cmp_lt_u32 {sr(sCNT)}, {sr(sPC)}')
        a.I('s_cbranch_scc1 k2_cloop')
        st.cyc()
        XP = NT('xpol')
        a.I(f's_cmp_eq_u32 {sr(sNH)}, 0')
        a.I('s_cbranch_scc1 k2_keep')
        SB = {1: (8,), 2: (5, 11), 0: ()}[OPT['ssplit']]
        H = OPT['xbf']
        NX = 9 if H else 18
        if H: SB = ()
        for k in range(NX):
            src = acc(k, 0) if H else acc(k >> 1, k & 1)
            if H:
                for q in range(4): a.I(f'v_cvt_pk_bf16_f32 {vr(src + q)}, {vr(src + 2 * q)}, {vr(src + 2 * q + 1)}')
            a.I(f'buffer_store_dwordx4 {vr(src, 4)}, {vr(vL16)}, {sr(sE, 4)}, {sr(sOX)} offen offset:{(k & 3) * 1024}{XP}')
            if k & 3 == 3: a.I(f's_add_u32 {sr(sOX)}, {sr(sOX)}, 4096')
            if k in SB: a.I('s_barrier')
        stn = st.n
        st.cyc()
        for _ in range(OPT['sbar']): a.I('s_barrier')
        a.I(f'v_mov_b32 {vr(t1)}, 1')
        a.I('s_mov_b64 exec, 1')
        a.I('s_waitcnt vmcnt(0)')
        st.cyc()
        a.I(f'buffer_store_dword {vr(t1)}, {vr(t0)}, {sr(sF, 4)}, {sr(sT0)} offen{XP}')
        a.I('s_mov_b64 exec, -1')
        for _ in range(8 - len(SB) - OPT['sbar']): a.I('s_barrier')
        st.cyc(); st.real()
        st.flush(16, K.sWAVE, sW, t0); K.fl1(t0)
        a.I('s_endpgm')
        def xloads():
            for k in range(NX):
                a.I(f'buffer_load_dwordx4 {vr(tmp(k), 4)}, {vr(vL16)}, {sr(sE, 4)}, {sr(sOX)} offen offset:{(k & 3) * 1024}{XP}')
                if k & 3 == 3: a.I(f's_add_u32 {sr(sOX)}, {sr(sOX)}, 4096')
        if OPT['kpf']:
            a.auto = False
            i = OPT['kpf']
            a.label(f'k2_e{i - 1}')
            a.I(f'buffer_load_dword {vr(t1)}, {vr(t0)}, {sr(sF, 4)}, {sr(sT0)} offen{XP}')
            a.I(f's_branch k2_r{i - 1}')
            a.label(f'k2_e{i}')
            a.I('s_waitcnt vmcnt(0)')
            a.I(f'v_cmp_eq_u32 vcc, 1, {vr(t1)}')
            a.I(f's_cbranch_vccz k2_r{i}')
            xloads()
            a.I(f's_mov_b32 {sr(sSL)}, 1')
            a.I(f's_branch k2_r{i}')
            a.auto = True
        a.label('k2_keep')
        st.n = stn
        a.I(f's_mov_b32 {sr(sCNT)}, 0')
        st.cyc()
        a.I(f's_cmp_eq_u32 {sr(sSL)}, 1')
        a.I('s_cbranch_scc1 k2_have')
        a.label('k2_poll')
        a.I(f'buffer_load_dword {vr(t1)}, {vr(t0)}, {sr(sF, 4)}, {sr(sT0)} offen{XP}')
        a.I(f's_add_u32 {sr(sCNT)}, {sr(sCNT)}, 1')
        a.I('s_waitcnt vmcnt(0)')
        a.I(f'v_cmp_eq_u32 vcc, 1, {vr(t1)}')
        a.I('s_cbranch_vccnz k2_got ; POLL')
        a.I(f's_cmp_lt_u32 {sr(sCNT)}, {OPT["pollmax"]}')
        a.I('s_cbranch_scc1 k2_poll')
        a.label('k2_got')
        xloads()
        a.label('k2_have')
        st.cyc()
        a.I(f's_mul_i32 s3, {sr(sB)}, {144 * 4096}')
        a.I(f's_add_u32 {sr(sD)}, s10, s3')
        a.I(f's_addc_u32 {sr(sD + 1)}, s11, 0')
        a.I(f's_mov_b32 {sr(sD + 2)}, {144 * 4096}')
        a.I(f's_mov_b32 {sr(sD + 3)}, 0x20000')
        a.I(f'v_and_b32 {vr(t2)}, 15, v0')
        a.I(f'v_lshlrev_b32 {vr(t2)}, 12, {vr(t2)}')
        a.I(f'v_lshl_add_u32 {vr(t2)}, {vr(g)}, 4, {vr(t2)}')
        a.I(f's_lshl_b32 s3, {sr(sBLK)}, 11')
        a.I(f's_lshl_b32 s4, {sr(K.sHP)}, 7')
        a.I('s_add_u32 s3, s3, s4')
        a.I(f's_lshl_b32 s4, {sr(sKS)}, 6')
        a.I('s_add_u32 s3, s3, s4')
        for t in range(9):
            d = acc(t, 0)
            if H:
                a.I('s_waitcnt vmcnt(8)')
                for k in range(4):
                    a.I(f'v_lshlrev_b32 {vr(K.TMP8[8] + 2 * k)}, 16, {vr(tmp(t) + k)}')
                    a.I(f'v_and_b32 {vr(K.TMP8[8] + 1 + 2 * k)}, 0xffff0000, {vr(tmp(t) + k)}')
                for k in range(4): a.I(f'v_pk_add_f32 {vr(d + 2 * k, 2)}, {vr(d + 2 * k, 2)}, {vr(K.TMP8[8] + 2 * k, 2)}')
            else:
                a.I(f's_waitcnt vmcnt({16 - t})')
                for k in range(4): a.I(f'v_pk_add_f32 {vr(d + 2 * k, 2)}, {vr(d + 2 * k, 2)}, {vr(K.TMP8[t] + 2 * k, 2)}')
            for k in range(4): a.I(f'v_cvt_pk_bf16_f32 {vr(d + k)}, {vr(d + 2 * k)}, {vr(d + 2 * k + 1)}')
            for mn in ('v_permlane32_swap_b32', 'v_permlane16_swap_b32'):
                for k in range(2): a.I(f'{mn} {vr(d + k)}, {vr(d + 2 + k)}')
            a.I(f'buffer_store_dwordx4 {vr(d, 4)}, {vr(t2)}, {sr(sD, 4)}, s3 offen{NT("outp")}')
            a.I('s_add_u32 s3, s3, 65536')
        st.cyc(); st.real()
        st.flush(16, K.sWAVE, sW, t0); K.fl1(t0)
        a.label('k1_end')
        a.raw('s_endpgm')
        return a

HEADER = open(f'cdna_kernels/{NAME}.s.ref').read().split('; Override launch')[0]
DOC = """;
; One persistent launch, one workgroup (8 waves) per CU = (block, batch, head pair); generated by a hand-written script.
;  1. q projection: waves 4-7 stream x / wq tiles into a 3-stage LDS ring (LDS-DMA) and prefetch the first K/V chunks,
;     waves 0-3 run the 144x256x1024 MFMA loop; q (scaled by log2(e)/sqrt(128), bf16) is redistributed through LDS.
;  2. attention: 4 waves per head, 32 rows + a quarter of the ninth 16-row tile each; S^T = K q^T with the running
;     max folded into the accumulator input, online softmax with a checked lazy rescale (true max whenever a score
;     exceeds the reference by 2^8), P stays in registers, row sums by MFMA, K/V through a 5-slot LDS ring per head.
;  3. out projection: o goes to d_ws in fragment order (write-through) with per-workgroup ready flags; each workgroup
;     computes a 144x128 tile over half of the heads (own heads first, straight from LDS) and swaps half a tile with
;     its partner workgroup.  Flags are reset by their owner at entry; d_debug[0] counts the workgroups that did so.
"""
def kd(name, vg, sg=102):
    return f'''.amdhsa_kernel {name}
  .amdhsa_next_free_vgpr {vg}
  .amdhsa_next_free_sgpr {sg}
  .amdhsa_accum_offset {(min(vg, 256) + 3) // 4 * 4}
  .amdhsa_group_segment_fixed_size 0
  .amdhsa_kernarg_size 104
  .amdhsa_user_sgpr_count 2
  .amdhsa_user_sgpr_kernarg_segment_ptr 1
  .amdhsa_system_sgpr_workgroup_id_x 1
.end_amdhsa_kernel
'''
def main():
    ks = [('attn_kernel', gen_k1(), 256, 163840)]
    out = HEADER
    if OPT['fuse']:
        ks = [(NAME + '_kernel', ks[0][1], 256, 163840)]
        out += '; @launch grid=(256,1,1) block=(512,1,1) lds=163840\n'
        out += DOC
    else:
        for nm, _, _, lds in ks:
            out += f'; @launch kernel={nm} grid=(256,1,1) block=(512,1,1) lds={lds}\n'
    out += '.amdgcn_target "amdgcn-amd-amdhsa--gfx950"\n.text\n'
    for nm, a, vg, lds in ks:
        if OPT.get('novm'):
            seen = False; keep = []
            for x in a.ins:
                if x.mn == 's_barrier': seen = True
                if x.label in ('k2_m1',): seen = False
                if x.label == 'k2_cloop': seen = False; OPT['_stop'] = 1
                if OPT.get('_stop'): seen = False
                if seen and x.mn == 'buffer_load_dwordx4': continue
                keep.append(x)
            a.ins = keep
        if OPT.get('nokv'): a.ins = [x for x in a.ins if not (x.kind == 'vmem' and x.mn == 'buffer_load_dwordx4' and not x.lds and 'nt' in x.mods)]
        if OPT.get('nomfma'): a.ins = [x for x in a.ins if x.kind != 'mfma']
        if OPT.get('nods'): a.ins = [x for x in a.ins if not (x.kind == 'ds' and 'read' in x.mn)]
        n = a.pad_hazards(verbose=bool(OPT.get('v')))
        errs = 0; nbs = set()
        for wave in range(8):
            for pol in (lambda i, x: 'POLL' in x.text, lambda i, x: True):
              for wgid in (3, 12, 21, 30):
                tr = a.trace(wgid, wave, pol)
                e, nb = a.verify_waits(tr, quiet=(errs > 0 or bool(OPT.get('novm')) or OPT['stamp'] == 4)); errs += e; nbs.add(nb)
        assert (len(nbs) == 1 or (len(nbs) == 2 and max(nbs) - min(nbs) == 7 - OPT['sbar'])) and (errs == 0 or OPT.get('novm') or OPT['stamp'] == 4), (nbs, errs)
        print(f'{nm}: {len(a.ins)} lines, nops added {n}, wait errors {errs}, barriers {nb}, trace len {len(tr)}', file=sys.stderr)
        out += f'.globl {nm}\n.p2align 8\n.type {nm},@function\n{nm}:\n' + a.text()
    out += '.section .rodata,"a"\n'
    for nm, a, vg, lds in ks:
        out += '.p2align 6\n' + kd(nm, vg)
    open(sys.argv[1], 'w').write(out)
main()
```
